```python
import torch

def _softmax(x, axis=-1):
    return torch.softmax(x, dim=axis)
def _gelu(x):
    return torch.nn.functional.gelu(x, approximate="tanh")
def _silu(x):
    return torch.nn.functional.silu(x)
def _sigmoid(x):
    return torch.sigmoid(x)
def _layernorm(x, axis=-1, eps=1e-5):
    m = x.mean(dim=axis, keepdim=True)
    v = x.var(dim=axis, keepdim=True, unbiased=False)
    return (x - m) / torch.sqrt(v + eps)
def _scatter_add(tgt, idx, src, axis=0):
    return tgt.clone().index_add_(axis, idx, src)
def _segment_sum(src, seg, n):
    out = torch.zeros((n,) + src.shape[1:], dtype=src.dtype)
    return out.index_add_(0, seg, src)
def _pad(x, pw):
    flat = tuple(v for pair in reversed(pw) for v in pair)
    return torch.nn.functional.pad(x, flat)

kernel_name = 'sequential_preLN__linear_attn_block__dense_activation_squared_relu__prompt'

def setup_inputs():

    _w = (lambda a: (lambda t: t.to(torch.bfloat16) if t.is_floating_point() else t)(torch.as_tensor(a)))
    def _A_setup():
        B, S, D = 1, 2048, 640
        return {
            "x": _w((lambda *s: torch.randn(*s, dtype=torch.bfloat16) * 0.05)(B, S, D)),
            "wqkv": _w((lambda *s: torch.randn(*s, dtype=torch.bfloat16) * 0.1)(D, 3 * D)),
            "wo": _w((lambda *s: torch.randn(*s, dtype=torch.bfloat16) * 0.05)(D, D)),
        }
    _A_in = _A_setup()

    def _B_setup():
        B, S, D, F = 1, 2048, 640, 1536
        return {
            "x": _w((lambda *s: torch.randn(*s, dtype=torch.bfloat16) * 0.05)(B, S, D)),
            "w1": _w((lambda *s: torch.randn(*s, dtype=torch.bfloat16) * 0.05)(D, F)),
            "b1": _w((lambda *s: torch.randn(*s, dtype=torch.bfloat16) * 0.4)(F)),
            "w2": _w((lambda *s: torch.randn(*s, dtype=torch.bfloat16) * 0.05)(F, D)),
            "b2": _w((lambda *s: torch.randn(*s, dtype=torch.bfloat16) * 1.6)(D)),
        }
    _B_in = _B_setup()

    return {
        "A_x": _A_in["x"],
        "A_wqkv": _A_in["wqkv"],
        "A_wo": _A_in["wo"],
        "B_x": _B_in["x"],
        "B_w1": _B_in["w1"],
        "B_b1": _B_in["b1"],
        "B_w2": _B_in["w2"],
        "B_b2": _B_in["b2"],
    }

def reference(A_x, A_wqkv, A_wo, B_x, B_w1, B_b1, B_w2, B_b2):
    def _A_ref(x, wqkv, wo):
        B, S, D = x.shape
        H = 32; Dh = D // H
        qkv = (lambda x, *d: x.permute(*d))((x @ wqkv).reshape(B, S, 3, H, Dh), 2, 0, 3, 1, 4)
        q, k, v = qkv[0], qkv[1], qkv[2]
        phi = lambda t: torch.where(t > 0, t + 1, torch.exp(t)) + 1e-6
        pq, pk = phi(q), phi(k)
        kv = torch.einsum("bhsd,bhse->bhde", pk, v)
        z = torch.einsum("bhsd->bhd", pk)
        num = torch.einsum("bhqd,bhde->bhqe", pq, kv)
        den = torch.einsum("bhqd,bhd->bhq", pq, z)[..., None] + 1e-6
        o = num / den
        return (lambda x, *d: x.permute(*d))(o, 0, 2, 1, 3).reshape(B, S, D) @ wo

    def _B_ref(x, w1, b1, w2, b2):
        h = torch.einsum("bsd,df->bsf", x, w1) + b1
        zero = torch.zeros_like(h)
        r = torch.where(h > zero, h, zero)
        h = r * r
        out = torch.einsum("bsf,fd->bsd", h, w2) + b2
        return out

    x = A_x
    h = x + _A_ref(_layernorm(x, axis=-1), A_wqkv, A_wo)
    h2 = h + _B_ref(_layernorm(h, axis=-1), B_w1, B_b1, B_w2, B_b2)
    return h2
```

```python
import re

def vr(a, n=1, k='v'):
    return f"{k}{a}" if n == 1 else f"{k}[{a}:{a+n-1}]"
def ar(a, n=1): return vr(a, n, 'a')
def sr(a, n=1): return vr(a, n, 's')

class Kern:
    def __init__(self, name):
        self.name = name
        self.L = []
        self.vm_n = 0; self.vm_tags = {}
        self.lg_n = 0; self.lg_tags = {}
        self.vm_done = 0
        self.lg_done = 0
    def i(self, s):
        for line in s.split("\n"):
            line = line.strip()
            if line: self.L.append(line)
    def c(self, s): self.L.append("; " + s)
    def label(self, s): self.L.append(s + ":")
    def vm(self, s, tag=None):
        self.i(s)
        if tag is not None: self.vm_tags[tag] = self.vm_n
        self.vm_n += 1
    def lg(self, s, tag=None):
        self.i(s)
        if tag is not None: self.lg_tags[tag] = self.lg_n
        self.lg_n += 1
    def _wv(self, tag):
        idx = self.vm_tags[tag]
        if idx < self.vm_done: return None
        n = self.vm_n - idx - 1
        self.vm_done = idx + 1
        return min(n, 63)
    def _wl(self, tag):
        idx = self.lg_tags[tag]
        if idx < self.lg_done: return None
        n = self.lg_n - idx - 1
        self.lg_done = idx + 1
        return min(n, 15)
    def wait(self, vm=None, lg=None):
        parts = []
        if vm is not None:
            if vm == 'all':
                if self.vm_done < self.vm_n: parts.append("vmcnt(0)")
                self.vm_done = self.vm_n
            else:
                n = self._wv(vm)
                if n is not None: parts.append(f"vmcnt({n})")
        if lg is not None:
            if lg == 'all':
                if self.lg_done < self.lg_n: parts.append("lgkmcnt(0)")
                self.lg_done = self.lg_n
            else:
                n = self._wl(lg)
                if n is not None: parts.append(f"lgkmcnt({n})")
        if parts: self.i("s_waitcnt " + " ".join(parts))
    def reset_counts(self):
        self.vm_done = self.vm_n; self.lg_done = self.lg_n

_REG = re.compile(r"^(-|\|)?(abs\()?([vas])(\d+|\[(\d+):(\d+)\])\)?\|?$")
def regs_of(tok):
    tok = tok.strip()
    if tok in ("vcc",): return {("s", 106), ("s", 107)}
    if tok == "vcc_lo": return {("s", 106)}
    if tok == "vcc_hi": return {("s", 107)}
    if tok == "exec": return {("s", 126), ("s", 127)}
    if tok == "m0": return {("s", 124)}
    m = _REG.match(tok)
    if not m: return set()
    k = m.group(3)
    if m.group(5) is not None:
        return {(k, r) for r in range(int(m.group(5)), int(m.group(6)) + 1)}
    return {(k, int(m.group(4)))}

TRANS = ("v_exp_", "v_log_", "v_rcp_", "v_rsq_", "v_sqrt_", "v_sin_", "v_cos_")
class Ins:
    def __init__(self, text):
        self.text = text
        t = text.split(";")[0].strip()
        self.is_label = t.endswith(":")
        self.is_dir = t.startswith(".") and not self.is_label
        self.empty = (t == "")
        self.op = ""; self.w = set(); self.r = set(); self.ops = []
        self.kind = None
        if self.is_label or self.is_dir or self.empty: return
        sp = t.split(None, 1)
        self.op = sp[0]
        rest = sp[1] if len(sp) > 1 else ""
        toks = []; cur = ""; d = 0
        for ch in rest:
            if ch in "[(": d += 1
            if ch in "])": d -= 1
            if ch == "," and d == 0: toks.append(cur.strip()); cur = ""
            else: cur += ch
        if cur.strip(): toks.append(cur.strip())
        mods = ""
        if toks:
            l = toks[-1].split()
            toks[-1] = l[0]; mods = " ".join(l[1:])
        self.ops = toks; self.mods = mods
        op = self.op
        R = [regs_of(x) for x in toks]
        if op.startswith("v_mfma"):
            self.kind = "mfma"; self.D = R[0]; self.A = R[1]; self.B = R[2]; self.C = R[3]
            self.w = R[0]; self.r = R[1] | R[2] | R[3]
            self.passes = 8 if "32x32" in op else 4
        elif op.startswith("v_"):
            self.kind = "valu"
            self.trans = op.startswith(TRANS)
            self.dpp = ("row_" in mods or "quad_perm" in mods or "_dpp" in op or "wave_" in mods)
            self.permlane = op.startswith("v_permlane")
            self.readlane = op.startswith("v_readlane") or op.startswith("v_readfirstlane")
            if self.permlane or op.startswith("v_swap"):
                self.w = R[0] | R[1]; self.r = R[0] | R[1]
            elif op.startswith(("v_add_co", "v_sub_co", "v_subrev_co", "v_addc_co", "v_subb_co", "v_mad_u64", "v_div_scale")):
                self.w = R[0] | R[1]; self.r = set().union(*R[2:])
            else:
                self.w = R[0]; self.r = set().union(*R[1:]) if len(R) > 1 else set()
                if op.startswith(("v_fmac", "v_dot2c", "v_pk_fmac", "v_mac", "v_writelane")) or self.dpp: self.r |= R[0]
            if op.startswith("v_cmpx"): self.w |= regs_of("exec")
        elif op.startswith(("buffer_", "global_", "flat_", "scratch_")):
            self.kind = "vmem"
            self.lds = bool(re.search(r"\blds\b", mods)) or "_lds_" in op
            self.wide_store = False
            if op in ("buffer_wbl2", "buffer_inv"):
                pass
            elif "_load" in op and not self.lds:
                self.w = R[0]; self.r = set().union(*R[1:])
            elif self.lds:
                self.r = set().union(*R) | regs_of("m0")
            elif op.startswith("buffer_"):
                self.r = set().union(*R); self.data = R[0]
                if "atomic" in op and "sc0" in mods: self.w = R[0]
                self.wide_store = ("x3" in op or "x4" in op) and "store" in op
            else:
                if "atomic" in op and "sc0" in mods:
                    self.w = R[0]; self.r = set().union(*R[1:]); self.data = R[2]
                else:
                    self.r = set().union(*R); self.data = R[1]
                self.wide_store = ("x3" in op or "x4" in op) and "store" in op
        elif op.startswith("ds_"):
            self.kind = "ds"
            if op.startswith(("ds_read", "ds_bpermute", "ds_permute", "ds_swizzle")) or "_rtn" in op:
                self.w = R[0]; self.r = set().union(*R[1:])
            else:
                self.r = set().union(*R)
        elif op.startswith("s_"):
            self.kind = "salu"
            if op.startswith(("s_cmp", "s_cbranch", "s_branch", "s_waitcnt", "s_nop", "s_barrier", "s_endpgm", "s_sleep", "s_setprio", "s_bitcmp")):
                self.r = set().union(*R) if R else set()
            else:
                self.w = R[0] if R else set(); self.r = set().union(*R[1:]) if len(R) > 1 else set()
                if "saveexec" in op: self.w |= regs_of("exec")
        else:
            raise ValueError("unknown op " + text)
    def states(self):
        if self.is_label or self.is_dir or self.empty: return 0
        if self.op == "s_nop": return int(self.ops[0], 0) + 1
        return 1

def isv(S): return {x for x in S if x[0] in "va"}
def iss(S): return {x for x in S if x[0] == "s"}

def need(P, C):
    n = 0
    if P.kind == "valu":
        wv = isv(P.w); ws = iss(P.w)
        if C.kind == "mfma" and wv & C.r: n = max(n, 2)
        if C.kind == "valu":
            if wv & C.r:
                if C.readlane: n = max(n, 1)
                if C.dpp or C.permlane: n = max(n, 2)
                if P.trans and not C.trans: n = max(n, 1)
            if ws & C.r:
                n = max(n, 2)
                if C.op.startswith(("v_readlane", "v_writelane")): n = max(n, 4)
            if (ws & regs_of("exec")) and (C.dpp): n = max(n, 5)
        if C.kind == "vmem" and ws & C.r: n = max(n, 5)
        if C.kind == "mfma" and (ws & regs_of("exec")): n = max(n, 4)
        if C.kind == "salu" and ws & C.r: n = max(n, 2)
    if P.kind == "mfma":
        far = 12 if P.passes == 8 else 8
        if C.kind == "mfma":
            if P.D & (C.A | C.B): n = max(n, far)
            if P.D & C.C:
                if not (P.D == C.C and P.passes == C.passes): n = max(n, far - 2)
            elif P.D & C.D: n = max(n, far)
        elif C.kind in ("valu", "vmem", "ds"):
            if P.D & (C.r | C.w): n = max(n, far)
            if C.kind == "valu" and (P.C & C.w): n = max(n, 7 if P.passes == 8 else 3)
    if P.kind == "salu":
        if (regs_of("m0") & P.w) and C.kind == "vmem" and getattr(C, "lds", False): n = max(n, 1)
    if P.kind == "vmem" and getattr(P, "wide_store", False):
        if P.data & C.w: n = max(n, 2 if C.kind == "valu" else 1)
    return n

def hazard_pass(lines, verbose=False):
    ins = [Ins(l) for l in lines]
    added = 0
    def maps():
        labels = {x.text.split(";")[0].strip()[:-1]: k for k, x in enumerate(ins) if x.is_label}
        br = {}
        for k, x in enumerate(ins):
            if x.op.startswith(("s_branch", "s_cbranch")):
                br.setdefault(labels[x.ops[0]], []).append(k)
        return br
    br = maps()
    k = 0
    while k < len(ins):
        C = ins[k]
        if C.kind is None:
            k += 1; continue
        worst = 0
        stack = [(k, 0)]; seen = {}
        while stack:
            p, d = stack.pop()
            if d >= 13 or seen.get(p, 99) <= d: continue
            seen[p] = d
            preds = []
            if ins[p].is_label: preds += br.get(p, [])
            if p > 0 and ins[p-1].op not in ("s_branch", "s_endpgm"): preds.append(p - 1)
            for q in preds:
                P = ins[q]
                if P.kind is not None:
                    nd = need(P, C)
                    if nd > d: worst = max(worst, nd - d)
                stack.append((q, d + P.states()))
        if worst > 0:
            if verbose: print("nop", worst, "before", C.text)
            ins.insert(k, Ins(f"s_nop {worst-1}"))
            added += worst
            br = maps()
            k += 1
        k += 1
    return [x.text for x in ins], added
```

```python
import sys
from asmlib import *

NAME = "sequential_preLN__linear_attn_block__dense_activation_squared_relu__prompt"
XN = 0x000000; WQ = 0x280000; WO = 0x500000; W1 = 0x600000; W2 = 0x800000
CS = 0x9F0000; KVA = 0xA00000; PQ = 0xB00000; HH = 0xE00000; ST = 0x1100000; H1 = 0x1200000
WSZ = 0x1800000
LOG2E = 0x3fb8aa3b
OPT = dict(p0ld="nt", p0st="", stamps=False)

def magic(C, maxq):
    for sh in range(8, 24):
        m = -(-(1 << sh) // C)
        if m * maxq < (1 << 32) and m < (1 << 24) and all((q * m) >> sh == q // C for q in range(maxq)): return m, sh
    raise ValueError

def srd(k, d, base, size):
    k.i(f"s_mov_b32 s{d}, s{base}\ns_mov_b32 s{d+1}, s{base+1}\ns_mov_b32 s{d+2}, {size}\ns_mov_b32 s{d+3}, 0x20000")

def bf16r(k, d, s):
    k.i(f"v_cvt_pk_bf16_f32 v{d}, v{s}, v{s}\nv_lshlrev_b32 v{d}, 16, v{d}")

def stamp(k, idx):
    if OPT["stamps"]: k.i(f"s_memrealtime s[{80+2*idx}:{81+2*idx}]")

def stamp_out(k, kidx, wsptr, n):
    if not OPT["stamps"]: return
    k.i("s_waitcnt vmcnt(0) lgkmcnt(0)")
    k.i(f"s_memrealtime s[{80+2*n}:{81+2*n}]")
    k.i("s_waitcnt lgkmcnt(0)")
    k.i(f"s_lshl_b32 s3, s2, 7\ns_add_u32 s3, s3, {0x2000000 + kidx*65536}\nv_mov_b32 v1, s3")
    for j in range(2*n+2): k.i(f"v_mov_b32 v{2+j}, s{80+j}")
    k.i("s_mov_b64 exec, -1")
    k.i(f"v_cmp_eq_u32 vcc, 0, v0\ns_and_saveexec_b64 s[34:35], vcc\ns_cbranch_execz {k.name}_end")
    for j in range(n+1): k.i(f"global_store_dwordx2 v1, v[{2+2*j}:{3+2*j}], s[{wsptr}:{wsptr+1}] offset:{8*j}")

def gen_p0():
    k = Kern("p0_kernel")
    ld = OPT["p0ld"]; st = OPT["p0st"]
    stamp(k, 0)
    k.i("""s_load_dwordx4 s[4:7], s[0:1], 0
    s_load_dwordx2 s[8:9], s[0:1], 16
    s_load_dwordx2 s[10:11], s[0:1], 32
    s_load_dwordx2 s[12:13], s[0:1], 48
    s_load_dwordx2 s[14:15], s[0:1], 80
    s_cmp_ge_u32 s2, 304
    s_cbranch_scc1 p0_kernel_end
    v_and_b32 v1, 63, v0
    v_lshrrev_b32 v2, 6, v0
    v_lshlrev_b32 v3, 4, v1
    v_readfirstlane_b32 s20, v2
    s_waitcnt lgkmcnt(0)""")
    srd(k, 16, 14, WSZ)
    k.i("""s_cmp_ge_u32 s2, 256
    s_cbranch_scc1 p0_w2
    s_cmp_ge_u32 s2, 208
    s_cbranch_scc1 p0_w1
    s_cmp_ge_u32 s2, 188
    s_cbranch_scc1 p0_wo
    s_cmp_ge_u32 s2, 168
    s_cbranch_scc1 p0_wq
    s_cmp_ge_u32 s2, 128
    s_cbranch_scc1 p0_wkv""")
    srd(k, 24, 4, 2621440)
    X = 8; F = 32; T = 72
    k.i("""v_lshrrev_b32 v4, 4, v0
    v_and_b32 v5, 15, v0
    s_lshl_b32 s21, s2, 4
    v_add_u32 v6, s21, v4
    s_movk_i32 s22, 1280
    v_mul_lo_u32 v6, v6, s22
    v_lshl_add_u32 v6, v5, 4, v6""")
    for i in range(5):
        k.vm(f"buffer_load_dwordx4 v[{X+4*i}:{X+4*i+3}], v6, s[24:27], 0 offen offset:{256*i} {ld}", f"x{i}")
    k.i(f"""s_mul_i32 s21, s2, 420
    s_add_u32 s21, s21, {KVA}
    v_lshlrev_b32 v7, 2, v0
    v_mov_b32 v28, 0
    v_cmp_gt_u32 vcc, 105, v0
    s_and_saveexec_b64 s[30:31], vcc
    s_cbranch_execz p0_ln_z""")
    k.i(f"buffer_store_dword v28, v7, s[16:19], s21 offen {st}")
    k.label("p0_ln_z")
    k.i("s_mov_b64 exec, s[30:31]")
    k.i(f"""s_lshr_b32 s21, s2, 1
    s_mul_i32 s21, s21, 40960
    s_and_b32 s22, s2, 1
    s_lshl_b32 s22, s22, 8
    s_add_u32 s21, s21, s22
    s_add_u32 s21, s21, {XN}
    v_lshrrev_b32 v7, 1, v5
    v_lshlrev_b32 v7, 10, v7
    v_and_b32 v29, 1, v5
    v_lshlrev_b32 v29, 9, v29
    v_lshl_add_u32 v7, v4, 4, v7
    v_add_u32 v7, v7, v29
    s_mov_b32 s23, 0xffff0000
    s_waitcnt vmcnt(0)""")
    for j in range(20):
        k.i(f"v_lshlrev_b32 v{F+2*j}, 16, v{X+j}\nv_and_b32 v{F+2*j+1}, s23, v{X+j}")
    k.i(f"v_pk_add_f32 v[112:113], v[{F}:{F+1}], v[{F+2}:{F+3}]")
    k.i(f"v_pk_add_f32 v[114:115], v[{F+4}:{F+5}], v[{F+6}:{F+7}]")
    for j in range(4, 20):
        a = 112 + 2 * (j & 1)
        k.i(f"v_pk_add_f32 v[{a}:{a+1}], v[{a}:{a+1}], v[{F+2*j}:{F+2*j+1}]")
    k.i("v_pk_add_f32 v[112:113], v[112:113], v[114:115]")
    k.i("v_add_f32 v112, v112, v113")
    def rowred(r):
        for s in (8, 4, 2, 1):
            k.i(f"v_add_f32_dpp v{r}, v{r}, v{r} row_ror:{s} row_mask:0xf bank_mask:0xf")
    rowred(112)
    k.i("v_mul_f32 v112, 0x3acccccd, v112")
    for j in range(20):
        k.i(f"v_pk_add_f32 v[{T+2*j}:{T+2*j+1}], v[{F+2*j}:{F+2*j+1}], v[112:113] op_sel_hi:[1,0] neg_lo:[0,1] neg_hi:[0,1]")
    k.i(f"v_pk_mul_f32 v[114:115], v[{T}:{T+1}], v[{T}:{T+1}]")
    k.i(f"v_pk_mul_f32 v[116:117], v[{T+2}:{T+3}], v[{T+2}:{T+3}]")
    for j in range(2, 20):
        a = 114 + 2 * (j & 1)
        k.i(f"v_pk_fma_f32 v[{a}:{a+1}], v[{T+2*j}:{T+2*j+1}], v[{T+2*j}:{T+2*j+1}], v[{a}:{a+1}]")
    k.i("v_pk_add_f32 v[114:115], v[114:115], v[116:117]")
    k.i("v_add_f32 v114, v114, v115")
    rowred(114)
    k.i("v_mul_f32 v114, 0x3acccccd, v114")
    bf16r(k, 112, 112)
    bf16r(k, 114, 114)
    k.i("v_add_f32 v114, 0x3727c5ac, v114")
    bf16r(k, 114, 114)
    k.i("v_sqrt_f32 v114, v114")
    bf16r(k, 114, 114)
    k.i("v_rcp_f32 v114, v114")
    for j in range(20):
        k.i(f"v_pk_add_f32 v[{T+2*j}:{T+2*j+1}], v[{F+2*j}:{F+2*j+1}], v[112:113] op_sel_hi:[1,0] neg_lo:[0,1] neg_hi:[0,1]")
    for j in range(20):
        k.i(f"v_cvt_pk_bf16_f32 v{X+j}, v{T+2*j}, v{T+2*j+1}")
    for j in range(20):
        k.i(f"v_lshlrev_b32 v{F+2*j}, 16, v{X+j}\nv_and_b32 v{F+2*j+1}, s23, v{X+j}")
    for j in range(20):
        k.i(f"v_pk_mul_f32 v[{F+2*j}:{F+2*j+1}], v[{F+2*j}:{F+2*j+1}], v[114:115] op_sel_hi:[1,0]")
    for i in range(5):
        for j in range(4*i, 4*i+4):
            k.i(f"v_cvt_pk_bf16_f32 v{X+j}, v{F+2*j}, v{F+2*j+1}")
        k.i(f"buffer_store_dwordx4 v[{X+4*i}:{X+4*i+3}], v7, s[16:19], s21 offen {st}")
        if i < 4: k.i("s_add_u32 s21, s21, 8192")
    k.i("s_branch p0_fin")

    def swz(kind, d, row):
        if kind == "w32":   k.i(f"v_and_b32 v{d}, 3, v{row}\nv_lshlrev_b32 v{d}, 6, v{d}")
        elif kind == "w1":  k.i(f"v_and_b32 v{d}, 2, v{row}\nv_lshlrev_b32 v{d}, 5, v{d}")
        elif kind == "w2":  k.i(f"v_and_b32 v{d}, 3, v{row}\nv_lshlrev_b32 v{d}, 6, v{d}\nv_and_b32 v31, 16, v{row}\nv_lshl_or_b32 v{d}, v31, 1, v{d}")
        elif kind == "wo":  k.i(f"v_and_b32 v{d}, 3, v{row}\nv_lshlrev_b32 v{d}, 6, v{d}\nv_and_b32 v31, 4, v{row}\nv_lshl_or_b32 v{d}, v31, 3, v{d}")
    def dma(C, stride, kind):
        m, sh = magic(C, 640)
        k.i(f"s_mul_i32 s22, s20, {640//C}\ns_mul_i32 s28, s20, 10240\ns_mov_b32 s29, {stride}")
        for i in range(10):
            k.i(f"v_add_u32 v4, {64*i}, v1")
            k.i(f"v_mul_u32_u24 v5, {m}, v4\nv_lshrrev_b32 v5, {sh}, v5")
            k.i(f"v_mul_u32_u24 v6, {C}, v5\nv_sub_u32 v6, v4, v6\nv_lshlrev_b32 v6, 4, v6")
            k.i("v_add_u32 v5, s22, v5")
            swz(kind, 7, 5)
            k.i("v_mul_lo_u32 v5, v5, s29")
            k.i("v_xad_u32 v4, v6, v7, v5")
            k.i(f"s_add_u32 m0, s28, {1024*i}")
            k.i(f"buffer_load_dwordx4 v4, s[24:27], s21 offen {ld} lds")
        k.i("""v_bfe_u32 v8, v1, 2, 2
        v_and_b32 v9, 3, v1
        v_lshrrev_b32 v10, 4, v1""")
    def fin_dma():
        k.i("s_waitcnt vmcnt(0)\ns_barrier")
    def frag_out(regs_list):
        pass
    D0 = 32
    k.label("p0_wkv")
    srd(k, 24, 6, 2457600)
    k.i("s_sub_u32 s35, s2, 128\ns_mul_i32 s21, s35, 61440\ns_add_u32 s21, s21, 1280")
    dma(160, 3840, "w32")
    k.i("""v_lshrrev_b32 v11, 1, v10
    v_lshl_add_u32 v11, v11, 3, v8
    v_and_b32 v12, 1, v10
    v_lshlrev_b32 v12, 5, v12
    v_lshl_add_u32 v12, v9, 3, v12
    s_and_b32 s22, s20, 1
    s_lshl_b32 s22, s22, 6
    s_lshr_b32 s23, s20, 1
    s_mul_i32 s23, s23, 1280
    s_add_u32 s22, s22, s23
    v_add_u32 v12, s22, v12""")
    swz("w32", 13, 11)
    k.i("v_mul_u32_u24 v11, 2560, v11")
    k.i(f"s_lshl_b32 s22, s35, 12\ns_lshl_b32 s23, s20, 10\ns_add_u32 s22, s22, s23\ns_add_u32 s22, s22, {WQ}")
    fin_dma()
    for ct in range(11):
        r = D0 + 4*ct
        k.i(f"v_add_u32 v14, {120*ct}, v12\nv_min_u32 v14, 2552, v14\nv_xad_u32 v14, v14, v13, v11")
        k.lg(f"ds_read_b64_tr_b16 v[{r}:{r+1}], v14")
        k.lg(f"ds_read_b64_tr_b16 v[{r+2}:{r+3}], v14 offset:{4*2560}", f"kv{ct}")
    for ct in range(11):
        r = D0 + 4*ct
        k.wait(lg=f"kv{ct}")
        k.i(f"buffer_store_dwordx4 v[{r}:{r+3}], v3, s[16:19], s22 offen {st}")
        if ct < 10: k.i("s_add_u32 s22, s22, 163840")
    k.i("s_branch p0_fin")
    k.reset_counts()
    k.label("p0_wq")
    srd(k, 24, 6, 2457600)
    k.i("s_sub_u32 s35, s2, 168\ns_mul_i32 s21, s35, 122880")
    dma(80, 3840, "w32")
    k.i("""v_lshrrev_b32 v11, 1, v10
    v_lshl_add_u32 v11, v11, 3, v8
    v_and_b32 v12, 1, v10
    v_lshlrev_b32 v12, 5, v12
    v_lshl_add_u32 v12, v9, 3, v12
    s_lshl_b32 s22, s20, 6
    v_add_u32 v12, s22, v12""")
    swz("w32", 13, 11)
    k.i("v_mul_u32_u24 v11, 1280, v11")
    k.i("v_xad_u32 v14, v12, v13, v11")
    k.i(f"s_lshl_b32 s22, s35, 13\ns_lshl_b32 s23, s20, 10\ns_add_u32 s22, s22, s23\ns_add_u32 s22, s22, {WQ + 11*163840}")
    fin_dma()
    for m in range(5):
        for ks in range(2):
            r = D0 + 4*(2*m+ks)
            o = 256*m + ks*16*1280
            k.lg(f"ds_read_b64_tr_b16 v[{r}:{r+1}], v14 offset:{o}")
            k.lg(f"ds_read_b64_tr_b16 v[{r+2}:{r+3}], v14 offset:{o+4*1280}", f"q{m}{ks}")
    for m in range(5):
        for ks in range(2):
            r = D0 + 4*(2*m+ks)
            k.wait(lg=f"q{m}{ks}")
            k.i(f"buffer_store_dwordx4 v[{r}:{r+3}], v3, s[16:19], s22 offen {st}")
            k.i(f"s_add_u32 s22, s22, {4096 if ks == 0 else 163840-4096}")
    k.i("s_branch p0_fin")
    k.reset_counts()
    k.label("p0_wo")
    srd(k, 24, 8, 819200)
    k.i("""s_sub_u32 s35, s2, 188
    s_mul_i32 s36, s35, 52
    s_lshr_b32 s36, s36, 8
    s_mul_i32 s37, s36, 5
    s_sub_u32 s37, s35, s37
    s_mul_i32 s21, s36, 204800
    s_lshl_b32 s22, s37, 8
    s_add_u32 s21, s21, s22""")
    dma(16, 1280, "wo")
    k.i("""v_lshlrev_b32 v12, 3, v9
    s_lshl_b32 s22, s20, 6
    v_add_u32 v12, s22, v12
    v_lshlrev_b32 v15, 3, v10""")
    for e in range(2):
        k.i(f"""s_lshl_b32 s38, s37, 3
        s_lshl_b32 s39, s20, 1
        s_add_u32 s38, s38, s39
        s_add_u32 s38, s38, {e}
        s_mul_i32 s39, s38, 205
        s_lshr_b32 s39, s39, 10
        s_mul_i32 s40, s39, 5
        s_sub_u32 s40, s38, s40
        s_lshl_b32 s39, s39, 2
        s_add_u32 s39, s39, s36
        s_mul_i32 s39, s39, 25
        s_add_u32 s39, s39, s40
        s_lshl_b32 s39, s39, 10
        s_add_u32 s{41+e}, s39, {WO}""")
    fin_dma()
    rowoff = [[0, 4, 20, 24, 8], [12, 16, 28, 32, 36]]
    for t in range(5):
        for h2 in range(2):
            K = 0
            for g in range(4):
                m_ = 4*t + 2*h2 + (g & 1)
                K |= (40*(m_//5) + rowoff[g >> 1][m_ % 5]) << (8*g)
            k.i(f"s_mov_b32 s22, {K:#x}\nv_bfe_u32 v11, s22, v15, 8\nv_add_u32 v11, v11, v8")
            swz("wo", 13, 11)
            k.i("v_lshlrev_b32 v11, 8, v11")
            k.i("v_xad_u32 v14, v12, v13, v11\nv_xor_b32 v16, 32, v14")
            for e in range(2):
                r = D0 + 4*(2*t+e) + 2*h2
                k.lg(f"ds_read_b64_tr_b16 v[{r}:{r+1}], v{14 if e == 0 else 16}", f"o{t}{e}")
    for t in range(5):
        for e in range(2):
            r = D0 + 4*(2*t+e)
            k.wait(lg=f"o{t}{e}")
            k.i(f"buffer_store_dwordx4 v[{r}:{r+3}], v3, s[16:19], s{41+e} offen {st}")
            k.i(f"s_add_u32 s{41+e}, s{41+e}, 5120")
    k.i("s_branch p0_fin")
    k.reset_counts()
    k.label("p0_w1")
    srd(k, 24, 10, 1966080)
    k.i("""s_sub_u32 s35, s2, 208
    s_cmp_ge_u32 s35, 24
    s_cselect_b32 s36, 1, 0
    s_mul_i32 s37, s36, 24
    s_sub_u32 s37, s35, s37
    s_mul_i32 s21, s36, 983040
    s_lshl_b32 s22, s37, 7
    s_add_u32 s21, s21, s22""")
    dma(8, 3072, "w1")
    k.i("""v_lshrrev_b32 v11, 1, v10
    v_lshl_add_u32 v11, v11, 3, v8
    v_and_b32 v12, 1, v10
    v_lshlrev_b32 v12, 5, v12
    v_lshl_add_u32 v12, v9, 3, v12""")
    swz("w1", 13, 11)
    k.i("""s_mul_i32 s22, s20, 80
    v_add_u32 v11, s22, v11
    v_lshlrev_b32 v11, 7, v11
    v_xad_u32 v14, v12, v13, v11
    v_xor_b32 v16, 64, v14
    v_mov_b32 v17, 0
    v_mov_b32 v18, 0
    s_mov_b32 s43, 0x3f803f80""")
    for e in range(2):
        k.i(f"""s_lshl_b32 s38, s37, 1
        s_add_u32 s38, s38, {e}
        s_mul_i32 s39, s38, 171
        s_lshr_b32 s39, s39, 9
        s_mul_i32 s40, s39, 3
        s_sub_u32 s40, s38, s40
        s_mul_i32 s39, s39, 40
        s_mul_i32 s44, s36, 20
        s_add_u32 s39, s39, s44
        s_mul_i32 s44, s20, 5
        s_add_u32 s39, s39, s44
        s_mul_i32 s39, s39, 3
        s_add_u32 s39, s39, s40
        s_lshl_b32 s39, s39, 10
        s_add_u32 s{41+e}, s39, {W1}""")
    fin_dma()
    for ks in range(5):
        for e in range(2):
            r = D0 + 4*(2*ks+e)
            k.lg(f"ds_read_b64_tr_b16 v[{r}:{r+1}], v{14+2*e} offset:{ks*2048}")
            k.lg(f"ds_read_b64_tr_b16 v[{r+2}:{r+3}], v{14+2*e} offset:{ks*2048+512}", f"a{ks}{e}")
    for ks in range(5):
        for e in range(2):
            r = D0 + 4*(2*ks+e)
            k.wait(lg=f"a{ks}{e}")
            k.i(f"buffer_store_dwordx4 v[{r}:{r+3}], v3, s[16:19], s{41+e} offen {st}")
            k.i(f"s_add_u32 s{41+e}, s{41+e}, 3072")
            for j in range(4):
                k.i(f"v_dot2_f32_bf16 v{17+e}, v{r+j}, s43, v{17+e}")
    k.i("""s_lshl_b32 s22, s20, 9
    v_lshl_add_u32 v19, v1, 2, s22
    s_nop 2
    ds_write_b32 v19, v17 offset:40960
    ds_write_b32 v19, v18 offset:41216
    s_waitcnt lgkmcnt(0)
    s_barrier
    s_cmp_lg_u32 s20, 0
    s_cbranch_scc1 p0_fin
    v_and_b32 v19, 31, v1
    v_lshrrev_b32 v20, 5, v1
    v_lshlrev_b32 v20, 8, v20
    v_lshl_add_u32 v19, v19, 2, v20""")
    for w in range(4):
        k.i(f"ds_read_b32 v{20+2*w}, v19 offset:{40960+512*w}\nds_read_b32 v{21+2*w}, v19 offset:{40960+512*w+128}")
    k.i("s_waitcnt lgkmcnt(0)")
    for j in range(1, 8): k.i(f"v_add_f32 v20, v20, v{20+j}")
    k.i(f"""s_mul_i32 s22, s36, 6144
    s_lshl_b32 s23, s37, 8
    s_add_u32 s22, s22, s23
    s_add_u32 s22, s22, {CS}
    v_lshlrev_b32 v19, 2, v1
    buffer_store_dword v20, v19, s[16:19], s22 offen {st}
    s_branch p0_fin""")
    k.reset_counts()
    k.label("p0_w2")
    srd(k, 24, 12, 1966080)
    k.i("s_sub_u32 s35, s2, 256\ns_mul_i32 s21, s35, 40960")
    dma(80, 1280, "w2")
    k.i("""v_and_b32 v11, 1, v10
    v_lshlrev_b32 v11, 4, v11
    v_lshrrev_b32 v12, 1, v10
    v_lshl_add_u32 v11, v12, 2, v11
    v_add_u32 v11, v11, v8
    s_mul_i32 s22, s20, 320
    v_lshl_add_u32 v12, v9, 3, s22""")
    swz("w2", 13, 11)
    k.i("v_mul_u32_u24 v11, 1280, v11")
    k.i(f"""s_mul_i32 s22, s20, {2*48*5120}
    s_mul_i32 s23, s35, 5120
    s_add_u32 s22, s22, s23
    s_add_u32 s22, s22, {W2}""")
    fin_dma()
    for m in range(10):
        r = D0 + 4*m
        k.i(f"v_add_u32 v14, {32*m}, v12\nv_xad_u32 v14, v14, v13, v11")
        k.lg(f"ds_read_b64_tr_b16 v[{r}:{r+1}], v14")
        k.lg(f"ds_read_b64_tr_b16 v[{r+2}:{r+3}], v14 offset:{8*1280}", f"b{m}")
    for m in range(10):
        r = D0 + 4*m
        k.wait(lg=f"b{m}")
        k.i(f"buffer_store_dwordx4 v[{r}:{r+3}], v3, s[16:19], s22 offen {st}")
        k.i(f"s_add_u32 s22, s22, {1024 if m != 4 else 48*5120 - 4096}")
    k.label("p0_fin")
    stamp_out(k, 0, 14, 1)
    k.label("p0_kernel_end")
    k.i("s_endpgm")
    return k, dict(grid=304, block=256, lds=43008, vgpr=120, agpr=0)


def phi_pack(k, src, dst, n, T, sl2e, seps):
    for b in range(0, n, 4):
        a = src + b
        k.i(f"v_pk_mul_f32 v[{T}:{T+1}], v[{a}:{a+1}], s[{sl2e}:{sl2e+1}]")
        k.i(f"v_pk_mul_f32 v[{T+2}:{T+3}], v[{a+2}:{a+3}], s[{sl2e}:{sl2e+1}]")
        for j in range(4): k.i(f"v_exp_f32_e64 v{T+j}, v{T+j} clamp")
        for j in range(4): k.i(f"v_max_f32 v{T+4+j}, 0, v{a+j}")
        k.i(f"v_pk_add_f32 v[{T}:{T+1}], v[{T}:{T+1}], s[{seps}:{seps+1}]")
        k.i(f"v_pk_add_f32 v[{T+2}:{T+3}], v[{T+2}:{T+3}], s[{seps}:{seps+1}]")
        k.i(f"v_pk_add_f32 v[{T}:{T+1}], v[{T}:{T+1}], v[{T+4}:{T+5}]")
        k.i(f"v_pk_add_f32 v[{T+2}:{T+3}], v[{T+2}:{T+3}], v[{T+6}:{T+7}]")
        k.i(f"v_cvt_pk_bf16_f32 v{dst+b//2}, v{T}, v{T+1}")
        k.i(f"v_cvt_pk_bf16_f32 v{dst+b//2+1}, v{T+2}, v{T+3}")

def gemm_lds(k, NT, ACC, WB, act_first, PRE, pol=""):
    SB = 4 * NT * 1024
    def issue(s):
        k.i(f"s_add_u32 m0, s23, {s*SB}")
        for j in range(NT):
            k.vm(f"buffer_load_dwordx4 v3, s[16:19], s22 offen offset:{1024*j} {pol} lds")
        k.i(f"s_add_u32 s22, s22, {SB}")
        for j in range(4):
            k.vm(f"buffer_load_dwordx4 a[{16*s+4*j}:{16*s+4*j+3}], v3, s[16:19], s21 offen offset:{1024*j} {pol}", f"st{s}")
        k.i("s_add_u32 s21, s21, 4096")
    def reads(ks):
        for j in range(NT):
            o = (ks*NT + j) * 1024
            r = WB + (ks & 1)*4*NT + 4*j
            k.lg(f"ds_read_b128 v[{r}:{r+3}], v{3 + o//65536} offset:{o % 65536}", f"w{ks}")
    return issue, reads

def gemm_lds_loop(k, NT, ACC, WB, act_first, PRE, issue, reads, hook=None):
    k.wait(vm="st0"); k.i("s_barrier"); reads(0)
    for ks in range(40):
        if ks + 1 < 40:
            if (ks + 1) % 4 == 0:
                k.wait(vm=f"st{(ks+1)//4}"); k.i("s_barrier")
            reads(ks + 1)
        k.wait(lg=f"w{ks}")
        for j in range(NT):
            w = vr(WB + (ks & 1)*4*NT + 4*j, 4); x = ar(4*ks, 4); d = vr(ACC + 16*j, 16)
            c = "0" if ks == 0 else d
            if act_first: k.i(f"v_mfma_f32_32x32x16_bf16 {d}, {x}, {w}, {c}")
            else: k.i(f"v_mfma_f32_32x32x16_bf16 {d}, {w}, {x}, {c}")
            if j == 0 and ks % 4 == 0 and ks//4 + PRE < 10: issue(ks//4 + PRE)
            if hook: hook(ks, j)

def gen_p1():
    k = Kern("p1_kernel")
    stamp(k, 0)
    k.i("""s_load_dwordx2 s[14:15], s[0:1], 80
    s_cmp_ge_u32 s2, 256
    s_cbranch_scc1 p1_kernel_end
    v_and_b32 v1, 63, v0
    v_lshrrev_b32 v2, 6, v0
    v_lshlrev_b32 v3, 4, v1
    v_readfirstlane_b32 s20, v2
    v_add_u32 v4, 0x10000, v3
    v_add_u32 v5, 0x20000, v3
    s_and_b32 s24, s2, 7
    s_lshr_b32 s25, s2, 3
    s_lshr_b32 s26, s24, 1
    s_lshl_b32 s26, s26, 2
    s_lshr_b32 s27, s25, 3
    s_add_u32 s26, s26, s27
    s_and_b32 s27, s24, 1
    s_lshl_b32 s27, s27, 3
    s_and_b32 s25, s25, 7
    s_add_u32 s27, s27, s25""")
    k.i(f"""s_lshl_b32 s28, s26, 2
    s_add_u32 s28, s28, s20
    s_mul_i32 s21, s28, 40960
    s_lshl_b32 s23, s20, 12
    s_mul_i32 s22, s27, 163840
    s_add_u32 s22, s22, s23
    s_add_u32 s22, s22, {WQ}
    s_mov_b32 s40, {LOG2E:#x}
    s_mov_b32 s41, {LOG2E:#x}
    s_mov_b32 s42, 0x358637bd
    s_mov_b32 s43, 0x358637bd
    s_waitcnt lgkmcnt(0)""")
    srd(k, 16, 14, WSZ)
    ACC = 64; WB = 128; PRE = 7; T = 8; PK = 160
    issue, reads = gemm_lds(k, 4, ACC, WB, True, PRE)
    for s in range(PRE): issue(s)
    stamp(k, 1)
    k.i("s_cmp_ge_u32 s27, 11\ns_cbranch_scc1 p1_q")
    save = (k.vm_n, dict(k.vm_tags), k.vm_done, k.lg_n, k.lg_done)
    gemm_lds_loop(k, 4, ACC, WB, True, PRE, issue, reads)
    stamp(k, 2)
    k.i("s_lshl_b32 s30, s20, 13\nv_add_u32 v6, s30, v3")
    for t in (2, 3):
        for p in range(8):
            k.i(f"v_cvt_pk_bf16_f32 v{PK+8*t+p}, v{ACC+16*t+2*p}, v{ACC+16*t+2*p+1}")
    k.i("s_mov_b32 s30, 0xf0000000\ns_mov_b32 s31, 0xf0000000\nv_mov_b32 v7, 0x3f803f80")
    for p in range(8):
        k.i(f"v_cndmask_b32 v{PK+24+p}, v{PK+24+p}, v7, s[30:31]")
    for t in (2, 3):
        for f in range(2):
            k.lg(f"ds_write_b128 v6, v[{PK+8*t+4*f}:{PK+8*t+4*f+3}] offset:{2048*t+1024*f}")
    for t in (0, 1):
        phi_pack(k, ACC + 16*t, PK + 8*t, 16, T, 40, 42)
        for f in range(2):
            k.lg(f"ds_write_b128 v6, v[{PK+8*t+4*f}:{PK+8*t+4*f+3}] offset:{2048*t+1024*f}")
    k.i("""s_lshr_b32 s30, s20, 1
    s_and_b32 s31, s20, 1
    s_lshl_b32 s32, s30, 11
    v_add_u32 v8, s32, v3
    s_lshl_b32 s32, s31, 11
    s_add_u32 s32, s32, 4096
    v_add_u32 v9, s32, v3
    v_and_b32 v10, 31, v1
    s_lshl_b32 s32, s31, 5
    v_add_u32 v10, s32, v10
    v_mul_u32_u24 v11, 205, v10
    v_lshrrev_b32 v11, 12, v11
    v_mul_u32_u24 v12, 20, v11
    v_sub_u32 v12, v10, v12
    v_cmp_eq_u32 s[36:37], 60, v10
    v_mov_b32 v13, 20
    v_lshrrev_b32 v14, 5, v1
    v_cndmask_b32 v12, v12, v13, s[36:37]
    v_mul_u32_u24 v12, 80, v12
    v_lshlrev_b32 v14, 2, v14
    s_lshl_b32 s32, s30, 5
    v_add_u32 v14, s32, v14""")
    k.wait(lg="all"); k.i("s_barrier")
    FA = 64; FB = 96; DD = 128
    for w in range(4):
        for f in range(2):
            n = 2*w + f
            k.lg(f"ds_read_b128 v[{FA+4*n}:{FA+4*n+3}], v8 offset:{8192*w+1024*f}")
            k.lg(f"ds_read_b128 v[{FB+4*n}:{FB+4*n+3}], v9 offset:{8192*w+1024*f}", f"f{n}")
    for j in range(4):
        k.i(f"""v_add_u32 v15, {8*j}, v14
        v_mul_u32_u24 v20, 205, v15
        v_lshrrev_b32 v20, 12, v20
        v_mul_u32_u24 v21, 20, v20
        v_sub_u32 v21, v15, v21
        v_cmp_eq_u32 s[{44+2*j}:{45+2*j}], v20, v11
        v_cmp_gt_u32 vcc, 3, v20
        v_mul_u32_u24 v20, 1680, v20
        v_lshl_add_u32 v21, v21, 2, v12
        v_add_u32 v{16+j}, v20, v21
        s_or_b64 s[{44+2*j}:{45+2*j}], s[{44+2*j}:{45+2*j}], s[36:37]
        s_and_b64 s[{44+2*j}:{45+2*j}], s[{44+2*j}:{45+2*j}], vcc""")
    for n in range(8):
        k.wait(lg=f"f{n}")
        k.i(f"v_mfma_f32_32x32x16_bf16 v[{DD}:{DD+15}], v[{FA+4*n}:{FA+4*n+3}], v[{FB+4*n}:{FB+4*n+3}], {'0' if n == 0 else vr(DD,16)}")
    k.i(f"""s_mul_i32 s32, s27, 5040
    s_add_u32 s32, s32, {KVA}
    s_add_u32 s52, s14, s32
    s_addc_u32 s53, s15, 0
    s_cmp_eq_u32 s27, 10
    s_movk_i32 s54, 5040
    s_cselect_b32 s54, 3360, s54
    s_mov_b32 s55, 0x20000
    v_lshlrev_b32 v22, 2, v0""")
    for j in range(4):
        k.i(f"s_mov_b64 exec, s[{44+2*j}:{45+2*j}]")
        k.lg(f"ds_write_b128 v{16+j}, v[{DD+4*j}:{DD+4*j+3}] offset:32768")
    k.i("s_mov_b64 exec, -1")
    k.wait(lg="all"); k.i("s_barrier")
    for i in range(5):
        k.lg(f"ds_read_b32 v{24+i}, v22 offset:{32768+1024*i}", f"d{i}")
    for i in range(5):
        k.wait(lg=f"d{i}")
        k.i(f"buffer_atomic_add_f32 v{24+i}, v22, s[52:55], 0 offen offset:{1024*i}" if i < 4 else
            f"v_add_u32 v22, 4096, v22\nbuffer_atomic_add_f32 v{24+i}, v22, s[52:55], 0 offen")
    k.i("s_branch p1_fin")
    k.label("p1_q")
    k.vm_n, k.vm_tags, k.vm_done, k.lg_n, k.lg_done = save
    gemm_lds_loop(k, 4, ACC, WB, False, PRE, issue, reads)
    stamp(k, 2)
    k.i(f"""s_mul_i32 s30, s28, 40960
    s_sub_u32 s31, s27, 11
    s_lshl_b32 s31, s31, 13
    s_add_u32 s30, s30, s31
    s_add_u32 s30, s30, {PQ}""")
    for t in range(4):
        phi_pack(k, ACC + 16*t, PK + 8*t, 16, T, 40, 42)
        for f in range(2):
            k.vm(f"buffer_store_dwordx4 v[{PK+8*t+4*f}:{PK+8*t+4*f+3}], v3, s[16:19], s30 offen offset:{(2048*t+1024*f) % 4096}")
        if t == 1: k.i("s_add_u32 s30, s30, 4096")
    k.label("p1_fin")
    stamp_out(k, 1, 14, 3)
    k.label("p1_kernel_end")
    k.i("s_endpgm")
    return k, dict(grid=256, block=256, lds=163840, vgpr=192, agpr=160)


def map_tb_ct(k):
    k.i("""s_and_b32 s24, s2, 7
    s_lshr_b32 s25, s2, 3
    s_lshr_b32 s26, s24, 1
    s_lshl_b32 s26, s26, 3
    s_lshr_b32 s27, s25, 2
    s_add_u32 s26, s26, s27
    s_and_b32 s27, s24, 1
    s_lshl_b32 s27, s27, 2
    s_and_b32 s25, s25, 3
    s_add_u32 s27, s27, s25""")

def reduce4(k, ACC, RED, VW, VR, T):
    for n in range(20):
        k.lg(f"ds_write_b128 v{VW}, v[{ACC+4*n}:{ACC+4*n+3}] offset:{1024*n}")
    k.wait(lg="all"); k.i("s_barrier")
    for src in range(4):
        for c in range(5):
            r = ACC + 20*src + 4*c
            o = 20480*src + 1024*c
            k.lg(f"ds_read_b128 v[{r}:{r+3}], v{VR + (o >= 40960)} offset:{o - (40960 if o >= 40960 else 0)}", f"r{src}_{c}")
    for src in range(1, 4):
        for c in range(5):
            k.wait(lg=f"r{src}_{c}")
            for h in range(2):
                d = (ACC if src < 3 else T) + 4*c + 2*h
                k.i(f"v_pk_add_f32 v[{d}:{d+1}], v[{ACC+4*c+2*h}:{ACC+4*c+2*h+1}], v[{ACC+20*src+4*c+2*h}:{ACC+20*src+4*c+2*h+1}]")

def gen_p2():
    k = Kern("p2_kernel")
    stamp(k, 0)
    KVL = 64; RED = 58368
    k.i("""s_load_dwordx2 s[4:5], s[0:1], 0
    s_load_dwordx2 s[14:15], s[0:1], 80
    s_cmp_ge_u32 s2, 256
    s_cbranch_scc1 p2_kernel_end
    v_and_b32 v1, 63, v0
    v_lshrrev_b32 v2, 6, v0
    v_lshlrev_b32 v3, 4, v1
    v_readfirstlane_b32 s20, v2""")
    map_tb_ct(k)
    k.i(f"""s_mul_i32 s21, s20, 13440
    s_add_u32 s21, s21, {KVA}
    s_mul_i32 s23, s20, 14336
    s_add_u32 s23, s23, {KVL}
    s_mul_i32 s22, s26, 81920
    s_mul_i32 s28, s20, 10240
    s_add_u32 s22, s22, s28
    s_add_u32 s22, s22, {PQ}
    s_lshl_b32 s28, s27, 2
    s_add_u32 s28, s28, s20
    s_mul_i32 s28, s28, 25600
    s_add_u32 s28, s28, {WO}
    v_and_b32 v4, 15, v1
    v_lshrrev_b32 v5, 4, v1
    s_lshl_b32 s29, s26, 6
    s_lshl_b32 s30, s20, 4
    s_add_u32 s29, s29, s30
    v_add_u32 v6, s29, v4
    v_mul_u32_u24 v7, 1280, v6
    v_lshl_add_u32 v7, v5, 3, v7
    s_mul_i32 s29, s27, 160
    s_waitcnt lgkmcnt(0)""")
    srd(k, 16, 14, WSZ); srd(k, 8, 4, 2621440)
    for i in range(14):
        if i % 4 == 0:
            k.i(f"s_add_u32 m0, s23, {1024*i}")
        k.vm(f"buffer_load_dwordx4 v3, s[16:19], s21 offen offset:{1024*(i%4)} lds", "kv")
        if i % 4 == 3: k.i("s_add_u32 s21, s21, 4096")
    for tt in range(2):
        for kl in range(10):
            n = 10*tt + kl
            k.vm(f"buffer_load_dwordx4 a[{4*n}:{4*n+3}], v3, s[16:19], s22 offen offset:{1024*(kl%4)}", f"pq{tt}_{kl}")
            if kl % 4 == 3: k.i("s_add_u32 s22, s22, 4096")
        if tt == 0: k.i(f"s_add_u32 s22, s22, {40960-8192}")
    XR = 20
    for c in range(5):
        k.vm(f"buffer_load_dwordx2 v[{XR+2*c}:{XR+2*c+1}], v7, s[8:11], s29 offen offset:{32*c}", "x")
    for n in range(25):
        k.vm(f"buffer_load_dwordx4 a[{80+4*n}:{83+4*n}], v3, s[16:19], s28 offen offset:{1024*(n%4)}", f"wo{n//5}")
        if n % 4 == 3: k.i("s_add_u32 s28, s28, 4096")
    stamp(k, 1)
    k.i(f"""v_bfe_u32 v8, v1, 2, 3
    v_lshlrev_b32 v8, 2, v8
    v_and_b32 v9, 3, v1
    s_mov_b32 s30, 0x55524130
    s_mov_b32 s31, 0x55453120
    v_bfe_u32 v10, s30, v8, 4
    v_bfe_u32 v11, s31, v8, 4
    v_lshl_add_u32 v10, v10, 2, v9
    v_lshl_add_u32 v11, v11, 2, v9
    v_min_u32 v10, 20, v10
    v_min_u32 v11, 20, v11
    v_lshrrev_b32 v12, 5, v1
    v_lshlrev_b32 v12, 4, v12
    s_sub_u32 s30, s23, 16
    v_add_u32 v12, s30, v12
    v_mul_u32_u24 v10, 80, v10
    v_mul_u32_u24 v11, 80, v11
    v_add_u32 v10, v10, v12
    v_add_u32 v11, v11, v12
    s_mov_b32 s32, 0
    s_mov_b32 s33, -1
    s_mov_b32 s34, 0x358637bd
    s_mul_i32 s30, s20, 20480
    s_add_u32 s30, s30, {RED}
    v_add_u32 v13, s30, v3
    s_mul_i32 s30, s20, 5120
    s_add_u32 s30, s30, {RED}
    v_add_u32 v14, s30, v3
    v_add_u32 v15, 40960, v14""")
    AF = 32; DT = 96; OG = 160; TT = 96; ACC = 32
    k.wait(vm="kv")
    jobs = []
    for hl in range(8):
        for u in range(2):
            for h2 in range(2):
                dg0 = -(hl % 4) + 4*u + 2*h2
                v0_ = 0 <= dg0 <= 4; v1_ = 0 <= dg0+1 <= 4
                d = AF + (2*hl+u)*4 + 2*h2
                if not (v0_ or v1_): jobs.append((d, None, 0, 0))
                else: jobs.append((d, hl*1680 + 16*(dg0+1), v0_, v1_, hl))
    n = 0
    for jb in jobs:
        if jb[1] is None: continue
        k.lg(f"ds_read_b128 v[{TT+4*n}:{TT+4*n+3}], v{10 + (jb[4] & 1)} offset:{jb[1]}", f"a{n}")
        n += 1
    n = 0
    for jb in jobs:
        d = jb[0]
        if jb[1] is None:
            k.i(f"v_mov_b32 v{d}, 0\nv_mov_b32 v{d+1}, 0"); continue
        k.wait(lg=f"a{n}")
        t = TT + 4*n
        k.i(f"v_cvt_pk_bf16_f32 v{d}, v{t}, v{t+1}\nv_cvt_pk_bf16_f32 v{d+1}, v{t+2}, v{t+3}")
        if not jb[3]: k.i(f"v_cndmask_b32 v{d}, v{d}, 0, s[32:33]\nv_cndmask_b32 v{d+1}, v{d+1}, 0, s[32:33]")
        if not jb[2]: k.i(f"v_cndmask_b32 v{d}, 0, v{d}, s[32:33]\nv_cndmask_b32 v{d+1}, 0, v{d+1}, s[32:33]")
        n += 1
    stamp(k, 2)
    def og(tt, m): return OG + 40*tt + 8*(m//4) + [0, 4, 2, 6][m % 4]
    def omm(hl):
        t0 = hl + hl//4
        for tt in range(2):
            k.wait(vm=f"pq{tt}_{t0+1}")
            d = vr(DT + 32*(hl & 1) + 16*tt, 16)
            for u in range(2):
                k.i(f"v_mfma_f32_32x32x16_bf16 {d}, {vr(AF+(2*hl+u)*4, 4)}, {ar(4*(10*tt+t0+u), 4)}, {'0' if u == 0 else d}")
    def opost(hl):
        p = hl // 2; odd = hl & 1
        for tt in range(2):
            D = DT + 32*odd + 16*tt
            rc = 16 + 2*tt
            a, b = (D+8, D+12) if odd else (D+12, D+8)
            k.i(f"v_cndmask_b32 v{rc}, v{a}, v{b}, s[32:33]\nv_add_f32 v{rc}, s34, v{rc}\nv_rcp_f32 v{rc}, v{rc}")
        for tt in range(2):
            D = DT + 32*odd + 16*tt
            rc = 16 + 2*tt
            for h in range(6):
                k.i(f"v_pk_mul_f32 v[{D+2*h}:{D+2*h+1}], v[{D+2*h}:{D+2*h+1}], v[{rc}:{rc+1}] op_sel_hi:[1,0]")
            for j in range(2):
                g = og(tt, 5*p + 2*odd + j)
                k.i(f"v_cvt_pk_bf16_f32 v{g}, v{D+4*j}, v{D+4*j+1}\nv_cvt_pk_bf16_f32 v{g+1}, v{D+4*j+2}, v{D+4*j+3}")
            g = og(tt, 5*p + 4)
            if not odd:
                k.i(f"v_cvt_pk_bf16_f32 v{g}, v{D+8}, v{D+9}\nv_cvt_pk_bf16_f32 v{g+1}, v{D+10}, v{D+11}")
            else:
                k.i(f"v_cvt_pk_bf16_f32 v{D}, v{D+8}, v{D+9}\nv_cvt_pk_bf16_f32 v{D+1}, v{D+10}, v{D+11}")
                k.i(f"v_cndmask_b32 v{g}, v{g}, v{D}, s[32:33]\nv_cndmask_b32 v{g+1}, v{g+1}, v{D+1}, s[32:33]")
    omm(0)
    for hl in range(8):
        if hl < 7: omm(hl + 1)
        opost(hl)
    for tt in range(2):
        for t in range(5):
            b = OG + 40*tt + 8*t
            for i in range(4): k.i(f"v_permlane16_swap_b32 v{b+i}, v{b+4+i}")
    stamp(k, 3)
    for t in range(5):
        k.wait(vm=f"wo{t}")
        for q in range(4):
            for c in range(5):
                d = vr(ACC + (5*q+c)*4, 4)
                k.i(f"v_mfma_f32_16x16x32_bf16 {d}, {ar(80+4*(5*t+c), 4)}, {vr(OG+40*(q//2)+8*t+4*(q%2), 4)}, {'0' if t == 0 else d}")
    stamp(k, 4)
    S = 112
    reduce4(k, ACC, RED, 13, 14, S)
    stamp(k, 5)
    k.i(f"""s_mov_b32 s30, 0xffff0000
    s_lshl_b32 s31, s26, 1
    s_lshr_b32 s35, s20, 1
    s_add_u32 s31, s31, s35
    s_mul_i32 s31, s31, 40
    s_mul_i32 s35, s27, 5
    s_add_u32 s31, s31, s35
    s_lshl_b32 s31, s31, 10
    s_add_u32 s31, s31, {HH}
    s_and_b32 s35, s20, 1
    s_lshl_b32 s35, s35, 8
    s_add_u32 s31, s31, s35
    v_lshrrev_b32 v8, 1, v5
    v_lshlrev_b32 v8, 9, v8
    v_lshl_add_u32 v8, v4, 4, v8
    v_and_b32 v9, 1, v5
    v_lshl_add_u32 v8, v9, 3, v8
    v_add_u32 v9, 4096, v8""")
    k.wait(vm="x")
    XF = 32; HP = 56
    for j in range(10):
        k.i(f"v_lshlrev_b32 v{XF+2*j}, 16, v{XR+j}\nv_and_b32 v{XF+2*j+1}, s30, v{XR+j}")
    for j in range(10):
        k.i(f"v_pk_add_f32 v[{S+2*j}:{S+2*j+1}], v[{S+2*j}:{S+2*j+1}], v[{XF+2*j}:{XF+2*j+1}]")
    for j in range(10):
        k.i(f"v_cvt_pk_bf16_f32 v{HP+j}, v{S+2*j}, v{S+2*j+1}")
    for c in range(5):
        k.vm(f"buffer_store_dwordx2 v[{HP+2*c}:{HP+2*c+1}], v{8 if c < 4 else 9}, s[16:19], s31 offen offset:{1024*(c%4)}")
    for j in range(10):
        k.i(f"v_lshlrev_b32 v{XF+2*j}, 16, v{HP+j}\nv_and_b32 v{XF+2*j+1}, s30, v{HP+j}")
    k.i(f"v_pk_add_f32 v[16:17], v[{XF}:{XF+1}], v[{XF+2}:{XF+3}]")
    k.i(f"v_pk_mul_f32 v[18:19], v[{XF}:{XF+1}], v[{XF}:{XF+1}]")
    k.i(f"v_pk_fma_f32 v[18:19], v[{XF+2}:{XF+3}], v[{XF+2}:{XF+3}], v[18:19]")
    for j in range(2, 10):
        k.i(f"v_pk_add_f32 v[16:17], v[16:17], v[{XF+2*j}:{XF+2*j+1}]")
        k.i(f"v_pk_fma_f32 v[18:19], v[{XF+2*j}:{XF+2*j+1}], v[{XF+2*j}:{XF+2*j+1}], v[18:19]")
    k.i("""v_add_f32 v16, v16, v17
    v_add_f32 v17, v18, v19
    v_mov_b32 v18, v16
    v_mov_b32 v19, v17
    v_permlane16_swap_b32 v16, v18
    v_permlane16_swap_b32 v17, v19
    v_pk_add_f32 v[16:17], v[16:17], v[18:19]
    v_mov_b32 v18, v16
    v_mov_b32 v19, v17
    v_permlane32_swap_b32 v16, v18
    v_permlane32_swap_b32 v17, v19
    v_pk_add_f32 v[16:17], v[16:17], v[18:19]
    v_lshlrev_b32 v6, 6, v6""")
    k.i(f"""s_lshl_b32 s31, s27, 3
    s_add_u32 s31, s31, {ST}
    s_mov_b64 exec, 0xffff""")
    k.vm("buffer_store_dwordx2 v[16:17], v6, s[16:19], s31 offen")
    stamp_out(k, 2, 14, 6)
    k.label("p2_kernel_end")
    k.i("s_endpgm")
    return k, dict(grid=256, block=256, lds=RED+81920, vgpr=240, agpr=180)

def gen_p3():
    k = Kern("p3_kernel")
    stamp(k, 0)
    TB = 122880
    k.i("""s_load_dwordx2 s[4:5], s[0:1], 40
    s_load_dwordx2 s[14:15], s[0:1], 80
    s_cmp_ge_u32 s2, 256
    s_cbranch_scc1 p3_kernel_end
    v_and_b32 v1, 63, v0
    v_lshrrev_b32 v2, 6, v0
    v_lshlrev_b32 v3, 4, v1
    v_readfirstlane_b32 s20, v2
    v_add_u32 v4, 0x10000, v3
    s_and_b32 s24, s2, 7
    s_lshr_b32 s25, s2, 3
    s_lshr_b32 s26, s24, 1
    s_lshl_b32 s26, s26, 2
    s_lshr_b32 s27, s25, 3
    s_add_u32 s26, s26, s27
    s_and_b32 s27, s24, 1
    s_lshl_b32 s27, s27, 3
    s_and_b32 s25, s25, 7
    s_add_u32 s27, s27, s25""")
    k.i(f"""s_lshl_b32 s28, s26, 2
    s_add_u32 s28, s28, s20
    s_mul_i32 s21, s28, 40960
    s_add_u32 s21, s21, {HH}
    s_mul_i32 s23, s20, 3072
    s_mul_i32 s22, s27, 122880
    s_add_u32 s22, s22, s23
    s_add_u32 s22, s22, {W1}
    v_and_b32 v6, 31, v1
    v_lshrrev_b32 v7, 5, v1
    v_lshlrev_b32 v6, 6, v6
    v_lshl_add_u32 v6, v7, 5, v6
    s_lshl_b32 s29, s28, 11
    s_add_u32 s29, s29, {ST}
    v_lshlrev_b32 v16, 2, v0
    v_lshlrev_b32 v17, 1, v0
    s_mul_i32 s30, s27, 384
    s_add_u32 s30, s30, {CS}
    s_add_u32 s32, s30, 6144
    s_mul_i32 s31, s27, 192
    s_waitcnt lgkmcnt(0)""")
    srd(k, 16, 14, WSZ); srd(k, 8, 4, 3072)
    k.vm("buffer_load_dword v18, v16, s[16:19], s30 offen")
    k.vm("buffer_load_dword v19, v16, s[16:19], s32 offen")
    k.vm("buffer_load_ushort v20, v17, s[8:11], s31 offen", "tab")
    k.vm("buffer_load_dwordx4 v[8:11], v6, s[16:19], s29 offen")
    k.vm("buffer_load_dwordx4 v[12:15], v6, s[16:19], s29 offen offset:16", "stats")
    ACC = 64; WB = 112; PRE = 8
    issue, reads = gemm_lds(k, 3, ACC, WB, False, PRE)
    for s in range(PRE): issue(s)
    stamp(k, 1)
    k.wait(vm="tab")
    k.i(f"v_add_f32 v18, v18, v19\nv_lshlrev_b32 v20, 16, v20\nv_add_u32 v16, {TB}, v16")
    k.lg("ds_write_b32 v16, v18")
    k.lg("ds_write_b32 v16, v20 offset:1024")
    k.wait(vm="stats", lg="all")
    k.i("""v_pk_add_f32 v[8:9], v[8:9], v[10:11]
    v_pk_add_f32 v[12:13], v[12:13], v[14:15]
    v_pk_add_f32 v[8:9], v[8:9], v[12:13]
    v_mov_b32 v10, v8
    v_mov_b32 v11, v9
    v_permlane32_swap_b32 v8, v10
    v_permlane32_swap_b32 v9, v11
    v_pk_add_f32 v[8:9], v[8:9], v[10:11]
    v_mul_f32 v8, 0x3acccccd, v8
    v_mul_f32 v9, 0x3acccccd, v9
    v_fma_f32 v9, -v8, v8, v9
    v_max_f32 v9, 0, v9""")
    bf16r(k, 8, 8); bf16r(k, 9, 9)
    k.i("v_add_f32 v9, 0x3727c5ac, v9")
    bf16r(k, 9, 9)
    k.i("v_sqrt_f32 v9, v9")
    bf16r(k, 9, 9)
    k.i("v_rcp_f32 v10, v9\nv_mul_f32 v12, v8, v10\nv_sub_f32 v12, 0, v12")
    k.i(f"""v_lshlrev_b32 v14, 4, v7
    v_add_u32 v14, {TB}, v14
    v_bfe_u32 v15, v1, 4, 1
    v_mul_u32_u24 v15, 49152, v15
    v_and_b32 v16, 15, v1
    v_lshl_add_u32 v15, v16, 4, v15
    v_lshl_add_u32 v15, v7, 9, v15
    s_mul_i32 s30, s28, 98304
    s_mul_i32 s31, s27, 3072
    s_add_u32 s30, s30, s31
    s_add_u32 s30, s30, {H1}""")
    gemm_lds_loop(k, 3, ACC, WB, False, PRE, issue, reads)
    stamp(k, 2)
    CT = 136; BT = 184; PK = 24
    for nt in range(3):
        for j in range(4):
            n = 4*nt + j
            k.lg(f"ds_read_b128 v[{CT+4*n}:{CT+4*n+3}], v14 offset:{128*nt+32*j}")
            k.lg(f"ds_read_b128 v[{BT+4*n}:{BT+4*n+3}], v14 offset:{1024+128*nt+32*j}", f"t{n}")
    for nt in range(3):
        for j in range(4):
            n = 4*nt + j
            k.wait(lg=f"t{n}")
            a = ACC + 4*n; c = CT + 4*n; b = BT + 4*n
            for h in range(2):
                k.i(f"v_pk_fma_f32 v[{b+2*h}:{b+2*h+1}], v[{c+2*h}:{c+2*h+1}], v[12:13], v[{b+2*h}:{b+2*h+1}] op_sel_hi:[1,0,1]")
            for h in range(2):
                k.i(f"v_pk_fma_f32 v[{a+2*h}:{a+2*h+1}], v[{a+2*h}:{a+2*h+1}], v[10:11], v[{b+2*h}:{b+2*h+1}] op_sel_hi:[1,0,1]")
            for h in range(4): k.i(f"v_max_f32 v{a+h}, 0, v{a+h}")
            for h in range(2):
                k.i(f"v_pk_mul_f32 v[{a+2*h}:{a+2*h+1}], v[{a+2*h}:{a+2*h+1}], v[{a+2*h}:{a+2*h+1}]")
            for h in range(2):
                k.i(f"v_cvt_pk_bf16_f32 v{PK+8*nt+2*j+h}, v{a+2*h}, v{a+2*h+1}")
            if j % 2 == 1:
                e = j // 2
                k.vm(f"buffer_store_dwordx4 v[{PK+8*nt+4*e}:{PK+8*nt+4*e+3}], v15, s[16:19], s30 offen offset:{1024*nt+256*e}")
    stamp_out(k, 3, 14, 3)
    k.label("p3_kernel_end")
    k.i("s_endpgm")
    return k, dict(grid=256, block=256, lds=TB+2048, vgpr=232, agpr=160)

def gen_p4():
    k = Kern("p4_kernel")
    stamp(k, 0)
    k.i("""s_load_dwordx4 s[4:7], s[0:1], 56
    s_load_dwordx2 s[14:15], s[0:1], 80
    s_cmp_ge_u32 s2, 256
    s_cbranch_scc1 p4_kernel_end
    v_and_b32 v1, 63, v0
    v_lshrrev_b32 v2, 6, v0
    v_lshlrev_b32 v3, 4, v1
    v_readfirstlane_b32 s20, v2""")
    map_tb_ct(k)
    k.i(f"""s_mul_i32 s21, s26, 196608
    s_mul_i32 s22, s20, 12288
    s_add_u32 s21, s21, s22
    s_add_u32 s21, s21, {H1}
    s_lshl_b32 s22, s27, 2
    s_add_u32 s22, s22, s20
    s_mul_i32 s22, s22, 61440
    s_add_u32 s22, s22, {W2}
    v_add_u32 v10, 49152, v3
    v_add_u32 v11, 98304, v3
    v_add_u32 v12, 147456, v3
    v_add_u32 v16, 4096, v3
    v_and_b32 v4, 15, v1
    v_lshrrev_b32 v5, 4, v1
    s_lshl_b32 s29, s26, 6
    s_lshl_b32 s30, s20, 4
    s_add_u32 s29, s29, s30
    v_add_u32 v6, s29, v4
    v_mul_u32_u24 v7, 1280, v6
    v_lshl_add_u32 v7, v5, 3, v7
    s_mul_i32 s29, s27, 160
    s_lshl_b32 s31, s26, 1
    s_lshr_b32 s35, s20, 1
    s_add_u32 s31, s31, s35
    s_mul_i32 s31, s31, 40
    s_mul_i32 s35, s27, 5
    s_add_u32 s31, s31, s35
    s_lshl_b32 s31, s31, 10
    s_add_u32 s31, s31, {HH}
    s_and_b32 s35, s20, 1
    s_lshl_b32 s35, s35, 8
    s_add_u32 s31, s31, s35
    v_lshrrev_b32 v8, 1, v5
    v_lshlrev_b32 v8, 9, v8
    v_lshl_add_u32 v8, v4, 4, v8
    v_and_b32 v9, 1, v5
    v_lshl_add_u32 v8, v9, 3, v8
    v_add_u32 v9, 4096, v8
    v_lshlrev_b32 v17, 3, v5
    s_mul_i32 s30, s20, 20480
    v_add_u32 v13, s30, v3
    s_mul_i32 s30, s20, 5120
    v_add_u32 v14, s30, v3
    v_add_u32 v15, 40960, v14
    s_waitcnt lgkmcnt(0)""")
    srd(k, 16, 14, WSZ); srd(k, 8, 4, 1280); srd(k, 36, 6, 2621440)
    NB = 6; ACC = 32; HR = 112; BR = 122
    def issue(t):
        b = 36*(t % NB)
        for q in range(4):
            k.vm(f"buffer_load_dwordx4 a[{b+4*q}:{b+4*q+3}], v{[3,10,11,12][q]}, s[16:19], s21 offen offset:{1024*(t%4)}")
        if t % 4 == 3: k.i("s_add_u32 s21, s21, 4096")
        for c in range(5):
            k.vm(f"buffer_load_dwordx4 a[{b+16+4*c}:{b+19+4*c}], v{3 if c < 4 else 16}, s[16:19], s22 offen offset:{1024*(c%4)}", f"s{t}")
        k.i("s_add_u32 s22, s22, 5120")
    for t in range(NB): issue(t)
    stamp(k, 1)
    for t in range(12):
        k.wait(vm=f"s{t}")
        b = 36*(t % NB)
        for q in range(4):
            for c in range(5):
                d = vr(ACC + (5*q+c)*4, 4)
                k.i(f"v_mfma_f32_16x16x32_bf16 {d}, {ar(b+16+4*c, 4)}, {ar(b+4*q, 4)}, {'0' if t == 0 else d}")
        if t + NB < 12: issue(t + NB)
        if t == 6:
            for c in range(5):
                k.vm(f"buffer_load_dwordx2 v[{HR+2*c}:{HR+2*c+1}], v{8 if c < 4 else 9}, s[16:19], s31 offen offset:{1024*(c%4)}")
            for c in range(5):
                k.vm(f"buffer_load_dwordx2 v[{BR+2*c}:{BR+2*c+1}], v17, s[8:11], s29 offen offset:{32*c}", "res")
    stamp(k, 2)
    S = 136
    reduce4(k, ACC, 0, 13, 14, S)
    stamp(k, 3)
    k.i("s_mov_b32 s30, 0xffff0000")
    k.wait(vm="res")
    XF = 32
    for j in range(20):
        k.i(f"v_lshlrev_b32 v{XF+2*j}, 16, v{HR+j}\nv_and_b32 v{XF+2*j+1}, s30, v{HR+j}")
    for j in range(10):
        k.i(f"v_pk_add_f32 v[{S+2*j}:{S+2*j+1}], v[{S+2*j}:{S+2*j+1}], v[{XF+20+2*j}:{XF+21+2*j}]")
    for j in range(10):
        k.i(f"v_pk_add_f32 v[{S+2*j}:{S+2*j+1}], v[{S+2*j}:{S+2*j+1}], v[{XF+2*j}:{XF+2*j+1}]")
    for j in range(10):
        k.i(f"v_cvt_pk_bf16_f32 v{HR+j}, v{S+2*j}, v{S+2*j+1}")
    for c in range(5):
        k.vm(f"buffer_store_dwordx2 v[{HR+2*c}:{HR+2*c+1}], v7, s[36:39], s29 offen offset:{32*c}")
    stamp_out(k, 4, 14, 4)
    k.label("p4_kernel_end")
    k.i("s_endpgm")
    return k, dict(grid=256, block=256, lds=81920, vgpr=160, agpr=216)

KERNELS = [gen_p0, gen_p1, gen_p2, gen_p3, gen_p4]

def emit(path, gens):
    ks = [g() for g in gens]
    out = []
    for k, m in ks:
        out.append(f"; @launch kernel={k.name} grid=({m['grid']},1,1) block=({m['block']},1,1) lds={m['lds']}")
    out.append('.amdgcn_target "amdgcn-amd-amdhsa--gfx950"')
    out.append(".text")
    for k, m in ks:
        body, added = hazard_pass(k.L)
        print(k.name, "instrs", len(body), "nop states added", added, file=sys.stderr)
        out += [f".globl {k.name}", ".p2align 8", f".type {k.name},@function", f"{k.name}:"]
        out += [("" if (l.endswith(":") or l.startswith(";")) else "    ") + l for l in body]
    out.append('.section .rodata,"a"')
    for k, m in ks:
        acc = (m['vgpr'] + 3) // 4 * 4
        tot = acc + m['agpr'] if m['agpr'] else m['vgpr']
        out += [".p2align 6", f".amdhsa_kernel {k.name}", f"  .amdhsa_next_free_vgpr {tot}", "  .amdhsa_next_free_sgpr 102",
                f"  .amdhsa_accum_offset {acc}", "  .amdhsa_group_segment_fixed_size 0", "  .amdhsa_kernarg_size 88",
                "  .amdhsa_user_sgpr_count 2", "  .amdhsa_user_sgpr_kernarg_segment_ptr 1",
                "  .amdhsa_system_sgpr_workgroup_id_x 1", ".end_amdhsa_kernel"]
    open(path, "w").write("\n".join(out) + "\n")

if __name__ == "__main__":
    for a in sys.argv[2:]:
        kk, v = a.split("=")
        OPT[kk] = {"True": True, "False": False}.get(v, v.replace("_", " "))
    emit(sys.argv[1], KERNELS[:int(OPT.get('nk', 9))])
```

```python
import sys
from asmlib import *

NAME = "sequential_preLN__linear_attn_block__dense_activation_squared_relu__prompt"
XN = 0x000000; WQ = 0x280000; WO = 0x500000; W1 = 0x600000; W2 = 0x800000
CS = 0x9F0000; KVA = 0xA00000; PQ = 0xB00000; HH = 0xE00000; ST = 0x1100000; H1 = 0x1200000
WSZ = 0x1800000
LOG2E = 0x3fb8aa3b
OPT = dict(p0ld="nt", p0st="", stamps=False)

def magic(C, maxq):
    for sh in range(8, 24):
        m = -(-(1 << sh) // C)
        if m * maxq < (1 << 32) and m < (1 << 24) and all((q * m) >> sh == q // C for q in range(maxq)): return m, sh
    raise ValueError

def srd(k, d, base, size):
    k.i(f"s_mov_b32 s{d}, s{base}\ns_mov_b32 s{d+1}, s{base+1}\ns_mov_b32 s{d+2}, {size}\ns_mov_b32 s{d+3}, 0x20000")

def bf16r(k, d, s):
    k.i(f"v_cvt_pk_bf16_f32 v{d}, v{s}, v{s}\nv_lshlrev_b32 v{d}, 16, v{d}")

def stamp(k, idx):
    if OPT["stamps"]: k.i(f"s_memrealtime s[{80+2*idx}:{81+2*idx}]")

def stamp_out(k, kidx, wsptr, n, tot=0):
    if not OPT["stamps"]: return
    k.i("s_waitcnt vmcnt(0) lgkmcnt(0)")
    k.i(f"s_memrealtime s[{80+2*n}:{81+2*n}]")
    k.i("s_waitcnt lgkmcnt(0)")
    k.i(f"s_lshl_b32 s3, s2, 7\ns_add_u32 s3, s3, {0x2000000 + kidx*65536}\nv_mov_b32 v1, s3")
    n = max(n, tot - 1)
    for j in range(2*n+2): k.i(f"v_mov_b32 v{2+j}, s{80+j}")
    k.i("s_mov_b64 exec, -1")
    k.i(f"v_cmp_eq_u32 vcc, 0, v0\ns_and_saveexec_b64 s[34:35], vcc\ns_cbranch_execz {k.name}_end")
    for j in range(n+1): k.i(f"global_store_dwordx2 v1, v[{2+2*j}:{3+2*j}], s[{wsptr}:{wsptr+1}] offset:{8*j}")

def gen_p0():
    k = Kern("p0_kernel")
    ld = OPT["p0ld"]; st = OPT["p0st"]
    stamp(k, 0)
    k.i("""s_load_dwordx4 s[4:7], s[0:1], 0
    s_load_dwordx2 s[8:9], s[0:1], 16
    s_load_dwordx2 s[10:11], s[0:1], 32
    s_load_dwordx2 s[12:13], s[0:1], 48
    s_load_dwordx2 s[14:15], s[0:1], 80
    s_cmp_ge_u32 s2, 304
    s_cbranch_scc1 p0_kernel_end
    v_and_b32 v1, 63, v0
    v_lshrrev_b32 v2, 6, v0
    v_lshlrev_b32 v3, 4, v1
    v_readfirstlane_b32 s20, v2
    s_waitcnt lgkmcnt(0)""")
    srd(k, 16, 14, WSZ)
    k.i("""s_cmp_ge_u32 s2, 256
    s_cbranch_scc1 p0_w2
    s_cmp_ge_u32 s2, 208
    s_cbranch_scc1 p0_w1
    s_cmp_ge_u32 s2, 188
    s_cbranch_scc1 p0_wo
    s_cmp_ge_u32 s2, 168
    s_cbranch_scc1 p0_wq
    s_cmp_ge_u32 s2, 128
    s_cbranch_scc1 p0_wkv""")
    srd(k, 24, 4, 2621440)
    X = 8; F = 32; T = 72
    k.i("""v_lshrrev_b32 v4, 4, v0
    v_and_b32 v5, 15, v0
    s_lshl_b32 s21, s2, 4
    v_add_u32 v6, s21, v4
    s_movk_i32 s22, 1280
    v_mul_lo_u32 v6, v6, s22
    v_lshl_add_u32 v6, v5, 4, v6""")
    for i in range(5):
        k.vm(f"buffer_load_dwordx4 v[{X+4*i}:{X+4*i+3}], v6, s[24:27], 0 offen offset:{256*i} {ld}", f"x{i}")
    k.i(f"""s_mul_i32 s21, s2, 420
    s_add_u32 s21, s21, {KVA}
    v_lshlrev_b32 v7, 2, v0
    v_mov_b32 v28, 0
    v_cmp_gt_u32 vcc, 105, v0
    s_and_saveexec_b64 s[30:31], vcc
    s_cbranch_execz p0_ln_z""")
    k.i(f"buffer_store_dword v28, v7, s[16:19], s21 offen {st}")
    k.label("p0_ln_z")
    k.i("s_mov_b64 exec, s[30:31]")
    k.i(f"""s_lshr_b32 s21, s2, 1
    s_mul_i32 s21, s21, 40960
    s_and_b32 s22, s2, 1
    s_lshl_b32 s22, s22, 8
    s_add_u32 s21, s21, s22
    s_add_u32 s21, s21, {XN}
    v_lshrrev_b32 v7, 1, v5
    v_lshlrev_b32 v7, 10, v7
    v_and_b32 v29, 1, v5
    v_lshlrev_b32 v29, 9, v29
    v_lshl_add_u32 v7, v4, 4, v7
    v_add_u32 v7, v7, v29
    s_mov_b32 s23, 0xffff0000
    s_waitcnt vmcnt(0)""")
    for j in range(20):
        k.i(f"v_lshlrev_b32 v{F+2*j}, 16, v{X+j}\nv_and_b32 v{F+2*j+1}, s23, v{X+j}")
    k.i(f"v_pk_add_f32 v[112:113], v[{F}:{F+1}], v[{F+2}:{F+3}]")
    k.i(f"v_pk_add_f32 v[114:115], v[{F+4}:{F+5}], v[{F+6}:{F+7}]")
    for j in range(4, 20):
        a = 112 + 2 * (j & 1)
        k.i(f"v_pk_add_f32 v[{a}:{a+1}], v[{a}:{a+1}], v[{F+2*j}:{F+2*j+1}]")
    k.i("v_pk_add_f32 v[112:113], v[112:113], v[114:115]")
    k.i("v_add_f32 v112, v112, v113")
    def rowred(r):
        for s in (8, 4, 2, 1):
            k.i(f"v_add_f32_dpp v{r}, v{r}, v{r} row_ror:{s} row_mask:0xf bank_mask:0xf")
    rowred(112)
    k.i("v_mul_f32 v112, 0x3acccccd, v112")
    for j in range(20):
        k.i(f"v_pk_add_f32 v[{T+2*j}:{T+2*j+1}], v[{F+2*j}:{F+2*j+1}], v[112:113] op_sel_hi:[1,0] neg_lo:[0,1] neg_hi:[0,1]")
    k.i(f"v_pk_mul_f32 v[114:115], v[{T}:{T+1}], v[{T}:{T+1}]")
    k.i(f"v_pk_mul_f32 v[116:117], v[{T+2}:{T+3}], v[{T+2}:{T+3}]")
    for j in range(2, 20):
        a = 114 + 2 * (j & 1)
        k.i(f"v_pk_fma_f32 v[{a}:{a+1}], v[{T+2*j}:{T+2*j+1}], v[{T+2*j}:{T+2*j+1}], v[{a}:{a+1}]")
    k.i("v_pk_add_f32 v[114:115], v[114:115], v[116:117]")
    k.i("v_add_f32 v114, v114, v115")
    rowred(114)
    k.i("v_mul_f32 v114, 0x3acccccd, v114")
    bf16r(k, 112, 112)
    bf16r(k, 114, 114)
    k.i("v_add_f32 v114, 0x3727c5ac, v114")
    bf16r(k, 114, 114)
    k.i("v_sqrt_f32 v114, v114")
    bf16r(k, 114, 114)
    k.i("v_rcp_f32 v114, v114")
    for j in range(20):
        k.i(f"v_pk_add_f32 v[{T+2*j}:{T+2*j+1}], v[{F+2*j}:{F+2*j+1}], v[112:113] op_sel_hi:[1,0] neg_lo:[0,1] neg_hi:[0,1]")
    for j in range(20):
        k.i(f"v_cvt_pk_bf16_f32 v{X+j}, v{T+2*j}, v{T+2*j+1}")
    for j in range(20):
        k.i(f"v_lshlrev_b32 v{F+2*j}, 16, v{X+j}\nv_and_b32 v{F+2*j+1}, s23, v{X+j}")
    for j in range(20):
        k.i(f"v_pk_mul_f32 v[{F+2*j}:{F+2*j+1}], v[{F+2*j}:{F+2*j+1}], v[114:115] op_sel_hi:[1,0]")
    for i in range(5):
        for j in range(4*i, 4*i+4):
            k.i(f"v_cvt_pk_bf16_f32 v{X+j}, v{F+2*j}, v{F+2*j+1}")
        k.i(f"buffer_store_dwordx4 v[{X+4*i}:{X+4*i+3}], v7, s[16:19], s21 offen {st}")
        if i < 4: k.i("s_add_u32 s21, s21, 8192")
    k.i("s_branch p0_fin")

    def swz(kind, d, row):
        if kind == "w32":   k.i(f"v_and_b32 v{d}, 3, v{row}\nv_lshlrev_b32 v{d}, 6, v{d}")
        elif kind == "w1":  k.i(f"v_and_b32 v{d}, 2, v{row}\nv_lshlrev_b32 v{d}, 5, v{d}")
        elif kind == "w2":  k.i(f"v_and_b32 v{d}, 3, v{row}\nv_lshlrev_b32 v{d}, 6, v{d}\nv_and_b32 v31, 16, v{row}\nv_lshl_or_b32 v{d}, v31, 1, v{d}")
        elif kind == "wo":  k.i(f"v_and_b32 v{d}, 3, v{row}\nv_lshlrev_b32 v{d}, 6, v{d}\nv_and_b32 v31, 4, v{row}\nv_lshl_or_b32 v{d}, v31, 3, v{d}")
    def dma(C, stride, kind):
        m, sh = magic(C, 640)
        k.i(f"s_mul_i32 s22, s20, {640//C}\ns_mul_i32 s28, s20, 10240\ns_mov_b32 s29, {stride}")
        for i in range(10):
            k.i(f"v_add_u32 v4, {64*i}, v1")
            k.i(f"v_mul_u32_u24 v5, {m}, v4\nv_lshrrev_b32 v5, {sh}, v5")
            k.i(f"v_mul_u32_u24 v6, {C}, v5\nv_sub_u32 v6, v4, v6\nv_lshlrev_b32 v6, 4, v6")
            k.i("v_add_u32 v5, s22, v5")
            swz(kind, 7, 5)
            k.i("v_mul_lo_u32 v5, v5, s29")
            k.i("v_xad_u32 v4, v6, v7, v5")
            k.i(f"s_add_u32 m0, s28, {1024*i}")
            k.i(f"buffer_load_dwordx4 v4, s[24:27], s21 offen {ld} lds")
        k.i("""v_bfe_u32 v8, v1, 2, 2
        v_and_b32 v9, 3, v1
        v_lshrrev_b32 v10, 4, v1""")
    def fin_dma():
        k.i("s_waitcnt vmcnt(0)\ns_barrier")
    def frag_out(regs_list):
        pass
    D0 = 32
    k.label("p0_wkv")
    srd(k, 24, 6, 2457600)
    k.i("s_sub_u32 s35, s2, 128\ns_mul_i32 s21, s35, 61440\ns_add_u32 s21, s21, 1280")
    dma(160, 3840, "w32")
    k.i("""v_lshrrev_b32 v11, 1, v10
    v_lshl_add_u32 v11, v11, 3, v8
    v_and_b32 v12, 1, v10
    v_lshlrev_b32 v12, 5, v12
    v_lshl_add_u32 v12, v9, 3, v12
    s_and_b32 s22, s20, 1
    s_lshl_b32 s22, s22, 6
    s_lshr_b32 s23, s20, 1
    s_mul_i32 s23, s23, 1280
    s_add_u32 s22, s22, s23
    v_add_u32 v12, s22, v12""")
    swz("w32", 13, 11)
    k.i("v_mul_u32_u24 v11, 2560, v11")
    k.i(f"s_lshl_b32 s22, s35, 12\ns_lshl_b32 s23, s20, 10\ns_add_u32 s22, s22, s23\ns_add_u32 s22, s22, {WQ}")
    fin_dma()
    for ct in range(11):
        r = D0 + 4*ct
        k.i(f"v_add_u32 v14, {120*ct}, v12\nv_min_u32 v14, 2552, v14\nv_xad_u32 v14, v14, v13, v11")
        k.lg(f"ds_read_b64_tr_b16 v[{r}:{r+1}], v14")
        k.lg(f"ds_read_b64_tr_b16 v[{r+2}:{r+3}], v14 offset:{4*2560}", f"kv{ct}")
    for ct in range(11):
        r = D0 + 4*ct
        k.wait(lg=f"kv{ct}")
        k.i(f"buffer_store_dwordx4 v[{r}:{r+3}], v3, s[16:19], s22 offen {st}")
        if ct < 10: k.i("s_add_u32 s22, s22, 163840")
    k.i("s_branch p0_fin")
    k.reset_counts()
    k.label("p0_wq")
    srd(k, 24, 6, 2457600)
    k.i("s_sub_u32 s35, s2, 168\ns_mul_i32 s21, s35, 122880")
    dma(80, 3840, "w32")
    k.i("""v_lshrrev_b32 v11, 1, v10
    v_lshl_add_u32 v11, v11, 3, v8
    v_and_b32 v12, 1, v10
    v_lshlrev_b32 v12, 5, v12
    v_lshl_add_u32 v12, v9, 3, v12
    s_lshl_b32 s22, s20, 6
    v_add_u32 v12, s22, v12""")
    swz("w32", 13, 11)
    k.i("v_mul_u32_u24 v11, 1280, v11")
    k.i("v_xad_u32 v14, v12, v13, v11")
    k.i(f"s_lshl_b32 s22, s35, 13\ns_lshl_b32 s23, s20, 10\ns_add_u32 s22, s22, s23\ns_add_u32 s22, s22, {WQ + 11*163840}")
    fin_dma()
    for m in range(5):
        for ks in range(2):
            r = D0 + 4*(2*m+ks)
            o = 256*m + ks*16*1280
            k.lg(f"ds_read_b64_tr_b16 v[{r}:{r+1}], v14 offset:{o}")
            k.lg(f"ds_read_b64_tr_b16 v[{r+2}:{r+3}], v14 offset:{o+4*1280}", f"q{m}{ks}")
    for m in range(5):
        for ks in range(2):
            r = D0 + 4*(2*m+ks)
            k.wait(lg=f"q{m}{ks}")
            k.i(f"buffer_store_dwordx4 v[{r}:{r+3}], v3, s[16:19], s22 offen {st}")
            k.i(f"s_add_u32 s22, s22, {4096 if ks == 0 else 163840-4096}")
    k.i("s_branch p0_fin")
    k.reset_counts()
    k.label("p0_wo")
    srd(k, 24, 8, 819200)
    k.i("""s_sub_u32 s35, s2, 188
    s_mul_i32 s36, s35, 52
    s_lshr_b32 s36, s36, 8
    s_mul_i32 s37, s36, 5
    s_sub_u32 s37, s35, s37
    s_mul_i32 s21, s36, 204800
    s_lshl_b32 s22, s37, 8
    s_add_u32 s21, s21, s22""")
    dma(16, 1280, "wo")
    k.i("""v_lshlrev_b32 v12, 3, v9
    s_lshl_b32 s22, s20, 6
    v_add_u32 v12, s22, v12
    v_lshlrev_b32 v15, 3, v10""")
    for e in range(2):
        k.i(f"""s_lshl_b32 s38, s37, 3
        s_lshl_b32 s39, s20, 1
        s_add_u32 s38, s38, s39
        s_add_u32 s38, s38, {e}
        s_mul_i32 s39, s38, 205
        s_lshr_b32 s39, s39, 10
        s_mul_i32 s40, s39, 5
        s_sub_u32 s40, s38, s40
        s_lshl_b32 s39, s39, 2
        s_add_u32 s39, s39, s36
        s_mul_i32 s39, s39, 25
        s_add_u32 s39, s39, s40
        s_lshl_b32 s39, s39, 10
        s_add_u32 s{41+e}, s39, {WO}""")
    fin_dma()
    rowoff = [[0, 4, 20, 24, 8], [12, 16, 28, 32, 36]]
    for t in range(5):
        for h2 in range(2):
            K = 0
            for g in range(4):
                m_ = 4*t + 2*h2 + (g & 1)
                K |= (40*(m_//5) + rowoff[g >> 1][m_ % 5]) << (8*g)
            k.i(f"s_mov_b32 s22, {K:#x}\nv_bfe_u32 v11, s22, v15, 8\nv_add_u32 v11, v11, v8")
            swz("wo", 13, 11)
            k.i("v_lshlrev_b32 v11, 8, v11")
            k.i("v_xad_u32 v14, v12, v13, v11\nv_xor_b32 v16, 32, v14")
            for e in range(2):
                r = D0 + 4*(2*t+e) + 2*h2
                k.lg(f"ds_read_b64_tr_b16 v[{r}:{r+1}], v{14 if e == 0 else 16}", f"o{t}{e}")
    for t in range(5):
        for e in range(2):
            r = D0 + 4*(2*t+e)
            k.wait(lg=f"o{t}{e}")
            k.i(f"buffer_store_dwordx4 v[{r}:{r+3}], v3, s[16:19], s{41+e} offen {st}")
            k.i(f"s_add_u32 s{41+e}, s{41+e}, 5120")
    k.i("s_branch p0_fin")
    k.reset_counts()
    k.label("p0_w1")
    srd(k, 24, 10, 1966080)
    k.i("""s_sub_u32 s35, s2, 208
    s_cmp_ge_u32 s35, 24
    s_cselect_b32 s36, 1, 0
    s_mul_i32 s37, s36, 24
    s_sub_u32 s37, s35, s37
    s_mul_i32 s21, s36, 983040
    s_lshl_b32 s22, s37, 7
    s_add_u32 s21, s21, s22""")
    dma(8, 3072, "w1")
    k.i("""v_lshrrev_b32 v11, 1, v10
    v_lshl_add_u32 v11, v11, 3, v8
    v_and_b32 v12, 1, v10
    v_lshlrev_b32 v12, 5, v12
    v_lshl_add_u32 v12, v9, 3, v12""")
    swz("w1", 13, 11)
    k.i("""s_mul_i32 s22, s20, 80
    v_add_u32 v11, s22, v11
    v_lshlrev_b32 v11, 7, v11
    v_xad_u32 v14, v12, v13, v11
    v_xor_b32 v16, 64, v14
    v_mov_b32 v17, 0
    v_mov_b32 v18, 0
    s_mov_b32 s43, 0x3f803f80""")
    for e in range(2):
        k.i(f"""s_lshl_b32 s38, s37, 1
        s_add_u32 s38, s38, {e}
        s_mul_i32 s39, s38, 171
        s_lshr_b32 s39, s39, 9
        s_mul_i32 s40, s39, 3
        s_sub_u32 s40, s38, s40
        s_mul_i32 s39, s39, 40
        s_mul_i32 s44, s36, 20
        s_add_u32 s39, s39, s44
        s_mul_i32 s44, s20, 5
        s_add_u32 s39, s39, s44
        s_mul_i32 s39, s39, 3
        s_add_u32 s39, s39, s40
        s_lshl_b32 s39, s39, 10
        s_add_u32 s{41+e}, s39, {W1}""")
    fin_dma()
    for ks in range(5):
        for e in range(2):
            r = D0 + 4*(2*ks+e)
            k.lg(f"ds_read_b64_tr_b16 v[{r}:{r+1}], v{14+2*e} offset:{ks*2048}")
            k.lg(f"ds_read_b64_tr_b16 v[{r+2}:{r+3}], v{14+2*e} offset:{ks*2048+512}", f"a{ks}{e}")
    for ks in range(5):
        for e in range(2):
            r = D0 + 4*(2*ks+e)
            k.wait(lg=f"a{ks}{e}")
            k.i(f"buffer_store_dwordx4 v[{r}:{r+3}], v3, s[16:19], s{41+e} offen {st}")
            k.i(f"s_add_u32 s{41+e}, s{41+e}, 3072")
            for j in range(4):
                k.i(f"v_dot2_f32_bf16 v{17+e}, v{r+j}, s43, v{17+e}")
    k.i("""s_lshl_b32 s22, s20, 9
    v_lshl_add_u32 v19, v1, 2, s22
    s_nop 2
    ds_write_b32 v19, v17 offset:40960
    ds_write_b32 v19, v18 offset:41216
    s_waitcnt lgkmcnt(0)
    s_barrier
    s_cmp_lg_u32 s20, 0
    s_cbranch_scc1 p0_fin
    v_and_b32 v19, 31, v1
    v_lshrrev_b32 v20, 5, v1
    v_lshlrev_b32 v20, 8, v20
    v_lshl_add_u32 v19, v19, 2, v20""")
    for w in range(4):
        k.i(f"ds_read_b32 v{20+2*w}, v19 offset:{40960+512*w}\nds_read_b32 v{21+2*w}, v19 offset:{40960+512*w+128}")
    k.i("s_waitcnt lgkmcnt(0)")
    for j in range(1, 8): k.i(f"v_add_f32 v20, v20, v{20+j}")
    k.i(f"""s_mul_i32 s22, s36, 6144
    s_lshl_b32 s23, s37, 8
    s_add_u32 s22, s22, s23
    s_add_u32 s22, s22, {CS}
    v_lshlrev_b32 v19, 2, v1
    buffer_store_dword v20, v19, s[16:19], s22 offen {st}
    s_branch p0_fin""")
    k.reset_counts()
    k.label("p0_w2")
    srd(k, 24, 12, 1966080)
    k.i("s_sub_u32 s35, s2, 256\ns_mul_i32 s21, s35, 40960")
    dma(80, 1280, "w2")
    k.i("""v_and_b32 v11, 1, v10
    v_lshlrev_b32 v11, 4, v11
    v_lshrrev_b32 v12, 1, v10
    v_lshl_add_u32 v11, v12, 2, v11
    v_add_u32 v11, v11, v8
    s_mul_i32 s22, s20, 320
    v_lshl_add_u32 v12, v9, 3, s22""")
    swz("w2", 13, 11)
    k.i("v_mul_u32_u24 v11, 1280, v11")
    k.i(f"""s_mul_i32 s22, s20, {2*48*5120}
    s_mul_i32 s23, s35, 5120
    s_add_u32 s22, s22, s23
    s_add_u32 s22, s22, {W2}""")
    fin_dma()
    for m in range(10):
        r = D0 + 4*m
        k.i(f"v_add_u32 v14, {32*m}, v12\nv_xad_u32 v14, v14, v13, v11")
        k.lg(f"ds_read_b64_tr_b16 v[{r}:{r+1}], v14")
        k.lg(f"ds_read_b64_tr_b16 v[{r+2}:{r+3}], v14 offset:{8*1280}", f"b{m}")
    for m in range(10):
        r = D0 + 4*m
        k.wait(lg=f"b{m}")
        k.i(f"buffer_store_dwordx4 v[{r}:{r+3}], v3, s[16:19], s22 offen {st}")
        k.i(f"s_add_u32 s22, s22, {1024 if m != 4 else 48*5120 - 4096}")
    k.label("p0_fin")
    stamp_out(k, 0, 14, 1)
    k.label("p0_kernel_end")
    k.i("s_endpgm")
    return k, dict(grid=304, block=256, lds=43008, vgpr=120, agpr=0)


def phi_pack(k, src, dst, n, T, sl2e, seps):
    for b in range(0, n, 4):
        a = src + b
        k.i(f"v_pk_mul_f32 v[{T}:{T+1}], v[{a}:{a+1}], s[{sl2e}:{sl2e+1}]")
        k.i(f"v_pk_mul_f32 v[{T+2}:{T+3}], v[{a+2}:{a+3}], s[{sl2e}:{sl2e+1}]")
        for j in range(4): k.i(f"v_exp_f32_e64 v{T+j}, v{T+j} clamp")
        for j in range(4): k.i(f"v_max_f32 v{T+4+j}, 0, v{a+j}")
        k.i(f"v_pk_add_f32 v[{T}:{T+1}], v[{T}:{T+1}], s[{seps}:{seps+1}]")
        k.i(f"v_pk_add_f32 v[{T+2}:{T+3}], v[{T+2}:{T+3}], s[{seps}:{seps+1}]")
        k.i(f"v_pk_add_f32 v[{T}:{T+1}], v[{T}:{T+1}], v[{T+4}:{T+5}]")
        k.i(f"v_pk_add_f32 v[{T+2}:{T+3}], v[{T+2}:{T+3}], v[{T+6}:{T+7}]")
        k.i(f"v_cvt_pk_bf16_f32 v{dst+b//2}, v{T}, v{T+1}")
        k.i(f"v_cvt_pk_bf16_f32 v{dst+b//2+1}, v{T+2}, v{T+3}")

def gemm_lds(k, NT, ACC, WB, act_first, PRE, pol=""):
    SB = 4 * NT * 1024
    def issue(s):
        k.i(f"s_add_u32 m0, s23, {s*SB}")
        for j in range(NT):
            k.vm(f"buffer_load_dwordx4 v3, s[16:19], s22 offen offset:{1024*j} {pol} lds")
        k.i(f"s_add_u32 s22, s22, {SB}")
        for j in range(4):
            k.vm(f"buffer_load_dwordx4 a[{16*s+4*j}:{16*s+4*j+3}], v3, s[16:19], s21 offen offset:{1024*j} {pol}", f"st{s}")
        k.i("s_add_u32 s21, s21, 4096")
    def reads(ks):
        for j in range(NT):
            o = (ks*NT + j) * 1024
            r = WB + (ks & 1)*4*NT + 4*j
            k.lg(f"ds_read_b128 v[{r}:{r+3}], v{3 + o//65536} offset:{o % 65536}", f"w{ks}")
    return issue, reads

def gemm_lds_loop(k, NT, ACC, WB, act_first, PRE, issue, reads, hook=None):
    k.wait(vm="st0"); k.i("s_barrier"); reads(0)
    for ks in range(40):
        if ks + 1 < 40:
            if (ks + 1) % 4 == 0:
                k.wait(vm=f"st{(ks+1)//4}"); k.i("s_barrier")
            reads(ks + 1)
        k.wait(lg=f"w{ks}")
        if OPT.get("fine") and ks % 8 == 0: stamp(k, 4 + ks//8)
        for j in range(NT):
            w = vr(WB + (ks & 1)*4*NT + 4*j, 4); x = ar(4*ks, 4); d = vr(ACC + 16*j, 16)
            c = "0" if ks == 0 else d
            if act_first: k.i(f"v_mfma_f32_32x32x16_bf16 {d}, {x}, {w}, {c}")
            else: k.i(f"v_mfma_f32_32x32x16_bf16 {d}, {w}, {x}, {c}")
            if j == 0 and ks % 4 == 0 and ks//4 + PRE < 10: issue(ks//4 + PRE)
            if hook: hook(ks, j)

def gen_p1():
    k = Kern("p1_kernel")
    stamp(k, 0)
    k.i("""s_load_dwordx2 s[14:15], s[0:1], 80
    s_cmp_ge_u32 s2, 256
    s_cbranch_scc1 p1_kernel_end
    v_and_b32 v1, 63, v0
    v_lshrrev_b32 v2, 6, v0
    v_lshlrev_b32 v3, 4, v1
    v_readfirstlane_b32 s20, v2
    v_add_u32 v4, 0x10000, v3
    v_add_u32 v5, 0x20000, v3
    s_and_b32 s24, s2, 7
    s_lshr_b32 s25, s2, 3
    s_lshr_b32 s26, s24, 1
    s_lshl_b32 s26, s26, 2
    s_lshr_b32 s27, s25, 3
    s_add_u32 s26, s26, s27
    s_and_b32 s27, s24, 1
    s_lshl_b32 s27, s27, 3
    s_and_b32 s25, s25, 7
    s_add_u32 s27, s27, s25""")
    k.i(f"""s_lshl_b32 s28, s26, 2
    s_add_u32 s28, s28, s20
    s_mul_i32 s21, s28, 40960
    s_lshl_b32 s23, s20, 12
    s_mul_i32 s22, s27, 163840
    s_add_u32 s22, s22, s23
    s_add_u32 s22, s22, {WQ}
    s_mov_b32 s40, {LOG2E:#x}
    s_mov_b32 s41, {LOG2E:#x}
    s_mov_b32 s42, 0x358637bd
    s_mov_b32 s43, 0x358637bd
    s_waitcnt lgkmcnt(0)""")
    srd(k, 16, 14, WSZ)
    ACC = 64; WB = 128; PRE = int(OPT.get('pre1', 7)); T = 8; PK = 160
    issue, reads = gemm_lds(k, 4, ACC, WB, True, PRE)
    for s in range(PRE): issue(s)
    stamp(k, 1)
    k.i("s_cmp_ge_u32 s27, 11\ns_cbranch_scc1 p1_q")
    save = (k.vm_n, dict(k.vm_tags), k.vm_done, k.lg_n, k.lg_done)
    gemm_lds_loop(k, 4, ACC, WB, True, PRE, issue, reads)
    stamp(k, 2)
    k.i("s_lshl_b32 s30, s20, 13\nv_add_u32 v6, s30, v3")
    for t in (2, 3):
        for p in range(8):
            k.i(f"v_cvt_pk_bf16_f32 v{PK+8*t+p}, v{ACC+16*t+2*p}, v{ACC+16*t+2*p+1}")
    k.i("s_mov_b32 s30, 0xf0000000\ns_mov_b32 s31, 0xf0000000\nv_mov_b32 v7, 0x3f803f80")
    for p in range(8):
        k.i(f"v_cndmask_b32 v{PK+24+p}, v{PK+24+p}, v7, s[30:31]")
    for t in (2, 3):
        for f in range(2):
            k.lg(f"ds_write_b128 v6, v[{PK+8*t+4*f}:{PK+8*t+4*f+3}] offset:{2048*t+1024*f}")
    for t in (0, 1):
        phi_pack(k, ACC + 16*t, PK + 8*t, 16, T, 40, 42)
        for f in range(2):
            k.lg(f"ds_write_b128 v6, v[{PK+8*t+4*f}:{PK+8*t+4*f+3}] offset:{2048*t+1024*f}")
    k.i("""s_lshr_b32 s30, s20, 1
    s_and_b32 s31, s20, 1
    s_lshl_b32 s32, s30, 11
    v_add_u32 v8, s32, v3
    s_lshl_b32 s32, s31, 11
    s_add_u32 s32, s32, 4096
    v_add_u32 v9, s32, v3
    v_and_b32 v10, 31, v1
    s_lshl_b32 s32, s31, 5
    v_add_u32 v10, s32, v10
    v_mul_u32_u24 v11, 205, v10
    v_lshrrev_b32 v11, 12, v11
    v_mul_u32_u24 v12, 20, v11
    v_sub_u32 v12, v10, v12
    v_cmp_eq_u32 s[36:37], 60, v10
    v_mov_b32 v13, 20
    v_lshrrev_b32 v14, 5, v1
    v_cndmask_b32 v12, v12, v13, s[36:37]
    v_mul_u32_u24 v12, 80, v12
    v_lshlrev_b32 v14, 2, v14
    s_lshl_b32 s32, s30, 5
    v_add_u32 v14, s32, v14""")
    k.wait(lg="all"); k.i("s_barrier")
    FA = 64; FB = 96; DD = 128
    for w in range(4):
        for f in range(2):
            n = 2*w + f
            k.lg(f"ds_read_b128 v[{FA+4*n}:{FA+4*n+3}], v8 offset:{8192*w+1024*f}")
            k.lg(f"ds_read_b128 v[{FB+4*n}:{FB+4*n+3}], v9 offset:{8192*w+1024*f}", f"f{n}")
    for j in range(4):
        k.i(f"""v_add_u32 v15, {8*j}, v14
        v_mul_u32_u24 v20, 205, v15
        v_lshrrev_b32 v20, 12, v20
        v_mul_u32_u24 v21, 20, v20
        v_sub_u32 v21, v15, v21
        v_cmp_eq_u32 s[{44+2*j}:{45+2*j}], v20, v11
        v_cmp_gt_u32 vcc, 3, v20
        v_mul_u32_u24 v20, 1680, v20
        v_lshl_add_u32 v21, v21, 2, v12
        v_add_u32 v{16+j}, v20, v21
        s_or_b64 s[{44+2*j}:{45+2*j}], s[{44+2*j}:{45+2*j}], s[36:37]
        s_and_b64 s[{44+2*j}:{45+2*j}], s[{44+2*j}:{45+2*j}], vcc""")
    for n in range(8):
        k.wait(lg=f"f{n}")
        k.i(f"v_mfma_f32_32x32x16_bf16 v[{DD}:{DD+15}], v[{FA+4*n}:{FA+4*n+3}], v[{FB+4*n}:{FB+4*n+3}], {'0' if n == 0 else vr(DD,16)}")
    k.i(f"""s_mul_i32 s32, s27, 5040
    s_add_u32 s32, s32, {KVA}
    s_add_u32 s52, s14, s32
    s_addc_u32 s53, s15, 0
    s_cmp_eq_u32 s27, 10
    s_movk_i32 s54, 5040
    s_cselect_b32 s54, 3360, s54
    s_mov_b32 s55, 0x20000
    v_lshlrev_b32 v22, 2, v0""")
    for j in range(4):
        k.i(f"s_mov_b64 exec, s[{44+2*j}:{45+2*j}]")
        k.lg(f"ds_write_b128 v{16+j}, v[{DD+4*j}:{DD+4*j+3}] offset:32768")
    k.i("s_mov_b64 exec, -1")
    k.wait(lg="all"); k.i("s_barrier")
    for i in range(5):
        k.lg(f"ds_read_b32 v{24+i}, v22 offset:{32768+1024*i}", f"d{i}")
    for i in range(5):
        k.wait(lg=f"d{i}")
        k.i(f"buffer_atomic_add_f32 v{24+i}, v22, s[52:55], 0 offen offset:{1024*i}" if i < 4 else
            f"v_add_u32 v22, 4096, v22\nbuffer_atomic_add_f32 v{24+i}, v22, s[52:55], 0 offen")
    k.i("s_branch p1_fin")
    k.label("p1_q")
    k.vm_n, k.vm_tags, k.vm_done, k.lg_n, k.lg_done = save
    gemm_lds_loop(k, 4, ACC, WB, False, PRE, issue, reads)
    stamp(k, 2)
    k.i(f"""s_mul_i32 s30, s28, 40960
    s_sub_u32 s31, s27, 11
    s_lshl_b32 s31, s31, 13
    s_add_u32 s30, s30, s31
    s_add_u32 s30, s30, {PQ}""")
    for t in range(4):
        phi_pack(k, ACC + 16*t, PK + 8*t, 16, T, 40, 42)
        for f in range(2):
            k.vm(f"buffer_store_dwordx4 v[{PK+8*t+4*f}:{PK+8*t+4*f+3}], v3, s[16:19], s30 offen offset:{(2048*t+1024*f) % 4096}")
        if t == 1: k.i("s_add_u32 s30, s30, 4096")
    k.label("p1_fin")
    stamp_out(k, 1, 14, 3, 9 if OPT.get('fine') else 0)
    k.label("p1_kernel_end")
    k.i("s_endpgm")
    return k, dict(grid=256, block=256, lds=163840, vgpr=192, agpr=160)


def map_tb_ct(k):
    k.i("""s_and_b32 s24, s2, 7
    s_lshr_b32 s25, s2, 3
    s_lshr_b32 s26, s24, 1
    s_lshl_b32 s26, s26, 3
    s_lshr_b32 s27, s25, 2
    s_add_u32 s26, s26, s27
    s_and_b32 s27, s24, 1
    s_lshl_b32 s27, s27, 2
    s_and_b32 s25, s25, 3
    s_add_u32 s27, s27, s25""")

def reduce4(k, ACC, RED, VW, VR, T):
    for n in range(20):
        k.lg(f"ds_write_b128 v{VW}, v[{ACC+4*n}:{ACC+4*n+3}] offset:{1024*n}")
    k.wait(lg="all"); k.i("s_barrier")
    for src in range(4):
        for c in range(5):
            r = ACC + 20*src + 4*c
            o = 20480*src + 1024*c
            k.lg(f"ds_read_b128 v[{r}:{r+3}], v{VR + (o >= 40960)} offset:{o - (40960 if o >= 40960 else 0)}", f"r{src}_{c}")
    for src in range(1, 4):
        for c in range(5):
            k.wait(lg=f"r{src}_{c}")
            for h in range(2):
                d = (ACC if src < 3 else T) + 4*c + 2*h
                k.i(f"v_pk_add_f32 v[{d}:{d+1}], v[{ACC+4*c+2*h}:{ACC+4*c+2*h+1}], v[{ACC+20*src+4*c+2*h}:{ACC+20*src+4*c+2*h+1}]")

def gen_p2():
    k = Kern("p2_kernel")
    stamp(k, 0)
    KVL = 64; RED = 58368
    k.i("""s_load_dwordx2 s[4:5], s[0:1], 0
    s_load_dwordx2 s[14:15], s[0:1], 80
    s_cmp_ge_u32 s2, 256
    s_cbranch_scc1 p2_kernel_end
    v_and_b32 v1, 63, v0
    v_lshrrev_b32 v2, 6, v0
    v_lshlrev_b32 v3, 4, v1
    v_readfirstlane_b32 s20, v2""")
    map_tb_ct(k)
    k.i(f"""s_mul_i32 s21, s20, 13440
    s_add_u32 s21, s21, {KVA}
    s_mul_i32 s23, s20, 14336
    s_add_u32 s23, s23, {KVL}
    s_mul_i32 s22, s26, 81920
    s_mul_i32 s28, s20, 10240
    s_add_u32 s22, s22, s28
    s_add_u32 s22, s22, {PQ}
    s_lshl_b32 s28, s27, 2
    s_add_u32 s28, s28, s20
    s_mul_i32 s28, s28, 25600
    s_add_u32 s28, s28, {WO}
    v_and_b32 v4, 15, v1
    v_lshrrev_b32 v5, 4, v1
    s_lshl_b32 s29, s26, 6
    s_lshl_b32 s30, s20, 4
    s_add_u32 s29, s29, s30
    v_add_u32 v6, s29, v4
    v_mul_u32_u24 v7, 1280, v6
    v_lshl_add_u32 v7, v5, 3, v7
    s_mul_i32 s29, s27, 160
    s_waitcnt lgkmcnt(0)""")
    srd(k, 16, 14, WSZ); srd(k, 8, 4, 2621440)
    for i in range(14):
        if i % 4 == 0:
            k.i(f"s_add_u32 m0, s23, {1024*i}")
        k.vm(f"buffer_load_dwordx4 v3, s[16:19], s21 offen offset:{1024*(i%4)} lds", "kv")
        if i % 4 == 3: k.i("s_add_u32 s21, s21, 4096")
    for tt in range(2):
        for kl in range(10):
            n = 10*tt + kl
            k.vm(f"buffer_load_dwordx4 a[{4*n}:{4*n+3}], v3, s[16:19], s22 offen offset:{1024*(kl%4)}", f"pq{tt}_{kl}")
            if kl % 4 == 3: k.i("s_add_u32 s22, s22, 4096")
        if tt == 0: k.i(f"s_add_u32 s22, s22, {40960-8192}")
    XR = 20
    for c in range(5):
        k.vm(f"buffer_load_dwordx2 v[{XR+2*c}:{XR+2*c+1}], v7, s[8:11], s29 offen offset:{32*c}", "x")
    for n in range(25):
        k.vm(f"buffer_load_dwordx4 a[{80+4*n}:{83+4*n}], v3, s[16:19], s28 offen offset:{1024*(n%4)}", f"wo{n//5}")
        if n % 4 == 3: k.i("s_add_u32 s28, s28, 4096")
    stamp(k, 1)
    k.i(f"""v_bfe_u32 v8, v1, 2, 3
    v_lshlrev_b32 v8, 2, v8
    v_and_b32 v9, 3, v1
    s_mov_b32 s30, 0x55524130
    s_mov_b32 s31, 0x55453120
    v_bfe_u32 v10, s30, v8, 4
    v_bfe_u32 v11, s31, v8, 4
    v_lshl_add_u32 v10, v10, 2, v9
    v_lshl_add_u32 v11, v11, 2, v9
    v_min_u32 v10, 20, v10
    v_min_u32 v11, 20, v11
    v_lshrrev_b32 v12, 5, v1
    v_lshlrev_b32 v12, 4, v12
    s_sub_u32 s30, s23, 16
    v_add_u32 v12, s30, v12
    v_mul_u32_u24 v10, 80, v10
    v_mul_u32_u24 v11, 80, v11
    v_add_u32 v10, v10, v12
    v_add_u32 v11, v11, v12
    s_mov_b32 s32, 0
    s_mov_b32 s33, -1
    s_mov_b32 s34, 0x358637bd
    s_mul_i32 s30, s20, 20480
    s_add_u32 s30, s30, {RED}
    v_add_u32 v13, s30, v3
    s_mul_i32 s30, s20, 5120
    s_add_u32 s30, s30, {RED}
    v_add_u32 v14, s30, v3
    v_add_u32 v15, 40960, v14""")
    AF = 32; DT = 96; OG = 160; TT = 96; ACC = 32
    k.wait(vm="kv")
    jobs = []
    for hl in range(8):
        for u in range(2):
            for h2 in range(2):
                dg0 = -(hl % 4) + 4*u + 2*h2
                v0_ = 0 <= dg0 <= 4; v1_ = 0 <= dg0+1 <= 4
                d = AF + (2*hl+u)*4 + 2*h2
                if not (v0_ or v1_): jobs.append((d, None, 0, 0))
                else: jobs.append((d, hl*1680 + 16*(dg0+1), v0_, v1_, hl))
    n = 0
    for jb in jobs:
        if jb[1] is None: continue
        k.lg(f"ds_read_b128 v[{TT+4*n}:{TT+4*n+3}], v{10 + (jb[4] & 1)} offset:{jb[1]}", f"a{n}")
        n += 1
    n = 0
    for jb in jobs:
        d = jb[0]
        if jb[1] is None:
            k.i(f"v_mov_b32 v{d}, 0\nv_mov_b32 v{d+1}, 0"); continue
        k.wait(lg=f"a{n}")
        t = TT + 4*n
        k.i(f"v_cvt_pk_bf16_f32 v{d}, v{t}, v{t+1}\nv_cvt_pk_bf16_f32 v{d+1}, v{t+2}, v{t+3}")
        if not jb[3]: k.i(f"v_cndmask_b32 v{d}, v{d}, 0, s[32:33]\nv_cndmask_b32 v{d+1}, v{d+1}, 0, s[32:33]")
        if not jb[2]: k.i(f"v_cndmask_b32 v{d}, 0, v{d}, s[32:33]\nv_cndmask_b32 v{d+1}, 0, v{d+1}, s[32:33]")
        n += 1
    stamp(k, 2)
    def og(tt, m): return OG + 40*tt + 8*(m//4) + [0, 4, 2, 6][m % 4]
    def omm(hl):
        t0 = hl + hl//4
        for tt in range(2):
            k.wait(vm=f"pq{tt}_{t0+1}")
            d = vr(DT + 32*(hl & 1) + 16*tt, 16)
            for u in range(2):
                k.i(f"v_mfma_f32_32x32x16_bf16 {d}, {vr(AF+(2*hl+u)*4, 4)}, {ar(4*(10*tt+t0+u), 4)}, {'0' if u == 0 else d}")
    def opost(hl):
        p = hl // 2; odd = hl & 1
        for tt in range(2):
            D = DT + 32*odd + 16*tt
            rc = 16 + 2*tt
            a, b = (D+8, D+12) if odd else (D+12, D+8)
            k.i(f"v_cndmask_b32 v{rc}, v{a}, v{b}, s[32:33]\nv_add_f32 v{rc}, s34, v{rc}\nv_rcp_f32 v{rc}, v{rc}")
        for tt in range(2):
            D = DT + 32*odd + 16*tt
            rc = 16 + 2*tt
            for h in range(6):
                k.i(f"v_pk_mul_f32 v[{D+2*h}:{D+2*h+1}], v[{D+2*h}:{D+2*h+1}], v[{rc}:{rc+1}] op_sel_hi:[1,0]")
            for j in range(2):
                g = og(tt, 5*p + 2*odd + j)
                k.i(f"v_cvt_pk_bf16_f32 v{g}, v{D+4*j}, v{D+4*j+1}\nv_cvt_pk_bf16_f32 v{g+1}, v{D+4*j+2}, v{D+4*j+3}")
            g = og(tt, 5*p + 4)
            if not odd:
                k.i(f"v_cvt_pk_bf16_f32 v{g}, v{D+8}, v{D+9}\nv_cvt_pk_bf16_f32 v{g+1}, v{D+10}, v{D+11}")
            else:
                k.i(f"v_cvt_pk_bf16_f32 v{D}, v{D+8}, v{D+9}\nv_cvt_pk_bf16_f32 v{D+1}, v{D+10}, v{D+11}")
                k.i(f"v_cndmask_b32 v{g}, v{g}, v{D}, s[32:33]\nv_cndmask_b32 v{g+1}, v{g+1}, v{D+1}, s[32:33]")
    omm(0)
    for hl in range(8):
        if hl < 7: omm(hl + 1)
        opost(hl)
    for tt in range(2):
        for t in range(5):
            b = OG + 40*tt + 8*t
            for i in range(4): k.i(f"v_permlane16_swap_b32 v{b+i}, v{b+4+i}")
    stamp(k, 3)
    for t in range(5):
        k.wait(vm=f"wo{t}")
        for q in range(4):
            for c in range(5):
                d = vr(ACC + (5*q+c)*4, 4)
                k.i(f"v_mfma_f32_16x16x32_bf16 {d}, {ar(80+4*(5*t+c), 4)}, {vr(OG+40*(q//2)+8*t+4*(q%2), 4)}, {'0' if t == 0 else d}")
    stamp(k, 4)
    S = 112
    reduce4(k, ACC, RED, 13, 14, S)
    stamp(k, 5)
    k.i(f"""s_mov_b32 s30, 0xffff0000
    s_lshl_b32 s31, s26, 1
    s_lshr_b32 s35, s20, 1
    s_add_u32 s31, s31, s35
    s_mul_i32 s31, s31, 40
    s_mul_i32 s35, s27, 5
    s_add_u32 s31, s31, s35
    s_lshl_b32 s31, s31, 10
    s_add_u32 s31, s31, {HH}
    s_and_b32 s35, s20, 1
    s_lshl_b32 s35, s35, 8
    s_add_u32 s31, s31, s35
    v_lshrrev_b32 v8, 1, v5
    v_lshlrev_b32 v8, 9, v8
    v_lshl_add_u32 v8, v4, 4, v8
    v_and_b32 v9, 1, v5
    v_lshl_add_u32 v8, v9, 3, v8
    v_add_u32 v9, 4096, v8""")
    k.wait(vm="x")
    XF = 32; HP = 56
    for j in range(10):
        k.i(f"v_lshlrev_b32 v{XF+2*j}, 16, v{XR+j}\nv_and_b32 v{XF+2*j+1}, s30, v{XR+j}")
    for j in range(10):
        k.i(f"v_pk_add_f32 v[{S+2*j}:{S+2*j+1}], v[{S+2*j}:{S+2*j+1}], v[{XF+2*j}:{XF+2*j+1}]")
    for j in range(10):
        k.i(f"v_cvt_pk_bf16_f32 v{HP+j}, v{S+2*j}, v{S+2*j+1}")
    for c in range(5):
        k.vm(f"buffer_store_dwordx2 v[{HP+2*c}:{HP+2*c+1}], v{8 if c < 4 else 9}, s[16:19], s31 offen offset:{1024*(c%4)}")
    for j in range(10):
        k.i(f"v_lshlrev_b32 v{XF+2*j}, 16, v{HP+j}\nv_and_b32 v{XF+2*j+1}, s30, v{HP+j}")
    k.i(f"v_pk_add_f32 v[16:17], v[{XF}:{XF+1}], v[{XF+2}:{XF+3}]")
    k.i(f"v_pk_mul_f32 v[18:19], v[{XF}:{XF+1}], v[{XF}:{XF+1}]")
    k.i(f"v_pk_fma_f32 v[18:19], v[{XF+2}:{XF+3}], v[{XF+2}:{XF+3}], v[18:19]")
    for j in range(2, 10):
        k.i(f"v_pk_add_f32 v[16:17], v[16:17], v[{XF+2*j}:{XF+2*j+1}]")
        k.i(f"v_pk_fma_f32 v[18:19], v[{XF+2*j}:{XF+2*j+1}], v[{XF+2*j}:{XF+2*j+1}], v[18:19]")
    k.i("""v_add_f32 v16, v16, v17
    v_add_f32 v17, v18, v19
    v_mov_b32 v18, v16
    v_mov_b32 v19, v17
    v_permlane16_swap_b32 v16, v18
    v_permlane16_swap_b32 v17, v19
    v_pk_add_f32 v[16:17], v[16:17], v[18:19]
    v_mov_b32 v18, v16
    v_mov_b32 v19, v17
    v_permlane32_swap_b32 v16, v18
    v_permlane32_swap_b32 v17, v19
    v_pk_add_f32 v[16:17], v[16:17], v[18:19]
    v_lshlrev_b32 v6, 6, v6""")
    k.i(f"""s_lshl_b32 s31, s27, 3
    s_add_u32 s31, s31, {ST}
    s_mov_b64 exec, 0xffff""")
    k.vm("buffer_store_dwordx2 v[16:17], v6, s[16:19], s31 offen")
    stamp_out(k, 2, 14, 6)
    k.label("p2_kernel_end")
    k.i("s_endpgm")
    return k, dict(grid=256, block=256, lds=RED+81920, vgpr=240, agpr=180)

def gen_p3():
    k = Kern("p3_kernel")
    stamp(k, 0)
    TB = 122880
    k.i("""s_load_dwordx2 s[4:5], s[0:1], 40
    s_load_dwordx2 s[14:15], s[0:1], 80
    s_cmp_ge_u32 s2, 256
    s_cbranch_scc1 p3_kernel_end
    v_and_b32 v1, 63, v0
    v_lshrrev_b32 v2, 6, v0
    v_lshlrev_b32 v3, 4, v1
    v_readfirstlane_b32 s20, v2
    v_add_u32 v4, 0x10000, v3
    s_and_b32 s24, s2, 7
    s_lshr_b32 s25, s2, 3
    s_lshr_b32 s26, s24, 1
    s_lshl_b32 s26, s26, 2
    s_lshr_b32 s27, s25, 3
    s_add_u32 s26, s26, s27
    s_and_b32 s27, s24, 1
    s_lshl_b32 s27, s27, 3
    s_and_b32 s25, s25, 7
    s_add_u32 s27, s27, s25""")
    k.i(f"""s_lshl_b32 s28, s26, 2
    s_add_u32 s28, s28, s20
    s_mul_i32 s21, s28, 40960
    s_add_u32 s21, s21, {HH}
    s_mul_i32 s23, s20, 3072
    s_mul_i32 s22, s27, 122880
    s_add_u32 s22, s22, s23
    s_add_u32 s22, s22, {W1}
    v_and_b32 v6, 31, v1
    v_lshrrev_b32 v7, 5, v1
    v_lshlrev_b32 v6, 6, v6
    v_lshl_add_u32 v6, v7, 5, v6
    s_lshl_b32 s29, s28, 11
    s_add_u32 s29, s29, {ST}
    v_lshlrev_b32 v16, 2, v0
    v_lshlrev_b32 v17, 1, v0
    s_mul_i32 s30, s27, 384
    s_add_u32 s30, s30, {CS}
    s_add_u32 s32, s30, 6144
    s_mul_i32 s31, s27, 192
    s_waitcnt lgkmcnt(0)""")
    srd(k, 16, 14, WSZ); srd(k, 8, 4, 3072)
    k.vm("buffer_load_dword v18, v16, s[16:19], s30 offen")
    k.vm("buffer_load_dword v19, v16, s[16:19], s32 offen")
    k.vm("buffer_load_ushort v20, v17, s[8:11], s31 offen", "tab")
    k.vm("buffer_load_dwordx4 v[8:11], v6, s[16:19], s29 offen")
    k.vm("buffer_load_dwordx4 v[12:15], v6, s[16:19], s29 offen offset:16", "stats")
    ACC = 64; WB = 112; PRE = int(OPT.get('pre3', 8))
    issue, reads = gemm_lds(k, 3, ACC, WB, False, PRE)
    for s in range(PRE): issue(s)
    stamp(k, 1)
    k.wait(vm="tab")
    k.i(f"v_add_f32 v18, v18, v19\nv_lshlrev_b32 v20, 16, v20\nv_add_u32 v16, {TB}, v16")
    k.lg("ds_write_b32 v16, v18")
    k.lg("ds_write_b32 v16, v20 offset:1024")
    k.wait(vm="stats", lg="all")
    k.i("""v_pk_add_f32 v[8:9], v[8:9], v[10:11]
    v_pk_add_f32 v[12:13], v[12:13], v[14:15]
    v_pk_add_f32 v[8:9], v[8:9], v[12:13]
    v_mov_b32 v10, v8
    v_mov_b32 v11, v9
    v_permlane32_swap_b32 v8, v10
    v_permlane32_swap_b32 v9, v11
    v_pk_add_f32 v[8:9], v[8:9], v[10:11]
    v_mul_f32 v8, 0x3acccccd, v8
    v_mul_f32 v9, 0x3acccccd, v9
    v_fma_f32 v9, -v8, v8, v9
    v_max_f32 v9, 0, v9""")
    bf16r(k, 8, 8); bf16r(k, 9, 9)
    k.i("v_add_f32 v9, 0x3727c5ac, v9")
    bf16r(k, 9, 9)
    k.i("v_sqrt_f32 v9, v9")
    bf16r(k, 9, 9)
    k.i("v_rcp_f32 v10, v9\nv_mul_f32 v12, v8, v10\nv_sub_f32 v12, 0, v12")
    k.i(f"""v_lshlrev_b32 v14, 4, v7
    v_add_u32 v14, {TB}, v14
    v_bfe_u32 v15, v1, 4, 1
    v_mul_u32_u24 v15, 49152, v15
    v_and_b32 v16, 15, v1
    v_lshl_add_u32 v15, v16, 4, v15
    v_lshl_add_u32 v15, v7, 9, v15
    s_mul_i32 s30, s28, 98304
    s_mul_i32 s31, s27, 3072
    s_add_u32 s30, s30, s31
    s_add_u32 s30, s30, {H1}""")
    gemm_lds_loop(k, 3, ACC, WB, False, PRE, issue, reads)
    stamp(k, 2)
    CT = 136; BT = 184; PK = 24
    for nt in range(3):
        for j in range(4):
            n = 4*nt + j
            k.lg(f"ds_read_b128 v[{CT+4*n}:{CT+4*n+3}], v14 offset:{128*nt+32*j}")
            k.lg(f"ds_read_b128 v[{BT+4*n}:{BT+4*n+3}], v14 offset:{1024+128*nt+32*j}", f"t{n}")
    for nt in range(3):
        for j in range(4):
            n = 4*nt + j
            k.wait(lg=f"t{n}")
            a = ACC + 4*n; c = CT + 4*n; b = BT + 4*n
            for h in range(2):
                k.i(f"v_pk_fma_f32 v[{b+2*h}:{b+2*h+1}], v[{c+2*h}:{c+2*h+1}], v[12:13], v[{b+2*h}:{b+2*h+1}] op_sel_hi:[1,0,1]")
            for h in range(2):
                k.i(f"v_pk_fma_f32 v[{a+2*h}:{a+2*h+1}], v[{a+2*h}:{a+2*h+1}], v[10:11], v[{b+2*h}:{b+2*h+1}] op_sel_hi:[1,0,1]")
            for h in range(4): k.i(f"v_max_f32 v{a+h}, 0, v{a+h}")
            for h in range(2):
                k.i(f"v_pk_mul_f32 v[{a+2*h}:{a+2*h+1}], v[{a+2*h}:{a+2*h+1}], v[{a+2*h}:{a+2*h+1}]")
            for h in range(2):
                k.i(f"v_cvt_pk_bf16_f32 v{PK+8*nt+2*j+h}, v{a+2*h}, v{a+2*h+1}")
            if j % 2 == 1:
                e = j // 2
                k.vm(f"buffer_store_dwordx4 v[{PK+8*nt+4*e}:{PK+8*nt+4*e+3}], v15, s[16:19], s30 offen offset:{1024*nt+256*e}")
    stamp_out(k, 3, 14, 3, 9 if OPT.get('fine') else 0)
    k.label("p3_kernel_end")
    k.i("s_endpgm")
    return k, dict(grid=256, block=256, lds=TB+2048, vgpr=232, agpr=160)

def gen_p4():
    k = Kern("p4_kernel")
    stamp(k, 0)
    k.i("""s_load_dwordx4 s[4:7], s[0:1], 56
    s_load_dwordx2 s[14:15], s[0:1], 80
    s_cmp_ge_u32 s2, 256
    s_cbranch_scc1 p4_kernel_end
    v_and_b32 v1, 63, v0
    v_lshrrev_b32 v2, 6, v0
    v_lshlrev_b32 v3, 4, v1
    v_readfirstlane_b32 s20, v2""")
    map_tb_ct(k)
    k.i(f"""s_mul_i32 s21, s26, 196608
    s_mul_i32 s22, s20, 12288
    s_add_u32 s21, s21, s22
    s_add_u32 s21, s21, {H1}
    s_lshl_b32 s22, s27, 2
    s_add_u32 s22, s22, s20
    s_mul_i32 s22, s22, 61440
    s_add_u32 s22, s22, {W2}
    v_add_u32 v10, 49152, v3
    v_add_u32 v11, 98304, v3
    v_add_u32 v12, 147456, v3
    v_add_u32 v16, 4096, v3
    v_and_b32 v4, 15, v1
    v_lshrrev_b32 v5, 4, v1
    s_lshl_b32 s29, s26, 6
    s_lshl_b32 s30, s20, 4
    s_add_u32 s29, s29, s30
    v_add_u32 v6, s29, v4
    v_mul_u32_u24 v7, 1280, v6
    v_lshl_add_u32 v7, v5, 3, v7
    s_mul_i32 s29, s27, 160
    s_lshl_b32 s31, s26, 1
    s_lshr_b32 s35, s20, 1
    s_add_u32 s31, s31, s35
    s_mul_i32 s31, s31, 40
    s_mul_i32 s35, s27, 5
    s_add_u32 s31, s31, s35
    s_lshl_b32 s31, s31, 10
    s_add_u32 s31, s31, {HH}
    s_and_b32 s35, s20, 1
    s_lshl_b32 s35, s35, 8
    s_add_u32 s31, s31, s35
    v_lshrrev_b32 v8, 1, v5
    v_lshlrev_b32 v8, 9, v8
    v_lshl_add_u32 v8, v4, 4, v8
    v_and_b32 v9, 1, v5
    v_lshl_add_u32 v8, v9, 3, v8
    v_add_u32 v9, 4096, v8
    v_lshlrev_b32 v17, 3, v5
    s_mul_i32 s30, s20, 20480
    v_add_u32 v13, s30, v3
    s_mul_i32 s30, s20, 5120
    v_add_u32 v14, s30, v3
    v_add_u32 v15, 40960, v14
    s_waitcnt lgkmcnt(0)""")
    srd(k, 16, 14, WSZ); srd(k, 8, 4, 1280); srd(k, 36, 6, 2621440)
    NB = int(OPT.get('nb4', 6)); ACC = 32; HR = 112; BR = 122
    def issue(t):
        b = 36*(t % NB)
        for q in range(4):
            k.vm(f"buffer_load_dwordx4 a[{b+4*q}:{b+4*q+3}], v{[3,10,11,12][q]}, s[16:19], s21 offen offset:{1024*(t%4)}")
        if t % 4 == 3: k.i("s_add_u32 s21, s21, 4096")
        for c in range(5):
            k.vm(f"buffer_load_dwordx4 a[{b+16+4*c}:{b+19+4*c}], v{3 if c < 4 else 16}, s[16:19], s22 offen offset:{1024*(c%4)}", f"s{t}")
        k.i("s_add_u32 s22, s22, 5120")
    for t in range(NB): issue(t)
    stamp(k, 1)
    for t in range(12):
        k.wait(vm=f"s{t}")
        b = 36*(t % NB)
        for q in range(4):
            for c in range(5):
                d = vr(ACC + (5*q+c)*4, 4)
                k.i(f"v_mfma_f32_16x16x32_bf16 {d}, {ar(b+16+4*c, 4)}, {ar(b+4*q, 4)}, {'0' if t == 0 else d}")
        if t + NB < 12: issue(t + NB)
        if t == 6:
            for c in range(5):
                k.vm(f"buffer_load_dwordx2 v[{HR+2*c}:{HR+2*c+1}], v{8 if c < 4 else 9}, s[16:19], s31 offen offset:{1024*(c%4)}")
            for c in range(5):
                k.vm(f"buffer_load_dwordx2 v[{BR+2*c}:{BR+2*c+1}], v17, s[8:11], s29 offen offset:{32*c}", "res")
    stamp(k, 2)
    S = 136
    reduce4(k, ACC, 0, 13, 14, S)
    stamp(k, 3)
    k.i("s_mov_b32 s30, 0xffff0000")
    k.wait(vm="res")
    XF = 32
    for j in range(20):
        k.i(f"v_lshlrev_b32 v{XF+2*j}, 16, v{HR+j}\nv_and_b32 v{XF+2*j+1}, s30, v{HR+j}")
    for j in range(10):
        k.i(f"v_pk_add_f32 v[{S+2*j}:{S+2*j+1}], v[{S+2*j}:{S+2*j+1}], v[{XF+20+2*j}:{XF+21+2*j}]")
    for j in range(10):
        k.i(f"v_pk_add_f32 v[{S+2*j}:{S+2*j+1}], v[{S+2*j}:{S+2*j+1}], v[{XF+2*j}:{XF+2*j+1}]")
    for j in range(10):
        k.i(f"v_cvt_pk_bf16_f32 v{HR+j}, v{S+2*j}, v{S+2*j+1}")
    for c in range(5):
        k.vm(f"buffer_store_dwordx2 v[{HR+2*c}:{HR+2*c+1}], v7, s[36:39], s29 offen offset:{32*c}")
    stamp_out(k, 4, 14, 4)
    k.label("p4_kernel_end")
    k.i("s_endpgm")
    return k, dict(grid=256, block=256, lds=81920, vgpr=160, agpr=216)

def gen_dbg():
    k = Kern("dbg_kernel")
    NS = [1, 3, 6, 3, 4]
    k.i("""s_load_dwordx4 s[4:7], s[0:1], 72
    s_cmp_ge_u32 s2, 1
    s_cbranch_scc1 dbg_kernel_end
    s_waitcnt lgkmcnt(0)
    s_sub_u32 s4, s4, 2560
    s_subb_u32 s5, s5, 0
    s_mov_b64 exec, 1""")
    for i in range(5):
        k.i(f"v_mov_b32 v1, {0x2000000 + i*65536 + 5*128}")
        k.i(f"global_load_dword v{2+2*i}, v1, s[6:7]\nglobal_load_dword v{3+2*i}, v1, s[6:7] offset:{8*NS[i]}")
    k.i("s_waitcnt vmcnt(0)")
    for i in range(9, 0, -1): k.i(f"v_sub_u32 v{2+i}, v{2+i}, v2")
    k.i("v_mov_b32 v1, 0")
    for i in range(10): k.i(f"global_store_dword v1, v{2+i}, s[4:5] offset:{4*i}")
    k.label("dbg_kernel_end")
    k.i("s_endpgm")
    return k, dict(grid=1, block=64, lds=0, vgpr=32, agpr=0)

KERNELS = [gen_p0, gen_p1, gen_p2, gen_p3, gen_p4]

def emit(path, gens):
    ks = [g() for g in gens]
    out = []
    for k, m in ks:
        out.append(f"; @launch kernel={k.name} grid=({m['grid']},1,1) block=({m['block']},1,1) lds={m['lds']}")
    out.append('.amdgcn_target "amdgcn-amd-amdhsa--gfx950"')
    out.append(".text")
    for k, m in ks:
        body, added = hazard_pass(k.L)
        print(k.name, "instrs", len(body), "nop states added", added, file=sys.stderr)
        out += [f".globl {k.name}", ".p2align 8", f".type {k.name},@function", f"{k.name}:"]
        out += [("" if (l.endswith(":") or l.startswith(";")) else "    ") + l for l in body]
    out.append('.section .rodata,"a"')
    for k, m in ks:
        acc = (m['vgpr'] + 3) // 4 * 4
        tot = acc + m['agpr'] if m['agpr'] else m['vgpr']
        out += [".p2align 6", f".amdhsa_kernel {k.name}", f"  .amdhsa_next_free_vgpr {tot}", "  .amdhsa_next_free_sgpr 102",
                f"  .amdhsa_accum_offset {acc}", "  .amdhsa_group_segment_fixed_size 0", "  .amdhsa_kernarg_size 88",
                "  .amdhsa_user_sgpr_count 2", "  .amdhsa_user_sgpr_kernarg_segment_ptr 1",
                "  .amdhsa_system_sgpr_workgroup_id_x 1", ".end_amdhsa_kernel"]
    open(path, "w").write("\n".join(out) + "\n")

if __name__ == "__main__":
    for a in sys.argv[2:]:
        kk, v = a.split("=")
        OPT[kk] = {"True": True, "False": False}.get(v, v.replace("_", " "))
    emit(sys.argv[1], KERNELS[:int(OPT.get('nk', 9))] + ([gen_dbg] if OPT.get('dbg') else []))
```

```python
import sys
from asmlib import *

NAME = "sequential_preLN__linear_attn_block__dense_activation_squared_relu__prompt"
KN = NAME + "_kernel"
CB = 0x0
FX = CB + 0x1000; FW = CB + 0x2000; F0B = CB + 0x3000; F1 = CB + 0x4000; F2 = CB + 0x6000; F3 = CB + 0x7000
CS = 0x10000; KVA = 0x20000; ST = 0x40000
XN = 0x100000; WQ = 0x380000; WO = 0x600000; W1 = 0x700000; W2 = 0x900000
PQ = 0xB00000; HH = 0xE00000; H1 = 0x1200000
WSZ = 0x1800000
LOG2E = 0x3fb8aa3b
OPT = dict(stamps=False, cold="nt", pre1=3, pre3=12, nb4=6)
HO = "sc1"

def magic(C, maxq):
    for sh in range(4, 24):
        m = -(-(1 << sh) // C)
        if m * maxq < (1 << 32) and m < (1 << 24) and all((q * m) >> sh == q // C for q in range(maxq)): return m, sh
    raise ValueError

k = None
def srd(d, base, size):
    k.i(f"s_mov_b32 s{d}, s{base}\ns_mov_b32 s{d+1}, s{base+1}\ns_mov_b32 s{d+2}, {size}\ns_mov_b32 s{d+3}, 0x20000")
def bf16r(d, s):
    k.i(f"v_cvt_pk_bf16_f32 v{d}, v{s}, v{s}\nv_lshlrev_b32 v{d}, 16, v{d}")
NSTAMP = 18
def stamp(idx):
    if OPT["stamps"]: k.i(f"s_memrealtime s[{64+2*idx}:{65+2*idx}]")
def snap(): return (k.vm_n, dict(k.vm_tags), k.vm_done, k.lg_n, dict(k.lg_tags), k.lg_done)
def rest(s): k.vm_n, k.vm_tags, k.vm_done, k.lg_n, k.lg_tags, k.lg_done = s[0], dict(s[1]), s[2], s[3], dict(s[4]), s[5]

PX, PWQ, PWO, PW1, PB1, PW2, PB2, POUT = 48, 50, 52, 56, 58, 60, 62, 46

npoll = 0
def poll(vaddr, soff, vt, wide=False):
    global npoll
    npoll += 1
    L = f"poll{npoll}"
    k.i("s_mov_b32 s43, 0x20000")
    k.label(L)
    if wide:
        k.i(f"buffer_load_dwordx4 v[{vt}:{vt+3}], v{vaddr}, s[16:19], s{soff} offen sc1")
        k.i("s_waitcnt vmcnt(0)")
        check4(vt)
    else:
        k.i(f"buffer_load_dword v{vt}, v{vaddr}, s[16:19], s{soff} offen sc1")
        k.i("s_waitcnt vmcnt(0)")
        k.i(f"v_cmp_ne_u32 vcc, s44, v{vt}")
    k.i(f"s_cbranch_vccz {L}d\ns_sub_u32 s43, s43, 1\ns_cbranch_scc0 {L}")
    k.label(L + "d")
    k.vm_done = k.vm_n
def check4(vt):
    k.i(f"v_xor_b32 v{vt}, s44, v{vt}\nv_xor_b32 v{vt+1}, s44, v{vt+1}\nv_xor_b32 v{vt+2}, s44, v{vt+2}\nv_xor_b32 v{vt+3}, s44, v{vt+3}")
    k.i(f"v_or3_b32 v{vt}, v{vt}, v{vt+1}, v{vt+2}\nv_or_b32 v{vt}, v{vt}, v{vt+3}\nv_cmp_ne_u32 vcc, 0, v{vt}")

nsig = 0
def signal(lanes_mask, vaddr_code, vaddr, soff_code, soff, vt):
    global nsig
    nsig += 1
    L = f"sig{nsig}"
    k.i(f"s_cmp_lg_u32 s20, 0\ns_cbranch_scc1 {L}")
    k.i(vaddr_code); k.i(soff_code)
    k.i(f"v_mov_b32 v{vt}, s44\ns_mov_b64 exec, {lanes_mask}")
    k.i(f"buffer_store_dword v{vt}, v{vaddr}, s[16:19], s{soff} offen sc1")
    k.i("s_mov_b64 exec, -1")
    k.label(L)
    k.vm_n += 0
def sig_row(base, vt):
    signal(1, f"v_mov_b32 v{vt+1}, 0", vt+1, f"s_lshl_b32 s42, s26, 7\ns_lshl_b32 s43, s27, 2\ns_add_u32 s42, s42, s43\ns_add_u32 s42, s42, {base}", 42, vt)

def phi_pack(src, dst, n, T, hook=None):
    for b in range(0, n, 4):
        a = src + b
        k.i(f"v_pk_mul_f32 v[{T}:{T+1}], v[{a}:{a+1}], s[40:41]")
        k.i(f"v_pk_mul_f32 v[{T+2}:{T+3}], v[{a+2}:{a+3}], s[40:41]")
        for j in range(4): k.i(f"v_exp_f32_e64 v{T+j}, v{T+j} clamp")
        for j in range(4): k.i(f"v_max_f32 v{T+4+j}, 0, v{a+j}")
        k.i(f"v_pk_add_f32 v[{T}:{T+1}], v[{T}:{T+1}], s[38:39]")
        k.i(f"v_pk_add_f32 v[{T+2}:{T+3}], v[{T+2}:{T+3}], s[38:39]")
        k.i(f"v_pk_add_f32 v[{T}:{T+1}], v[{T}:{T+1}], v[{T+4}:{T+5}]")
        k.i(f"v_pk_add_f32 v[{T+2}:{T+3}], v[{T+2}:{T+3}], v[{T+6}:{T+7}]")
        k.i(f"v_cvt_pk_bf16_f32 v{dst+b//2}, v{T}, v{T+1}")
        k.i(f"v_cvt_pk_bf16_f32 v{dst+b//2+1}, v{T+2}, v{T+3}")
        if hook: hook()

ROWOFF = [[0, 4, 20, 24, 8], [12, 16, 28, 32, 36]]

def phase0():
    cold = OPT["cold"]
    stamp(0)
    k.i(f"""s_load_dwordx16 s[48:63], s[0:1], 0
    s_load_dwordx2 s[46:47], s[0:1], 64
    s_load_dwordx2 s[14:15], s[0:1], 80
    s_cmp_ge_u32 s2, 256
    s_cbranch_scc1 kend
    v_and_b32 v1, 63, v0
    v_lshrrev_b32 v2, 6, v0
    v_lshlrev_b32 v3, 4, v1
    v_readfirstlane_b32 s20, v2
    s_and_b32 s24, s2, 7
    s_lshr_b32 s25, s2, 3
    s_lshr_b32 s26, s24, 1
    s_lshl_b32 s26, s26, 2
    s_lshr_b32 s27, s25, 3
    s_add_u32 s26, s26, s27
    s_and_b32 s27, s24, 1
    s_lshl_b32 s27, s27, 3
    s_and_b32 s25, s25, 7
    s_add_u32 s27, s27, s25
    s_lshl_b32 s45, s26, 4
    s_add_u32 s45, s45, s27
    s_getpc_b64 s[4:5]
    pcl:
    s_waitcnt lgkmcnt(0)
    s_load_dword s44, s[14:15], {CB}""")
    srd(16, 14, WSZ)
    k.i("s_cmp_ge_u32 s20, 2\ns_cbranch_scc1 p0_wq_issue")
    X = 8; F = 32; T = 72
    srd(8, PX, 2621440)
    k.i("""v_lshrrev_b32 v4, 4, v0
    v_and_b32 v5, 15, v0
    s_lshl_b32 s21, s45, 3
    v_add_u32 v6, s21, v4
    v_mul_u32_u24 v6, 1280, v6
    v_lshl_add_u32 v6, v5, 4, v6""")
    for i in range(5):
        k.i(f"buffer_load_dwordx4 v[{X+4*i}:{X+4*i+3}], v6, s[8:11], 0 offen offset:{256*i} {cold}")
    k.i("s_branch p0_unit_issue")
    k.label("p0_wq_issue")
    srd(8, PWQ, 2457600)
    m, sh = magic(20, 320)
    k.i(f"""s_mul_i32 s21, s27, 120
    s_add_u32 s22, s21, 2560
    s_add_u32 s21, s21, 1280
    s_sub_u32 s23, s27, 11
    s_lshl_b32 s23, s23, 8
    s_add_u32 s24, s23, 128
    s_cmp_ge_u32 s27, 11
    s_cselect_b32 s21, s23, s21
    s_cselect_b32 s22, s24, s22
    s_and_b32 s28, s21, 8
    s_and_b32 s21, s21, 0xfffffff0
    s_and_b32 s22, s22, 0xfffffff0
    s_sub_u32 s22, s22, 160
    s_sub_u32 s29, s20, 2
    s_lshl_b32 s30, s29, 4
    s_add_u32 s30, s30, s26
    s_mul_i32 s31, s30, 61440
    s_mul_i32 s32, s29, 5120
    v_mov_b32 v10, s21
    v_mov_b32 v11, s22""")
    for i in range(5):
        k.i(f"""v_add_u32 v4, {64*i}, v1
        v_mul_u32_u24 v5, {m}, v4
        v_lshrrev_b32 v5, {sh}, v5
        v_mul_u32_u24 v6, 20, v5
        v_sub_u32 v6, v4, v6
        v_cmp_gt_u32 vcc, 10, v6
        v_mul_u32_u24 v5, 3840, v5
        v_lshl_add_u32 v5, v6, 4, v5
        v_cndmask_b32 v6, v11, v10, vcc
        v_add_u32 v{12+i}, v5, v6
        s_add_u32 m0, s32, {1024*i}
        buffer_load_dwordx4 v{12+i}, s[8:11], s31 offen {cold} lds""")
    k.i(f"""s_cmp_eq_u32 s20, 2
    s_cselect_b32 s33, 1, 0
    s_cmp_lt_u32 s26, 8
    s_cselect_b32 s33, s33, 0
    s_cmp_eq_u32 s33, 0
    s_cbranch_scc1 p0_unit_issue
    s_add_u32 s31, s31, {32*61440}""")
    for i in range(5):
        k.i(f"s_mov_b32 m0, {10240+1024*i}\nbuffer_load_dwordx4 v{12+i}, s[8:11], s31 offen {cold} lds")
    UL = 16384
    k.label("p0_unit_issue")
    k.i(f"""s_lshr_b32 s6, s2, 3
    s_and_b32 s6, s6, 3
    s_lshl_b32 s6, s6, 13
    v_lshl_add_u32 v30, v1, 7, s6
    v_min_u32 v30, kend-pcl, v30
    global_load_dword v31, v30, s[4:5]""")
    k.i("""s_cmp_ge_u32 s45, 232
    s_cbranch_scc1 p0_proc
    s_cmp_ge_u32 s45, 136
    s_cbranch_scc1 p0_ui_w2
    s_cmp_ge_u32 s45, 40
    s_cbranch_scc1 p0_ui_w1""")
    srd(8, PWO, 819200)
    k.i("""s_mul_i32 s35, s45, 26
    s_lshr_b32 s35, s35, 8
    s_mul_i32 s36, s35, 10
    s_sub_u32 s36, s45, s36
    s_mul_i32 s21, s35, 204800
    s_lshl_b32 s22, s36, 7
    s_add_u32 s21, s21, s22
    s_movk_i32 s29, 1280
    s_branch p0_ui_128""")
    k.label("p0_ui_w1")
    srd(8, PW1, 1966080)
    k.i("""s_sub_u32 s34, s45, 40
    s_mul_i32 s35, s34, 43
    s_lshr_b32 s35, s35, 10
    s_mul_i32 s36, s35, 24
    s_sub_u32 s36, s34, s36
    s_mul_i32 s21, s35, 491520
    s_lshl_b32 s22, s36, 7
    s_add_u32 s21, s21, s22
    s_movk_i32 s29, 3072""")
    k.label("p0_ui_128")
    k.i(f"""v_lshrrev_b32 v120, 3, v1
    s_mul_i32 s22, s20, 40
    v_add_u32 v120, s22, v120
    v_and_b32 v121, 7, v1
    v_lshlrev_b32 v121, 4, v121
    v_and_b32 v122, 2, v120
    v_lshlrev_b32 v122, 5, v122
    v_mul_lo_u32 v120, v120, s29
    v_xad_u32 v120, v121, v122, v120
    s_mul_i32 s22, s20, 5120
    s_lshl_b32 s29, s29, 3""")
    for i in range(5):
        k.i(f"s_add_u32 m0, s22, {UL+1024*i}\nbuffer_load_dwordx4 v120, s[8:11], s21 offen {cold} lds\ns_add_u32 s21, s21, s29")
    k.i("s_branch p0_proc")
    k.label("p0_ui_w2")
    srd(8, PW2, 1966080)
    m, sh = magic(40, 320)
    k.i("""s_sub_u32 s34, s45, 136
    s_lshr_b32 s35, s34, 1
    s_and_b32 s36, s34, 1
    s_mul_i32 s21, s35, 40960
    s_mul_i32 s22, s36, 640
    s_add_u32 s21, s21, s22
    s_lshl_b32 s23, s20, 3
    s_mul_i32 s22, s20, 5120""")
    for i in range(5):
        k.i(f"""v_add_u32 v120, {64*i}, v1
        v_mul_u32_u24 v121, {m}, v120
        v_lshrrev_b32 v121, {sh}, v121
        v_mul_u32_u24 v122, 40, v121
        v_sub_u32 v122, v120, v122
        v_lshlrev_b32 v122, 4, v122
        v_add_u32 v121, s23, v121
        v_and_b32 v123, 2, v121
        v_lshlrev_b32 v123, 4, v123
        v_and_b32 v124, 16, v121
        v_lshl_or_b32 v123, v124, 2, v123
        v_mul_u32_u24 v121, 1280, v121
        v_xad_u32 v120, v122, v123, v121
        s_add_u32 m0, s22, {UL+1024*i}
        buffer_load_dwordx4 v120, s[8:11], s21 offen {cold} lds""")
    k.label("p0_proc")
    k.i("""v_bfe_u32 v28, v1, 2, 2
    v_and_b32 v29, 3, v1
    v_lshrrev_b32 v30, 4, v1
    s_cmp_ge_u32 s20, 2
    s_cbranch_scc1 p0_wq_proc""")
    k.i(f"""s_lshl_b32 s21, s26, 2
    s_lshr_b32 s22, s27, 2
    s_add_u32 s21, s21, s22
    s_mul_i32 s21, s21, 40960
    s_and_b32 s22, s27, 3
    s_lshl_b32 s22, s22, 7
    s_add_u32 s21, s21, s22
    s_add_u32 s21, s21, {XN}
    v_lshrrev_b32 v7, 1, v5
    v_lshlrev_b32 v7, 10, v7
    v_and_b32 v6, 1, v5
    v_lshlrev_b32 v6, 9, v6
    v_lshl_add_u32 v7, v4, 4, v7
    v_add_u32 v7, v7, v6
    s_mov_b32 s23, 0xffff0000
    s_waitcnt vmcnt(6)""")
    k.i("s_cmp_lt_u32 s45, 232\ns_cbranch_scc1 p0_ln_go\ns_waitcnt vmcnt(0)")
    k.label("p0_ln_go")
    for j in range(20):
        k.i(f"v_lshlrev_b32 v{F+2*j}, 16, v{X+j}\nv_and_b32 v{F+2*j+1}, s23, v{X+j}")
    k.i(f"v_pk_add_f32 v[112:113], v[{F}:{F+1}], v[{F+2}:{F+3}]")
    k.i(f"v_pk_add_f32 v[114:115], v[{F+4}:{F+5}], v[{F+6}:{F+7}]")
    for j in range(4, 20):
        a = 112 + 2 * (j & 1)
        k.i(f"v_pk_add_f32 v[{a}:{a+1}], v[{a}:{a+1}], v[{F+2*j}:{F+2*j+1}]")
    k.i("v_pk_add_f32 v[112:113], v[112:113], v[114:115]")
    k.i("v_add_f32 v112, v112, v113")
    def rowred(r):
        for s in (8, 4, 2, 1):
            k.i(f"v_add_f32_dpp v{r}, v{r}, v{r} row_ror:{s} row_mask:0xf bank_mask:0xf")
    rowred(112)
    k.i("v_mul_f32 v112, 0x3acccccd, v112")
    for j in range(20):
        k.i(f"v_pk_add_f32 v[{T+2*j}:{T+2*j+1}], v[{F+2*j}:{F+2*j+1}], v[112:113] op_sel_hi:[1,0] neg_lo:[0,1] neg_hi:[0,1]")
    k.i(f"v_pk_mul_f32 v[114:115], v[{T}:{T+1}], v[{T}:{T+1}]")
    k.i(f"v_pk_mul_f32 v[116:117], v[{T+2}:{T+3}], v[{T+2}:{T+3}]")
    for j in range(2, 20):
        a = 114 + 2 * (j & 1)
        k.i(f"v_pk_fma_f32 v[{a}:{a+1}], v[{T+2*j}:{T+2*j+1}], v[{T+2*j}:{T+2*j+1}], v[{a}:{a+1}]")
    k.i("v_pk_add_f32 v[114:115], v[114:115], v[116:117]")
    k.i("v_add_f32 v114, v114, v115")
    rowred(114)
    k.i("v_mul_f32 v114, 0x3acccccd, v114")
    bf16r(112, 112); bf16r(114, 114)
    k.i("v_add_f32 v114, 0x3727c5ac, v114")
    bf16r(114, 114)
    k.i("v_sqrt_f32 v114, v114")
    bf16r(114, 114)
    k.i("v_rcp_f32 v114, v114")
    for j in range(20):
        k.i(f"v_pk_add_f32 v[{T+2*j}:{T+2*j+1}], v[{F+2*j}:{F+2*j+1}], v[112:113] op_sel_hi:[1,0] neg_lo:[0,1] neg_hi:[0,1]")
    for j in range(20):
        k.i(f"v_cvt_pk_bf16_f32 v{X+j}, v{T+2*j}, v{T+2*j+1}")
    for j in range(20):
        k.i(f"v_lshlrev_b32 v{F+2*j}, 16, v{X+j}\nv_and_b32 v{F+2*j+1}, s23, v{X+j}")
    for j in range(20):
        k.i(f"v_pk_mul_f32 v[{F+2*j}:{F+2*j+1}], v[{F+2*j}:{F+2*j+1}], v[114:115] op_sel_hi:[1,0]")
    for i in range(5):
        for j in range(4*i, 4*i+4):
            k.i(f"v_cvt_pk_bf16_f32 v{X+j}, v{F+2*j}, v{F+2*j+1}")
        k.i(f"buffer_store_dwordx4 v[{X+4*i}:{X+4*i+3}], v7, s[16:19], s21 offen {HO}")
        if i < 4: k.i("s_add_u32 s21, s21, 8192")
    k.i("s_branch p0_drain")
    k.label("p0_wq_proc")
    k.i(f"""v_lshrrev_b32 v4, 1, v30
    v_lshl_add_u32 v4, v4, 3, v28
    v_mul_u32_u24 v4, 320, v4
    v_and_b32 v5, 1, v30
    v_lshlrev_b32 v5, 5, v5
    v_lshl_add_u32 v5, v29, 3, v5
    v_add_u32 v4, v4, v5
    s_add_u32 s21, s28, s32
    v_add_u32 v4, s21, v4
    s_mul_i32 s21, s27, 163840
    s_lshl_b32 s22, s30, 12
    s_add_u32 s21, s21, s22
    s_add_u32 s21, s21, {WQ}
    s_mul_i32 s22, s27, 5040
    s_add_u32 s22, s22, {KVA}
    s_mul_i32 s23, s26, 320
    v_add_u32 v5, s23, v3
    v_mov_b32 v8, 0
    v_mov_b32 v9, 0
    v_mov_b32 v10, 0
    v_mov_b32 v11, 0
    v_cmp_gt_u32 vcc, 5040, v5
    s_and_b32 s24, vcc_lo, 0xfffff
    s_cmp_lt_u32 s27, 11
    s_cselect_b32 s24, s24, 0
    s_cmp_eq_u32 s20, 3
    s_cselect_b32 s24, s24, 0
    s_cmp_eq_u32 s24, 0
    s_cbranch_scc1 p0_nozero
    s_mov_b32 s25, 0
    s_mov_b64 exec, s[24:25]
    buffer_store_dwordx4 v[8:11], v5, s[16:19], s22 offen {HO}
    s_mov_b64 exec, -1""")
    k.label("p0_nozero")
    k.i("s_waitcnt vmcnt(0)")
    def wq_one(base, tagp):
        for nt in range(4):
            r = 32 + 4*nt + base
            o = (nt >> 1)*160 + (nt & 1)*64
            k.lg(f"ds_read_b64_tr_b16 v[{r}:{r+1}], v4 offset:{o}")
            k.lg(f"ds_read_b64_tr_b16 v[{r+2}:{r+3}], v4 offset:{o+1280}", f"{tagp}{nt}")
        for nt in range(4):
            r = 32 + 4*nt + base
            k.wait(lg=f"{tagp}{nt}")
            k.i(f"buffer_store_dwordx4 v[{r}:{r+3}], v3, s[16:19], s21 offen offset:{1024*nt} {HO}")
    wq_one(0, "wa")
    k.i(f"s_cmp_eq_u32 s33, 0\ns_cbranch_scc1 p0_drain\nv_add_u32 v4, 10240, v4\ns_add_u32 s21, s21, {32*4096}")
    wq_one(16, "wb")
    k.label("p0_drain")
    stamp(1)
    k.i("s_waitcnt vmcnt(0) lgkmcnt(0)\ns_add_u32 s44, s44, 1\ns_barrier")
    k.reset_counts()
    stamp(2)
    signal(3, f"""s_lshl_b32 s42, s26, 7
    s_lshl_b32 s43, s27, 2
    s_add_u32 s42, s42, s43
    s_lshl_b32 s43, s27, 7
    s_lshl_b32 s41, s26, 2
    s_add_u32 s43, s43, s41
    s_add_u32 s43, s43, {FW-FX}
    v_mov_b32 v5, s43
    v_mov_b32 v6, s42
    v_cmp_eq_u32 vcc, 0, v1
    v_cndmask_b32 v5, v5, v6, vcc""", 5, f"s_mov_b32 s42, {FX}", 42, 4)
    D0 = 32
    k.i("""s_cmp_ge_u32 s45, 232
    s_cbranch_scc1 p0_end
    s_cmp_ge_u32 s45, 136
    s_cbranch_scc1 p0_up_w2
    s_and_b32 s22, s20, 1
    s_lshr_b32 s23, s20, 1
    s_lshl_b32 s37, s36, 1
    s_add_u32 s37, s37, s22
    s_cmp_ge_u32 s45, 40
    s_cbranch_scc1 p0_up_w1""")
    k.i(f"""v_and_b32 v4, 1, v30
    v_lshrrev_b32 v5, 1, v29
    v_lshl_add_u32 v4, v4, 1, v5
    v_add_u32 v4, s35, v4
    v_and_b32 v4, 3, v4
    v_lshlrev_b32 v4, 4, v4
    v_and_b32 v5, 1, v29
    v_lshl_add_u32 v4, v5, 3, v4
    s_lshl_b32 s24, s22, 6
    v_add_u32 v4, s24, v4
    v_and_b32 v5, 2, v28
    v_lshlrev_b32 v5, 5, v5
    v_xor_b32 v4, v4, v5
    v_lshl_add_u32 v4, v28, 7, v4
    s_mul_i32 s24, s23, 10240
    s_add_u32 s24, s24, {UL}
    v_add_u32 v4, s24, v4
    v_lshrrev_b32 v6, 5, v1
    v_lshlrev_b32 v6, 4, v6
    s_mul_i32 s24, s37, 205
    s_lshr_b32 s24, s24, 10
    s_mul_i32 s25, s24, 5
    s_sub_u32 s25, s37, s25
    s_lshl_b32 s24, s24, 2
    s_add_u32 s24, s24, s35
    s_mul_i32 s24, s24, 10
    s_mul_i32 s28, s23, 5
    s_add_u32 s24, s24, s28
    s_mul_i32 s24, s24, 5
    s_add_u32 s24, s24, s25
    s_lshl_b32 s24, s24, 10
    s_add_u32 s24, s24, {WO}""")
    for uu in range(5):
        for h2 in range(2):
            m_ = 2*uu + h2
            K = 0
            for hi in range(2): K |= ((40*(m_//5) + ROWOFF[hi][m_ % 5]) * 128) << (16*hi)
            r = D0 + 4*uu + 2*h2
            k.i(f"s_mov_b32 s25, {K:#x}\nv_bfe_u32 v7, s25, v6, 16\nv_add_u32 v7, v7, v4")
            k.lg(f"ds_read_b64_tr_b16 v[{r}:{r+1}], v7", f"uo{uu}")
    for uu in range(5):
        r = D0 + 4*uu
        k.wait(lg=f"uo{uu}")
        k.i(f"buffer_store_dwordx4 v[{r}:{r+3}], v3, s[16:19], s24 offen {HO}\ns_add_u32 s24, s24, 5120")
    k.i("s_branch p0_end")
    k.reset_counts()
    k.label("p0_up_w1")
    k.i(f"""v_lshrrev_b32 v4, 1, v30
    v_lshl_add_u32 v4, v4, 3, v28
    v_and_b32 v5, 1, v30
    v_lshlrev_b32 v5, 5, v5
    v_lshl_add_u32 v5, v29, 3, v5
    s_lshl_b32 s24, s22, 6
    v_add_u32 v5, s24, v5
    v_and_b32 v6, 2, v28
    v_lshlrev_b32 v6, 5, v6
    v_lshlrev_b32 v4, 7, v4
    v_xad_u32 v4, v5, v6, v4
    s_mul_i32 s24, s23, 10240
    s_add_u32 s24, s24, {UL}
    v_add_u32 v4, s24, v4
    v_mov_b32 v8, 0
    s_mov_b32 s28, 0x3f803f80
    s_mul_i32 s24, s37, 171
    s_lshr_b32 s24, s24, 9
    s_mul_i32 s25, s24, 3
    s_sub_u32 s25, s37, s25
    s_mul_i32 s24, s24, 40
    s_mul_i32 s29, s35, 10
    s_add_u32 s24, s24, s29
    s_mul_i32 s29, s23, 5
    s_add_u32 s24, s24, s29
    s_mul_i32 s24, s24, 3
    s_add_u32 s24, s24, s25
    s_lshl_b32 s24, s24, 10
    s_add_u32 s24, s24, {W1}""")
    for ks in range(5):
        r = D0 + 4*ks
        k.lg(f"ds_read_b64_tr_b16 v[{r}:{r+1}], v4 offset:{ks*2048}")
        k.lg(f"ds_read_b64_tr_b16 v[{r+2}:{r+3}], v4 offset:{ks*2048+512}", f"u1{ks}")
    for ks in range(5):
        r = D0 + 4*ks
        k.wait(lg=f"u1{ks}")
        k.i(f"buffer_store_dwordx4 v[{r}:{r+3}], v3, s[16:19], s24 offen {HO}\ns_add_u32 s24, s24, 3072")
        for j in range(4): k.i(f"v_dot2_f32_bf16 v8, v{r+j}, s28, v8")
    k.i(f"""s_nop 2
    v_mov_b32 v9, v8
    s_lshl_b32 s24, s35, 1
    s_add_u32 s24, s24, s23
    v_permlane32_swap_b32 v8, v9
    s_mul_i32 s24, s24, 6144
    s_lshl_b32 s25, s37, 7
    s_add_u32 s24, s24, s25
    s_add_u32 s24, s24, {CS}
    v_add_f32 v8, v8, v9
    v_lshlrev_b32 v9, 2, v1
    s_mov_b64 exec, 0xffffffff
    buffer_store_dword v8, v9, s[16:19], s24 offen {HO}
    s_mov_b64 exec, -1
    s_branch p0_end""")
    k.reset_counts()
    k.label("p0_up_w2")
    k.i(f"""v_and_b32 v4, 1, v30
    v_lshlrev_b32 v4, 4, v4
    v_lshrrev_b32 v5, 1, v30
    v_lshl_add_u32 v4, v5, 2, v4
    v_add_u32 v4, v4, v28
    v_and_b32 v6, 2, v4
    v_lshlrev_b32 v6, 4, v6
    v_and_b32 v7, 16, v4
    v_lshl_or_b32 v6, v7, 2, v6
    v_mul_u32_u24 v4, 640, v4
    v_add_u32 v4, {UL}, v4
    s_mul_i32 s24, s20, 160
    v_lshl_add_u32 v5, v29, 3, s24
    s_lshl_b32 s24, s36, 2
    s_add_u32 s24, s24, s20
    s_mul_i32 s24, s24, 48
    s_add_u32 s24, s24, s35
    s_mul_i32 s24, s24, 5120
    s_add_u32 s24, s24, {W2}""")
    for m_ in range(5):
        r = D0 + 4*m_
        k.i(f"v_add_u32 v7, {32*m_}, v5\nv_xad_u32 v7, v7, v6, v4")
        k.lg(f"ds_read_b64_tr_b16 v[{r}:{r+1}], v7")
        k.lg(f"ds_read_b64_tr_b16 v[{r+2}:{r+3}], v7 offset:{8*640}", f"u2{m_}")
    for m_ in range(5):
        r = D0 + 4*m_
        k.wait(lg=f"u2{m_}")
        k.i(f"buffer_store_dwordx4 v[{r}:{r+3}], v3, s[16:19], s24 offen {HO}\ns_add_u32 s24, s24, 1024")
    k.label("p0_end")
    k.reset_counts()
    stamp(3)

def phase1():
    k.i(f"""v_and_b32 v6, 15, v1
    v_lshlrev_b32 v6, 2, v6
    s_lshl_b32 s42, s26, 7
    s_lshl_b32 s43, s27, 7
    s_add_u32 s43, s43, {FW-FX}
    v_mov_b32 v7, s42
    v_mov_b32 v8, s43
    v_and_b32 v9, 16, v1
    v_cmp_eq_u32 vcc, 0, v9
    v_add_u32 v4, 0x10000, v3
    v_add_u32 v5, 0x20000, v3
    v_cndmask_b32 v7, v8, v7, vcc
    v_add_u32 v6, v6, v7
    s_mov_b32 s42, {FX}
    s_lshl_b32 s28, s26, 2
    s_add_u32 s28, s28, s20
    s_mul_i32 s21, s28, 40960
    s_add_u32 s21, s21, {XN}
    s_lshl_b32 s23, s20, 12
    s_mul_i32 s22, s27, 163840
    s_add_u32 s22, s22, s23
    s_add_u32 s22, s22, {WQ}
    s_mov_b32 s40, {LOG2E:#x}
    s_mov_b32 s41, {LOG2E:#x}
    s_mov_b32 s38, 0x358637bd
    s_mov_b32 s39, 0x358637bd""")
    poll(6, 42, 8)
    k.i("s_barrier")
    stamp(4)
    ACC = 64; WB = 128; T = 8; PK = 176; FB0 = 20
    PRE = int(OPT["pre1"])
    Q = []
    for s in range(10):
        for j in range(4):
            pre = f"s_add_u32 m0, s23, {s*16384}\n" if j == 0 else ""
            post = "\ns_add_u32 s22, s22, 16384" if j == 3 else ""
            Q.append((pre, f"buffer_load_dwordx4 v3, s[16:19], s22 offen offset:{1024*j} {HO} lds", post, f"W{s}"))
        for j in range(4):
            post = "\ns_add_u32 s21, s21, 4096" if j == 3 else ""
            Q.append(("", f"buffer_load_dwordx4 a[{16*s+4*j}:{16*s+4*j+3}], v3, s[16:19], s21 offen offset:{1024*j} {HO}", post, f"X{4*s+j}"))
    qi = [0]
    def issue(n=1):
        for _ in range(n):
            if qi[0] < len(Q):
                pre, ins, post, tag = Q[qi[0]]; qi[0] += 1
                k.i(pre); k.vm(ins, tag); k.i(post)
    def reads(ks, lo, hi):
        for j in range(lo, hi):
            o = (ks*4 + j) * 1024
            r = WB + (ks % 3)*16 + 4*j
            k.lg(f"ds_read_b128 v[{r}:{r+3}], v{3 + o//65536} offset:{o % 65536}", f"w{ks}")
    issue(8*PRE)
    k.i("s_cmp_ge_u32 s27, 11\ns_cbranch_scc1 p1_q")
    sv = snap(); q0 = qi[0]
    def loop(act_first):
        k.wait(vm="W0"); k.i("s_barrier")
        reads(0, 0, 4); reads(1, 0, 4)
        for ks in range(40):
            n2 = ks + 2
            if n2 < 40 and n2 % 4 == 0:
                k.wait(vm=f"W{n2//4}"); k.i("s_barrier")
                if n2 == 4:
                    signal(1, "v_mov_b32 v7, 0", 7, f"s_lshl_b32 s42, s45, 2\ns_add_u32 s42, s42, {F0B}", 42, 6)
            k.wait(vm=f"X{ks}", lg=f"w{ks}")
            for j in range(4):
                w = vr(WB + (ks % 3)*16 + 4*j, 4); x = ar(4*ks, 4); d = vr(ACC + 16*j, 16)
                c = "0" if ks == 0 else d
                k.i(f"v_mfma_f32_32x32x16_bf16 {d}, {x}, {w}, {c}" if act_first else f"v_mfma_f32_32x32x16_bf16 {d}, {w}, {x}, {c}")
                if j in (0, 2): issue()
                if n2 < 40 and j in (1, 3): reads(n2, j-1, j+1)
            if ks == 33:
                k.i(f"s_mov_b32 s42, {F0B}")
                k.vm(f"buffer_load_dwordx4 v[{FB0}:{FB0+3}], v3, s[16:19], s42 offen sc1", "f0b")
    XR = 24
    def p2_addr():
        k.i(f"""s_and_b32 s29, s27, 7
        s_lshr_b32 s30, s27, 3
        s_lshl_b32 s30, s30, 1
        s_and_b32 s31, s29, 1
        s_add_u32 s30, s30, s31
        s_lshr_b32 s29, s29, 1
        s_lshl_b32 s31, s26, 2
        s_add_u32 s29, s29, s31
        s_lshl_b32 s31, s30, 2
        s_add_u32 s31, s31, s20
        s_mul_i32 s31, s31, 51200
        s_add_u32 s31, s31, {WO}""")
    def f0b_check(lbl):
        k.wait(vm="f0b")
        check4(FB0)
        k.i(f"s_cbranch_vccz {lbl}")
        sv2 = snap()
        k.i(f"s_mov_b32 s42, {F0B}")
        poll(3, 42, FB0, wide=True)
        rest(sv2)
        k.label(lbl)
    wq = [0]
    def wo_issue(n=1):
        for _ in range(n):
            i = wq[0]
            if i < 50:
                k.vm(f"buffer_load_dwordx4 a[{4*i}:{4*i+3}], v3, s[16:19], s31 offen offset:{1024*(i%4)} {HO}", f"wo{i//5}")
                if i % 4 == 3: k.i("s_add_u32 s31, s31, 4096")
                wq[0] += 1
    NEARLY = int(OPT.get("wo_early", 8))
    loop(True)
    stamp(5)
    p2_addr(); f0b_check("p1_kv_ok")
    k.i("s_lshl_b32 s33, s20, 13\nv_add_u32 v6, s33, v3")
    for t in (2, 3):
        for p in range(8):
            k.i(f"v_cvt_pk_bf16_f32 v{PK+8*t+p}, v{ACC+16*t+2*p}, v{ACC+16*t+2*p+1}")
    k.i("s_mov_b32 s34, 0xf0000000\ns_mov_b32 s35, 0xf0000000\nv_mov_b32 v7, 0x3f803f80")
    for p in range(8):
        k.i(f"v_cndmask_b32 v{PK+24+p}, v{PK+24+p}, v7, s[34:35]")
    for t in (2, 3):
        for f in range(2):
            k.lg(f"ds_write_b128 v6, v[{PK+8*t+4*f}:{PK+8*t+4*f+3}] offset:{2048*t+1024*f}")
    for t in (0, 1):
        phi_pack(ACC + 16*t, PK + 8*t, 16, T, hook=(lambda: wo_issue(1) if wq[0] < NEARLY else None))
        for f in range(2):
            k.lg(f"ds_write_b128 v6, v[{PK+8*t+4*f}:{PK+8*t+4*f+3}] offset:{2048*t+1024*f}")
    k.i("""s_lshr_b32 s33, s20, 1
    s_and_b32 s34, s20, 1
    s_lshl_b32 s35, s33, 11
    v_add_u32 v8, s35, v3
    s_lshl_b32 s35, s34, 11
    s_add_u32 s35, s35, 4096
    v_add_u32 v9, s35, v3
    v_and_b32 v10, 31, v1
    s_lshl_b32 s35, s34, 5
    v_add_u32 v10, s35, v10
    v_mul_u32_u24 v11, 205, v10
    v_lshrrev_b32 v11, 12, v11
    v_mul_u32_u24 v12, 20, v11
    v_sub_u32 v12, v10, v12
    v_cmp_eq_u32 s[36:37], 60, v10
    v_mov_b32 v13, 20
    v_lshrrev_b32 v14, 5, v1
    v_cndmask_b32 v12, v12, v13, s[36:37]
    v_mul_u32_u24 v12, 80, v12
    v_lshlrev_b32 v14, 2, v14
    s_lshl_b32 s35, s33, 5
    v_add_u32 v14, s35, v14""")
    k.wait(lg="all"); k.i("s_barrier")
    FA = 64; FB = 96; DD = 128
    for w in range(4):
        for f in range(2):
            n = 2*w + f
            k.lg(f"ds_read_b128 v[{FA+4*n}:{FA+4*n+3}], v8 offset:{8192*w+1024*f}")
            k.lg(f"ds_read_b128 v[{FB+4*n}:{FB+4*n+3}], v9 offset:{8192*w+1024*f}", f"f{n}")
    MS = [4, 6, 8, 10]
    for j in range(4):
        ms = MS[j]
        k.i(f"""v_add_u32 v15, {8*j}, v14
        v_mul_u32_u24 v20, 205, v15
        v_lshrrev_b32 v20, 12, v20
        v_mul_u32_u24 v21, 20, v20
        v_sub_u32 v21, v15, v21
        v_cmp_eq_u32 s[{ms}:{ms+1}], v20, v11
        v_cmp_gt_u32 vcc, 3, v20
        v_mul_u32_u24 v20, 1680, v20
        v_lshl_add_u32 v21, v21, 2, v12
        v_add_u32 v{16+j}, v20, v21
        s_or_b64 s[{ms}:{ms+1}], s[{ms}:{ms+1}], s[36:37]
        s_and_b64 s[{ms}:{ms+1}], s[{ms}:{ms+1}], vcc""")
    for n in range(8):
        k.wait(lg=f"f{n}")
        k.i(f"v_mfma_f32_32x32x16_bf16 v[{DD}:{DD+15}], v[{FA+4*n}:{FA+4*n+3}], v[{FB+4*n}:{FB+4*n+3}], {'0' if n == 0 else vr(DD,16)}")
    k.i("v_lshlrev_b32 v22, 2, v0")
    for j in range(4):
        k.i(f"s_mov_b64 exec, s[{MS[j]}:{MS[j]+1}]")
        k.lg(f"ds_write_b128 v{16+j}, v[{DD+4*j}:{DD+4*j+3}] offset:32768")
    k.i(f"""s_mov_b64 exec, -1
    s_mul_i32 s33, s27, 5040
    s_add_u32 s33, s33, {KVA}
    s_add_u32 s8, s14, s33
    s_addc_u32 s9, s15, 0
    s_cmp_eq_u32 s27, 10
    s_movk_i32 s10, 5040
    s_cselect_b32 s10, 3360, s10
    s_mov_b32 s11, 0x20000""")
    k.wait(lg="all"); k.i("s_barrier")
    for i in range(5):
        k.lg(f"ds_read_b32 v{32+i}, v22 offset:{32768+1024*i}", f"d{i}")
    for i in range(5):
        k.wait(lg=f"d{i}")
        if i == 4: k.i("v_add_u32 v22, 4096, v22")
        k.vm(f"buffer_atomic_add_f32 v{32+i}, v22, s[8:11], 0 offen offset:{1024*(i%4)}", "out1")
    wo_issue(NEARLY + 4 - wq[0])
    k.wait(vm="out1")
    k.i("s_branch p1_fin")
    sv_end = snap(); wq_end = wq[0]
    k.label("p1_q")
    rest(sv); qi[0] = q0; wq[0] = 0
    loop(False)
    stamp(5)
    p2_addr(); f0b_check("p1_q_ok")
    k.i(f"""s_mul_i32 s33, s28, 40960
    s_sub_u32 s34, s27, 11
    s_lshl_b32 s34, s34, 13
    s_add_u32 s33, s33, s34
    s_add_u32 s33, s33, {PQ}""")
    for t in range(4):
        phi_pack(ACC + 16*t, PK + 8*t, 16, T, hook=(lambda: wo_issue(1) if wq[0] < NEARLY else None))
        for f in range(2):
            k.vm(f"buffer_store_dwordx4 v[{PK+8*t+4*f}:{PK+8*t+4*f+3}], v3, s[16:19], s33 offen offset:{(2048*t+1024*f) % 4096} {HO}", "out1")
        if t == 1: k.i("s_add_u32 s33, s33, 4096")
    wo_issue(NEARLY + 4 - wq[0])
    k.wait(vm="out1")
    assert wq[0] == wq_end
    k.label("p1_fin")
    stamp(6)
    k.i("s_barrier")
    signal(0xff, "v_lshlrev_b32 v7, 10, v1", 7, f"s_lshl_b32 s42, s45, 2\ns_add_u32 s42, s42, {F1}", 42, 6)
    wo_issue(50)
    srd(8, PX, 2621440)
    k.i(f"""v_and_b32 v10, 31, v1
    s_lshl_b32 s33, s29, 5
    v_add_u32 v10, s33, v10
    v_mul_u32_u24 v10, 1280, v10
    v_lshrrev_b32 v11, 5, v1
    v_lshl_add_u32 v10, v11, 3, v10
    s_mul_i32 s33, s30, 320
    s_lshl_b32 s34, s20, 4
    s_add_u32 s33, s33, s34""")
    for c in range(5):
        k.vm(f"buffer_load_dwordx2 v[{XR+2*c}:{XR+2*c+1}], v10, s[8:11], s33 offen offset:{64*c}")
    stamp(7)

def phase2():
    P2L = 102400; XR = 24
    k.i(f"""s_and_b32 s42, s2, 7
    s_lshl_b32 s42, s42, 10
    s_add_u32 s42, s42, {F1}
    s_mul_i32 s21, s20, 13440
    s_add_u32 s21, s21, {KVA}
    s_mul_i32 s23, s20, 15360
    s_add_u32 s23, s23, {P2L+64}
    s_mul_i32 s22, s29, 40960
    s_mul_i32 s33, s20, 10240
    s_add_u32 s22, s22, s33
    s_add_u32 s22, s22, {PQ}
    v_bfe_u32 v8, v1, 2, 3
    v_lshlrev_b32 v8, 2, v8
    v_and_b32 v9, 3, v1
    s_mov_b32 s33, 0x55524130
    s_mov_b32 s34, 0x55453120
    v_bfe_u32 v10, s33, v8, 4
    v_bfe_u32 v11, s34, v8, 4
    v_lshl_add_u32 v10, v10, 2, v9
    v_lshl_add_u32 v11, v11, 2, v9
    v_min_u32 v10, 20, v10
    v_min_u32 v11, 20, v11
    v_lshrrev_b32 v12, 5, v1
    v_lshlrev_b32 v12, 4, v12
    s_sub_u32 s33, s23, 16
    v_add_u32 v12, s33, v12
    v_mul_u32_u24 v10, 80, v10
    v_mul_u32_u24 v11, 80, v11
    v_add_u32 v10, v10, v12
    v_add_u32 v11, v11, v12
    s_mov_b32 s36, 0
    s_mov_b32 s37, -1
    s_mul_i32 s24, s20, 3072
    s_mul_i32 s25, s27, 122880
    s_add_u32 s25, s25, s24
    s_add_u32 s25, s25, {W1}""")
    poll(3, 42, 16, wide=True)
    stamp(8)
    for i in range(14):
        if i % 4 == 0: k.i(f"s_add_u32 m0, s23, {1024*i}")
        k.vm(f"buffer_load_dwordx4 v3, s[16:19], s21 offen offset:{1024*(i%4)} {HO} lds", "kv")
        if i % 4 == 3: k.i("s_add_u32 s21, s21, 4096")
    PQA = 200
    for kl in range(10):
        k.vm(f"buffer_load_dwordx4 a[{PQA+4*kl}:{PQA+4*kl+3}], v3, s[16:19], s22 offen offset:{1024*(kl%4)} {HO}", f"pq{kl}")
        if kl % 4 == 3: k.i("s_add_u32 s22, s22, 4096")
    w1q = [0]
    def w1_issue(n=1, lim=24):
        for _ in range(n):
            i = w1q[0]
            if i < lim:
                s, j = divmod(i, 3)
                if j == 0: k.i(f"s_add_u32 m0, s24, {s*12288}")
                k.vm(f"buffer_load_dwordx4 v3, s[16:19], s25 offen offset:{1024*j} {HO} lds", "w1")
                if j == 2: k.i("s_add_u32 s25, s25, 12288")
                w1q[0] += 1
    AF = 36; TT = 100; DT = 100; OG = 196; ACC = 36
    k.wait(vm="kv")
    jobs = []
    for hl in range(8):
        for u in range(2):
            for h2 in range(2):
                dg0 = -(hl % 4) + 4*u + 2*h2
                v0_ = 0 <= dg0 <= 4; v1_ = 0 <= dg0+1 <= 4
                d = AF + (2*hl+u)*4 + 2*h2
                jobs.append((d, None) if not (v0_ or v1_) else (d, hl*1680 + 16*(dg0+1), v0_, v1_, hl))
    n = 0
    for jb in jobs:
        if jb[1] is None: continue
        k.lg(f"ds_read_b128 v[{TT+4*n}:{TT+4*n+3}], v{10 + (jb[4] & 1)} offset:{jb[1]}", f"a{n}")
        n += 1
    for jb in jobs:
        if jb[1] is None: k.i(f"v_mov_b32 v{jb[0]}, 0\nv_mov_b32 v{jb[0]+1}, 0")
    n = 0
    for jb in jobs:
        d = jb[0]
        if jb[1] is None: continue
        k.wait(lg=f"a{n}")
        t = TT + 4*n
        k.i(f"v_cvt_pk_bf16_f32 v{d}, v{t}, v{t+1}\nv_cvt_pk_bf16_f32 v{d+1}, v{t+2}, v{t+3}")
        if not jb[3]: k.i(f"v_cndmask_b32 v{d}, v{d}, 0, s[36:37]\nv_cndmask_b32 v{d+1}, v{d+1}, 0, s[36:37]")
        if not jb[2]: k.i(f"v_cndmask_b32 v{d}, 0, v{d}, s[36:37]\nv_cndmask_b32 v{d+1}, 0, v{d+1}, s[36:37]")
        n += 1
    stamp(9)
    def omm(hl):
        t0 = hl + hl//4
        k.wait(vm=f"pq{t0+1}")
        d = vr(DT + 16*(hl % 4), 16)
        for u in range(2):
            k.i(f"v_mfma_f32_32x32x16_bf16 {d}, {vr(AF+(2*hl+u)*4, 4)}, {ar(PQA+4*(t0+u), 4)}, {'0' if u == 0 else d}")
    def opost(hl):
        p = hl // 2; odd = hl & 1
        D = DT + 16*(hl % 4); rc = 16 + 2*odd
        a, b = (D+8, D+12) if odd else (D+12, D+8)
        k.i(f"v_cndmask_b32 v{rc}, v{a}, v{b}, s[36:37]\nv_add_f32 v{rc}, s38, v{rc}\nv_rcp_f32 v{rc}, v{rc}")
        for h in range(6):
            k.i(f"v_pk_mul_f32 v[{D+2*h}:{D+2*h+1}], v[{D+2*h}:{D+2*h+1}], v[{rc}:{rc+1}] op_sel_hi:[1,0]")
        for j in range(2):
            g = OG + 2*(5*p + 2*odd + j)
            k.i(f"v_cvt_pk_bf16_f32 v{g}, v{D+4*j}, v{D+4*j+1}\nv_cvt_pk_bf16_f32 v{g+1}, v{D+4*j+2}, v{D+4*j+3}")
        g = OG + 2*(5*p + 4)
        if not odd:
            k.i(f"v_cvt_pk_bf16_f32 v{g}, v{D+8}, v{D+9}\nv_cvt_pk_bf16_f32 v{g+1}, v{D+10}, v{D+11}")
        else:
            k.i(f"v_cvt_pk_bf16_f32 v{D}, v{D+8}, v{D+9}\nv_cvt_pk_bf16_f32 v{D+1}, v{D+10}, v{D+11}")
            k.i(f"v_cndmask_b32 v{g}, v{g}, v{D}, s[36:37]\nv_cndmask_b32 v{g+1}, v{g+1}, v{D+1}, s[36:37]")
    omm(0); omm(1)
    for hl in range(8):
        if hl + 2 < 8: omm(hl + 2)
        opost(hl)
    stamp(10)
    for u in range(10):
        for c in range(5):
            d = vr(ACC + 16*c, 16)
            k.i(f"v_mfma_f32_32x32x16_bf16 {d}, {ar(4*(5*u+c), 4)}, {vr(OG+4*u, 4)}, {'0' if u == 0 else d}")
            if c in (0, 2, 4) : w1_issue()
    w1_issue(24)
    stamp(11)
    k.i(f"s_sub_u32 s33, s23, 64\nv_add_u32 v13, s33, v3")
    for j in range(1, 4):
        k.i(f"s_sub_u32 s33, s20, {j}\ns_and_b32 s33, s33, 3\ns_mul_i32 s33, s33, 15360\ns_add_u32 s33, s33, {P2L + (j-1)*5120}\nv_add_u32 v{13+j}, s33, v3")
    for j in range(1, 4):
        for c in range(5):
            r = ACC + 16*c + 4*j
            k.lg(f"ds_write_b128 v13, v[{r}:{r+3}] offset:{(j-1)*5120 + 1024*c}")
    k.wait(lg="all"); k.i("s_barrier")
    RR = 120
    for j in range(1, 4):
        for c in range(5):
            r = RR + 20*(j-1) + 4*c
            k.lg(f"ds_read_b128 v[{r}:{r+3}], v{13+j} offset:{1024*c}", f"r{j}_{c}")
    XF = 184
    k.i("s_mov_b32 s33, 0xffff0000")
    for j in range(10):
        k.i(f"v_lshlrev_b32 v{XF+2*j}, 16, v{XR+j}\nv_and_b32 v{XF+2*j+1}, s33, v{XR+j}")
    for c in range(5):
        for h in range(2):
            d = XF + 4*c + 2*h; a = ACC + 16*c + 2*h
            k.i(f"v_pk_add_f32 v[{d}:{d+1}], v[{d}:{d+1}], v[{a}:{a+1}]")
    k.i(f"""s_mul_i32 s34, s29, 40
    s_mul_i32 s35, s30, 10
    s_add_u32 s34, s34, s35
    s_lshr_b32 s35, s20, 1
    s_add_u32 s34, s34, s35
    s_lshl_b32 s34, s34, 10
    s_and_b32 s35, s20, 1
    s_lshl_b32 s35, s35, 9
    s_add_u32 s34, s34, s35
    s_add_u32 s34, s34, {HH}
    v_and_b32 v8, 31, v1
    v_lshrrev_b32 v9, 5, v1
    v_lshlrev_b32 v12, 3, v8
    v_lshlrev_b32 v8, 4, v8
    v_lshl_add_u32 v8, v9, 3, v8""")
    for j in range(1, 4):
        for c in range(5):
            k.wait(lg=f"r{j}_{c}")
            for h in range(2):
                d = XF + 4*c + 2*h; a = RR + 20*(j-1) + 4*c + 2*h
                k.i(f"v_pk_add_f32 v[{d}:{d+1}], v[{d}:{d+1}], v[{a}:{a+1}]")
    k.i("s_barrier")
    HP = 24
    for c in range(5):
        k.i(f"v_cvt_pk_bf16_f32 v{HP+2*c}, v{XF+4*c}, v{XF+4*c+1}\nv_cvt_pk_bf16_f32 v{HP+2*c+1}, v{XF+4*c+2}, v{XF+4*c+3}")
        k.vm(f"buffer_store_dwordx2 v[{HP+2*c}:{HP+2*c+1}], v8, s[16:19], s34 offen offset:{2048*(c%2)} {HO}")
        if c % 2 == 1: k.i("s_add_u32 s34, s34, 4096")
    for j in range(10):
        k.i(f"v_lshlrev_b32 v{XF+2*j}, 16, v{HP+j}\nv_and_b32 v{XF+2*j+1}, s33, v{HP+j}")
    k.i(f"v_pk_add_f32 v[16:17], v[{XF}:{XF+1}], v[{XF+2}:{XF+3}]")
    k.i(f"v_pk_mul_f32 v[18:19], v[{XF}:{XF+1}], v[{XF}:{XF+1}]")
    k.i(f"v_pk_fma_f32 v[18:19], v[{XF+2}:{XF+3}], v[{XF+2}:{XF+3}], v[18:19]")
    for j in range(2, 10):
        k.i(f"v_pk_add_f32 v[16:17], v[16:17], v[{XF+2*j}:{XF+2*j+1}]")
        k.i(f"v_pk_fma_f32 v[18:19], v[{XF+2*j}:{XF+2*j+1}], v[{XF+2*j}:{XF+2*j+1}], v[18:19]")
    k.i(f"""v_add_f32 v16, v16, v17
    v_add_f32 v17, v18, v19
    v_mov_b32 v18, v16
    v_mov_b32 v19, v17
    s_lshl_b32 s34, s29, 4
    s_lshl_b32 s35, s30, 2
    s_add_u32 s34, s34, s35
    s_add_u32 s34, s34, s20
    v_permlane32_swap_b32 v16, v18
    v_permlane32_swap_b32 v17, v19
    s_lshl_b32 s34, s34, 8
    s_add_u32 s34, s34, {ST}
    v_pk_add_f32 v[16:17], v[16:17], v[18:19]
    s_mov_b64 exec, 0xffffffff""")
    k.vm(f"buffer_store_dwordx2 v[16:17], v12, s[16:19], s34 offen {HO}", "out2")
    k.i("s_mov_b64 exec, -1")
    w1_issue(6, lim=30)
    k.wait(vm="out2")
    stamp(12)
    k.i("s_barrier")
    sig_row(F2, 6)

W2Q = [0]
def w2_issue(n):
    for _ in range(n):
        i = W2Q[0]
        if i < 60:
            k.vm(f"buffer_load_dwordx4 a[{4*i}:{4*i+3}], v3, s[16:19], s31 offen offset:{1024*(i%4)} {HO}", "w2")
            if i % 4 == 3: k.i("s_add_u32 s31, s31, 4096")
            W2Q[0] += 1

def phase3():
    TB = 122880
    k.i(f"""s_and_b32 s29, s27, 7
    s_lshr_b32 s30, s27, 3
    s_lshl_b32 s30, s30, 2
    s_and_b32 s31, s29, 3
    s_add_u32 s30, s30, s31
    s_lshr_b32 s29, s29, 2
    s_lshl_b32 s31, s26, 1
    s_add_u32 s29, s29, s31
    s_lshl_b32 s31, s30, 2
    s_add_u32 s31, s31, s20
    s_mul_i32 s31, s31, 61440
    s_add_u32 s31, s31, {W2}
    v_lshlrev_b32 v16, 2, v0
    v_lshlrev_b32 v17, 1, v0
    s_mul_i32 s33, s27, 384
    s_add_u32 s33, s33, {CS}
    s_mul_i32 s34, s27, 192""")
    srd(8, PB1, 3072)
    for j in range(8):
        k.vm(f"buffer_load_dword v{20+j}, v16, s[16:19], s33 offen {HO}")
        k.i("s_add_u32 s33, s33, 6144")
    k.vm("buffer_load_ushort v28, v17, s[8:11], s34 offen", "tab")
    N2 = int(OPT.get("w2_win2", 36))
    w2_issue(8)
    k.wait(vm="tab")
    for j in range(1, 8): k.i(f"v_add_f32 v20, v20, v{20+j}")
    k.i(f"v_lshlrev_b32 v28, 16, v28\nv_add_u32 v16, {TB}, v16")
    k.lg("ds_write_b32 v16, v20")
    k.lg("ds_write_b32 v16, v28 offset:1024")
    w2_issue(N2 - 8)
    k.i(f"""s_mul_i32 s21, s28, 40960
    s_add_u32 s21, s21, {HH}
    v_and_b32 v6, 15, v1
    v_lshlrev_b32 v6, 2, v6
    s_lshl_b32 s42, s26, 7
    s_add_u32 s42, s42, {F2}
    v_and_b32 v8, 31, v1
    v_lshrrev_b32 v7, 5, v1
    v_lshlrev_b32 v8, 3, v8
    v_lshl_add_u32 v8, v7, 8, v8
    s_lshl_b32 s33, s28, 12
    s_add_u32 s33, s33, {ST}
    v_lshlrev_b32 v14, 4, v7
    v_add_u32 v14, {TB}, v14
    v_bfe_u32 v15, v1, 4, 1
    v_mul_u32_u24 v15, 49152, v15
    v_and_b32 v16, 15, v1
    v_lshl_add_u32 v15, v16, 4, v15
    v_lshl_add_u32 v15, v7, 9, v15
    s_mul_i32 s34, s28, 98304
    s_mul_i32 s35, s27, 3072
    s_add_u32 s34, s34, s35
    s_add_u32 s34, s34, {H1}""")
    k.wait(lg="all")
    poll(6, 42, 9)
    k.i("s_barrier")
    stamp(13)
    ACC = 40; WB = 88; HR = 124; NR = int(OPT["pre3"]); SR = 20
    hq = [0]
    def h_issue(n=1):
        for _ in range(n):
            i = hq[0]
            if i < 40:
                r = HR + 4*(i % NR)
                k.vm(f"buffer_load_dwordx4 v[{r}:{r+3}], v3, s[16:19], s21 offen offset:{1024*(i%4)} {HO}", f"h{i}")
                if i % 4 == 3: k.i("s_add_u32 s21, s21, 4096")
                hq[0] += 1
    def reads(ks):
        for j in range(3):
            o = (ks*3 + j) * 1024
            r = WB + (ks % 3)*12 + 4*j
            k.lg(f"ds_read_b128 v[{r}:{r+3}], v{3 + o//65536} offset:{o % 65536}", f"w{ks}")
    h_issue(4)
    for j in range(8):
        k.vm(f"buffer_load_dwordx2 v[{SR+2*j}:{SR+2*j+1}], v8, s[16:19], s33 offen offset:{512*j} {HO}", "stats")
    h_issue(NR - 5)
    reads(0); reads(1)
    for ks in range(40):
        k.wait(vm=f"h{ks}", lg=f"w{ks}")
        for j in range(3):
            d = vr(ACC + 16*j, 16)
            k.i(f"v_mfma_f32_32x32x16_bf16 {d}, {vr(WB + (ks % 3)*12 + 4*j, 4)}, {vr(HR + 4*(ks % NR), 4)}, {'0' if ks == 0 else d}")
            if j == 0: h_issue()
            if j == 1 and ks + 2 < 40: reads(ks + 2)
        if ks == 6:
            for j in range(1, 8): k.i(f"v_pk_add_f32 v[{SR}:{SR+1}], v[{SR}:{SR+1}], v[{SR+2*j}:{SR+2*j+1}]")
        if ks == 7:
            k.i(f"""v_mov_b32 v10, v{SR}
            v_mov_b32 v11, v{SR+1}
            s_nop 0
            v_permlane32_swap_b32 v{SR}, v10
            v_permlane32_swap_b32 v{SR+1}, v11
            v_pk_add_f32 v[8:9], v[{SR}:{SR+1}], v[10:11]
            v_mul_f32 v8, 0x3acccccd, v8
            v_mul_f32 v9, 0x3acccccd, v9""")
        if ks == 8:
            k.i("v_fma_f32 v9, -v8, v8, v9\nv_max_f32 v9, 0, v9")
            bf16r(8, 8); bf16r(9, 9)
            k.i("v_add_f32 v9, 0x3727c5ac, v9")
        if ks == 9:
            bf16r(9, 9)
            k.i("v_sqrt_f32 v9, v9")
            bf16r(9, 9)
            k.i("v_rcp_f32 v10, v9\nv_mul_f32 v12, v8, v10\nv_sub_f32 v12, 0, v12")
    stamp(14)
    CT = 88; BT = 136; PK = 184
    for n in range(12):
        nt, j = divmod(n, 4)
        k.lg(f"ds_read_b128 v[{CT+4*n}:{CT+4*n+3}], v14 offset:{128*nt+32*j}")
        k.lg(f"ds_read_b128 v[{BT+4*n}:{BT+4*n+3}], v14 offset:{1024+128*nt+32*j}", f"t{n}")
    for n in range(12):
        nt, j = divmod(n, 4)
        k.wait(lg=f"t{n}")
        a = ACC + 4*n; c = CT + 4*n; b = BT + 4*n
        for h in range(2):
            k.i(f"v_pk_fma_f32 v[{b+2*h}:{b+2*h+1}], v[{c+2*h}:{c+2*h+1}], v[12:13], v[{b+2*h}:{b+2*h+1}] op_sel_hi:[1,0,1]")
        for h in range(2):
            k.i(f"v_pk_fma_f32 v[{a+2*h}:{a+2*h+1}], v[{a+2*h}:{a+2*h+1}], v[10:11], v[{b+2*h}:{b+2*h+1}] op_sel_hi:[1,0,1]")
        for h in range(4): k.i(f"v_max_f32 v{a+h}, 0, v{a+h}")
        for h in range(2):
            k.i(f"v_pk_mul_f32 v[{a+2*h}:{a+2*h+1}], v[{a+2*h}:{a+2*h+1}], v[{a+2*h}:{a+2*h+1}]")
        for h in range(2):
            k.i(f"v_cvt_pk_bf16_f32 v{PK+2*n+h}, v{a+2*h}, v{a+2*h+1}")
        if j % 2 == 1:
            e = j // 2
            k.vm(f"buffer_store_dwordx4 v[{PK+8*nt+4*e}:{PK+8*nt+4*e+3}], v15, s[16:19], s34 offen offset:{1024*nt+256*e} {HO}", "out3")
    w2_issue(4)
    k.wait(vm="out3")
    stamp(15)
    k.i("s_barrier")
    sig_row(F3, 6)

def phase4():
    w2_issue(60)
    HR = 20; BR = 30; ACC = 40; RING = 120; NB = int(OPT["nb4"])
    srd(8, PB2, 1280)
    k.i(f"""v_and_b32 v4, 15, v1
    v_lshrrev_b32 v5, 4, v1
    s_lshl_b32 s33, s29, 1
    s_lshr_b32 s35, s20, 1
    s_add_u32 s33, s33, s35
    s_mul_i32 s33, s33, 40
    s_mul_i32 s35, s30, 5
    s_add_u32 s33, s33, s35
    s_lshl_b32 s33, s33, 10
    s_add_u32 s33, s33, {HH}
    s_and_b32 s35, s20, 1
    s_lshl_b32 s35, s35, 8
    s_add_u32 s33, s33, s35
    v_lshrrev_b32 v8, 1, v5
    v_lshlrev_b32 v8, 9, v8
    v_lshl_add_u32 v8, v4, 4, v8
    v_and_b32 v9, 1, v5
    v_lshl_add_u32 v8, v9, 3, v8
    v_add_u32 v9, 4096, v8
    v_lshlrev_b32 v17, 3, v5
    s_mul_i32 s34, s30, 160""")
    for c in range(5):
        k.vm(f"buffer_load_dwordx2 v[{HR+2*c}:{HR+2*c+1}], v{8 if c < 4 else 9}, s[16:19], s33 offen offset:{1024*(c%4)} {HO}")
    for c in range(5):
        k.vm(f"buffer_load_dwordx2 v[{BR+2*c}:{BR+2*c+1}], v17, s[8:11], s34 offen offset:{32*c}")
    k.i(f"""s_mul_i32 s21, s29, 196608
    s_mul_i32 s22, s20, 12288
    s_add_u32 s21, s21, s22
    s_add_u32 s21, s21, {H1}
    s_lshl_b32 s35, s29, 6
    s_lshl_b32 s33, s20, 4
    s_add_u32 s35, s35, s33
    v_add_u32 v6, s35, v4
    v_mul_u32_u24 v7, 1280, v6
    v_lshl_add_u32 v7, v5, 3, v7
    v_lshlrev_b32 v6, 2, v4
    s_lshl_b32 s42, s26, 7
    s_add_u32 s42, s42, {F3}
    s_mul_i32 s33, s20, 15360
    v_add_u32 v13, s33, v3""")
    for j in range(4):
        k.i(f"s_add_u32 s33, s20, {j}\ns_and_b32 s33, s33, 3\ns_mul_i32 s33, s33, 49152\nv_add_u32 v{8+j}, s33, v3")
    for j in range(1, 4):
        k.i(f"s_sub_u32 s33, s20, {j}\ns_and_b32 s33, s33, 3\ns_mul_i32 s33, s33, 15360\ns_add_u32 s33, s33, {(j-1)*5120}\nv_add_u32 v{13+j}, s33, v3")
    srd(8, POUT, 2621440)
    poll(6, 42, 12)
    stamp(16)
    tq = [0]
    def issue(n=1):
        for _ in range(n):
            i = tq[0]
            if i < 48:
                t, j = divmod(i, 4)
                r = RING + 16*(t % NB) + 4*j
                k.vm(f"buffer_load_dwordx4 v[{r}:{r+3}], v{8+j}, s[16:19], s21 offen offset:{1024*(t%4)} {HO}", f"s{t}_{j}")
                if i % 16 == 15: k.i("s_add_u32 s21, s21, 4096")
                tq[0] += 1
    issue(4*(NB-1))
    XF = 216
    k.i("s_mov_b32 s33, 0xffff0000")
    for j in range(10):
        k.i(f"v_lshlrev_b32 v{XF+2*j}, 16, v{HR+j}\nv_and_b32 v{XF+2*j+1}, s33, v{HR+j}")
        k.i(f"v_lshlrev_b32 v{XF+20}, 16, v{BR+j}\nv_and_b32 v{XF+21}, s33, v{BR+j}")
        k.i(f"v_pk_add_f32 v[{XF+2*j}:{XF+2*j+1}], v[{XF+2*j}:{XF+2*j+1}], v[{XF+20}:{XF+21}]")
    for t in range(12):
        for j in range(4):
            k.wait(vm=f"s{t}_{j}")
            for c in range(5):
                d = vr(ACC + (5*j+c)*4, 4)
                k.i(f"v_mfma_f32_16x16x32_bf16 {d}, {ar(4*(5*t+c), 4)}, {vr(RING+16*(t%NB)+4*j, 4)}, {'0' if t == 0 else d}")
                if c == 1: issue()
        if t == 0: pass
    stamp(17)
    for j in range(1, 4):
        for c in range(5):
            r = ACC + 20*j + 4*c
            k.lg(f"ds_write_b128 v13, v[{r}:{r+3}] offset:{(j-1)*5120 + 1024*c}")
    for c in range(5):
        for h in range(2):
            d = XF + 4*c + 2*h; a = ACC + 4*c + 2*h
            k.i(f"v_pk_add_f32 v[{d}:{d+1}], v[{d}:{d+1}], v[{a}:{a+1}]")
    k.wait(lg="all"); k.i("s_barrier")
    RR = 120
    for j in range(1, 4):
        for c in range(5):
            r = RR + 20*(j-1) + 4*c
            k.lg(f"ds_read_b128 v[{r}:{r+3}], v{13+j} offset:{1024*c}", f"r{j}_{c}")
    for j in range(1, 4):
        for c in range(5):
            k.wait(lg=f"r{j}_{c}")
            for h in range(2):
                d = XF + 4*c + 2*h; a = RR + 20*(j-1) + 4*c + 2*h
                k.i(f"v_pk_add_f32 v[{d}:{d+1}], v[{d}:{d+1}], v[{a}:{a+1}]")
            if j == 3:
                k.i(f"v_cvt_pk_bf16_f32 v{HR+2*c}, v{XF+4*c}, v{XF+4*c+1}\nv_cvt_pk_bf16_f32 v{HR+2*c+1}, v{XF+4*c+2}, v{XF+4*c+3}")
                k.vm(f"buffer_store_dwordx2 v[{HR+2*c}:{HR+2*c+1}], v7, s[8:11], s34 offen offset:{32*c}")
    k.i(f"""s_or_b32 s33, s45, s20
    s_cmp_lg_u32 s33, 0
    s_cbranch_scc1 p4_noep
    v_mov_b32 v4, s44
    v_mov_b32 v5, {CB}
    s_mov_b64 exec, 1
    buffer_store_dword v4, v5, s[16:19], 0 offen sc1
    s_mov_b64 exec, -1""")
    k.label("p4_noep")

def stamp_out():
    if not OPT["stamps"]: return
    n = NSTAMP
    k.i("s_waitcnt vmcnt(0) lgkmcnt(0)")
    k.i(f"s_memrealtime s[{64+2*n}:{65+2*n}]")
    k.i("s_waitcnt lgkmcnt(0)")
    k.i(f"s_lshl_b32 s3, s45, 2\ns_add_u32 s3, s3, s20\ns_lshl_b32 s3, s3, 7\ns_add_u32 s3, s3, 0x2000000\nv_mov_b32 v1, s3")
    for j in range(n+1): k.i(f"v_mov_b32 v{2+j}, s{64+2*j}")
    k.i("s_mov_b64 exec, 1")
    for j in range(n+1): k.i(f"global_store_dword v1, v{2+j}, s[14:15] offset:{4*j}")

def emit(path):
    global k
    k = Kern(KN)
    phase0(); phase1(); phase2(); phase3(); phase4(); stamp_out()
    k.label("kend"); k.i("s_endpgm")
    body, added = hazard_pass(k.L)
    print("instrs", len(body), "nop states added", added, file=sys.stderr)
    out = ["; persistent single-launch version; generated by dev/gen2.py",
           "; @launch grid=(256,1,1) block=(256,1,1) lds=163840",
           '.amdgcn_target "amdgcn-amd-amdhsa--gfx950"', ".text", f".globl {KN}", ".p2align 8", f".type {KN},@function", f"{KN}:"]
    out += [("" if (l.endswith(":") or l.startswith(";")) else "    ") + l for l in body]
    out += [".p2align 8", ".fill 16384, 4, 0xbf800000"] if False else []
    out += ['.section .rodata,"a"', ".p2align 6", f".amdhsa_kernel {KN}", "  .amdhsa_next_free_vgpr 512", "  .amdhsa_next_free_sgpr 102",
            "  .amdhsa_accum_offset 256", "  .amdhsa_group_segment_fixed_size 0", "  .amdhsa_kernarg_size 88",
            "  .amdhsa_user_sgpr_count 2", "  .amdhsa_user_sgpr_kernarg_segment_ptr 1",
            "  .amdhsa_system_sgpr_workgroup_id_x 1", ".end_amdhsa_kernel"]
    open(path, "w").write("\n".join(out) + "\n")

if __name__ == "__main__":
    for a in sys.argv[2:]:
        kk, v = a.split("=")
        OPT[kk] = {"True": True, "False": False}.get(v, v.replace("_", " "))
    emit(sys.argv[1])
```

```python
import sys
from asmlib import *

NAME = "sequential_preLN__linear_attn_block__dense_activation_squared_relu__prompt"
KN = NAME + "_kernel"
CB = 0x0
FX = CB + 0x1000; FW = CB + 0x2000; F0B = CB + 0x3000; F1 = CB + 0x4000; F2 = CB + 0x6000; F3 = CB + 0x7000
CS = 0x10000; KVA = 0x20000; ST = 0x40000
XN = 0x100000; WQ = 0x380000; WO = 0x600000; W1 = 0x700000; W2 = 0x900000
PQ = 0xB00000; HH = 0xE00000; H1 = 0x1200000
WSZ = 0x1800000
LOG2E = 0x3fb8aa3b
OPT = dict(stamps=False, cold="nt", pre1=3, pre3=12, nb4=6)
HO = "sc1"

def magic(C, maxq):
    for sh in range(4, 24):
        m = -(-(1 << sh) // C)
        if m * maxq < (1 << 32) and m < (1 << 24) and all((q * m) >> sh == q // C for q in range(maxq)): return m, sh
    raise ValueError

k = None
def srd(d, base, size):
    k.i(f"s_mov_b32 s{d}, s{base}\ns_mov_b32 s{d+1}, s{base+1}\ns_mov_b32 s{d+2}, {size}\ns_mov_b32 s{d+3}, 0x20000")
def bf16r(d, s):
    k.i(f"v_cvt_pk_bf16_f32 v{d}, v{s}, v{s}\nv_lshlrev_b32 v{d}, 16, v{d}")
NSTAMP = 18
def stamp(idx):
    if OPT["stamps"]: k.i(f"s_memrealtime s[{64+2*idx}:{65+2*idx}]")
def snap(): return (k.vm_n, dict(k.vm_tags), k.vm_done, k.lg_n, dict(k.lg_tags), k.lg_done)
def rest(s): k.vm_n, k.vm_tags, k.vm_done, k.lg_n, k.lg_tags, k.lg_done = s[0], dict(s[1]), s[2], s[3], dict(s[4]), s[5]

PX, PWQ, PWO, PW1, PB1, PW2, PB2, POUT = 48, 50, 52, 56, 58, 60, 62, 46

npoll = 0
def poll(vaddr, soff, vt, wide=False):
    global npoll
    npoll += 1
    L = f"poll{npoll}"
    k.i("s_mov_b32 s43, 0x20000")
    k.label(L)
    if wide:
        k.i(f"buffer_load_dwordx4 v[{vt}:{vt+3}], v{vaddr}, s[16:19], s{soff} offen sc1")
        k.i("s_waitcnt vmcnt(0)")
        check4(vt)
    else:
        k.i(f"buffer_load_dword v{vt}, v{vaddr}, s[16:19], s{soff} offen sc1")
        k.i("s_waitcnt vmcnt(0)")
        k.i(f"v_cmp_ne_u32 vcc, s44, v{vt}")
    k.i(f"s_cbranch_vccz {L}d\ns_sub_u32 s43, s43, 1\ns_cbranch_scc0 {L}")
    k.label(L + "d")
    k.vm_done = k.vm_n
def check4(vt):
    k.i(f"v_xor_b32 v{vt}, s44, v{vt}\nv_xor_b32 v{vt+1}, s44, v{vt+1}\nv_xor_b32 v{vt+2}, s44, v{vt+2}\nv_xor_b32 v{vt+3}, s44, v{vt+3}")
    k.i(f"v_or3_b32 v{vt}, v{vt}, v{vt+1}, v{vt+2}\nv_or_b32 v{vt}, v{vt}, v{vt+3}\nv_cmp_ne_u32 vcc, 0, v{vt}")

nsig = 0
def signal(lanes_mask, vaddr_code, vaddr, soff_code, soff, vt):
    global nsig
    nsig += 1
    L = f"sig{nsig}"
    k.i(f"s_cmp_lg_u32 s20, 0\ns_cbranch_scc1 {L}")
    k.i(vaddr_code); k.i(soff_code)
    k.i(f"v_mov_b32 v{vt}, s44\ns_mov_b64 exec, {lanes_mask}")
    k.i(f"buffer_store_dword v{vt}, v{vaddr}, s[16:19], s{soff} offen sc1")
    k.i("s_mov_b64 exec, -1")
    k.label(L)
    k.vm_n += 0
def sig_row(base, vt):
    signal(1, f"v_mov_b32 v{vt+1}, 0", vt+1, f"s_lshl_b32 s42, s26, 7\ns_lshl_b32 s43, s27, 2\ns_add_u32 s42, s42, s43\ns_add_u32 s42, s42, {base}", 42, vt)

def phi_pack(src, dst, n, T, hook=None):
    for b in range(0, n, 4):
        a = src + b
        k.i(f"v_pk_mul_f32 v[{T}:{T+1}], v[{a}:{a+1}], s[40:41]")
        k.i(f"v_pk_mul_f32 v[{T+2}:{T+3}], v[{a+2}:{a+3}], s[40:41]")
        for j in range(4): k.i(f"v_exp_f32_e64 v{T+j}, v{T+j} clamp")
        for j in range(4): k.i(f"v_max_f32 v{T+4+j}, 0, v{a+j}")
        k.i(f"v_pk_add_f32 v[{T}:{T+1}], v[{T}:{T+1}], s[38:39]")
        k.i(f"v_pk_add_f32 v[{T+2}:{T+3}], v[{T+2}:{T+3}], s[38:39]")
        k.i(f"v_pk_add_f32 v[{T}:{T+1}], v[{T}:{T+1}], v[{T+4}:{T+5}]")
        k.i(f"v_pk_add_f32 v[{T+2}:{T+3}], v[{T+2}:{T+3}], v[{T+6}:{T+7}]")
        k.i(f"v_cvt_pk_bf16_f32 v{dst+b//2}, v{T}, v{T+1}")
        k.i(f"v_cvt_pk_bf16_f32 v{dst+b//2+1}, v{T+2}, v{T+3}")
        if hook: hook()

ROWOFF = [[0, 4, 20, 24, 8], [12, 16, 28, 32, 36]]

def phase0():
    cold = OPT["cold"]
    stamp(0)
    k.i(f"""s_load_dwordx16 s[48:63], s[0:1], 0
    s_load_dwordx2 s[46:47], s[0:1], 64
    s_load_dwordx2 s[14:15], s[0:1], 80
    s_cmp_ge_u32 s2, 256
    s_cbranch_scc1 kend
    v_and_b32 v1, 63, v0
    v_lshrrev_b32 v2, 6, v0
    v_lshlrev_b32 v3, 4, v1
    v_readfirstlane_b32 s20, v2
    s_and_b32 s24, s2, 7
    s_lshr_b32 s25, s2, 3
    s_lshr_b32 s26, s24, 1
    s_lshl_b32 s26, s26, 2
    s_lshr_b32 s27, s25, 3
    s_add_u32 s26, s26, s27
    s_and_b32 s27, s24, 1
    s_lshl_b32 s27, s27, 3
    s_and_b32 s25, s25, 7
    s_add_u32 s27, s27, s25
    s_lshl_b32 s45, s26, 4
    s_add_u32 s45, s45, s27
    s_getpc_b64 s[4:5]
    pcl:
    s_waitcnt lgkmcnt(0)
    s_load_dword s44, s[14:15], {CB}""")
    srd(16, 14, WSZ)
    k.i("s_cmp_ge_u32 s20, 2\ns_cbranch_scc1 p0_wq_issue")
    X = 8; F = 32; T = 72
    srd(8, PX, 2621440)
    k.i("""v_lshrrev_b32 v4, 4, v0
    v_and_b32 v5, 15, v0
    s_lshl_b32 s21, s45, 3
    v_add_u32 v6, s21, v4
    v_mul_u32_u24 v6, 1280, v6
    v_lshl_add_u32 v6, v5, 4, v6""")
    for i in range(5):
        k.i(f"buffer_load_dwordx4 v[{X+4*i}:{X+4*i+3}], v6, s[8:11], 0 offen offset:{256*i} {cold}")
    k.i("s_branch p0_unit_issue")
    k.label("p0_wq_issue")
    srd(8, PWQ, 2457600)
    m, sh = magic(20, 320)
    k.i(f"""s_mul_i32 s21, s27, 120
    s_add_u32 s22, s21, 2560
    s_add_u32 s21, s21, 1280
    s_sub_u32 s23, s27, 11
    s_lshl_b32 s23, s23, 8
    s_add_u32 s24, s23, 128
    s_cmp_ge_u32 s27, 11
    s_cselect_b32 s21, s23, s21
    s_cselect_b32 s22, s24, s22
    s_and_b32 s28, s21, 8
    s_and_b32 s21, s21, 0xfffffff0
    s_and_b32 s22, s22, 0xfffffff0
    s_sub_u32 s22, s22, 160
    s_sub_u32 s29, s20, 2
    s_lshl_b32 s30, s29, 4
    s_add_u32 s30, s30, s26
    s_mul_i32 s31, s30, 61440
    s_mul_i32 s32, s29, 5120
    v_mov_b32 v10, s21
    v_mov_b32 v11, s22""")
    for i in range(5):
        k.i(f"""v_add_u32 v4, {64*i}, v1
        v_mul_u32_u24 v5, {m}, v4
        v_lshrrev_b32 v5, {sh}, v5
        v_mul_u32_u24 v6, 20, v5
        v_sub_u32 v6, v4, v6
        v_cmp_gt_u32 vcc, 10, v6
        v_mul_u32_u24 v5, 3840, v5
        v_lshl_add_u32 v5, v6, 4, v5
        v_cndmask_b32 v6, v11, v10, vcc
        v_add_u32 v{12+i}, v5, v6
        s_add_u32 m0, s32, {1024*i}
        buffer_load_dwordx4 v{12+i}, s[8:11], s31 offen {cold} lds""")
    k.i(f"""s_cmp_eq_u32 s20, 2
    s_cselect_b32 s33, 1, 0
    s_cmp_lt_u32 s26, 8
    s_cselect_b32 s33, s33, 0
    s_cmp_eq_u32 s33, 0
    s_cbranch_scc1 p0_unit_issue
    s_add_u32 s31, s31, {32*61440}""")
    for i in range(5):
        k.i(f"s_mov_b32 m0, {10240+1024*i}\nbuffer_load_dwordx4 v{12+i}, s[8:11], s31 offen {cold} lds")
    UL = 16384
    k.label("p0_unit_issue")
    k.i(f"""s_lshr_b32 s6, s2, 3
    s_and_b32 s6, s6, 3
    s_lshl_b32 s6, s6, 13
    v_lshl_add_u32 v30, v1, 7, s6
    v_min_u32 v30, kend-pcl, v30
    global_load_dword v31, v30, s[4:5]""")
    k.i("""s_cmp_ge_u32 s45, 232
    s_cbranch_scc1 p0_proc
    s_cmp_ge_u32 s45, 136
    s_cbranch_scc1 p0_ui_w2
    s_cmp_ge_u32 s45, 40
    s_cbranch_scc1 p0_ui_w1""")
    srd(8, PWO, 819200)
    k.i("""s_mul_i32 s35, s45, 26
    s_lshr_b32 s35, s35, 8
    s_mul_i32 s36, s35, 10
    s_sub_u32 s36, s45, s36
    s_mul_i32 s21, s35, 204800
    s_lshl_b32 s22, s36, 7
    s_add_u32 s21, s21, s22
    s_movk_i32 s29, 1280
    s_branch p0_ui_128""")
    k.label("p0_ui_w1")
    srd(8, PW1, 1966080)
    k.i("""s_sub_u32 s34, s45, 40
    s_mul_i32 s35, s34, 43
    s_lshr_b32 s35, s35, 10
    s_mul_i32 s36, s35, 24
    s_sub_u32 s36, s34, s36
    s_mul_i32 s21, s35, 491520
    s_lshl_b32 s22, s36, 7
    s_add_u32 s21, s21, s22
    s_movk_i32 s29, 3072""")
    k.label("p0_ui_128")
    k.i(f"""v_lshrrev_b32 v120, 3, v1
    s_mul_i32 s22, s20, 40
    v_add_u32 v120, s22, v120
    v_and_b32 v121, 7, v1
    v_lshlrev_b32 v121, 4, v121
    v_and_b32 v122, 2, v120
    v_lshlrev_b32 v122, 5, v122
    v_mul_lo_u32 v120, v120, s29
    v_xad_u32 v120, v121, v122, v120
    s_mul_i32 s22, s20, 5120
    s_lshl_b32 s29, s29, 3""")
    for i in range(5):
        k.i(f"s_add_u32 m0, s22, {UL+1024*i}\nbuffer_load_dwordx4 v120, s[8:11], s21 offen {cold} lds\ns_add_u32 s21, s21, s29")
    k.i("s_branch p0_proc")
    k.label("p0_ui_w2")
    srd(8, PW2, 1966080)
    m, sh = magic(40, 320)
    k.i("""s_sub_u32 s34, s45, 136
    s_lshr_b32 s35, s34, 1
    s_and_b32 s36, s34, 1
    s_mul_i32 s21, s35, 40960
    s_mul_i32 s22, s36, 640
    s_add_u32 s21, s21, s22
    s_lshl_b32 s23, s20, 3
    s_mul_i32 s22, s20, 5120""")
    for i in range(5):
        k.i(f"""v_add_u32 v120, {64*i}, v1
        v_mul_u32_u24 v121, {m}, v120
        v_lshrrev_b32 v121, {sh}, v121
        v_mul_u32_u24 v122, 40, v121
        v_sub_u32 v122, v120, v122
        v_lshlrev_b32 v122, 4, v122
        v_add_u32 v121, s23, v121
        v_and_b32 v123, 2, v121
        v_lshlrev_b32 v123, 4, v123
        v_and_b32 v124, 16, v121
        v_lshl_or_b32 v123, v124, 2, v123
        v_mul_u32_u24 v121, 1280, v121
        v_xad_u32 v120, v122, v123, v121
        s_add_u32 m0, s22, {UL+1024*i}
        buffer_load_dwordx4 v120, s[8:11], s21 offen {cold} lds""")
    k.label("p0_proc")
    k.i("""v_bfe_u32 v28, v1, 2, 2
    v_and_b32 v29, 3, v1
    v_lshrrev_b32 v30, 4, v1
    s_cmp_ge_u32 s20, 2
    s_cbranch_scc1 p0_wq_proc""")
    k.i(f"""s_lshl_b32 s21, s26, 2
    s_lshr_b32 s22, s27, 2
    s_add_u32 s21, s21, s22
    s_mul_i32 s21, s21, 40960
    s_and_b32 s22, s27, 3
    s_lshl_b32 s22, s22, 7
    s_add_u32 s21, s21, s22
    s_add_u32 s21, s21, {XN}
    v_lshrrev_b32 v7, 1, v5
    v_lshlrev_b32 v7, 10, v7
    v_and_b32 v6, 1, v5
    v_lshlrev_b32 v6, 9, v6
    v_lshl_add_u32 v7, v4, 4, v7
    v_add_u32 v7, v7, v6
    s_mov_b32 s23, 0xffff0000
    s_waitcnt vmcnt(6)""")
    k.i("s_cmp_lt_u32 s45, 232\ns_cbranch_scc1 p0_ln_go\ns_waitcnt vmcnt(0)")
    k.label("p0_ln_go")
    for j in range(20):
        k.i(f"v_lshlrev_b32 v{F+2*j}, 16, v{X+j}\nv_and_b32 v{F+2*j+1}, s23, v{X+j}")
    k.i(f"v_pk_add_f32 v[112:113], v[{F}:{F+1}], v[{F+2}:{F+3}]")
    k.i(f"v_pk_add_f32 v[114:115], v[{F+4}:{F+5}], v[{F+6}:{F+7}]")
    for j in range(4, 20):
        a = 112 + 2 * (j & 1)
        k.i(f"v_pk_add_f32 v[{a}:{a+1}], v[{a}:{a+1}], v[{F+2*j}:{F+2*j+1}]")
    k.i("v_pk_add_f32 v[112:113], v[112:113], v[114:115]")
    k.i("v_add_f32 v112, v112, v113")
    def rowred(r):
        for s in (8, 4, 2, 1):
            k.i(f"v_add_f32_dpp v{r}, v{r}, v{r} row_ror:{s} row_mask:0xf bank_mask:0xf")
    rowred(112)
    k.i("v_mul_f32 v112, 0x3acccccd, v112")
    for j in range(20):
        k.i(f"v_pk_add_f32 v[{T+2*j}:{T+2*j+1}], v[{F+2*j}:{F+2*j+1}], v[112:113] op_sel_hi:[1,0] neg_lo:[0,1] neg_hi:[0,1]")
    k.i(f"v_pk_mul_f32 v[114:115], v[{T}:{T+1}], v[{T}:{T+1}]")
    k.i(f"v_pk_mul_f32 v[116:117], v[{T+2}:{T+3}], v[{T+2}:{T+3}]")
    for j in range(2, 20):
        a = 114 + 2 * (j & 1)
        k.i(f"v_pk_fma_f32 v[{a}:{a+1}], v[{T+2*j}:{T+2*j+1}], v[{T+2*j}:{T+2*j+1}], v[{a}:{a+1}]")
    k.i("v_pk_add_f32 v[114:115], v[114:115], v[116:117]")
    k.i("v_add_f32 v114, v114, v115")
    rowred(114)
    k.i("v_mul_f32 v114, 0x3acccccd, v114")
    bf16r(112, 112); bf16r(114, 114)
    k.i("v_add_f32 v114, 0x3727c5ac, v114")
    bf16r(114, 114)
    k.i("v_sqrt_f32 v114, v114")
    bf16r(114, 114)
    k.i("v_rcp_f32 v114, v114")
    for j in range(20):
        k.i(f"v_pk_add_f32 v[{T+2*j}:{T+2*j+1}], v[{F+2*j}:{F+2*j+1}], v[112:113] op_sel_hi:[1,0] neg_lo:[0,1] neg_hi:[0,1]")
    for j in range(20):
        k.i(f"v_cvt_pk_bf16_f32 v{X+j}, v{T+2*j}, v{T+2*j+1}")
    for j in range(20):
        k.i(f"v_lshlrev_b32 v{F+2*j}, 16, v{X+j}\nv_and_b32 v{F+2*j+1}, s23, v{X+j}")
    for j in range(20):
        k.i(f"v_pk_mul_f32 v[{F+2*j}:{F+2*j+1}], v[{F+2*j}:{F+2*j+1}], v[114:115] op_sel_hi:[1,0]")
    for i in range(5):
        for j in range(4*i, 4*i+4):
            k.i(f"v_cvt_pk_bf16_f32 v{X+j}, v{F+2*j}, v{F+2*j+1}")
        k.i(f"buffer_store_dwordx4 v[{X+4*i}:{X+4*i+3}], v7, s[16:19], s21 offen {HO}")
        if i < 4: k.i("s_add_u32 s21, s21, 8192")
    k.i("s_branch p0_drain")
    k.label("p0_wq_proc")
    k.i(f"""v_lshrrev_b32 v4, 1, v30
    v_lshl_add_u32 v4, v4, 3, v28
    v_mul_u32_u24 v4, 320, v4
    v_and_b32 v5, 1, v30
    v_lshlrev_b32 v5, 5, v5
    v_lshl_add_u32 v5, v29, 3, v5
    v_add_u32 v4, v4, v5
    s_add_u32 s21, s28, s32
    v_add_u32 v4, s21, v4
    s_mul_i32 s21, s27, 163840
    s_lshl_b32 s22, s30, 12
    s_add_u32 s21, s21, s22
    s_add_u32 s21, s21, {WQ}
    s_mul_i32 s22, s27, 5040
    s_add_u32 s22, s22, {KVA}
    s_mul_i32 s23, s26, 320
    v_add_u32 v5, s23, v3
    v_mov_b32 v8, 0
    v_mov_b32 v9, 0
    v_mov_b32 v10, 0
    v_mov_b32 v11, 0
    v_cmp_gt_u32 vcc, 5040, v5
    s_and_b32 s24, vcc_lo, 0xfffff
    s_cmp_lt_u32 s27, 11
    s_cselect_b32 s24, s24, 0
    s_cmp_eq_u32 s20, 3
    s_cselect_b32 s24, s24, 0
    s_cmp_eq_u32 s24, 0
    s_cbranch_scc1 p0_nozero
    s_mov_b32 s25, 0
    s_mov_b64 exec, s[24:25]
    buffer_store_dwordx4 v[8:11], v5, s[16:19], s22 offen {HO}
    s_mov_b64 exec, -1""")
    k.label("p0_nozero")
    k.i("s_waitcnt vmcnt(0)")
    def wq_one(base, tagp):
        for nt in range(4):
            r = 32 + 4*nt + base
            o = (nt >> 1)*160 + (nt & 1)*64
            k.lg(f"ds_read_b64_tr_b16 v[{r}:{r+1}], v4 offset:{o}")
            k.lg(f"ds_read_b64_tr_b16 v[{r+2}:{r+3}], v4 offset:{o+1280}", f"{tagp}{nt}")
        for nt in range(4):
            r = 32 + 4*nt + base
            k.wait(lg=f"{tagp}{nt}")
            k.i(f"buffer_store_dwordx4 v[{r}:{r+3}], v3, s[16:19], s21 offen offset:{1024*nt} {HO}")
    wq_one(0, "wa")
    k.i(f"s_cmp_eq_u32 s33, 0\ns_cbranch_scc1 p0_drain\nv_add_u32 v4, 10240, v4\ns_add_u32 s21, s21, {32*4096}")
    wq_one(16, "wb")
    k.label("p0_drain")
    stamp(1)
    k.i("s_waitcnt vmcnt(0) lgkmcnt(0)\ns_add_u32 s44, s44, 1\ns_barrier")
    k.reset_counts()
    stamp(2)
    signal(3, f"""s_lshl_b32 s42, s26, 7
    s_lshl_b32 s43, s27, 2
    s_add_u32 s42, s42, s43
    s_lshl_b32 s43, s27, 7
    s_lshl_b32 s41, s26, 2
    s_add_u32 s43, s43, s41
    s_add_u32 s43, s43, {FW-FX}
    v_mov_b32 v5, s43
    v_mov_b32 v6, s42
    v_cmp_eq_u32 vcc, 0, v1
    v_cndmask_b32 v5, v5, v6, vcc""", 5, f"s_mov_b32 s42, {FX}", 42, 4)
    D0 = 32
    k.i("""s_cmp_ge_u32 s45, 232
    s_cbranch_scc1 p0_end
    s_cmp_ge_u32 s45, 136
    s_cbranch_scc1 p0_up_w2
    s_and_b32 s22, s20, 1
    s_lshr_b32 s23, s20, 1
    s_lshl_b32 s37, s36, 1
    s_add_u32 s37, s37, s22
    s_cmp_ge_u32 s45, 40
    s_cbranch_scc1 p0_up_w1""")
    k.i(f"""v_and_b32 v4, 1, v30
    v_lshrrev_b32 v5, 1, v29
    v_lshl_add_u32 v4, v4, 1, v5
    v_add_u32 v4, s35, v4
    v_and_b32 v4, 3, v4
    v_lshlrev_b32 v4, 4, v4
    v_and_b32 v5, 1, v29
    v_lshl_add_u32 v4, v5, 3, v4
    s_lshl_b32 s24, s22, 6
    v_add_u32 v4, s24, v4
    v_and_b32 v5, 2, v28
    v_lshlrev_b32 v5, 5, v5
    v_xor_b32 v4, v4, v5
    v_lshl_add_u32 v4, v28, 7, v4
    s_mul_i32 s24, s23, 10240
    s_add_u32 s24, s24, {UL}
    v_add_u32 v4, s24, v4
    v_lshrrev_b32 v6, 5, v1
    v_lshlrev_b32 v6, 4, v6
    s_mul_i32 s24, s37, 205
    s_lshr_b32 s24, s24, 10
    s_mul_i32 s25, s24, 5
    s_sub_u32 s25, s37, s25
    s_lshl_b32 s24, s24, 2
    s_add_u32 s24, s24, s35
    s_mul_i32 s24, s24, 10
    s_mul_i32 s28, s23, 5
    s_add_u32 s24, s24, s28
    s_mul_i32 s24, s24, 5
    s_add_u32 s24, s24, s25
    s_lshl_b32 s24, s24, 10
    s_add_u32 s24, s24, {WO}""")
    for uu in range(5):
        for h2 in range(2):
            m_ = 2*uu + h2
            K = 0
            for hi in range(2): K |= ((40*(m_//5) + ROWOFF[hi][m_ % 5]) * 128) << (16*hi)
            r = D0 + 4*uu + 2*h2
            k.i(f"s_mov_b32 s25, {K:#x}\nv_bfe_u32 v7, s25, v6, 16\nv_add_u32 v7, v7, v4")
            k.lg(f"ds_read_b64_tr_b16 v[{r}:{r+1}], v7", f"uo{uu}")
    for uu in range(5):
        r = D0 + 4*uu
        k.wait(lg=f"uo{uu}")
        k.i(f"buffer_store_dwordx4 v[{r}:{r+3}], v3, s[16:19], s24 offen {HO}\ns_add_u32 s24, s24, 5120")
    k.i("s_branch p0_end")
    k.reset_counts()
    k.label("p0_up_w1")
    k.i(f"""v_lshrrev_b32 v4, 1, v30
    v_lshl_add_u32 v4, v4, 3, v28
    v_and_b32 v5, 1, v30
    v_lshlrev_b32 v5, 5, v5
    v_lshl_add_u32 v5, v29, 3, v5
    s_lshl_b32 s24, s22, 6
    v_add_u32 v5, s24, v5
    v_and_b32 v6, 2, v28
    v_lshlrev_b32 v6, 5, v6
    v_lshlrev_b32 v4, 7, v4
    v_xad_u32 v4, v5, v6, v4
    s_mul_i32 s24, s23, 10240
    s_add_u32 s24, s24, {UL}
    v_add_u32 v4, s24, v4
    v_mov_b32 v8, 0
    s_mov_b32 s28, 0x3f803f80
    s_mul_i32 s24, s37, 171
    s_lshr_b32 s24, s24, 9
    s_mul_i32 s25, s24, 3
    s_sub_u32 s25, s37, s25
    s_mul_i32 s24, s24, 40
    s_mul_i32 s29, s35, 10
    s_add_u32 s24, s24, s29
    s_mul_i32 s29, s23, 5
    s_add_u32 s24, s24, s29
    s_mul_i32 s24, s24, 3
    s_add_u32 s24, s24, s25
    s_lshl_b32 s24, s24, 10
    s_add_u32 s24, s24, {W1}""")
    for ks in range(5):
        r = D0 + 4*ks
        k.lg(f"ds_read_b64_tr_b16 v[{r}:{r+1}], v4 offset:{ks*2048}")
        k.lg(f"ds_read_b64_tr_b16 v[{r+2}:{r+3}], v4 offset:{ks*2048+512}", f"u1{ks}")
    for ks in range(5):
        r = D0 + 4*ks
        k.wait(lg=f"u1{ks}")
        k.i(f"buffer_store_dwordx4 v[{r}:{r+3}], v3, s[16:19], s24 offen {HO}\ns_add_u32 s24, s24, 3072")
        for j in range(4): k.i(f"v_dot2_f32_bf16 v8, v{r+j}, s28, v8")
    k.i(f"""s_nop 2
    v_mov_b32 v9, v8
    s_lshl_b32 s24, s35, 1
    s_add_u32 s24, s24, s23
    v_permlane32_swap_b32 v8, v9
    s_mul_i32 s24, s24, 6144
    s_lshl_b32 s25, s37, 7
    s_add_u32 s24, s24, s25
    s_add_u32 s24, s24, {CS}
    v_add_f32 v8, v8, v9
    v_lshlrev_b32 v9, 2, v1
    s_mov_b64 exec, 0xffffffff
    buffer_store_dword v8, v9, s[16:19], s24 offen {HO}
    s_mov_b64 exec, -1
    s_branch p0_end""")
    k.reset_counts()
    k.label("p0_up_w2")
    k.i(f"""v_and_b32 v4, 1, v30
    v_lshlrev_b32 v4, 4, v4
    v_lshrrev_b32 v5, 1, v30
    v_lshl_add_u32 v4, v5, 2, v4
    v_add_u32 v4, v4, v28
    v_and_b32 v6, 2, v4
    v_lshlrev_b32 v6, 4, v6
    v_and_b32 v7, 16, v4
    v_lshl_or_b32 v6, v7, 2, v6
    v_mul_u32_u24 v4, 640, v4
    v_add_u32 v4, {UL}, v4
    s_mul_i32 s24, s20, 160
    v_lshl_add_u32 v5, v29, 3, s24
    s_lshl_b32 s24, s36, 2
    s_add_u32 s24, s24, s20
    s_mul_i32 s24, s24, 48
    s_add_u32 s24, s24, s35
    s_mul_i32 s24, s24, 5120
    s_add_u32 s24, s24, {W2}""")
    for m_ in range(5):
        r = D0 + 4*m_
        k.i(f"v_add_u32 v7, {32*m_}, v5\nv_xad_u32 v7, v7, v6, v4")
        k.lg(f"ds_read_b64_tr_b16 v[{r}:{r+1}], v7")
        k.lg(f"ds_read_b64_tr_b16 v[{r+2}:{r+3}], v7 offset:{8*640}", f"u2{m_}")
    for m_ in range(5):
        r = D0 + 4*m_
        k.wait(lg=f"u2{m_}")
        k.i(f"buffer_store_dwordx4 v[{r}:{r+3}], v3, s[16:19], s24 offen {HO}\ns_add_u32 s24, s24, 1024")
    k.label("p0_end")
    k.reset_counts()
    stamp(3)

def phase1():
    k.i(f"""v_and_b32 v6, 15, v1
    v_lshlrev_b32 v6, 2, v6
    s_lshl_b32 s42, s26, 7
    s_lshl_b32 s43, s27, 7
    s_add_u32 s43, s43, {FW-FX}
    v_mov_b32 v7, s42
    v_mov_b32 v8, s43
    v_and_b32 v9, 16, v1
    v_cmp_eq_u32 vcc, 0, v9
    v_add_u32 v4, 0x10000, v3
    v_add_u32 v5, 0x20000, v3
    v_cndmask_b32 v7, v8, v7, vcc
    v_add_u32 v6, v6, v7
    s_mov_b32 s42, {FX}
    s_lshl_b32 s28, s26, 2
    s_add_u32 s28, s28, s20
    s_mul_i32 s21, s28, 40960
    s_add_u32 s21, s21, {XN}
    s_lshl_b32 s23, s20, 12
    s_mul_i32 s22, s27, 163840
    s_add_u32 s22, s22, s23
    s_add_u32 s22, s22, {WQ}
    s_mov_b32 s40, {LOG2E:#x}
    s_mov_b32 s41, {LOG2E:#x}
    s_mov_b32 s38, 0x358637bd
    s_mov_b32 s39, 0x358637bd""")
    poll(6, 42, 8)
    k.i("s_barrier")
    stamp(4)
    ACC = 64; WB = 128; T = 8; PK = 176; FB0 = 20
    PRE = int(OPT["pre1"])
    Q = []
    for s in range(10):
        for j in range(4):
            pre = f"s_add_u32 m0, s23, {s*16384}\n" if j == 0 else ""
            post = "\ns_add_u32 s22, s22, 16384" if j == 3 else ""
            Q.append((pre, f"buffer_load_dwordx4 v3, s[16:19], s22 offen offset:{1024*j} {HO} lds", post, f"W{s}"))
        for j in range(4):
            post = "\ns_add_u32 s21, s21, 4096" if j == 3 else ""
            Q.append(("", f"buffer_load_dwordx4 a[{16*s+4*j}:{16*s+4*j+3}], v3, s[16:19], s21 offen offset:{1024*j} {HO}", post, f"X{4*s+j}"))
    qi = [0]
    def issue(n=1):
        for _ in range(n):
            if qi[0] < len(Q):
                pre, ins, post, tag = Q[qi[0]]; qi[0] += 1
                k.i(pre); k.vm(ins, tag); k.i(post)
    def reads(ks, lo, hi):
        for j in range(lo, hi):
            o = (ks*4 + j) * 1024
            r = WB + (ks % 3)*16 + 4*j
            k.lg(f"ds_read_b128 v[{r}:{r+3}], v{3 + o//65536} offset:{o % 65536}", f"w{ks}")
    issue(8*PRE)
    k.i("s_cmp_ge_u32 s27, 11\ns_cbranch_scc1 p1_q")
    sv = snap(); q0 = qi[0]
    def loop(act_first):
        k.wait(vm="W0"); k.i("s_barrier")
        reads(0, 0, 4); reads(1, 0, 4)
        for ks in range(40):
            n2 = ks + 2
            if n2 < 40 and n2 % 4 == 0:
                k.wait(vm=f"W{n2//4}"); k.i("s_barrier")
                if n2 == 4:
                    signal(1, "v_mov_b32 v7, 0", 7, f"s_lshl_b32 s42, s45, 2\ns_add_u32 s42, s42, {F0B}", 42, 6)
            k.wait(vm=f"X{ks}", lg=f"w{ks}")
            for j in range(4):
                w = vr(WB + (ks % 3)*16 + 4*j, 4); x = ar(4*ks, 4); d = vr(ACC + 16*j, 16)
                c = "0" if ks == 0 else d
                k.i(f"v_mfma_f32_32x32x16_bf16 {d}, {x}, {w}, {c}" if act_first else f"v_mfma_f32_32x32x16_bf16 {d}, {w}, {x}, {c}")
                if j in (0, 2): issue()
                if n2 < 40 and j in (1, 3): reads(n2, j-1, j+1)
            if ks == 33:
                k.i(f"s_mov_b32 s42, {F0B}")
                k.vm(f"buffer_load_dwordx4 v[{FB0}:{FB0+3}], v3, s[16:19], s42 offen sc1", "f0b")
    XR = 24
    def p2_addr():
        k.i(f"""s_and_b32 s29, s27, 7
        s_lshr_b32 s30, s27, 3
        s_lshl_b32 s30, s30, 1
        s_and_b32 s31, s29, 1
        s_add_u32 s30, s30, s31
        s_lshr_b32 s29, s29, 1
        s_lshl_b32 s31, s26, 2
        s_add_u32 s29, s29, s31
        s_lshl_b32 s31, s30, 2
        s_add_u32 s31, s31, s20
        s_mul_i32 s31, s31, 51200
        s_add_u32 s31, s31, {WO}""")
    def f0b_check(lbl):
        k.wait(vm="f0b")
        check4(FB0)
        k.i(f"s_cbranch_vccz {lbl}")
        sv2 = snap()
        k.i(f"s_mov_b32 s42, {F0B}")
        poll(3, 42, FB0, wide=True)
        rest(sv2)
        k.label(lbl)
    wq = [0]
    def wo_issue(n=1):
        for _ in range(n):
            i = wq[0]
            if i < 50:
                k.vm(f"buffer_load_dwordx4 a[{4*i}:{4*i+3}], v3, s[16:19], s31 offen offset:{1024*(i%4)} {HO}", f"wo{i//5}")
                if i % 4 == 3: k.i("s_add_u32 s31, s31, 4096")
                wq[0] += 1
    NEARLY = int(OPT.get("wo_early", 8))
    loop(True)
    stamp(5)
    p2_addr(); f0b_check("p1_kv_ok")
    k.i("s_lshl_b32 s33, s20, 13\nv_add_u32 v6, s33, v3")
    for t in (2, 3):
        for p in range(8):
            k.i(f"v_cvt_pk_bf16_f32 v{PK+8*t+p}, v{ACC+16*t+2*p}, v{ACC+16*t+2*p+1}")
    k.i("s_mov_b32 s34, 0xf0000000\ns_mov_b32 s35, 0xf0000000\nv_mov_b32 v7, 0x3f803f80")
    for p in range(8):
        k.i(f"v_cndmask_b32 v{PK+24+p}, v{PK+24+p}, v7, s[34:35]")
    for t in (2, 3):
        for f in range(2):
            k.lg(f"ds_write_b128 v6, v[{PK+8*t+4*f}:{PK+8*t+4*f+3}] offset:{2048*t+1024*f}")
    for t in (0, 1):
        phi_pack(ACC + 16*t, PK + 8*t, 16, T, hook=(lambda: wo_issue(1) if wq[0] < NEARLY else None))
        for f in range(2):
            k.lg(f"ds_write_b128 v6, v[{PK+8*t+4*f}:{PK+8*t+4*f+3}] offset:{2048*t+1024*f}")
    k.i("""s_lshr_b32 s33, s20, 1
    s_and_b32 s34, s20, 1
    s_lshl_b32 s35, s33, 11
    v_add_u32 v8, s35, v3
    s_lshl_b32 s35, s34, 11
    s_add_u32 s35, s35, 4096
    v_add_u32 v9, s35, v3
    v_and_b32 v10, 31, v1
    s_lshl_b32 s35, s34, 5
    v_add_u32 v10, s35, v10
    v_mul_u32_u24 v11, 205, v10
    v_lshrrev_b32 v11, 12, v11
    v_mul_u32_u24 v12, 20, v11
    v_sub_u32 v12, v10, v12
    v_cmp_eq_u32 s[36:37], 60, v10
    v_mov_b32 v13, 20
    v_lshrrev_b32 v14, 5, v1
    v_cndmask_b32 v12, v12, v13, s[36:37]
    v_mul_u32_u24 v12, 80, v12
    v_lshlrev_b32 v14, 2, v14
    s_lshl_b32 s35, s33, 5
    v_add_u32 v14, s35, v14""")
    k.wait(lg="all"); k.i("s_barrier")
    FA = 64; FB = 96; DD = 128
    for w in range(4):
        for f in range(2):
            n = 2*w + f
            k.lg(f"ds_read_b128 v[{FA+4*n}:{FA+4*n+3}], v8 offset:{8192*w+1024*f}")
            k.lg(f"ds_read_b128 v[{FB+4*n}:{FB+4*n+3}], v9 offset:{8192*w+1024*f}", f"f{n}")
    MS = [4, 6, 8, 10]
    for j in range(4):
        ms = MS[j]
        k.i(f"""v_add_u32 v15, {8*j}, v14
        v_mul_u32_u24 v20, 205, v15
        v_lshrrev_b32 v20, 12, v20
        v_mul_u32_u24 v21, 20, v20
        v_sub_u32 v21, v15, v21
        v_cmp_eq_u32 s[{ms}:{ms+1}], v20, v11
        v_cmp_gt_u32 vcc, 3, v20
        v_mul_u32_u24 v20, 1680, v20
        v_lshl_add_u32 v21, v21, 2, v12
        v_add_u32 v{16+j}, v20, v21
        s_or_b64 s[{ms}:{ms+1}], s[{ms}:{ms+1}], s[36:37]
        s_and_b64 s[{ms}:{ms+1}], s[{ms}:{ms+1}], vcc""")
    for n in range(8):
        k.wait(lg=f"f{n}")
        k.i(f"v_mfma_f32_32x32x16_bf16 v[{DD}:{DD+15}], v[{FA+4*n}:{FA+4*n+3}], v[{FB+4*n}:{FB+4*n+3}], {'0' if n == 0 else vr(DD,16)}")
    k.i("v_lshlrev_b32 v22, 2, v0")
    for j in range(4):
        k.i(f"s_mov_b64 exec, s[{MS[j]}:{MS[j]+1}]")
        k.lg(f"ds_write_b128 v{16+j}, v[{DD+4*j}:{DD+4*j+3}] offset:32768")
    k.i(f"""s_mov_b64 exec, -1
    s_mul_i32 s33, s27, 5040
    s_add_u32 s33, s33, {KVA}
    s_add_u32 s8, s14, s33
    s_addc_u32 s9, s15, 0
    s_cmp_eq_u32 s27, 10
    s_movk_i32 s10, 5040
    s_cselect_b32 s10, 3360, s10
    s_mov_b32 s11, 0x20000""")
    k.wait(lg="all"); k.i("s_barrier")
    for i in range(5):
        k.lg(f"ds_read_b32 v{32+i}, v22 offset:{32768+1024*i}", f"d{i}")
    for i in range(5):
        k.wait(lg=f"d{i}")
        if i == 4: k.i("v_add_u32 v22, 4096, v22")
        k.vm(f"buffer_atomic_add_f32 v{32+i}, v22, s[8:11], 0 offen offset:{1024*(i%4)}", "out1")
    wo_issue(NEARLY + 4 - wq[0])
    k.wait(vm="out1")
    k.i("s_branch p1_fin")
    sv_end = snap(); wq_end = wq[0]
    k.label("p1_q")
    rest(sv); qi[0] = q0; wq[0] = 0
    loop(False)
    stamp(5)
    p2_addr(); f0b_check("p1_q_ok")
    k.i(f"""s_mul_i32 s33, s28, 40960
    s_sub_u32 s34, s27, 11
    s_lshl_b32 s34, s34, 13
    s_add_u32 s33, s33, s34
    s_add_u32 s33, s33, {PQ}""")
    for t in range(4):
        phi_pack(ACC + 16*t, PK + 8*t, 16, T, hook=(lambda: wo_issue(1) if wq[0] < NEARLY else None))
        for f in range(2):
            k.vm(f"buffer_store_dwordx4 v[{PK+8*t+4*f}:{PK+8*t+4*f+3}], v3, s[16:19], s33 offen offset:{(2048*t+1024*f) % 4096} {HO}", "out1")
        if t == 1: k.i("s_add_u32 s33, s33, 4096")
    wo_issue(NEARLY + 4 - wq[0])
    k.wait(vm="out1")
    assert wq[0] == wq_end
    k.label("p1_fin")
    stamp(6)
    k.i("s_barrier")
    signal(0xff, "v_lshlrev_b32 v7, 10, v1", 7, f"s_lshl_b32 s42, s45, 2\ns_add_u32 s42, s42, {F1}", 42, 6)
    wo_issue(50)
    srd(8, PX, 2621440)
    k.i(f"""v_and_b32 v10, 31, v1
    s_lshl_b32 s33, s29, 5
    v_add_u32 v10, s33, v10
    v_mul_u32_u24 v10, 1280, v10
    v_lshrrev_b32 v11, 5, v1
    v_lshl_add_u32 v10, v11, 3, v10
    s_mul_i32 s33, s30, 320
    s_lshl_b32 s34, s20, 4
    s_add_u32 s33, s33, s34""")
    for c in range(5):
        k.vm(f"buffer_load_dwordx2 v[{XR+2*c}:{XR+2*c+1}], v10, s[8:11], s33 offen offset:{64*c}")
    stamp(7)

def phase2():
    P2L = 102400; XR = 24
    k.i(f"""s_and_b32 s42, s2, 7
    s_lshl_b32 s42, s42, 10
    s_add_u32 s42, s42, {F1}
    s_mul_i32 s21, s20, 13440
    s_add_u32 s21, s21, {KVA}
    s_mul_i32 s23, s20, 15360
    s_add_u32 s23, s23, {P2L+64}
    s_mul_i32 s22, s29, 40960
    s_mul_i32 s33, s20, 10240
    s_add_u32 s22, s22, s33
    s_add_u32 s22, s22, {PQ}
    v_bfe_u32 v8, v1, 2, 3
    v_lshlrev_b32 v8, 2, v8
    v_and_b32 v9, 3, v1
    s_mov_b32 s33, 0x55524130
    s_mov_b32 s34, 0x55453120
    v_bfe_u32 v10, s33, v8, 4
    v_bfe_u32 v11, s34, v8, 4
    v_lshl_add_u32 v10, v10, 2, v9
    v_lshl_add_u32 v11, v11, 2, v9
    v_min_u32 v10, 20, v10
    v_min_u32 v11, 20, v11
    v_lshrrev_b32 v12, 5, v1
    v_lshlrev_b32 v12, 4, v12
    s_sub_u32 s33, s23, 16
    v_add_u32 v12, s33, v12
    v_mul_u32_u24 v10, 80, v10
    v_mul_u32_u24 v11, 80, v11
    v_add_u32 v10, v10, v12
    v_add_u32 v11, v11, v12
    s_mov_b32 s36, 0
    s_mov_b32 s37, -1
    s_mul_i32 s24, s20, 3072
    s_mul_i32 s25, s27, 122880
    s_add_u32 s25, s25, s24
    s_add_u32 s25, s25, {W1}""")
    poll(3, 42, 16, wide=True)
    stamp(8)
    for i in range(14):
        if i % 4 == 0: k.i(f"s_add_u32 m0, s23, {1024*i}")
        k.vm(f"buffer_load_dwordx4 v3, s[16:19], s21 offen offset:{1024*(i%4)} {HO} lds", "kv")
        if i % 4 == 3: k.i("s_add_u32 s21, s21, 4096")
    PQA = 200
    for kl in range(10):
        k.vm(f"buffer_load_dwordx4 a[{PQA+4*kl}:{PQA+4*kl+3}], v3, s[16:19], s22 offen offset:{1024*(kl%4)} {HO}", f"pq{kl}")
        if kl % 4 == 3: k.i("s_add_u32 s22, s22, 4096")
    w1q = [0]
    def w1_issue(n=1, lim=24):
        for _ in range(n):
            i = w1q[0]
            if i < lim:
                s, j = divmod(i, 3)
                if j == 0: k.i(f"s_add_u32 m0, s24, {s*12288}")
                k.vm(f"buffer_load_dwordx4 v3, s[16:19], s25 offen offset:{1024*j} {HO} lds", "w1")
                if j == 2: k.i("s_add_u32 s25, s25, 12288")
                w1q[0] += 1
    AF = 36; TT = 100; DT = 100; OG = 196; ACC = 36
    k.wait(vm="kv")
    jobs = []
    for hl in range(8):
        for u in range(2):
            for h2 in range(2):
                dg0 = -(hl % 4) + 4*u + 2*h2
                v0_ = 0 <= dg0 <= 4; v1_ = 0 <= dg0+1 <= 4
                d = AF + (2*hl+u)*4 + 2*h2
                jobs.append((d, None) if not (v0_ or v1_) else (d, hl*1680 + 16*(dg0+1), v0_, v1_, hl))
    n = 0
    for jb in jobs:
        if jb[1] is None: continue
        k.lg(f"ds_read_b128 v[{TT+4*n}:{TT+4*n+3}], v{10 + (jb[4] & 1)} offset:{jb[1]}", f"a{n}")
        n += 1
    for jb in jobs:
        if jb[1] is None: k.i(f"v_mov_b32 v{jb[0]}, 0\nv_mov_b32 v{jb[0]+1}, 0")
    n = 0
    for jb in jobs:
        d = jb[0]
        if jb[1] is None: continue
        k.wait(lg=f"a{n}")
        t = TT + 4*n
        k.i(f"v_cvt_pk_bf16_f32 v{d}, v{t}, v{t+1}\nv_cvt_pk_bf16_f32 v{d+1}, v{t+2}, v{t+3}")
        if not jb[3]: k.i(f"v_cndmask_b32 v{d}, v{d}, 0, s[36:37]\nv_cndmask_b32 v{d+1}, v{d+1}, 0, s[36:37]")
        if not jb[2]: k.i(f"v_cndmask_b32 v{d}, 0, v{d}, s[36:37]\nv_cndmask_b32 v{d+1}, 0, v{d+1}, s[36:37]")
        n += 1
    stamp(9)
    def omm(hl):
        t0 = hl + hl//4
        k.wait(vm=f"pq{t0+1}")
        d = vr(DT + 16*(hl % 4), 16)
        for u in range(2):
            k.i(f"v_mfma_f32_32x32x16_bf16 {d}, {vr(AF+(2*hl+u)*4, 4)}, {ar(PQA+4*(t0+u), 4)}, {'0' if u == 0 else d}")
    def opost(hl):
        p = hl // 2; odd = hl & 1
        D = DT + 16*(hl % 4); rc = 16 + 2*odd
        a, b = (D+8, D+12) if odd else (D+12, D+8)
        k.i(f"v_cndmask_b32 v{rc}, v{a}, v{b}, s[36:37]\nv_add_f32 v{rc}, s38, v{rc}\nv_rcp_f32 v{rc}, v{rc}")
        for h in range(6):
            k.i(f"v_pk_mul_f32 v[{D+2*h}:{D+2*h+1}], v[{D+2*h}:{D+2*h+1}], v[{rc}:{rc+1}] op_sel_hi:[1,0]")
        for j in range(2):
            g = OG + 2*(5*p + 2*odd + j)
            k.i(f"v_cvt_pk_bf16_f32 v{g}, v{D+4*j}, v{D+4*j+1}\nv_cvt_pk_bf16_f32 v{g+1}, v{D+4*j+2}, v{D+4*j+3}")
        g = OG + 2*(5*p + 4)
        if not odd:
            k.i(f"v_cvt_pk_bf16_f32 v{g}, v{D+8}, v{D+9}\nv_cvt_pk_bf16_f32 v{g+1}, v{D+10}, v{D+11}")
        else:
            k.i(f"v_cvt_pk_bf16_f32 v{D}, v{D+8}, v{D+9}\nv_cvt_pk_bf16_f32 v{D+1}, v{D+10}, v{D+11}")
            k.i(f"v_cndmask_b32 v{g}, v{g}, v{D}, s[36:37]\nv_cndmask_b32 v{g+1}, v{g+1}, v{D+1}, s[36:37]")
    omm(0); omm(1)
    for hl in range(8):
        if hl + 2 < 8: omm(hl + 2)
        opost(hl)
    stamp(10)
    for u in range(10):
        for c in range(5):
            d = vr(ACC + 16*c, 16)
            k.i(f"v_mfma_f32_32x32x16_bf16 {d}, {ar(4*(5*u+c), 4)}, {vr(OG+4*u, 4)}, {'0' if u == 0 else d}")
            if c in (0, 2, 4) : w1_issue()
    w1_issue(24)
    stamp(11)
    k.i(f"s_sub_u32 s33, s23, 64\nv_add_u32 v13, s33, v3")
    for j in range(1, 4):
        k.i(f"s_sub_u32 s33, s20, {j}\ns_and_b32 s33, s33, 3\ns_mul_i32 s33, s33, 15360\ns_add_u32 s33, s33, {P2L + (j-1)*5120}\nv_add_u32 v{13+j}, s33, v3")
    for j in range(1, 4):
        for c in range(5):
            r = ACC + 16*c + 4*j
            k.lg(f"ds_write_b128 v13, v[{r}:{r+3}] offset:{(j-1)*5120 + 1024*c}")
    k.wait(lg="all"); k.i("s_barrier")
    RR = 120
    for j in range(1, 4):
        for c in range(5):
            r = RR + 20*(j-1) + 4*c
            k.lg(f"ds_read_b128 v[{r}:{r+3}], v{13+j} offset:{1024*c}", f"r{j}_{c}")
    XF = 184
    k.i("s_mov_b32 s33, 0xffff0000")
    for j in range(10):
        k.i(f"v_lshlrev_b32 v{XF+2*j}, 16, v{XR+j}\nv_and_b32 v{XF+2*j+1}, s33, v{XR+j}")
    for c in range(5):
        for h in range(2):
            d = XF + 4*c + 2*h; a = ACC + 16*c + 2*h
            k.i(f"v_pk_add_f32 v[{d}:{d+1}], v[{d}:{d+1}], v[{a}:{a+1}]")
    k.i(f"""s_mul_i32 s34, s29, 40
    s_mul_i32 s35, s30, 10
    s_add_u32 s34, s34, s35
    s_lshr_b32 s35, s20, 1
    s_add_u32 s34, s34, s35
    s_lshl_b32 s34, s34, 10
    s_and_b32 s35, s20, 1
    s_lshl_b32 s35, s35, 9
    s_add_u32 s34, s34, s35
    s_add_u32 s34, s34, {HH}
    v_and_b32 v8, 31, v1
    v_lshrrev_b32 v9, 5, v1
    v_lshlrev_b32 v12, 3, v8
    v_lshlrev_b32 v8, 4, v8
    v_lshl_add_u32 v8, v9, 3, v8""")
    for j in range(1, 4):
        for c in range(5):
            k.wait(lg=f"r{j}_{c}")
            for h in range(2):
                d = XF + 4*c + 2*h; a = RR + 20*(j-1) + 4*c + 2*h
                k.i(f"v_pk_add_f32 v[{d}:{d+1}], v[{d}:{d+1}], v[{a}:{a+1}]")
    k.i("s_barrier")
    HP = 24
    for c in range(5):
        k.i(f"v_cvt_pk_bf16_f32 v{HP+2*c}, v{XF+4*c}, v{XF+4*c+1}\nv_cvt_pk_bf16_f32 v{HP+2*c+1}, v{XF+4*c+2}, v{XF+4*c+3}")
        k.vm(f"buffer_store_dwordx2 v[{HP+2*c}:{HP+2*c+1}], v8, s[16:19], s34 offen offset:{2048*(c%2)} {HO}")
        if c % 2 == 1: k.i("s_add_u32 s34, s34, 4096")
    for j in range(10):
        k.i(f"v_lshlrev_b32 v{XF+2*j}, 16, v{HP+j}\nv_and_b32 v{XF+2*j+1}, s33, v{HP+j}")
    k.i(f"v_pk_add_f32 v[16:17], v[{XF}:{XF+1}], v[{XF+2}:{XF+3}]")
    k.i(f"v_pk_mul_f32 v[18:19], v[{XF}:{XF+1}], v[{XF}:{XF+1}]")
    k.i(f"v_pk_fma_f32 v[18:19], v[{XF+2}:{XF+3}], v[{XF+2}:{XF+3}], v[18:19]")
    for j in range(2, 10):
        k.i(f"v_pk_add_f32 v[16:17], v[16:17], v[{XF+2*j}:{XF+2*j+1}]")
        k.i(f"v_pk_fma_f32 v[18:19], v[{XF+2*j}:{XF+2*j+1}], v[{XF+2*j}:{XF+2*j+1}], v[18:19]")
    k.i(f"""v_add_f32 v16, v16, v17
    v_add_f32 v17, v18, v19
    v_mov_b32 v18, v16
    v_mov_b32 v19, v17
    s_lshl_b32 s34, s29, 4
    s_lshl_b32 s35, s30, 2
    s_add_u32 s34, s34, s35
    s_add_u32 s34, s34, s20
    v_permlane32_swap_b32 v16, v18
    v_permlane32_swap_b32 v17, v19
    s_lshl_b32 s34, s34, 8
    s_add_u32 s34, s34, {ST}
    v_pk_add_f32 v[16:17], v[16:17], v[18:19]
    s_mov_b64 exec, 0xffffffff""")
    k.vm(f"buffer_store_dwordx2 v[16:17], v12, s[16:19], s34 offen {HO}", "out2")
    k.i("s_mov_b64 exec, -1")
    w1_issue(6, lim=30)
    k.wait(vm="out2")
    stamp(12)
    k.i("s_barrier")
    sig_row(F2, 6)

W2Q = [0]
def w2_issue(n):
    for _ in range(n):
        i = W2Q[0]
        if i < 60:
            k.vm(f"buffer_load_dwordx4 a[{4*i}:{4*i+3}], v3, s[16:19], s31 offen offset:{1024*(i%4)} {HO}", "w2")
            if i % 4 == 3: k.i("s_add_u32 s31, s31, 4096")
            W2Q[0] += 1

def phase3():
    TB = 122880
    k.i(f"""s_and_b32 s29, s27, 7
    s_lshr_b32 s30, s27, 3
    s_lshl_b32 s30, s30, 2
    s_and_b32 s31, s29, 3
    s_add_u32 s30, s30, s31
    s_lshr_b32 s29, s29, 2
    s_lshl_b32 s31, s26, 1
    s_add_u32 s29, s29, s31
    s_lshl_b32 s31, s30, 2
    s_add_u32 s31, s31, s20
    s_mul_i32 s31, s31, 61440
    s_add_u32 s31, s31, {W2}
    v_lshlrev_b32 v16, 2, v0
    v_lshlrev_b32 v17, 1, v0
    s_mul_i32 s33, s27, 384
    s_add_u32 s33, s33, {CS}
    s_mul_i32 s34, s27, 192""")
    srd(8, PB1, 3072)
    for j in range(8):
        k.vm(f"buffer_load_dword v{20+j}, v16, s[16:19], s33 offen {HO}")
        k.i("s_add_u32 s33, s33, 6144")
    k.vm("buffer_load_ushort v28, v17, s[8:11], s34 offen", "tab")
    N2 = int(OPT.get("w2_win2", 36))
    w2_issue(8)
    k.wait(vm="tab")
    for j in range(1, 8): k.i(f"v_add_f32 v20, v20, v{20+j}")
    k.i(f"v_lshlrev_b32 v28, 16, v28\nv_add_u32 v16, {TB}, v16")
    k.lg("ds_write_b32 v16, v20")
    k.lg("ds_write_b32 v16, v28 offset:1024")
    w2_issue(N2 - 8)
    k.i(f"""s_mul_i32 s21, s28, 40960
    s_add_u32 s21, s21, {HH}
    v_and_b32 v6, 15, v1
    v_lshlrev_b32 v6, 2, v6
    s_lshl_b32 s42, s26, 7
    s_add_u32 s42, s42, {F2}
    v_and_b32 v8, 31, v1
    v_lshrrev_b32 v7, 5, v1
    v_lshlrev_b32 v8, 3, v8
    v_lshl_add_u32 v8, v7, 8, v8
    s_lshl_b32 s33, s28, 12
    s_add_u32 s33, s33, {ST}
    v_lshlrev_b32 v14, 4, v7
    v_add_u32 v14, {TB}, v14
    v_bfe_u32 v15, v1, 4, 1
    v_mul_u32_u24 v15, 49152, v15
    v_and_b32 v16, 15, v1
    v_lshl_add_u32 v15, v16, 4, v15
    v_lshl_add_u32 v15, v7, 9, v15
    s_mul_i32 s34, s28, 98304
    s_mul_i32 s35, s27, 3072
    s_add_u32 s34, s34, s35
    s_add_u32 s34, s34, {H1}""")
    k.wait(lg="all")
    poll(6, 42, 9)
    k.i("s_barrier")
    stamp(13)
    ACC = 40; WB = 88; HR = 124; NR = int(OPT["pre3"]); SR = 20
    hq = [0]
    def h_issue(n=1):
        for _ in range(n):
            i = hq[0]
            if i < 40:
                r = HR + 4*(i % NR)
                k.vm(f"buffer_load_dwordx4 v[{r}:{r+3}], v3, s[16:19], s21 offen offset:{1024*(i%4)} {HO}", f"h{i}")
                if i % 4 == 3: k.i("s_add_u32 s21, s21, 4096")
                hq[0] += 1
    def reads(ks):
        for j in range(3):
            o = (ks*3 + j) * 1024
            r = WB + (ks % 3)*12 + 4*j
            k.lg(f"ds_read_b128 v[{r}:{r+3}], v{3 + o//65536} offset:{o % 65536}", f"w{ks}")
    h_issue(4)
    for j in range(8):
        k.vm(f"buffer_load_dwordx2 v[{SR+2*j}:{SR+2*j+1}], v8, s[16:19], s33 offen offset:{512*j} {HO}", "stats")
    h_issue(NR - 5)
    reads(0); reads(1)
    for ks in range(40):
        k.wait(vm=f"h{ks}", lg=f"w{ks}")
        for j in range(3):
            d = vr(ACC + 16*j, 16)
            k.i(f"v_mfma_f32_32x32x16_bf16 {d}, {vr(WB + (ks % 3)*12 + 4*j, 4)}, {vr(HR + 4*(ks % NR), 4)}, {'0' if ks == 0 else d}")
            if j == 0: h_issue()
            if j == 1 and ks + 2 < 40: reads(ks + 2)
        if ks == 6:
            for j in range(1, 8): k.i(f"v_pk_add_f32 v[{SR}:{SR+1}], v[{SR}:{SR+1}], v[{SR+2*j}:{SR+2*j+1}]")
        if ks == 7:
            k.i(f"""v_mov_b32 v10, v{SR}
            v_mov_b32 v11, v{SR+1}
            s_nop 0
            v_permlane32_swap_b32 v{SR}, v10
            v_permlane32_swap_b32 v{SR+1}, v11
            v_pk_add_f32 v[8:9], v[{SR}:{SR+1}], v[10:11]
            v_mul_f32 v8, 0x3acccccd, v8
            v_mul_f32 v9, 0x3acccccd, v9""")
        if ks == 8:
            k.i("v_fma_f32 v9, -v8, v8, v9\nv_max_f32 v9, 0, v9")
            bf16r(8, 8); bf16r(9, 9)
            k.i("v_add_f32 v9, 0x3727c5ac, v9")
        if ks == 9:
            bf16r(9, 9)
            k.i("v_sqrt_f32 v9, v9")
            bf16r(9, 9)
            k.i("v_rcp_f32 v10, v9\nv_mul_f32 v12, v8, v10\nv_sub_f32 v12, 0, v12")
    stamp(14)
    CT = 88; BT = 136; PK = 184
    for n in range(12):
        nt, j = divmod(n, 4)
        k.lg(f"ds_read_b128 v[{CT+4*n}:{CT+4*n+3}], v14 offset:{128*nt+32*j}")
        k.lg(f"ds_read_b128 v[{BT+4*n}:{BT+4*n+3}], v14 offset:{1024+128*nt+32*j}", f"t{n}")
    for n in range(12):
        nt, j = divmod(n, 4)
        k.wait(lg=f"t{n}")
        a = ACC + 4*n; c = CT + 4*n; b = BT + 4*n
        for h in range(2):
            k.i(f"v_pk_fma_f32 v[{b+2*h}:{b+2*h+1}], v[{c+2*h}:{c+2*h+1}], v[12:13], v[{b+2*h}:{b+2*h+1}] op_sel_hi:[1,0,1]")
        for h in range(2):
            k.i(f"v_pk_fma_f32 v[{a+2*h}:{a+2*h+1}], v[{a+2*h}:{a+2*h+1}], v[10:11], v[{b+2*h}:{b+2*h+1}] op_sel_hi:[1,0,1]")
        for h in range(4): k.i(f"v_max_f32 v{a+h}, 0, v{a+h}")
        for h in range(2):
            k.i(f"v_pk_mul_f32 v[{a+2*h}:{a+2*h+1}], v[{a+2*h}:{a+2*h+1}], v[{a+2*h}:{a+2*h+1}]")
        for h in range(2):
            k.i(f"v_cvt_pk_bf16_f32 v{PK+2*n+h}, v{a+2*h}, v{a+2*h+1}")
        if j % 2 == 1:
            e = j // 2
            k.vm(f"buffer_store_dwordx4 v[{PK+8*nt+4*e}:{PK+8*nt+4*e+3}], v15, s[16:19], s34 offen offset:{1024*nt+256*e} {HO}", "out3")
    w2_issue(4)
    k.wait(vm="out3")
    stamp(15)
    k.i("s_barrier")
    sig_row(F3, 6)

def phase4():
    w2_issue(60)
    HR = 20; BR = 30; ACC = 40; RING = 120; NB = int(OPT["nb4"])
    srd(8, PB2, 1280)
    k.i(f"""v_and_b32 v4, 15, v1
    v_lshrrev_b32 v5, 4, v1
    s_lshl_b32 s33, s29, 1
    s_lshr_b32 s35, s20, 1
    s_add_u32 s33, s33, s35
    s_mul_i32 s33, s33, 40
    s_mul_i32 s35, s30, 5
    s_add_u32 s33, s33, s35
    s_lshl_b32 s33, s33, 10
    s_add_u32 s33, s33, {HH}
    s_and_b32 s35, s20, 1
    s_lshl_b32 s35, s35, 8
    s_add_u32 s33, s33, s35
    v_lshrrev_b32 v8, 1, v5
    v_lshlrev_b32 v8, 9, v8
    v_lshl_add_u32 v8, v4, 4, v8
    v_and_b32 v9, 1, v5
    v_lshl_add_u32 v8, v9, 3, v8
    v_add_u32 v9, 4096, v8
    v_lshlrev_b32 v17, 3, v5
    s_mul_i32 s34, s30, 160""")
    for c in range(5):
        k.vm(f"buffer_load_dwordx2 v[{HR+2*c}:{HR+2*c+1}], v{8 if c < 4 else 9}, s[16:19], s33 offen offset:{1024*(c%4)} {HO}")
    for c in range(5):
        k.vm(f"buffer_load_dwordx2 v[{BR+2*c}:{BR+2*c+1}], v17, s[8:11], s34 offen offset:{32*c}")
    k.i(f"""s_mul_i32 s21, s29, 196608
    s_mul_i32 s22, s20, 12288
    s_add_u32 s21, s21, s22
    s_add_u32 s21, s21, {H1}
    s_lshl_b32 s35, s29, 6
    s_lshl_b32 s33, s20, 4
    s_add_u32 s35, s35, s33
    v_add_u32 v6, s35, v4
    v_mul_u32_u24 v7, 1280, v6
    v_lshl_add_u32 v7, v5, 3, v7
    v_lshlrev_b32 v6, 2, v4
    s_lshl_b32 s42, s26, 7
    s_add_u32 s42, s42, {F3}
    s_mul_i32 s33, s20, 15360
    v_add_u32 v13, s33, v3""")
    for j in range(4):
        k.i(f"s_add_u32 s33, s20, {j}\ns_and_b32 s33, s33, 3\ns_mul_i32 s33, s33, 49152\nv_add_u32 v{8+j}, s33, v3")
    for j in range(1, 4):
        k.i(f"s_sub_u32 s33, s20, {j}\ns_and_b32 s33, s33, 3\ns_mul_i32 s33, s33, 15360\ns_add_u32 s33, s33, {(j-1)*5120}\nv_add_u32 v{13+j}, s33, v3")
    srd(8, POUT, 2621440)
    poll(6, 42, 12)
    stamp(16)
    tq = [0]
    def issue(n=1):
        for _ in range(n):
            i = tq[0]
            if i < 48:
                t, j = divmod(i, 4)
                r = RING + 16*(t % NB) + 4*j
                k.vm(f"buffer_load_dwordx4 v[{r}:{r+3}], v{8+j}, s[16:19], s21 offen offset:{1024*(t%4)} {HO}", f"s{t}_{j}")
                if i % 16 == 15: k.i("s_add_u32 s21, s21, 4096")
                tq[0] += 1
    issue(4*(NB-1))
    XF = 216
    k.i("s_mov_b32 s33, 0xffff0000")
    for j in range(10):
        k.i(f"v_lshlrev_b32 v{XF+2*j}, 16, v{HR+j}\nv_and_b32 v{XF+2*j+1}, s33, v{HR+j}")
        k.i(f"v_lshlrev_b32 v{XF+20}, 16, v{BR+j}\nv_and_b32 v{XF+21}, s33, v{BR+j}")
        k.i(f"v_pk_add_f32 v[{XF+2*j}:{XF+2*j+1}], v[{XF+2*j}:{XF+2*j+1}], v[{XF+20}:{XF+21}]")
    for t in range(12):
        for j in range(4):
            k.wait(vm=f"s{t}_{j}")
            for c in range(5):
                d = vr(ACC + (5*j+c)*4, 4)
                k.i(f"v_mfma_f32_16x16x32_bf16 {d}, {ar(4*(5*t+c), 4)}, {vr(RING+16*(t%NB)+4*j, 4)}, {'0' if t == 0 else d}")
                if c == 1: issue()
        if t == 0: pass
    stamp(17)
    for j in range(1, 4):
        for c in range(5):
            r = ACC + 20*j + 4*c
            k.lg(f"ds_write_b128 v13, v[{r}:{r+3}] offset:{(j-1)*5120 + 1024*c}")
    for c in range(5):
        for h in range(2):
            d = XF + 4*c + 2*h; a = ACC + 4*c + 2*h
            k.i(f"v_pk_add_f32 v[{d}:{d+1}], v[{d}:{d+1}], v[{a}:{a+1}]")
    k.wait(lg="all"); k.i("s_barrier")
    RR = 120
    for j in range(1, 4):
        for c in range(5):
            r = RR + 20*(j-1) + 4*c
            k.lg(f"ds_read_b128 v[{r}:{r+3}], v{13+j} offset:{1024*c}", f"r{j}_{c}")
    for j in range(1, 4):
        for c in range(5):
            k.wait(lg=f"r{j}_{c}")
            for h in range(2):
                d = XF + 4*c + 2*h; a = RR + 20*(j-1) + 4*c + 2*h
                k.i(f"v_pk_add_f32 v[{d}:{d+1}], v[{d}:{d+1}], v[{a}:{a+1}]")
            if j == 3:
                k.i(f"v_cvt_pk_bf16_f32 v{HR+2*c}, v{XF+4*c}, v{XF+4*c+1}\nv_cvt_pk_bf16_f32 v{HR+2*c+1}, v{XF+4*c+2}, v{XF+4*c+3}")
                k.vm(f"buffer_store_dwordx2 v[{HR+2*c}:{HR+2*c+1}], v7, s[8:11], s34 offen offset:{32*c}")
    k.i(f"""s_or_b32 s33, s45, s20
    s_cmp_lg_u32 s33, 0
    s_cbranch_scc1 p4_noep
    v_mov_b32 v4, s44
    v_mov_b32 v5, {CB}
    s_mov_b64 exec, 1
    buffer_store_dword v4, v5, s[16:19], 0 offen sc1
    s_mov_b64 exec, -1""")
    k.label("p4_noep")

def stamp_out():
    if not OPT["stamps"]: return
    n = NSTAMP
    k.i("s_waitcnt vmcnt(0) lgkmcnt(0)")
    k.i(f"s_memrealtime s[{64+2*n}:{65+2*n}]")
    k.i("s_waitcnt lgkmcnt(0)")
    k.i(f"s_lshl_b32 s3, s45, 2\ns_add_u32 s3, s3, s20\ns_lshl_b32 s3, s3, 7\ns_add_u32 s3, s3, 0x2000000\nv_mov_b32 v1, s3")
    for j in range(n+1): k.i(f"v_mov_b32 v{2+j}, s{64+2*j}")
    k.i("s_mov_b64 exec, 1")
    for j in range(n+1): k.i(f"global_store_dword v1, v{2+j}, s[14:15] offset:{4*j}")
    if OPT.get("dbgmax"):
        k.i("s_load_dwordx2 s[4:5], s[0:1], 72\nv_mov_b32 v1, 0\nv_not_b32 v2, v2\ns_waitcnt lgkmcnt(0)")
        sel = [0, 1, 2, 4, 5, 6, 7, 8, 9, 11, 12, 13, 14, 15, 16, 18]
        for j, q in enumerate(sel): k.i(f"global_atomic_umax v1, v{2+q}, s[4:5] offset:{4*j}")

def emit(path):
    global k
    k = Kern(KN)
    phase0(); phase1(); phase2(); phase3(); phase4(); stamp_out()
    k.label("kend"); k.i("s_endpgm")
    body, added = hazard_pass(k.L)
    print("instrs", len(body), "nop states added", added, file=sys.stderr)
    out = ["; persistent single-launch version; generated by dev/gen2.py",
           "; @launch grid=(256,1,1) block=(256,1,1) lds=163840",
           '.amdgcn_target "amdgcn-amd-amdhsa--gfx950"', ".text", f".globl {KN}", ".p2align 8", f".type {KN},@function", f"{KN}:"]
    out += [("" if (l.endswith(":") or l.startswith(";")) else "    ") + l for l in body]
    out += [".p2align 8", ".fill 16384, 4, 0xbf800000"] if False else []
    out += ['.section .rodata,"a"', ".p2align 6", f".amdhsa_kernel {KN}", "  .amdhsa_next_free_vgpr 512", "  .amdhsa_next_free_sgpr 102",
            "  .amdhsa_accum_offset 256", "  .amdhsa_group_segment_fixed_size 0", "  .amdhsa_kernarg_size 88",
            "  .amdhsa_user_sgpr_count 2", "  .amdhsa_user_sgpr_kernarg_segment_ptr 1",
            "  .amdhsa_system_sgpr_workgroup_id_x 1", ".end_amdhsa_kernel"]
    open(path, "w").write("\n".join(out) + "\n")

if __name__ == "__main__":
    for a in sys.argv[2:]:
        kk, v = a.split("=")
        OPT[kk] = {"True": True, "False": False}.get(v, v.replace("_", " "))
    emit(sys.argv[1])
```

```python
import sys
from asmlib import *

NAME = "sequential_preLN__linear_attn_block__dense_activation_squared_relu__prompt"
KN = NAME + "_kernel"
CB = 0x0
FX = CB + 0x1000; FW = CB + 0x2000; F0B = CB + 0x3000; F1 = CB + 0x4000; F2 = CB + 0x6000; F3 = CB + 0x7000
CS = 0x10000; KVA = 0x20000; ST = 0x40000
XN = 0x100000; WQ = 0x380000; WO = 0x600000; W1 = 0x700000; W2 = 0x900000
PQ = 0xB00000; HH = 0xE00000; H1 = 0x1200000
WSZ = 0x1800000
LOG2E = 0x3fb8aa3b
OPT = dict(stamps=False, cold="nt", pre1=3, pre3=12, nb4=6)
HO = "sc1"

def magic(C, maxq):
    for sh in range(4, 24):
        m = -(-(1 << sh) // C)
        if m * maxq < (1 << 32) and m < (1 << 24) and all((q * m) >> sh == q // C for q in range(maxq)): return m, sh
    raise ValueError

k = None
def srd(d, base, size):
    k.i(f"s_mov_b32 s{d}, s{base}\ns_mov_b32 s{d+1}, s{base+1}\ns_mov_b32 s{d+2}, {size}\ns_mov_b32 s{d+3}, 0x20000")
def bf16r(d, s):
    k.i(f"v_cvt_pk_bf16_f32 v{d}, v{s}, v{s}\nv_lshlrev_b32 v{d}, 16, v{d}")
NSTAMP = 18
def stamp(idx, grp=None):
    if not OPT["stamps"]: return
    f = OPT.get("focus")
    if grp is None and f is not None and idx >= 5 and f == "p0": return
    if grp is not None and grp != f: return
    k.i(f"s_memrealtime s[{64+2*idx}:{65+2*idx}]")
def snap(): return (k.vm_n, dict(k.vm_tags), k.vm_done, k.lg_n, dict(k.lg_tags), k.lg_done)
def rest(s): k.vm_n, k.vm_tags, k.vm_done, k.lg_n, k.lg_tags, k.lg_done = s[0], dict(s[1]), s[2], s[3], dict(s[4]), s[5]

PX, PWQ, PWO, PW1, PB1, PW2, PB2, POUT = 48, 50, 52, 56, 58, 60, 62, 46

npoll = 0
def poll(vaddr, soff, vt, wide=False):
    global npoll
    npoll += 1
    L = f"poll{npoll}"
    k.i("s_mov_b32 s43, 0x20000")
    k.label(L)
    if wide:
        k.i(f"buffer_load_dwordx4 v[{vt}:{vt+3}], v{vaddr}, s[16:19], s{soff} offen sc1")
        k.i("s_waitcnt vmcnt(0)")
        check4(vt)
    else:
        k.i(f"buffer_load_dword v{vt}, v{vaddr}, s[16:19], s{soff} offen sc1")
        k.i("s_waitcnt vmcnt(0)")
        k.i(f"v_cmp_ne_u32 vcc, s44, v{vt}")
    k.i(f"s_cbranch_vccz {L}d\ns_sub_u32 s43, s43, 1\ns_cbranch_scc0 {L}")
    k.label(L + "d")
    k.vm_done = k.vm_n
def check4(vt):
    k.i(f"v_xor_b32 v{vt}, s44, v{vt}\nv_xor_b32 v{vt+1}, s44, v{vt+1}\nv_xor_b32 v{vt+2}, s44, v{vt+2}\nv_xor_b32 v{vt+3}, s44, v{vt+3}")
    k.i(f"v_or3_b32 v{vt}, v{vt}, v{vt+1}, v{vt+2}\nv_or_b32 v{vt}, v{vt}, v{vt+3}\nv_cmp_ne_u32 vcc, 0, v{vt}")

nsig = 0
def signal(lanes_mask, vaddr_code, vaddr, soff_code, soff, vt):
    global nsig
    nsig += 1
    L = f"sig{nsig}"
    k.i(f"s_cmp_lg_u32 s20, 0\ns_cbranch_scc1 {L}")
    k.i(vaddr_code); k.i(soff_code)
    k.i(f"v_mov_b32 v{vt}, s44\ns_mov_b64 exec, {lanes_mask}")
    k.i(f"buffer_store_dword v{vt}, v{vaddr}, s[16:19], s{soff} offen sc1")
    k.i("s_mov_b64 exec, -1")
    k.label(L)
    k.vm_n += 0
def sig_row(base, vt):
    signal(1, f"v_mov_b32 v{vt+1}, 0", vt+1, f"s_lshl_b32 s42, s26, 7\ns_lshl_b32 s43, s27, 2\ns_add_u32 s42, s42, s43\ns_add_u32 s42, s42, {base}", 42, vt)

def phi_pack(src, dst, n, T, hook=None):
    for b in range(0, n, 4):
        a = src + b
        k.i(f"v_pk_mul_f32 v[{T}:{T+1}], v[{a}:{a+1}], s[40:41]")
        k.i(f"v_pk_mul_f32 v[{T+2}:{T+3}], v[{a+2}:{a+3}], s[40:41]")
        for j in range(4): k.i(f"v_exp_f32_e64 v{T+j}, v{T+j} clamp")
        for j in range(4): k.i(f"v_max_f32 v{T+4+j}, 0, v{a+j}")
        k.i(f"v_pk_add_f32 v[{T}:{T+1}], v[{T}:{T+1}], s[38:39]")
        k.i(f"v_pk_add_f32 v[{T+2}:{T+3}], v[{T+2}:{T+3}], s[38:39]")
        k.i(f"v_pk_add_f32 v[{T}:{T+1}], v[{T}:{T+1}], v[{T+4}:{T+5}]")
        k.i(f"v_pk_add_f32 v[{T+2}:{T+3}], v[{T+2}:{T+3}], v[{T+6}:{T+7}]")
        k.i(f"v_cvt_pk_bf16_f32 v{dst+b//2}, v{T}, v{T+1}")
        k.i(f"v_cvt_pk_bf16_f32 v{dst+b//2+1}, v{T+2}, v{T+3}")
        if hook: hook()

ROWOFF = [[0, 4, 20, 24, 8], [12, 16, 28, 32, 36]]

def phase0():
    cold = OPT["cold"]
    stamp(0)
    k.i("""s_getpc_b64 s[4:5]
    pcl:
    s_lshr_b32 s6, s2, 3
    s_and_b32 s6, s6, 3
    s_lshl_b32 s6, s6, 13
    v_lshl_add_u32 v30, v0, 7, s6
    v_min_u32 v30, kend-pcl, v30
    v_cmp_gt_u32 vcc, 64, v0
    s_and_saveexec_b64 s[6:7], vcc
    s_cbranch_execz p0_nopf
    global_load_dword v31, v30, s[4:5]
    p0_nopf:
    s_mov_b64 exec, s[6:7]""")
    k.i(f"""s_load_dwordx16 s[48:63], s[0:1], 0
    s_load_dwordx2 s[46:47], s[0:1], 64
    s_load_dwordx2 s[14:15], s[0:1], 80
    s_cmp_ge_u32 s2, 256
    s_cbranch_scc1 kend
    v_and_b32 v1, 63, v0
    v_lshrrev_b32 v2, 6, v0
    v_lshlrev_b32 v3, 4, v1
    v_readfirstlane_b32 s20, v2
    s_and_b32 s24, s2, 7
    s_lshr_b32 s25, s2, 3
    s_lshr_b32 s26, s24, 1
    s_lshl_b32 s26, s26, 2
    s_lshr_b32 s27, s25, 3
    s_add_u32 s26, s26, s27
    s_and_b32 s27, s24, 1
    s_lshl_b32 s27, s27, 3
    s_and_b32 s25, s25, 7
    s_add_u32 s27, s27, s25
    s_lshl_b32 s45, s26, 4
    s_add_u32 s45, s45, s27
    s_waitcnt lgkmcnt(0)
    s_add_u32 s14, s14, {int(OPT.get('wsbase', 0))}
    s_addc_u32 s15, s15, 0
    s_load_dword s44, s[14:15], {CB}""")
    stamp(9, "p0")
    srd(16, 14, WSZ)
    k.i("s_cmp_ge_u32 s20, 2\ns_cbranch_scc1 p0_wq_issue")
    X = 8; F = 32; T = 72
    srd(8, PX, 2621440)
    k.i("""v_lshrrev_b32 v4, 4, v0
    v_and_b32 v5, 15, v0
    s_lshl_b32 s21, s45, 3
    v_add_u32 v6, s21, v4
    v_mul_u32_u24 v6, 1280, v6
    v_lshl_add_u32 v6, v5, 4, v6""")
    for i in range(5):
        k.i(f"buffer_load_dwordx4 v[{X+4*i}:{X+4*i+3}], v6, s[8:11], 0 offen offset:{256*i} {cold}")
    k.i("s_branch p0_unit_issue")
    k.label("p0_wq_issue")
    srd(8, PWQ, 2457600)
    m, sh = magic(20, 320)
    k.i(f"""s_mul_i32 s21, s27, 120
    s_add_u32 s22, s21, 2560
    s_add_u32 s21, s21, 1280
    s_sub_u32 s23, s27, 11
    s_lshl_b32 s23, s23, 8
    s_add_u32 s24, s23, 128
    s_cmp_ge_u32 s27, 11
    s_cselect_b32 s21, s23, s21
    s_cselect_b32 s22, s24, s22
    s_and_b32 s28, s21, 8
    s_and_b32 s21, s21, 0xfffffff0
    s_and_b32 s22, s22, 0xfffffff0
    s_sub_u32 s22, s22, 160
    s_sub_u32 s29, s20, 2
    s_lshl_b32 s30, s29, 4
    s_add_u32 s30, s30, s26
    s_mul_i32 s31, s30, 61440
    s_mul_i32 s32, s29, 5120
    v_mov_b32 v10, s21
    v_mov_b32 v11, s22""")
    for i in range(5):
        k.i(f"""v_add_u32 v4, {64*i}, v1
        v_mul_u32_u24 v5, {m}, v4
        v_lshrrev_b32 v5, {sh}, v5
        v_mul_u32_u24 v6, 20, v5
        v_sub_u32 v6, v4, v6
        v_cmp_gt_u32 vcc, 10, v6
        v_mul_u32_u24 v5, 3840, v5
        v_lshl_add_u32 v5, v6, 4, v5
        v_cndmask_b32 v6, v11, v10, vcc
        v_add_u32 v{12+i}, v5, v6
        s_add_u32 m0, s32, {1024*i}
        buffer_load_dwordx4 v{12+i}, s[8:11], s31 offen {cold} lds""")
    k.i(f"""s_cmp_eq_u32 s20, 2
    s_cselect_b32 s33, 1, 0
    s_cmp_lt_u32 s26, 8
    s_cselect_b32 s33, s33, 0
    s_cmp_eq_u32 s33, 0
    s_cbranch_scc1 p0_unit_issue
    s_add_u32 s31, s31, {32*61440}""")
    for i in range(5):
        k.i(f"s_mov_b32 m0, {10240+1024*i}\nbuffer_load_dwordx4 v{12+i}, s[8:11], s31 offen {cold} lds")
    k.label("p0_unit_issue")
    stamp(5, "p0")
    k.label("p0_proc")
    stamp(6, "p0")
    k.i("""v_bfe_u32 v28, v1, 2, 2
    v_and_b32 v29, 3, v1
    v_lshrrev_b32 v30, 4, v1
    s_cmp_ge_u32 s20, 2
    s_cbranch_scc1 p0_wq_proc""")
    k.i(f"""s_lshl_b32 s21, s26, 2
    s_lshr_b32 s22, s27, 2
    s_add_u32 s21, s21, s22
    s_mul_i32 s21, s21, 40960
    s_and_b32 s22, s27, 3
    s_lshl_b32 s22, s22, 7
    s_add_u32 s21, s21, s22
    s_add_u32 s21, s21, {XN}
    v_lshrrev_b32 v7, 1, v5
    v_lshlrev_b32 v7, 10, v7
    v_and_b32 v6, 1, v5
    v_lshlrev_b32 v6, 9, v6
    v_lshl_add_u32 v7, v4, 4, v7
    v_add_u32 v7, v7, v6
    s_mov_b32 s23, 0xffff0000
    s_waitcnt vmcnt(0)""")
    stamp(7, "p0")
    for j in range(20):
        k.i(f"v_lshlrev_b32 v{F+2*j}, 16, v{X+j}\nv_and_b32 v{F+2*j+1}, s23, v{X+j}")
    k.i(f"v_pk_add_f32 v[112:113], v[{F}:{F+1}], v[{F+2}:{F+3}]")
    k.i(f"v_pk_add_f32 v[114:115], v[{F+4}:{F+5}], v[{F+6}:{F+7}]")
    for j in range(4, 20):
        a = 112 + 2 * (j & 1)
        k.i(f"v_pk_add_f32 v[{a}:{a+1}], v[{a}:{a+1}], v[{F+2*j}:{F+2*j+1}]")
    k.i("v_pk_add_f32 v[112:113], v[112:113], v[114:115]")
    k.i("v_add_f32 v112, v112, v113")
    def rowred(r):
        for s in (8, 4, 2, 1):
            k.i(f"v_add_f32_dpp v{r}, v{r}, v{r} row_ror:{s} row_mask:0xf bank_mask:0xf")
    rowred(112)
    k.i("v_mul_f32 v112, 0x3acccccd, v112")
    for j in range(20):
        k.i(f"v_pk_add_f32 v[{T+2*j}:{T+2*j+1}], v[{F+2*j}:{F+2*j+1}], v[112:113] op_sel_hi:[1,0] neg_lo:[0,1] neg_hi:[0,1]")
    k.i(f"v_pk_mul_f32 v[114:115], v[{T}:{T+1}], v[{T}:{T+1}]")
    k.i(f"v_pk_mul_f32 v[116:117], v[{T+2}:{T+3}], v[{T+2}:{T+3}]")
    for j in range(2, 20):
        a = 114 + 2 * (j & 1)
        k.i(f"v_pk_fma_f32 v[{a}:{a+1}], v[{T+2*j}:{T+2*j+1}], v[{T+2*j}:{T+2*j+1}], v[{a}:{a+1}]")
    k.i("v_pk_add_f32 v[114:115], v[114:115], v[116:117]")
    k.i("v_add_f32 v114, v114, v115")
    rowred(114)
    k.i("v_mul_f32 v114, 0x3acccccd, v114")
    bf16r(112, 112); bf16r(114, 114)
    k.i("v_add_f32 v114, 0x3727c5ac, v114")
    bf16r(114, 114)
    k.i("v_sqrt_f32 v114, v114")
    bf16r(114, 114)
    k.i("v_rcp_f32 v114, v114")
    for j in range(20):
        k.i(f"v_pk_add_f32 v[{T+2*j}:{T+2*j+1}], v[{F+2*j}:{F+2*j+1}], v[112:113] op_sel_hi:[1,0] neg_lo:[0,1] neg_hi:[0,1]")
    for j in range(20):
        k.i(f"v_cvt_pk_bf16_f32 v{X+j}, v{T+2*j}, v{T+2*j+1}")
    for j in range(20):
        k.i(f"v_lshlrev_b32 v{F+2*j}, 16, v{X+j}\nv_and_b32 v{F+2*j+1}, s23, v{X+j}")
    for j in range(20):
        k.i(f"v_pk_mul_f32 v[{F+2*j}:{F+2*j+1}], v[{F+2*j}:{F+2*j+1}], v[114:115] op_sel_hi:[1,0]")
    for i in range(5):
        for j in range(4*i, 4*i+4):
            k.i(f"v_cvt_pk_bf16_f32 v{X+j}, v{F+2*j}, v{F+2*j+1}")
        k.i(f"buffer_store_dwordx4 v[{X+4*i}:{X+4*i+3}], v7, s[16:19], s21 offen {HO}")
        if i < 4: k.i("s_add_u32 s21, s21, 8192")
    k.i("s_branch p0_drain")
    k.label("p0_wq_proc")
    k.i(f"""v_lshrrev_b32 v4, 1, v30
    v_lshl_add_u32 v4, v4, 3, v28
    v_mul_u32_u24 v4, 320, v4
    v_and_b32 v5, 1, v30
    v_lshlrev_b32 v5, 5, v5
    v_lshl_add_u32 v5, v29, 3, v5
    v_add_u32 v4, v4, v5
    s_add_u32 s21, s28, s32
    v_add_u32 v4, s21, v4
    s_mul_i32 s21, s27, 163840
    s_lshl_b32 s22, s30, 12
    s_add_u32 s21, s21, s22
    s_add_u32 s21, s21, {WQ}
    s_mul_i32 s22, s27, 5040
    s_add_u32 s22, s22, {KVA}
    s_mul_i32 s23, s26, 320
    v_add_u32 v5, s23, v3
    v_mov_b32 v8, 0
    v_mov_b32 v9, 0
    v_mov_b32 v10, 0
    v_mov_b32 v11, 0
    v_cmp_gt_u32 vcc, 5040, v5
    s_and_b32 s24, vcc_lo, 0xfffff
    s_cmp_lt_u32 s27, 11
    s_cselect_b32 s24, s24, 0
    s_cmp_eq_u32 s20, 3
    s_cselect_b32 s24, s24, 0
    s_cmp_eq_u32 s24, 0
    s_cbranch_scc1 p0_nozero
    s_mov_b32 s25, 0
    s_mov_b64 exec, s[24:25]
    buffer_store_dwordx4 v[8:11], v5, s[16:19], s22 offen {HO}
    s_mov_b64 exec, -1""")
    k.label("p0_nozero")
    stamp(8, "p0")
    k.i("s_waitcnt vmcnt(0)")
    stamp(7, "p0")
    def wq_one(base, tagp):
        for nt in range(4):
            r = 32 + 4*nt + base
            o = (nt >> 1)*160 + (nt & 1)*64
            k.lg(f"ds_read_b64_tr_b16 v[{r}:{r+1}], v4 offset:{o}")
            k.lg(f"ds_read_b64_tr_b16 v[{r+2}:{r+3}], v4 offset:{o+1280}", f"{tagp}{nt}")
        for nt in range(4):
            r = 32 + 4*nt + base
            k.wait(lg=f"{tagp}{nt}")
            k.i(f"buffer_store_dwordx4 v[{r}:{r+3}], v3, s[16:19], s21 offen offset:{1024*nt} {HO}")
    wq_one(0, "wa")
    k.i(f"s_cmp_eq_u32 s33, 0\ns_cbranch_scc1 p0_drain\nv_add_u32 v4, 10240, v4\ns_add_u32 s21, s21, {32*4096}")
    wq_one(16, "wb")
    k.label("p0_drain")
    stamp(1)
    k.i("s_cmp_lt_u32 s45, 232\ns_cbranch_scc1 p0_hasunit\ns_waitcnt vmcnt(0)")
    k.label("p0_hasunit")
    UL = 131072
    k.i("""s_cmp_ge_u32 s45, 232
    s_cbranch_scc1 p0_uid
    s_cmp_ge_u32 s45, 136
    s_cbranch_scc1 p0_ui_w2
    s_cmp_ge_u32 s45, 40
    s_cbranch_scc1 p0_ui_w1""")
    srd(8, PWO, 819200)
    k.i("""s_mul_i32 s35, s45, 26
    s_lshr_b32 s35, s35, 8
    s_mul_i32 s36, s35, 10
    s_sub_u32 s36, s45, s36
    s_mul_i32 s21, s35, 204800
    s_lshl_b32 s22, s36, 7
    s_add_u32 s21, s21, s22
    s_movk_i32 s29, 1280
    s_branch p0_ui_128""")
    k.label("p0_ui_w1")
    srd(8, PW1, 1966080)
    k.i("""s_sub_u32 s34, s45, 40
    s_mul_i32 s35, s34, 43
    s_lshr_b32 s35, s35, 10
    s_mul_i32 s36, s35, 24
    s_sub_u32 s36, s34, s36
    s_mul_i32 s21, s35, 491520
    s_lshl_b32 s22, s36, 7
    s_add_u32 s21, s21, s22
    s_movk_i32 s29, 3072""")
    k.label("p0_ui_128")
    k.i(f"""v_lshrrev_b32 v120, 3, v1
    s_mul_i32 s22, s20, 40
    v_add_u32 v120, s22, v120
    v_and_b32 v121, 7, v1
    v_lshlrev_b32 v121, 4, v121
    v_and_b32 v122, 2, v120
    v_lshlrev_b32 v122, 5, v122
    v_mul_lo_u32 v120, v120, s29
    v_xad_u32 v120, v121, v122, v120
    s_mul_i32 s22, s20, 5120
    s_lshl_b32 s29, s29, 3""")
    for i in range(5):
        k.i(f"s_add_u32 m0, s22, {UL+1024*i}\nbuffer_load_dwordx4 v120, s[8:11], s21 offen {cold} lds\ns_add_u32 s21, s21, s29")
    k.i("s_branch p0_uid")
    k.label("p0_ui_w2")
    srd(8, PW2, 1966080)
    m, sh = magic(40, 320)
    k.i("""s_sub_u32 s34, s45, 136
    s_lshr_b32 s35, s34, 1
    s_and_b32 s36, s34, 1
    s_mul_i32 s21, s35, 40960
    s_mul_i32 s22, s36, 640
    s_add_u32 s21, s21, s22
    s_lshl_b32 s23, s20, 3
    s_mul_i32 s22, s20, 5120""")
    for i in range(5):
        k.i(f"""v_add_u32 v120, {64*i}, v1
        v_mul_u32_u24 v121, {m}, v120
        v_lshrrev_b32 v121, {sh}, v121
        v_mul_u32_u24 v122, 40, v121
        v_sub_u32 v122, v120, v122
        v_lshlrev_b32 v122, 4, v122
        v_add_u32 v121, s23, v121
        v_and_b32 v123, 2, v121
        v_lshlrev_b32 v123, 4, v123
        v_and_b32 v124, 16, v121
        v_lshl_or_b32 v123, v124, 2, v123
        v_mul_u32_u24 v121, 1280, v121
        v_xad_u32 v120, v122, v123, v121
        s_add_u32 m0, s22, {UL+1024*i}
        buffer_load_dwordx4 v120, s[8:11], s21 offen {cold} lds""")
    k.label("p0_uid")
    k.i("s_waitcnt vmcnt(5) lgkmcnt(0)\ns_add_u32 s44, s44, 1\ns_barrier")
    k.reset_counts()
    stamp(2)
    signal(3, f"""s_lshl_b32 s42, s26, 7
    s_lshl_b32 s43, s27, 2
    s_add_u32 s42, s42, s43
    s_lshl_b32 s43, s27, 7
    s_lshl_b32 s41, s26, 2
    s_add_u32 s43, s43, s41
    s_add_u32 s43, s43, {FW-FX}
    v_mov_b32 v5, s43
    v_mov_b32 v6, s42
    v_cmp_eq_u32 vcc, 0, v1
    v_cndmask_b32 v5, v5, v6, vcc""", 5, f"s_mov_b32 s42, {FX}", 42, 4)

def unit_proc():
    UL = 131072
    D0 = 32
    k.i("""s_cmp_ge_u32 s45, 232
    s_cbranch_scc1 p0_end
    s_cmp_ge_u32 s45, 136
    s_cbranch_scc1 p0_up_w2
    s_and_b32 s6, s20, 1
    s_lshr_b32 s7, s20, 1
    s_lshl_b32 s37, s36, 1
    s_add_u32 s37, s37, s6
    s_cmp_ge_u32 s45, 40
    s_cbranch_scc1 p0_up_w1""")
    k.i(f"""v_and_b32 v52, 1, v30
    v_lshrrev_b32 v53, 1, v29
    v_lshl_add_u32 v52, v52, 1, v53
    v_add_u32 v52, s35, v52
    v_and_b32 v52, 3, v52
    v_lshlrev_b32 v52, 4, v52
    v_and_b32 v53, 1, v29
    v_lshl_add_u32 v52, v53, 3, v52
    s_lshl_b32 s24, s6, 6
    v_add_u32 v52, s24, v52
    v_and_b32 v53, 2, v28
    v_lshlrev_b32 v53, 5, v53
    v_xor_b32 v52, v52, v53
    v_lshl_add_u32 v52, v28, 7, v52
    s_mul_i32 s24, s7, 10240
    s_add_u32 s24, s24, {UL}
    v_add_u32 v52, s24, v52
    v_lshrrev_b32 v54, 5, v1
    v_lshlrev_b32 v54, 4, v54
    s_mul_i32 s24, s37, 205
    s_lshr_b32 s24, s24, 10
    s_mul_i32 s25, s24, 5
    s_sub_u32 s25, s37, s25
    s_lshl_b32 s24, s24, 2
    s_add_u32 s24, s24, s35
    s_mul_i32 s24, s24, 10
    s_mul_i32 s12, s7, 5
    s_add_u32 s24, s24, s12
    s_mul_i32 s24, s24, 5
    s_add_u32 s24, s24, s25
    s_lshl_b32 s24, s24, 10
    s_add_u32 s24, s24, {WO}""")
    for uu in range(5):
        for h2 in range(2):
            m_ = 2*uu + h2
            K = 0
            for hi in range(2): K |= ((40*(m_//5) + ROWOFF[hi][m_ % 5]) * 128) << (16*hi)
            r = D0 + 4*uu + 2*h2
            k.i(f"s_mov_b32 s25, {K:#x}\nv_bfe_u32 v55, s25, v54, 16\nv_add_u32 v55, v55, v52")
            k.lg(f"ds_read_b64_tr_b16 v[{r}:{r+1}], v55", f"uo{uu}")
    for uu in range(5):
        r = D0 + 4*uu
        k.wait(lg=f"uo{uu}")
        k.i(f"buffer_store_dwordx4 v[{r}:{r+3}], v3, s[16:19], s24 offen {HO}\ns_add_u32 s24, s24, 5120")
    k.i("s_branch p0_end")
    k.reset_counts()
    k.label("p0_up_w1")
    k.i(f"""v_lshrrev_b32 v52, 1, v30
    v_lshl_add_u32 v52, v52, 3, v28
    v_and_b32 v53, 1, v30
    v_lshlrev_b32 v53, 5, v53
    v_lshl_add_u32 v53, v29, 3, v53
    s_lshl_b32 s24, s6, 6
    v_add_u32 v53, s24, v53
    v_and_b32 v54, 2, v28
    v_lshlrev_b32 v54, 5, v54
    v_lshlrev_b32 v52, 7, v52
    v_xad_u32 v52, v53, v54, v52
    s_mul_i32 s24, s7, 10240
    s_add_u32 s24, s24, {UL}
    v_add_u32 v52, s24, v52
    v_mov_b32 v56, 0
    s_mov_b32 s12, 0x3f803f80
    s_mul_i32 s24, s37, 171
    s_lshr_b32 s24, s24, 9
    s_mul_i32 s25, s24, 3
    s_sub_u32 s25, s37, s25
    s_mul_i32 s24, s24, 40
    s_mul_i32 s13, s35, 10
    s_add_u32 s24, s24, s13
    s_mul_i32 s13, s7, 5
    s_add_u32 s24, s24, s13
    s_mul_i32 s24, s24, 3
    s_add_u32 s24, s24, s25
    s_lshl_b32 s24, s24, 10
    s_add_u32 s24, s24, {W1}""")
    for ks in range(5):
        r = D0 + 4*ks
        k.lg(f"ds_read_b64_tr_b16 v[{r}:{r+1}], v52 offset:{ks*2048}")
        k.lg(f"ds_read_b64_tr_b16 v[{r+2}:{r+3}], v52 offset:{ks*2048+512}", f"u1{ks}")
    for ks in range(5):
        r = D0 + 4*ks
        k.wait(lg=f"u1{ks}")
        k.i(f"buffer_store_dwordx4 v[{r}:{r+3}], v3, s[16:19], s24 offen {HO}\ns_add_u32 s24, s24, 3072")
        for j in range(4): k.i(f"v_dot2_f32_bf16 v56, v{r+j}, s12, v56")
    k.i(f"""s_nop 2
    v_mov_b32 v57, v56
    s_lshl_b32 s24, s35, 1
    s_add_u32 s24, s24, s7
    v_permlane32_swap_b32 v56, v57
    s_mul_i32 s24, s24, 6144
    s_lshl_b32 s25, s37, 7
    s_add_u32 s24, s24, s25
    s_add_u32 s24, s24, {CS}
    v_add_f32 v56, v56, v57
    v_lshlrev_b32 v57, 2, v1
    s_mov_b64 exec, 0xffffffff
    buffer_store_dword v56, v57, s[16:19], s24 offen {HO}
    s_mov_b64 exec, -1
    s_branch p0_end""")
    k.reset_counts()
    k.label("p0_up_w2")
    k.i(f"""v_and_b32 v52, 1, v30
    v_lshlrev_b32 v52, 4, v52
    v_lshrrev_b32 v53, 1, v30
    v_lshl_add_u32 v52, v53, 2, v52
    v_add_u32 v52, v52, v28
    v_and_b32 v54, 2, v52
    v_lshlrev_b32 v54, 4, v54
    v_and_b32 v55, 16, v52
    v_lshl_or_b32 v54, v55, 2, v54
    v_mul_u32_u24 v52, 640, v52
    v_add_u32 v52, {UL}, v52
    s_mul_i32 s24, s20, 160
    v_lshl_add_u32 v53, v29, 3, s24
    s_lshl_b32 s24, s36, 2
    s_add_u32 s24, s24, s20
    s_mul_i32 s24, s24, 48
    s_add_u32 s24, s24, s35
    s_mul_i32 s24, s24, 5120
    s_add_u32 s24, s24, {W2}""")
    for m_ in range(5):
        r = D0 + 4*m_
        k.i(f"v_add_u32 v55, {32*m_}, v53\nv_xad_u32 v55, v55, v54, v52")
        k.lg(f"ds_read_b64_tr_b16 v[{r}:{r+1}], v55")
        k.lg(f"ds_read_b64_tr_b16 v[{r+2}:{r+3}], v55 offset:{8*640}", f"u2{m_}")
    for m_ in range(5):
        r = D0 + 4*m_
        k.wait(lg=f"u2{m_}")
        k.i(f"buffer_store_dwordx4 v[{r}:{r+3}], v3, s[16:19], s24 offen {HO}\ns_add_u32 s24, s24, 1024")
    k.label("p0_end")
    k.reset_counts()
    stamp(3)

def phase1():
    k.i(f"""v_and_b32 v6, 15, v1
    v_lshlrev_b32 v6, 2, v6
    s_lshl_b32 s42, s26, 7
    s_lshl_b32 s43, s27, 7
    s_add_u32 s43, s43, {FW-FX}
    v_mov_b32 v7, s42
    v_mov_b32 v8, s43
    v_and_b32 v9, 16, v1
    v_cmp_eq_u32 vcc, 0, v9
    v_add_u32 v4, 0x10000, v3
    v_add_u32 v5, 0x20000, v3
    v_cndmask_b32 v7, v8, v7, vcc
    v_add_u32 v6, v6, v7
    s_mov_b32 s42, {FX}
    s_lshl_b32 s28, s26, 2
    s_add_u32 s28, s28, s20
    s_mul_i32 s21, s28, 40960
    s_add_u32 s21, s21, {XN}
    s_lshl_b32 s23, s20, 12
    s_mul_i32 s22, s27, 163840
    s_add_u32 s22, s22, s23
    s_add_u32 s22, s22, {WQ}
    s_mov_b32 s40, {LOG2E:#x}
    s_mov_b32 s41, {LOG2E:#x}
    s_mov_b32 s38, 0x358637bd
    s_mov_b32 s39, 0x358637bd""")
    poll(6, 42, 8)
    k.i("s_barrier")
    stamp(4)
    ACC = 64; WB = 128; T = 8; PK = 176; FB0 = 20
    PRE = int(OPT["pre1"])
    Q = []
    for s in range(10):
        for j in range(4):
            pre = f"s_add_u32 m0, s23, {s*16384}\n" if j == 0 else ""
            post = "\ns_add_u32 s22, s22, 16384" if j == 3 else ""
            Q.append((pre, f"buffer_load_dwordx4 v3, s[16:19], s22 offen offset:{1024*j} {HO} lds", post, f"W{s}"))
        for j in range(4):
            post = "\ns_add_u32 s21, s21, 4096" if j == 3 else ""
            Q.append(("", f"buffer_load_dwordx4 a[{16*s+4*j}:{16*s+4*j+3}], v3, s[16:19], s21 offen offset:{1024*j} {HO}", post, f"X{4*s+j}"))
    qi = [0]
    def issue(n=1):
        for _ in range(n):
            if qi[0] < len(Q):
                pre, ins, post, tag = Q[qi[0]]; qi[0] += 1
                k.i(pre); k.vm(ins, tag); k.i(post)
    def reads(ks, lo, hi):
        for j in range(lo, hi):
            o = (ks*4 + j) * 1024
            r = WB + (ks % 3)*16 + 4*j
            k.lg(f"ds_read_b128 v[{r}:{r+3}], v{3 + o//65536} offset:{o % 65536}", f"w{ks}")
    issue(8*PRE)
    sv0 = snap(); unit_proc(); rest(sv0)
    k.i("s_cmp_ge_u32 s27, 11\ns_cbranch_scc1 p1_q")
    sv = snap(); q0 = qi[0]
    def loop(act_first):
        k.wait(vm="W0"); k.i("s_barrier")
        reads(0, 0, 4); reads(1, 0, 4)
        for ks in range(40):
            n2 = ks + 2
            if n2 < 40 and n2 % 4 == 0:
                k.wait(vm=f"W{n2//4}"); k.i("s_barrier")
                if n2 == 4*(PRE+1):
                    signal(1, "v_mov_b32 v7, 0", 7, f"s_lshl_b32 s42, s45, 2\ns_add_u32 s42, s42, {F0B}", 42, 6)
            k.wait(vm=f"X{ks}", lg=f"w{ks}")
            for j in range(4):
                w = vr(WB + (ks % 3)*16 + 4*j, 4); x = ar(4*ks, 4); d = vr(ACC + 16*j, 16)
                c = "0" if ks == 0 else d
                k.i(f"v_mfma_f32_32x32x16_bf16 {d}, {x}, {w}, {c}" if act_first else f"v_mfma_f32_32x32x16_bf16 {d}, {w}, {x}, {c}")
                if j in (0, 2): issue()
                if n2 < 40 and j in (1, 3): reads(n2, j-1, j+1)
            if ks == 33:
                k.i(f"s_mov_b32 s42, {F0B}")
                k.vm(f"buffer_load_dwordx4 v[{FB0}:{FB0+3}], v3, s[16:19], s42 offen sc1", "f0b")
    XR = 24
    def p2_addr():
        k.i(f"""s_and_b32 s29, s27, 7
        s_lshr_b32 s30, s27, 3
        s_lshl_b32 s30, s30, 1
        s_and_b32 s31, s29, 1
        s_add_u32 s30, s30, s31
        s_lshr_b32 s29, s29, 1
        s_lshl_b32 s31, s26, 2
        s_add_u32 s29, s29, s31
        s_lshl_b32 s31, s30, 2
        s_add_u32 s31, s31, s20
        s_mul_i32 s31, s31, 51200
        s_add_u32 s31, s31, {WO}""")
    def f0b_check(lbl):
        k.wait(vm="f0b")
        check4(FB0)
        k.i(f"s_cbranch_vccz {lbl}")
        sv2 = snap()
        k.i(f"s_mov_b32 s42, {F0B}")
        poll(3, 42, FB0, wide=True)
        rest(sv2)
        k.label(lbl)
    wq = [0]
    def wo_issue(n=1):
        for _ in range(n):
            i = wq[0]
            if i < 50:
                k.vm(f"buffer_load_dwordx4 a[{4*i}:{4*i+3}], v3, s[16:19], s31 offen offset:{1024*(i%4)} {HO}", f"wo{i//5}")
                if i % 4 == 3: k.i("s_add_u32 s31, s31, 4096")
                wq[0] += 1
    NEARLY = int(OPT.get("wo_early", 8))
    loop(True)
    stamp(5)
    p2_addr(); f0b_check("p1_kv_ok")
    k.i("s_lshl_b32 s33, s20, 13\nv_add_u32 v6, s33, v3")
    for t in (2, 3):
        for p in range(8):
            k.i(f"v_cvt_pk_bf16_f32 v{PK+8*t+p}, v{ACC+16*t+2*p}, v{ACC+16*t+2*p+1}")
    k.i("s_mov_b32 s34, 0xf0000000\ns_mov_b32 s35, 0xf0000000\nv_mov_b32 v7, 0x3f803f80")
    for p in range(8):
        k.i(f"v_cndmask_b32 v{PK+24+p}, v{PK+24+p}, v7, s[34:35]")
    for t in (2, 3):
        for f in range(2):
            k.lg(f"ds_write_b128 v6, v[{PK+8*t+4*f}:{PK+8*t+4*f+3}] offset:{2048*t+1024*f}")
    for t in (0, 1):
        phi_pack(ACC + 16*t, PK + 8*t, 16, T, hook=(lambda: wo_issue(1) if wq[0] < NEARLY else None))
        for f in range(2):
            k.lg(f"ds_write_b128 v6, v[{PK+8*t+4*f}:{PK+8*t+4*f+3}] offset:{2048*t+1024*f}")
    k.i("""s_lshr_b32 s33, s20, 1
    s_and_b32 s34, s20, 1
    s_lshl_b32 s35, s33, 11
    v_add_u32 v8, s35, v3
    s_lshl_b32 s35, s34, 11
    s_add_u32 s35, s35, 4096
    v_add_u32 v9, s35, v3
    v_and_b32 v10, 31, v1
    s_lshl_b32 s35, s34, 5
    v_add_u32 v10, s35, v10
    v_mul_u32_u24 v11, 205, v10
    v_lshrrev_b32 v11, 12, v11
    v_mul_u32_u24 v12, 20, v11
    v_sub_u32 v12, v10, v12
    v_cmp_eq_u32 s[36:37], 60, v10
    v_mov_b32 v13, 20
    v_lshrrev_b32 v14, 5, v1
    v_cndmask_b32 v12, v12, v13, s[36:37]
    v_mul_u32_u24 v12, 80, v12
    v_lshlrev_b32 v14, 2, v14
    s_lshl_b32 s35, s33, 5
    v_add_u32 v14, s35, v14""")
    k.wait(lg="all"); k.i("s_barrier")
    FA = 64; FB = 96; DD = 128
    for w in range(4):
        for f in range(2):
            n = 2*w + f
            k.lg(f"ds_read_b128 v[{FA+4*n}:{FA+4*n+3}], v8 offset:{8192*w+1024*f}")
            k.lg(f"ds_read_b128 v[{FB+4*n}:{FB+4*n+3}], v9 offset:{8192*w+1024*f}", f"f{n}")
    MS = [4, 6, 8, 10]
    for j in range(4):
        ms = MS[j]
        k.i(f"""v_add_u32 v15, {8*j}, v14
        v_mul_u32_u24 v20, 205, v15
        v_lshrrev_b32 v20, 12, v20
        v_mul_u32_u24 v21, 20, v20
        v_sub_u32 v21, v15, v21
        v_cmp_eq_u32 s[{ms}:{ms+1}], v20, v11
        v_cmp_gt_u32 vcc, 3, v20
        v_mul_u32_u24 v20, 1680, v20
        v_lshl_add_u32 v21, v21, 2, v12
        v_add_u32 v{16+j}, v20, v21
        s_or_b64 s[{ms}:{ms+1}], s[{ms}:{ms+1}], s[36:37]
        s_and_b64 s[{ms}:{ms+1}], s[{ms}:{ms+1}], vcc""")
    for n in range(8):
        k.wait(lg=f"f{n}")
        k.i(f"v_mfma_f32_32x32x16_bf16 v[{DD}:{DD+15}], v[{FA+4*n}:{FA+4*n+3}], v[{FB+4*n}:{FB+4*n+3}], {'0' if n == 0 else vr(DD,16)}")
    k.i("v_lshlrev_b32 v22, 2, v0")
    for j in range(4):
        k.i(f"s_mov_b64 exec, s[{MS[j]}:{MS[j]+1}]")
        k.lg(f"ds_write_b128 v{16+j}, v[{DD+4*j}:{DD+4*j+3}] offset:32768")
    k.i(f"""s_mov_b64 exec, -1
    s_mul_i32 s33, s27, 5040
    s_add_u32 s33, s33, {KVA}
    s_add_u32 s8, s14, s33
    s_addc_u32 s9, s15, 0
    s_cmp_eq_u32 s27, 10
    s_movk_i32 s10, 5040
    s_cselect_b32 s10, 3360, s10
    s_mov_b32 s11, 0x20000""")
    k.wait(lg="all"); k.i("s_barrier")
    for i in range(5):
        k.lg(f"ds_read_b32 v{32+i}, v22 offset:{32768+1024*i}", f"d{i}")
    for i in range(5):
        k.wait(lg=f"d{i}")
        if i == 4: k.i("v_add_u32 v22, 4096, v22")
        k.vm(f"buffer_atomic_add_f32 v{32+i}, v22, s[8:11], 0 offen offset:{1024*(i%4)}", "out1")
    wo_issue(NEARLY + 4 - wq[0])
    k.wait(vm="out1")
    k.i("s_branch p1_fin")
    sv_end = snap(); wq_end = wq[0]
    k.label("p1_q")
    rest(sv); qi[0] = q0; wq[0] = 0
    loop(False)
    stamp(5)
    p2_addr(); f0b_check("p1_q_ok")
    k.i(f"""s_mul_i32 s33, s28, 40960
    s_sub_u32 s34, s27, 11
    s_lshl_b32 s34, s34, 13
    s_add_u32 s33, s33, s34
    s_add_u32 s33, s33, {PQ}""")
    for t in range(4):
        phi_pack(ACC + 16*t, PK + 8*t, 16, T, hook=(lambda: wo_issue(1) if wq[0] < NEARLY else None))
        for f in range(2):
            k.vm(f"buffer_store_dwordx4 v[{PK+8*t+4*f}:{PK+8*t+4*f+3}], v3, s[16:19], s33 offen offset:{(2048*t+1024*f) % 4096} {HO}", "out1")
        if t == 1: k.i("s_add_u32 s33, s33, 4096")
    wo_issue(NEARLY + 4 - wq[0])
    k.wait(vm="out1")
    assert wq[0] == wq_end
    k.label("p1_fin")
    stamp(6)
    k.i("s_barrier")
    signal(0xff, "v_lshlrev_b32 v7, 10, v1", 7, f"s_lshl_b32 s42, s45, 2\ns_add_u32 s42, s42, {F1}", 42, 6)
    wo_issue(50)
    srd(8, PX, 2621440)
    k.i(f"""v_and_b32 v10, 31, v1
    s_lshl_b32 s33, s29, 5
    v_add_u32 v10, s33, v10
    v_mul_u32_u24 v10, 1280, v10
    v_lshrrev_b32 v11, 5, v1
    v_lshl_add_u32 v10, v11, 3, v10
    s_mul_i32 s33, s30, 320
    s_lshl_b32 s34, s20, 4
    s_add_u32 s33, s33, s34""")
    for c in range(5):
        k.vm(f"buffer_load_dwordx2 v[{XR+2*c}:{XR+2*c+1}], v10, s[8:11], s33 offen offset:{64*c}")
    stamp(7)

def phase2():
    P2L = 102400; XR = 24
    k.i(f"""s_and_b32 s42, s2, 7
    s_lshl_b32 s42, s42, 10
    s_add_u32 s42, s42, {F1}
    s_mul_i32 s21, s20, 13440
    s_add_u32 s21, s21, {KVA}
    s_mul_i32 s23, s20, 15360
    s_add_u32 s23, s23, {P2L+64}
    s_mul_i32 s22, s29, 40960
    s_mul_i32 s33, s20, 10240
    s_add_u32 s22, s22, s33
    s_add_u32 s22, s22, {PQ}
    v_bfe_u32 v8, v1, 2, 3
    v_lshlrev_b32 v8, 2, v8
    v_and_b32 v9, 3, v1
    s_mov_b32 s33, 0x55524130
    s_mov_b32 s34, 0x55453120
    v_bfe_u32 v10, s33, v8, 4
    v_bfe_u32 v11, s34, v8, 4
    v_lshl_add_u32 v10, v10, 2, v9
    v_lshl_add_u32 v11, v11, 2, v9
    v_min_u32 v10, 20, v10
    v_min_u32 v11, 20, v11
    v_lshrrev_b32 v12, 5, v1
    v_lshlrev_b32 v12, 4, v12
    s_sub_u32 s33, s23, 16
    v_add_u32 v12, s33, v12
    v_mul_u32_u24 v10, 80, v10
    v_mul_u32_u24 v11, 80, v11
    v_add_u32 v10, v10, v12
    v_add_u32 v11, v11, v12
    s_mov_b32 s36, 0
    s_mov_b32 s37, -1
    s_mul_i32 s24, s20, 3072
    s_mul_i32 s25, s27, 122880
    s_add_u32 s25, s25, s24
    s_add_u32 s25, s25, {W1}""")
    poll(3, 42, 16, wide=True)
    stamp(8)
    for i in range(14):
        if i % 4 == 0: k.i(f"s_add_u32 m0, s23, {1024*i}")
        k.vm(f"buffer_load_dwordx4 v3, s[16:19], s21 offen offset:{1024*(i%4)} {HO} lds", "kv")
        if i % 4 == 3: k.i("s_add_u32 s21, s21, 4096")
    PQA = 200
    for kl in range(10):
        k.vm(f"buffer_load_dwordx4 a[{PQA+4*kl}:{PQA+4*kl+3}], v3, s[16:19], s22 offen offset:{1024*(kl%4)} {HO}", f"pq{kl}")
        if kl % 4 == 3: k.i("s_add_u32 s22, s22, 4096")
    w1q = [0]
    def w1_issue(n=1, lim=24):
        for _ in range(n):
            i = w1q[0]
            if i < lim:
                s, j = divmod(i, 3)
                if j == 0: k.i(f"s_add_u32 m0, s24, {s*12288}")
                k.vm(f"buffer_load_dwordx4 v3, s[16:19], s25 offen offset:{1024*j} {HO} lds", "w1")
                if j == 2: k.i("s_add_u32 s25, s25, 12288")
                w1q[0] += 1
    AF = 36; TT = 100; DT = 100; OG = 196; ACC = 36
    k.wait(vm="kv")
    jobs = []
    for hl in range(8):
        for u in range(2):
            for h2 in range(2):
                dg0 = -(hl % 4) + 4*u + 2*h2
                v0_ = 0 <= dg0 <= 4; v1_ = 0 <= dg0+1 <= 4
                d = AF + (2*hl+u)*4 + 2*h2
                jobs.append((d, None) if not (v0_ or v1_) else (d, hl*1680 + 16*(dg0+1), v0_, v1_, hl))
    n = 0
    for jb in jobs:
        if jb[1] is None: continue
        k.lg(f"ds_read_b128 v[{TT+4*n}:{TT+4*n+3}], v{10 + (jb[4] & 1)} offset:{jb[1]}", f"a{n}")
        n += 1
    for jb in jobs:
        if jb[1] is None: k.i(f"v_mov_b32 v{jb[0]}, 0\nv_mov_b32 v{jb[0]+1}, 0")
    n = 0
    for jb in jobs:
        d = jb[0]
        if jb[1] is None: continue
        k.wait(lg=f"a{n}")
        t = TT + 4*n
        k.i(f"v_cvt_pk_bf16_f32 v{d}, v{t}, v{t+1}\nv_cvt_pk_bf16_f32 v{d+1}, v{t+2}, v{t+3}")
        if not jb[3]: k.i(f"v_cndmask_b32 v{d}, v{d}, 0, s[36:37]\nv_cndmask_b32 v{d+1}, v{d+1}, 0, s[36:37]")
        if not jb[2]: k.i(f"v_cndmask_b32 v{d}, 0, v{d}, s[36:37]\nv_cndmask_b32 v{d+1}, 0, v{d+1}, s[36:37]")
        n += 1
    stamp(9)
    def omm(hl):
        t0 = hl + hl//4
        k.wait(vm=f"pq{t0+1}")
        d = vr(DT + 16*(hl % 4), 16)
        for u in range(2):
            k.i(f"v_mfma_f32_32x32x16_bf16 {d}, {vr(AF+(2*hl+u)*4, 4)}, {ar(PQA+4*(t0+u), 4)}, {'0' if u == 0 else d}")
    def opost(hl):
        p = hl // 2; odd = hl & 1
        D = DT + 16*(hl % 4); rc = 16 + 2*odd
        a, b = (D+8, D+12) if odd else (D+12, D+8)
        k.i(f"v_cndmask_b32 v{rc}, v{a}, v{b}, s[36:37]\nv_add_f32 v{rc}, s38, v{rc}\nv_rcp_f32 v{rc}, v{rc}")
        for h in range(6):
            k.i(f"v_pk_mul_f32 v[{D+2*h}:{D+2*h+1}], v[{D+2*h}:{D+2*h+1}], v[{rc}:{rc+1}] op_sel_hi:[1,0]")
        for j in range(2):
            g = OG + 2*(5*p + 2*odd + j)
            k.i(f"v_cvt_pk_bf16_f32 v{g}, v{D+4*j}, v{D+4*j+1}\nv_cvt_pk_bf16_f32 v{g+1}, v{D+4*j+2}, v{D+4*j+3}")
        g = OG + 2*(5*p + 4)
        if not odd:
            k.i(f"v_cvt_pk_bf16_f32 v{g}, v{D+8}, v{D+9}\nv_cvt_pk_bf16_f32 v{g+1}, v{D+10}, v{D+11}")
        else:
            k.i(f"v_cvt_pk_bf16_f32 v{D}, v{D+8}, v{D+9}\nv_cvt_pk_bf16_f32 v{D+1}, v{D+10}, v{D+11}")
            k.i(f"v_cndmask_b32 v{g}, v{g}, v{D}, s[36:37]\nv_cndmask_b32 v{g+1}, v{g+1}, v{D+1}, s[36:37]")
    omm(0); omm(1)
    for hl in range(8):
        if hl + 2 < 8: omm(hl + 2)
        opost(hl)
    stamp(10)
    for u in range(10):
        for c in range(5):
            d = vr(ACC + 16*c, 16)
            k.i(f"v_mfma_f32_32x32x16_bf16 {d}, {ar(4*(5*u+c), 4)}, {vr(OG+4*u, 4)}, {'0' if u == 0 else d}")
            if c in (0, 2, 4) : w1_issue()
    w1_issue(24)
    stamp(11)
    k.i(f"s_sub_u32 s33, s23, 64\nv_add_u32 v13, s33, v3")
    for j in range(1, 4):
        k.i(f"s_sub_u32 s33, s20, {j}\ns_and_b32 s33, s33, 3\ns_mul_i32 s33, s33, 15360\ns_add_u32 s33, s33, {P2L + (j-1)*5120}\nv_add_u32 v{13+j}, s33, v3")
    for j in range(1, 4):
        for c in range(5):
            r = ACC + 16*c + 4*j
            k.lg(f"ds_write_b128 v13, v[{r}:{r+3}] offset:{(j-1)*5120 + 1024*c}")
    k.wait(lg="all"); k.i("s_barrier")
    RR = 120
    for j in range(1, 4):
        for c in range(5):
            r = RR + 20*(j-1) + 4*c
            k.lg(f"ds_read_b128 v[{r}:{r+3}], v{13+j} offset:{1024*c}", f"r{j}_{c}")
    XF = 184
    k.i("s_mov_b32 s33, 0xffff0000")
    for j in range(10):
        k.i(f"v_lshlrev_b32 v{XF+2*j}, 16, v{XR+j}\nv_and_b32 v{XF+2*j+1}, s33, v{XR+j}")
    for c in range(5):
        for h in range(2):
            d = XF + 4*c + 2*h; a = ACC + 16*c + 2*h
            k.i(f"v_pk_add_f32 v[{d}:{d+1}], v[{d}:{d+1}], v[{a}:{a+1}]")
    k.i(f"""s_mul_i32 s34, s29, 40
    s_mul_i32 s35, s30, 10
    s_add_u32 s34, s34, s35
    s_lshr_b32 s35, s20, 1
    s_add_u32 s34, s34, s35
    s_lshl_b32 s34, s34, 10
    s_and_b32 s35, s20, 1
    s_lshl_b32 s35, s35, 9
    s_add_u32 s34, s34, s35
    s_add_u32 s34, s34, {HH}
    v_and_b32 v8, 31, v1
    v_lshrrev_b32 v9, 5, v1
    v_lshlrev_b32 v12, 3, v8
    v_lshlrev_b32 v8, 4, v8
    v_lshl_add_u32 v8, v9, 3, v8""")
    for j in range(1, 4):
        for c in range(5):
            k.wait(lg=f"r{j}_{c}")
            for h in range(2):
                d = XF + 4*c + 2*h; a = RR + 20*(j-1) + 4*c + 2*h
                k.i(f"v_pk_add_f32 v[{d}:{d+1}], v[{d}:{d+1}], v[{a}:{a+1}]")
    k.i("s_barrier")
    HP = 24
    for c in range(5):
        k.i(f"v_cvt_pk_bf16_f32 v{HP+2*c}, v{XF+4*c}, v{XF+4*c+1}\nv_cvt_pk_bf16_f32 v{HP+2*c+1}, v{XF+4*c+2}, v{XF+4*c+3}")
        k.vm(f"buffer_store_dwordx2 v[{HP+2*c}:{HP+2*c+1}], v8, s[16:19], s34 offen offset:{2048*(c%2)} {HO}")
        if c % 2 == 1: k.i("s_add_u32 s34, s34, 4096")
    for j in range(10):
        k.i(f"v_lshlrev_b32 v{XF+2*j}, 16, v{HP+j}\nv_and_b32 v{XF+2*j+1}, s33, v{HP+j}")
    k.i(f"v_pk_add_f32 v[16:17], v[{XF}:{XF+1}], v[{XF+2}:{XF+3}]")
    k.i(f"v_pk_mul_f32 v[18:19], v[{XF}:{XF+1}], v[{XF}:{XF+1}]")
    k.i(f"v_pk_fma_f32 v[18:19], v[{XF+2}:{XF+3}], v[{XF+2}:{XF+3}], v[18:19]")
    for j in range(2, 10):
        k.i(f"v_pk_add_f32 v[16:17], v[16:17], v[{XF+2*j}:{XF+2*j+1}]")
        k.i(f"v_pk_fma_f32 v[18:19], v[{XF+2*j}:{XF+2*j+1}], v[{XF+2*j}:{XF+2*j+1}], v[18:19]")
    k.i(f"""v_add_f32 v16, v16, v17
    v_add_f32 v17, v18, v19
    v_mov_b32 v18, v16
    v_mov_b32 v19, v17
    s_lshl_b32 s34, s29, 4
    s_lshl_b32 s35, s30, 2
    s_add_u32 s34, s34, s35
    s_add_u32 s34, s34, s20
    v_permlane32_swap_b32 v16, v18
    v_permlane32_swap_b32 v17, v19
    s_lshl_b32 s34, s34, 8
    s_add_u32 s34, s34, {ST}
    v_pk_add_f32 v[16:17], v[16:17], v[18:19]
    s_mov_b64 exec, 0xffffffff""")
    k.vm(f"buffer_store_dwordx2 v[16:17], v12, s[16:19], s34 offen {HO}", "out2")
    k.i("s_mov_b64 exec, -1")
    w1_issue(6, lim=30)
    k.wait(vm="out2")
    stamp(12)
    k.i("s_barrier")
    sig_row(F2, 6)

W2Q = [0]
def w2_issue(n):
    for _ in range(n):
        i = W2Q[0]
        if i < 60:
            k.vm(f"buffer_load_dwordx4 a[{4*i}:{4*i+3}], v3, s[16:19], s31 offen offset:{1024*(i%4)} {HO}", "w2")
            if i % 4 == 3: k.i("s_add_u32 s31, s31, 4096")
            W2Q[0] += 1

def phase3():
    TB = 122880
    k.i(f"""s_and_b32 s29, s27, 7
    s_lshr_b32 s30, s27, 3
    s_lshl_b32 s30, s30, 2
    s_and_b32 s31, s29, 3
    s_add_u32 s30, s30, s31
    s_lshr_b32 s29, s29, 2
    s_lshl_b32 s31, s26, 1
    s_add_u32 s29, s29, s31
    s_lshl_b32 s31, s30, 2
    s_add_u32 s31, s31, s20
    s_mul_i32 s31, s31, 61440
    s_add_u32 s31, s31, {W2}
    v_lshlrev_b32 v16, 2, v0
    v_lshlrev_b32 v17, 1, v0
    s_mul_i32 s33, s27, 384
    s_add_u32 s33, s33, {CS}
    s_mul_i32 s34, s27, 192""")
    srd(8, PB1, 3072)
    for j in range(8):
        k.vm(f"buffer_load_dword v{20+j}, v16, s[16:19], s33 offen {HO}")
        k.i("s_add_u32 s33, s33, 6144")
    k.vm("buffer_load_ushort v28, v17, s[8:11], s34 offen", "tab")
    N2 = int(OPT.get("w2_win2", 36))
    w2_issue(8)
    k.wait(vm="tab")
    for j in range(1, 8): k.i(f"v_add_f32 v20, v20, v{20+j}")
    k.i(f"v_lshlrev_b32 v28, 16, v28\nv_add_u32 v16, {TB}, v16")
    k.lg("ds_write_b32 v16, v20")
    k.lg("ds_write_b32 v16, v28 offset:1024")
    w2_issue(N2 - 8)
    k.i(f"""s_mul_i32 s21, s28, 40960
    s_add_u32 s21, s21, {HH}
    v_and_b32 v6, 15, v1
    v_lshlrev_b32 v6, 2, v6
    s_lshl_b32 s42, s26, 7
    s_add_u32 s42, s42, {F2}
    v_and_b32 v8, 31, v1
    v_lshrrev_b32 v7, 5, v1
    v_lshlrev_b32 v8, 3, v8
    v_lshl_add_u32 v8, v7, 8, v8
    s_lshl_b32 s33, s28, 12
    s_add_u32 s33, s33, {ST}
    v_lshlrev_b32 v14, 4, v7
    v_add_u32 v14, {TB}, v14
    v_bfe_u32 v15, v1, 4, 1
    v_mul_u32_u24 v15, 49152, v15
    v_and_b32 v16, 15, v1
    v_lshl_add_u32 v15, v16, 4, v15
    v_lshl_add_u32 v15, v7, 9, v15
    s_mul_i32 s34, s28, 98304
    s_mul_i32 s35, s27, 3072
    s_add_u32 s34, s34, s35
    s_add_u32 s34, s34, {H1}""")
    k.wait(lg="all")
    poll(6, 42, 9)
    k.i("s_barrier")
    stamp(13)
    ACC = 40; WB = 88; HR = 124; NR = int(OPT["pre3"]); SR = 20
    hq = [0]
    def h_issue(n=1):
        for _ in range(n):
            i = hq[0]
            if i < 40:
                r = HR + 4*(i % NR)
                k.vm(f"buffer_load_dwordx4 v[{r}:{r+3}], v3, s[16:19], s21 offen offset:{1024*(i%4)} {HO}", f"h{i}")
                if i % 4 == 3: k.i("s_add_u32 s21, s21, 4096")
                hq[0] += 1
    def reads(ks):
        for j in range(3):
            o = (ks*3 + j) * 1024
            r = WB + (ks % 3)*12 + 4*j
            k.lg(f"ds_read_b128 v[{r}:{r+3}], v{3 + o//65536} offset:{o % 65536}", f"w{ks}")
    h_issue(4)
    for j in range(8):
        k.vm(f"buffer_load_dwordx2 v[{SR+2*j}:{SR+2*j+1}], v8, s[16:19], s33 offen offset:{512*j} {HO}", "stats")
    h_issue(NR - 5)
    reads(0); reads(1)
    for ks in range(40):
        k.wait(vm=f"h{ks}", lg=f"w{ks}")
        for j in range(3):
            d = vr(ACC + 16*j, 16)
            k.i(f"v_mfma_f32_32x32x16_bf16 {d}, {vr(WB + (ks % 3)*12 + 4*j, 4)}, {vr(HR + 4*(ks % NR), 4)}, {'0' if ks == 0 else d}")
            if j == 0: h_issue()
            if j == 1 and ks + 2 < 40: reads(ks + 2)
        if ks == 6:
            for j in range(1, 8): k.i(f"v_pk_add_f32 v[{SR}:{SR+1}], v[{SR}:{SR+1}], v[{SR+2*j}:{SR+2*j+1}]")
        if ks == 7:
            k.i(f"""v_mov_b32 v10, v{SR}
            v_mov_b32 v11, v{SR+1}
            s_nop 0
            v_permlane32_swap_b32 v{SR}, v10
            v_permlane32_swap_b32 v{SR+1}, v11
            v_pk_add_f32 v[8:9], v[{SR}:{SR+1}], v[10:11]
            v_mul_f32 v8, 0x3acccccd, v8
            v_mul_f32 v9, 0x3acccccd, v9""")
        if ks == 8:
            k.i("v_fma_f32 v9, -v8, v8, v9\nv_max_f32 v9, 0, v9")
            bf16r(8, 8); bf16r(9, 9)
            k.i("v_add_f32 v9, 0x3727c5ac, v9")
        if ks == 9:
            bf16r(9, 9)
            k.i("v_sqrt_f32 v9, v9")
            bf16r(9, 9)
            k.i("v_rcp_f32 v10, v9\nv_mul_f32 v12, v8, v10\nv_sub_f32 v12, 0, v12")
    stamp(14)
    CT = 88; BT = 136; PK = 184
    for n in range(12):
        nt, j = divmod(n, 4)
        k.lg(f"ds_read_b128 v[{CT+4*n}:{CT+4*n+3}], v14 offset:{128*nt+32*j}")
        k.lg(f"ds_read_b128 v[{BT+4*n}:{BT+4*n+3}], v14 offset:{1024+128*nt+32*j}", f"t{n}")
    for n in range(12):
        nt, j = divmod(n, 4)
        k.wait(lg=f"t{n}")
        a = ACC + 4*n; c = CT + 4*n; b = BT + 4*n
        for h in range(2):
            k.i(f"v_pk_fma_f32 v[{b+2*h}:{b+2*h+1}], v[{c+2*h}:{c+2*h+1}], v[12:13], v[{b+2*h}:{b+2*h+1}] op_sel_hi:[1,0,1]")
        for h in range(2):
            k.i(f"v_pk_fma_f32 v[{a+2*h}:{a+2*h+1}], v[{a+2*h}:{a+2*h+1}], v[10:11], v[{b+2*h}:{b+2*h+1}] op_sel_hi:[1,0,1]")
        for h in range(4): k.i(f"v_max_f32 v{a+h}, 0, v{a+h}")
        for h in range(2):
            k.i(f"v_pk_mul_f32 v[{a+2*h}:{a+2*h+1}], v[{a+2*h}:{a+2*h+1}], v[{a+2*h}:{a+2*h+1}]")
        for h in range(2):
            k.i(f"v_cvt_pk_bf16_f32 v{PK+2*n+h}, v{a+2*h}, v{a+2*h+1}")
        if j % 2 == 1:
            e = j // 2
            k.vm(f"buffer_store_dwordx4 v[{PK+8*nt+4*e}:{PK+8*nt+4*e+3}], v15, s[16:19], s34 offen offset:{1024*nt+256*e} {HO}", "out3")
    w2_issue(4)
    k.wait(vm="out3")
    stamp(15)
    k.i("s_barrier")
    sig_row(F3, 6)

def phase4():
    w2_issue(60)
    HR = 20; BR = 30; ACC = 40; RING = 120; NB = int(OPT["nb4"])
    srd(8, PB2, 1280)
    k.i(f"""v_and_b32 v4, 15, v1
    v_lshrrev_b32 v5, 4, v1
    s_lshl_b32 s33, s29, 1
    s_lshr_b32 s35, s20, 1
    s_add_u32 s33, s33, s35
    s_mul_i32 s33, s33, 40
    s_mul_i32 s35, s30, 5
    s_add_u32 s33, s33, s35
    s_lshl_b32 s33, s33, 10
    s_add_u32 s33, s33, {HH}
    s_and_b32 s35, s20, 1
    s_lshl_b32 s35, s35, 8
    s_add_u32 s33, s33, s35
    v_lshrrev_b32 v8, 1, v5
    v_lshlrev_b32 v8, 9, v8
    v_lshl_add_u32 v8, v4, 4, v8
    v_and_b32 v9, 1, v5
    v_lshl_add_u32 v8, v9, 3, v8
    v_add_u32 v9, 4096, v8
    v_lshlrev_b32 v17, 3, v5
    s_mul_i32 s34, s30, 160""")
    for c in range(5):
        k.vm(f"buffer_load_dwordx2 v[{HR+2*c}:{HR+2*c+1}], v{8 if c < 4 else 9}, s[16:19], s33 offen offset:{1024*(c%4)} {HO}")
    for c in range(5):
        k.vm(f"buffer_load_dwordx2 v[{BR+2*c}:{BR+2*c+1}], v17, s[8:11], s34 offen offset:{32*c}")
    k.i(f"""s_mul_i32 s21, s29, 196608
    s_mul_i32 s22, s20, 12288
    s_add_u32 s21, s21, s22
    s_add_u32 s21, s21, {H1}
    s_lshl_b32 s35, s29, 6
    s_lshl_b32 s33, s20, 4
    s_add_u32 s35, s35, s33
    v_add_u32 v6, s35, v4
    v_mul_u32_u24 v7, 1280, v6
    v_lshl_add_u32 v7, v5, 3, v7
    v_lshlrev_b32 v6, 2, v4
    s_lshl_b32 s42, s26, 7
    s_add_u32 s42, s42, {F3}
    s_mul_i32 s33, s20, 15360
    v_add_u32 v13, s33, v3""")
    for j in range(4):
        k.i(f"s_add_u32 s33, s20, {j}\ns_and_b32 s33, s33, 3\ns_mul_i32 s33, s33, 49152\nv_add_u32 v{8+j}, s33, v3")
    for j in range(1, 4):
        k.i(f"s_sub_u32 s33, s20, {j}\ns_and_b32 s33, s33, 3\ns_mul_i32 s33, s33, 15360\ns_add_u32 s33, s33, {(j-1)*5120}\nv_add_u32 v{13+j}, s33, v3")
    srd(8, POUT, 2621440)
    poll(6, 42, 12)
    stamp(16)
    tq = [0]
    def issue(n=1):
        for _ in range(n):
            i = tq[0]
            if i < 48:
                t, j = divmod(i, 4)
                r = RING + 16*(t % NB) + 4*j
                k.vm(f"buffer_load_dwordx4 v[{r}:{r+3}], v{8+j}, s[16:19], s21 offen offset:{1024*(t%4)} {HO}", f"s{t}_{j}")
                if i % 16 == 15: k.i("s_add_u32 s21, s21, 4096")
                tq[0] += 1
    issue(4*(NB-1))
    XF = 216
    k.i("s_mov_b32 s33, 0xffff0000")
    for j in range(10):
        k.i(f"v_lshlrev_b32 v{XF+2*j}, 16, v{HR+j}\nv_and_b32 v{XF+2*j+1}, s33, v{HR+j}")
        k.i(f"v_lshlrev_b32 v{XF+20}, 16, v{BR+j}\nv_and_b32 v{XF+21}, s33, v{BR+j}")
        k.i(f"v_pk_add_f32 v[{XF+2*j}:{XF+2*j+1}], v[{XF+2*j}:{XF+2*j+1}], v[{XF+20}:{XF+21}]")
    for t in range(12):
        for j in range(4):
            k.wait(vm=f"s{t}_{j}")
            for c in range(5):
                d = vr(ACC + (5*j+c)*4, 4)
                k.i(f"v_mfma_f32_16x16x32_bf16 {d}, {ar(4*(5*t+c), 4)}, {vr(RING+16*(t%NB)+4*j, 4)}, {'0' if t == 0 else d}")
                if c == 1: issue()
        if t == 0: pass
    stamp(17)
    for j in range(1, 4):
        for c in range(5):
            r = ACC + 20*j + 4*c
            k.lg(f"ds_write_b128 v13, v[{r}:{r+3}] offset:{(j-1)*5120 + 1024*c}")
    for c in range(5):
        for h in range(2):
            d = XF + 4*c + 2*h; a = ACC + 4*c + 2*h
            k.i(f"v_pk_add_f32 v[{d}:{d+1}], v[{d}:{d+1}], v[{a}:{a+1}]")
    k.wait(lg="all"); k.i("s_barrier")
    RR = 120
    for j in range(1, 4):
        for c in range(5):
            r = RR + 20*(j-1) + 4*c
            k.lg(f"ds_read_b128 v[{r}:{r+3}], v{13+j} offset:{1024*c}", f"r{j}_{c}")
    for j in range(1, 4):
        for c in range(5):
            k.wait(lg=f"r{j}_{c}")
            for h in range(2):
                d = XF + 4*c + 2*h; a = RR + 20*(j-1) + 4*c + 2*h
                k.i(f"v_pk_add_f32 v[{d}:{d+1}], v[{d}:{d+1}], v[{a}:{a+1}]")
            if j == 3:
                k.i(f"v_cvt_pk_bf16_f32 v{HR+2*c}, v{XF+4*c}, v{XF+4*c+1}\nv_cvt_pk_bf16_f32 v{HR+2*c+1}, v{XF+4*c+2}, v{XF+4*c+3}")
                k.vm(f"buffer_store_dwordx2 v[{HR+2*c}:{HR+2*c+1}], v7, s[8:11], s34 offen offset:{32*c}")
    k.i(f"""s_or_b32 s33, s45, s20
    s_cmp_lg_u32 s33, 0
    s_cbranch_scc1 p4_noep
    v_mov_b32 v4, s44
    v_mov_b32 v5, {CB}
    s_mov_b64 exec, 1
    buffer_store_dword v4, v5, s[16:19], 0 offen sc1
    s_mov_b64 exec, -1""")
    k.label("p4_noep")

def stamp_out():
    if not OPT["stamps"]: return
    n = NSTAMP
    k.i("s_waitcnt vmcnt(0) lgkmcnt(0)")
    k.i(f"s_memrealtime s[{64+2*n}:{65+2*n}]")
    k.i("s_waitcnt lgkmcnt(0)")
    k.i(f"s_lshl_b32 s3, s45, 2\ns_add_u32 s3, s3, s20\ns_lshl_b32 s3, s3, 7\ns_add_u32 s3, s3, 0x2000000\nv_mov_b32 v1, s3")
    for j in range(n+1): k.i(f"v_mov_b32 v{2+j}, s{64+2*j}")
    k.i("s_mov_b64 exec, 1")
    for j in range(n+1): k.i(f"global_store_dword v1, v{2+j}, s[14:15] offset:{4*j}")
    if OPT.get("dbgmax"):
        k.i("s_load_dwordx2 s[4:5], s[0:1], 72\nv_mov_b32 v1, 0\nv_not_b32 v2, v2\ns_waitcnt lgkmcnt(0)")
        sel = [0, 1, 2, 4, 5, 6, 7, 8, 9, 11, 12, 13, 14, 15, 16, 18]
        for j, q in enumerate(sel): k.i(f"global_atomic_umax v1, v{2+q}, s[4:5] offset:{4*j}")

def emit(path):
    global k
    k = Kern(KN)
    phase0(); phase1(); phase2(); phase3(); phase4(); stamp_out()
    k.label("kend"); k.i("s_endpgm")
    body, added = hazard_pass(k.L)
    print("instrs", len(body), "nop states added", added, file=sys.stderr)
    out = ["; persistent single-launch version; generated by dev/gen2.py",
           "; @launch grid=(256,1,1) block=(256,1,1) lds=163840",
           '.amdgcn_target "amdgcn-amd-amdhsa--gfx950"', ".text", f".globl {KN}", ".p2align 8", f".type {KN},@function", f"{KN}:"]
    out += [("" if (l.endswith(":") or l.startswith(";")) else "    ") + l for l in body]
    out += [".p2align 8", ".fill 16384, 4, 0xbf800000"] if False else []
    out += ['.section .rodata,"a"', ".p2align 6", f".amdhsa_kernel {KN}", "  .amdhsa_next_free_vgpr 512", "  .amdhsa_next_free_sgpr 102",
            "  .amdhsa_accum_offset 256", "  .amdhsa_group_segment_fixed_size 0", "  .amdhsa_kernarg_size 88",
            "  .amdhsa_user_sgpr_count 2", "  .amdhsa_user_sgpr_kernarg_segment_ptr 1",
            "  .amdhsa_system_sgpr_workgroup_id_x 1", ".end_amdhsa_kernel"]
    open(path, "w").write("\n".join(out) + "\n")

if __name__ == "__main__":
    for a in sys.argv[2:]:
        kk, v = a.split("=")
        OPT[kk] = {"True": True, "False": False}.get(v, v.replace("_", " "))
    emit(sys.argv[1])
```

```python
import re

def vr(a, n=1, k='v'):
    return f"{k}{a}" if n == 1 else f"{k}[{a}:{a+n-1}]"
def ar(a, n=1): return vr(a, n, 'a')
def sr(a, n=1): return vr(a, n, 's')

class Kern:
    def __init__(self, name):
        self.name = name
        self.L = []
        self.vm_n = 0; self.vm_tags = {}
        self.lg_n = 0; self.lg_tags = {}
        self.vm_done = 0
        self.lg_done = 0
    auto = None; th = 90; _iss = 0.0; _mf = 0.0; _busy = False; noauto = 0
    def i(self, s):
        for line in s.split("\n"):
            line = line.strip()
            if not line: continue
            self.L.append(line)
            op = line.split()[0]
            if op.startswith("v_mfma"): self._mf += 32 if "32x32" in op else 16; self._iss += 8
            elif op.startswith(("v_exp", "v_rcp", "v_sqrt")): self._iss += 8
            elif op.startswith(("v_", "ds_")): self._iss += 4.5
            elif op.startswith(("buffer_", "global_")): self._iss = 0; self._mf = 0
            elif op in ("s_barrier",): self._iss += 30
            else: self._iss += 2
            if "exec" in line: self.noauto = 0 if line.endswith("exec, -1") else 1
        if self.auto and not self._busy and not self.noauto and max(self._iss, self._mf) >= self.th:
            last = self.L[-1]
            if not (last.startswith(("s_cmp", "s_cbranch", "s_waitcnt", "v_cmp")) or "m0" in last or last.endswith(":")):
                self._busy = True; self.auto(); self._busy = False
    def c(self, s): self.L.append("; " + s)
    def label(self, s): self.L.append(s + ":")
    def vm(self, s, tag=None):
        self.i(s)
        if tag is not None: self.vm_tags[tag] = self.vm_n
        self.vm_n += 1
    def lg(self, s, tag=None):
        self.i(s)
        if tag is not None: self.lg_tags[tag] = self.lg_n
        self.lg_n += 1
    def _wv(self, tag):
        idx = self.vm_tags[tag]
        if idx < self.vm_done: return None
        n = self.vm_n - idx - 1
        self.vm_done = idx + 1
        return min(n, 63)
    def _wl(self, tag):
        idx = self.lg_tags[tag]
        if idx < self.lg_done: return None
        n = self.lg_n - idx - 1
        self.lg_done = idx + 1
        return min(n, 15)
    def wait(self, vm=None, lg=None):
        parts = []
        if vm is not None:
            if vm == 'all':
                if self.vm_done < self.vm_n: parts.append("vmcnt(0)")
                self.vm_done = self.vm_n
            else:
                n = self._wv(vm)
                if n is not None: parts.append(f"vmcnt({n})")
        if lg is not None:
            if lg == 'all':
                if self.lg_done < self.lg_n: parts.append("lgkmcnt(0)")
                self.lg_done = self.lg_n
            else:
                n = self._wl(lg)
                if n is not None: parts.append(f"lgkmcnt({n})")
        if parts: self.i("s_waitcnt " + " ".join(parts))
    def reset_counts(self):
        self.vm_done = self.vm_n; self.lg_done = self.lg_n

_REG = re.compile(r"^(-|\|)?(abs\()?([vas])(\d+|\[(\d+):(\d+)\])\)?\|?$")
def regs_of(tok):
    tok = tok.strip()
    if tok in ("vcc",): return {("s", 106), ("s", 107)}
    if tok == "vcc_lo": return {("s", 106)}
    if tok == "vcc_hi": return {("s", 107)}
    if tok == "exec": return {("s", 126), ("s", 127)}
    if tok == "m0": return {("s", 124)}
    m = _REG.match(tok)
    if not m: return set()
    k = m.group(3)
    if m.group(5) is not None:
        return {(k, r) for r in range(int(m.group(5)), int(m.group(6)) + 1)}
    return {(k, int(m.group(4)))}

TRANS = ("v_exp_", "v_log_", "v_rcp_", "v_rsq_", "v_sqrt_", "v_sin_", "v_cos_")
class Ins:
    def __init__(self, text):
        self.text = text
        t = text.split(";")[0].strip()
        self.is_label = t.endswith(":")
        self.is_dir = t.startswith(".") and not self.is_label
        self.empty = (t == "")
        self.op = ""; self.w = set(); self.r = set(); self.ops = []
        self.kind = None
        if self.is_label or self.is_dir or self.empty: return
        sp = t.split(None, 1)
        self.op = sp[0]
        rest = sp[1] if len(sp) > 1 else ""
        toks = []; cur = ""; d = 0
        for ch in rest:
            if ch in "[(": d += 1
            if ch in "])": d -= 1
            if ch == "," and d == 0: toks.append(cur.strip()); cur = ""
            else: cur += ch
        if cur.strip(): toks.append(cur.strip())
        mods = ""
        if toks:
            l = toks[-1].split()
            toks[-1] = l[0]; mods = " ".join(l[1:])
        self.ops = toks; self.mods = mods
        op = self.op
        R = [regs_of(x) for x in toks]
        if op.startswith("v_mfma"):
            self.kind = "mfma"; self.D = R[0]; self.A = R[1]; self.B = R[2]; self.C = R[3]
            self.w = R[0]; self.r = R[1] | R[2] | R[3]
            self.passes = 8 if "32x32" in op else 4
        elif op.startswith("v_"):
            self.kind = "valu"
            self.trans = op.startswith(TRANS)
            self.dpp = ("row_" in mods or "quad_perm" in mods or "_dpp" in op or "wave_" in mods)
            self.permlane = op.startswith("v_permlane")
            self.readlane = op.startswith("v_readlane") or op.startswith("v_readfirstlane")
            if self.permlane or op.startswith("v_swap"):
                self.w = R[0] | R[1]; self.r = R[0] | R[1]
            elif op.startswith(("v_add_co", "v_sub_co", "v_subrev_co", "v_addc_co", "v_subb_co", "v_mad_u64", "v_div_scale")):
                self.w = R[0] | R[1]; self.r = set().union(*R[2:])
            else:
                self.w = R[0]; self.r = set().union(*R[1:]) if len(R) > 1 else set()
                if op.startswith(("v_fmac", "v_dot2c", "v_pk_fmac", "v_mac", "v_writelane")) or self.dpp: self.r |= R[0]
            if op.startswith("v_cmpx"): self.w |= regs_of("exec")
        elif op.startswith(("buffer_", "global_", "flat_", "scratch_")):
            self.kind = "vmem"
            self.lds = bool(re.search(r"\blds\b", mods)) or "_lds_" in op
            self.wide_store = False
            if op in ("buffer_wbl2", "buffer_inv"):
                pass
            elif "_load" in op and not self.lds:
                self.w = R[0]; self.r = set().union(*R[1:])
            elif self.lds:
                self.r = set().union(*R) | regs_of("m0")
            elif op.startswith("buffer_"):
                self.r = set().union(*R); self.data = R[0]
                if "atomic" in op and "sc0" in mods: self.w = R[0]
                self.wide_store = ("x3" in op or "x4" in op) and "store" in op
            else:
                if "atomic" in op and "sc0" in mods:
                    self.w = R[0]; self.r = set().union(*R[1:]); self.data = R[2]
                else:
                    self.r = set().union(*R); self.data = R[1]
                self.wide_store = ("x3" in op or "x4" in op) and "store" in op
        elif op.startswith("ds_"):
            self.kind = "ds"
            if op.startswith(("ds_read", "ds_bpermute", "ds_permute", "ds_swizzle")) or "_rtn" in op:
                self.w = R[0]; self.r = set().union(*R[1:])
            else:
                self.r = set().union(*R)
        elif op.startswith("s_"):
            self.kind = "salu"
            if op.startswith(("s_cmp", "s_cbranch", "s_branch", "s_waitcnt", "s_nop", "s_barrier", "s_endpgm", "s_sleep", "s_setprio", "s_bitcmp")):
                self.r = set().union(*R) if R else set()
            else:
                self.w = R[0] if R else set(); self.r = set().union(*R[1:]) if len(R) > 1 else set()
                if "saveexec" in op: self.w |= regs_of("exec")
        else:
            raise ValueError("unknown op " + text)
    def states(self):
        if self.is_label or self.is_dir or self.empty: return 0
        if self.op == "s_nop": return int(self.ops[0], 0) + 1
        return 1

def isv(S): return {x for x in S if x[0] in "va"}
def iss(S): return {x for x in S if x[0] == "s"}

def need(P, C):
    n = 0
    if P.kind == "valu":
        wv = isv(P.w); ws = iss(P.w)
        if C.kind == "mfma" and wv & C.r: n = max(n, 2)
        if C.kind == "valu":
            if wv & C.r:
                if C.readlane: n = max(n, 1)
                if C.dpp or C.permlane: n = max(n, 2)
                if P.trans and not C.trans: n = max(n, 1)
            if ws & C.r:
                n = max(n, 2)
                if C.op.startswith(("v_readlane", "v_writelane")): n = max(n, 4)
            if (ws & regs_of("exec")) and (C.dpp): n = max(n, 5)
        if C.kind == "vmem" and ws & C.r: n = max(n, 5)
        if C.kind == "mfma" and (ws & regs_of("exec")): n = max(n, 4)
        if C.kind == "salu" and ws & C.r: n = max(n, 2)
    if P.kind == "mfma":
        far = 12 if P.passes == 8 else 8
        if C.kind == "mfma":
            if P.D & (C.A | C.B): n = max(n, far)
            if P.D & C.C:
                if not (P.D == C.C and P.passes == C.passes): n = max(n, far - 2)
            elif P.D & C.D: n = max(n, far)
        elif C.kind in ("valu", "vmem", "ds"):
            if P.D & (C.r | C.w): n = max(n, far)
            if C.kind == "valu" and (P.C & C.w): n = max(n, 7 if P.passes == 8 else 3)
    if P.kind == "salu":
        if (regs_of("m0") & P.w) and C.kind == "vmem" and getattr(C, "lds", False): n = max(n, 1)
    if P.kind == "vmem" and getattr(P, "wide_store", False):
        if P.data & C.w: n = max(n, 2 if C.kind == "valu" else 1)
    return n

def hazard_pass(lines, verbose=False):
    ins = [Ins(l) for l in lines]
    added = 0
    def maps():
        labels = {x.text.split(";")[0].strip()[:-1]: k for k, x in enumerate(ins) if x.is_label}
        br = {}
        for k, x in enumerate(ins):
            if x.op.startswith(("s_branch", "s_cbranch")):
                br.setdefault(labels[x.ops[0]], []).append(k)
        return br
    br = maps()
    k = 0
    while k < len(ins):
        C = ins[k]
        if C.kind is None:
            k += 1; continue
        worst = 0
        stack = [(k, 0)]; seen = {}
        while stack:
            p, d = stack.pop()
            if d >= 13 or seen.get(p, 99) <= d: continue
            seen[p] = d
            preds = []
            if ins[p].is_label: preds += br.get(p, [])
            if p > 0 and ins[p-1].op not in ("s_branch", "s_endpgm"): preds.append(p - 1)
            for q in preds:
                P = ins[q]
                if P.kind is not None:
                    nd = need(P, C)
                    if nd > d: worst = max(worst, nd - d)
                stack.append((q, d + P.states()))
        if worst > 0:
            if verbose: print("nop", worst, "before", C.text)
            ins.insert(k, Ins(f"s_nop {worst-1}"))
            added += worst
            br = maps()
            k += 1
        k += 1
    return [x.text for x in ins], added
```

```python
import sys
from asmlib import *

NAME = "sequential_preLN__linear_attn_block__dense_activation_squared_relu__prompt"
KN = NAME + "_kernel"
CB = 0x0
F0B = CB + 0x1000; F2 = CB + 0x2000; F3 = CB + 0x4000; F0 = 0x90000; F1 = 0x98000
CS = 0x10000; KVA = 0x20000; ST = 0x40000
XN = 0x100000; WQ = 0x380000; WO = 0x600000; W1 = 0x700000; W2 = 0x900000
PQ = 0xB00000; HH = 0xE00000; H1 = 0x1200000
WSZ = 0x1800000
LOG2E = 0x3fb8aa3b
OPT = dict(stamps=False, cold="nt")
HO = "sc1"
UL = 131072
def O(n, d): return int(OPT.get(n, d))

def magic(C, maxq):
    for sh in range(4, 24):
        m = -(-(1 << sh) // C)
        if m * maxq < (1 << 32) and m < (1 << 24) and all((q * m) >> sh == q // C for q in range(maxq)): return m, sh
    raise ValueError

k = None
def srd(d, base, size):
    k.i(f"s_mov_b32 s{d}, s{base}\ns_mov_b32 s{d+1}, s{base+1}\ns_mov_b32 s{d+2}, {size}\ns_mov_b32 s{d+3}, 0x20000")
def bf16r(d, s):
    k.i(f"v_cvt_pk_bf16_f32 v{d}, v{s}, v{s}\nv_lshlrev_b32 v{d}, 16, v{d}")
NSTAMP = 18
def stamp(idx, grp=None):
    if not OPT["stamps"]: return
    f = OPT.get("focus")
    lo = {"p0": (5, 18), "p1": (8, 18), "p1e": (8, 18), "p2": (13, 18), "clk": (1, 18)}.get(f)
    if grp is None and lo and lo[0] <= idx < lo[1]: return
    if grp is not None and grp != f: return
    k.i(f"s_memrealtime s[{64+2*idx}:{65+2*idx}]")
def cst(slot):
    if OPT["stamps"] and OPT.get("focus") == "clk":
        k.i(f"s_memrealtime s[{64+2*slot}:{65+2*slot}]\ns_memtime s[{66+2*slot}:{67+2*slot}]")
def snap(): return (k.vm_n, dict(k.vm_tags), k.vm_done, k.lg_n, dict(k.lg_tags), k.lg_done)
def rest(s): k.vm_n, k.vm_tags, k.vm_done, k.lg_n, k.lg_tags, k.lg_done = s[0], dict(s[1]), s[2], s[3], dict(s[4]), s[5]

class capture:
    def __enter__(self):
        self.save = (k.L, k.auto, k._iss, k._mf); k.L = []; k.auto = None; return self
    def __exit__(self, *a):
        self.lines = k.L; k.L, k.auto, k._iss, k._mf = self.save
def merge(main, fill, per):
    fill = list(fill)
    for m in main:
        m()
        for _ in range(per):
            if fill: k.i(fill.pop(0))
    return fill

PX, PWQ, PWO, PW1, PB1, PW2, PB2, POUT = 48, 50, 52, 56, 58, 60, 62, 46

npoll = 0
def check4(vt):
    k.i(f"v_xor_b32 v{vt}, s44, v{vt}\nv_xor_b32 v{vt+1}, s44, v{vt+1}\nv_xor_b32 v{vt+2}, s44, v{vt+2}\nv_xor_b32 v{vt+3}, s44, v{vt+3}")
    k.i(f"v_or3_b32 v{vt}, v{vt}, v{vt+1}, v{vt+2}\nv_or_b32 v{vt}, v{vt}, v{vt+3}\nv_cmp_ne_u32 vcc, 0, v{vt}")
def poll(vaddr, soff, vt, wide=False, w0=True, slp=0):
    global npoll
    npoll += 1
    L = f"poll{npoll}"
    au = k.auto; k.auto = None
    if w0: k.i(f"s_cmp_lg_u32 s20, 0\ns_cbranch_scc1 {L}d")
    if slp: k.i(f"s_sleep {slp}")
    k.i("s_mov_b32 s43, 0x20000")
    k.label(L)
    if OPT.get("apoll"):
        if wide:
            k.i(f"v_mov_b32 v{vt}, 0\nv_mov_b32 v{vt+1}, 0\nv_mov_b32 v{vt+2}, 0\nv_mov_b32 v{vt+3}, 0")
            k.i(f"buffer_atomic_or_x2 v[{vt}:{vt+1}], v{vaddr}, s[16:19], s{soff} offen sc0\nbuffer_atomic_or_x2 v[{vt+2}:{vt+3}], v{vaddr}, s[16:19], s{soff} offen offset:8 sc0\ns_waitcnt vmcnt(0)")
            check4(vt)
        else:
            k.i(f"v_mov_b32 v{vt}, 0\nbuffer_atomic_or v{vt}, v{vaddr}, s[16:19], s{soff} offen sc0\ns_waitcnt vmcnt(0)\nv_cmp_ne_u32 vcc, s44, v{vt}")
    else:
        if wide:
            k.i(f"buffer_load_dwordx4 v[{vt}:{vt+3}], v{vaddr}, s[16:19], s{soff} offen {OPT.get('ppol', 'sc1')}\ns_waitcnt vmcnt(0)")
            check4(vt)
        else:
            k.i(f"buffer_load_dword v{vt}, v{vaddr}, s[16:19], s{soff} offen {OPT.get('ppol', 'sc1')}\ns_waitcnt vmcnt(0)\nv_cmp_ne_u32 vcc, s44, v{vt}")
    k.i(f"s_cbranch_vccz {L}d")
    if O("sleep", 4): k.i(f"s_sleep {O('sleep', 4)}")
    k.i(f"s_sub_u32 s43, s43, 1\ns_cbranch_scc0 {L}")
    k.label(L + "d")
    k.auto = au
nsig = 0
def signal(mask, code, vt):
    global nsig
    nsig += 1
    L = f"sig{nsig}"
    au = k.auto; k.auto = None
    k.i(f"s_cmp_lg_u32 s20, 1\ns_cbranch_scc1 {L}")
    k.i(code)
    k.i(f"v_mov_b32 v{vt}, s44\ns_mov_b64 exec, {mask}\nbuffer_store_dword v{vt}, v{vt+1}, s[16:19], s42 offen {OPT.get('spol', 'sc1')}\ns_mov_b64 exec, -1")
    k.label(L)
    k.auto = au
def sig_all(base, vt):
    signal(0xff, f"v_lshlrev_b32 v{vt+1}, 12, v1\ns_lshr_b32 s42, s45, 3\ns_lshl_b32 s42, s42, 7\ns_and_b32 s43, s45, 7\ns_lshl_b32 s43, s43, 2\ns_add_u32 s42, s42, s43\ns_add_u32 s42, s42, {base}", vt)
def sig_row(base, vt):
    signal(1, f"v_mov_b32 v{vt+1}, 0\ns_lshl_b32 s42, s26, 2\ns_lshr_b32 s43, s27, 2\ns_add_u32 s42, s42, s43\ns_lshl_b32 s42, s42, 7\ns_and_b32 s43, s27, 3\ns_lshl_b32 s43, s43, 2\ns_add_u32 s42, s42, s43\ns_add_u32 s42, s42, {base}", vt)
ntree = 0
def poll_all(base, vt, slp):
    global ntree
    k.i(f"s_and_b32 s42, s2, 7\ns_lshl_b32 s42, s42, 12\ns_add_u32 s42, s42, {base}")
    k.i(f"v_lshrrev_b32 v{vt+4}, 1, v1\nv_lshlrev_b32 v{vt+4}, 7, v{vt+4}\nv_and_b32 v{vt}, 1, v1\nv_lshl_add_u32 v{vt+4}, v{vt}, 4, v{vt+4}")
    if not OPT.get("tree"):
        poll(vt+4, 42, vt, wide=True, slp=slp); return
    ntree += 1; L = f"tree{ntree}"
    NL = O("tree", 1)
    k.i(f"s_cmp_lg_u32 s20, 0\ns_cbranch_scc1 {L}d\ns_and_b32 s41, s2, {8*NL-1}\ns_lshl_b32 s41, s41, 7\ns_add_u32 s41, s41, {base + 0x10000}\ns_cmp_ge_u32 s2, {8*NL}\ns_cbranch_scc1 {L}m")
    poll(vt+4, 42, vt, wide=True, w0=False, slp=slp)
    k.i(f"v_mov_b32 v{vt}, s44\nv_mov_b32 v{vt+1}, 0\ns_mov_b64 exec, 1\nbuffer_store_dword v{vt}, v{vt+1}, s[16:19], s41 offen sc1\ns_mov_b64 exec, -1\ns_branch {L}d")
    k.label(L + "m")
    k.i(f"v_mov_b32 v{vt+1}, 0")
    sl = OPT.get("sleep"); OPT["sleep"] = 1
    poll(vt+1, 41, vt, w0=False)
    if sl is None: del OPT["sleep"]
    else: OPT["sleep"] = sl
    k.label(L + "d")
    k.i(f"s_mov_b32 s41, {LOG2E:#x}")
def poll_row(base, vt, slp):
    k.i(f"v_bfe_u32 v{vt+1}, v1, 2, 2\nv_lshlrev_b32 v{vt+1}, 7, v{vt+1}\nv_and_b32 v{vt}, 3, v1\nv_lshl_add_u32 v{vt+1}, v{vt}, 2, v{vt+1}\ns_lshl_b32 s42, s26, 9\ns_add_u32 s42, s42, {base}")
    poll(vt+1, 42, vt, slp=slp)

class BG:
    def __init__(self): self.q = []
    def add(self, ins, tag=None, pre="", post=""): self.q.append((pre, ins, post, tag))
    def go(self, n=1):
        for _ in range(n):
            if self.q:
                pre, ins, post, tag = self.q.pop(0)
                if OPT.get("nobg") and tag is not None and tag[:2] in ("wo", "w1", "w2"):
                    k.vm_tags[tag] = -1; continue
                k.i(pre); k.vm(ins, tag); k.i(post)
    def left(self): return len(self.q)

def phi4(a, dst, T):
    k.i(f"v_pk_mul_f32 v[{T}:{T+1}], v[{a}:{a+1}], s[40:41]")
    k.i(f"v_pk_mul_f32 v[{T+2}:{T+3}], v[{a+2}:{a+3}], s[40:41]")
    for j in range(4): k.i(f"v_exp_f32_e64 v{T+j}, v{T+j} clamp")
    for j in range(4): k.i(f"v_max_f32 v{T+4+j}, 0, v{a+j}")
    k.i(f"v_pk_add_f32 v[{T}:{T+1}], v[{T}:{T+1}], s[38:39]")
    k.i(f"v_pk_add_f32 v[{T+2}:{T+3}], v[{T+2}:{T+3}], s[38:39]")
    k.i(f"v_pk_add_f32 v[{T}:{T+1}], v[{T}:{T+1}], v[{T+4}:{T+5}]")
    k.i(f"v_pk_add_f32 v[{T+2}:{T+3}], v[{T+2}:{T+3}], v[{T+6}:{T+7}]")
    k.i(f"v_cvt_pk_bf16_f32 v{dst}, v{T}, v{T+1}")
    k.i(f"v_cvt_pk_bf16_f32 v{dst+1}, v{T+2}, v{T+3}")

ROWOFF = [[0, 4, 20, 24, 8], [12, 16, 28, 32, 36]]

def phase0():
    cold = OPT["cold"]
    stamp(0)
    k.i(f"""s_load_dwordx16 s[48:63], s[0:1], 0
    s_load_dwordx2 s[14:15], s[0:1], 80
    s_load_dwordx2 s[46:47], s[0:1], 64
    s_getpc_b64 s[4:5]
    pcl:
    s_cmp_ge_u32 s2, 256
    s_cbranch_scc1 kend
    s_lshr_b32 s25, s2, 3
    s_and_b32 s6, s25, 7
    s_lshl_b32 s6, s6, 13
    v_lshl_add_u32 v30, v0, 7, s6
    v_min_u32 v30, kend-pcl, v30
    v_cmp_gt_u32 vcc, 64, v0
    v_and_b32 v1, 63, v0
    v_lshrrev_b32 v2, 6, v0
    s_and_saveexec_b64 s[6:7], vcc
    s_cbranch_execz p0_nopf
    global_load_dword v31, v30, s[4:5]
    p0_nopf:
    s_mov_b64 exec, s[6:7]
    v_lshlrev_b32 v3, 4, v1
    v_readfirstlane_b32 s20, v2
    s_and_b32 s24, s2, 7
    s_lshr_b32 s26, s24, 1
    s_lshl_b32 s26, s26, 2
    s_lshr_b32 s27, s25, 3
    s_add_u32 s26, s26, s27
    s_and_b32 s27, s24, 1
    s_lshl_b32 s27, s27, 3
    s_and_b32 s25, s25, 7
    s_add_u32 s27, s27, s25
    s_lshl_b32 s45, s26, 4
    s_add_u32 s45, s45, s27
    v_bfe_u32 v28, v1, 2, 2
    v_and_b32 v29, 3, v1
    s_cmp_ge_u32 s45, 128
    s_cbranch_scc1 p0_w""")
    X = 8; F = 32
    k.i(f"""v_lshrrev_b32 v4, 4, v0
    v_and_b32 v5, 15, v0
    s_lshl_b32 s21, s45, 4
    v_add_u32 v6, s21, v4
    v_mul_u32_u24 v6, 1280, v6
    v_lshl_add_u32 v6, v5, 4, v6
    s_mov_b32 s10, 2621440
    s_mov_b32 s11, 0x20000
    s_waitcnt lgkmcnt(0)
    s_mov_b32 s8, s{PX}
    s_mov_b32 s9, s{PX+1}""")
    stamp(9, "p0")
    for i in range(5):
        k.i(f"buffer_load_dwordx4 v[{X+4*i}:{X+4*i+3}], v6, s[8:11], 0 offen offset:{256*i} {cold}")
    stamp(5, "p0")
    k.i(f"s_load_dword s44, s[14:15], {CB}")
    srd(16, 14, WSZ)
    k.i(f"""s_lshr_b32 s21, s45, 1
    s_mul_i32 s21, s21, 40960
    s_and_b32 s22, s45, 1
    s_lshl_b32 s22, s22, 8
    s_add_u32 s21, s21, s22
    s_add_u32 s21, s21, {XN}
    v_lshrrev_b32 v7, 1, v5
    v_lshlrev_b32 v7, 10, v7
    v_and_b32 v6, 1, v5
    v_lshlrev_b32 v6, 9, v6
    v_lshl_add_u32 v7, v4, 4, v7
    v_add_u32 v7, v7, v6
    s_mov_b32 s23, 0xffff0000
    s_mov_b32 s22, 0x3f803f80
    v_mov_b32 v112, 0
    v_mov_b32 v113, 0
    v_mov_b32 v114, 0
    v_mov_b32 v115, 0
    v_lshrrev_b32 v30, 4, v1""")
    for i in range(5):
        k.i(f"s_waitcnt vmcnt({4-i})")
        if i == 0: stamp(7, "p0")
        for j in range(4*i, 4*i+4):
            k.i(f"v_dot2_f32_bf16 v{112+2*(j&1)}, v{X+j}, s22, v{112+2*(j&1)}")
            k.i(f"v_dot2_f32_bf16 v{113+2*(j&1)}, v{X+j}, v{X+j}, v{113+2*(j&1)}")
    unp = []
    for j in range(20): unp += [f"v_lshlrev_b32 v{F+2*j}, 16, v{X+j}", f"v_and_b32 v{F+2*j+1}, s23, v{X+j}"]
    def U(n):
        for _ in range(n):
            if unp: k.i(unp.pop(0))
    U(3)
    k.i("v_pk_add_f32 v[112:113], v[112:113], v[114:115]")
    for s in (8, 4, 2, 1):
        U(2)
        k.i(f"v_add_f32_dpp v112, v112, v112 row_ror:{s} row_mask:0xf bank_mask:0xf")
        k.i(f"v_add_f32_dpp v113, v113, v113 row_ror:{s} row_mask:0xf bank_mask:0xf")
    k.i("v_mul_f32 v112, 0x3acccccd, v112\nv_mul_f32 v113, 0x3acccccd, v113\nv_fma_f32 v113, -v112, v112, v113\nv_max_f32 v113, 0, v113")
    bf16r(112, 112); bf16r(113, 113)
    k.i("v_add_f32 v113, 0x3727c5ac, v113")
    bf16r(113, 113)
    k.i("v_sqrt_f32 v113, v113"); U(1)
    bf16r(113, 113)
    k.i("v_rcp_f32 v114, v113")
    U(99)
    if OPT.get("lnexact"):
        for j in range(20): k.i(f"v_pk_add_f32 v[{F+2*j}:{F+2*j+1}], v[{F+2*j}:{F+2*j+1}], v[112:113] op_sel_hi:[1,0] neg_lo:[0,1] neg_hi:[0,1]")
        for j in range(20): k.i(f"v_cvt_pk_bf16_f32 v{X+j}, v{F+2*j}, v{F+2*j+1}")
        for j in range(20): k.i(f"v_lshlrev_b32 v{F+2*j}, 16, v{X+j}\nv_and_b32 v{F+2*j+1}, s23, v{X+j}")
    else:
        k.i("v_mul_f32 v116, v112, v114")
    for i in range(5):
        for j in range(4*i, 4*i+4):
            if OPT.get("lnexact"):
                k.i(f"v_pk_mul_f32 v[{F+2*j}:{F+2*j+1}], v[{F+2*j}:{F+2*j+1}], v[114:115] op_sel_hi:[1,0]")
            else:
                k.i(f"v_pk_fma_f32 v[{F+2*j}:{F+2*j+1}], v[{F+2*j}:{F+2*j+1}], v[114:115], v[116:117] op_sel_hi:[1,0,0] neg_lo:[0,0,1] neg_hi:[0,0,1]")
        for j in range(4*i, 4*i+4):
            k.i(f"v_cvt_pk_bf16_f32 v{X+j}, v{F+2*j}, v{F+2*j+1}")
        k.i(f"buffer_store_dwordx4 v[{X+4*i}:{X+4*i+3}], v7, s[16:19], s21 offen {HO}")
        if i < 4: k.i("s_add_u32 s21, s21, 8192")
    k.i("s_branch p0_drain")
    k.label("p0_w")
    m, sh = magic(80, 320)
    k.i(f"""s_cmp_ge_u32 s45, 248
    s_cbranch_scc1 p0_zero
    s_sub_u32 s21, s45, 128
    s_mul_i32 s30, s21, 171
    s_lshr_b32 s30, s30, 9
    s_mul_i32 s31, s30, 3
    s_sub_u32 s31, s21, s31
    s_mul_i32 s21, s30, 61440
    s_mul_i32 s22, s31, 1280
    s_add_u32 s21, s21, s22
    s_lshl_b32 s22, s20, 2
    s_mul_i32 s23, s20, 5120
    s_mov_b32 s10, 2457600
    s_mov_b32 s11, 0x20000""")
    for i in range(5):
        k.i(f"""v_add_u32 v4, {64*i}, v1
        v_mul_u32_u24 v5, {m}, v4
        v_lshrrev_b32 v5, {sh}, v5
        v_mul_u32_u24 v6, 80, v5
        v_sub_u32 v6, v4, v6
        v_lshlrev_b32 v6, 4, v6
        v_lshlrev_b32 v7, 6, v5
        v_add_u32 v5, s22, v5
        v_mul_u32_u24 v5, 3840, v5
        v_xad_u32 v{12+i}, v6, v7, v5""")
    k.i(f"s_waitcnt lgkmcnt(0)\ns_mov_b32 s8, s{PWQ}\ns_mov_b32 s9, s{PWQ+1}")
    stamp(9, "p0")
    for i in range(5):
        k.i(f"s_add_u32 m0, s23, {1024*i}\nbuffer_load_dwordx4 v{12+i}, s[8:11], s21 offen {cold} lds")
    stamp(5, "p0")
    k.i(f"s_load_dword s44, s[14:15], {CB}")
    srd(16, 14, WSZ)
    k.i(f"""v_lshrrev_b32 v30, 4, v1
    v_lshrrev_b32 v4, 1, v30
    v_lshl_add_u32 v4, v4, 3, v28
    v_mul_u32_u24 v4, 1280, v4
    v_and_b32 v5, 1, v30
    v_lshlrev_b32 v5, 5, v5
    v_lshl_add_u32 v5, v29, 3, v5
    v_lshlrev_b32 v6, 6, v28
    s_lshl_b32 s21, s30, 12
    s_add_u32 s21, s21, {WQ}
    s_cmp_lg_u32 s31, 0
    s_cbranch_scc1 p0_wkv
    s_lshl_b32 s22, s20, 6
    v_add_u32 v5, s22, v5
    v_xad_u32 v7, v5, v6, v4
    s_lshl_b32 s22, s20, 10
    s_add_u32 s21, s21, s22
    s_add_u32 s21, s21, {11*163840}
    s_waitcnt vmcnt(0)""")
    stamp(7, "p0")
    k.i("s_barrier")
    for m_ in range(5):
        r = 32 + 4*m_
        k.lg(f"ds_read_b64_tr_b16 v[{r}:{r+1}], v7 offset:{256*m_}")
        k.lg(f"ds_read_b64_tr_b16 v[{r+2}:{r+3}], v7 offset:{256*m_+4*1280}", f"q{m_}")
    for m_ in range(5):
        r = 32 + 4*m_
        k.wait(lg=f"q{m_}")
        k.i(f"buffer_store_dwordx4 v[{r}:{r+3}], v3, s[16:19], s21 offen {HO}\ns_add_u32 s21, s21, 163840")
    k.i("s_branch p0_drain")
    k.label("p0_wkv")
    k.i("""s_and_b32 s22, s20, 1
    s_lshr_b32 s23, s20, 1
    s_lshl_b32 s24, s22, 6
    s_mul_i32 s25, s23, 120
    s_add_u32 s24, s24, s25
    v_add_u32 v5, s24, v5
    s_lshl_b32 s24, s31, 1
    s_add_u32 s24, s24, s22
    s_sub_u32 s24, s24, 2
    s_lshl_b32 s24, s24, 10
    s_add_u32 s21, s21, s24
    s_mul_i32 s24, s23, 163840
    s_add_u32 s21, s21, s24""")
    for i in range(6):
        k.i(f"v_add_u32 v{12+i}, {240*i}, v5\nv_min_u32 v{12+i}, 1272, v{12+i}\nv_xad_u32 v{12+i}, v{12+i}, v6, v4")
    k.i("s_waitcnt vmcnt(0)")
    stamp(7, "p0")
    k.i("s_barrier")
    for i in range(6):
        r = 32 + 4*i
        k.lg(f"ds_read_b64_tr_b16 v[{r}:{r+1}], v{12+i}")
        k.lg(f"ds_read_b64_tr_b16 v[{r+2}:{r+3}], v{12+i} offset:{4*1280}", f"kv{i}")
    for i in range(6):
        r = 32 + 4*i
        if i == 5: k.i("s_cmp_lg_u32 s23, 0\ns_cbranch_scc1 p0_drain")
        k.wait(lg=f"kv{i}")
        k.i(f"buffer_store_dwordx4 v[{r}:{r+3}], v3, s[16:19], s21 offen {HO}\ns_add_u32 s21, s21, 327680")
    k.i("s_branch p0_drain")
    k.label("p0_zero")
    k.i(f"""s_sub_u32 s21, s45, 248
    s_mul_i32 s21, s21, 6720
    s_add_u32 s21, s21, {KVA}
    v_lshlrev_b32 v4, 4, v0
    v_mov_b32 v8, 0
    v_mov_b32 v9, 0
    v_mov_b32 v10, 0
    v_mov_b32 v11, 0
    v_lshrrev_b32 v30, 4, v1
    s_mov_b32 s10, 6720
    s_mov_b32 s11, 0x20000
    s_waitcnt lgkmcnt(0)
    s_add_u32 s8, s14, s21
    s_addc_u32 s9, s15, 0
    buffer_store_dwordx4 v[8:11], v4, s[8:11], 0 offen {HO}
    v_add_u32 v4, 4096, v4
    buffer_store_dwordx4 v[8:11], v4, s[8:11], 0 offen {HO}
    s_load_dword s44, s[14:15], {CB}""")
    stamp(9, "p0"); stamp(5, "p0"); stamp(7, "p0")
    srd(16, 14, WSZ)
    k.label("p0_drain")
    stamp(1)
    k.i("s_waitcnt vmcnt(0) lgkmcnt(0)\ns_add_u32 s44, s44, 1\ns_barrier")
    k.reset_counts()
    stamp(2)
    sig_all(F0, 4)
    UN = 0 if OPT.get("nounit") else 232
    k.i(f"""s_cmp_ge_u32 s45, {UN}
    s_cbranch_scc1 p0_uid
    s_sub_u32 s23, s20, 1
    s_mul_i32 s22, s23, 7168
    s_cmp_ge_u32 s45, 136
    s_cbranch_scc1 p0_ui_w2
    s_cmp_ge_u32 s45, 40
    s_cbranch_scc1 p0_ui_w1""")
    srd(8, PWO, 819200)
    k.i("""s_mul_i32 s35, s45, 26
    s_lshr_b32 s35, s35, 8
    s_mul_i32 s36, s35, 10
    s_sub_u32 s36, s45, s36
    s_mul_i32 s21, s35, 204800
    s_movk_i32 s29, 1280
    s_branch p0_ui_128""")
    k.label("p0_ui_w1")
    srd(8, PW1, 1966080)
    k.i("""s_sub_u32 s34, s45, 40
    s_mul_i32 s35, s34, 43
    s_lshr_b32 s35, s35, 10
    s_mul_i32 s36, s35, 24
    s_sub_u32 s36, s34, s36
    s_mul_i32 s21, s35, 491520
    s_movk_i32 s29, 3072""")
    k.label("p0_ui_128")
    k.i(f"""s_cmp_eq_u32 s20, 0
    s_cbranch_scc1 p0_uid
    s_lshl_b32 s24, s36, 7
    s_add_u32 s21, s21, s24
    v_lshrrev_b32 v4, 3, v1
    s_mul_i32 s24, s23, 56
    v_add_u32 v4, s24, v4
    v_and_b32 v5, 7, v1
    v_lshlrev_b32 v5, 4, v5
    v_and_b32 v6, 2, v4
    v_lshlrev_b32 v6, 5, v6
    v_mul_lo_u32 v4, v4, s29
    v_xad_u32 v4, v5, v6, v4
    s_lshl_b32 s29, s29, 3""")
    for i in range(7):
        k.i(f"s_add_u32 m0, s22, {UL+1024*i}\nbuffer_load_dwordx4 v4, s[8:11], s21 offen {cold} lds\ns_add_u32 s21, s21, s29")
    k.i("s_branch p0_uid")
    k.label("p0_ui_w2")
    srd(8, PW2, 1966080)
    m, sh = magic(40, 1344)
    k.i("""s_sub_u32 s34, s45, 136
    s_lshr_b32 s35, s34, 1
    s_and_b32 s36, s34, 1
    s_cmp_eq_u32 s20, 0
    s_cbranch_scc1 p0_uid
    s_mul_i32 s21, s35, 40960
    s_mul_i32 s24, s36, 640
    s_add_u32 s21, s21, s24
    s_mul_i32 s24, s23, 448
    v_add_u32 v8, s24, v1""")
    for i in range(7):
        k.i(f"""v_add_u32 v4, {64*i}, v8
        v_mul_u32_u24 v5, {m}, v4
        v_lshrrev_b32 v5, {sh}, v5
        v_mul_u32_u24 v6, 40, v5
        v_sub_u32 v6, v4, v6
        v_lshlrev_b32 v6, 4, v6
        v_and_b32 v7, 2, v5
        v_lshlrev_b32 v7, 4, v7
        v_and_b32 v9, 16, v5
        v_lshl_or_b32 v7, v9, 2, v7
        v_mul_u32_u24 v5, 1280, v5
        v_xad_u32 v4, v6, v7, v5
        s_add_u32 m0, s22, {UL+1024*i}
        buffer_load_dwordx4 v4, s[8:11], s21 offen {cold} lds""")
    k.label("p0_uid")

def unit_proc(sfx):
    UN = 0 if OPT.get("nounit") else 232
    D0 = 32
    k.i(f"""s_cmp_ge_u32 s45, {UN}
    s_cbranch_scc1 up_end{sfx}
    s_cmp_ge_u32 s45, 136
    s_cbranch_scc1 up_w2{sfx}
    s_and_b32 s6, s20, 1
    s_lshr_b32 s7, s20, 1
    s_lshl_b32 s37, s36, 1
    s_add_u32 s37, s37, s6
    s_cmp_ge_u32 s45, 40
    s_cbranch_scc1 up_w1{sfx}""")
    k.i(f"""v_and_b32 v52, 1, v30
    v_lshrrev_b32 v53, 1, v29
    v_lshl_add_u32 v52, v52, 1, v53
    v_add_u32 v52, s35, v52
    v_and_b32 v52, 3, v52
    v_lshlrev_b32 v52, 4, v52
    v_and_b32 v53, 1, v29
    v_lshl_add_u32 v52, v53, 3, v52
    s_lshl_b32 s24, s6, 6
    v_add_u32 v52, s24, v52
    v_and_b32 v53, 2, v28
    v_lshlrev_b32 v53, 5, v53
    v_xor_b32 v52, v52, v53
    v_lshl_add_u32 v52, v28, 7, v52
    s_mul_i32 s24, s7, 10240
    s_add_u32 s24, s24, {UL}
    v_add_u32 v52, s24, v52
    v_lshrrev_b32 v54, 5, v1
    v_lshlrev_b32 v54, 4, v54
    s_mul_i32 s24, s37, 205
    s_lshr_b32 s24, s24, 10
    s_mul_i32 s25, s24, 5
    s_sub_u32 s25, s37, s25
    s_lshl_b32 s24, s24, 2
    s_add_u32 s24, s24, s35
    s_mul_i32 s24, s24, 10
    s_mul_i32 s12, s7, 5
    s_add_u32 s24, s24, s12
    s_mul_i32 s24, s24, 5
    s_add_u32 s24, s24, s25
    s_lshl_b32 s24, s24, 10
    s_add_u32 s24, s24, {WO}""")
    for uu in range(5):
        for h2 in range(2):
            m_ = 2*uu + h2
            K = 0
            for hi in range(2): K |= ((40*(m_//5) + ROWOFF[hi][m_ % 5]) * 128) << (16*hi)
            r = D0 + 4*uu + 2*h2
            k.i(f"s_mov_b32 s25, {K:#x}\nv_bfe_u32 v55, s25, v54, 16\nv_add_u32 v55, v55, v52")
            k.lg(f"ds_read_b64_tr_b16 v[{r}:{r+1}], v55", f"uo{uu}")
    for uu in range(5):
        r = D0 + 4*uu
        k.wait(lg=f"uo{uu}")
        k.i(f"buffer_store_dwordx4 v[{r}:{r+3}], v3, s[16:19], s24 offen {HO}\ns_add_u32 s24, s24, 5120")
    k.i(f"s_branch up_end{sfx}")
    k.label(f"up_w1{sfx}")
    k.i(f"""v_lshrrev_b32 v52, 1, v30
    v_lshl_add_u32 v52, v52, 3, v28
    v_and_b32 v53, 1, v30
    v_lshlrev_b32 v53, 5, v53
    v_lshl_add_u32 v53, v29, 3, v53
    s_lshl_b32 s24, s6, 6
    v_add_u32 v53, s24, v53
    v_and_b32 v54, 2, v28
    v_lshlrev_b32 v54, 5, v54
    v_lshlrev_b32 v52, 7, v52
    v_xad_u32 v52, v53, v54, v52
    s_mul_i32 s24, s7, 10240
    s_add_u32 s24, s24, {UL}
    v_add_u32 v52, s24, v52
    v_mov_b32 v56, 0
    s_mov_b32 s12, 0x3f803f80
    s_mul_i32 s24, s37, 171
    s_lshr_b32 s24, s24, 9
    s_mul_i32 s25, s24, 3
    s_sub_u32 s25, s37, s25
    s_mul_i32 s24, s24, 40
    s_mul_i32 s13, s35, 10
    s_add_u32 s24, s24, s13
    s_mul_i32 s13, s7, 5
    s_add_u32 s24, s24, s13
    s_mul_i32 s24, s24, 3
    s_add_u32 s24, s24, s25
    s_lshl_b32 s24, s24, 10
    s_add_u32 s24, s24, {W1}""")
    for ks in range(5):
        r = D0 + 4*ks
        k.lg(f"ds_read_b64_tr_b16 v[{r}:{r+1}], v52 offset:{ks*2048}")
        k.lg(f"ds_read_b64_tr_b16 v[{r+2}:{r+3}], v52 offset:{ks*2048+512}", f"u1{ks}")
    for ks in range(5):
        r = D0 + 4*ks
        k.wait(lg=f"u1{ks}")
        k.i(f"buffer_store_dwordx4 v[{r}:{r+3}], v3, s[16:19], s24 offen {HO}\ns_add_u32 s24, s24, 3072")
        for j in range(4): k.i(f"v_dot2_f32_bf16 v56, v{r+j}, s12, v56")
    k.i(f"""s_nop 2
    v_mov_b32 v57, v56
    s_lshl_b32 s24, s35, 1
    s_add_u32 s24, s24, s7
    v_permlane32_swap_b32 v56, v57
    s_mul_i32 s24, s24, 6144
    s_lshl_b32 s25, s37, 7
    s_add_u32 s24, s24, s25
    s_add_u32 s24, s24, {CS}
    v_add_f32 v56, v56, v57
    v_lshlrev_b32 v57, 2, v1
    s_mov_b64 exec, 0xffffffff
    buffer_store_dword v56, v57, s[16:19], s24 offen {HO}
    s_mov_b64 exec, -1
    s_branch up_end{sfx}""")
    k.label(f"up_w2{sfx}")
    k.i(f"""v_and_b32 v52, 1, v30
    v_lshlrev_b32 v52, 4, v52
    v_lshrrev_b32 v53, 1, v30
    v_lshl_add_u32 v52, v53, 2, v52
    v_add_u32 v52, v52, v28
    v_and_b32 v54, 2, v52
    v_lshlrev_b32 v54, 4, v54
    v_and_b32 v55, 16, v52
    v_lshl_or_b32 v54, v55, 2, v54
    v_mul_u32_u24 v52, 640, v52
    v_add_u32 v52, {UL}, v52
    s_mul_i32 s24, s20, 160
    v_lshl_add_u32 v53, v29, 3, s24
    s_lshl_b32 s24, s36, 2
    s_add_u32 s24, s24, s20
    s_mul_i32 s24, s24, 48
    s_add_u32 s24, s24, s35
    s_mul_i32 s24, s24, 5120
    s_add_u32 s24, s24, {W2}""")
    for m_ in range(5):
        r = D0 + 4*m_
        k.i(f"v_add_u32 v55, {32*m_}, v53\nv_xad_u32 v55, v55, v54, v52")
        k.lg(f"ds_read_b64_tr_b16 v[{r}:{r+1}], v55")
        k.lg(f"ds_read_b64_tr_b16 v[{r+2}:{r+3}], v55 offset:{8*640}", f"u2{m_}")
    for m_ in range(5):
        r = D0 + 4*m_
        k.wait(lg=f"u2{m_}")
        k.i(f"buffer_store_dwordx4 v[{r}:{r+3}], v3, s[16:19], s24 offen {HO}\ns_add_u32 s24, s24, 1024")
    k.label(f"up_end{sfx}")

WOR = [160 + 4*f for f in range(24)] + [56 + 4*f for f in range(26)]
PQA = 0; XA = 40
W2R = WOR + list(range(0, 40, 4))
TBV = 244
WOB = None
def phase1():
    global WOB
    k.i(f"""v_add_u32 v4, 0x10000, v3
    v_add_u32 v5, 0x20000, v3
    s_lshl_b32 s28, s26, 2
    s_add_u32 s28, s28, s20
    s_mul_i32 s21, s28, 40960
    s_add_u32 s21, s21, {XN}
    s_lshl_b32 s23, s20, 12
    s_mul_i32 s22, s27, 163840
    s_add_u32 s22, s22, s23
    s_add_u32 s22, s22, {WQ}
    s_mov_b32 s40, {LOG2E:#x}
    s_mov_b32 s41, {LOG2E:#x}
    s_mov_b32 s38, 0x358637bd
    s_mov_b32 s39, 0x358637bd""")
    poll_all(F0, 8, O("slp0", 16))
    k.i("s_barrier")
    stamp(4)
    ACC = 64; WB = 128; T = 8; PK = 176; FB0 = 20; NS = 12; AH = 8
    PRE = O("pre1", 3)
    Q = BG()
    for s in range(10):
        for j in range(4):
            Q.add(f"buffer_load_dwordx4 v3, s[16:19], s22 offen offset:{1024*j} {HO} lds", f"W{s}",
                  pre=(f"s_add_u32 m0, s23, {s*16384}" if j == 0 else ""), post=("s_add_u32 s22, s22, 16384" if j == 3 else ""))
        for j in range(4):
            Q.add(f"buffer_load_dwordx4 a[{16*s+4*j}:{16*s+4*j+3}], v3, s[16:19], s21 offen offset:{1024*j} {HO}", f"X{4*s+j}",
                  post=("s_add_u32 s21, s21, 4096" if j == 3 else ""))
    Q.go(8*PRE)
    k.wait(vm="W0"); k.i("s_barrier")
    sv0 = snap(); unit_proc(""); rest(sv0)
    stamp(3)
    k.i(f"""s_lshr_b32 s33, s27, 3
    s_lshl_b32 s13, s33, 2
    s_and_b32 s12, s27, 3
    s_add_u32 s13, s13, s12
    s_bfe_u32 s12, s27, 0x10002
    s_lshl_b32 s31, s26, 1
    s_add_u32 s12, s12, s31
    s_lshl_b32 s31, s26, 2
    s_bfe_u32 s29, s27, 0x20001
    s_add_u32 s29, s29, s31
    s_lshl_b32 s30, s33, 1
    s_and_b32 s33, s27, 1
    s_add_u32 s30, s30, s33
    s_lshl_b32 s31, s30, 2
    s_add_u32 s31, s31, s20
    s_mul_i32 s31, s31, 51200
    s_add_u32 s31, s31, {WO}
    v_and_b32 v24, 31, v1
    s_lshl_b32 s33, s29, 5
    v_add_u32 v24, s33, v24
    v_mul_u32_u24 v24, 1280, v24
    v_lshrrev_b32 v25, 5, v1
    v_lshl_add_u32 v24, v25, 3, v24
    s_mul_i32 s3, s30, 320
    s_lshl_b32 s34, s20, 4
    s_add_u32 s3, s3, s34
    v_lshlrev_b32 v26, 2, v0
    v_lshlrev_b32 v27, 1, v0
    s_mul_i32 s33, s27, 192
    s_add_u32 s{PB1}, s{PB1}, s33
    s_addc_u32 s{PB1+1}, s{PB1+1}, 0
    s_mul_i32 s{PW1}, s27, 384
    s_add_u32 s{PW1}, s{PW1}, {CS}""")
    srd(8, PX, 2621440)
    k.i("s_cmp_ge_u32 s27, 11\ns_cbranch_scc1 p1_q")
    sv = snap(); Qs = list(Q.q)
    def mkbg():
        B = BG()
        for i in range(50):
            B.add(f"buffer_load_dwordx4 a[{WOR[i]}:{WOR[i]+3}], v3, s[16:19], s31 offen offset:{1024*(i%4)} {HO}", f"wo{i}", post=("s_add_u32 s31, s31, 4096" if i % 4 == 3 else ""))
        return B
    NPRE = O("wo_pre", 20)
    def loop(act_first, order_tail, fill_after, B, sfx):
        items = [(ks, j) for ks in range(36) for j in range(4)] + order_tail
        NCHK = 2*(80 - 8*PRE) + O("chk", 0)
        def rd(n):
            ks, j = items[n]
            if j == 0 and ks % 4 == 0 and ks > 0 and n == 4*ks:
                k.wait(vm=f"W{ks//4}"); k.i("s_barrier")
                if ks//4 == PRE + 1:
                    signal(1, f"v_mov_b32 v7, 0\ns_lshl_b32 s42, s45, 2\ns_add_u32 s42, s42, {F0B}", 6)
            o = (ks*4 + j) * 1024
            r = WB + 4*(n % NS)
            k.lg(f"ds_read_b128 v[{r}:{r+3}], v{3 + o//65536} offset:{o % 65536}", f"w{n}")
        for n in range(AH): rd(n)
        fill = []
        for n, (ks, j) in enumerate(items):
            if n % 2 == 0:
                k.wait(vm=f"X{max(items[n][0], items[n+1][0])}", lg=f"w{n+1}")
                if n % 16 == 0: stamp(8 + n//16, "p1")
            w = vr(WB + 4*(n % NS), 4); x = ar(4*ks, 4); d = vr(ACC + 16*j, 16)
            c = "0" if ks == 0 else d
            k.i(f"v_mfma_f32_32x32x16_bf16 {d}, {x}, {w}, {c}" if act_first else f"v_mfma_f32_32x32x16_bf16 {d}, {w}, {x}, {c}")
            if n % 2 == 0:
                if Q.left(): Q.go()

            else:
                for m_ in (n - 1 + AH, n + AH):
                    if m_ < 160: rd(m_)
            if n == NCHK - 16:
                k.i(f"s_mov_b32 s42, {F0B}")
                k.vm(f"buffer_load_dwordx4 v[{FB0}:{FB0+3}], v3, s[16:19], s42 offen sc1", "f0b")
            if n == NCHK:
                k.wait(vm="f0b")
                check4(FB0)
                k.i(f"s_cbranch_vccz p1_ok{sfx}\ns_mov_b32 s42, {F0B}")
                poll(3, 42, FB0, wide=True, w0=False)
                k.label(f"p1_ok{sfx}")
                lim[0] = min(24, NPRE); k.th = O("th1", 96)
                k.auto = lambda: B.go() if 50 - B.left() < lim[0] else None
            if n in fill_after: fill += fill_after[n]
            for _ in range(6):
                if fill: k.i(fill.pop(0))
        lim[0] = NPRE; k.th = O("th1e", 90)
        for l in fill: k.i(l)
    lim = [0]
    def phi_lines(t):
        with capture() as c:
            for b in range(0, 16, 4): phi4(ACC + 16*t + b, PK + 8*t + b//2, T)
        return c.lines
    tail = [(ks, j) for ks in range(36, 40) for j in (0, 1)] + [(ks, j) for ks in range(36, 40) for j in (2, 3)]
    B = mkbg()
    loop(True, tail, {153: phi_lines(0) + phi_lines(1)}, B, "kv")
    stamp(5)
    k.i("s_lshl_b32 s33, s20, 13\nv_add_u32 v6, s33, v3")
    for t in (0, 1):
        for f in range(2):
            k.lg(f"ds_write_b128 v6, v[{PK+8*t+4*f}:{PK+8*t+4*f+3}] offset:{2048*t+1024*f}")
    for t in (2, 3):
        for p in range(8):
            k.i(f"v_cvt_pk_bf16_f32 v{PK+8*t+p}, v{ACC+16*t+2*p}, v{ACC+16*t+2*p+1}")
        if t == 3:
            k.i("s_mov_b32 s34, 0xf0000000\ns_mov_b32 s35, 0xf0000000\nv_mov_b32 v7, 0x3f803f80")
            for p in range(8): k.i(f"v_cndmask_b32 v{PK+24+p}, v{PK+24+p}, v7, s[34:35]")
        for f in range(2):
            k.lg(f"ds_write_b128 v6, v[{PK+8*t+4*f}:{PK+8*t+4*f+3}] offset:{2048*t+1024*f}")
    k.i("""s_lshr_b32 s33, s20, 1
    s_and_b32 s34, s20, 1
    s_lshl_b32 s35, s33, 11
    v_add_u32 v8, s35, v3
    s_lshl_b32 s35, s34, 11
    s_add_u32 s35, s35, 4096
    v_add_u32 v9, s35, v3""")
    k.wait(lg="all"); k.i("s_barrier")
    stamp(8, "p1e")
    FA = 64; FB = 96; DD = 128
    for w in range(4):
        for f in range(2):
            n = 2*w + f
            k.lg(f"ds_read_b128 v[{FA+4*n}:{FA+4*n+3}], v8 offset:{8192*w+1024*f}")
            k.lg(f"ds_read_b128 v[{FB+4*n}:{FB+4*n+3}], v9 offset:{8192*w+1024*f}", f"f{n}")
    with capture() as c:
        k.i("""v_and_b32 v10, 31, v1
        s_lshl_b32 s35, s34, 5
        v_add_u32 v10, s35, v10
        v_mul_u32_u24 v11, 205, v10
        v_lshrrev_b32 v11, 12, v11
        v_mul_u32_u24 v12, 20, v11
        v_sub_u32 v12, v10, v12
        v_cmp_eq_u32 s[36:37], 60, v10
        v_mov_b32 v13, 20
        v_lshrrev_b32 v14, 5, v1
        v_cndmask_b32 v12, v12, v13, s[36:37]
        v_mul_u32_u24 v12, 80, v12
        v_lshlrev_b32 v14, 2, v14
        s_lshl_b32 s35, s33, 5
        v_add_u32 v14, s35, v14
        v_lshlrev_b32 v22, 2, v0""")
        MS = [4, 6, 24, 34]
        for j in range(4):
            ms = MS[j]
            k.i(f"""v_add_u32 v15, {8*j}, v14
            v_mul_u32_u24 v20, 205, v15
            v_lshrrev_b32 v20, 12, v20
            v_mul_u32_u24 v21, 20, v20
            v_sub_u32 v21, v15, v21
            v_cmp_eq_u32 s[{ms}:{ms+1}], v20, v11
            v_cmp_gt_u32 vcc, 3, v20
            v_mul_u32_u24 v20, 1680, v20
            v_lshl_add_u32 v21, v21, 2, v12
            v_add_u32 v{16+j}, v20, v21
            s_or_b64 s[{ms}:{ms+1}], s[{ms}:{ms+1}], s[36:37]
            s_and_b64 s[{ms}:{ms+1}], s[{ms}:{ms+1}], vcc""")
    fill = c.lines
    for _ in range(16): k.i(fill.pop(0))
    def kvm(n):
        def f():
            k.wait(lg=f"f{n}")
            k.i(f"v_mfma_f32_32x32x16_bf16 v[{DD}:{DD+15}], v[{FA+4*n}:{FA+4*n+3}], v[{FB+4*n}:{FB+4*n+3}], {'0' if n == 0 else vr(DD,16)}")
        return f
    for l in merge([kvm(n) for n in range(8)], fill, 6): k.i(l)
    for j in range(4):
        k.i(f"s_mov_b64 exec, s[{MS[j]}:{MS[j]+1}]")
        k.lg(f"ds_write_b128 v{16+j}, v[{DD+4*j}:{DD+4*j+3}] offset:32768")
    k.i(f"""s_mov_b64 exec, -1
    s_mul_i32 s33, s27, 5040
    s_add_u32 s33, s33, {KVA}
    s_add_u32 s4, s14, s33
    s_addc_u32 s5, s15, 0
    s_cmp_eq_u32 s27, 10
    s_movk_i32 s6, 5040
    s_cselect_b32 s6, 3360, s6
    s_mov_b32 s7, 0x20000""")
    k.wait(lg="all"); k.i("s_barrier")
    stamp(9, "p1e")
    for i in range(5):
        k.lg(f"ds_read_b32 v{32+i}, v22 offset:{32768+1024*i}", f"d{i}")
    for i in range(5):
        k.wait(lg=f"d{i}")
        if i == 4: k.i("v_add_u32 v22, 4096, v22")
        k.vm(f"buffer_atomic_add_f32 v{32+i}, v22, s[4:7], 0 offen offset:{1024*(i%4)}", "out1")
    stamp(10, "p1e")
    def bg_finish(B):
        k.auto = None
        print("WO left for the drain:", NPRE - (50 - B.left()), file=sys.stderr)
        B.go(NPRE - (50 - B.left()))
    bg_finish(B)
    k.wait(vm="out1")
    k.i("s_branch p1_fin")
    k.label("p1_q")
    rest(sv); Q.q = list(Qs)
    k.i(f"""s_mul_i32 s33, s28, 40960
    s_sub_u32 s34, s27, 11
    s_lshl_b32 s34, s34, 13
    s_add_u32 s33, s33, s34
    s_add_u32 s33, s33, {PQ}""")
    tail = [(ks, j) for j in range(4) for ks in range(36, 40)]
    B = mkbg()
    loop(False, tail, {149: phi_lines(0), 153: phi_lines(1)}, B, "q")
    stamp(5)
    for t in range(4):
        if t >= 2:
            for b in range(0, 16, 4):
                phi4(ACC + 16*t + b, PK + 8*t + b//2, T)
        for f in range(2):
            k.vm(f"buffer_store_dwordx4 v[{PK+8*t+4*f}:{PK+8*t+4*f+3}], v3, s[16:19], s33 offen offset:{(2048*t+1024*f) % 4096} {HO}", "out1")
        if t == 1: k.i("s_add_u32 s33, s33, 4096")
    stamp(8, "p1e"); stamp(9, "p1e"); stamp(10, "p1e")
    bg_finish(B)
    k.wait(vm="out1")
    k.label("p1_fin")
    stamp(6)
    k.i("s_barrier")
    sig_all(F1, 6)
    WOB = B
    for c in range(5):
        k.vm(f"buffer_load_dwordx2 a[{XA+2*c}:{XA+2*c+1}], v24, s[8:11], s3 offen offset:{64*c}")
    for j in range(8):
        k.vm(f"buffer_load_dword v{TBV+j}, v26, s[16:19], s{PW1} offen {HO}")
        k.i(f"s_add_u32 s{PW1}, s{PW1}, 6144")
    srd(8, PB1, 192)
    k.vm(f"buffer_load_ushort v{TBV+8}, v27, s[8:11], 0 offen")
    WOB.go(O("wo_w", 5))
    NW1 = O("w1_w", 16)
    k.i(f"""s_mul_i32 s25, s27, 122880
    s_add_u32 s25, s25, {W1}
    s_cmp_eq_u32 s20, 0
    s_cbranch_scc1 p1_now1
    s_sub_u32 s23, s20, 1
    s_mul_i32 s23, s23, {NW1*1024}
    s_add_u32 s24, s25, s23""")
    for i in range(NW1):
        if i % 4 == 0: k.i(f"s_add_u32 m0, s23, {1024*i}")
        if not OPT.get("nobg"): k.i(f"buffer_load_dwordx4 v3, s[16:19], s24 offen offset:{1024*(i%4)} {HO} lds")
        if i % 4 == 3: k.i("s_add_u32 s24, s24, 4096")
    k.i("s_waitcnt vmcnt(0)" if OPT.get("nobg") else f"s_waitcnt vmcnt({NW1})")
    k.label("p1_now1")
    stamp(7)

W2B = None
def phase2():
    global W2B
    P2L = 102400
    k.i(f"""s_mul_i32 s21, s20, 13440
    s_add_u32 s21, s21, {KVA}
    s_mul_i32 s23, s20, 15360
    s_add_u32 s23, s23, {P2L+64}
    s_mul_i32 s22, s29, 40960
    s_mul_i32 s33, s20, 10240
    s_add_u32 s22, s22, s33
    s_add_u32 s22, s22, {PQ}
    v_bfe_u32 v8, v1, 2, 3
    v_lshlrev_b32 v8, 2, v8
    v_and_b32 v9, 3, v1
    s_mov_b32 s33, 0x55524130
    s_mov_b32 s34, 0x55453120
    v_bfe_u32 v10, s33, v8, 4
    v_bfe_u32 v11, s34, v8, 4
    v_lshl_add_u32 v10, v10, 2, v9
    v_lshl_add_u32 v11, v11, 2, v9
    v_min_u32 v10, 20, v10
    v_min_u32 v11, 20, v11
    v_lshrrev_b32 v12, 5, v1
    v_lshlrev_b32 v12, 4, v12
    s_sub_u32 s33, s23, 16
    v_add_u32 v12, s33, v12
    v_mul_u32_u24 v10, 80, v10
    v_mul_u32_u24 v11, 80, v11
    v_add_u32 v10, v10, v12
    v_add_u32 v11, v11, v12
    s_lshl_b32 s28, s26, 2
    s_add_u32 s28, s28, s20
    s_mov_b32 s36, 0
    s_mov_b32 s37, -1
    s_lshl_b32 s35, s13, 2
    s_add_u32 s35, s35, s20
    s_mul_i32 s35, s35, 61440
    s_add_u32 s35, s35, {W2}""")
    poll_all(F1, 14, O('slp1', 0))
    k.i("s_barrier")
    k.vm_done = k.vm_n
    stamp(8)
    for i in range(14):
        if i % 4 == 0: k.i(f"s_add_u32 m0, s23, {1024*i}")
        k.vm(f"buffer_load_dwordx4 v3, s[16:19], s21 offen offset:{1024*(i%4)} {HO} lds", f"kv{i}")
        if i % 4 == 3: k.i("s_add_u32 s21, s21, 4096")
        if i in (6, 13):
            for kl in (range(0, 5) if i == 6 else range(5, 10)):
                k.vm(f"buffer_load_dwordx4 a[{PQA+4*kl}:{PQA+4*kl+3}], v3, s[16:19], s22 offen offset:{1024*(kl%4)} {HO}", f"pq{kl}")
                if kl % 4 == 3: k.i("s_add_u32 s22, s22, 4096")
    NW1 = O("w1_w", 16); N1 = (96 - 3*NW1) // 4
    assert 3*NW1 + 4*N1 == 96
    k.i(f"s_mul_i32 s24, s20, {N1*1024}\ns_add_u32 s24, s24, {3*NW1*1024}\ns_add_u32 s25, s25, s24")
    B1 = BG()
    for i in range(N1):
        B1.add(f"buffer_load_dwordx4 v3, s[16:19], s25 offen offset:{1024*(i%4)} {HO} lds", "w1",
               pre=(f"s_add_u32 m0, s24, {1024*i}" if i % 4 == 0 else ""), post=("s_add_u32 s25, s25, 4096" if i % 4 == 3 else ""))
    W2B = BG()
    for i in range(60):
        W2B.add(f"buffer_load_dwordx4 a[{W2R[i]}:{W2R[i]+3}], v3, s[16:19], s35 offen offset:{1024*(i%4)} {HO}", "w2", post=("s_add_u32 s35, s35, 4096" if i % 4 == 3 else ""))
    AF = 20; TT = 84; DT = 180; OG = 84; ACC = [20, 36, 124, 140, 156]
    for j in range(1, 8): k.i(f"v_add_f32 v{TBV}, v{TBV}, v{TBV+j}")
    k.i(f"v_lshlrev_b32 v{TBV+1}, 16, v{TBV+8}")
    jobs = {}
    n = 0
    for hl in range(8):
        jobs[hl] = []
        for u in range(2):
            for h2 in range(2):
                dg0 = -(hl % 4) + 4*u + 2*h2
                v0_ = 0 <= dg0 <= 4; v1_ = 0 <= dg0+1 <= 4
                d = AF + (2*hl+u)*4 + 2*h2
                if v0_ or v1_:
                    jobs[hl].append((d, n, v0_, v1_, hl*1680 + 16*(dg0+1))); n += 1
                else:
                    jobs[hl].append((d, None, 0, 0, 0))
                    k.i(f"v_mov_b32 v{d}, 0\nv_mov_b32 v{d+1}, 0")
    def kvreads(lo, hi):
        for hl in range(lo, hi):
            for d, n, _, _, o in jobs[hl]:
                if n is not None: k.lg(f"ds_read_b128 v[{TT+4*n}:{TT+4*n+3}], v{10 + (hl & 1)} offset:{o}", f"a{n}")
    def build(hl):
        for d, n, v0_, v1_, _ in jobs[hl]:
            if n is None: continue
            k.wait(lg=f"a{n}")
            t = TT + 4*n
            k.i(f"v_cvt_pk_bf16_f32 v{d}, v{t}, v{t+1}\nv_cvt_pk_bf16_f32 v{d+1}, v{t+2}, v{t+3}")
            if not v1_: k.i(f"v_cndmask_b32 v{d}, v{d}, 0, s[36:37]\nv_cndmask_b32 v{d+1}, v{d+1}, 0, s[36:37]")
            if not v0_: k.i(f"v_cndmask_b32 v{d}, 0, v{d}, s[36:37]\nv_cndmask_b32 v{d+1}, 0, v{d+1}, s[36:37]")
    def omm(hl):
        t0 = hl + hl//4
        d = vr(DT + 16*(hl % 4), 16)
        def f(u):
            def g():
                k.wait(vm=f"pq{t0+u}")
                k.i(f"v_mfma_f32_32x32x16_bf16 {d}, {vr(AF+(2*hl+u)*4, 4)}, {ar(PQA+4*(t0+u), 4)}, {'0' if u == 0 else d}")
            return g
        return [f(0), f(1)]
    def opost(hl):
        p = hl // 2; odd = hl & 1
        D = DT + 16*(hl % 4); rc = 16 + 2*odd
        a, b = (D+8, D+12) if odd else (D+12, D+8)
        with capture() as c:
            k.i(f"v_cndmask_b32 v{rc}, v{a}, v{b}, s[36:37]\nv_add_f32 v{rc}, s38, v{rc}\nv_rcp_f32 v{rc}, v{rc}\ns_nop 0")
            for h in range(6):
                k.i(f"v_pk_mul_f32 v[{D+2*h}:{D+2*h+1}], v[{D+2*h}:{D+2*h+1}], v[{rc}:{rc+1}] op_sel_hi:[1,0]")
            for j in range(2):
                g = OG + 2*(5*p + 2*odd + j)
                k.i(f"v_cvt_pk_bf16_f32 v{g}, v{D+4*j}, v{D+4*j+1}\nv_cvt_pk_bf16_f32 v{g+1}, v{D+4*j+2}, v{D+4*j+3}")
            g = OG + 2*(5*p + 4)
            if not odd:
                k.i(f"v_cvt_pk_bf16_f32 v{g}, v{D+8}, v{D+9}\nv_cvt_pk_bf16_f32 v{g+1}, v{D+10}, v{D+11}")
            else:
                k.i(f"v_cvt_pk_bf16_f32 v{D}, v{D+8}, v{D+9}\nv_cvt_pk_bf16_f32 v{D+1}, v{D+10}, v{D+11}")
                k.i(f"v_cndmask_b32 v{g}, v{g}, v{D}, s[36:37]\nv_cndmask_b32 v{g+1}, v{g+1}, v{D+1}, s[36:37]")
        return c.lines
    def wo(u, c, bg=True):
        def f():
            d = vr(ACC[c], 16)
            while f"wo{5*u+c}" not in k.vm_tags or (WOB.left() and 50 - WOB.left() <= 5*u+c): WOB.go()
            k.wait(vm=f"wo{5*u+c}")
            k.i(f"v_mfma_f32_32x32x16_bf16 {d}, {ar(WOR[5*u+c], 4)}, {vr(OG+4*u, 4)}, {'0' if u == 0 else d}")
            w2lim[0] = min(5*u, 35)
        return f
    w2lim = [0]
    def au2():
        if WOB.left(): WOB.go()
        elif B1.left(): B1.go()
        elif 60 - W2B.left() < w2lim[0]: W2B.go()
    k.auto = au2; k.th = O("th2", 90)
    k.wait(vm="kv6")
    stamp(13, "p2")
    kvreads(0, 4)
    for hl in range(4):
        build(hl)
        for f in omm(hl): f()
        if hl == 1:
            k.wait(vm="kv13"); kvreads(4, 8)
    for hl in range(4, 8):
        build(hl)
    stamp(9)
    for l in opost(0): k.i(l)
    for l in merge(omm(4), opost(1), 9): k.i(l)
    stamp(10)
    for l in merge(omm(5) + [wo(u, c) for u in (0, 1) for c in range(5)], opost(2) + opost(3), 4): k.i(l)
    for l in merge(omm(6) + omm(7) + [wo(u, c) for u in (2, 3, 4) for c in range(5)], opost(4) + opost(5), 3): k.i(l)
    with capture() as c:
        k.i(f"s_sub_u32 s33, s23, 64\nv_add_u32 v13, s33, v3")
        for j in range(1, 4):
            k.i(f"s_sub_u32 s33, s20, {j}\ns_and_b32 s33, s33, 3\ns_mul_i32 s33, s33, 15360\ns_add_u32 s33, s33, {P2L + (j-1)*5120}\nv_add_u32 v{13+j}, s33, v3")
    for l in merge([wo(u, c) for u in (5, 6) for c in range(5)], opost(6) + opost(7), 4): k.i(l)
    XF = 180
    with capture() as c2:
        k.i("s_mov_b32 s33, 0xffff0000")
        for j in range(10):
            k.i(f"v_accvgpr_read_b32 v{XF+2*j+1}, a{XA+j}")
        for j in range(10):
            k.i(f"v_lshlrev_b32 v{XF+2*j}, 16, v{XF+2*j+1}\nv_and_b32 v{XF+2*j+1}, s33, v{XF+2*j+1}")
    fill = c.lines + c2.lines
    def red_w(c):
        for j in range(1, 4):
            r = ACC[c] + 4*j
            k.lg(f"ds_write_b128 v13, v[{r}:{r+3}] offset:{(j-1)*5120 + 1024*c}")
    for c in range(5):
        fill = merge([wo(u, c) for u in (7, 8, 9)], fill, 4)
        if c >= 2: red_w(c - 2)
    for l in fill: k.i(l)
    w2lim[0] = 60
    stamp(11)
    red_w(3); red_w(4)
    for c in range(5):
        for h in range(2):
            d = XF + 4*c + 2*h; a = ACC[c] + 2*h
            k.i(f"v_pk_add_f32 v[{d}:{d+1}], v[{d}:{d+1}], v[{a}:{a+1}]")
    k.wait(lg="all"); k.i("s_barrier")
    stamp(14, "p2")
    RR = 84
    for j in range(1, 4):
        for c in range(5):
            r = RR + 20*(j-1) + 4*c
            k.lg(f"ds_read_b128 v[{r}:{r+3}], v{13+j} offset:{1024*c}", f"r{j}_{c}")
    k.i(f"""s_mul_i32 s34, s29, 40
    s_mul_i32 s21, s30, 10
    s_add_u32 s34, s34, s21
    s_lshr_b32 s21, s20, 1
    s_add_u32 s34, s34, s21
    s_lshl_b32 s34, s34, 10
    s_and_b32 s21, s20, 1
    s_lshl_b32 s21, s21, 9
    s_add_u32 s34, s34, s21
    s_add_u32 s34, s34, {HH}
    v_and_b32 v8, 31, v1
    v_lshrrev_b32 v9, 5, v1
    v_lshlrev_b32 v12, 3, v8
    v_lshlrev_b32 v8, 4, v8
    v_lshl_add_u32 v8, v9, 3, v8""")
    HP = 24
    for j in range(1, 4):
        for c in range(5):
            k.wait(lg=f"r{j}_{c}")
            for h in range(2):
                d = XF + 4*c + 2*h; a = RR + 20*(j-1) + 4*c + 2*h
                k.i(f"v_pk_add_f32 v[{d}:{d+1}], v[{d}:{d+1}], v[{a}:{a+1}]")
            if j == 3:
                k.i(f"v_cvt_pk_bf16_f32 v{HP+2*c}, v{XF+4*c}, v{XF+4*c+1}\nv_cvt_pk_bf16_f32 v{HP+2*c+1}, v{XF+4*c+2}, v{XF+4*c+3}")
                k.vm(f"buffer_store_dwordx2 v[{HP+2*c}:{HP+2*c+1}], v8, s[16:19], s34 offen offset:{2048*(c%2)} {HO}")
                if c % 2 == 1: k.i("s_add_u32 s34, s34, 4096")
    for j in range(10):
        k.i(f"v_lshlrev_b32 v{XF+2*j}, 16, v{HP+j}\nv_and_b32 v{XF+2*j+1}, s33, v{HP+j}")
    k.i(f"v_pk_add_f32 v[16:17], v[{XF}:{XF+1}], v[{XF+2}:{XF+3}]")
    k.i(f"v_pk_mul_f32 v[18:19], v[{XF}:{XF+1}], v[{XF}:{XF+1}]")
    k.i(f"v_pk_fma_f32 v[18:19], v[{XF+2}:{XF+3}], v[{XF+2}:{XF+3}], v[18:19]")
    for j in range(2, 10):
        k.i(f"v_pk_add_f32 v[16:17], v[16:17], v[{XF+2*j}:{XF+2*j+1}]")
        k.i(f"v_pk_fma_f32 v[18:19], v[{XF+2*j}:{XF+2*j+1}], v[{XF+2*j}:{XF+2*j+1}], v[18:19]")
    k.i(f"""v_add_f32 v16, v16, v17
    v_add_f32 v17, v18, v19
    v_mov_b32 v18, v16
    v_mov_b32 v19, v17
    s_lshl_b32 s34, s29, 4
    s_lshl_b32 s21, s30, 2
    s_add_u32 s34, s34, s21
    s_add_u32 s34, s34, s20
    v_permlane32_swap_b32 v16, v18
    v_permlane32_swap_b32 v17, v19
    s_lshl_b32 s34, s34, 8
    s_add_u32 s34, s34, {ST}
    v_pk_add_f32 v[16:17], v[16:17], v[18:19]
    s_mov_b64 exec, 0xffffffff""")
    k.vm(f"buffer_store_dwordx2 v[16:17], v12, s[16:19], s34 offen {HO}", "out2")
    k.i("s_mov_b64 exec, -1")
    stamp(15, "p2")
    k.auto = None
    print("P2 end: W1 left", B1.left(), "W2 left", W2B.left(), file=sys.stderr)
    B1.go(99)
    W2B.go(O("w2_d2", 12))
    k.wait(vm="out2")
    stamp(12)
    k.i("s_barrier")
    sig_row(F2, 6)
    k.i(f"s_mul_i32 s23, s20, 6144\ns_mul_i32 s25, s27, 122880\ns_add_u32 s25, s25, s23\ns_add_u32 s25, s25, {W1 + 98304}")
    for i in range(6):
        if i % 4 == 0: k.i(f"s_add_u32 m0, s23, {98304 + 1024*i}")
        k.vm(f"buffer_load_dwordx4 v3, s[16:19], s25 offen offset:{1024*(i%4)} {HO} lds", "w1t")
        if i % 4 == 3: k.i("s_add_u32 s25, s25, 4096")
    k.i(f"v_lshlrev_b32 v6, 2, v0\nv_add_u32 v6, 122880, v6")
    k.lg(f"ds_write_b32 v6, v{TBV}")
    k.lg(f"ds_write_b32 v6, v{TBV+1} offset:1024")

def phase3():
    TB = 122880
    k.i(f"""s_mul_i32 s21, s28, 40960
    s_add_u32 s21, s21, {HH}
    v_and_b32 v8, 31, v1
    v_lshrrev_b32 v7, 5, v1
    v_lshlrev_b32 v8, 3, v8
    v_lshl_add_u32 v8, v7, 8, v8
    s_lshl_b32 s33, s28, 12
    s_add_u32 s33, s33, {ST}
    v_lshlrev_b32 v14, 4, v7
    v_add_u32 v14, {TB}, v14
    v_bfe_u32 v15, v1, 4, 1
    v_mul_u32_u24 v15, 49152, v15
    v_and_b32 v16, 15, v1
    v_lshl_add_u32 v15, v16, 4, v15
    v_lshl_add_u32 v15, v7, 9, v15
    s_mul_i32 s34, s28, 98304
    s_mul_i32 s25, s27, 3072
    s_add_u32 s34, s34, s25
    s_add_u32 s34, s34, {H1}""")
    W2B.go(O("w2_w2", 4))
    poll_row(F2, 10, O('slp2', 8))
    k.wait(vm="w1t", lg="all")
    k.i("s_barrier")
    stamp(13)
    ACC = 40; WB = 88; NS = 9; AH = 6; HR = 124; NR = O("pre3", 12); SR = 20; CT = 172; PK = 232
    H = BG()
    for i in range(40):
        r = HR + 4*(i % NR)
        H.add(f"buffer_load_dwordx4 v[{r}:{r+3}], v3, s[16:19], s21 offen offset:{1024*(i%4)} {HO}", f"h{i}", post=("s_add_u32 s21, s21, 4096" if i % 4 == 3 else ""))
    H.go(4)
    for j in range(8):
        k.vm(f"buffer_load_dwordx2 v[{SR+2*j}:{SR+2*j+1}], v8, s[16:19], s33 offen offset:{512*j} {HO}", "stats")
    H.go(NR - 5)
    items = [(ks, j) for ks in range(36) for j in range(3)] + [(ks, j) for j in range(3) for ks in range(36, 40)]
    def rd(n):
        ks, j = items[n]
        o = (ks*3 + j) * 1024
        r = WB + 4*(n % NS)
        k.lg(f"ds_read_b128 v[{r}:{r+3}], v{3 + o//65536} offset:{o % 65536}", f"w{n}")
    with capture() as c:
        for j in range(1, 8): k.i(f"v_pk_add_f32 v[{SR}:{SR+1}], v[{SR}:{SR+1}], v[{SR+2*j}:{SR+2*j+1}]")
        k.i(f"""v_mov_b32 v10, v{SR}
        v_mov_b32 v11, v{SR+1}
        v_permlane32_swap_b32 v{SR}, v10
        v_permlane32_swap_b32 v{SR+1}, v11
        v_pk_add_f32 v[8:9], v[{SR}:{SR+1}], v[10:11]
        v_mul_f32 v8, 0x3acccccd, v8
        v_mul_f32 v9, 0x3acccccd, v9
        v_fma_f32 v9, -v8, v8, v9
        v_max_f32 v9, 0, v9""")
        bf16r(8, 8); bf16r(9, 9)
        k.i("v_add_f32 v9, 0x3727c5ac, v9")
        bf16r(9, 9)
        k.i("v_sqrt_f32 v9, v9")
        bf16r(9, 9)
        k.i("v_rcp_f32 v10, v9\nv_mul_f32 v12, v8, v10\nv_sub_f32 v12, 0, v12")
    statl = c.lines
    def tab_reads(nt):
        for j in range(4):
            n = 4*nt + j
            k.lg(f"ds_read_b128 v[{CT+4*n}:{CT+4*n+3}], v14 offset:{1024+128*nt+32*j}")
            k.lg(f"ds_read_b128 v[{SR+4*j}:{SR+4*j+3}], v14 offset:{128*nt+32*j}", f"t{nt}")
    def tab_lines(nt):
        with capture() as c:
            for j in range(4):
                b = CT + 4*(4*nt + j)
                for h in range(2):
                    k.i(f"v_pk_fma_f32 v[{b+2*h}:{b+2*h+1}], v[{SR+4*j+2*h}:{SR+4*j+2*h+1}], v[12:13], v[{b+2*h}:{b+2*h+1}] op_sel_hi:[1,0,1]")
        return c.lines
    def epi_lines(nt, j):
        n = 4*nt + j
        a = ACC + 4*n; b = CT + 4*n
        with capture() as c:
            for h in range(2):
                k.i(f"v_pk_fma_f32 v[{a+2*h}:{a+2*h+1}], v[{a+2*h}:{a+2*h+1}], v[10:11], v[{b+2*h}:{b+2*h+1}] op_sel_hi:[1,0,1]")
            for h in range(4): k.i(f"v_max_f32 v{a+h}, 0, v{a+h}")
            for h in range(2):
                k.i(f"v_pk_mul_f32 v[{a+2*h}:{a+2*h+1}], v[{a+2*h}:{a+2*h+1}], v[{a+2*h}:{a+2*h+1}]")
            for h in range(2):
                k.i(f"v_cvt_pk_bf16_f32 v{PK+2*n+h}, v{a+2*h}, v{a+2*h+1}")
        return c.lines
    def st_h1(nt, e):
        k.vm(f"buffer_store_dwordx4 v[{PK+8*nt+4*e}:{PK+8*nt+4*e+3}], v15, s[16:19], s34 offen offset:{1024*nt+256*e} {HO}", "out3")
    for n in range(AH): rd(n)
    fill = []
    k.auto = lambda: W2B.go(); k.th = O("th3", 100)
    for n, (ks, j) in enumerate(items):
        k.wait(vm=f"h{ks}", lg=f"w{n}")
        if n == 12: cst(7)
        if n == 108: cst(9)
        d = vr(ACC + 16*j, 16)
        k.i(f"v_mfma_f32_32x32x16_bf16 {d}, {vr(WB + 4*(n % NS), 4)}, {vr(HR + 4*(ks % NR), 4)}, {'0' if ks == 0 else d}")
        if n % 3 == 0: H.go()
        if O('w2_p3', 0) and n % O('w2_p3', 0) == 4: W2B.go()
        if n + AH < 120: rd(n + AH)
        if n == 18: fill += statl
        for nt in range(3):
            if n == 40 + 12*nt: tab_reads(nt)
            if n == 46 + 12*nt:
                k.wait(lg=f"t{nt}"); fill += tab_lines(nt)
        if n == 113: fill += epi_lines(0, 0) + epi_lines(0, 1) + epi_lines(0, 2) + epi_lines(0, 3)
        if n == 117: fill += epi_lines(1, 0) + epi_lines(1, 1)
        for _ in range(3 if n < 110 else 6):
            if fill: k.i(fill.pop(0))
    stamp(14)
    for l in fill: k.i(l)
    st_h1(0, 0); st_h1(0, 1); st_h1(1, 0)
    for nt, j in ((1, 2), (1, 3), (2, 0), (2, 1), (2, 2), (2, 3)):
        for l in epi_lines(nt, j): k.i(l)
        if j % 2 == 1: st_h1(nt, j // 2)
    k.auto = None
    print("P3 end: W2 left", W2B.left(), file=sys.stderr)
    W2B.go(O("w2_d3", 12))
    k.wait(vm="out3")
    stamp(15)
    k.i("s_barrier")
    sig_row(F3, 6)

def phase4():
    HR = 20; BR = 30; ACC = 40; RING = 120; NB = O("nb4", 6)
    srd(8, PB2, 1280)
    k.i(f"""v_and_b32 v4, 15, v1
    v_lshrrev_b32 v5, 4, v1
    s_lshl_b32 s33, s12, 1
    s_lshr_b32 s25, s20, 1
    s_add_u32 s33, s33, s25
    s_mul_i32 s33, s33, 40
    s_mul_i32 s25, s13, 5
    s_add_u32 s33, s33, s25
    s_lshl_b32 s33, s33, 10
    s_add_u32 s33, s33, {HH}
    s_and_b32 s25, s20, 1
    s_lshl_b32 s25, s25, 8
    s_add_u32 s33, s33, s25
    v_lshrrev_b32 v8, 1, v5
    v_lshlrev_b32 v8, 9, v8
    v_lshl_add_u32 v8, v4, 4, v8
    v_and_b32 v9, 1, v5
    v_lshl_add_u32 v8, v9, 3, v8
    v_add_u32 v9, 4096, v8
    v_lshlrev_b32 v17, 3, v5
    s_mul_i32 s34, s13, 160""")
    for c in range(5):
        k.vm(f"buffer_load_dwordx2 v[{HR+2*c}:{HR+2*c+1}], v{8 if c < 4 else 9}, s[16:19], s33 offen offset:{1024*(c%4)} {HO}")
    for c in range(5):
        k.vm(f"buffer_load_dwordx2 v[{BR+2*c}:{BR+2*c+1}], v17, s[8:11], s34 offen offset:{32*c}", "res")
    W2B.go(99)
    k.i(f"""s_mul_i32 s21, s12, 196608
    s_mul_i32 s22, s20, 12288
    s_add_u32 s21, s21, s22
    s_add_u32 s21, s21, {H1}
    s_lshl_b32 s25, s12, 6
    s_lshl_b32 s33, s20, 4
    s_add_u32 s25, s25, s33
    v_add_u32 v6, s25, v4
    v_mul_u32_u24 v7, 1280, v6
    v_lshl_add_u32 v7, v5, 3, v7
    s_mul_i32 s33, s20, 15360
    v_add_u32 v13, s33, v3""")
    for j in range(4):
        k.i(f"s_add_u32 s33, s20, {j}\ns_and_b32 s33, s33, 3\ns_mul_i32 s33, s33, 49152\nv_add_u32 v{8+j}, s33, v3")
    for j in range(1, 4):
        k.i(f"s_sub_u32 s33, s20, {j}\ns_and_b32 s33, s33, 3\ns_mul_i32 s33, s33, 15360\ns_add_u32 s33, s33, {(j-1)*5120}\nv_add_u32 v{13+j}, s33, v3")
    srd(8, POUT, 2621440)
    poll_row(F3, 18, O('slp3', 0))
    k.i("s_barrier")
    stamp(16)
    Q = BG()
    for i in range(48):
        t, j = divmod(i, 4)
        r = RING + 16*(t % NB) + 4*j
        Q.add(f"buffer_load_dwordx4 v[{r}:{r+3}], v{8+j}, s[16:19], s21 offen offset:{1024*(t%4)} {HO}", f"s{t}_{j}", post=("s_add_u32 s21, s21, 4096" if i % 16 == 15 else ""))
    Q.go(4*(NB-1))
    XF = 216
    k.wait(vm="res")
    k.i("s_mov_b32 s33, 0xffff0000")
    for j in range(10):
        k.i(f"v_lshlrev_b32 v{XF+2*j}, 16, v{HR+j}\nv_and_b32 v{XF+2*j+1}, s33, v{HR+j}")
        k.i(f"v_lshlrev_b32 v{XF+20}, 16, v{BR+j}\nv_and_b32 v{XF+21}, s33, v{BR+j}")
        k.i(f"v_pk_add_f32 v[{XF+2*j}:{XF+2*j+1}], v[{XF+2*j}:{XF+2*j+1}], v[{XF+20}:{XF+21}]")
    def red_w(j):
        for c in range(5):
            r = ACC + 20*j + 4*c
            k.lg(f"ds_write_b128 v13, v[{r}:{r+3}] offset:{(j-1)*5120 + 1024*c}")
    order = [(t, j) for t in range(10) for j in range(4)] + [(t, j) for j in (1, 2, 3, 0) for t in (10, 11)]
    for n, (t, j) in enumerate(order):
        k.wait(vm=f"s{t}_{j}")
        if n == 4: cst(11)
        if n == 40: cst(13)
        for c in range(5):
            d = vr(ACC + (5*j+c)*4, 4)
            k.i(f"v_mfma_f32_16x16x32_bf16 {d}, {ar(W2R[5*t+c], 4)}, {vr(RING+16*(t%NB)+4*j, 4)}, {'0' if t == 0 else d}")
            if c == 1: Q.go()
        if n in (42, 44, 46): red_w((n - 40)//2)
    stamp(17)
    k.wait(lg="all"); k.i("s_barrier")
    RR = 120
    for j in range(1, 4):
        for c in range(5):
            r = RR + 20*(j-1) + 4*c
            k.lg(f"ds_read_b128 v[{r}:{r+3}], v{13+j} offset:{1024*c}", f"r{j}_{c}")
    for c in range(5):
        for h in range(2):
            d = XF + 4*c + 2*h; a = ACC + 4*c + 2*h
            k.i(f"v_pk_add_f32 v[{d}:{d+1}], v[{d}:{d+1}], v[{a}:{a+1}]")
    for j in range(1, 4):
        for c in range(5):
            k.wait(lg=f"r{j}_{c}")
            for h in range(2):
                d = XF + 4*c + 2*h; a = RR + 20*(j-1) + 4*c + 2*h
                k.i(f"v_pk_add_f32 v[{d}:{d+1}], v[{d}:{d+1}], v[{a}:{a+1}]")
            if j == 3:
                k.i(f"v_cvt_pk_bf16_f32 v{HR+2*c}, v{XF+4*c}, v{XF+4*c+1}\nv_cvt_pk_bf16_f32 v{HR+2*c+1}, v{XF+4*c+2}, v{XF+4*c+3}")
                k.vm(f"buffer_store_dwordx2 v[{HR+2*c}:{HR+2*c+1}], v7, s[8:11], s34 offen offset:{32*c} {OPT.get('opol', '')}")
    k.i(f"""s_or_b32 s33, s45, s20
    s_cmp_lg_u32 s33, 0
    s_cbranch_scc1 p4_noep
    v_mov_b32 v4, s44
    v_mov_b32 v5, {CB}
    s_mov_b64 exec, 1
    buffer_store_dword v4, v5, s[16:19], 0 offen sc1
    s_mov_b64 exec, -1""")
    k.label("p4_noep")

def stamp_out():
    if not OPT["stamps"]: return
    n = NSTAMP
    k.i("s_waitcnt vmcnt(0) lgkmcnt(0)")
    k.i(f"s_memrealtime s[{64+2*n}:{65+2*n}]")
    k.i("s_waitcnt lgkmcnt(0)")
    k.i(f"s_lshl_b32 s3, s45, 2\ns_add_u32 s3, s3, s20\ns_lshl_b32 s3, s3, 7\ns_add_u32 s3, s3, 0x2000000\nv_mov_b32 v1, s3")
    for j in range(n+1): k.i(f"v_mov_b32 v{2+j}, s{64+2*j}")
    k.i("s_mov_b64 exec, 1")
    for j in range(n+1): k.i(f"global_store_dword v1, v{2+j}, s[14:15] offset:{4*j}")

def emit(path):
    global k
    k = Kern(KN)
    phase0(); phase1(); phase2(); phase3(); phase4(); stamp_out()
    k.label("kend"); k.i("s_endpgm")
    body, added = hazard_pass(k.L, verbose=bool(OPT.get("vnop")))
    print("instrs", len(body), "nop states added", added, file=sys.stderr)
    out = ["; pre-LN linear-attention block + squared-ReLU MLP, one persistent launch (256 workgroups, flag hand-offs in d_ws)",
           "; @launch grid=(256,1,1) block=(256,1,1) lds=163840",
           '.amdgcn_target "amdgcn-amd-amdhsa--gfx950"', ".text", f".globl {KN}", ".p2align 8", f".type {KN},@function", f"{KN}:"]
    out += [("" if (l.endswith(":") or l.startswith(";")) else "    ") + l for l in body]
    out += ['.section .rodata,"a"', ".p2align 6", f".amdhsa_kernel {KN}", "  .amdhsa_next_free_vgpr 512", "  .amdhsa_next_free_sgpr 102",
            "  .amdhsa_accum_offset 256", "  .amdhsa_group_segment_fixed_size 0", "  .amdhsa_kernarg_size 88",
            "  .amdhsa_user_sgpr_count 2", "  .amdhsa_user_sgpr_kernarg_segment_ptr 1",
            "  .amdhsa_system_sgpr_workgroup_id_x 1", ".end_amdhsa_kernel"]
    open(path, "w").write("\n".join(out) + "\n")

if __name__ == "__main__":
    for a in sys.argv[2:]:
        kk, v = a.split("=")
        OPT[kk] = {"True": True, "False": False, "none": ""}.get(v, v.replace("_", " "))
    emit(sys.argv[1])
```

```python
import sys
from asmlib import *

NAME = "sequential_preLN__linear_attn_block__dense_activation_squared_relu__prompt"
KN = NAME + "_kernel"
CB = 0x0
F0B = CB + 0x1000; F2 = CB + 0x2000; F3 = CB + 0x4000; F0 = 0x90000; F1 = 0x98000
CS = 0x10000; KVA = 0x20000; ST = 0x40000
XN = 0x100000; WQ = 0x380000; WO = 0x600000; W1 = 0x700000; W2 = 0x900000
PQ = 0xB00000; HH = 0xE00000; H1 = 0x1200000
WSZ = 0x1800000
LOG2E = 0x3fb8aa3b
OPT = dict(stamps=False, cold="nt", pre1=2, wo_pre=40, wo_w=0, w1_w=12, sleep=8, slp0=20, lnexact=True)
HO = "sc1"
UL = 131072
def O(n, d): return int(OPT.get(n, d))

def magic(C, maxq):
    for sh in range(4, 24):
        m = -(-(1 << sh) // C)
        if m * maxq < (1 << 32) and m < (1 << 24) and all((q * m) >> sh == q // C for q in range(maxq)): return m, sh
    raise ValueError

k = None
def srd(d, base, size):
    k.i(f"s_mov_b32 s{d}, s{base}\ns_mov_b32 s{d+1}, s{base+1}\ns_mov_b32 s{d+2}, {size}\ns_mov_b32 s{d+3}, 0x20000")
def bf16r(d, s):
    k.i(f"v_cvt_pk_bf16_f32 v{d}, v{s}, v{s}\nv_lshlrev_b32 v{d}, 16, v{d}")
NSTAMP = 18
def stamp(idx, grp=None):
    if not OPT["stamps"]: return
    f = OPT.get("focus")
    lo = {"p0": (5, 18), "p1": (8, 18), "p1e": (8, 18), "p2": (13, 18), "clk": (1, 18)}.get(f)
    if grp is None and lo and lo[0] <= idx < lo[1]: return
    if grp is not None and grp != f: return
    k.i(f"s_memrealtime s[{64+2*idx}:{65+2*idx}]")
def cst(slot):
    if OPT["stamps"] and OPT.get("focus") == "clk":
        k.i(f"s_memrealtime s[{64+2*slot}:{65+2*slot}]\ns_memtime s[{66+2*slot}:{67+2*slot}]")
def snap(): return (k.vm_n, dict(k.vm_tags), k.vm_done, k.lg_n, dict(k.lg_tags), k.lg_done)
def rest(s): k.vm_n, k.vm_tags, k.vm_done, k.lg_n, k.lg_tags, k.lg_done = s[0], dict(s[1]), s[2], s[3], dict(s[4]), s[5]

class capture:
    def __enter__(self):
        self.save = (k.L, k.auto, k._iss, k._mf); k.L = []; k.auto = None; return self
    def __exit__(self, *a):
        self.lines = k.L; k.L, k.auto, k._iss, k._mf = self.save
def merge(main, fill, per):
    fill = list(fill)
    for m in main:
        m()
        for _ in range(per):
            if fill: k.i(fill.pop(0))
    return fill

PX, PWQ, PWO, PW1, PB1, PW2, PB2, POUT = 48, 50, 52, 56, 58, 60, 62, 46

npoll = 0
def check4(vt):
    k.i(f"v_xor_b32 v{vt}, s44, v{vt}\nv_xor_b32 v{vt+1}, s44, v{vt+1}\nv_xor_b32 v{vt+2}, s44, v{vt+2}\nv_xor_b32 v{vt+3}, s44, v{vt+3}")
    k.i(f"v_or3_b32 v{vt}, v{vt}, v{vt+1}, v{vt+2}\nv_or_b32 v{vt}, v{vt}, v{vt+3}\nv_cmp_ne_u32 vcc, 0, v{vt}")
def poll(vaddr, soff, vt, wide=False, w0=True, slp=0):
    global npoll
    npoll += 1
    L = f"poll{npoll}"
    au = k.auto; k.auto = None
    if w0: k.i(f"s_cmp_lg_u32 s20, 0\ns_cbranch_scc1 {L}d")
    if slp: k.i(f"s_sleep {slp}")
    k.i("s_mov_b32 s43, 0x20000")
    k.label(L)
    if OPT.get("apoll"):
        if wide:
            k.i(f"v_mov_b32 v{vt}, 0\nv_mov_b32 v{vt+1}, 0\nv_mov_b32 v{vt+2}, 0\nv_mov_b32 v{vt+3}, 0")
            k.i(f"buffer_atomic_or_x2 v[{vt}:{vt+1}], v{vaddr}, s[16:19], s{soff} offen sc0\nbuffer_atomic_or_x2 v[{vt+2}:{vt+3}], v{vaddr}, s[16:19], s{soff} offen offset:8 sc0\ns_waitcnt vmcnt(0)")
            check4(vt)
        else:
            k.i(f"v_mov_b32 v{vt}, 0\nbuffer_atomic_or v{vt}, v{vaddr}, s[16:19], s{soff} offen sc0\ns_waitcnt vmcnt(0)\nv_cmp_ne_u32 vcc, s44, v{vt}")
    else:
        if wide:
            k.i(f"buffer_load_dwordx4 v[{vt}:{vt+3}], v{vaddr}, s[16:19], s{soff} offen {OPT.get('ppol', 'sc1')}\ns_waitcnt vmcnt(0)")
            check4(vt)
        else:
            k.i(f"buffer_load_dword v{vt}, v{vaddr}, s[16:19], s{soff} offen {OPT.get('ppol', 'sc1')}\ns_waitcnt vmcnt(0)\nv_cmp_ne_u32 vcc, s44, v{vt}")
    k.i(f"s_cbranch_vccz {L}d")
    if O("sleep", 4): k.i(f"s_sleep {O('sleep', 4)}")
    k.i(f"s_sub_u32 s43, s43, 1\ns_cbranch_scc0 {L}")
    k.label(L + "d")
    k.auto = au
nsig = 0
def signal(mask, code, vt):
    global nsig
    nsig += 1
    L = f"sig{nsig}"
    au = k.auto; k.auto = None
    k.i(f"s_cmp_lg_u32 s20, 1\ns_cbranch_scc1 {L}")
    k.i(code)
    k.i(f"v_mov_b32 v{vt}, s44\ns_mov_b64 exec, {mask}\nbuffer_store_dword v{vt}, v{vt+1}, s[16:19], s42 offen {OPT.get('spol', 'sc1')}\ns_mov_b64 exec, -1")
    k.label(L)
    k.auto = au
def sig_all(base, vt):
    signal(0xff, f"v_lshlrev_b32 v{vt+1}, 12, v1\ns_lshr_b32 s42, s45, 3\ns_lshl_b32 s42, s42, 7\ns_and_b32 s43, s45, 7\ns_lshl_b32 s43, s43, 2\ns_add_u32 s42, s42, s43\ns_add_u32 s42, s42, {base}", vt)
def sig_row(base, vt):
    signal(1, f"v_mov_b32 v{vt+1}, 0\ns_lshl_b32 s42, s26, 2\ns_lshr_b32 s43, s27, 2\ns_add_u32 s42, s42, s43\ns_lshl_b32 s42, s42, 7\ns_and_b32 s43, s27, 3\ns_lshl_b32 s43, s43, 2\ns_add_u32 s42, s42, s43\ns_add_u32 s42, s42, {base}", vt)
ntree = 0
def poll_all(base, vt, slp):
    global ntree
    k.i(f"s_and_b32 s42, s2, 7\ns_lshl_b32 s42, s42, 12\ns_add_u32 s42, s42, {base}")
    k.i(f"v_lshrrev_b32 v{vt+4}, 1, v1\nv_lshlrev_b32 v{vt+4}, 7, v{vt+4}\nv_and_b32 v{vt}, 1, v1\nv_lshl_add_u32 v{vt+4}, v{vt}, 4, v{vt+4}")
    if not OPT.get("tree"):
        poll(vt+4, 42, vt, wide=True, slp=slp); return
    ntree += 1; L = f"tree{ntree}"
    NL = O("tree", 1)
    k.i(f"s_cmp_lg_u32 s20, 0\ns_cbranch_scc1 {L}d\ns_and_b32 s41, s2, {8*NL-1}\ns_lshl_b32 s41, s41, 7\ns_add_u32 s41, s41, {base + 0x10000}\ns_cmp_ge_u32 s2, {8*NL}\ns_cbranch_scc1 {L}m")
    poll(vt+4, 42, vt, wide=True, w0=False, slp=slp)
    k.i(f"v_mov_b32 v{vt}, s44\nv_mov_b32 v{vt+1}, 0\ns_mov_b64 exec, 1\nbuffer_store_dword v{vt}, v{vt+1}, s[16:19], s41 offen sc1\ns_mov_b64 exec, -1\ns_branch {L}d")
    k.label(L + "m")
    k.i(f"v_mov_b32 v{vt+1}, 0")
    sl = OPT.get("sleep"); OPT["sleep"] = 1
    poll(vt+1, 41, vt, w0=False)
    if sl is None: del OPT["sleep"]
    else: OPT["sleep"] = sl
    k.label(L + "d")
    k.i(f"s_mov_b32 s41, {LOG2E:#x}")
def poll_row(base, vt, slp):
    k.i(f"v_bfe_u32 v{vt+1}, v1, 2, 2\nv_lshlrev_b32 v{vt+1}, 7, v{vt+1}\nv_and_b32 v{vt}, 3, v1\nv_lshl_add_u32 v{vt+1}, v{vt}, 2, v{vt+1}\ns_lshl_b32 s42, s26, 9\ns_add_u32 s42, s42, {base}")
    poll(vt+1, 42, vt, slp=slp)

class BG:
    def __init__(self): self.q = []
    def add(self, ins, tag=None, pre="", post=""): self.q.append((pre, ins, post, tag))
    def go(self, n=1):
        for _ in range(n):
            if self.q:
                pre, ins, post, tag = self.q.pop(0)
                if OPT.get("nobg") and tag is not None and tag[:2] in ("wo", "w1", "w2"):
                    k.vm_tags[tag] = -1; continue
                k.i(pre); k.vm(ins, tag); k.i(post)
    def left(self): return len(self.q)

def phi4(a, dst, T):
    k.i(f"v_pk_mul_f32 v[{T}:{T+1}], v[{a}:{a+1}], s[40:41]")
    k.i(f"v_pk_mul_f32 v[{T+2}:{T+3}], v[{a+2}:{a+3}], s[40:41]")
    for j in range(4): k.i(f"v_exp_f32_e64 v{T+j}, v{T+j} clamp")
    for j in range(4): k.i(f"v_max_f32 v{T+4+j}, 0, v{a+j}")
    k.i(f"v_pk_add_f32 v[{T}:{T+1}], v[{T}:{T+1}], s[38:39]")
    k.i(f"v_pk_add_f32 v[{T+2}:{T+3}], v[{T+2}:{T+3}], s[38:39]")
    k.i(f"v_pk_add_f32 v[{T}:{T+1}], v[{T}:{T+1}], v[{T+4}:{T+5}]")
    k.i(f"v_pk_add_f32 v[{T+2}:{T+3}], v[{T+2}:{T+3}], v[{T+6}:{T+7}]")
    k.i(f"v_cvt_pk_bf16_f32 v{dst}, v{T}, v{T+1}")
    k.i(f"v_cvt_pk_bf16_f32 v{dst+1}, v{T+2}, v{T+3}")

ROWOFF = [[0, 4, 20, 24, 8], [12, 16, 28, 32, 36]]

def phase0():
    cold = OPT["cold"]
    stamp(0)
    k.i(f"""s_load_dwordx16 s[48:63], s[0:1], 0
    s_load_dwordx2 s[14:15], s[0:1], 80
    s_load_dwordx2 s[46:47], s[0:1], 64
    s_getpc_b64 s[4:5]
    pcl:
    s_cmp_ge_u32 s2, 256
    s_cbranch_scc1 kend
    s_lshr_b32 s25, s2, 3
    s_and_b32 s6, s25, 7
    s_lshl_b32 s6, s6, 13
    v_lshl_add_u32 v30, v0, 7, s6
    v_min_u32 v30, kend-pcl, v30
    v_cmp_gt_u32 vcc, 64, v0
    v_and_b32 v1, 63, v0
    v_lshrrev_b32 v2, 6, v0
    s_and_saveexec_b64 s[6:7], vcc
    s_cbranch_execz p0_nopf
    {'s_nop 0' if OPT.get('nopf') else 'global_load_dword v31, v30, s[4:5]'}
    p0_nopf:
    s_mov_b64 exec, s[6:7]
    v_lshlrev_b32 v3, 4, v1
    v_readfirstlane_b32 s20, v2
    s_and_b32 s24, s2, 7
    s_lshr_b32 s26, s24, 1
    s_lshl_b32 s26, s26, 2
    s_lshr_b32 s27, s25, 3
    s_add_u32 s26, s26, s27
    s_and_b32 s27, s24, 1
    s_lshl_b32 s27, s27, 3
    s_and_b32 s25, s25, 7
    s_add_u32 s27, s27, s25
    s_lshl_b32 s45, s26, 4
    s_add_u32 s45, s45, s27
    v_bfe_u32 v28, v1, 2, 2
    v_and_b32 v29, 3, v1
    s_cmp_ge_u32 s45, 128
    s_cbranch_scc1 p0_w""")
    X = 8; F = 32
    k.i(f"""v_lshrrev_b32 v4, 4, v0
    v_and_b32 v5, 15, v0
    s_lshl_b32 s21, s45, 4
    v_add_u32 v6, s21, v4
    v_mul_u32_u24 v6, 1280, v6
    v_lshl_add_u32 v6, v5, 4, v6
    s_mov_b32 s10, 2621440
    s_mov_b32 s11, 0x20000
    s_waitcnt lgkmcnt(0)
    s_mov_b32 s8, s{PX}
    s_mov_b32 s9, s{PX+1}""")
    stamp(9, "p0")
    for i in range(5):
        k.i(f"buffer_load_dwordx4 v[{X+4*i}:{X+4*i+3}], v6, s[8:11], 0 offen offset:{256*i} {cold}")
    stamp(5, "p0")
    k.i(f"s_load_dword s44, s[14:15], {CB}")
    srd(16, 14, WSZ)
    k.i(f"""s_lshr_b32 s21, s45, 1
    s_mul_i32 s21, s21, 40960
    s_and_b32 s22, s45, 1
    s_lshl_b32 s22, s22, 8
    s_add_u32 s21, s21, s22
    s_add_u32 s21, s21, {XN}
    v_lshrrev_b32 v7, 1, v5
    v_lshlrev_b32 v7, 10, v7
    v_and_b32 v6, 1, v5
    v_lshlrev_b32 v6, 9, v6
    v_lshl_add_u32 v7, v4, 4, v7
    v_add_u32 v7, v7, v6
    s_mov_b32 s23, 0xffff0000
    s_mov_b32 s22, 0x3f803f80
    v_mov_b32 v112, 0
    v_mov_b32 v113, 0
    v_mov_b32 v114, 0
    v_mov_b32 v115, 0
    v_lshrrev_b32 v30, 4, v1""")
    for i in range(5):
        k.i(f"s_waitcnt vmcnt({4-i})")
        if i == 0: stamp(7, "p0")
        for j in range(4*i, 4*i+4):
            k.i(f"v_dot2_f32_bf16 v{112+2*(j&1)}, v{X+j}, s22, v{112+2*(j&1)}")
            k.i(f"v_dot2_f32_bf16 v{113+2*(j&1)}, v{X+j}, v{X+j}, v{113+2*(j&1)}")
    unp = []
    for j in range(20): unp += [f"v_lshlrev_b32 v{F+2*j}, 16, v{X+j}", f"v_and_b32 v{F+2*j+1}, s23, v{X+j}"]
    def U(n):
        for _ in range(n):
            if unp: k.i(unp.pop(0))
    U(3)
    k.i("v_pk_add_f32 v[112:113], v[112:113], v[114:115]")
    for s in (8, 4, 2, 1):
        U(2)
        k.i(f"v_add_f32_dpp v112, v112, v112 row_ror:{s} row_mask:0xf bank_mask:0xf")
        k.i(f"v_add_f32_dpp v113, v113, v113 row_ror:{s} row_mask:0xf bank_mask:0xf")
    k.i("v_mul_f32 v112, 0x3acccccd, v112\nv_mul_f32 v113, 0x3acccccd, v113\nv_fma_f32 v113, -v112, v112, v113\nv_max_f32 v113, 0, v113")
    bf16r(112, 112); bf16r(113, 113)
    k.i("v_add_f32 v113, 0x3727c5ac, v113")
    bf16r(113, 113)
    k.i("v_sqrt_f32 v113, v113"); U(1)
    bf16r(113, 113)
    k.i("v_rcp_f32 v114, v113")
    U(99)
    if OPT.get("lnexact"):
        for j in range(20): k.i(f"v_pk_add_f32 v[{F+2*j}:{F+2*j+1}], v[{F+2*j}:{F+2*j+1}], v[112:113] op_sel_hi:[1,0] neg_lo:[0,1] neg_hi:[0,1]")
        for j in range(20): k.i(f"v_cvt_pk_bf16_f32 v{X+j}, v{F+2*j}, v{F+2*j+1}")
        for j in range(20): k.i(f"v_lshlrev_b32 v{F+2*j}, 16, v{X+j}\nv_and_b32 v{F+2*j+1}, s23, v{X+j}")
    else:
        k.i("v_mul_f32 v116, v112, v114")
    for i in range(5):
        for j in range(4*i, 4*i+4):
            if OPT.get("lnexact"):
                k.i(f"v_pk_mul_f32 v[{F+2*j}:{F+2*j+1}], v[{F+2*j}:{F+2*j+1}], v[114:115] op_sel_hi:[1,0]")
            else:
                k.i(f"v_pk_fma_f32 v[{F+2*j}:{F+2*j+1}], v[{F+2*j}:{F+2*j+1}], v[114:115], v[116:117] op_sel_hi:[1,0,0] neg_lo:[0,0,1] neg_hi:[0,0,1]")
        for j in range(4*i, 4*i+4):
            k.i(f"v_cvt_pk_bf16_f32 v{X+j}, v{F+2*j}, v{F+2*j+1}")
        k.i(f"buffer_store_dwordx4 v[{X+4*i}:{X+4*i+3}], v7, s[16:19], s21 offen {HO}")
        if i < 4: k.i("s_add_u32 s21, s21, 8192")
    k.i("s_branch p0_drain")
    k.label("p0_w")
    m, sh = magic(80, 320)
    k.i(f"""s_cmp_ge_u32 s45, 248
    s_cbranch_scc1 p0_zero
    s_sub_u32 s21, s45, 128
    s_mul_i32 s30, s21, 171
    s_lshr_b32 s30, s30, 9
    s_mul_i32 s31, s30, 3
    s_sub_u32 s31, s21, s31
    s_mul_i32 s21, s30, 61440
    s_mul_i32 s22, s31, 1280
    s_add_u32 s21, s21, s22
    s_lshl_b32 s22, s20, 2
    s_mul_i32 s23, s20, 5120
    s_mov_b32 s10, 2457600
    s_mov_b32 s11, 0x20000""")
    for i in range(5):
        k.i(f"""v_add_u32 v4, {64*i}, v1
        v_mul_u32_u24 v5, {m}, v4
        v_lshrrev_b32 v5, {sh}, v5
        v_mul_u32_u24 v6, 80, v5
        v_sub_u32 v6, v4, v6
        v_lshlrev_b32 v6, 4, v6
        v_lshlrev_b32 v7, 6, v5
        v_add_u32 v5, s22, v5
        v_mul_u32_u24 v5, 3840, v5
        v_xad_u32 v{12+i}, v6, v7, v5""")
    k.i(f"s_waitcnt lgkmcnt(0)\ns_mov_b32 s8, s{PWQ}\ns_mov_b32 s9, s{PWQ+1}")
    stamp(9, "p0")
    for i in range(5):
        k.i(f"s_add_u32 m0, s23, {1024*i}\nbuffer_load_dwordx4 v{12+i}, s[8:11], s21 offen {cold} lds")
    stamp(5, "p0")
    k.i(f"s_load_dword s44, s[14:15], {CB}")
    srd(16, 14, WSZ)
    k.i(f"""v_lshrrev_b32 v30, 4, v1
    v_lshrrev_b32 v4, 1, v30
    v_lshl_add_u32 v4, v4, 3, v28
    v_mul_u32_u24 v4, 1280, v4
    v_and_b32 v5, 1, v30
    v_lshlrev_b32 v5, 5, v5
    v_lshl_add_u32 v5, v29, 3, v5
    v_lshlrev_b32 v6, 6, v28
    s_lshl_b32 s21, s30, 12
    s_add_u32 s21, s21, {WQ}
    s_cmp_lg_u32 s31, 0
    s_cbranch_scc1 p0_wkv
    s_lshl_b32 s22, s20, 6
    v_add_u32 v5, s22, v5
    v_xad_u32 v7, v5, v6, v4
    s_lshl_b32 s22, s20, 10
    s_add_u32 s21, s21, s22
    s_add_u32 s21, s21, {11*163840}
    s_waitcnt vmcnt(0)""")
    stamp(7, "p0")
    k.i("s_barrier")
    for m_ in range(5):
        r = 32 + 4*m_
        k.lg(f"ds_read_b64_tr_b16 v[{r}:{r+1}], v7 offset:{256*m_}")
        k.lg(f"ds_read_b64_tr_b16 v[{r+2}:{r+3}], v7 offset:{256*m_+4*1280}", f"q{m_}")
    for m_ in range(5):
        r = 32 + 4*m_
        k.wait(lg=f"q{m_}")
        k.i(f"buffer_store_dwordx4 v[{r}:{r+3}], v3, s[16:19], s21 offen {HO}\ns_add_u32 s21, s21, 163840")
    k.i("s_branch p0_drain")
    k.label("p0_wkv")
    k.i("""s_and_b32 s22, s20, 1
    s_lshr_b32 s23, s20, 1
    s_lshl_b32 s24, s22, 6
    s_mul_i32 s25, s23, 120
    s_add_u32 s24, s24, s25
    v_add_u32 v5, s24, v5
    s_lshl_b32 s24, s31, 1
    s_add_u32 s24, s24, s22
    s_sub_u32 s24, s24, 2
    s_lshl_b32 s24, s24, 10
    s_add_u32 s21, s21, s24
    s_mul_i32 s24, s23, 163840
    s_add_u32 s21, s21, s24""")
    for i in range(6):
        k.i(f"v_add_u32 v{12+i}, {240*i}, v5\nv_min_u32 v{12+i}, 1272, v{12+i}\nv_xad_u32 v{12+i}, v{12+i}, v6, v4")
    k.i("s_waitcnt vmcnt(0)")
    stamp(7, "p0")
    k.i("s_barrier")
    for i in range(6):
        r = 32 + 4*i
        k.lg(f"ds_read_b64_tr_b16 v[{r}:{r+1}], v{12+i}")
        k.lg(f"ds_read_b64_tr_b16 v[{r+2}:{r+3}], v{12+i} offset:{4*1280}", f"kv{i}")
    for i in range(6):
        r = 32 + 4*i
        if i == 5: k.i("s_cmp_lg_u32 s23, 0\ns_cbranch_scc1 p0_drain")
        k.wait(lg=f"kv{i}")
        k.i(f"buffer_store_dwordx4 v[{r}:{r+3}], v3, s[16:19], s21 offen {HO}\ns_add_u32 s21, s21, 327680")
    k.i("s_branch p0_drain")
    k.label("p0_zero")
    k.i(f"""s_sub_u32 s21, s45, 248
    s_mul_i32 s21, s21, 6720
    s_add_u32 s21, s21, {KVA}
    v_lshlrev_b32 v4, 4, v0
    v_mov_b32 v8, 0
    v_mov_b32 v9, 0
    v_mov_b32 v10, 0
    v_mov_b32 v11, 0
    v_lshrrev_b32 v30, 4, v1
    s_mov_b32 s10, 6720
    s_mov_b32 s11, 0x20000
    s_waitcnt lgkmcnt(0)
    s_add_u32 s8, s14, s21
    s_addc_u32 s9, s15, 0
    buffer_store_dwordx4 v[8:11], v4, s[8:11], 0 offen {HO}
    v_add_u32 v4, 4096, v4
    buffer_store_dwordx4 v[8:11], v4, s[8:11], 0 offen {HO}
    s_load_dword s44, s[14:15], {CB}""")
    stamp(9, "p0"); stamp(5, "p0"); stamp(7, "p0")
    srd(16, 14, WSZ)
    k.label("p0_drain")
    stamp(1)
    k.i("s_waitcnt vmcnt(0) lgkmcnt(0)\ns_add_u32 s44, s44, 1\ns_barrier")
    k.reset_counts()
    stamp(2)
    sig_all(F0, 4)
    UN = 0 if OPT.get("nounit") else 232
    k.i(f"""s_cmp_ge_u32 s45, {UN}
    s_cbranch_scc1 p0_uid
    s_sub_u32 s23, s20, 1
    s_mul_i32 s22, s23, 7168
    s_cmp_ge_u32 s45, 136
    s_cbranch_scc1 p0_ui_w2
    s_cmp_ge_u32 s45, 40
    s_cbranch_scc1 p0_ui_w1""")
    srd(8, PWO, 819200)
    k.i("""s_mul_i32 s35, s45, 26
    s_lshr_b32 s35, s35, 8
    s_mul_i32 s36, s35, 10
    s_sub_u32 s36, s45, s36
    s_mul_i32 s21, s35, 204800
    s_movk_i32 s29, 1280
    s_branch p0_ui_128""")
    k.label("p0_ui_w1")
    srd(8, PW1, 1966080)
    k.i("""s_sub_u32 s34, s45, 40
    s_mul_i32 s35, s34, 43
    s_lshr_b32 s35, s35, 10
    s_mul_i32 s36, s35, 24
    s_sub_u32 s36, s34, s36
    s_mul_i32 s21, s35, 491520
    s_movk_i32 s29, 3072""")
    k.label("p0_ui_128")
    k.i(f"""s_cmp_eq_u32 s20, 0
    s_cbranch_scc1 p0_uid
    s_lshl_b32 s24, s36, 7
    s_add_u32 s21, s21, s24
    v_lshrrev_b32 v4, 3, v1
    s_mul_i32 s24, s23, 56
    v_add_u32 v4, s24, v4
    v_and_b32 v5, 7, v1
    v_lshlrev_b32 v5, 4, v5
    v_and_b32 v6, 2, v4
    v_lshlrev_b32 v6, 5, v6
    v_mul_lo_u32 v4, v4, s29
    v_xad_u32 v4, v5, v6, v4
    s_lshl_b32 s29, s29, 3""")
    for i in range(7):
        k.i(f"s_add_u32 m0, s22, {UL+1024*i}\nbuffer_load_dwordx4 v4, s[8:11], s21 offen {cold} lds\ns_add_u32 s21, s21, s29")
    k.i("s_branch p0_uid")
    k.label("p0_ui_w2")
    srd(8, PW2, 1966080)
    m, sh = magic(40, 1344)
    k.i("""s_sub_u32 s34, s45, 136
    s_lshr_b32 s35, s34, 1
    s_and_b32 s36, s34, 1
    s_cmp_eq_u32 s20, 0
    s_cbranch_scc1 p0_uid
    s_mul_i32 s21, s35, 40960
    s_mul_i32 s24, s36, 640
    s_add_u32 s21, s21, s24
    s_mul_i32 s24, s23, 448
    v_add_u32 v8, s24, v1""")
    for i in range(7):
        k.i(f"""v_add_u32 v4, {64*i}, v8
        v_mul_u32_u24 v5, {m}, v4
        v_lshrrev_b32 v5, {sh}, v5
        v_mul_u32_u24 v6, 40, v5
        v_sub_u32 v6, v4, v6
        v_lshlrev_b32 v6, 4, v6
        v_and_b32 v7, 2, v5
        v_lshlrev_b32 v7, 4, v7
        v_and_b32 v9, 16, v5
        v_lshl_or_b32 v7, v9, 2, v7
        v_mul_u32_u24 v5, 1280, v5
        v_xad_u32 v4, v6, v7, v5
        s_add_u32 m0, s22, {UL+1024*i}
        buffer_load_dwordx4 v4, s[8:11], s21 offen {cold} lds""")
    k.label("p0_uid")

def unit_proc(sfx):
    UN = 0 if OPT.get("nounit") else 232
    D0 = 32
    k.i(f"""s_cmp_ge_u32 s45, {UN}
    s_cbranch_scc1 up_end{sfx}
    s_cmp_ge_u32 s45, 136
    s_cbranch_scc1 up_w2{sfx}
    s_and_b32 s6, s20, 1
    s_lshr_b32 s7, s20, 1
    s_lshl_b32 s37, s36, 1
    s_add_u32 s37, s37, s6
    s_cmp_ge_u32 s45, 40
    s_cbranch_scc1 up_w1{sfx}""")
    k.i(f"""v_and_b32 v52, 1, v30
    v_lshrrev_b32 v53, 1, v29
    v_lshl_add_u32 v52, v52, 1, v53
    v_add_u32 v52, s35, v52
    v_and_b32 v52, 3, v52
    v_lshlrev_b32 v52, 4, v52
    v_and_b32 v53, 1, v29
    v_lshl_add_u32 v52, v53, 3, v52
    s_lshl_b32 s24, s6, 6
    v_add_u32 v52, s24, v52
    v_and_b32 v53, 2, v28
    v_lshlrev_b32 v53, 5, v53
    v_xor_b32 v52, v52, v53
    v_lshl_add_u32 v52, v28, 7, v52
    s_mul_i32 s24, s7, 10240
    s_add_u32 s24, s24, {UL}
    v_add_u32 v52, s24, v52
    v_lshrrev_b32 v54, 5, v1
    v_lshlrev_b32 v54, 4, v54
    s_mul_i32 s24, s37, 205
    s_lshr_b32 s24, s24, 10
    s_mul_i32 s25, s24, 5
    s_sub_u32 s25, s37, s25
    s_lshl_b32 s24, s24, 2
    s_add_u32 s24, s24, s35
    s_mul_i32 s24, s24, 10
    s_mul_i32 s12, s7, 5
    s_add_u32 s24, s24, s12
    s_mul_i32 s24, s24, 5
    s_add_u32 s24, s24, s25
    s_lshl_b32 s24, s24, 10
    s_add_u32 s24, s24, {WO}""")
    for uu in range(5):
        for h2 in range(2):
            m_ = 2*uu + h2
            K = 0
            for hi in range(2): K |= ((40*(m_//5) + ROWOFF[hi][m_ % 5]) * 128) << (16*hi)
            r = D0 + 4*uu + 2*h2
            k.i(f"s_mov_b32 s25, {K:#x}\nv_bfe_u32 v55, s25, v54, 16\nv_add_u32 v55, v55, v52")
            k.lg(f"ds_read_b64_tr_b16 v[{r}:{r+1}], v55", f"uo{uu}")
    for uu in range(5):
        r = D0 + 4*uu
        k.wait(lg=f"uo{uu}")
        k.i(f"buffer_store_dwordx4 v[{r}:{r+3}], v3, s[16:19], s24 offen {HO}\ns_add_u32 s24, s24, 5120")
    k.i(f"s_branch up_end{sfx}")
    k.label(f"up_w1{sfx}")
    k.i(f"""v_lshrrev_b32 v52, 1, v30
    v_lshl_add_u32 v52, v52, 3, v28
    v_and_b32 v53, 1, v30
    v_lshlrev_b32 v53, 5, v53
    v_lshl_add_u32 v53, v29, 3, v53
    s_lshl_b32 s24, s6, 6
    v_add_u32 v53, s24, v53
    v_and_b32 v54, 2, v28
    v_lshlrev_b32 v54, 5, v54
    v_lshlrev_b32 v52, 7, v52
    v_xad_u32 v52, v53, v54, v52
    s_mul_i32 s24, s7, 10240
    s_add_u32 s24, s24, {UL}
    v_add_u32 v52, s24, v52
    v_mov_b32 v56, 0
    s_mov_b32 s12, 0x3f803f80
    s_mul_i32 s24, s37, 171
    s_lshr_b32 s24, s24, 9
    s_mul_i32 s25, s24, 3
    s_sub_u32 s25, s37, s25
    s_mul_i32 s24, s24, 40
    s_mul_i32 s13, s35, 10
    s_add_u32 s24, s24, s13
    s_mul_i32 s13, s7, 5
    s_add_u32 s24, s24, s13
    s_mul_i32 s24, s24, 3
    s_add_u32 s24, s24, s25
    s_lshl_b32 s24, s24, 10
    s_add_u32 s24, s24, {W1}""")
    for ks in range(5):
        r = D0 + 4*ks
        k.lg(f"ds_read_b64_tr_b16 v[{r}:{r+1}], v52 offset:{ks*2048}")
        k.lg(f"ds_read_b64_tr_b16 v[{r+2}:{r+3}], v52 offset:{ks*2048+512}", f"u1{ks}")
    for ks in range(5):
        r = D0 + 4*ks
        k.wait(lg=f"u1{ks}")
        k.i(f"buffer_store_dwordx4 v[{r}:{r+3}], v3, s[16:19], s24 offen {HO}\ns_add_u32 s24, s24, 3072")
        for j in range(4): k.i(f"v_dot2_f32_bf16 v56, v{r+j}, s12, v56")
    k.i(f"""s_nop 2
    v_mov_b32 v57, v56
    s_lshl_b32 s24, s35, 1
    s_add_u32 s24, s24, s7
    v_permlane32_swap_b32 v56, v57
    s_mul_i32 s24, s24, 6144
    s_lshl_b32 s25, s37, 7
    s_add_u32 s24, s24, s25
    s_add_u32 s24, s24, {CS}
    v_add_f32 v56, v56, v57
    v_lshlrev_b32 v57, 2, v1
    s_mov_b64 exec, 0xffffffff
    buffer_store_dword v56, v57, s[16:19], s24 offen {HO}
    s_mov_b64 exec, -1
    s_branch up_end{sfx}""")
    k.label(f"up_w2{sfx}")
    k.i(f"""v_and_b32 v52, 1, v30
    v_lshlrev_b32 v52, 4, v52
    v_lshrrev_b32 v53, 1, v30
    v_lshl_add_u32 v52, v53, 2, v52
    v_add_u32 v52, v52, v28
    v_and_b32 v54, 2, v52
    v_lshlrev_b32 v54, 4, v54
    v_and_b32 v55, 16, v52
    v_lshl_or_b32 v54, v55, 2, v54
    v_mul_u32_u24 v52, 640, v52
    v_add_u32 v52, {UL}, v52
    s_mul_i32 s24, s20, 160
    v_lshl_add_u32 v53, v29, 3, s24
    s_lshl_b32 s24, s36, 2
    s_add_u32 s24, s24, s20
    s_mul_i32 s24, s24, 48
    s_add_u32 s24, s24, s35
    s_mul_i32 s24, s24, 5120
    s_add_u32 s24, s24, {W2}""")
    for m_ in range(5):
        r = D0 + 4*m_
        k.i(f"v_add_u32 v55, {32*m_}, v53\nv_xad_u32 v55, v55, v54, v52")
        k.lg(f"ds_read_b64_tr_b16 v[{r}:{r+1}], v55")
        k.lg(f"ds_read_b64_tr_b16 v[{r+2}:{r+3}], v55 offset:{8*640}", f"u2{m_}")
    for m_ in range(5):
        r = D0 + 4*m_
        k.wait(lg=f"u2{m_}")
        k.i(f"buffer_store_dwordx4 v[{r}:{r+3}], v3, s[16:19], s24 offen {HO}\ns_add_u32 s24, s24, 1024")
    k.label(f"up_end{sfx}")

WOR = [160 + 4*f for f in range(24)] + [56 + 4*f for f in range(26)]
PQA = 0; XA = 40
W2R = WOR + list(range(0, 40, 4))
TBV = 244
WOB = None
def phase1():
    global WOB
    k.i(f"""v_add_u32 v4, 0x10000, v3
    v_add_u32 v5, 0x20000, v3
    s_lshl_b32 s28, s26, 2
    s_add_u32 s28, s28, s20
    s_mul_i32 s21, s28, 40960
    s_add_u32 s21, s21, {XN}
    s_lshl_b32 s23, s20, 12
    s_mul_i32 s22, s27, 163840
    s_add_u32 s22, s22, s23
    s_add_u32 s22, s22, {WQ}
    s_mov_b32 s40, {LOG2E:#x}
    s_mov_b32 s41, {LOG2E:#x}
    s_mov_b32 s38, 0x358637bd
    s_mov_b32 s39, 0x358637bd""")
    poll_all(F0, 8, O("slp0", 16))
    k.i("s_barrier")
    stamp(4)
    ACC = 64; WB = 128; T = 8; PK = 176; FB0 = 20; NS = 12; AH = 8
    PRE = O("pre1", 3)
    Q = BG()
    for s in range(10):
        for j in range(4):
            Q.add(f"buffer_load_dwordx4 v3, s[16:19], s22 offen offset:{1024*j} {HO} lds", f"W{s}",
                  pre=(f"s_add_u32 m0, s23, {s*16384}" if j == 0 else ""), post=("s_add_u32 s22, s22, 16384" if j == 3 else ""))
        for j in range(4):
            Q.add(f"buffer_load_dwordx4 a[{16*s+4*j}:{16*s+4*j+3}], v3, s[16:19], s21 offen offset:{1024*j} {HO}", f"X{4*s+j}",
                  post=("s_add_u32 s21, s21, 4096" if j == 3 else ""))
    Q.go(8*PRE)
    k.wait(vm="W0"); k.i("s_barrier")
    sv0 = snap(); unit_proc(""); rest(sv0)
    stamp(3)
    k.i(f"""s_lshr_b32 s33, s27, 3
    s_lshl_b32 s13, s33, 2
    s_and_b32 s12, s27, 3
    s_add_u32 s13, s13, s12
    s_bfe_u32 s12, s27, 0x10002
    s_lshl_b32 s31, s26, 1
    s_add_u32 s12, s12, s31
    s_lshl_b32 s31, s26, 2
    s_bfe_u32 s29, s27, 0x20001
    s_add_u32 s29, s29, s31
    s_lshl_b32 s30, s33, 1
    s_and_b32 s33, s27, 1
    s_add_u32 s30, s30, s33
    s_lshl_b32 s31, s30, 2
    s_add_u32 s31, s31, s20
    s_mul_i32 s31, s31, 51200
    s_add_u32 s31, s31, {WO}
    v_and_b32 v24, 31, v1
    s_lshl_b32 s33, s29, 5
    v_add_u32 v24, s33, v24
    v_mul_u32_u24 v24, 1280, v24
    v_lshrrev_b32 v25, 5, v1
    v_lshl_add_u32 v24, v25, 3, v24
    s_mul_i32 s3, s30, 320
    s_lshl_b32 s34, s20, 4
    s_add_u32 s3, s3, s34
    v_lshlrev_b32 v26, 2, v0
    v_lshlrev_b32 v27, 1, v0
    s_mul_i32 s33, s27, 192
    s_add_u32 s{PB1}, s{PB1}, s33
    s_addc_u32 s{PB1+1}, s{PB1+1}, 0
    s_mul_i32 s{PW1}, s27, 384
    s_add_u32 s{PW1}, s{PW1}, {CS}""")
    srd(8, PX, 2621440)
    k.i("s_cmp_ge_u32 s27, 11\ns_cbranch_scc1 p1_q")
    sv = snap(); Qs = list(Q.q)
    def mkbg():
        B = BG()
        for i in range(50):
            B.add(f"buffer_load_dwordx4 a[{WOR[i]}:{WOR[i]+3}], v3, s[16:19], s31 offen offset:{1024*(i%4)} {HO}", f"wo{i}", post=("s_add_u32 s31, s31, 4096" if i % 4 == 3 else ""))
        return B
    NPRE = O("wo_pre", 20)
    def loop(act_first, order_tail, fill_after, B, sfx):
        items = [(ks, j) for ks in range(36) for j in range(4)] + order_tail
        NCHK = 2*(80 - 8*PRE) + O("chk", 0)
        def rd(n):
            ks, j = items[n]
            if j == 0 and ks % 4 == 0 and ks > 0 and n == 4*ks:
                k.wait(vm=f"W{ks//4}"); k.i("s_barrier")
                if ks//4 == PRE + 1:
                    signal(1, f"v_mov_b32 v7, 0\ns_lshl_b32 s42, s45, 2\ns_add_u32 s42, s42, {F0B}", 6)
            o = (ks*4 + j) * 1024
            r = WB + 4*(n % NS)
            k.lg(f"ds_read_b128 v[{r}:{r+3}], v{3 + o//65536} offset:{o % 65536}", f"w{n}")
        for n in range(AH): rd(n)
        fill = []
        for n, (ks, j) in enumerate(items):
            if n % 2 == 0:
                k.wait(vm=f"X{max(items[n][0], items[n+1][0])}", lg=f"w{n+1}")
                if n % 16 == 0: stamp(8 + n//16, "p1")
            w = vr(WB + 4*(n % NS), 4); x = ar(4*ks, 4); d = vr(ACC + 16*j, 16)
            c = "0" if ks == 0 else d
            k.i(f"v_mfma_f32_32x32x16_bf16 {d}, {x}, {w}, {c}" if act_first else f"v_mfma_f32_32x32x16_bf16 {d}, {w}, {x}, {c}")
            if n % 2 == 0:
                if Q.left(): Q.go()

            else:
                for m_ in (n - 1 + AH, n + AH):
                    if m_ < 160: rd(m_)
            if n == NCHK - 16:
                k.i(f"s_mov_b32 s42, {F0B}")
                k.vm(f"buffer_load_dwordx4 v[{FB0}:{FB0+3}], v3, s[16:19], s42 offen sc1", "f0b")
            if n == NCHK:
                k.wait(vm="f0b")
                check4(FB0)
                k.i(f"s_cbranch_vccz p1_ok{sfx}\ns_mov_b32 s42, {F0B}")
                poll(3, 42, FB0, wide=True, w0=False)
                k.label(f"p1_ok{sfx}")
                lim[0] = min(24, NPRE); k.th = O("th1", 96)
                k.auto = lambda: B.go() if 50 - B.left() < lim[0] else None
            if n in fill_after: fill += fill_after[n]
            for _ in range(6):
                if fill: k.i(fill.pop(0))
        lim[0] = NPRE; k.th = O("th1e", 90)
        for l in fill: k.i(l)
    lim = [0]
    def phi_lines(t):
        with capture() as c:
            for b in range(0, 16, 4): phi4(ACC + 16*t + b, PK + 8*t + b//2, T)
        return c.lines
    tail = [(ks, j) for ks in range(36, 40) for j in (0, 1)] + [(ks, j) for ks in range(36, 40) for j in (2, 3)]
    B = mkbg()
    loop(True, tail, {153: phi_lines(0) + phi_lines(1)}, B, "kv")
    stamp(5)
    k.i("s_lshl_b32 s33, s20, 13\nv_add_u32 v6, s33, v3")
    for t in (0, 1):
        for f in range(2):
            k.lg(f"ds_write_b128 v6, v[{PK+8*t+4*f}:{PK+8*t+4*f+3}] offset:{2048*t+1024*f}")
    for t in (2, 3):
        for p in range(8):
            k.i(f"v_cvt_pk_bf16_f32 v{PK+8*t+p}, v{ACC+16*t+2*p}, v{ACC+16*t+2*p+1}")
        if t == 3:
            k.i("s_mov_b32 s34, 0xf0000000\ns_mov_b32 s35, 0xf0000000\nv_mov_b32 v7, 0x3f803f80")
            for p in range(8): k.i(f"v_cndmask_b32 v{PK+24+p}, v{PK+24+p}, v7, s[34:35]")
        for f in range(2):
            k.lg(f"ds_write_b128 v6, v[{PK+8*t+4*f}:{PK+8*t+4*f+3}] offset:{2048*t+1024*f}")
    k.i("""s_lshr_b32 s33, s20, 1
    s_and_b32 s34, s20, 1
    s_lshl_b32 s35, s33, 11
    v_add_u32 v8, s35, v3
    s_lshl_b32 s35, s34, 11
    s_add_u32 s35, s35, 4096
    v_add_u32 v9, s35, v3""")
    k.wait(lg="all"); k.i("s_barrier")
    stamp(8, "p1e")
    FA = 64; FB = 96; DD = 128
    for w in range(4):
        for f in range(2):
            n = 2*w + f
            k.lg(f"ds_read_b128 v[{FA+4*n}:{FA+4*n+3}], v8 offset:{8192*w+1024*f}")
            k.lg(f"ds_read_b128 v[{FB+4*n}:{FB+4*n+3}], v9 offset:{8192*w+1024*f}", f"f{n}")
    with capture() as c:
        k.i("""v_and_b32 v10, 31, v1
        s_lshl_b32 s35, s34, 5
        v_add_u32 v10, s35, v10
        v_mul_u32_u24 v11, 205, v10
        v_lshrrev_b32 v11, 12, v11
        v_mul_u32_u24 v12, 20, v11
        v_sub_u32 v12, v10, v12
        v_cmp_eq_u32 s[36:37], 60, v10
        v_mov_b32 v13, 20
        v_lshrrev_b32 v14, 5, v1
        v_cndmask_b32 v12, v12, v13, s[36:37]
        v_mul_u32_u24 v12, 80, v12
        v_lshlrev_b32 v14, 2, v14
        s_lshl_b32 s35, s33, 5
        v_add_u32 v14, s35, v14
        v_lshlrev_b32 v22, 2, v0""")
        MS = [4, 6, 24, 34]
        for j in range(4):
            ms = MS[j]
            k.i(f"""v_add_u32 v15, {8*j}, v14
            v_mul_u32_u24 v20, 205, v15
            v_lshrrev_b32 v20, 12, v20
            v_mul_u32_u24 v21, 20, v20
            v_sub_u32 v21, v15, v21
            v_cmp_eq_u32 s[{ms}:{ms+1}], v20, v11
            v_cmp_gt_u32 vcc, 3, v20
            v_mul_u32_u24 v20, 1680, v20
            v_lshl_add_u32 v21, v21, 2, v12
            v_add_u32 v{16+j}, v20, v21
            s_or_b64 s[{ms}:{ms+1}], s[{ms}:{ms+1}], s[36:37]
            s_and_b64 s[{ms}:{ms+1}], s[{ms}:{ms+1}], vcc""")
    fill = c.lines
    for _ in range(16): k.i(fill.pop(0))
    def kvm(n):
        def f():
            k.wait(lg=f"f{n}")
            k.i(f"v_mfma_f32_32x32x16_bf16 v[{DD}:{DD+15}], v[{FA+4*n}:{FA+4*n+3}], v[{FB+4*n}:{FB+4*n+3}], {'0' if n == 0 else vr(DD,16)}")
        return f
    for l in merge([kvm(n) for n in range(8)], fill, 6): k.i(l)
    for j in range(4):
        k.i(f"s_mov_b64 exec, s[{MS[j]}:{MS[j]+1}]")
        k.lg(f"ds_write_b128 v{16+j}, v[{DD+4*j}:{DD+4*j+3}] offset:32768")
    k.i(f"""s_mov_b64 exec, -1
    s_mul_i32 s33, s27, 5040
    s_add_u32 s33, s33, {KVA}
    s_add_u32 s4, s14, s33
    s_addc_u32 s5, s15, 0
    s_cmp_eq_u32 s27, 10
    s_movk_i32 s6, 5040
    s_cselect_b32 s6, 3360, s6
    s_mov_b32 s7, 0x20000""")
    k.wait(lg="all"); k.i("s_barrier")
    stamp(9, "p1e")
    for i in range(5):
        k.lg(f"ds_read_b32 v{32+i}, v22 offset:{32768+1024*i}", f"d{i}")
    for i in range(5):
        k.wait(lg=f"d{i}")
        if i == 4: k.i("v_add_u32 v22, 4096, v22")
        k.vm(f"buffer_atomic_add_f32 v{32+i}, v22, s[4:7], 0 offen offset:{1024*(i%4)}", "out1")
    stamp(10, "p1e")
    def bg_finish(B):
        k.auto = None
        print("WO left for the drain:", NPRE - (50 - B.left()), file=sys.stderr)
        B.go(NPRE - (50 - B.left()))
    bg_finish(B)
    k.wait(vm="out1")
    k.i("s_branch p1_fin")
    k.label("p1_q")
    rest(sv); Q.q = list(Qs)
    k.i(f"""s_mul_i32 s33, s28, 40960
    s_sub_u32 s34, s27, 11
    s_lshl_b32 s34, s34, 13
    s_add_u32 s33, s33, s34
    s_add_u32 s33, s33, {PQ}""")
    tail = [(ks, j) for j in range(4) for ks in range(36, 40)]
    B = mkbg()
    loop(False, tail, {149: phi_lines(0), 153: phi_lines(1)}, B, "q")
    stamp(5)
    for t in range(4):
        if t >= 2:
            for b in range(0, 16, 4):
                phi4(ACC + 16*t + b, PK + 8*t + b//2, T)
        for f in range(2):
            k.vm(f"buffer_store_dwordx4 v[{PK+8*t+4*f}:{PK+8*t+4*f+3}], v3, s[16:19], s33 offen offset:{(2048*t+1024*f) % 4096} {HO}", "out1")
        if t == 1: k.i("s_add_u32 s33, s33, 4096")
    stamp(8, "p1e"); stamp(9, "p1e"); stamp(10, "p1e")
    bg_finish(B)
    k.wait(vm="out1")
    k.label("p1_fin")
    stamp(6)
    k.i("s_barrier")
    sig_all(F1, 6)
    WOB = B
    for c in range(5):
        k.vm(f"buffer_load_dwordx2 a[{XA+2*c}:{XA+2*c+1}], v24, s[8:11], s3 offen offset:{64*c}")
    for j in range(8):
        k.vm(f"buffer_load_dword v{TBV+j}, v26, s[16:19], s{PW1} offen {HO}")
        k.i(f"s_add_u32 s{PW1}, s{PW1}, 6144")
    srd(8, PB1, 192)
    k.vm(f"buffer_load_ushort v{TBV+8}, v27, s[8:11], 0 offen")
    WOB.go(O("wo_w", 5))
    NW1 = O("w1_w", 16)
    k.i(f"""s_mul_i32 s25, s27, 122880
    s_add_u32 s25, s25, {W1}
    s_cmp_eq_u32 s20, 0
    s_cbranch_scc1 p1_now1
    s_sub_u32 s23, s20, 1
    s_mul_i32 s23, s23, {NW1*1024}
    s_add_u32 s24, s25, s23""")
    for i in range(NW1):
        if i % 4 == 0: k.i(f"s_add_u32 m0, s23, {1024*i}")
        if not OPT.get("nobg"): k.i(f"buffer_load_dwordx4 v3, s[16:19], s24 offen offset:{1024*(i%4)} {HO} lds")
        if i % 4 == 3: k.i("s_add_u32 s24, s24, 4096")
    k.i("s_waitcnt vmcnt(0)" if OPT.get("nobg") else f"s_waitcnt vmcnt({NW1})")
    k.label("p1_now1")
    stamp(7)

W2B = None
def phase2():
    global W2B
    P2L = 102400
    k.i(f"""s_mul_i32 s21, s20, 13440
    s_add_u32 s21, s21, {KVA}
    s_mul_i32 s23, s20, 15360
    s_add_u32 s23, s23, {P2L+64}
    s_mul_i32 s22, s29, 40960
    s_mul_i32 s33, s20, 10240
    s_add_u32 s22, s22, s33
    s_add_u32 s22, s22, {PQ}
    v_bfe_u32 v8, v1, 2, 3
    v_lshlrev_b32 v8, 2, v8
    v_and_b32 v9, 3, v1
    s_mov_b32 s33, 0x55524130
    s_mov_b32 s34, 0x55453120
    v_bfe_u32 v10, s33, v8, 4
    v_bfe_u32 v11, s34, v8, 4
    v_lshl_add_u32 v10, v10, 2, v9
    v_lshl_add_u32 v11, v11, 2, v9
    v_min_u32 v10, 20, v10
    v_min_u32 v11, 20, v11
    v_lshrrev_b32 v12, 5, v1
    v_lshlrev_b32 v12, 4, v12
    s_sub_u32 s33, s23, 16
    v_add_u32 v12, s33, v12
    v_mul_u32_u24 v10, 80, v10
    v_mul_u32_u24 v11, 80, v11
    v_add_u32 v10, v10, v12
    v_add_u32 v11, v11, v12
    s_lshl_b32 s28, s26, 2
    s_add_u32 s28, s28, s20
    s_mov_b32 s36, 0
    s_mov_b32 s37, -1
    s_lshl_b32 s35, s13, 2
    s_add_u32 s35, s35, s20
    s_mul_i32 s35, s35, 61440
    s_add_u32 s35, s35, {W2}""")
    poll_all(F1, 14, O('slp1', 0))
    k.i("s_barrier")
    k.vm_done = k.vm_n
    stamp(8)
    for i in range(14):
        if i % 4 == 0: k.i(f"s_add_u32 m0, s23, {1024*i}")
        k.vm(f"buffer_load_dwordx4 v3, s[16:19], s21 offen offset:{1024*(i%4)} {HO} lds", f"kv{i}")
        if i % 4 == 3: k.i("s_add_u32 s21, s21, 4096")
        if i in (6, 13):
            for kl in (range(0, 5) if i == 6 else range(5, 10)):
                k.vm(f"buffer_load_dwordx4 a[{PQA+4*kl}:{PQA+4*kl+3}], v3, s[16:19], s22 offen offset:{1024*(kl%4)} {HO}", f"pq{kl}")
                if kl % 4 == 3: k.i("s_add_u32 s22, s22, 4096")
    NW1 = O("w1_w", 16); N1 = (96 - 3*NW1) // 4
    assert 3*NW1 + 4*N1 == 96
    k.i(f"s_mul_i32 s24, s20, {N1*1024}\ns_add_u32 s24, s24, {3*NW1*1024}\ns_add_u32 s25, s25, s24")
    B1 = BG()
    for i in range(N1):
        B1.add(f"buffer_load_dwordx4 v3, s[16:19], s25 offen offset:{1024*(i%4)} {HO} lds", "w1",
               pre=(f"s_add_u32 m0, s24, {1024*i}" if i % 4 == 0 else ""), post=("s_add_u32 s25, s25, 4096" if i % 4 == 3 else ""))
    W2B = BG()
    for i in range(60):
        W2B.add(f"buffer_load_dwordx4 a[{W2R[i]}:{W2R[i]+3}], v3, s[16:19], s35 offen offset:{1024*(i%4)} {HO}", "w2", post=("s_add_u32 s35, s35, 4096" if i % 4 == 3 else ""))
    AF = 20; TT = 84; DT = 180; OG = 84; ACC = [20, 36, 124, 140, 156]
    for j in range(1, 8): k.i(f"v_add_f32 v{TBV}, v{TBV}, v{TBV+j}")
    k.i(f"v_lshlrev_b32 v{TBV+1}, 16, v{TBV+8}")
    jobs = {}
    n = 0
    for hl in range(8):
        jobs[hl] = []
        for u in range(2):
            for h2 in range(2):
                dg0 = -(hl % 4) + 4*u + 2*h2
                v0_ = 0 <= dg0 <= 4; v1_ = 0 <= dg0+1 <= 4
                d = AF + (2*hl+u)*4 + 2*h2
                if v0_ or v1_:
                    jobs[hl].append((d, n, v0_, v1_, hl*1680 + 16*(dg0+1))); n += 1
                else:
                    jobs[hl].append((d, None, 0, 0, 0))
                    k.i(f"v_mov_b32 v{d}, 0\nv_mov_b32 v{d+1}, 0")
    def kvreads(lo, hi):
        for hl in range(lo, hi):
            for d, n, _, _, o in jobs[hl]:
                if n is not None: k.lg(f"ds_read_b128 v[{TT+4*n}:{TT+4*n+3}], v{10 + (hl & 1)} offset:{o}", f"a{n}")
    def build(hl):
        for d, n, v0_, v1_, _ in jobs[hl]:
            if n is None: continue
            k.wait(lg=f"a{n}")
            t = TT + 4*n
            k.i(f"v_cvt_pk_bf16_f32 v{d}, v{t}, v{t+1}\nv_cvt_pk_bf16_f32 v{d+1}, v{t+2}, v{t+3}")
            if not v1_: k.i(f"v_cndmask_b32 v{d}, v{d}, 0, s[36:37]\nv_cndmask_b32 v{d+1}, v{d+1}, 0, s[36:37]")
            if not v0_: k.i(f"v_cndmask_b32 v{d}, 0, v{d}, s[36:37]\nv_cndmask_b32 v{d+1}, 0, v{d+1}, s[36:37]")
    def omm(hl):
        t0 = hl + hl//4
        d = vr(DT + 16*(hl % 4), 16)
        def f(u):
            def g():
                k.wait(vm=f"pq{t0+u}")
                k.i(f"v_mfma_f32_32x32x16_bf16 {d}, {vr(AF+(2*hl+u)*4, 4)}, {ar(PQA+4*(t0+u), 4)}, {'0' if u == 0 else d}")
            return g
        return [f(0), f(1)]
    def opost(hl):
        p = hl // 2; odd = hl & 1
        D = DT + 16*(hl % 4); rc = 16 + 2*odd
        a, b = (D+8, D+12) if odd else (D+12, D+8)
        with capture() as c:
            k.i(f"v_cndmask_b32 v{rc}, v{a}, v{b}, s[36:37]\nv_add_f32 v{rc}, s38, v{rc}\nv_rcp_f32 v{rc}, v{rc}\ns_nop 0")
            for h in range(6):
                k.i(f"v_pk_mul_f32 v[{D+2*h}:{D+2*h+1}], v[{D+2*h}:{D+2*h+1}], v[{rc}:{rc+1}] op_sel_hi:[1,0]")
            for j in range(2):
                g = OG + 2*(5*p + 2*odd + j)
                k.i(f"v_cvt_pk_bf16_f32 v{g}, v{D+4*j}, v{D+4*j+1}\nv_cvt_pk_bf16_f32 v{g+1}, v{D+4*j+2}, v{D+4*j+3}")
            g = OG + 2*(5*p + 4)
            if not odd:
                k.i(f"v_cvt_pk_bf16_f32 v{g}, v{D+8}, v{D+9}\nv_cvt_pk_bf16_f32 v{g+1}, v{D+10}, v{D+11}")
            else:
                k.i(f"v_cvt_pk_bf16_f32 v{D}, v{D+8}, v{D+9}\nv_cvt_pk_bf16_f32 v{D+1}, v{D+10}, v{D+11}")
                k.i(f"v_cndmask_b32 v{g}, v{g}, v{D}, s[36:37]\nv_cndmask_b32 v{g+1}, v{g+1}, v{D+1}, s[36:37]")
        return c.lines
    def wo(u, c, bg=True):
        def f():
            d = vr(ACC[c], 16)
            while f"wo{5*u+c}" not in k.vm_tags or (WOB.left() and 50 - WOB.left() <= 5*u+c): WOB.go()
            k.wait(vm=f"wo{5*u+c}")
            k.i(f"v_mfma_f32_32x32x16_bf16 {d}, {ar(WOR[5*u+c], 4)}, {vr(OG+4*u, 4)}, {'0' if u == 0 else d}")
            w2lim[0] = min(5*u, 35)
        return f
    w2lim = [0]
    def au2():
        if WOB.left(): WOB.go()
        elif B1.left(): B1.go()
        elif 60 - W2B.left() < w2lim[0]: W2B.go()
    k.auto = au2; k.th = O("th2", 90)
    k.wait(vm="kv6")
    stamp(13, "p2")
    kvreads(0, 4)
    for hl in range(4):
        build(hl)
        for f in omm(hl): f()
        if hl == 1:
            k.wait(vm="kv13"); kvreads(4, 8)
    for hl in range(4, 8):
        build(hl)
    stamp(9)
    for l in opost(0): k.i(l)
    for l in merge(omm(4), opost(1), 9): k.i(l)
    stamp(10)
    for l in merge(omm(5) + [wo(u, c) for u in (0, 1) for c in range(5)], opost(2) + opost(3), 4): k.i(l)
    for l in merge(omm(6) + omm(7) + [wo(u, c) for u in (2, 3, 4) for c in range(5)], opost(4) + opost(5), 3): k.i(l)
    with capture() as c:
        k.i(f"s_sub_u32 s33, s23, 64\nv_add_u32 v13, s33, v3")
        for j in range(1, 4):
            k.i(f"s_sub_u32 s33, s20, {j}\ns_and_b32 s33, s33, 3\ns_mul_i32 s33, s33, 15360\ns_add_u32 s33, s33, {P2L + (j-1)*5120}\nv_add_u32 v{13+j}, s33, v3")
    for l in merge([wo(u, c) for u in (5, 6) for c in range(5)], opost(6) + opost(7), 4): k.i(l)
    XF = 180
    with capture() as c2:
        k.i("s_mov_b32 s33, 0xffff0000")
        for j in range(10):
            k.i(f"v_accvgpr_read_b32 v{XF+2*j+1}, a{XA+j}")
        for j in range(10):
            k.i(f"v_lshlrev_b32 v{XF+2*j}, 16, v{XF+2*j+1}\nv_and_b32 v{XF+2*j+1}, s33, v{XF+2*j+1}")
    fill = c.lines + c2.lines
    def red_w(c):
        for j in range(1, 4):
            r = ACC[c] + 4*j
            k.lg(f"ds_write_b128 v13, v[{r}:{r+3}] offset:{(j-1)*5120 + 1024*c}")
    for c in range(5):
        fill = merge([wo(u, c) for u in (7, 8, 9)], fill, 4)
        if c >= 2: red_w(c - 2)
    for l in fill: k.i(l)
    w2lim[0] = 60
    stamp(11)
    red_w(3); red_w(4)
    for c in range(5):
        for h in range(2):
            d = XF + 4*c + 2*h; a = ACC[c] + 2*h
            k.i(f"v_pk_add_f32 v[{d}:{d+1}], v[{d}:{d+1}], v[{a}:{a+1}]")
    k.wait(lg="all"); k.i("s_barrier")
    stamp(14, "p2")
    RR = 84
    for j in range(1, 4):
        for c in range(5):
            r = RR + 20*(j-1) + 4*c
            k.lg(f"ds_read_b128 v[{r}:{r+3}], v{13+j} offset:{1024*c}", f"r{j}_{c}")
    k.i(f"""s_mul_i32 s34, s29, 40
    s_mul_i32 s21, s30, 10
    s_add_u32 s34, s34, s21
    s_lshr_b32 s21, s20, 1
    s_add_u32 s34, s34, s21
    s_lshl_b32 s34, s34, 10
    s_and_b32 s21, s20, 1
    s_lshl_b32 s21, s21, 9
    s_add_u32 s34, s34, s21
    s_add_u32 s34, s34, {HH}
    v_and_b32 v8, 31, v1
    v_lshrrev_b32 v9, 5, v1
    v_lshlrev_b32 v12, 3, v8
    v_lshlrev_b32 v8, 4, v8
    v_lshl_add_u32 v8, v9, 3, v8""")
    HP = 24
    for j in range(1, 4):
        for c in range(5):
            k.wait(lg=f"r{j}_{c}")
            for h in range(2):
                d = XF + 4*c + 2*h; a = RR + 20*(j-1) + 4*c + 2*h
                k.i(f"v_pk_add_f32 v[{d}:{d+1}], v[{d}:{d+1}], v[{a}:{a+1}]")
            if j == 3:
                k.i(f"v_cvt_pk_bf16_f32 v{HP+2*c}, v{XF+4*c}, v{XF+4*c+1}\nv_cvt_pk_bf16_f32 v{HP+2*c+1}, v{XF+4*c+2}, v{XF+4*c+3}")
                k.vm(f"buffer_store_dwordx2 v[{HP+2*c}:{HP+2*c+1}], v8, s[16:19], s34 offen offset:{2048*(c%2)} {HO}")
                if c % 2 == 1: k.i("s_add_u32 s34, s34, 4096")
    for j in range(10):
        k.i(f"v_lshlrev_b32 v{XF+2*j}, 16, v{HP+j}\nv_and_b32 v{XF+2*j+1}, s33, v{HP+j}")
    k.i(f"v_pk_add_f32 v[16:17], v[{XF}:{XF+1}], v[{XF+2}:{XF+3}]")
    k.i(f"v_pk_mul_f32 v[18:19], v[{XF}:{XF+1}], v[{XF}:{XF+1}]")
    k.i(f"v_pk_fma_f32 v[18:19], v[{XF+2}:{XF+3}], v[{XF+2}:{XF+3}], v[18:19]")
    for j in range(2, 10):
        k.i(f"v_pk_add_f32 v[16:17], v[16:17], v[{XF+2*j}:{XF+2*j+1}]")
        k.i(f"v_pk_fma_f32 v[18:19], v[{XF+2*j}:{XF+2*j+1}], v[{XF+2*j}:{XF+2*j+1}], v[18:19]")
    k.i(f"""v_add_f32 v16, v16, v17
    v_add_f32 v17, v18, v19
    v_mov_b32 v18, v16
    v_mov_b32 v19, v17
    s_lshl_b32 s34, s29, 4
    s_lshl_b32 s21, s30, 2
    s_add_u32 s34, s34, s21
    s_add_u32 s34, s34, s20
    v_permlane32_swap_b32 v16, v18
    v_permlane32_swap_b32 v17, v19
    s_lshl_b32 s34, s34, 8
    s_add_u32 s34, s34, {ST}
    v_pk_add_f32 v[16:17], v[16:17], v[18:19]
    s_mov_b64 exec, 0xffffffff""")
    k.vm(f"buffer_store_dwordx2 v[16:17], v12, s[16:19], s34 offen {HO}", "out2")
    k.i("s_mov_b64 exec, -1")
    stamp(15, "p2")
    k.auto = None
    print("P2 end: W1 left", B1.left(), "W2 left", W2B.left(), file=sys.stderr)
    B1.go(99)
    if not OPT.get("nodrain"):
        W2B.go(O("w2_d2", 12))
        k.wait(vm="out2")
    stamp(12)
    k.i("s_barrier")
    sig_row(F2, 6)
    k.i(f"s_mul_i32 s23, s20, 6144\ns_mul_i32 s25, s27, 122880\ns_add_u32 s25, s25, s23\ns_add_u32 s25, s25, {W1 + 98304}")
    for i in range(6):
        if i % 4 == 0: k.i(f"s_add_u32 m0, s23, {98304 + 1024*i}")
        k.vm(f"buffer_load_dwordx4 v3, s[16:19], s25 offen offset:{1024*(i%4)} {HO} lds", "w1t")
        if i % 4 == 3: k.i("s_add_u32 s25, s25, 4096")
    k.i(f"v_lshlrev_b32 v6, 2, v0\nv_add_u32 v6, 122880, v6")
    k.lg(f"ds_write_b32 v6, v{TBV}")
    k.lg(f"ds_write_b32 v6, v{TBV+1} offset:1024")

def phase3():
    TB = 122880
    k.i(f"""s_mul_i32 s21, s28, 40960
    s_add_u32 s21, s21, {HH}
    v_and_b32 v8, 31, v1
    v_lshrrev_b32 v7, 5, v1
    v_lshlrev_b32 v8, 3, v8
    v_lshl_add_u32 v8, v7, 8, v8
    s_lshl_b32 s33, s28, 12
    s_add_u32 s33, s33, {ST}
    v_lshlrev_b32 v14, 4, v7
    v_add_u32 v14, {TB}, v14
    v_bfe_u32 v15, v1, 4, 1
    v_mul_u32_u24 v15, 49152, v15
    v_and_b32 v16, 15, v1
    v_lshl_add_u32 v15, v16, 4, v15
    v_lshl_add_u32 v15, v7, 9, v15
    s_mul_i32 s34, s28, 98304
    s_mul_i32 s25, s27, 3072
    s_add_u32 s34, s34, s25
    s_add_u32 s34, s34, {H1}""")
    W2B.go(O("w2_w2", 4))
    poll_row(F2, 10, O('slp2', 8))
    k.wait(vm="w1t", lg="all")
    k.i("s_barrier")
    stamp(13)
    ACC = 40; WB = 88; NS = 9; AH = 6; HR = 124; NR = O("pre3", 12); SR = 20; CT = 172; PK = 232
    H = BG()
    for i in range(40):
        r = HR + 4*(i % NR)
        H.add(f"buffer_load_dwordx4 v[{r}:{r+3}], v3, s[16:19], s21 offen offset:{1024*(i%4)} {HO}", f"h{i}", post=("s_add_u32 s21, s21, 4096" if i % 4 == 3 else ""))
    H.go(4)
    for j in range(8):
        k.vm(f"buffer_load_dwordx2 v[{SR+2*j}:{SR+2*j+1}], v8, s[16:19], s33 offen offset:{512*j} {HO}", "stats")
    H.go(NR - 5)
    items = [(ks, j) for ks in range(36) for j in range(3)] + [(ks, j) for j in range(3) for ks in range(36, 40)]
    def rd(n):
        ks, j = items[n]
        o = (ks*3 + j) * 1024
        r = WB + 4*(n % NS)
        k.lg(f"ds_read_b128 v[{r}:{r+3}], v{3 + o//65536} offset:{o % 65536}", f"w{n}")
    with capture() as c:
        for j in range(1, 8): k.i(f"v_pk_add_f32 v[{SR}:{SR+1}], v[{SR}:{SR+1}], v[{SR+2*j}:{SR+2*j+1}]")
        k.i(f"""v_mov_b32 v10, v{SR}
        v_mov_b32 v11, v{SR+1}
        v_permlane32_swap_b32 v{SR}, v10
        v_permlane32_swap_b32 v{SR+1}, v11
        v_pk_add_f32 v[8:9], v[{SR}:{SR+1}], v[10:11]
        v_mul_f32 v8, 0x3acccccd, v8
        v_mul_f32 v9, 0x3acccccd, v9
        v_fma_f32 v9, -v8, v8, v9
        v_max_f32 v9, 0, v9""")
        bf16r(8, 8); bf16r(9, 9)
        k.i("v_add_f32 v9, 0x3727c5ac, v9")
        bf16r(9, 9)
        k.i("v_sqrt_f32 v9, v9")
        bf16r(9, 9)
        k.i("v_rcp_f32 v10, v9\nv_mul_f32 v12, v8, v10\nv_sub_f32 v12, 0, v12")
    statl = c.lines
    def tab_reads(nt):
        for j in range(4):
            n = 4*nt + j
            k.lg(f"ds_read_b128 v[{CT+4*n}:{CT+4*n+3}], v14 offset:{1024+128*nt+32*j}")
            k.lg(f"ds_read_b128 v[{SR+4*j}:{SR+4*j+3}], v14 offset:{128*nt+32*j}", f"t{nt}")
    def tab_lines(nt):
        with capture() as c:
            for j in range(4):
                b = CT + 4*(4*nt + j)
                for h in range(2):
                    k.i(f"v_pk_fma_f32 v[{b+2*h}:{b+2*h+1}], v[{SR+4*j+2*h}:{SR+4*j+2*h+1}], v[12:13], v[{b+2*h}:{b+2*h+1}] op_sel_hi:[1,0,1]")
        return c.lines
    def epi_lines(nt, j):
        n = 4*nt + j
        a = ACC + 4*n; b = CT + 4*n
        with capture() as c:
            for h in range(2):
                k.i(f"v_pk_fma_f32 v[{a+2*h}:{a+2*h+1}], v[{a+2*h}:{a+2*h+1}], v[10:11], v[{b+2*h}:{b+2*h+1}] op_sel_hi:[1,0,1]")
            for h in range(4): k.i(f"v_max_f32 v{a+h}, 0, v{a+h}")
            for h in range(2):
                k.i(f"v_pk_mul_f32 v[{a+2*h}:{a+2*h+1}], v[{a+2*h}:{a+2*h+1}], v[{a+2*h}:{a+2*h+1}]")
            for h in range(2):
                k.i(f"v_cvt_pk_bf16_f32 v{PK+2*n+h}, v{a+2*h}, v{a+2*h+1}")
        return c.lines
    def st_h1(nt, e):
        k.vm(f"buffer_store_dwordx4 v[{PK+8*nt+4*e}:{PK+8*nt+4*e+3}], v15, s[16:19], s34 offen offset:{1024*nt+256*e} {HO}", "out3")
    for n in range(AH): rd(n)
    fill = []
    k.auto = lambda: W2B.go(); k.th = O("th3", 100)
    for n, (ks, j) in enumerate(items):
        k.wait(vm=f"h{ks}", lg=f"w{n}")
        if n == 12: cst(7)
        if n == 108: cst(9)
        d = vr(ACC + 16*j, 16)
        k.i(f"v_mfma_f32_32x32x16_bf16 {d}, {vr(WB + 4*(n % NS), 4)}, {vr(HR + 4*(ks % NR), 4)}, {'0' if ks == 0 else d}")
        if n % 3 == 0: H.go()
        if O('w2_p3', 0) and n % O('w2_p3', 0) == 4: W2B.go()
        if n + AH < 120: rd(n + AH)
        if n == 18: fill += statl
        for nt in range(3):
            if n == 40 + 12*nt: tab_reads(nt)
            if n == 46 + 12*nt:
                k.wait(lg=f"t{nt}"); fill += tab_lines(nt)
        if n == 113: fill += epi_lines(0, 0) + epi_lines(0, 1) + epi_lines(0, 2) + epi_lines(0, 3)
        if n == 117: fill += epi_lines(1, 0) + epi_lines(1, 1)
        for _ in range(3 if n < 110 else 6):
            if fill: k.i(fill.pop(0))
    stamp(14)
    for l in fill: k.i(l)
    st_h1(0, 0); st_h1(0, 1); st_h1(1, 0)
    for nt, j in ((1, 2), (1, 3), (2, 0), (2, 1), (2, 2), (2, 3)):
        for l in epi_lines(nt, j): k.i(l)
        if j % 2 == 1: st_h1(nt, j // 2)
    k.auto = None
    print("P3 end: W2 left", W2B.left(), file=sys.stderr)
    if not OPT.get("nodrain"):
        W2B.go(O("w2_d3", 12))
        k.wait(vm="out3")
    stamp(15)
    k.i("s_barrier")
    sig_row(F3, 6)

def phase4():
    HR = 20; BR = 30; ACC = 40; RING = 120; NB = O("nb4", 6)
    srd(8, PB2, 1280)
    k.i(f"""v_and_b32 v4, 15, v1
    v_lshrrev_b32 v5, 4, v1
    s_lshl_b32 s33, s12, 1
    s_lshr_b32 s25, s20, 1
    s_add_u32 s33, s33, s25
    s_mul_i32 s33, s33, 40
    s_mul_i32 s25, s13, 5
    s_add_u32 s33, s33, s25
    s_lshl_b32 s33, s33, 10
    s_add_u32 s33, s33, {HH}
    s_and_b32 s25, s20, 1
    s_lshl_b32 s25, s25, 8
    s_add_u32 s33, s33, s25
    v_lshrrev_b32 v8, 1, v5
    v_lshlrev_b32 v8, 9, v8
    v_lshl_add_u32 v8, v4, 4, v8
    v_and_b32 v9, 1, v5
    v_lshl_add_u32 v8, v9, 3, v8
    v_add_u32 v9, 4096, v8
    v_lshlrev_b32 v17, 3, v5
    s_mul_i32 s34, s13, 160""")
    for c in range(5):
        k.vm(f"buffer_load_dwordx2 v[{HR+2*c}:{HR+2*c+1}], v{8 if c < 4 else 9}, s[16:19], s33 offen offset:{1024*(c%4)} {HO}")
    for c in range(5):
        k.vm(f"buffer_load_dwordx2 v[{BR+2*c}:{BR+2*c+1}], v17, s[8:11], s34 offen offset:{32*c}", "res")
    W2B.go(99)
    k.i(f"""s_mul_i32 s21, s12, 196608
    s_mul_i32 s22, s20, 12288
    s_add_u32 s21, s21, s22
    s_add_u32 s21, s21, {H1}
    s_lshl_b32 s25, s12, 6
    s_lshl_b32 s33, s20, 4
    s_add_u32 s25, s25, s33
    v_add_u32 v6, s25, v4
    v_mul_u32_u24 v7, 1280, v6
    v_lshl_add_u32 v7, v5, 3, v7
    s_mul_i32 s33, s20, 15360
    v_add_u32 v13, s33, v3""")
    for j in range(4):
        k.i(f"s_add_u32 s33, s20, {j}\ns_and_b32 s33, s33, 3\ns_mul_i32 s33, s33, 49152\nv_add_u32 v{8+j}, s33, v3")
    for j in range(1, 4):
        k.i(f"s_sub_u32 s33, s20, {j}\ns_and_b32 s33, s33, 3\ns_mul_i32 s33, s33, 15360\ns_add_u32 s33, s33, {(j-1)*5120}\nv_add_u32 v{13+j}, s33, v3")
    srd(8, POUT, 2621440)
    poll_row(F3, 18, O('slp3', 0))
    k.i("s_barrier")
    stamp(16)
    Q = BG()
    for i in range(48):
        t, j = divmod(i, 4)
        r = RING + 16*(t % NB) + 4*j
        Q.add(f"buffer_load_dwordx4 v[{r}:{r+3}], v{8+j}, s[16:19], s21 offen offset:{1024*(t%4)} {HO}", f"s{t}_{j}", post=("s_add_u32 s21, s21, 4096" if i % 16 == 15 else ""))
    Q.go(4*(NB-1))
    XF = 216
    k.wait(vm="res")
    k.i("s_mov_b32 s33, 0xffff0000")
    for j in range(10):
        k.i(f"v_lshlrev_b32 v{XF+2*j}, 16, v{HR+j}\nv_and_b32 v{XF+2*j+1}, s33, v{HR+j}")
        k.i(f"v_lshlrev_b32 v{XF+20}, 16, v{BR+j}\nv_and_b32 v{XF+21}, s33, v{BR+j}")
        k.i(f"v_pk_add_f32 v[{XF+2*j}:{XF+2*j+1}], v[{XF+2*j}:{XF+2*j+1}], v[{XF+20}:{XF+21}]")
    def red_w(j):
        for c in range(5):
            r = ACC + 20*j + 4*c
            k.lg(f"ds_write_b128 v13, v[{r}:{r+3}] offset:{(j-1)*5120 + 1024*c}")
    order = [(t, j) for t in range(10) for j in range(4)] + [(t, j) for j in (1, 2, 3, 0) for t in (10, 11)]
    for n, (t, j) in enumerate(order):
        k.wait(vm=f"s{t}_{j}")
        if n == 4: cst(11)
        if n == 40: cst(13)
        for c in range(5):
            d = vr(ACC + (5*j+c)*4, 4)
            k.i(f"v_mfma_f32_16x16x32_bf16 {d}, {ar(W2R[5*t+c], 4)}, {vr(RING+16*(t%NB)+4*j, 4)}, {'0' if t == 0 else d}")
            if c == 1: Q.go()
        if n in (42, 44, 46): red_w((n - 40)//2)
    stamp(17)
    k.wait(lg="all"); k.i("s_barrier")
    RR = 120
    for j in range(1, 4):
        for c in range(5):
            r = RR + 20*(j-1) + 4*c
            k.lg(f"ds_read_b128 v[{r}:{r+3}], v{13+j} offset:{1024*c}", f"r{j}_{c}")
    for c in range(5):
        for h in range(2):
            d = XF + 4*c + 2*h; a = ACC + 4*c + 2*h
            k.i(f"v_pk_add_f32 v[{d}:{d+1}], v[{d}:{d+1}], v[{a}:{a+1}]")
    for j in range(1, 4):
        for c in range(5):
            k.wait(lg=f"r{j}_{c}")
            for h in range(2):
                d = XF + 4*c + 2*h; a = RR + 20*(j-1) + 4*c + 2*h
                k.i(f"v_pk_add_f32 v[{d}:{d+1}], v[{d}:{d+1}], v[{a}:{a+1}]")
            if j == 3:
                k.i(f"v_cvt_pk_bf16_f32 v{HR+2*c}, v{XF+4*c}, v{XF+4*c+1}\nv_cvt_pk_bf16_f32 v{HR+2*c+1}, v{XF+4*c+2}, v{XF+4*c+3}")
                k.vm(f"buffer_store_dwordx2 v[{HR+2*c}:{HR+2*c+1}], v7, s[8:11], s34 offen offset:{32*c} {OPT.get('opol', '')}")
    k.i(f"""s_or_b32 s33, s45, s20
    s_cmp_lg_u32 s33, 0
    s_cbranch_scc1 p4_noep
    v_mov_b32 v4, s44
    v_mov_b32 v5, {CB}
    s_mov_b64 exec, 1
    buffer_store_dword v4, v5, s[16:19], 0 offen sc1
    s_mov_b64 exec, -1""")
    k.label("p4_noep")

def stamp_out():
    if not OPT["stamps"]: return
    n = NSTAMP
    k.i("s_waitcnt vmcnt(0) lgkmcnt(0)")
    k.i(f"s_memrealtime s[{64+2*n}:{65+2*n}]")
    k.i("s_waitcnt lgkmcnt(0)")
    k.i(f"s_lshl_b32 s3, s45, 2\ns_add_u32 s3, s3, s20\ns_lshl_b32 s3, s3, 7\ns_add_u32 s3, s3, 0x2000000\nv_mov_b32 v1, s3")
    for j in range(n+1): k.i(f"v_mov_b32 v{2+j}, s{64+2*j}")
    k.i("s_mov_b64 exec, 1")
    for j in range(n+1): k.i(f"global_store_dword v1, v{2+j}, s[14:15] offset:{4*j}")

def emit(path):
    global k
    k = Kern(KN)
    phase0(); phase1(); phase2(); phase3(); phase4(); stamp_out()
    k.label("kend"); k.i("s_endpgm")
    body, added = hazard_pass(k.L, verbose=bool(OPT.get("vnop")))
    print("instrs", len(body), "nop states added", added, file=sys.stderr)
    out = ["; pre-LN linear-attention block + squared-ReLU MLP, one persistent launch (256 workgroups, flag hand-offs in d_ws)",
           "; @launch grid=(256,1,1) block=(256,1,1) lds=163840",
           '.amdgcn_target "amdgcn-amd-amdhsa--gfx950"', ".text", f".globl {KN}", ".p2align 8", f".type {KN},@function", f"{KN}:"]
    out += [("" if (l.endswith(":") or l.startswith(";")) else "    ") + l for l in body]
    out += ['.section .rodata,"a"', ".p2align 6", f".amdhsa_kernel {KN}", "  .amdhsa_next_free_vgpr 512", "  .amdhsa_next_free_sgpr 102",
            "  .amdhsa_accum_offset 256", "  .amdhsa_group_segment_fixed_size 0", "  .amdhsa_kernarg_size 88",
            "  .amdhsa_user_sgpr_count 2", "  .amdhsa_user_sgpr_kernarg_segment_ptr 1",
            "  .amdhsa_system_sgpr_workgroup_id_x 1", ".end_amdhsa_kernel"]
    open(path, "w").write("\n".join(out) + "\n")

if __name__ == "__main__":
    for a in sys.argv[2:]:
        kk, v = a.split("=")
        OPT[kk] = {"True": True, "False": False, "none": ""}.get(v, v.replace("_", " "))
    emit(sys.argv[1])
```

```python
import sys
from asmlib import *

NAME = "sequential_preLN__linear_attn_block__dense_activation_squared_relu__prompt"
KN = NAME + "_kernel"
CB = 0x0
F0B = CB + 0x1000; F2 = CB + 0x2000; F3 = CB + 0x4000; F0 = 0x90000; F1 = 0x98000
CS = 0x10000; KVA = 0x20000; ST = 0x40000
XN = 0x100000; WQ = 0x380000; WO = 0x600000; W1 = 0x700000; W2 = 0x900000
PQ = 0xB00000; HH = 0xE00000; H1 = 0x1200000
WSZ = 0x1800000
LOG2E = 0x3fb8aa3b
OPT = dict(pqe=0, stamps=False, cold="nt", pre1=2, wo_pre=40, wo_w=0, w1_w=12, sleep=8, slp0=20, lnexact=True)
HO = "sc1"
UL = 131072
def O(n, d): return int(OPT.get(n, d))

def magic(C, maxq):
    for sh in range(4, 24):
        m = -(-(1 << sh) // C)
        if m * maxq < (1 << 32) and m < (1 << 24) and all((q * m) >> sh == q // C for q in range(maxq)): return m, sh
    raise ValueError

k = None
def srd(d, base, size):
    k.i(f"s_mov_b32 s{d}, s{base}\ns_mov_b32 s{d+1}, s{base+1}\ns_mov_b32 s{d+2}, {size}\ns_mov_b32 s{d+3}, 0x20000")
def bf16r(d, s):
    k.i(f"v_cvt_pk_bf16_f32 v{d}, v{s}, v{s}\nv_lshlrev_b32 v{d}, 16, v{d}")
NSTAMP = 18
def stamp(idx, grp=None):
    if not OPT["stamps"]: return
    f = OPT.get("focus")
    lo = {"p0": (5, 18), "p1": (8, 18), "p1e": (8, 18), "p2": (13, 18), "clk": (1, 18)}.get(f)
    if grp is None and lo and lo[0] <= idx < lo[1]: return
    if grp is not None and grp != f: return
    k.i(f"s_memrealtime s[{64+2*idx}:{65+2*idx}]")
def cst(slot):
    if OPT["stamps"] and OPT.get("focus") == "clk":
        k.i(f"s_memrealtime s[{64+2*slot}:{65+2*slot}]\ns_memtime s[{66+2*slot}:{67+2*slot}]")
def snap(): return (k.vm_n, dict(k.vm_tags), k.vm_done, k.lg_n, dict(k.lg_tags), k.lg_done)
def rest(s): k.vm_n, k.vm_tags, k.vm_done, k.lg_n, k.lg_tags, k.lg_done = s[0], dict(s[1]), s[2], s[3], dict(s[4]), s[5]

class capture:
    def __enter__(self):
        self.save = (k.L, k.auto, k._iss, k._mf); k.L = []; k.auto = None; return self
    def __exit__(self, *a):
        self.lines = k.L; k.L, k.auto, k._iss, k._mf = self.save
def merge(main, fill, per):
    fill = list(fill)
    for m in main:
        m()
        for _ in range(per):
            if fill: k.i(fill.pop(0))
    return fill

PX, PWQ, PWO, PW1, PB1, PW2, PB2, POUT = 48, 50, 52, 56, 58, 60, 62, 46

npoll = 0
def check4(vt):
    k.i(f"v_xor_b32 v{vt}, s44, v{vt}\nv_xor_b32 v{vt+1}, s44, v{vt+1}\nv_xor_b32 v{vt+2}, s44, v{vt+2}\nv_xor_b32 v{vt+3}, s44, v{vt+3}")
    k.i(f"v_or3_b32 v{vt}, v{vt}, v{vt+1}, v{vt+2}\nv_or_b32 v{vt}, v{vt}, v{vt+3}\nv_cmp_ne_u32 vcc, 0, v{vt}")
def poll(vaddr, soff, vt, wide=False, w0=True, slp=0):
    global npoll
    npoll += 1
    L = f"poll{npoll}"
    au = k.auto; k.auto = None
    if w0: k.i(f"s_cmp_lg_u32 s20, 0\ns_cbranch_scc1 {L}d")
    if slp: k.i(f"s_sleep {slp}")
    k.i("s_mov_b32 s43, 0x20000")
    k.label(L)
    if OPT.get("apoll"):
        if wide:
            k.i(f"v_mov_b32 v{vt}, 0\nv_mov_b32 v{vt+1}, 0\nv_mov_b32 v{vt+2}, 0\nv_mov_b32 v{vt+3}, 0")
            k.i(f"buffer_atomic_or_x2 v[{vt}:{vt+1}], v{vaddr}, s[16:19], s{soff} offen sc0\nbuffer_atomic_or_x2 v[{vt+2}:{vt+3}], v{vaddr}, s[16:19], s{soff} offen offset:8 sc0\ns_waitcnt vmcnt(0)")
            check4(vt)
        else:
            k.i(f"v_mov_b32 v{vt}, 0\nbuffer_atomic_or v{vt}, v{vaddr}, s[16:19], s{soff} offen sc0\ns_waitcnt vmcnt(0)\nv_cmp_ne_u32 vcc, s44, v{vt}")
    else:
        if wide:
            k.i(f"buffer_load_dwordx4 v[{vt}:{vt+3}], v{vaddr}, s[16:19], s{soff} offen {OPT.get('ppol', 'sc1')}\ns_waitcnt vmcnt(0)")
            check4(vt)
        else:
            k.i(f"buffer_load_dword v{vt}, v{vaddr}, s[16:19], s{soff} offen {OPT.get('ppol', 'sc1')}\ns_waitcnt vmcnt(0)\nv_cmp_ne_u32 vcc, s44, v{vt}")
    k.i(f"s_cbranch_vccz {L}d")
    if O("sleep", 4): k.i(f"s_sleep {O('sleep', 4)}")
    k.i(f"s_sub_u32 s43, s43, 1\ns_cbranch_scc0 {L}")
    k.label(L + "d")
    k.auto = au
nsig = 0
def signal(mask, code, vt):
    global nsig
    nsig += 1
    L = f"sig{nsig}"
    au = k.auto; k.auto = None
    k.i(f"s_cmp_lg_u32 s20, 1\ns_cbranch_scc1 {L}")
    k.i(code)
    k.i(f"v_mov_b32 v{vt}, s44\ns_mov_b64 exec, {mask}\nbuffer_store_dword v{vt}, v{vt+1}, s[16:19], s42 offen {OPT.get('spol', 'sc1')}\ns_mov_b64 exec, -1")
    k.label(L)
    k.auto = au
def sig_all(base, vt):
    signal(0xff, f"v_lshlrev_b32 v{vt+1}, 12, v1\ns_lshr_b32 s42, s45, 3\ns_lshl_b32 s42, s42, 7\ns_and_b32 s43, s45, 7\ns_lshl_b32 s43, s43, 2\ns_add_u32 s42, s42, s43\ns_add_u32 s42, s42, {base}", vt)
def sig_row(base, vt, line, pos):
    signal(1, f"v_mov_b32 v{vt+1}, 0\n{line}\n{pos}\ns_lshl_b32 s42, s42, 7\ns_lshl_b32 s43, s43, 2\ns_add_u32 s42, s42, s43\ns_lshl_b32 s43, s26, 9\ns_add_u32 s42, s42, s43\ns_add_u32 s42, s42, {base}", vt)
ntree = 0
def poll_all(base, vt, slp):
    global ntree
    k.i(f"s_and_b32 s42, s2, 7\ns_lshl_b32 s42, s42, 12\ns_add_u32 s42, s42, {base}")
    k.i(f"v_lshrrev_b32 v{vt+4}, 1, v1\nv_lshlrev_b32 v{vt+4}, 7, v{vt+4}\nv_and_b32 v{vt}, 1, v1\nv_lshl_add_u32 v{vt+4}, v{vt}, 4, v{vt+4}")
    if not OPT.get("tree"):
        poll(vt+4, 42, vt, wide=True, slp=slp); return
    ntree += 1; L = f"tree{ntree}"
    NL = O("tree", 1)
    k.i(f"s_cmp_lg_u32 s20, 0\ns_cbranch_scc1 {L}d\ns_and_b32 s41, s2, {8*NL-1}\ns_lshl_b32 s41, s41, 7\ns_add_u32 s41, s41, {base + 0x10000}\ns_cmp_ge_u32 s2, {8*NL}\ns_cbranch_scc1 {L}m")
    poll(vt+4, 42, vt, wide=True, w0=False, slp=slp)
    k.i(f"v_mov_b32 v{vt}, s44\nv_mov_b32 v{vt+1}, 0\ns_mov_b64 exec, 1\nbuffer_store_dword v{vt}, v{vt+1}, s[16:19], s41 offen sc1\ns_mov_b64 exec, -1\ns_branch {L}d")
    k.label(L + "m")
    k.i(f"v_mov_b32 v{vt+1}, 0")
    sl = OPT.get("sleep"); OPT["sleep"] = 1
    poll(vt+1, 41, vt, w0=False)
    if sl is None: del OPT["sleep"]
    else: OPT["sleep"] = sl
    k.label(L + "d")
    k.i(f"s_mov_b32 s41, {LOG2E:#x}")
def poll_row(base, vt, slp):
    k.i(f"v_and_b32 v{vt+1}, 3, v1\nv_lshlrev_b32 v{vt+1}, 2, v{vt+1}\ns_lshl_b32 s42, s26, 2\ns_add_u32 s42, s42, s20\ns_lshl_b32 s42, s42, 7\ns_add_u32 s42, s42, {base}")
    poll(vt+1, 42, vt, w0=False, slp=slp)
    k.vm_done = k.vm_n

class BG:
    def __init__(self): self.q = []
    def add(self, ins, tag=None, pre="", post=""): self.q.append((pre, ins, post, tag))
    def go(self, n=1):
        for _ in range(n):
            if self.q:
                pre, ins, post, tag = self.q.pop(0)
                if OPT.get("nobg") and tag is not None and tag[:2] in ("wo", "w1", "w2"):
                    k.vm_tags[tag] = -1; continue
                k.i(pre); k.vm(ins, tag); k.i(post)
    def left(self): return len(self.q)

def phi4(a, dst, T):
    k.i(f"v_pk_mul_f32 v[{T}:{T+1}], v[{a}:{a+1}], s[40:41]")
    k.i(f"v_pk_mul_f32 v[{T+2}:{T+3}], v[{a+2}:{a+3}], s[40:41]")
    for j in range(4): k.i(f"v_exp_f32_e64 v{T+j}, v{T+j} clamp")
    for j in range(4): k.i(f"v_max_f32 v{T+4+j}, 0, v{a+j}")
    k.i(f"v_pk_add_f32 v[{T}:{T+1}], v[{T}:{T+1}], s[38:39]")
    k.i(f"v_pk_add_f32 v[{T+2}:{T+3}], v[{T+2}:{T+3}], s[38:39]")
    k.i(f"v_pk_add_f32 v[{T}:{T+1}], v[{T}:{T+1}], v[{T+4}:{T+5}]")
    k.i(f"v_pk_add_f32 v[{T+2}:{T+3}], v[{T+2}:{T+3}], v[{T+6}:{T+7}]")
    k.i(f"v_cvt_pk_bf16_f32 v{dst}, v{T}, v{T+1}")
    k.i(f"v_cvt_pk_bf16_f32 v{dst+1}, v{T+2}, v{T+3}")

ROWOFF = [[0, 4, 20, 24, 8], [12, 16, 28, 32, 36]]

def phase0():
    cold = OPT["cold"]
    stamp(0)
    k.i(f"""s_load_dwordx16 s[48:63], s[0:1], 0
    s_load_dwordx2 s[14:15], s[0:1], 80
    s_load_dwordx2 s[46:47], s[0:1], 64
    s_getpc_b64 s[4:5]
    pcl:
    s_cmp_ge_u32 s2, 256
    s_cbranch_scc1 kend
    s_lshr_b32 s25, s2, 3
    s_and_b32 s6, s25, 7
    s_lshl_b32 s6, s6, 13
    v_lshl_add_u32 v30, v0, 7, s6
    v_min_u32 v30, kend-pcl, v30
    v_cmp_gt_u32 vcc, 64, v0
    v_and_b32 v1, 63, v0
    v_lshrrev_b32 v2, 6, v0
    s_and_saveexec_b64 s[6:7], vcc
    s_cbranch_execz p0_nopf
    {'s_nop 0' if OPT.get('nopf') else 'global_load_dword v31, v30, s[4:5]'}
    p0_nopf:
    s_mov_b64 exec, s[6:7]
    v_lshlrev_b32 v3, 4, v1
    v_readfirstlane_b32 s20, v2
    s_and_b32 s24, s2, 7
    s_lshr_b32 s26, s24, 1
    s_lshl_b32 s26, s26, 2
    s_lshr_b32 s27, s25, 3
    s_add_u32 s26, s26, s27
    s_and_b32 s27, s24, 1
    s_lshl_b32 s27, s27, 3
    s_and_b32 s25, s25, 7
    s_add_u32 s27, s27, s25
    s_lshl_b32 s45, s26, 4
    s_add_u32 s45, s45, s27
    v_bfe_u32 v28, v1, 2, 2
    v_and_b32 v29, 3, v1
    s_cmp_ge_u32 s45, 128
    s_cbranch_scc1 p0_w""")
    X = 8; F = 32
    k.i(f"""v_lshrrev_b32 v4, 4, v0
    v_and_b32 v5, 15, v0
    s_lshl_b32 s21, s45, 4
    v_add_u32 v6, s21, v4
    v_mul_u32_u24 v6, 1280, v6
    v_lshl_add_u32 v6, v5, 4, v6
    s_mov_b32 s10, 2621440
    s_mov_b32 s11, 0x20000
    s_waitcnt lgkmcnt(0)
    s_mov_b32 s8, s{PX}
    s_mov_b32 s9, s{PX+1}""")
    stamp(9, "p0")
    for i in range(5):
        k.i(f"buffer_load_dwordx4 v[{X+4*i}:{X+4*i+3}], v6, s[8:11], 0 offen offset:{256*i} {OPT.get('coldx', cold)}")
    stamp(5, "p0")
    k.i(f"s_load_dword s44, s[14:15], {CB}")
    srd(16, 14, WSZ)
    k.i(f"""s_lshr_b32 s21, s45, 1
    s_mul_i32 s21, s21, 40960
    s_and_b32 s22, s45, 1
    s_lshl_b32 s22, s22, 8
    s_add_u32 s21, s21, s22
    s_add_u32 s21, s21, {XN}
    v_lshrrev_b32 v7, 1, v5
    v_lshlrev_b32 v7, 10, v7
    v_and_b32 v6, 1, v5
    v_lshlrev_b32 v6, 9, v6
    v_lshl_add_u32 v7, v4, 4, v7
    v_add_u32 v7, v7, v6
    s_mov_b32 s23, 0xffff0000
    s_mov_b32 s22, 0x3f803f80
    v_mov_b32 v112, 0
    v_mov_b32 v113, 0
    v_mov_b32 v114, 0
    v_mov_b32 v115, 0
    v_lshrrev_b32 v30, 4, v1""")
    for i in range(5):
        k.i(f"s_waitcnt vmcnt({4-i})")
        if i == 0: stamp(7, "p0")
        for j in range(4*i, 4*i+4):
            k.i(f"v_dot2_f32_bf16 v{112+2*(j&1)}, v{X+j}, s22, v{112+2*(j&1)}")
            k.i(f"v_dot2_f32_bf16 v{113+2*(j&1)}, v{X+j}, v{X+j}, v{113+2*(j&1)}")
    unp = []
    for j in range(20): unp += [f"v_lshlrev_b32 v{F+2*j}, 16, v{X+j}", f"v_and_b32 v{F+2*j+1}, s23, v{X+j}"]
    def U(n):
        for _ in range(n):
            if unp: k.i(unp.pop(0))
    U(3)
    k.i("v_pk_add_f32 v[112:113], v[112:113], v[114:115]")
    for s in (8, 4, 2, 1):
        U(2)
        k.i(f"v_add_f32_dpp v112, v112, v112 row_ror:{s} row_mask:0xf bank_mask:0xf")
        k.i(f"v_add_f32_dpp v113, v113, v113 row_ror:{s} row_mask:0xf bank_mask:0xf")
    k.i("v_mul_f32 v112, 0x3acccccd, v112\nv_mul_f32 v113, 0x3acccccd, v113\nv_fma_f32 v113, -v112, v112, v113\nv_max_f32 v113, 0, v113")
    bf16r(112, 112); bf16r(113, 113)
    k.i("v_add_f32 v113, 0x3727c5ac, v113")
    bf16r(113, 113)
    k.i("v_sqrt_f32 v113, v113"); U(1)
    bf16r(113, 113)
    k.i("v_rcp_f32 v114, v113")
    U(99)
    if OPT.get("lnexact"):
        for j in range(20): k.i(f"v_pk_add_f32 v[{F+2*j}:{F+2*j+1}], v[{F+2*j}:{F+2*j+1}], v[112:113] op_sel_hi:[1,0] neg_lo:[0,1] neg_hi:[0,1]")
        for j in range(20): k.i(f"v_cvt_pk_bf16_f32 v{X+j}, v{F+2*j}, v{F+2*j+1}")
        for j in range(20): k.i(f"v_lshlrev_b32 v{F+2*j}, 16, v{X+j}\nv_and_b32 v{F+2*j+1}, s23, v{X+j}")
    else:
        k.i("v_mul_f32 v116, v112, v114")
    for i in range(5):
        for j in range(4*i, 4*i+4):
            if OPT.get("lnexact"):
                k.i(f"v_pk_mul_f32 v[{F+2*j}:{F+2*j+1}], v[{F+2*j}:{F+2*j+1}], v[114:115] op_sel_hi:[1,0]")
            else:
                k.i(f"v_pk_fma_f32 v[{F+2*j}:{F+2*j+1}], v[{F+2*j}:{F+2*j+1}], v[114:115], v[116:117] op_sel_hi:[1,0,0] neg_lo:[0,0,1] neg_hi:[0,0,1]")
        for j in range(4*i, 4*i+4):
            k.i(f"v_cvt_pk_bf16_f32 v{X+j}, v{F+2*j}, v{F+2*j+1}")
        k.i(f"buffer_store_dwordx4 v[{X+4*i}:{X+4*i+3}], v7, s[16:19], s21 offen {HO}")
        if i < 4: k.i("s_add_u32 s21, s21, 8192")
    k.i("s_branch p0_drain")
    k.label("p0_w")
    m, sh = magic(80, 320)
    k.i(f"""s_cmp_ge_u32 s45, 248
    s_cbranch_scc1 p0_zero
    s_sub_u32 s21, s45, 128
    s_mul_i32 s30, s21, 171
    s_lshr_b32 s30, s30, 9
    s_mul_i32 s31, s30, 3
    s_sub_u32 s31, s21, s31
    s_mul_i32 s21, s30, 61440
    s_mul_i32 s22, s31, 1280
    s_add_u32 s21, s21, s22
    s_lshl_b32 s22, s20, 2
    s_mul_i32 s23, s20, 5120
    s_mov_b32 s10, 2457600
    s_mov_b32 s11, 0x20000""")
    for i in range(5):
        k.i(f"""v_add_u32 v4, {64*i}, v1
        v_mul_u32_u24 v5, {m}, v4
        v_lshrrev_b32 v5, {sh}, v5
        v_mul_u32_u24 v6, 80, v5
        v_sub_u32 v6, v4, v6
        v_lshlrev_b32 v6, 4, v6
        v_lshlrev_b32 v7, 6, v5
        v_add_u32 v5, s22, v5
        v_mul_u32_u24 v5, 3840, v5
        v_xad_u32 v{12+i}, v6, v7, v5""")
    k.i(f"s_waitcnt lgkmcnt(0)\ns_mov_b32 s8, s{PWQ}\ns_mov_b32 s9, s{PWQ+1}")
    stamp(9, "p0")
    for i in range(5):
        k.i(f"s_add_u32 m0, s23, {1024*i}\nbuffer_load_dwordx4 v{12+i}, s[8:11], s21 offen {cold} lds")
    stamp(5, "p0")
    k.i(f"s_load_dword s44, s[14:15], {CB}")
    srd(16, 14, WSZ)
    k.i(f"""v_lshrrev_b32 v30, 4, v1
    v_lshrrev_b32 v4, 1, v30
    v_lshl_add_u32 v4, v4, 3, v28
    v_mul_u32_u24 v4, 1280, v4
    v_and_b32 v5, 1, v30
    v_lshlrev_b32 v5, 5, v5
    v_lshl_add_u32 v5, v29, 3, v5
    v_lshlrev_b32 v6, 6, v28
    s_lshl_b32 s21, s30, 12
    s_add_u32 s21, s21, {WQ}
    s_cmp_lg_u32 s31, 0
    s_cbranch_scc1 p0_wkv
    s_lshl_b32 s22, s20, 6
    v_add_u32 v5, s22, v5
    v_xad_u32 v7, v5, v6, v4
    s_lshl_b32 s22, s20, 10
    s_add_u32 s21, s21, s22
    s_add_u32 s21, s21, {11*163840}
    s_waitcnt vmcnt(0)""")
    stamp(7, "p0")
    k.i("s_barrier")
    for m_ in range(5):
        r = 32 + 4*m_
        k.lg(f"ds_read_b64_tr_b16 v[{r}:{r+1}], v7 offset:{256*m_}")
        k.lg(f"ds_read_b64_tr_b16 v[{r+2}:{r+3}], v7 offset:{256*m_+4*1280}", f"q{m_}")
    for m_ in range(5):
        r = 32 + 4*m_
        k.wait(lg=f"q{m_}")
        k.i(f"buffer_store_dwordx4 v[{r}:{r+3}], v3, s[16:19], s21 offen {HO}\ns_add_u32 s21, s21, 163840")
    k.i("s_branch p0_drain")
    k.label("p0_wkv")
    k.i("""s_and_b32 s22, s20, 1
    s_lshr_b32 s23, s20, 1
    s_lshl_b32 s24, s22, 6
    s_mul_i32 s25, s23, 120
    s_add_u32 s24, s24, s25
    v_add_u32 v5, s24, v5
    s_lshl_b32 s24, s31, 1
    s_add_u32 s24, s24, s22
    s_sub_u32 s24, s24, 2
    s_lshl_b32 s24, s24, 10
    s_add_u32 s21, s21, s24
    s_mul_i32 s24, s23, 163840
    s_add_u32 s21, s21, s24""")
    for i in range(6):
        k.i(f"v_add_u32 v{12+i}, {240*i}, v5\nv_min_u32 v{12+i}, 1272, v{12+i}\nv_xad_u32 v{12+i}, v{12+i}, v6, v4")
    k.i("s_waitcnt vmcnt(0)")
    stamp(7, "p0")
    k.i("s_barrier")
    for i in range(6):
        r = 32 + 4*i
        k.lg(f"ds_read_b64_tr_b16 v[{r}:{r+1}], v{12+i}")
        k.lg(f"ds_read_b64_tr_b16 v[{r+2}:{r+3}], v{12+i} offset:{4*1280}", f"kv{i}")
    for i in range(6):
        r = 32 + 4*i
        if i == 5: k.i("s_cmp_lg_u32 s23, 0\ns_cbranch_scc1 p0_drain")
        k.wait(lg=f"kv{i}")
        k.i(f"buffer_store_dwordx4 v[{r}:{r+3}], v3, s[16:19], s21 offen {HO}\ns_add_u32 s21, s21, 327680")
    k.i("s_branch p0_drain")
    k.label("p0_zero")
    k.i(f"""s_sub_u32 s21, s45, 248
    s_mul_i32 s21, s21, 6720
    s_add_u32 s21, s21, {KVA}
    v_lshlrev_b32 v4, 4, v0
    v_mov_b32 v8, 0
    v_mov_b32 v9, 0
    v_mov_b32 v10, 0
    v_mov_b32 v11, 0
    v_lshrrev_b32 v30, 4, v1
    s_mov_b32 s10, 6720
    s_mov_b32 s11, 0x20000
    s_waitcnt lgkmcnt(0)
    s_add_u32 s8, s14, s21
    s_addc_u32 s9, s15, 0
    buffer_store_dwordx4 v[8:11], v4, s[8:11], 0 offen {HO}
    v_add_u32 v4, 4096, v4
    buffer_store_dwordx4 v[8:11], v4, s[8:11], 0 offen {HO}
    s_load_dword s44, s[14:15], {CB}""")
    stamp(9, "p0"); stamp(5, "p0"); stamp(7, "p0")
    srd(16, 14, WSZ)
    k.label("p0_drain")
    stamp(1)
    k.i("s_waitcnt vmcnt(0) lgkmcnt(0)\ns_add_u32 s44, s44, 1\ns_barrier")
    k.reset_counts()
    stamp(2)
    sig_all(F0, 4)
    UN = 0 if OPT.get("nounit") else 232
    k.i(f"""s_cmp_ge_u32 s45, {UN}
    s_cbranch_scc1 p0_uid
    s_sub_u32 s23, s20, 1
    s_mul_i32 s22, s23, 7168
    s_cmp_ge_u32 s45, 136
    s_cbranch_scc1 p0_ui_w2
    s_cmp_ge_u32 s45, 40
    s_cbranch_scc1 p0_ui_w1""")
    srd(8, PWO, 819200)
    k.i("""s_mul_i32 s35, s45, 26
    s_lshr_b32 s35, s35, 8
    s_mul_i32 s36, s35, 10
    s_sub_u32 s36, s45, s36
    s_mul_i32 s21, s35, 204800
    s_movk_i32 s29, 1280
    s_branch p0_ui_128""")
    k.label("p0_ui_w1")
    srd(8, PW1, 1966080)
    k.i("""s_sub_u32 s34, s45, 40
    s_mul_i32 s35, s34, 43
    s_lshr_b32 s35, s35, 10
    s_mul_i32 s36, s35, 24
    s_sub_u32 s36, s34, s36
    s_mul_i32 s21, s35, 491520
    s_movk_i32 s29, 3072""")
    k.label("p0_ui_128")
    k.i(f"""s_cmp_eq_u32 s20, 0
    s_cbranch_scc1 p0_uid
    s_lshl_b32 s24, s36, 7
    s_add_u32 s21, s21, s24
    v_lshrrev_b32 v4, 3, v1
    s_mul_i32 s24, s23, 56
    v_add_u32 v4, s24, v4
    v_and_b32 v5, 7, v1
    v_lshlrev_b32 v5, 4, v5
    v_and_b32 v6, 2, v4
    v_lshlrev_b32 v6, 5, v6
    v_mul_lo_u32 v4, v4, s29
    v_xad_u32 v4, v5, v6, v4
    s_lshl_b32 s29, s29, 3""")
    for i in range(7):
        k.i(f"s_add_u32 m0, s22, {UL+1024*i}\nbuffer_load_dwordx4 v4, s[8:11], s21 offen {cold} lds\ns_add_u32 s21, s21, s29")
    k.i("s_branch p0_uid")
    k.label("p0_ui_w2")
    srd(8, PW2, 1966080)
    m, sh = magic(40, 1344)
    k.i("""s_sub_u32 s34, s45, 136
    s_lshr_b32 s35, s34, 1
    s_and_b32 s36, s34, 1
    s_cmp_eq_u32 s20, 0
    s_cbranch_scc1 p0_uid
    s_mul_i32 s21, s35, 40960
    s_mul_i32 s24, s36, 640
    s_add_u32 s21, s21, s24
    s_mul_i32 s24, s23, 448
    v_add_u32 v8, s24, v1""")
    for i in range(7):
        k.i(f"""v_add_u32 v4, {64*i}, v8
        v_mul_u32_u24 v5, {m}, v4
        v_lshrrev_b32 v5, {sh}, v5
        v_mul_u32_u24 v6, 40, v5
        v_sub_u32 v6, v4, v6
        v_lshlrev_b32 v6, 4, v6
        v_and_b32 v7, 2, v5
        v_lshlrev_b32 v7, 4, v7
        v_and_b32 v9, 16, v5
        v_lshl_or_b32 v7, v9, 2, v7
        v_mul_u32_u24 v5, 1280, v5
        v_xad_u32 v4, v6, v7, v5
        s_add_u32 m0, s22, {UL+1024*i}
        buffer_load_dwordx4 v4, s[8:11], s21 offen {cold} lds""")
    k.label("p0_uid")

def unit_proc(sfx):
    UN = 0 if OPT.get("nounit") else 232
    D0 = 32
    k.i(f"""s_cmp_ge_u32 s45, {UN}
    s_cbranch_scc1 up_end{sfx}
    s_cmp_ge_u32 s45, 136
    s_cbranch_scc1 up_w2{sfx}
    s_and_b32 s6, s20, 1
    s_lshr_b32 s7, s20, 1
    s_lshl_b32 s37, s36, 1
    s_add_u32 s37, s37, s6
    s_cmp_ge_u32 s45, 40
    s_cbranch_scc1 up_w1{sfx}""")
    k.i(f"""v_and_b32 v52, 1, v30
    v_lshrrev_b32 v53, 1, v29
    v_lshl_add_u32 v52, v52, 1, v53
    v_add_u32 v52, s35, v52
    v_and_b32 v52, 3, v52
    v_lshlrev_b32 v52, 4, v52
    v_and_b32 v53, 1, v29
    v_lshl_add_u32 v52, v53, 3, v52
    s_lshl_b32 s24, s6, 6
    v_add_u32 v52, s24, v52
    v_and_b32 v53, 2, v28
    v_lshlrev_b32 v53, 5, v53
    v_xor_b32 v52, v52, v53
    v_lshl_add_u32 v52, v28, 7, v52
    s_mul_i32 s24, s7, 10240
    s_add_u32 s24, s24, {UL}
    v_add_u32 v52, s24, v52
    v_lshrrev_b32 v54, 5, v1
    v_lshlrev_b32 v54, 4, v54
    s_mul_i32 s24, s37, 205
    s_lshr_b32 s24, s24, 10
    s_mul_i32 s25, s24, 5
    s_sub_u32 s25, s37, s25
    s_lshl_b32 s24, s24, 2
    s_add_u32 s24, s24, s35
    s_mul_i32 s24, s24, 10
    s_mul_i32 s12, s7, 5
    s_add_u32 s24, s24, s12
    s_mul_i32 s24, s24, 5
    s_add_u32 s24, s24, s25
    s_lshl_b32 s24, s24, 10
    s_add_u32 s24, s24, {WO}""")
    for uu in range(5):
        for h2 in range(2):
            m_ = 2*uu + h2
            K = 0
            for hi in range(2): K |= ((40*(m_//5) + ROWOFF[hi][m_ % 5]) * 128) << (16*hi)
            r = D0 + 4*uu + 2*h2
            k.i(f"s_mov_b32 s25, {K:#x}\nv_bfe_u32 v55, s25, v54, 16\nv_add_u32 v55, v55, v52")
            k.lg(f"ds_read_b64_tr_b16 v[{r}:{r+1}], v55", f"uo{uu}")
    for uu in range(5):
        r = D0 + 4*uu
        k.wait(lg=f"uo{uu}")
        k.i(f"buffer_store_dwordx4 v[{r}:{r+3}], v3, s[16:19], s24 offen {HO}\ns_add_u32 s24, s24, 5120")
    k.i(f"s_branch up_end{sfx}")
    k.label(f"up_w1{sfx}")
    k.i(f"""v_lshrrev_b32 v52, 1, v30
    v_lshl_add_u32 v52, v52, 3, v28
    v_and_b32 v53, 1, v30
    v_lshlrev_b32 v53, 5, v53
    v_lshl_add_u32 v53, v29, 3, v53
    s_lshl_b32 s24, s6, 6
    v_add_u32 v53, s24, v53
    v_and_b32 v54, 2, v28
    v_lshlrev_b32 v54, 5, v54
    v_lshlrev_b32 v52, 7, v52
    v_xad_u32 v52, v53, v54, v52
    s_mul_i32 s24, s7, 10240
    s_add_u32 s24, s24, {UL}
    v_add_u32 v52, s24, v52
    v_mov_b32 v56, 0
    s_mov_b32 s12, 0x3f803f80
    s_mul_i32 s24, s37, 171
    s_lshr_b32 s24, s24, 9
    s_mul_i32 s25, s24, 3
    s_sub_u32 s25, s37, s25
    s_mul_i32 s24, s24, 40
    s_mul_i32 s13, s35, 10
    s_add_u32 s24, s24, s13
    s_mul_i32 s13, s7, 5
    s_add_u32 s24, s24, s13
    s_mul_i32 s24, s24, 3
    s_add_u32 s24, s24, s25
    s_lshl_b32 s24, s24, 10
    s_add_u32 s24, s24, {W1}""")
    for ks in range(5):
        r = D0 + 4*ks
        k.lg(f"ds_read_b64_tr_b16 v[{r}:{r+1}], v52 offset:{ks*2048}")
        k.lg(f"ds_read_b64_tr_b16 v[{r+2}:{r+3}], v52 offset:{ks*2048+512}", f"u1{ks}")
    for ks in range(5):
        r = D0 + 4*ks
        k.wait(lg=f"u1{ks}")
        k.i(f"buffer_store_dwordx4 v[{r}:{r+3}], v3, s[16:19], s24 offen {HO}\ns_add_u32 s24, s24, 3072")
        for j in range(4): k.i(f"v_dot2_f32_bf16 v56, v{r+j}, s12, v56")
    k.i(f"""s_nop 2
    v_mov_b32 v57, v56
    s_lshl_b32 s24, s35, 1
    s_add_u32 s24, s24, s7
    v_permlane32_swap_b32 v56, v57
    s_mul_i32 s24, s24, 6144
    s_lshl_b32 s25, s37, 7
    s_add_u32 s24, s24, s25
    s_add_u32 s24, s24, {CS}
    v_add_f32 v56, v56, v57
    v_lshlrev_b32 v57, 2, v1
    s_mov_b64 exec, 0xffffffff
    buffer_store_dword v56, v57, s[16:19], s24 offen {HO}
    s_mov_b64 exec, -1
    s_branch up_end{sfx}""")
    k.label(f"up_w2{sfx}")
    k.i(f"""v_and_b32 v52, 1, v30
    v_lshlrev_b32 v52, 4, v52
    v_lshrrev_b32 v53, 1, v30
    v_lshl_add_u32 v52, v53, 2, v52
    v_add_u32 v52, v52, v28
    v_and_b32 v54, 2, v52
    v_lshlrev_b32 v54, 4, v54
    v_and_b32 v55, 16, v52
    v_lshl_or_b32 v54, v55, 2, v54
    v_mul_u32_u24 v52, 640, v52
    v_add_u32 v52, {UL}, v52
    s_mul_i32 s24, s20, 160
    v_lshl_add_u32 v53, v29, 3, s24
    s_lshl_b32 s24, s36, 2
    s_add_u32 s24, s24, s20
    s_mul_i32 s24, s24, 48
    s_add_u32 s24, s24, s35
    s_mul_i32 s24, s24, 5120
    s_add_u32 s24, s24, {W2}""")
    for m_ in range(5):
        r = D0 + 4*m_
        k.i(f"v_add_u32 v55, {32*m_}, v53\nv_xad_u32 v55, v55, v54, v52")
        k.lg(f"ds_read_b64_tr_b16 v[{r}:{r+1}], v55")
        k.lg(f"ds_read_b64_tr_b16 v[{r+2}:{r+3}], v55 offset:{8*640}", f"u2{m_}")
    for m_ in range(5):
        r = D0 + 4*m_
        k.wait(lg=f"u2{m_}")
        k.i(f"buffer_store_dwordx4 v[{r}:{r+3}], v3, s[16:19], s24 offen {HO}\ns_add_u32 s24, s24, 1024")
    k.label(f"up_end{sfx}")

WOR = [160 + 4*f for f in range(24)] + [56 + 4*f for f in range(26)]
PQA = 0; XA = 40
W2R = WOR + list(range(0, 40, 4))
TBV = 244
WOB = None
def phase1():
    global WOB
    k.i(f"""v_add_u32 v4, 0x10000, v3
    v_add_u32 v5, 0x20000, v3
    s_lshl_b32 s28, s26, 2
    s_add_u32 s28, s28, s20
    s_mul_i32 s21, s28, 40960
    s_add_u32 s21, s21, {XN}
    s_lshl_b32 s23, s20, 12
    s_mul_i32 s22, s27, 163840
    s_add_u32 s22, s22, s23
    s_add_u32 s22, s22, {WQ}
    s_mov_b32 s40, {LOG2E:#x}
    s_mov_b32 s41, {LOG2E:#x}
    s_mov_b32 s38, 0x358637bd
    s_mov_b32 s39, 0x358637bd""")
    poll_all(F0, 8, O("slp0", 16))
    k.i("s_barrier")
    stamp(4)
    ACC = 64; WB = 128; T = 8; PK = 176; FB0 = 20; NS = 12; AH = 8
    PRE = O("pre1", 3)
    Q = BG()
    for s in range(10):
        for j in range(4):
            Q.add(f"buffer_load_dwordx4 v3, s[16:19], s22 offen offset:{1024*j} {HO} lds", f"W{s}",
                  pre=(f"s_add_u32 m0, s23, {s*16384}" if j == 0 else ""), post=("s_add_u32 s22, s22, 16384" if j == 3 else ""))
        for j in range(4):
            Q.add(f"buffer_load_dwordx4 a[{16*s+4*j}:{16*s+4*j+3}], v3, s[16:19], s21 offen offset:{1024*j} {HO}", f"X{4*s+j}",
                  post=("s_add_u32 s21, s21, 4096" if j == 3 else ""))
    Q.go(8*PRE)
    k.wait(vm="W0"); k.i("s_barrier")
    sv0 = snap(); unit_proc(""); rest(sv0)
    stamp(3)
    k.i(f"""s_lshr_b32 s33, s27, 3
    s_lshl_b32 s13, s33, 2
    s_and_b32 s12, s27, 3
    s_add_u32 s13, s13, s12
    s_bfe_u32 s12, s27, 0x10002
    s_lshl_b32 s31, s26, 1
    s_add_u32 s12, s12, s31
    s_lshl_b32 s31, s26, 2
    s_bfe_u32 s29, s27, 0x20001
    s_add_u32 s29, s29, s31
    s_lshl_b32 s30, s33, 1
    s_and_b32 s33, s27, 1
    s_add_u32 s30, s30, s33
    s_lshl_b32 s31, s30, 2
    s_add_u32 s31, s31, s20
    s_mul_i32 s31, s31, 51200
    s_add_u32 s31, s31, {WO}
    v_and_b32 v24, 31, v1
    s_lshl_b32 s33, s29, 5
    v_add_u32 v24, s33, v24
    v_mul_u32_u24 v24, 1280, v24
    v_lshrrev_b32 v25, 5, v1
    v_lshl_add_u32 v24, v25, 3, v24
    s_mul_i32 s3, s30, 320
    s_lshl_b32 s34, s20, 4
    s_add_u32 s3, s3, s34
    v_lshlrev_b32 v26, 2, v0
    v_lshlrev_b32 v27, 1, v0
    s_mul_i32 s33, s27, 192
    s_add_u32 s{PB1}, s{PB1}, s33
    s_addc_u32 s{PB1+1}, s{PB1+1}, 0
    s_mul_i32 s{PW1}, s27, 384
    s_add_u32 s{PW1}, s{PW1}, {CS}""")
    srd(8, PX, 2621440)
    k.i("s_cmp_ge_u32 s27, 11\ns_cbranch_scc1 p1_q")
    sv = snap(); Qs = list(Q.q)
    def mkbg():
        B = BG()
        for i in range(50):
            B.add(f"buffer_load_dwordx4 a[{WOR[i]}:{WOR[i]+3}], v3, s[16:19], s31 offen offset:{1024*(i%4)} {HO}", f"wo{i}", post=("s_add_u32 s31, s31, 4096" if i % 4 == 3 else ""))
        return B
    def small():
        S = BG()
        for j in range(8):
            S.add(f"buffer_load_dword v{TBV+j}, v26, s[16:19], s{PW1} offen {HO}", post=f"s_add_u32 s{PW1}, s{PW1}, 6144")
        for c in range(5):
            S.add(f"buffer_load_dwordx2 a[{XA+2*c}:{XA+2*c+1}], v24, s[8:11], s3 offen offset:{64*c}")
        S.add(f"buffer_load_ushort v{TBV+8}, v27, s[8:11], 0 offen", pre=f"s_mov_b32 s8, s{PB1}\ns_mov_b32 s9, s{PB1+1}\ns_mov_b32 s10, 192")
        return S
    NPRE = O("wo_pre", 20)
    def loop(act_first, order_tail, fill_after, B, sfx):
        items = [(ks, j) for ks in range(40 - len(order_tail)//4) for j in range(4)] + order_tail
        first = {}
        for n_, (ks_, j_) in enumerate(items): first.setdefault(ks_//4, n_)
        NCHK = 2*(80 - 8*PRE) + O("chk", 0)
        def rd(n):
            ks, j = items[n]
            if ks >= 4 and first[ks//4] == n:
                k.wait(vm=f"W{ks//4}"); k.i("s_barrier")
                if ks//4 == PRE + 1:
                    signal(1, f"v_mov_b32 v7, 0\ns_lshl_b32 s42, s45, 2\ns_add_u32 s42, s42, {F0B}", 6)
            o = (ks*4 + j) * 1024
            r = WB + 4*(n % NS)
            k.lg(f"ds_read_b128 v[{r}:{r+3}], v{3 + o//65536} offset:{o % 65536}", f"w{n}")
        for n in range(AH): rd(n)
        fill = []
        for n, (ks, j) in enumerate(items):
            if n % 2 == 0:
                k.wait(vm=f"X{max(items[n][0], items[n+1][0])}", lg=f"w{n+1}")
                if n % 16 == 0: stamp(8 + n//16, "p1")
            w = vr(WB + 4*(n % NS), 4); x = ar(4*ks, 4); d = vr(ACC + 16*j, 16)
            c = "0" if ks == 0 else d
            k.i(f"v_mfma_f32_32x32x16_bf16 {d}, {x}, {w}, {c}" if act_first else f"v_mfma_f32_32x32x16_bf16 {d}, {w}, {x}, {c}")
            if n % 2 == 0:
                if Q.left(): Q.go()

            else:
                for m_ in (n - 1 + AH, n + AH):
                    if m_ < 160: rd(m_)
            if n == NCHK - 16:
                k.i(f"s_mov_b32 s42, {F0B}")
                k.vm(f"buffer_load_dwordx4 v[{FB0}:{FB0+3}], v3, s[16:19], s42 offen sc1", "f0b")
            if n == NCHK:
                k.wait(vm="f0b")
                check4(FB0)
                k.i(f"s_cbranch_vccz p1_ok{sfx}\ns_mov_b32 s42, {F0B}")
                poll(3, 42, FB0, wide=True, w0=False)
                k.label(f"p1_ok{sfx}")
                SQ[0] = small()
                lim[0] = min(24, NPRE); k.th = O("th1", 96)
                k.auto = lambda: B.go() if 50 - B.left() < lim[0] else None
            if n in fill_after: fill += fill_after[n]
            for _ in range(6):
                if fill: k.i(fill.pop(0))
        lim[0] = NPRE; k.th = O("th1e", 90)
        for l in fill: k.i(l)
    lim = [0]; SQ = [None]
    def phi_lines(t):
        with capture() as c:
            for b in range(0, 16, 4): phi4(ACC + 16*t + b, PK + 8*t + b//2, T)
        return c.lines
    TL = O("tl1", 4)
    tail = [(ks, j) for ks in range(40-TL, 40) for j in (0, 1)] + [(ks, j) for ks in range(40-TL, 40) for j in (2, 3)]
    B = mkbg()
    loop(True, tail, {161 - 2*TL: phi_lines(0) + phi_lines(1)}, B, "kv")
    stamp(5)
    k.i("s_lshl_b32 s33, s20, 13\nv_add_u32 v6, s33, v3")
    for t in (0, 1):
        for f in range(2):
            k.lg(f"ds_write_b128 v6, v[{PK+8*t+4*f}:{PK+8*t+4*f+3}] offset:{2048*t+1024*f}")
    for t in (2, 3):
        for p in range(8):
            k.i(f"v_cvt_pk_bf16_f32 v{PK+8*t+p}, v{ACC+16*t+2*p}, v{ACC+16*t+2*p+1}")
        if t == 3:
            k.i("s_mov_b32 s34, 0xf0000000\ns_mov_b32 s35, 0xf0000000\nv_mov_b32 v7, 0x3f803f80")
            for p in range(8): k.i(f"v_cndmask_b32 v{PK+24+p}, v{PK+24+p}, v7, s[34:35]")
        for f in range(2):
            k.lg(f"ds_write_b128 v6, v[{PK+8*t+4*f}:{PK+8*t+4*f+3}] offset:{2048*t+1024*f}")
    k.i("""s_lshr_b32 s33, s20, 1
    s_and_b32 s34, s20, 1
    s_lshl_b32 s35, s33, 11
    v_add_u32 v8, s35, v3
    s_lshl_b32 s35, s34, 11
    s_add_u32 s35, s35, 4096
    v_add_u32 v9, s35, v3""")
    k.wait(lg="all"); k.i("s_barrier")
    stamp(8, "p1e")
    FA = 64; FB = 96; DD = 128
    for w in range(4):
        for f in range(2):
            n = 2*w + f
            k.lg(f"ds_read_b128 v[{FA+4*n}:{FA+4*n+3}], v8 offset:{8192*w+1024*f}")
            k.lg(f"ds_read_b128 v[{FB+4*n}:{FB+4*n+3}], v9 offset:{8192*w+1024*f}", f"f{n}")
    with capture() as c:
        k.i("""v_and_b32 v10, 31, v1
        s_lshl_b32 s35, s34, 5
        v_add_u32 v10, s35, v10
        v_mul_u32_u24 v11, 205, v10
        v_lshrrev_b32 v11, 12, v11
        v_mul_u32_u24 v12, 20, v11
        v_sub_u32 v12, v10, v12
        v_cmp_eq_u32 s[36:37], 60, v10
        v_mov_b32 v13, 20
        v_lshrrev_b32 v14, 5, v1
        v_cndmask_b32 v12, v12, v13, s[36:37]
        v_mul_u32_u24 v12, 80, v12
        v_lshlrev_b32 v14, 2, v14
        s_lshl_b32 s35, s33, 5
        v_add_u32 v14, s35, v14
        v_lshlrev_b32 v22, 2, v0""")
        MS = [4, 6, 24, 34]
        for j in range(4):
            ms = MS[j]
            k.i(f"""v_add_u32 v15, {8*j}, v14
            v_mul_u32_u24 v20, 205, v15
            v_lshrrev_b32 v20, 12, v20
            v_mul_u32_u24 v21, 20, v20
            v_sub_u32 v21, v15, v21
            v_cmp_eq_u32 s[{ms}:{ms+1}], v20, v11
            v_cmp_gt_u32 vcc, 3, v20
            v_mul_u32_u24 v20, 1680, v20
            v_lshl_add_u32 v21, v21, 2, v12
            v_add_u32 v{16+j}, v20, v21
            s_or_b64 s[{ms}:{ms+1}], s[{ms}:{ms+1}], s[36:37]
            s_and_b64 s[{ms}:{ms+1}], s[{ms}:{ms+1}], vcc""")
    fill = c.lines
    for _ in range(16): k.i(fill.pop(0))
    def kvm(n):
        def f():
            k.wait(lg=f"f{n}")
            k.i(f"v_mfma_f32_32x32x16_bf16 v[{DD}:{DD+15}], v[{FA+4*n}:{FA+4*n+3}], v[{FB+4*n}:{FB+4*n+3}], {'0' if n == 0 else vr(DD,16)}")
        return f
    for l in merge([kvm(n) for n in range(8)], fill, 6): k.i(l)
    for j in range(4):
        k.i(f"s_mov_b64 exec, s[{MS[j]}:{MS[j]+1}]")
        k.lg(f"ds_write_b128 v{16+j}, v[{DD+4*j}:{DD+4*j+3}] offset:32768")
    k.i(f"""s_mov_b64 exec, -1
    s_mul_i32 s33, s27, 5040
    s_add_u32 s33, s33, {KVA}
    s_add_u32 s4, s14, s33
    s_addc_u32 s5, s15, 0
    s_cmp_eq_u32 s27, 10
    s_movk_i32 s6, 5040
    s_cselect_b32 s6, 3360, s6
    s_mov_b32 s7, 0x20000""")
    k.wait(lg="all"); k.i("s_barrier")
    stamp(9, "p1e")
    for i in range(5):
        k.lg(f"ds_read_b32 v{32+i}, v22 offset:{32768+1024*i}", f"d{i}")
    for i in range(5):
        k.wait(lg=f"d{i}")
        if i == 4: k.i("v_add_u32 v22, 4096, v22")
        k.vm(f"buffer_atomic_add_f32 v{32+i}, v22, s[4:7], 0 offen offset:{1024*(i%4)}", "out1")
    stamp(10, "p1e")
    def bg_finish(B):
        k.auto = None
        print("WO left for the drain:", NPRE - (50 - B.left()), file=sys.stderr)
        if O("pqe", 1):
            k.i(f"v_min_u32 v{FB0+1}, 4, v1\nv_lshlrev_b32 v{FB0+1}, 2, v{FB0+1}\ns_and_b32 s24, s2, 7\ns_lshl_b32 s24, s24, 12\ns_lshl_b32 s25, s26, 8\ns_add_u32 s24, s24, s25\ns_add_u32 s24, s24, {F1 + 128 + 12}")
            k.vm(f"buffer_load_dword v{FB0}, v{FB0+1}, s[16:19], s24 offen sc1", "out1")
        B.go(NPRE - (50 - B.left()))
    bg_finish(B)
    k.wait(vm="out1")
    k.i("s_branch p1_fin")
    k.label("p1_q")
    rest(sv); Q.q = list(Qs)
    k.i(f"""s_mul_i32 s33, s28, 40960
    s_sub_u32 s34, s27, 11
    s_lshl_b32 s34, s34, 13
    s_add_u32 s33, s33, s34
    s_add_u32 s33, s33, {PQ}""")
    tail = [(ks, j) for j in range(4) for ks in range(36, 40)]
    B = mkbg()
    loop(False, tail, {149: phi_lines(0), 153: phi_lines(1)}, B, "q")
    stamp(5)
    for t in range(4):
        if t >= 2:
            for b in range(0, 16, 4):
                phi4(ACC + 16*t + b, PK + 8*t + b//2, T)
        for f in range(2):
            k.vm(f"buffer_store_dwordx4 v[{PK+8*t+4*f}:{PK+8*t+4*f+3}], v3, s[16:19], s33 offen offset:{(2048*t+1024*f) % 4096} {HO}", "out1")
        if t == 1: k.i("s_add_u32 s33, s33, 4096")
    stamp(8, "p1e"); stamp(9, "p1e"); stamp(10, "p1e")
    bg_finish(B)
    k.wait(vm="out1")
    k.label("p1_fin")
    stamp(6)
    k.i("s_barrier")
    sig_all(F1, 6)
    WOB = B
    if O("pqe", 1):
        k.i(f"v_cmp_ne_u32 vcc, s44, v{FB0}\ns_cbranch_vccz p1_qok")
        poll(FB0+1, 24, FB0, w0=False)
        k.label("p1_qok")
        k.i(f"""s_mul_i32 s22, s29, 40960
        s_mul_i32 s33, s20, 10240
        s_add_u32 s22, s22, s33
        s_add_u32 s22, s22, {PQ}""")
        for kl in range(10):
            k.vm(f"buffer_load_dwordx4 a[{PQA+4*kl}:{PQA+4*kl+3}], v3, s[16:19], s22 offen offset:{1024*(kl%4)} {HO}", f"pq{kl}")
            if kl % 4 == 3: k.i("s_add_u32 s22, s22, 4096")
    SQ[0].go(99)
    WOB.go(O("wo_w", 5))
    NW1 = O("w1_w", 16)
    k.i(f"""s_mul_i32 s25, s27, 122880
    s_add_u32 s25, s25, {W1}
    s_cmp_eq_u32 s20, 0
    s_cbranch_scc1 p1_now1
    s_sub_u32 s23, s20, 1
    s_mul_i32 s23, s23, {NW1*1024}
    s_add_u32 s24, s25, s23""")
    for i in range(NW1):
        if i % 4 == 0: k.i(f"s_add_u32 m0, s23, {1024*i}")
        if not OPT.get("nobg"): k.i(f"buffer_load_dwordx4 v3, s[16:19], s24 offen offset:{1024*(i%4)} {HO} lds")
        if i % 4 == 3: k.i("s_add_u32 s24, s24, 4096")
    k.i("s_waitcnt vmcnt(0)" if OPT.get("nobg") else f"s_waitcnt vmcnt({NW1})")
    k.label("p1_now1")
    stamp(7)

W2B = None
def phase2():
    global W2B
    P2L = 102400
    k.i(f"""s_mul_i32 s21, s20, 13440
    s_add_u32 s21, s21, {KVA}
    s_mul_i32 s23, s20, 15360
    s_add_u32 s23, s23, {P2L+64}
    s_mul_i32 s22, s29, 40960
    s_mul_i32 s33, s20, 10240
    s_add_u32 s22, s22, s33
    s_add_u32 s22, s22, {PQ}
    v_bfe_u32 v8, v1, 2, 3
    v_lshlrev_b32 v8, 2, v8
    v_and_b32 v9, 3, v1
    s_mov_b32 s33, 0x55524130
    s_mov_b32 s34, 0x55453120
    v_bfe_u32 v10, s33, v8, 4
    v_bfe_u32 v11, s34, v8, 4
    v_lshl_add_u32 v10, v10, 2, v9
    v_lshl_add_u32 v11, v11, 2, v9
    v_min_u32 v10, 20, v10
    v_min_u32 v11, 20, v11
    v_lshrrev_b32 v12, 5, v1
    v_lshlrev_b32 v12, 4, v12
    s_sub_u32 s33, s23, 16
    v_add_u32 v12, s33, v12
    v_mul_u32_u24 v10, 80, v10
    v_mul_u32_u24 v11, 80, v11
    v_add_u32 v10, v10, v12
    v_add_u32 v11, v11, v12
    s_lshl_b32 s28, s26, 2
    s_add_u32 s28, s28, s20
    s_mov_b32 s36, 0
    s_mov_b32 s37, -1
    s_lshl_b32 s35, s13, 2
    s_add_u32 s35, s35, s20
    s_mul_i32 s35, s35, 61440
    s_add_u32 s35, s35, {W2}""")
    poll_all(F1, 14, O('slp1', 0))
    k.i("s_barrier")
    k.vm_done = k.vm_n
    stamp(8)
    for i in range(14):
        if i % 4 == 0: k.i(f"s_add_u32 m0, s23, {1024*i}")
        k.vm(f"buffer_load_dwordx4 v3, s[16:19], s21 offen offset:{1024*(i%4)} {HO} lds", f"kv{i}")
        if i % 4 == 3: k.i("s_add_u32 s21, s21, 4096")
        if i in (6, 13) and not O("pqe", 1):
            for kl in (range(0, 5) if i == 6 else range(5, 10)):
                k.vm(f"buffer_load_dwordx4 a[{PQA+4*kl}:{PQA+4*kl+3}], v3, s[16:19], s22 offen offset:{1024*(kl%4)} {HO}", f"pq{kl}")
                if kl % 4 == 3: k.i("s_add_u32 s22, s22, 4096")
    NW1 = O("w1_w", 16); N1 = (96 - 3*NW1) // 4
    assert 3*NW1 + 4*N1 == 96
    k.i(f"s_mul_i32 s24, s20, {N1*1024}\ns_add_u32 s24, s24, {3*NW1*1024}\ns_add_u32 s25, s25, s24")
    B1 = BG()
    for i in range(N1):
        B1.add(f"buffer_load_dwordx4 v3, s[16:19], s25 offen offset:{1024*(i%4)} {HO} lds", "w1",
               pre=(f"s_add_u32 m0, s24, {1024*i}" if i % 4 == 0 else ""), post=("s_add_u32 s25, s25, 4096" if i % 4 == 3 else ""))
    W2B = BG()
    for i in range(60):
        W2B.add(f"buffer_load_dwordx4 a[{W2R[i]}:{W2R[i]+3}], v3, s[16:19], s35 offen offset:{1024*(i%4)} {HO}", "w2", post=("s_add_u32 s35, s35, 4096" if i % 4 == 3 else ""))
    AF = 20; TT = 84; DT = 180; OG = 84; ACC = [20, 36, 124, 140, 156]
    for j in range(1, 8): k.i(f"v_add_f32 v{TBV}, v{TBV}, v{TBV+j}")
    k.i(f"v_lshlrev_b32 v{TBV+1}, 16, v{TBV+8}")
    jobs = {}
    n = 0
    for hl in range(8):
        jobs[hl] = []
        for u in range(2):
            for h2 in range(2):
                dg0 = -(hl % 4) + 4*u + 2*h2
                v0_ = 0 <= dg0 <= 4; v1_ = 0 <= dg0+1 <= 4
                d = AF + (2*hl+u)*4 + 2*h2
                if v0_ or v1_:
                    jobs[hl].append((d, n, v0_, v1_, hl*1680 + 16*(dg0+1))); n += 1
                else:
                    jobs[hl].append((d, None, 0, 0, 0))
                    k.i(f"v_mov_b32 v{d}, 0\nv_mov_b32 v{d+1}, 0")
    def kvreads(lo, hi):
        for hl in range(lo, hi):
            for d, n, _, _, o in jobs[hl]:
                if n is not None: k.lg(f"ds_read_b128 v[{TT+4*n}:{TT+4*n+3}], v{10 + (hl & 1)} offset:{o}", f"a{n}")
    def build(hl):
        for d, n, v0_, v1_, _ in jobs[hl]:
            if n is None: continue
            k.wait(lg=f"a{n}")
            t = TT + 4*n
            k.i(f"v_cvt_pk_bf16_f32 v{d}, v{t}, v{t+1}\nv_cvt_pk_bf16_f32 v{d+1}, v{t+2}, v{t+3}")
            if not v1_: k.i(f"v_cndmask_b32 v{d}, v{d}, 0, s[36:37]\nv_cndmask_b32 v{d+1}, v{d+1}, 0, s[36:37]")
            if not v0_: k.i(f"v_cndmask_b32 v{d}, 0, v{d}, s[36:37]\nv_cndmask_b32 v{d+1}, 0, v{d+1}, s[36:37]")
    def omm(hl):
        t0 = hl + hl//4
        d = vr(DT + 16*(hl % 4), 16)
        def f(u):
            def g():
                k.wait(vm=f"pq{t0+u}")
                k.i(f"v_mfma_f32_32x32x16_bf16 {d}, {vr(AF+(2*hl+u)*4, 4)}, {ar(PQA+4*(t0+u), 4)}, {'0' if u == 0 else d}")
            return g
        return [f(0), f(1)]
    def opost(hl):
        p = hl // 2; odd = hl & 1
        D = DT + 16*(hl % 4); rc = 16 + 2*odd
        a, b = (D+8, D+12) if odd else (D+12, D+8)
        with capture() as c:
            k.i(f"v_cndmask_b32 v{rc}, v{a}, v{b}, s[36:37]\nv_add_f32 v{rc}, s38, v{rc}\nv_rcp_f32 v{rc}, v{rc}\ns_nop 0")
            for h in range(6):
                k.i(f"v_pk_mul_f32 v[{D+2*h}:{D+2*h+1}], v[{D+2*h}:{D+2*h+1}], v[{rc}:{rc+1}] op_sel_hi:[1,0]")
            for j in range(2):
                g = OG + 2*(5*p + 2*odd + j)
                k.i(f"v_cvt_pk_bf16_f32 v{g}, v{D+4*j}, v{D+4*j+1}\nv_cvt_pk_bf16_f32 v{g+1}, v{D+4*j+2}, v{D+4*j+3}")
            g = OG + 2*(5*p + 4)
            if not odd:
                k.i(f"v_cvt_pk_bf16_f32 v{g}, v{D+8}, v{D+9}\nv_cvt_pk_bf16_f32 v{g+1}, v{D+10}, v{D+11}")
            else:
                k.i(f"v_cvt_pk_bf16_f32 v{D}, v{D+8}, v{D+9}\nv_cvt_pk_bf16_f32 v{D+1}, v{D+10}, v{D+11}")
                k.i(f"v_cndmask_b32 v{g}, v{g}, v{D}, s[36:37]\nv_cndmask_b32 v{g+1}, v{g+1}, v{D+1}, s[36:37]")
        return c.lines
    def wo(u, c, bg=True):
        def f():
            d = vr(ACC[c], 16)
            while f"wo{5*u+c}" not in k.vm_tags or (WOB.left() and 50 - WOB.left() <= 5*u+c): WOB.go()
            k.wait(vm=f"wo{5*u+c}")
            k.i(f"v_mfma_f32_32x32x16_bf16 {d}, {ar(WOR[5*u+c], 4)}, {vr(OG+4*u, 4)}, {'0' if u == 0 else d}")
            w2lim[0] = min(5*u, 35)
        return f
    w2lim = [0]
    def au2():
        if WOB.left(): WOB.go()
        elif B1.left(): B1.go()
        elif 60 - W2B.left() < w2lim[0]: W2B.go()
    k.auto = au2; k.th = O("th2", 90)
    k.wait(vm="kv6")
    stamp(13, "p2")
    kvreads(0, 4)
    for hl in range(4):
        build(hl)
        for f in omm(hl): f()
        if hl == 1:
            k.wait(vm="kv13"); kvreads(4, 8)
    for hl in range(4, 8):
        build(hl)
    stamp(9)
    for l in opost(0): k.i(l)
    for l in merge(omm(4), opost(1), 9): k.i(l)
    stamp(10)
    for l in merge(omm(5) + [wo(u, c) for u in (0, 1) for c in range(5)], opost(2) + opost(3), 4): k.i(l)
    for l in merge(omm(6) + omm(7) + [wo(u, c) for u in (2, 3, 4) for c in range(5)], opost(4) + opost(5), 3): k.i(l)
    with capture() as c:
        k.i(f"s_sub_u32 s33, s23, 64\nv_add_u32 v13, s33, v3")
        for j in range(1, 4):
            k.i(f"s_sub_u32 s33, s20, {j}\ns_and_b32 s33, s33, 3\ns_mul_i32 s33, s33, 15360\ns_add_u32 s33, s33, {P2L + (j-1)*5120}\nv_add_u32 v{13+j}, s33, v3")
    for l in merge([wo(u, c) for u in (5, 6) for c in range(5)], opost(6) + opost(7), 4): k.i(l)
    XF = 180
    with capture() as c2:
        k.i("s_mov_b32 s33, 0xffff0000")
        for j in range(10):
            k.i(f"v_accvgpr_read_b32 v{XF+2*j+1}, a{XA+j}")
        for j in range(10):
            k.i(f"v_lshlrev_b32 v{XF+2*j}, 16, v{XF+2*j+1}\nv_and_b32 v{XF+2*j+1}, s33, v{XF+2*j+1}")
    fill = c.lines + c2.lines
    def red_w(c):
        for j in range(1, 4):
            r = ACC[c] + 4*j
            k.lg(f"ds_write_b128 v13, v[{r}:{r+3}] offset:{(j-1)*5120 + 1024*c}")
    for c in range(5):
        fill = merge([wo(u, c) for u in (7, 8, 9)], fill, 4)
        if c >= 2: red_w(c - 2)
    for l in fill: k.i(l)
    w2lim[0] = 60
    stamp(11)
    red_w(3); red_w(4)
    for c in range(5):
        for h in range(2):
            d = XF + 4*c + 2*h; a = ACC[c] + 2*h
            k.i(f"v_pk_add_f32 v[{d}:{d+1}], v[{d}:{d+1}], v[{a}:{a+1}]")
    k.wait(lg="all"); k.i("s_barrier")
    stamp(14, "p2")
    RR = 84
    for j in range(1, 4):
        for c in range(5):
            r = RR + 20*(j-1) + 4*c
            k.lg(f"ds_read_b128 v[{r}:{r+3}], v{13+j} offset:{1024*c}", f"r{j}_{c}")
    k.i(f"""s_mul_i32 s34, s29, 40
    s_mul_i32 s21, s30, 10
    s_add_u32 s34, s34, s21
    s_lshr_b32 s21, s20, 1
    s_add_u32 s34, s34, s21
    s_lshl_b32 s34, s34, 10
    s_and_b32 s21, s20, 1
    s_lshl_b32 s21, s21, 9
    s_add_u32 s34, s34, s21
    s_add_u32 s34, s34, {HH}
    v_and_b32 v8, 31, v1
    v_lshrrev_b32 v9, 5, v1
    v_lshlrev_b32 v12, 3, v8
    v_lshlrev_b32 v8, 4, v8
    v_lshl_add_u32 v8, v9, 3, v8""")
    HP = 24
    for j in range(1, 4):
        for c in range(5):
            k.wait(lg=f"r{j}_{c}")
            for h in range(2):
                d = XF + 4*c + 2*h; a = RR + 20*(j-1) + 4*c + 2*h
                k.i(f"v_pk_add_f32 v[{d}:{d+1}], v[{d}:{d+1}], v[{a}:{a+1}]")
            if j == 3:
                k.i(f"v_cvt_pk_bf16_f32 v{HP+2*c}, v{XF+4*c}, v{XF+4*c+1}\nv_cvt_pk_bf16_f32 v{HP+2*c+1}, v{XF+4*c+2}, v{XF+4*c+3}")
                k.vm(f"buffer_store_dwordx2 v[{HP+2*c}:{HP+2*c+1}], v8, s[16:19], s34 offen offset:{2048*(c%2)} {HO}")
                if c % 2 == 1: k.i("s_add_u32 s34, s34, 4096")
    for j in range(10):
        k.i(f"v_lshlrev_b32 v{XF+2*j}, 16, v{HP+j}\nv_and_b32 v{XF+2*j+1}, s33, v{HP+j}")
    k.i(f"v_pk_add_f32 v[16:17], v[{XF}:{XF+1}], v[{XF+2}:{XF+3}]")
    k.i(f"v_pk_mul_f32 v[18:19], v[{XF}:{XF+1}], v[{XF}:{XF+1}]")
    k.i(f"v_pk_fma_f32 v[18:19], v[{XF+2}:{XF+3}], v[{XF+2}:{XF+3}], v[18:19]")
    for j in range(2, 10):
        k.i(f"v_pk_add_f32 v[16:17], v[16:17], v[{XF+2*j}:{XF+2*j+1}]")
        k.i(f"v_pk_fma_f32 v[18:19], v[{XF+2*j}:{XF+2*j+1}], v[{XF+2*j}:{XF+2*j+1}], v[18:19]")
    k.i(f"""v_add_f32 v16, v16, v17
    v_add_f32 v17, v18, v19
    v_mov_b32 v18, v16
    v_mov_b32 v19, v17
    s_lshl_b32 s34, s29, 4
    s_lshl_b32 s21, s30, 2
    s_add_u32 s34, s34, s21
    s_add_u32 s34, s34, s20
    v_permlane32_swap_b32 v16, v18
    v_permlane32_swap_b32 v17, v19
    s_lshl_b32 s34, s34, 8
    s_add_u32 s34, s34, {ST}
    v_pk_add_f32 v[16:17], v[16:17], v[18:19]
    s_mov_b64 exec, 0xffffffff""")
    k.vm(f"buffer_store_dwordx2 v[16:17], v12, s[16:19], s34 offen {HO}", "out2")
    k.i("s_mov_b64 exec, -1")
    stamp(15, "p2")
    k.auto = None
    print("P2 end: W1 left", B1.left(), "W2 left", W2B.left(), file=sys.stderr)
    B1.go(99)
    if not OPT.get("nodrain"):
        W2B.go(O("w2_d2", 12))
        k.wait(vm="out2")
    stamp(12)
    k.i("s_barrier")
    sig_row(F2, 6, "s_and_b32 s42, s29, 3", "s_mov_b32 s43, s30")
    k.i(f"s_mul_i32 s23, s20, 6144\ns_mul_i32 s25, s27, 122880\ns_add_u32 s25, s25, s23\ns_add_u32 s25, s25, {W1 + 98304}")
    for i in range(6):
        if i % 4 == 0: k.i(f"s_add_u32 m0, s23, {98304 + 1024*i}")
        k.vm(f"buffer_load_dwordx4 v3, s[16:19], s25 offen offset:{1024*(i%4)} {HO} lds", "w1t")
        if i % 4 == 3: k.i("s_add_u32 s25, s25, 4096")
    k.i(f"v_lshlrev_b32 v6, 2, v0\nv_add_u32 v6, 122880, v6")
    k.lg(f"ds_write_b32 v6, v{TBV}")
    k.lg(f"ds_write_b32 v6, v{TBV+1} offset:1024")

def phase3():
    TB = 122880
    k.i(f"""s_mul_i32 s21, s28, 40960
    s_add_u32 s21, s21, {HH}
    v_and_b32 v8, 31, v1
    v_lshrrev_b32 v7, 5, v1
    v_lshlrev_b32 v8, 3, v8
    v_lshl_add_u32 v8, v7, 8, v8
    s_lshl_b32 s33, s28, 12
    s_add_u32 s33, s33, {ST}
    v_lshlrev_b32 v14, 4, v7
    v_add_u32 v14, {TB}, v14
    v_bfe_u32 v15, v1, 4, 1
    v_mul_u32_u24 v15, 49152, v15
    v_and_b32 v16, 15, v1
    v_lshl_add_u32 v15, v16, 4, v15
    v_lshl_add_u32 v15, v7, 9, v15
    s_mul_i32 s34, s28, 98304
    s_mul_i32 s25, s27, 3072
    s_add_u32 s34, s34, s25
    s_add_u32 s34, s34, {H1}""")
    W2B.go(O("w2_w2", 4))
    k.wait(vm="w1t", lg="all")
    k.i("s_barrier")
    poll_row(F2, 10, O('slp2', 0))
    stamp(13)
    ACC = 40; WB = 88; NS = 9; AH = 6; HR = 124; NR = O("pre3", 12); SR = 20; CT = 172; PK = 232
    H = BG()
    for i in range(40):
        r = HR + 4*(i % NR)
        H.add(f"buffer_load_dwordx4 v[{r}:{r+3}], v3, s[16:19], s21 offen offset:{1024*(i%4)} {HO}", f"h{i}", post=("s_add_u32 s21, s21, 4096" if i % 4 == 3 else ""))
    H.go(4)
    for j in range(8):
        k.vm(f"buffer_load_dwordx2 v[{SR+2*j}:{SR+2*j+1}], v8, s[16:19], s33 offen offset:{512*j} {HO}", "stats")
    H.go(NR - 5)
    TL = O("tl3", 4)
    items = [(ks, j) for ks in range(40-TL) for j in range(3)] + [(ks, j) for j in range(3) for ks in range(40-TL, 40)]
    def rd(n):
        ks, j = items[n]
        o = (ks*3 + j) * 1024
        r = WB + 4*(n % NS)
        k.lg(f"ds_read_b128 v[{r}:{r+3}], v{3 + o//65536} offset:{o % 65536}", f"w{n}")
    with capture() as c:
        for j in range(1, 8): k.i(f"v_pk_add_f32 v[{SR}:{SR+1}], v[{SR}:{SR+1}], v[{SR+2*j}:{SR+2*j+1}]")
        k.i(f"""v_mov_b32 v10, v{SR}
        v_mov_b32 v11, v{SR+1}
        v_permlane32_swap_b32 v{SR}, v10
        v_permlane32_swap_b32 v{SR+1}, v11
        v_pk_add_f32 v[8:9], v[{SR}:{SR+1}], v[10:11]
        v_mul_f32 v8, 0x3acccccd, v8
        v_mul_f32 v9, 0x3acccccd, v9
        v_fma_f32 v9, -v8, v8, v9
        v_max_f32 v9, 0, v9""")
        bf16r(8, 8); bf16r(9, 9)
        k.i("v_add_f32 v9, 0x3727c5ac, v9")
        bf16r(9, 9)
        k.i("v_sqrt_f32 v9, v9")
        bf16r(9, 9)
        k.i("v_rcp_f32 v10, v9\nv_mul_f32 v12, v8, v10\nv_sub_f32 v12, 0, v12")
    statl = c.lines
    def tab_reads(nt):
        for j in range(4):
            n = 4*nt + j
            k.lg(f"ds_read_b128 v[{CT+4*n}:{CT+4*n+3}], v14 offset:{1024+128*nt+32*j}")
            k.lg(f"ds_read_b128 v[{SR+4*j}:{SR+4*j+3}], v14 offset:{128*nt+32*j}", f"t{nt}")
    def tab_lines(nt):
        with capture() as c:
            for j in range(4):
                b = CT + 4*(4*nt + j)
                for h in range(2):
                    k.i(f"v_pk_fma_f32 v[{b+2*h}:{b+2*h+1}], v[{SR+4*j+2*h}:{SR+4*j+2*h+1}], v[12:13], v[{b+2*h}:{b+2*h+1}] op_sel_hi:[1,0,1]")
        return c.lines
    def epi_lines(nt, j):
        n = 4*nt + j
        a = ACC + 4*n; b = CT + 4*n
        with capture() as c:
            for h in range(2):
                k.i(f"v_pk_fma_f32 v[{a+2*h}:{a+2*h+1}], v[{a+2*h}:{a+2*h+1}], v[10:11], v[{b+2*h}:{b+2*h+1}] op_sel_hi:[1,0,1]")
            for h in range(4): k.i(f"v_max_f32 v{a+h}, 0, v{a+h}")
            for h in range(2):
                k.i(f"v_pk_mul_f32 v[{a+2*h}:{a+2*h+1}], v[{a+2*h}:{a+2*h+1}], v[{a+2*h}:{a+2*h+1}]")
            for h in range(2):
                k.i(f"v_cvt_pk_bf16_f32 v{PK+2*n+h}, v{a+2*h}, v{a+2*h+1}")
        return c.lines
    def st_h1(nt, e):
        k.vm(f"buffer_store_dwordx4 v[{PK+8*nt+4*e}:{PK+8*nt+4*e+3}], v15, s[16:19], s34 offen offset:{1024*nt+256*e} {HO}", "out3")
    for n in range(AH): rd(n)
    fill = []
    k.auto = lambda: W2B.go(); k.th = O("th3", 100)
    for n, (ks, j) in enumerate(items):
        k.wait(vm=f"h{ks}", lg=f"w{n}")
        if n == 12: cst(7)
        if n == 108: cst(9)
        d = vr(ACC + 16*j, 16)
        k.i(f"v_mfma_f32_32x32x16_bf16 {d}, {vr(WB + 4*(n % NS), 4)}, {vr(HR + 4*(ks % NR), 4)}, {'0' if ks == 0 else d}")
        if n % 3 == 0: H.go()
        if O('w2_p3', 0) and n % O('w2_p3', 0) == 4: W2B.go()
        if n + AH < 120: rd(n + AH)
        if n == 18: fill += statl
        for nt in range(3):
            if n == 40 + 12*nt: tab_reads(nt)
            if n == 46 + 12*nt:
                k.wait(lg=f"t{nt}"); fill += tab_lines(nt)
        if n == 121 - 2*TL: fill += epi_lines(0, 0) + epi_lines(0, 1) + epi_lines(0, 2) + epi_lines(0, 3)
        if n == 121 - TL: fill += epi_lines(1, 0) + epi_lines(1, 1)
        for _ in range(3 if n < 120 - 2*TL else 6):
            if fill: k.i(fill.pop(0))
    stamp(14)
    for l in fill: k.i(l)
    st_h1(0, 0); st_h1(0, 1); st_h1(1, 0)
    for nt, j in ((1, 2), (1, 3), (2, 0), (2, 1), (2, 2), (2, 3)):
        for l in epi_lines(nt, j): k.i(l)
        if j % 2 == 1: st_h1(nt, j // 2)
    k.auto = None
    print("P3 end: W2 left", W2B.left(), file=sys.stderr)
    if not OPT.get("nodrain"):
        W2B.go(O("w2_d3", 12))
        k.wait(vm="out3")
    stamp(15)
    k.i("s_barrier")
    sig_row(F3, 6, "s_lshr_b32 s42, s27, 2", "s_and_b32 s43, s27, 3")

def phase4():
    HR = 20; BR = 30; ACC = 40; RING = 120; NB = O("nb4", 6)
    srd(8, PB2, 1280)
    k.i(f"""v_and_b32 v4, 15, v1
    v_lshrrev_b32 v5, 4, v1
    s_lshl_b32 s33, s12, 1
    s_lshr_b32 s25, s20, 1
    s_add_u32 s33, s33, s25
    s_mul_i32 s33, s33, 40
    s_mul_i32 s25, s13, 5
    s_add_u32 s33, s33, s25
    s_lshl_b32 s33, s33, 10
    s_add_u32 s33, s33, {HH}
    s_and_b32 s25, s20, 1
    s_lshl_b32 s25, s25, 8
    s_add_u32 s33, s33, s25
    v_lshrrev_b32 v8, 1, v5
    v_lshlrev_b32 v8, 9, v8
    v_lshl_add_u32 v8, v4, 4, v8
    v_and_b32 v9, 1, v5
    v_lshl_add_u32 v8, v9, 3, v8
    v_add_u32 v9, 4096, v8
    v_lshlrev_b32 v17, 3, v5
    s_mul_i32 s34, s13, 160""")
    for c in range(5):
        k.vm(f"buffer_load_dwordx2 v[{HR+2*c}:{HR+2*c+1}], v{8 if c < 4 else 9}, s[16:19], s33 offen offset:{1024*(c%4)} {HO}")
    for c in range(5):
        k.vm(f"buffer_load_dwordx2 v[{BR+2*c}:{BR+2*c+1}], v17, s[8:11], s34 offen offset:{32*c}", "res")
    W2B.go(99)
    k.i(f"""s_mul_i32 s21, s12, 196608
    s_mul_i32 s22, s20, 12288
    s_add_u32 s21, s21, s22
    s_add_u32 s21, s21, {H1}
    s_lshl_b32 s25, s12, 6
    s_lshl_b32 s33, s20, 4
    s_add_u32 s25, s25, s33
    v_add_u32 v6, s25, v4
    v_mul_u32_u24 v7, 1280, v6
    v_lshl_add_u32 v7, v5, 3, v7
    s_mul_i32 s33, s20, 15360
    v_add_u32 v13, s33, v3""")
    for j in range(4):
        k.i(f"s_add_u32 s33, s20, {j}\ns_and_b32 s33, s33, 3\ns_mul_i32 s33, s33, 49152\nv_add_u32 v{8+j}, s33, v3")
    for j in range(1, 4):
        k.i(f"s_sub_u32 s33, s20, {j}\ns_and_b32 s33, s33, 3\ns_mul_i32 s33, s33, 15360\ns_add_u32 s33, s33, {(j-1)*5120}\nv_add_u32 v{13+j}, s33, v3")
    srd(8, POUT, 2621440)
    poll_row(F3, 18, O('slp3', 0))
    stamp(16)
    Q = BG()
    for i in range(48):
        t, j = divmod(i, 4)
        r = RING + 16*(t % NB) + 4*j
        Q.add(f"buffer_load_dwordx4 v[{r}:{r+3}], v{8+j}, s[16:19], s21 offen offset:{1024*(t%4)} {HO}", f"s{t}_{j}", post=("s_add_u32 s21, s21, 4096" if i % 16 == 15 else ""))
    Q.go(4*(NB-1))
    XF = 216
    k.wait(vm="res")
    k.i("s_mov_b32 s33, 0xffff0000")
    for j in range(10):
        k.i(f"v_lshlrev_b32 v{XF+2*j}, 16, v{HR+j}\nv_and_b32 v{XF+2*j+1}, s33, v{HR+j}")
        k.i(f"v_lshlrev_b32 v{XF+20}, 16, v{BR+j}\nv_and_b32 v{XF+21}, s33, v{BR+j}")
        k.i(f"v_pk_add_f32 v[{XF+2*j}:{XF+2*j+1}], v[{XF+2*j}:{XF+2*j+1}], v[{XF+20}:{XF+21}]")
    def red_w(j):
        for c in range(5):
            r = ACC + 20*j + 4*c
            k.lg(f"ds_write_b128 v13, v[{r}:{r+3}] offset:{(j-1)*5120 + 1024*c}")
    order = [(t, j) for t in range(10) for j in range(4)] + [(t, j) for j in (1, 2, 3, 0) for t in (10, 11)]
    for n, (t, j) in enumerate(order):
        k.wait(vm=f"s{t}_{j}")
        if n == 4: cst(11)
        if n == 40: cst(13)
        for c in range(5):
            d = vr(ACC + (5*j+c)*4, 4)
            k.i(f"v_mfma_f32_16x16x32_bf16 {d}, {ar(W2R[5*t+c], 4)}, {vr(RING+16*(t%NB)+4*j, 4)}, {'0' if t == 0 else d}")
            if c == 1: Q.go()
        if n in (42, 44, 46): red_w((n - 40)//2)
    stamp(17)
    k.wait(lg="all"); k.i("s_barrier")
    RR = 120
    for j in range(1, 4):
        for c in range(5):
            r = RR + 20*(j-1) + 4*c
            k.lg(f"ds_read_b128 v[{r}:{r+3}], v{13+j} offset:{1024*c}", f"r{j}_{c}")
    for c in range(5):
        for h in range(2):
            d = XF + 4*c + 2*h; a = ACC + 4*c + 2*h
            k.i(f"v_pk_add_f32 v[{d}:{d+1}], v[{d}:{d+1}], v[{a}:{a+1}]")
    for j in range(1, 4):
        for c in range(5):
            k.wait(lg=f"r{j}_{c}")
            for h in range(2):
                d = XF + 4*c + 2*h; a = RR + 20*(j-1) + 4*c + 2*h
                k.i(f"v_pk_add_f32 v[{d}:{d+1}], v[{d}:{d+1}], v[{a}:{a+1}]")
            if j == 3:
                k.i(f"v_cvt_pk_bf16_f32 v{HR+2*c}, v{XF+4*c}, v{XF+4*c+1}\nv_cvt_pk_bf16_f32 v{HR+2*c+1}, v{XF+4*c+2}, v{XF+4*c+3}")
                k.vm(f"buffer_store_dwordx2 v[{HR+2*c}:{HR+2*c+1}], v7, s[8:11], s34 offen offset:{32*c} {OPT.get('opol', '')}")
    k.i(f"""s_or_b32 s33, s45, s20
    s_cmp_lg_u32 s33, 0
    s_cbranch_scc1 p4_noep
    v_mov_b32 v4, s44
    v_mov_b32 v5, {CB}
    s_mov_b64 exec, 1
    buffer_store_dword v4, v5, s[16:19], 0 offen sc1
    s_mov_b64 exec, -1""")
    k.label("p4_noep")

def stamp_out():
    if not OPT["stamps"]: return
    n = NSTAMP
    k.i("s_waitcnt vmcnt(0) lgkmcnt(0)")
    k.i(f"s_memrealtime s[{64+2*n}:{65+2*n}]")
    k.i("s_waitcnt lgkmcnt(0)")
    k.i(f"s_lshl_b32 s3, s45, 2\ns_add_u32 s3, s3, s20\ns_lshl_b32 s3, s3, 7\ns_add_u32 s3, s3, 0x2000000\nv_mov_b32 v1, s3")
    for j in range(n+1): k.i(f"v_mov_b32 v{2+j}, s{64+2*j}")
    k.i("s_mov_b64 exec, 1")
    for j in range(n+1): k.i(f"global_store_dword v1, v{2+j}, s[14:15] offset:{4*j}")

def emit(path):
    global k
    k = Kern(KN)
    phase0(); phase1(); phase2(); phase3(); phase4(); stamp_out()
    k.label("kend"); k.i("s_endpgm")
    body, added = hazard_pass(k.L, verbose=bool(OPT.get("vnop")))
    print("instrs", len(body), "nop states added", added, file=sys.stderr)
    out = ["; pre-LN linear-attention block + squared-ReLU MLP, one persistent launch (256 workgroups, flag hand-offs in d_ws)",
           "; @launch grid=(256,1,1) block=(256,1,1) lds=163840",
           '.amdgcn_target "amdgcn-amd-amdhsa--gfx950"', ".text", f".globl {KN}", ".p2align 8", f".type {KN},@function", f"{KN}:"]
    out += [("" if (l.endswith(":") or l.startswith(";")) else "    ") + l for l in body]
    out += ['.section .rodata,"a"', ".p2align 6", f".amdhsa_kernel {KN}", "  .amdhsa_next_free_vgpr 512", "  .amdhsa_next_free_sgpr 102",
            "  .amdhsa_accum_offset 256", "  .amdhsa_group_segment_fixed_size 0", "  .amdhsa_kernarg_size 88",
            "  .amdhsa_user_sgpr_count 2", "  .amdhsa_user_sgpr_kernarg_segment_ptr 1",
            "  .amdhsa_system_sgpr_workgroup_id_x 1", ".end_amdhsa_kernel"]
    open(path, "w").write("\n".join(out) + "\n")

if __name__ == "__main__":
    for a in sys.argv[2:]:
        kk, v = a.split("=")
        OPT[kk] = {"True": True, "False": False, "none": ""}.get(v, v.replace("_", " "))
    emit(sys.argv[1])
```

```python
import sys
from asmlib import *

NAME = "sequential_preLN__linear_attn_block__dense_activation_squared_relu__prompt"
KN = NAME + "_kernel"
CB = 0x0
F0B = CB + 0x1000; F2 = 0xC0000; F3 = 0xD0000; F0 = 0x90000; F1 = 0x98000
CS = 0x10000; KVA = 0x20000; ST = 0x40000
XN = 0x100000; WQ = 0x380000; WO = 0x600000; W1 = 0x700000; W2 = 0x900000
PQ = 0xB00000; HH = 0xE00000; H1 = 0x1200000; XC = 0x1800000
WSZ = 0x1B00000
LOG2E = 0x3fb8aa3b
OPT = dict(pqe=0, stamps=False, cold="nt", pre1=2, wo_pre=40, wo_w=0, w1_w=12, sleep=8, slp0=20, lnexact=True)
HO = "sc1"
UL = 131072
def O(n, d): return int(OPT.get(n, d))

def magic(C, maxq):
    for sh in range(4, 24):
        m = -(-(1 << sh) // C)
        if m * maxq < (1 << 32) and m < (1 << 24) and all((q * m) >> sh == q // C for q in range(maxq)): return m, sh
    raise ValueError

k = None
def srd(d, base, size):
    k.i(f"s_mov_b32 s{d}, s{base}\ns_mov_b32 s{d+1}, s{base+1}\ns_mov_b32 s{d+2}, {size}\ns_mov_b32 s{d+3}, 0x20000")
def bf16r(d, s):
    k.i(f"v_cvt_pk_bf16_f32 v{d}, v{s}, v{s}\nv_lshlrev_b32 v{d}, 16, v{d}")
NSTAMP = 18
def stamp(idx, grp=None):
    if not OPT["stamps"]: return
    f = OPT.get("focus")
    lo = {"p0": (5, 18), "p1": (8, 18), "p1e": (8, 18), "p2": (13, 18), "clk": (1, 18)}.get(f)
    if grp is None and lo and lo[0] <= idx < lo[1]: return
    if grp is not None and grp != f: return
    k.i(f"s_memrealtime s[{64+2*idx}:{65+2*idx}]")
def cst(slot):
    if OPT["stamps"] and OPT.get("focus") == "clk":
        k.i(f"s_memrealtime s[{64+2*slot}:{65+2*slot}]\ns_memtime s[{66+2*slot}:{67+2*slot}]")
def snap(): return (k.vm_n, dict(k.vm_tags), k.vm_done, k.lg_n, dict(k.lg_tags), k.lg_done)
def rest(s): k.vm_n, k.vm_tags, k.vm_done, k.lg_n, k.lg_tags, k.lg_done = s[0], dict(s[1]), s[2], s[3], dict(s[4]), s[5]

class capture:
    def __enter__(self):
        self.save = (k.L, k.auto, k._iss, k._mf); k.L = []; k.auto = None; return self
    def __exit__(self, *a):
        self.lines = k.L; k.L, k.auto, k._iss, k._mf = self.save
def merge(main, fill, per):
    fill = list(fill)
    for m in main:
        m()
        for _ in range(per):
            if fill: k.i(fill.pop(0))
    return fill

PX, PWQ, PWO, PW1, PB1, PW2, PB2, POUT = 48, 50, 52, 56, 58, 60, 62, 46

npoll = 0
def check4(vt):
    k.i(f"v_xor_b32 v{vt}, s44, v{vt}\nv_xor_b32 v{vt+1}, s44, v{vt+1}\nv_xor_b32 v{vt+2}, s44, v{vt+2}\nv_xor_b32 v{vt+3}, s44, v{vt+3}")
    k.i(f"v_or3_b32 v{vt}, v{vt}, v{vt+1}, v{vt+2}\nv_or_b32 v{vt}, v{vt}, v{vt+3}\nv_cmp_ne_u32 vcc, 0, v{vt}")
def poll(vaddr, soff, vt, wide=False, w0=True, slp=0):
    global npoll
    npoll += 1
    L = f"poll{npoll}"
    au = k.auto; k.auto = None
    if w0: k.i(f"s_cmp_lg_u32 s20, 0\ns_cbranch_scc1 {L}d")
    if slp: k.i(f"s_sleep {slp}")
    k.i("s_mov_b32 s43, 0x20000")
    k.label(L)
    if OPT.get("apoll"):
        if wide:
            k.i(f"v_mov_b32 v{vt}, 0\nv_mov_b32 v{vt+1}, 0\nv_mov_b32 v{vt+2}, 0\nv_mov_b32 v{vt+3}, 0")
            k.i(f"buffer_atomic_or_x2 v[{vt}:{vt+1}], v{vaddr}, s[16:19], s{soff} offen sc0\nbuffer_atomic_or_x2 v[{vt+2}:{vt+3}], v{vaddr}, s[16:19], s{soff} offen offset:8 sc0\ns_waitcnt vmcnt(0)")
            check4(vt)
        else:
            k.i(f"v_mov_b32 v{vt}, 0\nbuffer_atomic_or v{vt}, v{vaddr}, s[16:19], s{soff} offen sc0\ns_waitcnt vmcnt(0)\nv_cmp_ne_u32 vcc, s44, v{vt}")
    else:
        if wide:
            k.i(f"buffer_load_dwordx4 v[{vt}:{vt+3}], v{vaddr}, s[16:19], s{soff} offen {OPT.get('ppol', 'sc1')}\ns_waitcnt vmcnt(0)")
            check4(vt)
        else:
            k.i(f"buffer_load_dword v{vt}, v{vaddr}, s[16:19], s{soff} offen {OPT.get('ppol', 'sc1')}\ns_waitcnt vmcnt(0)\nv_cmp_ne_u32 vcc, s44, v{vt}")
    k.i(f"s_cbranch_vccz {L}d")
    if O("sleep", 4): k.i(f"s_sleep {O('sleep', 4)}")
    k.i(f"s_sub_u32 s43, s43, 1\ns_cbranch_scc0 {L}")
    k.label(L + "d")
    k.auto = au
nsig = 0
def signal(mask, code, vt, dual=False):
    global nsig
    nsig += 1
    L = f"sig{nsig}"
    au = k.auto; k.auto = None
    k.i(f"s_cmp_lg_u32 s20, 1\ns_cbranch_scc1 {L}")
    k.i(code)
    if dual: k.i(f"v_mov_b32 v{vt}, s44\ns_mov_b64 exec, {mask}\nbuffer_store_dword v{vt}, v{vt+1}, s[16:19], s42 offen offset:2048")
    k.i(f"v_mov_b32 v{vt}, s44\ns_mov_b64 exec, {mask}\nbuffer_store_dword v{vt}, v{vt+1}, s[16:19], s42 offen {OPT.get('spol', 'sc1')}\ns_mov_b64 exec, -1")
    k.label(L)
    k.auto = au
def sig_all(base, vt):
    signal(0xff, f"v_lshlrev_b32 v{vt+1}, 12, v1\ns_lshr_b32 s42, s45, 3\ns_lshl_b32 s42, s42, 7\ns_and_b32 s43, s45, 7\ns_lshl_b32 s43, s43, 2\ns_add_u32 s42, s42, s43\ns_add_u32 s42, s42, {base}", vt)
def sig_row(base, vt, line, pos):
    signal(1, f"v_mov_b32 v{vt+1}, 0\n{line}\n{pos}\ns_lshl_b32 s42, s42, 7\ns_lshl_b32 s43, s43, 2\ns_add_u32 s42, s42, s43\ns_lshl_b32 s43, s26, 12\ns_add_u32 s42, s42, s43\ns_add_u32 s42, s42, {base}", vt, dual=bool(OPT.get("dual")))
ntree = 0
def poll_all(base, vt, slp):
    global ntree
    k.i(f"s_and_b32 s42, s2, 7\ns_lshl_b32 s42, s42, 12\ns_add_u32 s42, s42, {base}")
    k.i(f"v_lshrrev_b32 v{vt+4}, 1, v1\nv_lshlrev_b32 v{vt+4}, 7, v{vt+4}\nv_and_b32 v{vt}, 1, v1\nv_lshl_add_u32 v{vt+4}, v{vt}, 4, v{vt+4}")
    if not OPT.get("tree"):
        poll(vt+4, 42, vt, wide=True, slp=slp); return
    ntree += 1; L = f"tree{ntree}"
    NL = O("tree", 1)
    k.i(f"s_cmp_lg_u32 s20, 0\ns_cbranch_scc1 {L}d\ns_and_b32 s41, s2, {8*NL-1}\ns_lshl_b32 s41, s41, 7\ns_add_u32 s41, s41, {base + 0x10000}\ns_cmp_ge_u32 s2, {8*NL}\ns_cbranch_scc1 {L}m")
    poll(vt+4, 42, vt, wide=True, w0=False, slp=slp)
    k.i(f"v_mov_b32 v{vt}, s44\nv_mov_b32 v{vt+1}, 0\ns_mov_b64 exec, 1\nbuffer_store_dword v{vt}, v{vt+1}, s[16:19], s41 offen sc1\ns_mov_b64 exec, -1\ns_branch {L}d")
    k.label(L + "m")
    k.i(f"v_mov_b32 v{vt+1}, 0")
    sl = OPT.get("sleep"); OPT["sleep"] = 1
    poll(vt+1, 41, vt, w0=False)
    if sl is None: del OPT["sleep"]
    else: OPT["sleep"] = sl
    k.label(L + "d")
    k.i(f"s_mov_b32 s41, {LOG2E:#x}")
def poll_row(base, vt, slp):
    global npoll
    k.i(f"v_and_b32 v{vt+1}, 3, v1\nv_lshlrev_b32 v{vt+1}, 2, v{vt+1}\ns_lshl_b32 s42, s26, 5\ns_add_u32 s42, s42, s20\ns_lshl_b32 s42, s42, 7\ns_add_u32 s42, s42, {base}")
    if not OPT.get("dual"):
        poll(vt+1, 42, vt, w0=False, slp=slp)
    else:
        npoll += 1; L = f"poll{npoll}"
        au = k.auto; k.auto = None
        if slp: k.i(f"s_sleep {slp}")
        k.i(f"v_bfe_u32 v{vt}, v1, 2, 1\nv_lshl_add_u32 v{vt+1}, v{vt}, 11, v{vt+1}\ns_mov_b32 s43, 0x20000")
        k.label(L)
        k.i(f"""buffer_load_dword v{vt}, v{vt+1}, s[16:19], s42 offen sc1
        s_waitcnt vmcnt(0)
        v_cmp_eq_u32 vcc, s44, v{vt}
        s_lshr_b32 s41, vcc_lo, 4
        s_or_b32 s41, s41, vcc_lo
        s_and_b32 s41, s41, 15
        s_cmp_eq_u32 s41, 15
        s_cbranch_scc1 {L}d
        s_sleep {O('sleepd', 2)}
        s_sub_u32 s43, s43, 1
        s_cbranch_scc0 {L}""")
        k.label(L + "d")
        k.auto = au
    k.vm_done = k.vm_n

class BG:
    def __init__(self): self.q = []
    def add(self, ins, tag=None, pre="", post=""): self.q.append((pre, ins, post, tag))
    def go(self, n=1):
        for _ in range(n):
            if self.q:
                pre, ins, post, tag = self.q.pop(0)
                if OPT.get("nobg") and tag is not None and tag[:2] in ("wo", "w1", "w2"):
                    k.vm_tags[tag] = -1; continue
                k.i(pre); k.vm(ins, tag); k.i(post)
    def left(self): return len(self.q)

def phi4(a, dst, T):
    k.i(f"v_pk_mul_f32 v[{T}:{T+1}], v[{a}:{a+1}], s[40:41]")
    k.i(f"v_pk_mul_f32 v[{T+2}:{T+3}], v[{a+2}:{a+3}], s[40:41]")
    for j in range(4): k.i(f"v_exp_f32_e64 v{T+j}, v{T+j} clamp")
    for j in range(4): k.i(f"v_max_f32 v{T+4+j}, 0, v{a+j}")
    k.i(f"v_pk_add_f32 v[{T}:{T+1}], v[{T}:{T+1}], s[38:39]")
    k.i(f"v_pk_add_f32 v[{T+2}:{T+3}], v[{T+2}:{T+3}], s[38:39]")
    k.i(f"v_pk_add_f32 v[{T}:{T+1}], v[{T}:{T+1}], v[{T+4}:{T+5}]")
    k.i(f"v_pk_add_f32 v[{T+2}:{T+3}], v[{T+2}:{T+3}], v[{T+6}:{T+7}]")
    k.i(f"v_cvt_pk_bf16_f32 v{dst}, v{T}, v{T+1}")
    k.i(f"v_cvt_pk_bf16_f32 v{dst+1}, v{T+2}, v{T+3}")

ROWOFF = [[0, 4, 20, 24, 8], [12, 16, 28, 32, 36]]

def phase0():
    cold = OPT["cold"]
    stamp(0)
    k.i(f"""s_load_dwordx16 s[48:63], s[0:1], 0
    s_load_dwordx2 s[14:15], s[0:1], 80
    s_load_dwordx2 s[46:47], s[0:1], 64
    s_getpc_b64 s[4:5]
    pcl:
    s_cmp_ge_u32 s2, 256
    s_cbranch_scc1 kend
    s_lshr_b32 s25, s2, 3
    s_and_b32 s6, s25, 7
    s_lshl_b32 s6, s6, 13
    v_lshl_add_u32 v30, v0, 7, s6
    v_min_u32 v30, kend-pcl, v30
    v_cmp_gt_u32 vcc, 64, v0
    v_and_b32 v1, 63, v0
    v_lshrrev_b32 v2, 6, v0
    s_and_saveexec_b64 s[6:7], vcc
    s_cbranch_execz p0_nopf
    {'s_nop 0' if OPT.get('nopf') else 'global_load_dword v31, v30, s[4:5]'}
    p0_nopf:
    s_mov_b64 exec, s[6:7]
    v_lshlrev_b32 v3, 4, v1
    v_readfirstlane_b32 s20, v2
    s_and_b32 s24, s2, 7
    s_lshr_b32 s26, s24, 1
    s_lshl_b32 s26, s26, 2
    s_lshr_b32 s27, s25, 3
    s_add_u32 s26, s26, s27
    s_and_b32 s27, s24, 1
    s_lshl_b32 s27, s27, 3
    s_and_b32 s25, s25, 7
    s_add_u32 s27, s27, s25
    s_lshl_b32 s45, s26, 4
    s_add_u32 s45, s45, s27
    v_bfe_u32 v28, v1, 2, 2
    v_and_b32 v29, 3, v1
    s_cmp_ge_u32 s45, 128
    s_cbranch_scc1 p0_w""")
    X = 8; F = 32
    k.i(f"""v_lshrrev_b32 v4, 4, v0
    v_and_b32 v5, 15, v0
    s_lshl_b32 s21, s45, 4
    v_add_u32 v6, s21, v4
    v_mul_u32_u24 v6, 1280, v6
    v_lshl_add_u32 v6, v5, 4, v6
    s_mov_b32 s10, 2621440
    s_mov_b32 s11, 0x20000
    s_waitcnt lgkmcnt(0)
    s_mov_b32 s8, s{PX}
    s_mov_b32 s9, s{PX+1}""")
    stamp(9, "p0")
    for i in range(5):
        k.i(f"buffer_load_dwordx4 v[{X+4*i}:{X+4*i+3}], v6, s[8:11], 0 offen offset:{256*i} {OPT.get('coldx', cold)}")
    stamp(5, "p0")
    k.i(f"s_load_dword s44, s[14:15], {CB}")
    srd(16, 14, WSZ)
    k.i(f"""s_lshr_b32 s21, s45, 1
    s_mul_i32 s21, s21, 40960
    s_and_b32 s22, s45, 1
    s_lshl_b32 s22, s22, 8
    s_add_u32 s21, s21, s22
    s_add_u32 s21, s21, {XN}
    v_lshrrev_b32 v7, 1, v5
    v_lshlrev_b32 v7, 10, v7
    v_and_b32 v6, 1, v5
    v_lshlrev_b32 v6, 9, v6
    v_lshl_add_u32 v7, v4, 4, v7
    v_add_u32 v7, v7, v6
    s_mov_b32 s23, 0xffff0000
    s_mov_b32 s22, 0x3f803f80
    v_mov_b32 v112, 0
    v_mov_b32 v113, 0
    v_mov_b32 v114, 0
    v_mov_b32 v115, 0
    v_lshrrev_b32 v30, 4, v1""")
    for i in range(5):
        k.i(f"s_waitcnt vmcnt({4-i})")
        if i == 0: stamp(7, "p0")
        for j in range(4*i, 4*i+4):
            k.i(f"v_dot2_f32_bf16 v{112+2*(j&1)}, v{X+j}, s22, v{112+2*(j&1)}")
            k.i(f"v_dot2_f32_bf16 v{113+2*(j&1)}, v{X+j}, v{X+j}, v{113+2*(j&1)}")
    unp = []
    for j in range(20): unp += [f"v_lshlrev_b32 v{F+2*j}, 16, v{X+j}", f"v_and_b32 v{F+2*j+1}, s23, v{X+j}"]
    def U(n):
        for _ in range(n):
            if unp: k.i(unp.pop(0))
    U(3)
    k.i("v_pk_add_f32 v[112:113], v[112:113], v[114:115]")
    for s in (8, 4, 2, 1):
        U(2)
        k.i(f"v_add_f32_dpp v112, v112, v112 row_ror:{s} row_mask:0xf bank_mask:0xf")
        k.i(f"v_add_f32_dpp v113, v113, v113 row_ror:{s} row_mask:0xf bank_mask:0xf")
    k.i("v_mul_f32 v112, 0x3acccccd, v112\nv_mul_f32 v113, 0x3acccccd, v113\nv_fma_f32 v113, -v112, v112, v113\nv_max_f32 v113, 0, v113")
    bf16r(112, 112); bf16r(113, 113)
    k.i("v_add_f32 v113, 0x3727c5ac, v113")
    bf16r(113, 113)
    k.i("v_sqrt_f32 v113, v113"); U(1)
    bf16r(113, 113)
    k.i("v_rcp_f32 v114, v113")
    U(99)
    Y = 72
    for j in range(20): k.i(f"v_pk_add_f32 v[{F+2*j}:{F+2*j+1}], v[{F+2*j}:{F+2*j+1}], v[112:113] op_sel_hi:[1,0] neg_lo:[0,1] neg_hi:[0,1]")
    for j in range(20): k.i(f"v_cvt_pk_bf16_f32 v{Y+j}, v{F+2*j}, v{F+2*j+1}")
    for j in range(20): k.i(f"v_lshlrev_b32 v{F+2*j}, 16, v{Y+j}\nv_and_b32 v{F+2*j+1}, s23, v{Y+j}")
    for i in range(5):
        for j in range(4*i, 4*i+4):
            k.i(f"v_pk_mul_f32 v[{F+2*j}:{F+2*j+1}], v[{F+2*j}:{F+2*j+1}], v[114:115] op_sel_hi:[1,0]")
        for j in range(4*i, 4*i+4):
            k.i(f"v_cvt_pk_bf16_f32 v{Y+j}, v{F+2*j}, v{F+2*j+1}")
        k.i(f"buffer_store_dwordx4 v[{Y+4*i}:{Y+4*i+3}], v7, s[16:19], s21 offen {HO}")
        if i < 4: k.i("s_add_u32 s21, s21, 8192")
    k.i("s_branch p0_drain")
    k.label("p0_w")
    m, sh = magic(80, 320)
    k.i(f"""s_cmp_ge_u32 s45, 248
    s_cbranch_scc1 p0_zero
    s_sub_u32 s21, s45, 128
    s_mul_i32 s30, s21, 171
    s_lshr_b32 s30, s30, 9
    s_mul_i32 s31, s30, 3
    s_sub_u32 s31, s21, s31
    s_mul_i32 s21, s30, 61440
    s_mul_i32 s22, s31, 1280
    s_add_u32 s21, s21, s22
    s_lshl_b32 s22, s20, 2
    s_mul_i32 s23, s20, 5120
    s_mov_b32 s10, 2457600
    s_mov_b32 s11, 0x20000""")
    for i in range(5):
        k.i(f"""v_add_u32 v4, {64*i}, v1
        v_mul_u32_u24 v5, {m}, v4
        v_lshrrev_b32 v5, {sh}, v5
        v_mul_u32_u24 v6, 80, v5
        v_sub_u32 v6, v4, v6
        v_lshlrev_b32 v6, 4, v6
        v_lshlrev_b32 v7, 6, v5
        v_add_u32 v5, s22, v5
        v_mul_u32_u24 v5, 3840, v5
        v_xad_u32 v{12+i}, v6, v7, v5""")
    k.i(f"s_waitcnt lgkmcnt(0)\ns_mov_b32 s8, s{PWQ}\ns_mov_b32 s9, s{PWQ+1}")
    stamp(9, "p0")
    for i in range(5):
        k.i(f"s_add_u32 m0, s23, {1024*i}\nbuffer_load_dwordx4 v{12+i}, s[8:11], s21 offen {cold} lds")
    stamp(5, "p0")
    k.i(f"s_load_dword s44, s[14:15], {CB}")
    srd(16, 14, WSZ)
    k.i(f"""v_lshrrev_b32 v30, 4, v1
    v_lshrrev_b32 v4, 1, v30
    v_lshl_add_u32 v4, v4, 3, v28
    v_mul_u32_u24 v4, 1280, v4
    v_and_b32 v5, 1, v30
    v_lshlrev_b32 v5, 5, v5
    v_lshl_add_u32 v5, v29, 3, v5
    v_lshlrev_b32 v6, 6, v28
    s_lshl_b32 s21, s30, 12
    s_add_u32 s21, s21, {WQ}
    s_cmp_lg_u32 s31, 0
    s_cbranch_scc1 p0_wkv
    s_lshl_b32 s22, s20, 6
    v_add_u32 v5, s22, v5
    v_xad_u32 v7, v5, v6, v4
    s_lshl_b32 s22, s20, 10
    s_add_u32 s21, s21, s22
    s_add_u32 s21, s21, {11*163840}
    s_waitcnt vmcnt(0)""")
    stamp(7, "p0")
    k.i("s_barrier")
    for m_ in range(5):
        r = 32 + 4*m_
        k.lg(f"ds_read_b64_tr_b16 v[{r}:{r+1}], v7 offset:{256*m_}")
        k.lg(f"ds_read_b64_tr_b16 v[{r+2}:{r+3}], v7 offset:{256*m_+4*1280}", f"q{m_}")
    for m_ in range(5):
        r = 32 + 4*m_
        k.wait(lg=f"q{m_}")
        k.i(f"buffer_store_dwordx4 v[{r}:{r+3}], v3, s[16:19], s21 offen {HO}\ns_add_u32 s21, s21, 163840")
    k.i("s_branch p0_drain")
    k.label("p0_wkv")
    k.i("""s_and_b32 s22, s20, 1
    s_lshr_b32 s23, s20, 1
    s_lshl_b32 s24, s22, 6
    s_mul_i32 s25, s23, 120
    s_add_u32 s24, s24, s25
    v_add_u32 v5, s24, v5
    s_lshl_b32 s24, s31, 1
    s_add_u32 s24, s24, s22
    s_sub_u32 s24, s24, 2
    s_lshl_b32 s24, s24, 10
    s_add_u32 s21, s21, s24
    s_mul_i32 s24, s23, 163840
    s_add_u32 s21, s21, s24""")
    for i in range(6):
        k.i(f"v_add_u32 v{12+i}, {240*i}, v5\nv_min_u32 v{12+i}, 1272, v{12+i}\nv_xad_u32 v{12+i}, v{12+i}, v6, v4")
    k.i("s_waitcnt vmcnt(0)")
    stamp(7, "p0")
    k.i("s_barrier")
    for i in range(6):
        r = 32 + 4*i
        k.lg(f"ds_read_b64_tr_b16 v[{r}:{r+1}], v{12+i}")
        k.lg(f"ds_read_b64_tr_b16 v[{r+2}:{r+3}], v{12+i} offset:{4*1280}", f"kv{i}")
    for i in range(6):
        r = 32 + 4*i
        if i == 5: k.i("s_cmp_lg_u32 s23, 0\ns_cbranch_scc1 p0_drain")
        k.wait(lg=f"kv{i}")
        k.i(f"buffer_store_dwordx4 v[{r}:{r+3}], v3, s[16:19], s21 offen {HO}\ns_add_u32 s21, s21, 327680")
    k.i("s_branch p0_drain")
    k.label("p0_zero")
    k.i(f"""s_sub_u32 s21, s45, 248
    s_mul_i32 s21, s21, 6720
    s_add_u32 s21, s21, {KVA}
    v_lshlrev_b32 v4, 4, v0
    v_mov_b32 v8, 0
    v_mov_b32 v9, 0
    v_mov_b32 v10, 0
    v_mov_b32 v11, 0
    v_lshrrev_b32 v30, 4, v1
    s_mov_b32 s10, 6720
    s_mov_b32 s11, 0x20000
    s_waitcnt lgkmcnt(0)
    s_add_u32 s8, s14, s21
    s_addc_u32 s9, s15, 0
    buffer_store_dwordx4 v[8:11], v4, s[8:11], 0 offen {HO}
    v_add_u32 v4, 4096, v4
    buffer_store_dwordx4 v[8:11], v4, s[8:11], 0 offen {HO}
    s_load_dword s44, s[14:15], {CB}""")
    stamp(9, "p0"); stamp(5, "p0"); stamp(7, "p0")
    srd(16, 14, WSZ)
    k.label("p0_drain")
    stamp(1)
    k.i("s_waitcnt vmcnt(0) lgkmcnt(0)\ns_add_u32 s44, s44, 1\ns_barrier")
    k.reset_counts()
    stamp(2)
    sig_all(F0, 4)
    if OPT.get("xc"): k.i(f"""s_cmp_ge_u32 s45, 128
    s_cbranch_scc1 p0_noxc
    s_add_u32 s21, s21, {XC - XN - 4*8192}""")
    for i in range(5 if OPT.get("xc") else 0):
        k.i(f"buffer_store_dwordx4 v[{X+4*i}:{X+4*i+3}], v7, s[16:19], s21 offen {HO}\ns_add_u32 s21, s21, 8192")
    k.label("p0_noxc")
    k.i(f"""s_cmp_lg_u32 s20, 2
    s_cbranch_scc1 p0_nob
    v_lshlrev_b32 v4, 7, v1
    v_min_u32 v5, 3068, v4
    v_min_u32 v4, 1276, v4
    global_load_dword v31, v5, s[{PB1}:{PB1+1}]
    global_load_dword v31, v4, s[{PB2}:{PB2+1}]""")
    k.label("p0_nob")
    UN = 0 if OPT.get("nounit") else 232
    k.i(f"""s_cmp_ge_u32 s45, {UN}
    s_cbranch_scc1 p0_uid
    s_sub_u32 s23, s20, 1
    s_mul_i32 s22, s23, 7168
    s_cmp_ge_u32 s45, 136
    s_cbranch_scc1 p0_ui_w2
    s_cmp_ge_u32 s45, 40
    s_cbranch_scc1 p0_ui_w1""")
    srd(8, PWO, 819200)
    k.i("""s_mul_i32 s35, s45, 26
    s_lshr_b32 s35, s35, 8
    s_mul_i32 s36, s35, 10
    s_sub_u32 s36, s45, s36
    s_mul_i32 s21, s35, 204800
    s_movk_i32 s29, 1280
    s_branch p0_ui_128""")
    k.label("p0_ui_w1")
    srd(8, PW1, 1966080)
    k.i("""s_sub_u32 s34, s45, 40
    s_mul_i32 s35, s34, 43
    s_lshr_b32 s35, s35, 10
    s_mul_i32 s36, s35, 24
    s_sub_u32 s36, s34, s36
    s_mul_i32 s21, s35, 491520
    s_movk_i32 s29, 3072""")
    k.label("p0_ui_128")
    k.i(f"""s_cmp_eq_u32 s20, 0
    s_cbranch_scc1 p0_uid
    s_lshl_b32 s24, s36, 7
    s_add_u32 s21, s21, s24
    v_lshrrev_b32 v4, 3, v1
    s_mul_i32 s24, s23, 56
    v_add_u32 v4, s24, v4
    v_and_b32 v5, 7, v1
    v_lshlrev_b32 v5, 4, v5
    v_and_b32 v6, 2, v4
    v_lshlrev_b32 v6, 5, v6
    v_mul_lo_u32 v4, v4, s29
    v_xad_u32 v4, v5, v6, v4
    s_lshl_b32 s29, s29, 3""")
    for i in range(7):
        k.i(f"s_add_u32 m0, s22, {UL+1024*i}\nbuffer_load_dwordx4 v4, s[8:11], s21 offen {cold} lds\ns_add_u32 s21, s21, s29")
    k.i("s_branch p0_uid")
    k.label("p0_ui_w2")
    srd(8, PW2, 1966080)
    m, sh = magic(40, 1344)
    k.i("""s_sub_u32 s34, s45, 136
    s_lshr_b32 s35, s34, 1
    s_and_b32 s36, s34, 1
    s_cmp_eq_u32 s20, 0
    s_cbranch_scc1 p0_uid
    s_mul_i32 s21, s35, 40960
    s_mul_i32 s24, s36, 640
    s_add_u32 s21, s21, s24
    s_mul_i32 s24, s23, 448
    v_add_u32 v8, s24, v1""")
    for i in range(7):
        k.i(f"""v_add_u32 v4, {64*i}, v8
        v_mul_u32_u24 v5, {m}, v4
        v_lshrrev_b32 v5, {sh}, v5
        v_mul_u32_u24 v6, 40, v5
        v_sub_u32 v6, v4, v6
        v_lshlrev_b32 v6, 4, v6
        v_and_b32 v7, 2, v5
        v_lshlrev_b32 v7, 4, v7
        v_and_b32 v9, 16, v5
        v_lshl_or_b32 v7, v9, 2, v7
        v_mul_u32_u24 v5, 1280, v5
        v_xad_u32 v4, v6, v7, v5
        s_add_u32 m0, s22, {UL+1024*i}
        buffer_load_dwordx4 v4, s[8:11], s21 offen {cold} lds""")
    k.label("p0_uid")

def unit_proc(sfx):
    UN = 0 if OPT.get("nounit") else 232
    D0 = 32
    k.i(f"""s_cmp_ge_u32 s45, {UN}
    s_cbranch_scc1 up_end{sfx}
    s_cmp_ge_u32 s45, 136
    s_cbranch_scc1 up_w2{sfx}
    s_and_b32 s6, s20, 1
    s_lshr_b32 s7, s20, 1
    s_lshl_b32 s37, s36, 1
    s_add_u32 s37, s37, s6
    s_cmp_ge_u32 s45, 40
    s_cbranch_scc1 up_w1{sfx}""")
    k.i(f"""v_and_b32 v52, 1, v30
    v_lshrrev_b32 v53, 1, v29
    v_lshl_add_u32 v52, v52, 1, v53
    v_add_u32 v52, s35, v52
    v_and_b32 v52, 3, v52
    v_lshlrev_b32 v52, 4, v52
    v_and_b32 v53, 1, v29
    v_lshl_add_u32 v52, v53, 3, v52
    s_lshl_b32 s24, s6, 6
    v_add_u32 v52, s24, v52
    v_and_b32 v53, 2, v28
    v_lshlrev_b32 v53, 5, v53
    v_xor_b32 v52, v52, v53
    v_lshl_add_u32 v52, v28, 7, v52
    s_mul_i32 s24, s7, 10240
    s_add_u32 s24, s24, {UL}
    v_add_u32 v52, s24, v52
    v_lshrrev_b32 v54, 5, v1
    v_lshlrev_b32 v54, 4, v54
    s_mul_i32 s24, s37, 205
    s_lshr_b32 s24, s24, 10
    s_mul_i32 s25, s24, 5
    s_sub_u32 s25, s37, s25
    s_lshl_b32 s24, s24, 2
    s_add_u32 s24, s24, s35
    s_mul_i32 s24, s24, 10
    s_mul_i32 s4, s7, 5
    s_add_u32 s24, s24, s4
    s_mul_i32 s24, s24, 5
    s_add_u32 s24, s24, s25
    s_lshl_b32 s24, s24, 10
    s_add_u32 s24, s24, {WO}""")
    for uu in range(5):
        for h2 in range(2):
            m_ = 2*uu + h2
            K = 0
            for hi in range(2): K |= ((40*(m_//5) + ROWOFF[hi][m_ % 5]) * 128) << (16*hi)
            r = D0 + 4*uu + 2*h2
            k.i(f"s_mov_b32 s25, {K:#x}\nv_bfe_u32 v55, s25, v54, 16\nv_add_u32 v55, v55, v52")
            k.lg(f"ds_read_b64_tr_b16 v[{r}:{r+1}], v55", f"uo{uu}")
    for uu in range(5):
        r = D0 + 4*uu
        k.wait(lg=f"uo{uu}")
        k.i(f"buffer_store_dwordx4 v[{r}:{r+3}], v3, s[16:19], s24 offen {HO}\ns_add_u32 s24, s24, 5120")
    k.i(f"s_branch up_end{sfx}")
    k.label(f"up_w1{sfx}")
    k.i(f"""v_lshrrev_b32 v52, 1, v30
    v_lshl_add_u32 v52, v52, 3, v28
    v_and_b32 v53, 1, v30
    v_lshlrev_b32 v53, 5, v53
    v_lshl_add_u32 v53, v29, 3, v53
    s_lshl_b32 s24, s6, 6
    v_add_u32 v53, s24, v53
    v_and_b32 v54, 2, v28
    v_lshlrev_b32 v54, 5, v54
    v_lshlrev_b32 v52, 7, v52
    v_xad_u32 v52, v53, v54, v52
    s_mul_i32 s24, s7, 10240
    s_add_u32 s24, s24, {UL}
    v_add_u32 v52, s24, v52
    v_mov_b32 v56, 0
    s_mov_b32 s4, 0x3f803f80
    s_mul_i32 s24, s37, 171
    s_lshr_b32 s24, s24, 9
    s_mul_i32 s25, s24, 3
    s_sub_u32 s25, s37, s25
    s_mul_i32 s24, s24, 40
    s_mul_i32 s5, s35, 10
    s_add_u32 s24, s24, s5
    s_mul_i32 s5, s7, 5
    s_add_u32 s24, s24, s5
    s_mul_i32 s24, s24, 3
    s_add_u32 s24, s24, s25
    s_lshl_b32 s24, s24, 10
    s_add_u32 s24, s24, {W1}""")
    for ks in range(5):
        r = D0 + 4*ks
        k.lg(f"ds_read_b64_tr_b16 v[{r}:{r+1}], v52 offset:{ks*2048}")
        k.lg(f"ds_read_b64_tr_b16 v[{r+2}:{r+3}], v52 offset:{ks*2048+512}", f"u1{ks}")
    for ks in range(5):
        r = D0 + 4*ks
        k.wait(lg=f"u1{ks}")
        k.i(f"buffer_store_dwordx4 v[{r}:{r+3}], v3, s[16:19], s24 offen {HO}\ns_add_u32 s24, s24, 3072")
        for j in range(4): k.i(f"v_dot2_f32_bf16 v56, v{r+j}, s4, v56")
    k.i(f"""s_nop 2
    v_mov_b32 v57, v56
    s_lshl_b32 s24, s35, 1
    s_add_u32 s24, s24, s7
    v_permlane32_swap_b32 v56, v57
    s_mul_i32 s24, s24, 6144
    s_lshl_b32 s25, s37, 7
    s_add_u32 s24, s24, s25
    s_add_u32 s24, s24, {CS}
    v_add_f32 v56, v56, v57
    v_lshlrev_b32 v57, 2, v1
    s_mov_b64 exec, 0xffffffff
    buffer_store_dword v56, v57, s[16:19], s24 offen {HO}
    s_mov_b64 exec, -1
    s_branch up_end{sfx}""")
    k.label(f"up_w2{sfx}")
    k.i(f"""v_and_b32 v52, 1, v30
    v_lshlrev_b32 v52, 4, v52
    v_lshrrev_b32 v53, 1, v30
    v_lshl_add_u32 v52, v53, 2, v52
    v_add_u32 v52, v52, v28
    v_and_b32 v54, 2, v52
    v_lshlrev_b32 v54, 4, v54
    v_and_b32 v55, 16, v52
    v_lshl_or_b32 v54, v55, 2, v54
    v_mul_u32_u24 v52, 640, v52
    v_add_u32 v52, {UL}, v52
    s_mul_i32 s24, s20, 160
    v_lshl_add_u32 v53, v29, 3, s24
    s_lshl_b32 s24, s36, 2
    s_add_u32 s24, s24, s20
    s_mul_i32 s24, s24, 48
    s_add_u32 s24, s24, s35
    s_mul_i32 s24, s24, 5120
    s_add_u32 s24, s24, {W2}""")
    for m_ in range(5):
        r = D0 + 4*m_
        k.i(f"v_add_u32 v55, {32*m_}, v53\nv_xad_u32 v55, v55, v54, v52")
        k.lg(f"ds_read_b64_tr_b16 v[{r}:{r+1}], v55")
        k.lg(f"ds_read_b64_tr_b16 v[{r+2}:{r+3}], v55 offset:{8*640}", f"u2{m_}")
    for m_ in range(5):
        r = D0 + 4*m_
        k.wait(lg=f"u2{m_}")
        k.i(f"buffer_store_dwordx4 v[{r}:{r+3}], v3, s[16:19], s24 offen {HO}\ns_add_u32 s24, s24, 1024")
    k.label(f"up_end{sfx}")

WOR = [160 + 4*f for f in range(21)] + [44 + 4*f for f in range(29)]
PQA = 0; XA = 244
W2R = WOR + list(range(0, 40, 4))
TBV = 244
WOB = None; XQ = None
def phase1():
    global WOB
    k.i(f"""v_add_u32 v4, 0x10000, v3
    v_add_u32 v5, 0x20000, v3
    s_lshl_b32 s28, s26, 2
    s_add_u32 s28, s28, s20
    s_mul_i32 s21, s28, 40960
    s_add_u32 s21, s21, {XN}
    s_lshl_b32 s23, s20, 12
    s_mul_i32 s22, s27, 163840
    s_add_u32 s22, s22, s23
    s_add_u32 s22, s22, {WQ}
    s_mov_b32 s40, {LOG2E:#x}
    s_mov_b32 s41, {LOG2E:#x}
    s_mov_b32 s38, 0x358637bd
    s_mov_b32 s39, 0x358637bd""")
    if OPT.get("mapb"):
        k.i(f"""s_and_b32 s{PWQ}, s2, 7
        s_lshl_b32 s{PWQ}, s{PWQ}, 1
        s_lshr_b32 s33, s2, 7
        s_add_u32 s{PWQ}, s{PWQ}, s33
        s_bfe_u32 s{PWQ+1}, s2, 0x40003
        s_and_b32 s13, s{PWQ+1}, 7
        s_lshr_b32 s12, s{PWQ+1}, 3
        s_lshl_b32 s31, s{PWQ}, 1
        s_add_u32 s12, s12, s31
        s_lshl_b32 s31, s{PWQ}, 2
        s_lshr_b32 s29, s{PWQ+1}, 2
        s_add_u32 s29, s29, s31
        s_and_b32 s30, s{PWQ+1}, 3""")
    else:
        k.i(f"""s_mov_b32 s{PWQ}, s26
        s_mov_b32 s{PWQ+1}, s27
    s_lshr_b32 s33, s27, 3
        s_lshl_b32 s13, s33, 2
        s_and_b32 s12, s27, 3
        s_add_u32 s13, s13, s12
        s_bfe_u32 s12, s27, 0x10002
        s_lshl_b32 s31, s26, 1
        s_add_u32 s12, s12, s31
        s_lshl_b32 s31, s26, 2
        s_bfe_u32 s29, s27, 0x20001
        s_add_u32 s29, s29, s31
        s_lshl_b32 s30, s33, 1
        s_and_b32 s33, s27, 1
        s_add_u32 s30, s30, s33""")
    k.i(f"""    s_lshl_b32 s31, s30, 2
    s_add_u32 s31, s31, s20
    s_mul_i32 s31, s31, 51200
    s_add_u32 s31, s31, {WO}
""")
    k.i(f"""v_and_b32 v24, 31, v1
    v_lshlrev_b32 v24, 4, v24
    v_lshrrev_b32 v25, 5, v1
    v_lshl_add_u32 v24, v25, 3, v24
    s_mul_i32 s3, s29, 40
    s_mul_i32 s33, s30, 10
    s_add_u32 s3, s3, s33
    s_lshr_b32 s33, s20, 1
    s_add_u32 s3, s3, s33
    s_lshl_b32 s3, s3, 10
    s_and_b32 s33, s20, 1
    s_lshl_b32 s33, s33, 9
    s_add_u32 s3, s3, s33
    s_add_u32 s3, s3, {XC}
""" if OPT.get("xc") else """v_and_b32 v24, 31, v1
    s_lshl_b32 s33, s29, 5
    v_add_u32 v24, s33, v24
    v_mul_u32_u24 v24, 1280, v24
    v_lshrrev_b32 v25, 5, v1
    v_lshl_add_u32 v24, v25, 3, v24
    s_mul_i32 s3, s30, 320
    s_lshl_b32 s34, s20, 4
    s_add_u32 s3, s3, s34
""")
    k.i(f"""v_lshlrev_b32 v26, 2, v0
    v_lshlrev_b32 v27, 1, v0
    s_mul_i32 s33, s{PWQ+1}, 192
    s_add_u32 s{PB1}, s{PB1}, s33
    s_addc_u32 s{PB1+1}, s{PB1+1}, 0
    s_mul_i32 s{PW1}, s{PWQ+1}, 384
    s_add_u32 s{PW1}, s{PW1}, {CS}""")
    XM = OPT.get("xm", "early")
    def xloads(pol):
        for c in range(5):
            k.i(f"global_load_dwordx2 a[{XA+2*c}:{XA+2*c+1}], v24, s[{PX}:{PX+1}] offset:{64*c} {pol}")
    k.i("v_add_u32 v24, s3, v24")
    if XM == "early": xloads(OPT.get('xpol', 'nt'))
    elif XM == "mix":
        k.i("s_cmp_eq_u32 s20, 0\ns_cbranch_scc1 p1_nox")
        xloads(OPT.get('xpol', ''))
        k.label("p1_nox")
    k.i(f"v_min_u32 v27, 190, v27")
    poll_all(F0, 8, O("slp0", 16))
    k.i("s_barrier")
    stamp(4)
    ACC = 64; WB = 128; T = 8; PK = 176; FB0 = 20; NS = 12; AH = 8
    PRE = O("pre1", 3)
    Q = BG()
    for s in range(10):
        for j in range(4):
            Q.add(f"buffer_load_dwordx4 v3, s[16:19], s22 offen offset:{1024*j} {HO} lds", f"W{s}",
                  pre=(f"s_add_u32 m0, s23, {s*16384}" if j == 0 else ""), post=("s_add_u32 s22, s22, 16384" if j == 3 else ""))
        for j in range(4):
            Q.add(f"buffer_load_dwordx4 a[{16*s+4*j}:{16*s+4*j+3}], v3, s[16:19], s21 offen offset:{1024*j} {HO}", f"X{4*s+j}",
                  post=("s_add_u32 s21, s21, 4096" if j == 3 else ""))
    Q.go(8*PRE)
    k.wait(vm="W0"); k.i("s_barrier")
    sv0 = snap(); unit_proc(""); rest(sv0)
    stamp(3)
    k.i("s_cmp_ge_u32 s27, 11\ns_cbranch_scc1 p1_q")
    sv = snap(); Qs = list(Q.q)
    def mkbg():
        B = BG()
        for i in range(50):
            B.add(f"buffer_load_dwordx4 a[{WOR[i]}:{WOR[i]+3}], v3, s[16:19], s31 offen offset:{1024*(i%4)} {HO}", f"wo{i}", post=("s_add_u32 s31, s31, 4096" if i % 4 == 3 else ""))
        return B
    def small():
        S = BG()
        global XQ
        X_ = XQ = BG()
        for j in range(8):
            S.add(f"buffer_load_dword v{TBV+j}, v26, s[16:19], s{PW1} offen {HO}", post=f"s_add_u32 s{PW1}, s{PW1}, 6144")
        for c in range(5):
            if OPT.get("xc"): S.add(f"buffer_load_dwordx2 a[{XA+2*c}:{XA+2*c+1}], v24, s[16:19], s3 offen offset:{2048*(c%2)} {HO}", post=("s_add_u32 s3, s3, 4096" if c % 2 else ""))
        return S
    NPRE = O("wo_pre", 20)
    def loop(act_first, order_tail, fill_after, B, sfx):
        items = [(ks, j) for ks in range(40 - len(order_tail)//4) for j in range(4)] + order_tail
        first = {}
        for n_, (ks_, j_) in enumerate(items): first.setdefault(ks_//4, n_)
        NCHK = 2*(80 - 8*PRE) + O("chk", 0)
        def rd(n):
            ks, j = items[n]
            if ks >= 4 and first[ks//4] == n:
                k.wait(vm=f"W{ks//4}"); k.i("s_barrier")
                if ks//4 == PRE + 1:
                    signal(1, f"v_mov_b32 v7, 0\ns_lshl_b32 s42, s45, 2\ns_add_u32 s42, s42, {F0B}", 6)
            o = (ks*4 + j) * 1024
            r = WB + 4*(n % NS)
            k.lg(f"ds_read_b128 v[{r}:{r+3}], v{3 + o//65536} offset:{o % 65536}", f"w{n}")
        for n in range(AH): rd(n)
        fill = []
        for n, (ks, j) in enumerate(items):
            if n % 2 == 0:
                k.wait(vm=f"X{max(items[n][0], items[n+1][0])}", lg=f"w{n+1}")
                if n % 16 == 0: stamp(8 + n//16, "p1")
            w = vr(WB + 4*(n % NS), 4); x = ar(4*ks, 4); d = vr(ACC + 16*j, 16)
            c = "0" if ks == 0 else d
            k.i(f"v_mfma_f32_32x32x16_bf16 {d}, {x}, {w}, {c}" if act_first else f"v_mfma_f32_32x32x16_bf16 {d}, {w}, {x}, {c}")
            if n % 2 == 0:
                if Q.left(): Q.go()

            else:
                for m_ in (n - 1 + AH, n + AH):
                    if m_ < 160: rd(m_)
            if n == NCHK - 16:
                k.i(f"s_mov_b32 s42, {F0B}")
                k.vm(f"buffer_load_dwordx4 v[{FB0}:{FB0+3}], v3, s[16:19], s42 offen sc1", "f0b")
            if n == NCHK:
                k.wait(vm="f0b")
                check4(FB0)
                k.i(f"s_cbranch_vccz p1_ok{sfx}\ns_mov_b32 s42, {F0B}")
                poll(3, 42, FB0, wide=True, w0=False)
                k.label(f"p1_ok{sfx}")
                SQ[0] = small()
                lim[0] = min(21, NPRE); k.th = O("th1", 96)
                k.auto = lambda: B.go() if 50 - B.left() < lim[0] else None
            if n in fill_after: fill += fill_after[n]
            for _ in range(6):
                if fill: k.i(fill.pop(0))
        lim[0] = NPRE; k.th = O("th1e", 90)
        for l in fill: k.i(l)
    lim = [0]; SQ = [None]
    def phi_lines(t):
        with capture() as c:
            for b in range(0, 16, 4): phi4(ACC + 16*t + b, PK + 8*t + b//2, T)
        return c.lines
    TL = O("tl1", 4)
    tail = [(ks, j) for ks in range(40-TL, 40) for j in (0, 1)] + [(ks, j) for ks in range(40-TL, 40) for j in (2, 3)]
    B = mkbg()
    loop(True, tail, {161 - 2*TL: phi_lines(0) + phi_lines(1)}, B, "kv")
    stamp(5)
    k.i("s_lshl_b32 s33, s20, 13\nv_add_u32 v6, s33, v3")
    for t in (0, 1):
        for f in range(2):
            k.lg(f"ds_write_b128 v6, v[{PK+8*t+4*f}:{PK+8*t+4*f+3}] offset:{2048*t+1024*f}")
    for t in (2, 3):
        for p in range(8):
            k.i(f"v_cvt_pk_bf16_f32 v{PK+8*t+p}, v{ACC+16*t+2*p}, v{ACC+16*t+2*p+1}")
        if t == 3:
            k.i("s_mov_b32 s34, 0xf0000000\ns_mov_b32 s35, 0xf0000000\nv_mov_b32 v7, 0x3f803f80")
            for p in range(8): k.i(f"v_cndmask_b32 v{PK+24+p}, v{PK+24+p}, v7, s[34:35]")
        for f in range(2):
            k.lg(f"ds_write_b128 v6, v[{PK+8*t+4*f}:{PK+8*t+4*f+3}] offset:{2048*t+1024*f}")
    k.i("""s_lshr_b32 s33, s20, 1
    s_and_b32 s34, s20, 1
    s_lshl_b32 s35, s33, 11
    v_add_u32 v8, s35, v3
    s_lshl_b32 s35, s34, 11
    s_add_u32 s35, s35, 4096
    v_add_u32 v9, s35, v3""")
    k.wait(lg="all"); k.i("s_barrier")
    stamp(8, "p1e")
    FA = 64; FB = 96; DD = 128
    for w in range(4):
        for f in range(2):
            n = 2*w + f
            k.lg(f"ds_read_b128 v[{FA+4*n}:{FA+4*n+3}], v8 offset:{8192*w+1024*f}")
            k.lg(f"ds_read_b128 v[{FB+4*n}:{FB+4*n+3}], v9 offset:{8192*w+1024*f}", f"f{n}")
    with capture() as c:
        k.i("""v_and_b32 v10, 31, v1
        s_lshl_b32 s35, s34, 5
        v_add_u32 v10, s35, v10
        v_mul_u32_u24 v11, 205, v10
        v_lshrrev_b32 v11, 12, v11
        v_mul_u32_u24 v12, 20, v11
        v_sub_u32 v12, v10, v12
        v_cmp_eq_u32 s[36:37], 60, v10
        v_mov_b32 v13, 20
        v_lshrrev_b32 v14, 5, v1
        v_cndmask_b32 v12, v12, v13, s[36:37]
        v_mul_u32_u24 v12, 80, v12
        v_lshlrev_b32 v14, 2, v14
        s_lshl_b32 s35, s33, 5
        v_add_u32 v14, s35, v14
        v_lshlrev_b32 v22, 2, v0""")
        MS = [4, 6, 24, 34]
        for j in range(4):
            ms = MS[j]
            k.i(f"""v_add_u32 v15, {8*j}, v14
            v_mul_u32_u24 v20, 205, v15
            v_lshrrev_b32 v20, 12, v20
            v_mul_u32_u24 v21, 20, v20
            v_sub_u32 v21, v15, v21
            v_cmp_eq_u32 s[{ms}:{ms+1}], v20, v11
            v_cmp_gt_u32 vcc, 3, v20
            v_mul_u32_u24 v20, 1680, v20
            v_lshl_add_u32 v21, v21, 2, v12
            v_add_u32 v{16+j}, v20, v21
            s_or_b64 s[{ms}:{ms+1}], s[{ms}:{ms+1}], s[36:37]
            s_and_b64 s[{ms}:{ms+1}], s[{ms}:{ms+1}], vcc""")
    fill = c.lines
    for _ in range(16): k.i(fill.pop(0))
    def kvm(n):
        def f():
            k.wait(lg=f"f{n}")
            k.i(f"v_mfma_f32_32x32x16_bf16 v[{DD}:{DD+15}], v[{FA+4*n}:{FA+4*n+3}], v[{FB+4*n}:{FB+4*n+3}], {'0' if n == 0 else vr(DD,16)}")
        return f
    for l in merge([kvm(n) for n in range(8)], fill, 6): k.i(l)
    for j in range(4):
        k.i(f"s_mov_b64 exec, s[{MS[j]}:{MS[j]+1}]")
        k.lg(f"ds_write_b128 v{16+j}, v[{DD+4*j}:{DD+4*j+3}] offset:32768")
    k.i(f"""s_mov_b64 exec, -1
    s_mul_i32 s33, s27, 5040
    s_add_u32 s33, s33, {KVA}
    s_add_u32 s4, s14, s33
    s_addc_u32 s5, s15, 0
    s_cmp_eq_u32 s27, 10
    s_movk_i32 s6, 5040
    s_cselect_b32 s6, 3360, s6
    s_mov_b32 s7, 0x20000""")
    k.wait(lg="all"); k.i("s_barrier")
    stamp(9, "p1e")
    for i in range(5):
        k.lg(f"ds_read_b32 v{32+i}, v22 offset:{32768+1024*i}", f"d{i}")
    for i in range(5):
        k.wait(lg=f"d{i}")
        if i == 4: k.i("v_add_u32 v22, 4096, v22")
        k.vm(f"buffer_atomic_add_f32 v{32+i}, v22, s[4:7], 0 offen offset:{1024*(i%4)}", "out1")
    stamp(10, "p1e")
    def bg_finish(B):
        k.auto = None
        print("WO left for the drain:", NPRE - (50 - B.left()), file=sys.stderr)
        if O("pqe", 1):
            k.i(f"v_min_u32 v{FB0+1}, 4, v1\nv_lshlrev_b32 v{FB0+1}, 2, v{FB0+1}\ns_and_b32 s24, s2, 7\ns_lshl_b32 s24, s24, 12\ns_lshl_b32 s25, s26, 8\ns_add_u32 s24, s24, s25\ns_add_u32 s24, s24, {F1 + 128 + 12}")
            k.vm(f"buffer_load_dword v{FB0}, v{FB0+1}, s[16:19], s24 offen sc1", "out1")
        B.go(NPRE - (50 - B.left()))
    bg_finish(B)
    k.wait(vm="out1")
    k.i("s_branch p1_fin")
    k.label("p1_q")
    rest(sv); Q.q = list(Qs)
    k.i(f"""s_mul_i32 s33, s28, 40960
    s_sub_u32 s34, s27, 11
    s_lshl_b32 s34, s34, 13
    s_add_u32 s33, s33, s34
    s_add_u32 s33, s33, {PQ}""")
    tail = [(ks, j) for j in range(4) for ks in range(36, 40)]
    B = mkbg()
    loop(False, tail, {149: phi_lines(0), 153: phi_lines(1)}, B, "q")
    stamp(5)
    for t in range(4):
        if t >= 2:
            for b in range(0, 16, 4):
                phi4(ACC + 16*t + b, PK + 8*t + b//2, T)
        for f in range(2):
            k.vm(f"buffer_store_dwordx4 v[{PK+8*t+4*f}:{PK+8*t+4*f+3}], v3, s[16:19], s33 offen offset:{(2048*t+1024*f) % 4096} {HO}", "out1")
        if t == 1: k.i("s_add_u32 s33, s33, 4096")
    stamp(8, "p1e"); stamp(9, "p1e"); stamp(10, "p1e")
    bg_finish(B)
    k.wait(vm="out1")
    k.label("p1_fin")
    stamp(6)
    k.i("s_barrier")
    sig_all(F1, 6)
    WOB = B
    k.i(f"s_mov_b32 s26, s{PWQ}\ns_mov_b32 s27, s{PWQ+1}")
    if O("pqe", 1):
        k.i(f"v_cmp_ne_u32 vcc, s44, v{FB0}\ns_cbranch_vccz p1_qok")
        poll(FB0+1, 24, FB0, w0=False)
        k.label("p1_qok")
        k.i(f"""s_mul_i32 s22, s29, 40960
        s_mul_i32 s33, s20, 10240
        s_add_u32 s22, s22, s33
        s_add_u32 s22, s22, {PQ}""")
        for kl in range(10):
            k.vm(f"buffer_load_dwordx4 a[{PQA+4*kl}:{PQA+4*kl+3}], v3, s[16:19], s22 offen offset:{1024*(kl%4)} {HO}", f"pq{kl}")
            if kl % 4 == 3: k.i("s_add_u32 s22, s22, 4096")
    k.vm(f"global_load_ushort v{TBV+8}, v27, s[{PB1}:{PB1+1}]")
    SQ[0].go(99)
    if XM == "mix":
        k.i("s_cmp_lg_u32 s20, 0\ns_cbranch_scc1 p1_nox2")
        xloads("")
        k.label("p1_nox2")
    WOB.go(O("wo_w", 5))
    NW1 = O("w1_w", 16)
    k.i(f"""s_mul_i32 s25, s27, 122880
    s_add_u32 s25, s25, {W1}
    s_cmp_eq_u32 s20, 0
    s_cbranch_scc1 p1_now1
    s_sub_u32 s23, s20, 1
    s_mul_i32 s23, s23, {NW1*1024}
    s_add_u32 s24, s25, s23""")
    for i in range(NW1):
        if i % 4 == 0: k.i(f"s_add_u32 m0, s23, {1024*i}")
        if not OPT.get("nobg"): k.i(f"buffer_load_dwordx4 v3, s[16:19], s24 offen offset:{1024*(i%4)} {HO} lds")
        if i % 4 == 3: k.i("s_add_u32 s24, s24, 4096")
    k.i("s_waitcnt vmcnt(0)" if OPT.get("nobg") else f"s_waitcnt vmcnt({NW1})")
    k.label("p1_now1")
    stamp(7)

W2B = None
def phase2():
    global W2B
    P2L = 102400
    k.i(f"""s_mul_i32 s21, s20, 13440
    s_add_u32 s21, s21, {KVA}
    s_mul_i32 s23, s20, 15360
    s_add_u32 s23, s23, {P2L+64}
    s_mul_i32 s22, s29, 40960
    s_mul_i32 s33, s20, 10240
    s_add_u32 s22, s22, s33
    s_add_u32 s22, s22, {PQ}
    v_bfe_u32 v8, v1, 2, 3
    v_lshlrev_b32 v8, 2, v8
    v_and_b32 v9, 3, v1
    s_mov_b32 s33, 0x55524130
    s_mov_b32 s34, 0x55453120
    v_bfe_u32 v10, s33, v8, 4
    v_bfe_u32 v11, s34, v8, 4
    v_lshl_add_u32 v10, v10, 2, v9
    v_lshl_add_u32 v11, v11, 2, v9
    v_min_u32 v10, 20, v10
    v_min_u32 v11, 20, v11
    v_lshrrev_b32 v12, 5, v1
    v_lshlrev_b32 v12, 4, v12
    s_sub_u32 s33, s23, 16
    v_add_u32 v12, s33, v12
    v_mul_u32_u24 v10, 80, v10
    v_mul_u32_u24 v11, 80, v11
    v_add_u32 v10, v10, v12
    v_add_u32 v11, v11, v12
    s_lshl_b32 s28, s26, 2
    s_add_u32 s28, s28, s20
    s_mov_b32 s36, 0
    s_mov_b32 s37, -1
    s_lshl_b32 s35, s13, 2
    s_add_u32 s35, s35, s20
    s_mul_i32 s35, s35, 61440
    s_add_u32 s35, s35, {W2}""")
    poll_all(F1, 14, O('slp1', 0))
    k.i("s_barrier")
    k.vm_done = k.vm_n
    stamp(8)
    for i in range(14):
        if i % 4 == 0: k.i(f"s_add_u32 m0, s23, {1024*i}")
        k.vm(f"buffer_load_dwordx4 v3, s[16:19], s21 offen offset:{1024*(i%4)} {HO} lds", f"kv{i}")
        if i % 4 == 3: k.i("s_add_u32 s21, s21, 4096")
        if i in (6, 13) and not O("pqe", 1):
            for kl in (range(0, 5) if i == 6 else range(5, 10)):
                k.vm(f"buffer_load_dwordx4 a[{PQA+4*kl}:{PQA+4*kl+3}], v3, s[16:19], s22 offen offset:{1024*(kl%4)} {HO}", f"pq{kl}")
                if kl % 4 == 3: k.i("s_add_u32 s22, s22, 4096")
    XQ.go(99)
    NW1 = O("w1_w", 16); N1 = (96 - 3*NW1) // 4
    assert 3*NW1 + 4*N1 == 96
    k.i(f"s_mul_i32 s24, s20, {N1*1024}\ns_add_u32 s24, s24, {3*NW1*1024}\ns_add_u32 s25, s25, s24")
    B1 = BG()
    for i in range(N1):
        B1.add(f"buffer_load_dwordx4 v3, s[16:19], s25 offen offset:{1024*(i%4)} {HO} lds", "w1",
               pre=(f"s_add_u32 m0, s24, {1024*i}" if i % 4 == 0 else ""), post=("s_add_u32 s25, s25, 4096" if i % 4 == 3 else ""))
    W2B = BG()
    for i in range(60):
        W2B.add(f"buffer_load_dwordx4 a[{W2R[i]}:{W2R[i]+3}], v3, s[16:19], s35 offen offset:{1024*(i%4)} {HO}", "w2", post=("s_add_u32 s35, s35, 4096" if i % 4 == 3 else ""))
    AF = 20; TT = 84; DT = 180; OG = 84; ACC = [20, 36, 124, 140, 156]
    for j in range(1, 8): k.i(f"v_add_f32 v{TBV}, v{TBV}, v{TBV+j}")
    k.i(f"v_lshlrev_b32 v{TBV+1}, 16, v{TBV+8}")
    jobs = {}
    n = 0
    for hl in range(8):
        jobs[hl] = []
        for u in range(2):
            for h2 in range(2):
                dg0 = -(hl % 4) + 4*u + 2*h2
                v0_ = 0 <= dg0 <= 4; v1_ = 0 <= dg0+1 <= 4
                d = AF + (2*hl+u)*4 + 2*h2
                if v0_ or v1_:
                    jobs[hl].append((d, n, v0_, v1_, hl*1680 + 16*(dg0+1))); n += 1
                else:
                    jobs[hl].append((d, None, 0, 0, 0))
                    k.i(f"v_mov_b32 v{d}, 0\nv_mov_b32 v{d+1}, 0")
    def kvreads(lo, hi):
        for hl in range(lo, hi):
            for d, n, _, _, o in jobs[hl]:
                if n is not None: k.lg(f"ds_read_b128 v[{TT+4*n}:{TT+4*n+3}], v{10 + (hl & 1)} offset:{o}", f"a{n}")
    def build(hl):
        for d, n, v0_, v1_, _ in jobs[hl]:
            if n is None: continue
            k.wait(lg=f"a{n}")
            t = TT + 4*n
            k.i(f"v_cvt_pk_bf16_f32 v{d}, v{t}, v{t+1}\nv_cvt_pk_bf16_f32 v{d+1}, v{t+2}, v{t+3}")
            if not v1_: k.i(f"v_cndmask_b32 v{d}, v{d}, 0, s[36:37]\nv_cndmask_b32 v{d+1}, v{d+1}, 0, s[36:37]")
            if not v0_: k.i(f"v_cndmask_b32 v{d}, 0, v{d}, s[36:37]\nv_cndmask_b32 v{d+1}, 0, v{d+1}, s[36:37]")
    def omm(hl):
        t0 = hl + hl//4
        d = vr(DT + 16*(hl % 4), 16)
        def f(u):
            def g():
                k.wait(vm=f"pq{t0+u}")
                k.i(f"v_mfma_f32_32x32x16_bf16 {d}, {vr(AF+(2*hl+u)*4, 4)}, {ar(PQA+4*(t0+u), 4)}, {'0' if u == 0 else d}")
            return g
        return [f(0), f(1)]
    def opost(hl):
        p = hl // 2; odd = hl & 1
        D = DT + 16*(hl % 4); rc = 16 + 2*odd
        a, b = (D+8, D+12) if odd else (D+12, D+8)
        with capture() as c:
            k.i(f"v_cndmask_b32 v{rc}, v{a}, v{b}, s[36:37]\nv_add_f32 v{rc}, s38, v{rc}\nv_rcp_f32 v{rc}, v{rc}\ns_nop 0")
            for h in range(6):
                k.i(f"v_pk_mul_f32 v[{D+2*h}:{D+2*h+1}], v[{D+2*h}:{D+2*h+1}], v[{rc}:{rc+1}] op_sel_hi:[1,0]")
            for j in range(2):
                g = OG + 2*(5*p + 2*odd + j)
                k.i(f"v_cvt_pk_bf16_f32 v{g}, v{D+4*j}, v{D+4*j+1}\nv_cvt_pk_bf16_f32 v{g+1}, v{D+4*j+2}, v{D+4*j+3}")
            g = OG + 2*(5*p + 4)
            if not odd:
                k.i(f"v_cvt_pk_bf16_f32 v{g}, v{D+8}, v{D+9}\nv_cvt_pk_bf16_f32 v{g+1}, v{D+10}, v{D+11}")
            else:
                k.i(f"v_cvt_pk_bf16_f32 v{D}, v{D+8}, v{D+9}\nv_cvt_pk_bf16_f32 v{D+1}, v{D+10}, v{D+11}")
                k.i(f"v_cndmask_b32 v{g}, v{g}, v{D}, s[36:37]\nv_cndmask_b32 v{g+1}, v{g+1}, v{D+1}, s[36:37]")
        return c.lines
    def wo(u, c, bg=True):
        def f():
            d = vr(ACC[c], 16)
            while f"wo{5*u+c}" not in k.vm_tags or (WOB.left() and 50 - WOB.left() <= 5*u+c): WOB.go()
            k.wait(vm=f"wo{5*u+c}")
            k.i(f"v_mfma_f32_32x32x16_bf16 {d}, {ar(WOR[5*u+c], 4)}, {vr(OG+4*u, 4)}, {'0' if u == 0 else d}")
            w2lim[0] = min(5*u, 35)
        return f
    w2lim = [0]
    def au2():
        if WOB.left(): WOB.go()
        elif B1.left(): B1.go()
        elif 60 - W2B.left() < w2lim[0]: W2B.go()
    k.auto = au2; k.th = O("th2", 90)
    k.wait(vm="kv6")
    stamp(13, "p2")
    kvreads(0, 4)
    for hl in range(4):
        build(hl)
        for f in omm(hl): f()
        if hl == 1:
            k.wait(vm="kv13"); kvreads(4, 8)
    for hl in range(4, 8):
        build(hl)
    stamp(9)
    for l in opost(0): k.i(l)
    for l in merge(omm(4), opost(1), 9): k.i(l)
    stamp(10)
    for l in merge(omm(5) + [wo(u, c) for u in (0, 1) for c in range(5)], opost(2) + opost(3), 4): k.i(l)
    for l in merge(omm(6) + omm(7) + [wo(u, c) for u in (2, 3, 4) for c in range(5)], opost(4) + opost(5), 3): k.i(l)
    with capture() as c:
        k.i(f"s_sub_u32 s33, s23, 64\nv_add_u32 v13, s33, v3")
        for j in range(1, 4):
            k.i(f"s_sub_u32 s33, s20, {j}\ns_and_b32 s33, s33, 3\ns_mul_i32 s33, s33, 15360\ns_add_u32 s33, s33, {P2L + (j-1)*5120}\nv_add_u32 v{13+j}, s33, v3")
    for l in merge([wo(u, c) for u in (5, 6) for c in range(5)], opost(6) + opost(7), 4): k.i(l)
    XF = 180
    with capture() as c2:
        k.i("s_mov_b32 s33, 0xffff0000")
        for j in range(10):
            k.i(f"v_accvgpr_read_b32 v{XF+2*j+1}, a{XA+j}")
        for j in range(10):
            k.i(f"v_lshlrev_b32 v{XF+2*j}, 16, v{XF+2*j+1}\nv_and_b32 v{XF+2*j+1}, s33, v{XF+2*j+1}")
    fill = c.lines + c2.lines
    if "xres" in k.vm_tags: k.wait(vm="xres")
    def red_w(c):
        for j in range(1, 4):
            r = ACC[c] + 4*j
            k.lg(f"ds_write_b128 v13, v[{r}:{r+3}] offset:{(j-1)*5120 + 1024*c}")
    for c in range(5):
        fill = merge([wo(u, c) for u in (7, 8, 9)], fill, 4)
        if c >= 2: red_w(c - 2)
    for l in fill: k.i(l)
    w2lim[0] = 60
    stamp(11)
    red_w(3); red_w(4)
    for c in range(5):
        for h in range(2):
            d = XF + 4*c + 2*h; a = ACC[c] + 2*h
            k.i(f"v_pk_add_f32 v[{d}:{d+1}], v[{d}:{d+1}], v[{a}:{a+1}]")
    k.wait(lg="all"); k.i("s_barrier")
    stamp(14, "p2")
    RR = 84
    for j in range(1, 4):
        for c in range(5):
            r = RR + 20*(j-1) + 4*c
            k.lg(f"ds_read_b128 v[{r}:{r+3}], v{13+j} offset:{1024*c}", f"r{j}_{c}")
    k.i(f"""s_mul_i32 s34, s29, 40
    s_mul_i32 s21, s30, 10
    s_add_u32 s34, s34, s21
    s_lshr_b32 s21, s20, 1
    s_add_u32 s34, s34, s21
    s_lshl_b32 s34, s34, 10
    s_and_b32 s21, s20, 1
    s_lshl_b32 s21, s21, 9
    s_add_u32 s34, s34, s21
    s_add_u32 s34, s34, {HH}
    v_and_b32 v8, 31, v1
    v_lshrrev_b32 v9, 5, v1
    v_lshlrev_b32 v12, 3, v8
    v_lshlrev_b32 v8, 4, v8
    v_lshl_add_u32 v8, v9, 3, v8""")
    HP = 24
    for j in range(1, 4):
        for c in range(5):
            k.wait(lg=f"r{j}_{c}")
            for h in range(2):
                d = XF + 4*c + 2*h; a = RR + 20*(j-1) + 4*c + 2*h
                k.i(f"v_pk_add_f32 v[{d}:{d+1}], v[{d}:{d+1}], v[{a}:{a+1}]")
            if j == 3:
                k.i(f"v_cvt_pk_bf16_f32 v{HP+2*c}, v{XF+4*c}, v{XF+4*c+1}\nv_cvt_pk_bf16_f32 v{HP+2*c+1}, v{XF+4*c+2}, v{XF+4*c+3}")
                k.vm(f"buffer_store_dwordx2 v[{HP+2*c}:{HP+2*c+1}], v8, s[16:19], s34 offen offset:{2048*(c%2)} {HO}")
                if c % 2 == 1: k.i("s_add_u32 s34, s34, 4096")
    for j in range(10):
        k.i(f"v_lshlrev_b32 v{XF+2*j}, 16, v{HP+j}\nv_and_b32 v{XF+2*j+1}, s33, v{HP+j}")
    k.i(f"v_pk_add_f32 v[16:17], v[{XF}:{XF+1}], v[{XF+2}:{XF+3}]")
    k.i(f"v_pk_mul_f32 v[18:19], v[{XF}:{XF+1}], v[{XF}:{XF+1}]")
    k.i(f"v_pk_fma_f32 v[18:19], v[{XF+2}:{XF+3}], v[{XF+2}:{XF+3}], v[18:19]")
    for j in range(2, 10):
        k.i(f"v_pk_add_f32 v[16:17], v[16:17], v[{XF+2*j}:{XF+2*j+1}]")
        k.i(f"v_pk_fma_f32 v[18:19], v[{XF+2*j}:{XF+2*j+1}], v[{XF+2*j}:{XF+2*j+1}], v[18:19]")
    k.i(f"""v_add_f32 v16, v16, v17
    v_add_f32 v17, v18, v19
    v_mov_b32 v18, v16
    v_mov_b32 v19, v17
    s_lshl_b32 s34, s29, 4
    s_lshl_b32 s21, s30, 2
    s_add_u32 s34, s34, s21
    s_add_u32 s34, s34, s20
    v_permlane32_swap_b32 v16, v18
    v_permlane32_swap_b32 v17, v19
    s_lshl_b32 s34, s34, 8
    s_add_u32 s34, s34, {ST}
    v_pk_add_f32 v[16:17], v[16:17], v[18:19]
    s_mov_b64 exec, 0xffffffff""")
    k.vm(f"buffer_store_dwordx2 v[16:17], v12, s[16:19], s34 offen {HO}", "out2")
    k.i("s_mov_b64 exec, -1")
    stamp(15, "p2")
    k.auto = None
    print("P2 end: W1 left", B1.left(), "W2 left", W2B.left(), file=sys.stderr)
    B1.go(99)
    if not OPT.get("nodrain"):
        W2B.go(O("w2_d2", 12))
        k.wait(vm="out2")
    stamp(12)
    k.i("s_barrier")
    sig_row(F2, 6, "s_and_b32 s42, s29, 3", "s_mov_b32 s43, s30")
    k.i(f"s_mul_i32 s23, s20, 6144\ns_mul_i32 s25, s27, 122880\ns_add_u32 s25, s25, s23\ns_add_u32 s25, s25, {W1 + 98304}")
    for i in range(6):
        if i % 4 == 0: k.i(f"s_add_u32 m0, s23, {98304 + 1024*i}")
        k.vm(f"buffer_load_dwordx4 v3, s[16:19], s25 offen offset:{1024*(i%4)} {HO} lds", "w1t")
        if i % 4 == 3: k.i("s_add_u32 s25, s25, 4096")
    k.i(f"v_lshlrev_b32 v6, 2, v0\nv_add_u32 v6, 122880, v6")
    k.lg(f"ds_write_b32 v6, v{TBV}")
    k.lg(f"ds_write_b32 v6, v{TBV+1} offset:1024")

def phase3():
    TB = 122880
    k.i(f"""s_mul_i32 s21, s28, 40960
    s_add_u32 s21, s21, {HH}
    v_and_b32 v8, 31, v1
    v_lshrrev_b32 v7, 5, v1
    v_lshlrev_b32 v8, 3, v8
    v_lshl_add_u32 v8, v7, 8, v8
    s_lshl_b32 s33, s28, 12
    s_add_u32 s33, s33, {ST}
    v_lshlrev_b32 v14, 4, v7
    v_add_u32 v14, {TB}, v14
    v_bfe_u32 v15, v1, 4, 1
    v_mul_u32_u24 v15, 49152, v15
    v_and_b32 v16, 15, v1
    v_lshl_add_u32 v15, v16, 4, v15
    v_lshl_add_u32 v15, v7, 9, v15
    s_mul_i32 s34, s28, 98304
    s_mul_i32 s25, s27, 3072
    s_add_u32 s34, s34, s25
    s_add_u32 s34, s34, {H1}""")
    W2B.go(O("w2_w2", 4))
    k.wait(vm="w1t", lg="all")
    k.i("s_barrier")
    poll_row(F2, 10, O('slp2', 0))
    stamp(13)
    ACC = 40; WB = 88; NS = 9; AH = 6; HR = 124; NR = O("pre3", 12); SR = 20; CT = 172; PK = 232
    H = BG()
    for i in range(40):
        r = HR + 4*(i % NR)
        H.add(f"buffer_load_dwordx4 v[{r}:{r+3}], v3, s[16:19], s21 offen offset:{1024*(i%4)} {HO}", f"h{i}", post=("s_add_u32 s21, s21, 4096" if i % 4 == 3 else ""))
    H.go(4)
    for j in range(8):
        k.vm(f"buffer_load_dwordx2 v[{SR+2*j}:{SR+2*j+1}], v8, s[16:19], s33 offen offset:{512*j} {HO}", "stats")
    H.go(NR - 5)
    TL = O("tl3", 4)
    items = [(ks, j) for ks in range(40-TL) for j in range(3)] + [(ks, j) for j in range(3) for ks in range(40-TL, 40)]
    def rd(n):
        ks, j = items[n]
        o = (ks*3 + j) * 1024
        r = WB + 4*(n % NS)
        k.lg(f"ds_read_b128 v[{r}:{r+3}], v{3 + o//65536} offset:{o % 65536}", f"w{n}")
    with capture() as c:
        for j in range(1, 8): k.i(f"v_pk_add_f32 v[{SR}:{SR+1}], v[{SR}:{SR+1}], v[{SR+2*j}:{SR+2*j+1}]")
        k.i(f"""v_mov_b32 v10, v{SR}
        v_mov_b32 v11, v{SR+1}
        v_permlane32_swap_b32 v{SR}, v10
        v_permlane32_swap_b32 v{SR+1}, v11
        v_pk_add_f32 v[8:9], v[{SR}:{SR+1}], v[10:11]
        v_mul_f32 v8, 0x3acccccd, v8
        v_mul_f32 v9, 0x3acccccd, v9
        v_fma_f32 v9, -v8, v8, v9
        v_max_f32 v9, 0, v9""")
        bf16r(8, 8); bf16r(9, 9)
        k.i("v_add_f32 v9, 0x3727c5ac, v9")
        bf16r(9, 9)
        k.i("v_sqrt_f32 v9, v9")
        bf16r(9, 9)
        k.i("v_rcp_f32 v10, v9\nv_mul_f32 v12, v8, v10\nv_sub_f32 v12, 0, v12")
    statl = c.lines
    def tab_reads(nt):
        for j in range(4):
            n = 4*nt + j
            k.lg(f"ds_read_b128 v[{CT+4*n}:{CT+4*n+3}], v14 offset:{1024+128*nt+32*j}")
            k.lg(f"ds_read_b128 v[{SR+4*j}:{SR+4*j+3}], v14 offset:{128*nt+32*j}", f"t{nt}")
    def tab_lines(nt):
        with capture() as c:
            for j in range(4):
                b = CT + 4*(4*nt + j)
                for h in range(2):
                    k.i(f"v_pk_fma_f32 v[{b+2*h}:{b+2*h+1}], v[{SR+4*j+2*h}:{SR+4*j+2*h+1}], v[12:13], v[{b+2*h}:{b+2*h+1}] op_sel_hi:[1,0,1]")
        return c.lines
    def epi_lines(nt, j):
        n = 4*nt + j
        a = ACC + 4*n; b = CT + 4*n
        with capture() as c:
            for h in range(2):
                k.i(f"v_pk_fma_f32 v[{a+2*h}:{a+2*h+1}], v[{a+2*h}:{a+2*h+1}], v[10:11], v[{b+2*h}:{b+2*h+1}] op_sel_hi:[1,0,1]")
            for h in range(4): k.i(f"v_max_f32 v{a+h}, 0, v{a+h}")
            for h in range(2):
                k.i(f"v_pk_mul_f32 v[{a+2*h}:{a+2*h+1}], v[{a+2*h}:{a+2*h+1}], v[{a+2*h}:{a+2*h+1}]")
            for h in range(2):
                k.i(f"v_cvt_pk_bf16_f32 v{PK+2*n+h}, v{a+2*h}, v{a+2*h+1}")
        return c.lines
    def st_h1(nt, e):
        k.vm(f"buffer_store_dwordx4 v[{PK+8*nt+4*e}:{PK+8*nt+4*e+3}], v15, s[16:19], s34 offen offset:{1024*nt+256*e} {HO}", "out3")
    for n in range(AH): rd(n)
    fill = []
    k.auto = lambda: W2B.go(); k.th = O("th3", 100)
    for n, (ks, j) in enumerate(items):
        k.wait(vm=f"h{ks}", lg=f"w{n}")
        if n == 12: cst(7)
        if n == 108: cst(9)
        d = vr(ACC + 16*j, 16)
        k.i(f"v_mfma_f32_32x32x16_bf16 {d}, {vr(WB + 4*(n % NS), 4)}, {vr(HR + 4*(ks % NR), 4)}, {'0' if ks == 0 else d}")
        if n % 3 == 0: H.go()
        if O('w2_p3', 0) and n % O('w2_p3', 0) == 4: W2B.go()
        if n + AH < 120: rd(n + AH)
        if n == 18: fill += statl
        for nt in range(3):
            if n == 40 + 12*nt: tab_reads(nt)
            if n == 46 + 12*nt:
                k.wait(lg=f"t{nt}"); fill += tab_lines(nt)
        if n == 121 - 2*TL: fill += epi_lines(0, 0) + epi_lines(0, 1) + epi_lines(0, 2) + epi_lines(0, 3)
        if n == 121 - TL: fill += epi_lines(1, 0) + epi_lines(1, 1)
        for _ in range(3 if n < 120 - 2*TL else 6):
            if fill: k.i(fill.pop(0))
    stamp(14)
    for l in fill: k.i(l)
    st_h1(0, 0); st_h1(0, 1); st_h1(1, 0)
    for nt, j in ((1, 2), (1, 3), (2, 0), (2, 1), (2, 2), (2, 3)):
        for l in epi_lines(nt, j): k.i(l)
        if j % 2 == 1: st_h1(nt, j // 2)
    k.auto = None
    print("P3 end: W2 left", W2B.left(), file=sys.stderr)
    if not OPT.get("nodrain"):
        W2B.go(O("w2_d3", 12))
        k.wait(vm="out3")
    stamp(15)
    k.i("s_barrier")
    sig_row(F3, 6, "s_lshr_b32 s42, s27, 2", "s_and_b32 s43, s27, 3")

def phase4():
    HR = 20; BR = 30; ACC = 40; RING = 120; NB = O("nb4", 6)
    srd(8, PB2, 1280)
    k.i(f"""v_and_b32 v4, 15, v1
    v_lshrrev_b32 v5, 4, v1
    s_lshl_b32 s33, s12, 1
    s_lshr_b32 s25, s20, 1
    s_add_u32 s33, s33, s25
    s_mul_i32 s33, s33, 40
    s_mul_i32 s25, s13, 5
    s_add_u32 s33, s33, s25
    s_lshl_b32 s33, s33, 10
    s_add_u32 s33, s33, {HH}
    s_and_b32 s25, s20, 1
    s_lshl_b32 s25, s25, 8
    s_add_u32 s33, s33, s25
    v_lshrrev_b32 v8, 1, v5
    v_lshlrev_b32 v8, 9, v8
    v_lshl_add_u32 v8, v4, 4, v8
    v_and_b32 v9, 1, v5
    v_lshl_add_u32 v8, v9, 3, v8
    v_add_u32 v9, 4096, v8
    v_lshlrev_b32 v17, 3, v5
    s_mul_i32 s34, s13, 160""")
    for c in range(5):
        k.vm(f"buffer_load_dwordx2 v[{HR+2*c}:{HR+2*c+1}], v{8 if c < 4 else 9}, s[16:19], s33 offen offset:{1024*(c%4)} {HO}")
    for c in range(5):
        k.vm(f"buffer_load_dwordx2 v[{BR+2*c}:{BR+2*c+1}], v17, s[8:11], s34 offen offset:{32*c}", "res")
    W2B.go(99)
    k.i(f"""s_mul_i32 s21, s12, 196608
    s_mul_i32 s22, s20, 12288
    s_add_u32 s21, s21, s22
    s_add_u32 s21, s21, {H1}
    s_lshl_b32 s25, s12, 6
    s_lshl_b32 s33, s20, 4
    s_add_u32 s25, s25, s33
    v_add_u32 v6, s25, v4
    v_mul_u32_u24 v7, 1280, v6
    v_lshl_add_u32 v7, v5, 3, v7
    s_mul_i32 s33, s20, 15360
    v_add_u32 v13, s33, v3""")
    for j in range(4):
        k.i(f"s_add_u32 s33, s20, {j}\ns_and_b32 s33, s33, 3\ns_mul_i32 s33, s33, 49152\nv_add_u32 v{8+j}, s33, v3")
    for j in range(1, 4):
        k.i(f"s_sub_u32 s33, s20, {j}\ns_and_b32 s33, s33, 3\ns_mul_i32 s33, s33, 15360\ns_add_u32 s33, s33, {(j-1)*5120}\nv_add_u32 v{13+j}, s33, v3")
    srd(8, POUT, 2621440)
    poll_row(F3, 18, O('slp3', 0))
    stamp(16)
    Q = BG()
    for i in range(48):
        t, j = divmod(i, 4)
        r = RING + 16*(t % NB) + 4*j
        Q.add(f"buffer_load_dwordx4 v[{r}:{r+3}], v{8+j}, s[16:19], s21 offen offset:{1024*(t%4)} {HO}", f"s{t}_{j}", post=("s_add_u32 s21, s21, 4096" if i % 16 == 15 else ""))
    Q.go(4*(NB-1))
    XF = 216
    k.wait(vm="res")
    k.i("s_mov_b32 s33, 0xffff0000")
    for j in range(10):
        k.i(f"v_lshlrev_b32 v{XF+2*j}, 16, v{HR+j}\nv_and_b32 v{XF+2*j+1}, s33, v{HR+j}")
        k.i(f"v_lshlrev_b32 v{XF+20}, 16, v{BR+j}\nv_and_b32 v{XF+21}, s33, v{BR+j}")
        k.i(f"v_pk_add_f32 v[{XF+2*j}:{XF+2*j+1}], v[{XF+2*j}:{XF+2*j+1}], v[{XF+20}:{XF+21}]")
    def red_w(j):
        for c in range(5):
            r = ACC + 20*j + 4*c
            k.lg(f"ds_write_b128 v13, v[{r}:{r+3}] offset:{(j-1)*5120 + 1024*c}")
    order = [(t, j) for t in range(10) for j in range(4)] + [(t, j) for j in (1, 2, 3, 0) for t in (10, 11)]
    for n, (t, j) in enumerate(order):
        k.wait(vm=f"s{t}_{j}")
        if n == 4: cst(11)
        if n == 40: cst(13)
        for c in range(5):
            d = vr(ACC + (5*j+c)*4, 4)
            k.i(f"v_mfma_f32_16x16x32_bf16 {d}, {ar(W2R[5*t+c], 4)}, {vr(RING+16*(t%NB)+4*j, 4)}, {'0' if t == 0 else d}")
            if c == 1: Q.go()
        if n in (42, 44, 46): red_w((n - 40)//2)
    stamp(17)
    k.wait(lg="all"); k.i("s_barrier")
    RR = 120
    for j in range(1, 4):
        for c in range(5):
            r = RR + 20*(j-1) + 4*c
            k.lg(f"ds_read_b128 v[{r}:{r+3}], v{13+j} offset:{1024*c}", f"r{j}_{c}")
    for c in range(5):
        for h in range(2):
            d = XF + 4*c + 2*h; a = ACC + 4*c + 2*h
            k.i(f"v_pk_add_f32 v[{d}:{d+1}], v[{d}:{d+1}], v[{a}:{a+1}]")
    for j in range(1, 4):
        for c in range(5):
            k.wait(lg=f"r{j}_{c}")
            for h in range(2):
                d = XF + 4*c + 2*h; a = RR + 20*(j-1) + 4*c + 2*h
                k.i(f"v_pk_add_f32 v[{d}:{d+1}], v[{d}:{d+1}], v[{a}:{a+1}]")
            if j == 3:
                k.i(f"v_cvt_pk_bf16_f32 v{HR+2*c}, v{XF+4*c}, v{XF+4*c+1}\nv_cvt_pk_bf16_f32 v{HR+2*c+1}, v{XF+4*c+2}, v{XF+4*c+3}")
                k.vm(f"buffer_store_dwordx2 v[{HR+2*c}:{HR+2*c+1}], v7, s[8:11], s34 offen offset:{32*c} {OPT.get('opol', '')}")
    k.i(f"""s_or_b32 s33, s45, s20
    s_cmp_lg_u32 s33, 0
    s_cbranch_scc1 p4_noep
    v_mov_b32 v4, s44
    v_mov_b32 v5, {CB}
    s_mov_b64 exec, 1
    buffer_store_dword v4, v5, s[16:19], 0 offen sc1
    s_mov_b64 exec, -1""")
    k.label("p4_noep")

def stamp_out():
    if not OPT["stamps"]: return
    n = NSTAMP
    k.i("s_waitcnt vmcnt(0) lgkmcnt(0)")
    k.i(f"s_memrealtime s[{64+2*n}:{65+2*n}]")
    k.i("s_waitcnt lgkmcnt(0)")
    k.i(f"s_lshl_b32 s3, s45, 2\ns_add_u32 s3, s3, s20\ns_lshl_b32 s3, s3, 7\ns_add_u32 s3, s3, 0x2000000\nv_mov_b32 v1, s3")
    for j in range(n+1): k.i(f"v_mov_b32 v{2+j}, s{64+2*j}")
    k.i("s_mov_b64 exec, 1")
    for j in range(n+1): k.i(f"global_store_dword v1, v{2+j}, s[14:15] offset:{4*j}")

def emit(path):
    global k
    k = Kern(KN)
    phase0(); phase1(); phase2(); phase3(); phase4(); stamp_out()
    k.label("kend"); k.i("s_endpgm")
    body, added = hazard_pass(k.L, verbose=bool(OPT.get("vnop")))
    print("instrs", len(body), "nop states added", added, file=sys.stderr)
    out = ["; pre-LN linear-attention block + squared-ReLU MLP, one persistent launch (256 workgroups, flag hand-offs in d_ws)",
           "; @launch grid=(256,1,1) block=(256,1,1) lds=163840",
           '.amdgcn_target "amdgcn-amd-amdhsa--gfx950"', ".text", f".globl {KN}", ".p2align 8", f".type {KN},@function", f"{KN}:"]
    out += [("" if (l.endswith(":") or l.startswith(";")) else "    ") + l for l in body]
    out += ['.section .rodata,"a"', ".p2align 6", f".amdhsa_kernel {KN}", "  .amdhsa_next_free_vgpr 512", "  .amdhsa_next_free_sgpr 102",
            "  .amdhsa_accum_offset 256", "  .amdhsa_group_segment_fixed_size 0", "  .amdhsa_kernarg_size 88",
            "  .amdhsa_user_sgpr_count 2", "  .amdhsa_user_sgpr_kernarg_segment_ptr 1",
            "  .amdhsa_system_sgpr_workgroup_id_x 1", ".end_amdhsa_kernel"]
    open(path, "w").write("\n".join(out) + "\n")

if __name__ == "__main__":
    for a in sys.argv[2:]:
        kk, v = a.split("=")
        OPT[kk] = {"True": True, "False": False, "none": ""}.get(v, v.replace("_", " "))
    emit(sys.argv[1])
```

```python
import sys
from asmlib import *

NAME = "sequential_preLN__linear_attn_block__dense_activation_squared_relu__prompt"
KN = NAME + "_kernel"
CB = 0x0
F0B = CB + 0x1000; F2 = 0xC0000; F3 = 0xD0000; F0 = 0x90000; F1 = 0x98000
CS = 0x10000; KVA = 0x20000; ST = 0x40000
XN = 0x100000; WQ = 0x380000; WO = 0x600000; W1 = 0x700000; W2 = 0x900000
PQ = 0xB00000; HH = 0xE00000; H1 = 0x1200000; XC = 0x1800000
WSZ = 0x1B00000
LOG2E = 0x3fb8aa3b
OPT = dict(pqe=0, stamps=False, cold="nt", pre1=2, wo_pre=40, wo_w=0, w1_w=12, sleep=8, slp0=20, lnexact=True)
HO = "sc1"
UL = 131072
def O(n, d): return int(OPT.get(n, d))

def magic(C, maxq):
    for sh in range(4, 24):
        m = -(-(1 << sh) // C)
        if m * maxq < (1 << 32) and m < (1 << 24) and all((q * m) >> sh == q // C for q in range(maxq)): return m, sh
    raise ValueError

k = None
def srd(d, base, size):
    k.i(f"s_mov_b32 s{d}, s{base}\ns_mov_b32 s{d+1}, s{base+1}\ns_mov_b32 s{d+2}, {size}\ns_mov_b32 s{d+3}, 0x20000")
def bf16r(d, s):
    k.i(f"v_cvt_pk_bf16_f32 v{d}, v{s}, v{s}\nv_lshlrev_b32 v{d}, 16, v{d}")
NSTAMP = 18
def stamp(idx, grp=None):
    if not OPT["stamps"]: return
    f = OPT.get("focus")
    lo = {"p0": (5, 18), "p1": (8, 18), "p1e": (8, 18), "p2": (13, 18), "clk": (1, 18)}.get(f)
    if grp is None and lo and lo[0] <= idx < lo[1]: return
    if grp is not None and grp != f: return
    k.i(f"s_memrealtime s[{64+2*idx}:{65+2*idx}]")
def cst(slot):
    if OPT["stamps"] and OPT.get("focus") == "clk":
        k.i(f"s_memrealtime s[{64+2*slot}:{65+2*slot}]\ns_memtime s[{66+2*slot}:{67+2*slot}]")
def snap(): return (k.vm_n, dict(k.vm_tags), k.vm_done, k.lg_n, dict(k.lg_tags), k.lg_done)
def rest(s): k.vm_n, k.vm_tags, k.vm_done, k.lg_n, k.lg_tags, k.lg_done = s[0], dict(s[1]), s[2], s[3], dict(s[4]), s[5]

class capture:
    def __enter__(self):
        self.save = (k.L, k.auto, k._iss, k._mf); k.L = []; k.auto = None; return self
    def __exit__(self, *a):
        self.lines = k.L; k.L, k.auto, k._iss, k._mf = self.save
def merge(main, fill, per):
    fill = list(fill)
    for m in main:
        m()
        for _ in range(per):
            if fill: k.i(fill.pop(0))
    return fill

PX, PWQ, PWO, PW1, PB1, PW2, PB2, POUT = 48, 50, 52, 56, 58, 60, 62, 46

npoll = 0
def check4(vt):
    k.i(f"v_xor_b32 v{vt}, s44, v{vt}\nv_xor_b32 v{vt+1}, s44, v{vt+1}\nv_xor_b32 v{vt+2}, s44, v{vt+2}\nv_xor_b32 v{vt+3}, s44, v{vt+3}")
    k.i(f"v_or3_b32 v{vt}, v{vt}, v{vt+1}, v{vt+2}\nv_or_b32 v{vt}, v{vt}, v{vt+3}\nv_cmp_ne_u32 vcc, 0, v{vt}")
def poll(vaddr, soff, vt, wide=False, w0=True, slp=0):
    global npoll
    npoll += 1
    L = f"poll{npoll}"
    au = k.auto; k.auto = None
    if w0: k.i(f"s_cmp_lg_u32 s20, 0\ns_cbranch_scc1 {L}d")
    if slp: k.i(f"s_sleep {slp}")
    k.i("s_mov_b32 s43, 0x20000")
    k.label(L)
    if OPT.get("apoll"):
        if wide:
            k.i(f"v_mov_b32 v{vt}, 0\nv_mov_b32 v{vt+1}, 0\nv_mov_b32 v{vt+2}, 0\nv_mov_b32 v{vt+3}, 0")
            k.i(f"buffer_atomic_or_x2 v[{vt}:{vt+1}], v{vaddr}, s[16:19], s{soff} offen sc0\nbuffer_atomic_or_x2 v[{vt+2}:{vt+3}], v{vaddr}, s[16:19], s{soff} offen offset:8 sc0\ns_waitcnt vmcnt(0)")
            check4(vt)
        else:
            k.i(f"v_mov_b32 v{vt}, 0\nbuffer_atomic_or v{vt}, v{vaddr}, s[16:19], s{soff} offen sc0\ns_waitcnt vmcnt(0)\nv_cmp_ne_u32 vcc, s44, v{vt}")
    else:
        if wide:
            k.i(f"buffer_load_dwordx4 v[{vt}:{vt+3}], v{vaddr}, s[16:19], s{soff} offen {OPT.get('ppol', 'sc1')}\ns_waitcnt vmcnt(0)")
            check4(vt)
        else:
            k.i(f"buffer_load_dword v{vt}, v{vaddr}, s[16:19], s{soff} offen {OPT.get('ppol', 'sc1')}\ns_waitcnt vmcnt(0)\nv_cmp_ne_u32 vcc, s44, v{vt}")
    k.i(f"s_cbranch_vccz {L}d")
    if O("sleep", 4): k.i(f"s_sleep {O('sleep', 4)}")
    k.i(f"s_sub_u32 s43, s43, 1\ns_cbranch_scc0 {L}")
    k.label(L + "d")
    k.auto = au
nsig = 0
def signal(mask, code, vt, dual=False):
    global nsig
    nsig += 1
    L = f"sig{nsig}"
    au = k.auto; k.auto = None
    k.i(f"s_cmp_lg_u32 s20, 1\ns_cbranch_scc1 {L}")
    k.i(code)
    if dual: k.i(f"v_mov_b32 v{vt}, s44\ns_mov_b64 exec, {mask}\nbuffer_store_dword v{vt}, v{vt+1}, s[16:19], s42 offen offset:2048")
    k.i(f"v_mov_b32 v{vt}, s44\ns_mov_b64 exec, {mask}\nbuffer_store_dword v{vt}, v{vt+1}, s[16:19], s42 offen {OPT.get('spol', 'sc1')}\ns_mov_b64 exec, -1")
    k.label(L)
    k.auto = au
def sig_all(base, vt):
    signal(0xff, f"v_lshlrev_b32 v{vt+1}, 12, v1\ns_lshr_b32 s42, s45, 3\ns_lshl_b32 s42, s42, 7\ns_and_b32 s43, s45, 7\ns_lshl_b32 s43, s43, 2\ns_add_u32 s42, s42, s43\ns_add_u32 s42, s42, {base}", vt)
def sig_row(base, vt, line, pos):
    signal(1, f"v_mov_b32 v{vt+1}, 0\n{line}\n{pos}\ns_lshl_b32 s42, s42, 7\ns_lshl_b32 s43, s43, 2\ns_add_u32 s42, s42, s43\ns_lshl_b32 s43, s26, 12\ns_add_u32 s42, s42, s43\ns_add_u32 s42, s42, {base}", vt, dual=bool(OPT.get("dual")))
ntree = 0
def poll_all(base, vt, slp):
    global ntree
    k.i(f"s_and_b32 s42, s2, 7\ns_lshl_b32 s42, s42, 12\ns_add_u32 s42, s42, {base}")
    k.i(f"v_lshrrev_b32 v{vt+4}, 1, v1\nv_lshlrev_b32 v{vt+4}, 7, v{vt+4}\nv_and_b32 v{vt}, 1, v1\nv_lshl_add_u32 v{vt+4}, v{vt}, 4, v{vt+4}")
    if not OPT.get("tree"):
        poll(vt+4, 42, vt, wide=True, slp=slp); return
    ntree += 1; L = f"tree{ntree}"
    NL = O("tree", 1)
    k.i(f"s_cmp_lg_u32 s20, 0\ns_cbranch_scc1 {L}d\ns_and_b32 s41, s2, {8*NL-1}\ns_lshl_b32 s41, s41, 7\ns_add_u32 s41, s41, {base + 0x10000}\ns_cmp_ge_u32 s2, {8*NL}\ns_cbranch_scc1 {L}m")
    poll(vt+4, 42, vt, wide=True, w0=False, slp=slp)
    k.i(f"v_mov_b32 v{vt}, s44\nv_mov_b32 v{vt+1}, 0\ns_mov_b64 exec, 1\nbuffer_store_dword v{vt}, v{vt+1}, s[16:19], s41 offen sc1\ns_mov_b64 exec, -1\ns_branch {L}d")
    k.label(L + "m")
    k.i(f"v_mov_b32 v{vt+1}, 0")
    sl = OPT.get("sleep"); OPT["sleep"] = 1
    poll(vt+1, 41, vt, w0=False)
    if sl is None: del OPT["sleep"]
    else: OPT["sleep"] = sl
    k.label(L + "d")
    k.i(f"s_mov_b32 s41, {LOG2E:#x}")
def poll_row(base, vt, slp):
    global npoll
    k.i(f"v_and_b32 v{vt+1}, 3, v1\nv_lshlrev_b32 v{vt+1}, 2, v{vt+1}\ns_lshl_b32 s42, s26, 5\ns_add_u32 s42, s42, s20\ns_lshl_b32 s42, s42, 7\ns_add_u32 s42, s42, {base}")
    if not OPT.get("dual"):
        poll(vt+1, 42, vt, w0=False, slp=slp)
    else:
        npoll += 1; L = f"poll{npoll}"
        au = k.auto; k.auto = None
        if slp: k.i(f"s_sleep {slp}")
        k.i(f"v_bfe_u32 v{vt}, v1, 2, 1\nv_lshl_add_u32 v{vt+1}, v{vt}, 11, v{vt+1}\ns_mov_b32 s43, 0x20000")
        k.label(L)
        k.i(f"""buffer_load_dword v{vt}, v{vt+1}, s[16:19], s42 offen sc1
        s_waitcnt vmcnt(0)
        v_cmp_eq_u32 vcc, s44, v{vt}
        s_lshr_b32 s41, vcc_lo, 4
        s_or_b32 s41, s41, vcc_lo
        s_and_b32 s41, s41, 15
        s_cmp_eq_u32 s41, 15
        s_cbranch_scc1 {L}d
        s_sleep {O('sleepd', 2)}
        s_sub_u32 s43, s43, 1
        s_cbranch_scc0 {L}""")
        k.label(L + "d")
        k.auto = au
    k.vm_done = k.vm_n

class BG:
    def __init__(self): self.q = []
    def add(self, ins, tag=None, pre="", post=""): self.q.append((pre, ins, post, tag))
    def go(self, n=1):
        for _ in range(n):
            if self.q:
                pre, ins, post, tag = self.q.pop(0)
                if OPT.get("nobg") and tag is not None and tag[:2] in ("wo", "w1", "w2"):
                    k.vm_tags[tag] = -1; continue
                k.i(pre); k.vm(ins, tag); k.i(post)
    def left(self): return len(self.q)

def phi4(a, dst, T):
    k.i(f"v_pk_mul_f32 v[{T}:{T+1}], v[{a}:{a+1}], s[40:41]")
    k.i(f"v_pk_mul_f32 v[{T+2}:{T+3}], v[{a+2}:{a+3}], s[40:41]")
    for j in range(4): k.i(f"v_exp_f32_e64 v{T+j}, v{T+j} clamp")
    for j in range(4): k.i(f"v_max_f32 v{T+4+j}, 0, v{a+j}")
    k.i(f"v_pk_add_f32 v[{T}:{T+1}], v[{T}:{T+1}], s[38:39]")
    k.i(f"v_pk_add_f32 v[{T+2}:{T+3}], v[{T+2}:{T+3}], s[38:39]")
    k.i(f"v_pk_add_f32 v[{T}:{T+1}], v[{T}:{T+1}], v[{T+4}:{T+5}]")
    k.i(f"v_pk_add_f32 v[{T+2}:{T+3}], v[{T+2}:{T+3}], v[{T+6}:{T+7}]")
    k.i(f"v_cvt_pk_bf16_f32 v{dst}, v{T}, v{T+1}")
    k.i(f"v_cvt_pk_bf16_f32 v{dst+1}, v{T+2}, v{T+3}")

ROWOFF = [[0, 4, 20, 24, 8], [12, 16, 28, 32, 36]]

def phase0():
    cold = OPT["cold"]
    stamp(0)
    k.i(f"""s_load_dwordx16 s[48:63], s[0:1], 0
    s_load_dwordx2 s[14:15], s[0:1], 80
    s_load_dwordx2 s[46:47], s[0:1], 64
    s_getpc_b64 s[4:5]
    pcl:
    s_cmp_ge_u32 s2, 256
    s_cbranch_scc1 kend
    s_lshr_b32 s25, s2, 3
    s_and_b32 s6, s25, 7
    s_lshl_b32 s6, s6, 13
    v_lshl_add_u32 v30, v0, 7, s6
    v_min_u32 v30, kend-pcl, v30
    v_cmp_gt_u32 vcc, 64, v0
    v_and_b32 v1, 63, v0
    v_lshrrev_b32 v2, 6, v0
    s_and_saveexec_b64 s[6:7], vcc
    s_cbranch_execz p0_nopf
    {'s_nop 0' if OPT.get('nopf') else 'global_load_dword v31, v30, s[4:5]'}
    p0_nopf:
    s_mov_b64 exec, s[6:7]
    v_lshlrev_b32 v3, 4, v1
    v_readfirstlane_b32 s20, v2
    s_and_b32 s24, s2, 7
    s_lshr_b32 s26, s24, 1
    s_lshl_b32 s26, s26, 2
    s_lshr_b32 s27, s25, 3
    s_add_u32 s26, s26, s27
    s_and_b32 s27, s24, 1
    s_lshl_b32 s27, s27, 3
    s_and_b32 s25, s25, 7
    s_add_u32 s27, s27, s25
    s_lshl_b32 s45, s26, 4
    s_add_u32 s45, s45, s27
    v_bfe_u32 v28, v1, 2, 2
    v_and_b32 v29, 3, v1
    s_cmp_ge_u32 s45, 128
    s_cbranch_scc1 p0_w""")
    X = 8; F = 32
    k.i(f"""v_lshrrev_b32 v4, 4, v0
    v_and_b32 v5, 15, v0
    s_lshl_b32 s21, s45, 4
    v_add_u32 v6, s21, v4
    v_mul_u32_u24 v6, 1280, v6
    v_lshl_add_u32 v6, v5, 4, v6
    s_mov_b32 s10, 2621440
    s_mov_b32 s11, 0x20000
    s_waitcnt lgkmcnt(0)
    s_mov_b32 s8, s{PX}
    s_mov_b32 s9, s{PX+1}""")
    stamp(9, "p0")
    for i in range(5):
        k.i(f"buffer_load_dwordx4 v[{X+4*i}:{X+4*i+3}], v6, s[8:11], 0 offen offset:{256*i} {OPT.get('coldx', cold)}")
    stamp(5, "p0")
    k.i(f"s_load_dword s44, s[14:15], {CB}")
    srd(16, 14, WSZ)
    k.i(f"""s_lshr_b32 s21, s45, 1
    s_mul_i32 s21, s21, 40960
    s_and_b32 s22, s45, 1
    s_lshl_b32 s22, s22, 8
    s_add_u32 s21, s21, s22
    s_add_u32 s21, s21, {XN}
    v_lshrrev_b32 v7, 1, v5
    v_lshlrev_b32 v7, 10, v7
    v_and_b32 v6, 1, v5
    v_lshlrev_b32 v6, 9, v6
    v_lshl_add_u32 v7, v4, 4, v7
    v_add_u32 v7, v7, v6
    s_mov_b32 s23, 0xffff0000
    s_mov_b32 s22, 0x3f803f80
    v_mov_b32 v112, 0
    v_mov_b32 v113, 0
    v_mov_b32 v114, 0
    v_mov_b32 v115, 0
    v_lshrrev_b32 v30, 4, v1""")
    for i in range(5):
        k.i(f"s_waitcnt vmcnt({4-i})")
        if i == 0: stamp(7, "p0")
        for j in range(4*i, 4*i+4):
            k.i(f"v_dot2_f32_bf16 v{112+2*(j&1)}, v{X+j}, s22, v{112+2*(j&1)}")
            k.i(f"v_dot2_f32_bf16 v{113+2*(j&1)}, v{X+j}, v{X+j}, v{113+2*(j&1)}")
    unp = []
    for j in range(20): unp += [f"v_lshlrev_b32 v{F+2*j}, 16, v{X+j}", f"v_and_b32 v{F+2*j+1}, s23, v{X+j}"]
    def U(n):
        for _ in range(n):
            if unp: k.i(unp.pop(0))
    U(3)
    k.i("v_pk_add_f32 v[112:113], v[112:113], v[114:115]")
    for s in (8, 4, 2, 1):
        U(2)
        k.i(f"v_add_f32_dpp v112, v112, v112 row_ror:{s} row_mask:0xf bank_mask:0xf")
        k.i(f"v_add_f32_dpp v113, v113, v113 row_ror:{s} row_mask:0xf bank_mask:0xf")
    k.i("v_mul_f32 v112, 0x3acccccd, v112\nv_mul_f32 v113, 0x3acccccd, v113\nv_fma_f32 v113, -v112, v112, v113\nv_max_f32 v113, 0, v113")
    bf16r(112, 112); bf16r(113, 113)
    k.i("v_add_f32 v113, 0x3727c5ac, v113")
    bf16r(113, 113)
    k.i("v_sqrt_f32 v113, v113"); U(1)
    bf16r(113, 113)
    k.i("v_rcp_f32 v114, v113")
    U(99)
    Y = 72
    for j in range(20): k.i(f"v_pk_add_f32 v[{F+2*j}:{F+2*j+1}], v[{F+2*j}:{F+2*j+1}], v[112:113] op_sel_hi:[1,0] neg_lo:[0,1] neg_hi:[0,1]")
    for j in range(20): k.i(f"v_cvt_pk_bf16_f32 v{Y+j}, v{F+2*j}, v{F+2*j+1}")
    for j in range(20): k.i(f"v_lshlrev_b32 v{F+2*j}, 16, v{Y+j}\nv_and_b32 v{F+2*j+1}, s23, v{Y+j}")
    for i in range(5):
        for j in range(4*i, 4*i+4):
            k.i(f"v_pk_mul_f32 v[{F+2*j}:{F+2*j+1}], v[{F+2*j}:{F+2*j+1}], v[114:115] op_sel_hi:[1,0]")
        for j in range(4*i, 4*i+4):
            k.i(f"v_cvt_pk_bf16_f32 v{Y+j}, v{F+2*j}, v{F+2*j+1}")
        k.i(f"buffer_store_dwordx4 v[{Y+4*i}:{Y+4*i+3}], v7, s[16:19], s21 offen {HO}")
        if i < 4: k.i("s_add_u32 s21, s21, 8192")
    k.i("s_branch p0_drain")
    k.label("p0_w")
    m, sh = magic(80, 320)
    k.i(f"""s_cmp_ge_u32 s45, 248
    s_cbranch_scc1 p0_zero
    s_sub_u32 s21, s45, 128
    s_mul_i32 s30, s21, 171
    s_lshr_b32 s30, s30, 9
    s_mul_i32 s31, s30, 3
    s_sub_u32 s31, s21, s31
    s_mul_i32 s21, s30, 61440
    s_mul_i32 s22, s31, 1280
    s_add_u32 s21, s21, s22
    s_lshl_b32 s22, s20, 2
    s_mul_i32 s23, s20, 5120
    s_mov_b32 s10, 2457600
    s_mov_b32 s11, 0x20000""")
    for i in range(5):
        k.i(f"""v_add_u32 v4, {64*i}, v1
        v_mul_u32_u24 v5, {m}, v4
        v_lshrrev_b32 v5, {sh}, v5
        v_mul_u32_u24 v6, 80, v5
        v_sub_u32 v6, v4, v6
        v_lshlrev_b32 v6, 4, v6
        v_lshlrev_b32 v7, 6, v5
        v_add_u32 v5, s22, v5
        v_mul_u32_u24 v5, 3840, v5
        v_xad_u32 v{12+i}, v6, v7, v5""")
    k.i(f"s_waitcnt lgkmcnt(0)\ns_mov_b32 s8, s{PWQ}\ns_mov_b32 s9, s{PWQ+1}")
    stamp(9, "p0")
    for i in range(5):
        k.i(f"s_add_u32 m0, s23, {1024*i}\nbuffer_load_dwordx4 v{12+i}, s[8:11], s21 offen {cold} lds")
    stamp(5, "p0")
    k.i(f"s_load_dword s44, s[14:15], {CB}")
    srd(16, 14, WSZ)
    k.i(f"""v_lshrrev_b32 v30, 4, v1
    v_lshrrev_b32 v4, 1, v30
    v_lshl_add_u32 v4, v4, 3, v28
    v_mul_u32_u24 v4, 1280, v4
    v_and_b32 v5, 1, v30
    v_lshlrev_b32 v5, 5, v5
    v_lshl_add_u32 v5, v29, 3, v5
    v_lshlrev_b32 v6, 6, v28
    s_lshl_b32 s21, s30, 12
    s_add_u32 s21, s21, {WQ}
    s_cmp_lg_u32 s31, 0
    s_cbranch_scc1 p0_wkv
    s_lshl_b32 s22, s20, 6
    v_add_u32 v5, s22, v5
    v_xad_u32 v7, v5, v6, v4
    s_lshl_b32 s22, s20, 10
    s_add_u32 s21, s21, s22
    s_add_u32 s21, s21, {11*163840}
    s_waitcnt vmcnt(0)""")
    stamp(7, "p0")
    k.i("s_barrier")
    for m_ in range(5):
        r = 32 + 4*m_
        k.lg(f"ds_read_b64_tr_b16 v[{r}:{r+1}], v7 offset:{256*m_}")
        k.lg(f"ds_read_b64_tr_b16 v[{r+2}:{r+3}], v7 offset:{256*m_+4*1280}", f"q{m_}")
    for m_ in range(5):
        r = 32 + 4*m_
        k.wait(lg=f"q{m_}")
        k.i(f"buffer_store_dwordx4 v[{r}:{r+3}], v3, s[16:19], s21 offen {HO}\ns_add_u32 s21, s21, 163840")
    k.i("s_branch p0_drain")
    k.label("p0_wkv")
    k.i("""s_and_b32 s22, s20, 1
    s_lshr_b32 s23, s20, 1
    s_lshl_b32 s24, s22, 6
    s_mul_i32 s25, s23, 120
    s_add_u32 s24, s24, s25
    v_add_u32 v5, s24, v5
    s_lshl_b32 s24, s31, 1
    s_add_u32 s24, s24, s22
    s_sub_u32 s24, s24, 2
    s_lshl_b32 s24, s24, 10
    s_add_u32 s21, s21, s24
    s_mul_i32 s24, s23, 163840
    s_add_u32 s21, s21, s24""")
    for i in range(6):
        k.i(f"v_add_u32 v{12+i}, {240*i}, v5\nv_min_u32 v{12+i}, 1272, v{12+i}\nv_xad_u32 v{12+i}, v{12+i}, v6, v4")
    k.i("s_waitcnt vmcnt(0)")
    stamp(7, "p0")
    k.i("s_barrier")
    for i in range(6):
        r = 32 + 4*i
        k.lg(f"ds_read_b64_tr_b16 v[{r}:{r+1}], v{12+i}")
        k.lg(f"ds_read_b64_tr_b16 v[{r+2}:{r+3}], v{12+i} offset:{4*1280}", f"kv{i}")
    for i in range(6):
        r = 32 + 4*i
        if i == 5: k.i("s_cmp_lg_u32 s23, 0\ns_cbranch_scc1 p0_drain")
        k.wait(lg=f"kv{i}")
        k.i(f"buffer_store_dwordx4 v[{r}:{r+3}], v3, s[16:19], s21 offen {HO}\ns_add_u32 s21, s21, 327680")
    k.i("s_branch p0_drain")
    k.label("p0_zero")
    k.i(f"""s_sub_u32 s21, s45, 248
    s_mul_i32 s21, s21, 6720
    s_add_u32 s21, s21, {KVA}
    v_lshlrev_b32 v4, 4, v0
    v_mov_b32 v8, 0
    v_mov_b32 v9, 0
    v_mov_b32 v10, 0
    v_mov_b32 v11, 0
    v_lshrrev_b32 v30, 4, v1
    s_mov_b32 s10, 6720
    s_mov_b32 s11, 0x20000
    s_waitcnt lgkmcnt(0)
    s_add_u32 s8, s14, s21
    s_addc_u32 s9, s15, 0
    buffer_store_dwordx4 v[8:11], v4, s[8:11], 0 offen {HO}
    v_add_u32 v4, 4096, v4
    buffer_store_dwordx4 v[8:11], v4, s[8:11], 0 offen {HO}
    s_load_dword s44, s[14:15], {CB}""")
    stamp(9, "p0"); stamp(5, "p0"); stamp(7, "p0")
    srd(16, 14, WSZ)
    k.label("p0_drain")
    stamp(1)
    k.i("s_waitcnt vmcnt(0) lgkmcnt(0)\ns_add_u32 s44, s44, 1\ns_barrier")
    k.reset_counts()
    stamp(2)
    sig_all(F0, 4)
    if OPT.get("xc"): k.i(f"""s_cmp_ge_u32 s45, 128
    s_cbranch_scc1 p0_noxc
    s_add_u32 s21, s21, {XC - XN - 4*8192}""")
    for i in range(5 if OPT.get("xc") else 0):
        k.i(f"buffer_store_dwordx4 v[{X+4*i}:{X+4*i+3}], v7, s[16:19], s21 offen {HO}\ns_add_u32 s21, s21, 8192")
    k.label("p0_noxc")
    k.i(f"""s_cmp_lg_u32 s20, 2
    s_cbranch_scc1 p0_nob
    v_lshlrev_b32 v4, 7, v1
    v_min_u32 v5, 3068, v4
    v_min_u32 v4, 1276, v4
    global_load_dword v31, v5, s[{PB1}:{PB1+1}]
    global_load_dword v31, v4, s[{PB2}:{PB2+1}]""")
    k.label("p0_nob")
    UN = 0 if OPT.get("nounit") else 232
    k.i(f"""s_cmp_ge_u32 s45, {UN}
    s_cbranch_scc1 p0_uid
    s_sub_u32 s23, s20, 1
    s_mul_i32 s22, s23, 7168
    s_cmp_ge_u32 s45, 136
    s_cbranch_scc1 p0_ui_w2
    s_cmp_ge_u32 s45, 40
    s_cbranch_scc1 p0_ui_w1""")
    srd(8, PWO, 819200)
    k.i("""s_mul_i32 s35, s45, 26
    s_lshr_b32 s35, s35, 8
    s_mul_i32 s36, s35, 10
    s_sub_u32 s36, s45, s36
    s_mul_i32 s21, s35, 204800
    s_movk_i32 s29, 1280
    s_branch p0_ui_128""")
    k.label("p0_ui_w1")
    srd(8, PW1, 1966080)
    k.i("""s_sub_u32 s34, s45, 40
    s_mul_i32 s35, s34, 43
    s_lshr_b32 s35, s35, 10
    s_mul_i32 s36, s35, 24
    s_sub_u32 s36, s34, s36
    s_mul_i32 s21, s35, 491520
    s_movk_i32 s29, 3072""")
    k.label("p0_ui_128")
    k.i(f"""s_cmp_eq_u32 s20, 0
    s_cbranch_scc1 p0_uid
    s_lshl_b32 s24, s36, 7
    s_add_u32 s21, s21, s24
    v_lshrrev_b32 v4, 3, v1
    s_mul_i32 s24, s23, 56
    v_add_u32 v4, s24, v4
    v_and_b32 v5, 7, v1
    v_lshlrev_b32 v5, 4, v5
    v_and_b32 v6, 2, v4
    v_lshlrev_b32 v6, 5, v6
    v_mul_lo_u32 v4, v4, s29
    v_xad_u32 v4, v5, v6, v4
    s_lshl_b32 s29, s29, 3""")
    for i in range(7):
        k.i(f"s_add_u32 m0, s22, {UL+1024*i}\nbuffer_load_dwordx4 v4, s[8:11], s21 offen {cold} lds\ns_add_u32 s21, s21, s29")
    k.i("s_branch p0_uid")
    k.label("p0_ui_w2")
    srd(8, PW2, 1966080)
    m, sh = magic(40, 1344)
    k.i("""s_sub_u32 s34, s45, 136
    s_lshr_b32 s35, s34, 1
    s_and_b32 s36, s34, 1
    s_cmp_eq_u32 s20, 0
    s_cbranch_scc1 p0_uid
    s_mul_i32 s21, s35, 40960
    s_mul_i32 s24, s36, 640
    s_add_u32 s21, s21, s24
    s_mul_i32 s24, s23, 448
    v_add_u32 v8, s24, v1""")
    for i in range(7):
        k.i(f"""v_add_u32 v4, {64*i}, v8
        v_mul_u32_u24 v5, {m}, v4
        v_lshrrev_b32 v5, {sh}, v5
        v_mul_u32_u24 v6, 40, v5
        v_sub_u32 v6, v4, v6
        v_lshlrev_b32 v6, 4, v6
        v_and_b32 v7, 2, v5
        v_lshlrev_b32 v7, 4, v7
        v_and_b32 v9, 16, v5
        v_lshl_or_b32 v7, v9, 2, v7
        v_mul_u32_u24 v5, 1280, v5
        v_xad_u32 v4, v6, v7, v5
        s_add_u32 m0, s22, {UL+1024*i}
        buffer_load_dwordx4 v4, s[8:11], s21 offen {cold} lds""")
    k.label("p0_uid")

def unit_proc(sfx):
    UN = 0 if OPT.get("nounit") else 232
    D0 = 32
    k.i(f"""s_cmp_ge_u32 s45, {UN}
    s_cbranch_scc1 up_end{sfx}
    s_cmp_ge_u32 s45, 136
    s_cbranch_scc1 up_w2{sfx}
    s_and_b32 s6, s20, 1
    s_lshr_b32 s7, s20, 1
    s_lshl_b32 s37, s36, 1
    s_add_u32 s37, s37, s6
    s_cmp_ge_u32 s45, 40
    s_cbranch_scc1 up_w1{sfx}""")
    k.i(f"""v_and_b32 v52, 1, v30
    v_lshrrev_b32 v53, 1, v29
    v_lshl_add_u32 v52, v52, 1, v53
    v_add_u32 v52, s35, v52
    v_and_b32 v52, 3, v52
    v_lshlrev_b32 v52, 4, v52
    v_and_b32 v53, 1, v29
    v_lshl_add_u32 v52, v53, 3, v52
    s_lshl_b32 s24, s6, 6
    v_add_u32 v52, s24, v52
    v_and_b32 v53, 2, v28
    v_lshlrev_b32 v53, 5, v53
    v_xor_b32 v52, v52, v53
    v_lshl_add_u32 v52, v28, 7, v52
    s_mul_i32 s24, s7, 10240
    s_add_u32 s24, s24, {UL}
    v_add_u32 v52, s24, v52
    v_lshrrev_b32 v54, 5, v1
    v_lshlrev_b32 v54, 4, v54
    s_mul_i32 s24, s37, 205
    s_lshr_b32 s24, s24, 10
    s_mul_i32 s25, s24, 5
    s_sub_u32 s25, s37, s25
    s_lshl_b32 s24, s24, 2
    s_add_u32 s24, s24, s35
    s_mul_i32 s24, s24, 10
    s_mul_i32 s4, s7, 5
    s_add_u32 s24, s24, s4
    s_mul_i32 s24, s24, 5
    s_add_u32 s24, s24, s25
    s_lshl_b32 s24, s24, 10
    s_add_u32 s24, s24, {WO}""")
    for uu in range(5):
        for h2 in range(2):
            m_ = 2*uu + h2
            K = 0
            for hi in range(2): K |= ((40*(m_//5) + ROWOFF[hi][m_ % 5]) * 128) << (16*hi)
            r = D0 + 4*uu + 2*h2
            k.i(f"s_mov_b32 s25, {K:#x}\nv_bfe_u32 v55, s25, v54, 16\nv_add_u32 v55, v55, v52")
            k.lg(f"ds_read_b64_tr_b16 v[{r}:{r+1}], v55", f"uo{uu}")
    for uu in range(5):
        r = D0 + 4*uu
        k.wait(lg=f"uo{uu}")
        k.i(f"buffer_store_dwordx4 v[{r}:{r+3}], v3, s[16:19], s24 offen {HO}\ns_add_u32 s24, s24, 5120")
    k.i(f"s_branch up_end{sfx}")
    k.label(f"up_w1{sfx}")
    k.i(f"""v_lshrrev_b32 v52, 1, v30
    v_lshl_add_u32 v52, v52, 3, v28
    v_and_b32 v53, 1, v30
    v_lshlrev_b32 v53, 5, v53
    v_lshl_add_u32 v53, v29, 3, v53
    s_lshl_b32 s24, s6, 6
    v_add_u32 v53, s24, v53
    v_and_b32 v54, 2, v28
    v_lshlrev_b32 v54, 5, v54
    v_lshlrev_b32 v52, 7, v52
    v_xad_u32 v52, v53, v54, v52
    s_mul_i32 s24, s7, 10240
    s_add_u32 s24, s24, {UL}
    v_add_u32 v52, s24, v52
    v_mov_b32 v56, 0
    s_mov_b32 s4, 0x3f803f80
    s_mul_i32 s24, s37, 171
    s_lshr_b32 s24, s24, 9
    s_mul_i32 s25, s24, 3
    s_sub_u32 s25, s37, s25
    s_mul_i32 s24, s24, 40
    s_mul_i32 s5, s35, 10
    s_add_u32 s24, s24, s5
    s_mul_i32 s5, s7, 5
    s_add_u32 s24, s24, s5
    s_mul_i32 s24, s24, 3
    s_add_u32 s24, s24, s25
    s_lshl_b32 s24, s24, 10
    s_add_u32 s24, s24, {W1}""")
    for ks in range(5):
        r = D0 + 4*ks
        k.lg(f"ds_read_b64_tr_b16 v[{r}:{r+1}], v52 offset:{ks*2048}")
        k.lg(f"ds_read_b64_tr_b16 v[{r+2}:{r+3}], v52 offset:{ks*2048+512}", f"u1{ks}")
    for ks in range(5):
        r = D0 + 4*ks
        k.wait(lg=f"u1{ks}")
        k.i(f"buffer_store_dwordx4 v[{r}:{r+3}], v3, s[16:19], s24 offen {HO}\ns_add_u32 s24, s24, 3072")
        for j in range(4): k.i(f"v_dot2_f32_bf16 v56, v{r+j}, s4, v56")
    k.i(f"""s_nop 2
    v_mov_b32 v57, v56
    s_lshl_b32 s24, s35, 1
    s_add_u32 s24, s24, s7
    v_permlane32_swap_b32 v56, v57
    s_mul_i32 s24, s24, 6144
    s_lshl_b32 s25, s37, 7
    s_add_u32 s24, s24, s25
    s_add_u32 s24, s24, {CS}
    v_add_f32 v56, v56, v57
    v_lshlrev_b32 v57, 2, v1
    s_mov_b64 exec, 0xffffffff
    buffer_store_dword v56, v57, s[16:19], s24 offen {HO}
    s_mov_b64 exec, -1
    s_branch up_end{sfx}""")
    k.label(f"up_w2{sfx}")
    k.i(f"""v_and_b32 v52, 1, v30
    v_lshlrev_b32 v52, 4, v52
    v_lshrrev_b32 v53, 1, v30
    v_lshl_add_u32 v52, v53, 2, v52
    v_add_u32 v52, v52, v28
    v_and_b32 v54, 2, v52
    v_lshlrev_b32 v54, 4, v54
    v_and_b32 v55, 16, v52
    v_lshl_or_b32 v54, v55, 2, v54
    v_mul_u32_u24 v52, 640, v52
    v_add_u32 v52, {UL}, v52
    s_mul_i32 s24, s20, 160
    v_lshl_add_u32 v53, v29, 3, s24
    s_lshl_b32 s24, s36, 2
    s_add_u32 s24, s24, s20
    s_mul_i32 s24, s24, 48
    s_add_u32 s24, s24, s35
    s_mul_i32 s24, s24, 5120
    s_add_u32 s24, s24, {W2}""")
    for m_ in range(5):
        r = D0 + 4*m_
        k.i(f"v_add_u32 v55, {32*m_}, v53\nv_xad_u32 v55, v55, v54, v52")
        k.lg(f"ds_read_b64_tr_b16 v[{r}:{r+1}], v55")
        k.lg(f"ds_read_b64_tr_b16 v[{r+2}:{r+3}], v55 offset:{8*640}", f"u2{m_}")
    for m_ in range(5):
        r = D0 + 4*m_
        k.wait(lg=f"u2{m_}")
        k.i(f"buffer_store_dwordx4 v[{r}:{r+3}], v3, s[16:19], s24 offen {HO}\ns_add_u32 s24, s24, 1024")
    k.label(f"up_end{sfx}")

WOR = [160 + 4*f for f in range(21)] + [44 + 4*f for f in range(29)]
PQA = 0; XA = 244
W2R = WOR + list(range(0, 40, 4))
TBV = 244
WOB = None; XQ = None
def phase1():
    global WOB
    k.i(f"""v_add_u32 v4, 0x10000, v3
    v_add_u32 v5, 0x20000, v3
    s_lshl_b32 s28, s26, 2
    s_add_u32 s28, s28, s20
    s_mul_i32 s21, s28, 40960
    s_add_u32 s21, s21, {XN}
    s_lshl_b32 s23, s20, 12
    s_mul_i32 s22, s27, 163840
    s_add_u32 s22, s22, s23
    s_add_u32 s22, s22, {WQ}
    s_mov_b32 s40, {LOG2E:#x}
    s_mov_b32 s41, {LOG2E:#x}
    s_mov_b32 s38, 0x358637bd
    s_mov_b32 s39, 0x358637bd""")
    if OPT.get("mapb"):
        k.i(f"""s_and_b32 s{PWQ}, s2, 7
        s_lshl_b32 s{PWQ}, s{PWQ}, 1
        s_lshr_b32 s33, s2, 7
        s_add_u32 s{PWQ}, s{PWQ}, s33
        s_bfe_u32 s{PWQ+1}, s2, 0x40003
        s_and_b32 s13, s{PWQ+1}, 7
        s_lshr_b32 s12, s{PWQ+1}, 3
        s_lshl_b32 s31, s{PWQ}, 1
        s_add_u32 s12, s12, s31
        s_lshl_b32 s31, s{PWQ}, 2
        s_lshr_b32 s29, s{PWQ+1}, 2
        s_add_u32 s29, s29, s31
        s_and_b32 s30, s{PWQ+1}, 3""")
    else:
        k.i(f"""s_mov_b32 s{PWQ}, s26
        s_mov_b32 s{PWQ+1}, s27
    s_lshr_b32 s33, s27, 3
        s_lshl_b32 s13, s33, 2
        s_and_b32 s12, s27, 3
        s_add_u32 s13, s13, s12
        s_bfe_u32 s12, s27, 0x10002
        s_lshl_b32 s31, s26, 1
        s_add_u32 s12, s12, s31
        s_lshl_b32 s31, s26, 2
        s_bfe_u32 s29, s27, 0x20001
        s_add_u32 s29, s29, s31
        s_lshl_b32 s30, s33, 1
        s_and_b32 s33, s27, 1
        s_add_u32 s30, s30, s33""")
    k.i(f"""    s_lshl_b32 s31, s30, 2
    s_add_u32 s31, s31, s20
    s_mul_i32 s31, s31, 51200
    s_add_u32 s31, s31, {WO}
""")
    k.i(f"""v_and_b32 v24, 31, v1
    v_lshlrev_b32 v24, 4, v24
    v_lshrrev_b32 v25, 5, v1
    v_lshl_add_u32 v24, v25, 3, v24
    s_mul_i32 s3, s29, 40
    s_mul_i32 s33, s30, 10
    s_add_u32 s3, s3, s33
    s_lshr_b32 s33, s20, 1
    s_add_u32 s3, s3, s33
    s_lshl_b32 s3, s3, 10
    s_and_b32 s33, s20, 1
    s_lshl_b32 s33, s33, 9
    s_add_u32 s3, s3, s33
    s_add_u32 s3, s3, {XC}
""" if OPT.get("xc") else """v_and_b32 v24, 31, v1
    s_lshl_b32 s33, s29, 5
    v_add_u32 v24, s33, v24
    v_mul_u32_u24 v24, 1280, v24
    v_lshrrev_b32 v25, 5, v1
    v_lshl_add_u32 v24, v25, 3, v24
    s_mul_i32 s3, s30, 320
    s_lshl_b32 s34, s20, 4
    s_add_u32 s3, s3, s34
""")
    k.i(f"""v_lshlrev_b32 v26, 2, v0
    v_lshlrev_b32 v27, 1, v0
    s_mul_i32 s33, s{PWQ+1}, 192
    s_add_u32 s{PB1}, s{PB1}, s33
    s_addc_u32 s{PB1+1}, s{PB1+1}, 0
    s_mul_i32 s{PW1}, s{PWQ+1}, 384
    s_add_u32 s{PW1}, s{PW1}, {CS}""")
    XM = OPT.get("xm", "early")
    def xloads(pol):
        for c in range(5):
            k.i(f"global_load_dwordx2 a[{XA+2*c}:{XA+2*c+1}], v24, s[{PX}:{PX+1}] offset:{64*c} {pol}")
    k.i("v_add_u32 v24, s3, v24")
    if XM == "early": xloads(OPT.get('xpol', 'nt'))
    elif XM == "mix":
        k.i("s_cmp_eq_u32 s20, 0\ns_cbranch_scc1 p1_nox")
        xloads(OPT.get('xpol', ''))
        k.label("p1_nox")
    k.i(f"v_min_u32 v27, 190, v27")
    poll_all(F0, 8, O("slp0", 16))
    k.i("s_barrier")
    stamp(4)
    ACC = 64; WB = 128; T = 8; PK = 176; FB0 = 20; NS = 12; AH = 8
    PRE = O("pre1", 3)
    Q = BG()
    for s in range(10):
        for j in range(4):
            Q.add(f"buffer_load_dwordx4 v3, s[16:19], s22 offen offset:{1024*j} {HO} lds", f"W{s}",
                  pre=(f"s_add_u32 m0, s23, {s*16384}" if j == 0 else ""), post=("s_add_u32 s22, s22, 16384" if j == 3 else ""))
        for j in range(4):
            Q.add(f"buffer_load_dwordx4 a[{16*s+4*j}:{16*s+4*j+3}], v3, s[16:19], s21 offen offset:{1024*j} {HO}", f"X{4*s+j}",
                  post=("s_add_u32 s21, s21, 4096" if j == 3 else ""))
    Q.go(8*PRE)
    k.wait(vm="W0"); k.i("s_barrier")
    sv0 = snap(); unit_proc(""); rest(sv0)
    stamp(3)
    k.i("s_cmp_ge_u32 s27, 11\ns_cbranch_scc1 p1_q")
    sv = snap(); Qs = list(Q.q)
    def mkbg():
        B = BG()
        for i in range(50):
            B.add(f"buffer_load_dwordx4 a[{WOR[i]}:{WOR[i]+3}], v3, s[16:19], s31 offen offset:{1024*(i%4)} {HO}", f"wo{i}", post=("s_add_u32 s31, s31, 4096" if i % 4 == 3 else ""))
        return B
    def small():
        S = BG()
        global XQ
        X_ = XQ = BG()
        for j in range(8):
            S.add(f"buffer_load_dword v{TBV+j}, v26, s[16:19], s{PW1} offen {HO}", post=f"s_add_u32 s{PW1}, s{PW1}, 6144")
        for c in range(5):
            if OPT.get("xc"): S.add(f"buffer_load_dwordx2 a[{XA+2*c}:{XA+2*c+1}], v24, s[16:19], s3 offen offset:{2048*(c%2)} {HO}", post=("s_add_u32 s3, s3, 4096" if c % 2 else ""))
        return S
    NPRE = O("wo_pre", 20)
    def loop(act_first, order_tail, fill_after, B, sfx):
        items = [(ks, j) for ks in range(40 - len(order_tail)//4) for j in range(4)] + order_tail
        first = {}
        for n_, (ks_, j_) in enumerate(items): first.setdefault(ks_//4, n_)
        NCHK = 2*(80 - 8*PRE) + O("chk", 0)
        def rd(n):
            ks, j = items[n]
            if ks >= 4 and first[ks//4] == n:
                k.wait(vm=f"W{ks//4}"); k.i("s_barrier")
                if ks//4 == PRE + 1:
                    signal(1, f"v_mov_b32 v7, 0\ns_lshl_b32 s42, s45, 2\ns_add_u32 s42, s42, {F0B}", 6)
            o = (ks*4 + j) * 1024
            r = WB + 4*(n % NS)
            k.lg(f"ds_read_b128 v[{r}:{r+3}], v{3 + o//65536} offset:{o % 65536}", f"w{n}")
        for n in range(AH): rd(n)
        fill = []
        for n, (ks, j) in enumerate(items):
            if n % 2 == 0:
                k.wait(vm=f"X{max(items[n][0], items[n+1][0])}", lg=f"w{n+1}")
                if n % 16 == 0: stamp(8 + n//16, "p1")
            w = vr(WB + 4*(n % NS), 4); x = ar(4*ks, 4); d = vr(ACC + 16*j, 16)
            c = "0" if ks == 0 else d
            k.i(f"v_mfma_f32_32x32x16_bf16 {d}, {x}, {w}, {c}" if act_first else f"v_mfma_f32_32x32x16_bf16 {d}, {w}, {x}, {c}")
            if n % 2 == 0:
                if Q.left(): Q.go()

            else:
                for m_ in (n - 1 + AH, n + AH):
                    if m_ < 160: rd(m_)
            if n == NCHK - 16:
                k.i(f"s_mov_b32 s42, {F0B}")
                k.vm(f"buffer_load_dwordx4 v[{FB0}:{FB0+3}], v3, s[16:19], s42 offen sc1", "f0b")
            if n == NCHK:
                k.wait(vm="f0b")
                check4(FB0)
                k.i(f"s_cbranch_vccz p1_ok{sfx}\ns_mov_b32 s42, {F0B}")
                poll(3, 42, FB0, wide=True, w0=False)
                k.label(f"p1_ok{sfx}")
                SQ[0] = small()
                lim[0] = min(21, NPRE); k.th = O("th1", 96)
                k.auto = lambda: B.go() if 50 - B.left() < lim[0] else None
            if n in fill_after: fill += fill_after[n]
            for _ in range(6):
                if fill: k.i(fill.pop(0))
        lim[0] = NPRE; k.th = O("th1e", 90)
        for l in fill: k.i(l)
    lim = [0]; SQ = [None]
    def phi_lines(t):
        with capture() as c:
            for b in range(0, 16, 4): phi4(ACC + 16*t + b, PK + 8*t + b//2, T)
        return c.lines
    TL = O("tl1", 4)
    tail = [(ks, j) for ks in range(40-TL, 40) for j in (0, 1)] + [(ks, j) for ks in range(40-TL, 40) for j in (2, 3)]
    B = mkbg()
    loop(True, tail, {161 - 2*TL: phi_lines(0) + phi_lines(1)}, B, "kv")
    stamp(5)
    k.i("s_lshl_b32 s33, s20, 13\nv_add_u32 v6, s33, v3")
    for t in (0, 1):
        for f in range(2):
            k.lg(f"ds_write_b128 v6, v[{PK+8*t+4*f}:{PK+8*t+4*f+3}] offset:{2048*t+1024*f}")
    for t in (2, 3):
        for p in range(8):
            k.i(f"v_cvt_pk_bf16_f32 v{PK+8*t+p}, v{ACC+16*t+2*p}, v{ACC+16*t+2*p+1}")
        if t == 3:
            k.i("s_mov_b32 s34, 0xf0000000\ns_mov_b32 s35, 0xf0000000\nv_mov_b32 v7, 0x3f803f80")
            for p in range(8): k.i(f"v_cndmask_b32 v{PK+24+p}, v{PK+24+p}, v7, s[34:35]")
        for f in range(2):
            k.lg(f"ds_write_b128 v6, v[{PK+8*t+4*f}:{PK+8*t+4*f+3}] offset:{2048*t+1024*f}")
    k.i("""s_lshr_b32 s33, s20, 1
    s_and_b32 s34, s20, 1
    s_lshl_b32 s35, s33, 11
    v_add_u32 v8, s35, v3
    s_lshl_b32 s35, s34, 11
    s_add_u32 s35, s35, 4096
    v_add_u32 v9, s35, v3""")
    k.wait(lg="all"); k.i("s_barrier")
    stamp(8, "p1e")
    FA = 64; FB = 96; DD = 128
    for w in range(4):
        for f in range(2):
            n = 2*w + f
            k.lg(f"ds_read_b128 v[{FA+4*n}:{FA+4*n+3}], v8 offset:{8192*w+1024*f}")
            k.lg(f"ds_read_b128 v[{FB+4*n}:{FB+4*n+3}], v9 offset:{8192*w+1024*f}", f"f{n}")
    with capture() as c:
        k.i("""v_and_b32 v10, 31, v1
        s_lshl_b32 s35, s34, 5
        v_add_u32 v10, s35, v10
        v_mul_u32_u24 v11, 205, v10
        v_lshrrev_b32 v11, 12, v11
        v_mul_u32_u24 v12, 20, v11
        v_sub_u32 v12, v10, v12
        v_cmp_eq_u32 s[36:37], 60, v10
        v_mov_b32 v13, 20
        v_lshrrev_b32 v14, 5, v1
        v_cndmask_b32 v12, v12, v13, s[36:37]
        v_mul_u32_u24 v12, 80, v12
        v_lshlrev_b32 v14, 2, v14
        s_lshl_b32 s35, s33, 5
        v_add_u32 v14, s35, v14
        v_lshlrev_b32 v22, 2, v0""")
        MS = [4, 6, 24, 34]
        for j in range(4):
            ms = MS[j]
            k.i(f"""v_add_u32 v15, {8*j}, v14
            v_mul_u32_u24 v20, 205, v15
            v_lshrrev_b32 v20, 12, v20
            v_mul_u32_u24 v21, 20, v20
            v_sub_u32 v21, v15, v21
            v_cmp_eq_u32 s[{ms}:{ms+1}], v20, v11
            v_cmp_gt_u32 vcc, 3, v20
            v_mul_u32_u24 v20, 1680, v20
            v_lshl_add_u32 v21, v21, 2, v12
            v_add_u32 v{16+j}, v20, v21
            s_or_b64 s[{ms}:{ms+1}], s[{ms}:{ms+1}], s[36:37]
            s_and_b64 s[{ms}:{ms+1}], s[{ms}:{ms+1}], vcc""")
    fill = c.lines
    for _ in range(16): k.i(fill.pop(0))
    def kvm(n):
        def f():
            k.wait(lg=f"f{n}")
            k.i(f"v_mfma_f32_32x32x16_bf16 v[{DD}:{DD+15}], v[{FA+4*n}:{FA+4*n+3}], v[{FB+4*n}:{FB+4*n+3}], {'0' if n == 0 else vr(DD,16)}")
        return f
    for l in merge([kvm(n) for n in range(8)], fill, 6): k.i(l)
    for j in range(4):
        k.i(f"s_mov_b64 exec, s[{MS[j]}:{MS[j]+1}]")
        k.lg(f"ds_write_b128 v{16+j}, v[{DD+4*j}:{DD+4*j+3}] offset:32768")
    k.i(f"""s_mov_b64 exec, -1
    s_mul_i32 s33, s27, 5040
    s_add_u32 s33, s33, {KVA}
    s_add_u32 s4, s14, s33
    s_addc_u32 s5, s15, 0
    s_cmp_eq_u32 s27, 10
    s_movk_i32 s6, 5040
    s_cselect_b32 s6, 3360, s6
    s_mov_b32 s7, 0x20000""")
    k.wait(lg="all"); k.i("s_barrier")
    stamp(9, "p1e")
    for i in range(5):
        k.lg(f"ds_read_b32 v{32+i}, v22 offset:{32768+1024*i}", f"d{i}")
    for i in range(5):
        k.wait(lg=f"d{i}")
        if i == 4: k.i("v_add_u32 v22, 4096, v22")
        k.vm(f"buffer_atomic_add_f32 v{32+i}, v22, s[4:7], 0 offen offset:{1024*(i%4)}", "out1")
    stamp(10, "p1e")
    def bg_finish(B):
        k.auto = None
        print("WO left for the drain:", NPRE - (50 - B.left()), file=sys.stderr)
        if O("pqe", 1):
            k.i(f"v_min_u32 v{FB0+1}, 4, v1\nv_lshlrev_b32 v{FB0+1}, 2, v{FB0+1}\ns_and_b32 s24, s2, 7\ns_lshl_b32 s24, s24, 12\ns_lshl_b32 s25, s26, 8\ns_add_u32 s24, s24, s25\ns_add_u32 s24, s24, {F1 + 128 + 12}")
            k.vm(f"buffer_load_dword v{FB0}, v{FB0+1}, s[16:19], s24 offen sc1", "out1")
        B.go(NPRE - (50 - B.left()))
    bg_finish(B)
    k.wait(vm="out1")
    k.i("s_branch p1_fin")
    k.label("p1_q")
    rest(sv); Q.q = list(Qs)
    k.i(f"""s_mul_i32 s33, s28, 40960
    s_sub_u32 s34, s27, 11
    s_lshl_b32 s34, s34, 13
    s_add_u32 s33, s33, s34
    s_add_u32 s33, s33, {PQ}""")
    tail = [(ks, j) for j in range(4) for ks in range(36, 40)]
    B = mkbg()
    loop(False, tail, {149: phi_lines(0), 153: phi_lines(1)}, B, "q")
    stamp(5)
    for t in range(4):
        if t >= 2:
            for b in range(0, 16, 4):
                phi4(ACC + 16*t + b, PK + 8*t + b//2, T)
        for f in range(2):
            k.vm(f"buffer_store_dwordx4 v[{PK+8*t+4*f}:{PK+8*t+4*f+3}], v3, s[16:19], s33 offen offset:{(2048*t+1024*f) % 4096} {HO}", "out1")
        if t == 1: k.i("s_add_u32 s33, s33, 4096")
    stamp(8, "p1e"); stamp(9, "p1e"); stamp(10, "p1e")
    bg_finish(B)
    k.wait(vm="out1")
    k.label("p1_fin")
    stamp(6)
    k.i("s_barrier")
    sig_all(F1, 6)
    WOB = B
    k.i(f"s_mov_b32 s26, s{PWQ}\ns_mov_b32 s27, s{PWQ+1}")
    if O("pqe", 1):
        k.i(f"v_cmp_ne_u32 vcc, s44, v{FB0}\ns_cbranch_vccz p1_qok")
        poll(FB0+1, 24, FB0, w0=False)
        k.label("p1_qok")
        k.i(f"""s_mul_i32 s22, s29, 40960
        s_mul_i32 s33, s20, 10240
        s_add_u32 s22, s22, s33
        s_add_u32 s22, s22, {PQ}""")
        for kl in range(10):
            k.vm(f"buffer_load_dwordx4 a[{PQA+4*kl}:{PQA+4*kl+3}], v3, s[16:19], s22 offen offset:{1024*(kl%4)} {HO}", f"pq{kl}")
            if kl % 4 == 3: k.i("s_add_u32 s22, s22, 4096")
    k.vm(f"global_load_ushort v{TBV+8}, v27, s[{PB1}:{PB1+1}]")
    SQ[0].go(99)
    if XM == "mix":
        k.i("s_cmp_lg_u32 s20, 0\ns_cbranch_scc1 p1_nox2")
        xloads("")
        k.label("p1_nox2")
    WOB.go(O("wo_w", 5))
    NW1 = O("w1_w", 16)
    k.i(f"""s_mul_i32 s25, s27, 122880
    s_add_u32 s25, s25, {W1}
    s_cmp_eq_u32 s20, 0
    s_cbranch_scc1 p1_now1
    s_sub_u32 s23, s20, 1
    s_mul_i32 s23, s23, {NW1*1024}
    s_add_u32 s24, s25, s23""")
    for i in range(NW1):
        if i % 4 == 0: k.i(f"s_add_u32 m0, s23, {1024*i}")
        if not OPT.get("nobg"): k.i(f"buffer_load_dwordx4 v3, s[16:19], s24 offen offset:{1024*(i%4)} {HO} lds")
        if i % 4 == 3: k.i("s_add_u32 s24, s24, 4096")
    k.i("s_waitcnt vmcnt(0)" if OPT.get("nobg") else f"s_waitcnt vmcnt({NW1})")
    k.label("p1_now1")
    stamp(7)

W2B = None
def phase2():
    global W2B
    P2L = 102400
    k.i(f"""s_mul_i32 s21, s20, 13440
    s_add_u32 s21, s21, {KVA}
    s_mul_i32 s23, s20, 15360
    s_add_u32 s23, s23, {P2L+64}
    s_mul_i32 s22, s29, 40960
    s_mul_i32 s33, s20, 10240
    s_add_u32 s22, s22, s33
    s_add_u32 s22, s22, {PQ}
    v_bfe_u32 v8, v1, 2, 3
    v_lshlrev_b32 v8, 2, v8
    v_and_b32 v9, 3, v1
    s_mov_b32 s33, 0x55524130
    s_mov_b32 s34, 0x55453120
    v_bfe_u32 v10, s33, v8, 4
    v_bfe_u32 v11, s34, v8, 4
    v_lshl_add_u32 v10, v10, 2, v9
    v_lshl_add_u32 v11, v11, 2, v9
    v_min_u32 v10, 20, v10
    v_min_u32 v11, 20, v11
    v_lshrrev_b32 v12, 5, v1
    v_lshlrev_b32 v12, 4, v12
    s_sub_u32 s33, s23, 16
    v_add_u32 v12, s33, v12
    v_mul_u32_u24 v10, 80, v10
    v_mul_u32_u24 v11, 80, v11
    v_add_u32 v10, v10, v12
    v_add_u32 v11, v11, v12
    s_lshl_b32 s28, s26, 2
    s_add_u32 s28, s28, s20
    s_mov_b32 s36, 0
    s_mov_b32 s37, -1
    s_lshl_b32 s35, s13, 2
    s_add_u32 s35, s35, s20
    s_mul_i32 s35, s35, 61440
    s_add_u32 s35, s35, {W2}""")
    poll_all(F1, 14, O('slp1', 0))
    k.i("s_barrier")
    k.vm_done = k.vm_n
    stamp(8)
    for i in range(14):
        if i % 4 == 0: k.i(f"s_add_u32 m0, s23, {1024*i}")
        k.vm(f"buffer_load_dwordx4 v3, s[16:19], s21 offen offset:{1024*(i%4)} {HO} lds", f"kv{i}")
        if i % 4 == 3: k.i("s_add_u32 s21, s21, 4096")
        if i in (6, 13) and not O("pqe", 1):
            for kl in (range(0, 5) if i == 6 else range(5, 10)):
                k.vm(f"buffer_load_dwordx4 a[{PQA+4*kl}:{PQA+4*kl+3}], v3, s[16:19], s22 offen offset:{1024*(kl%4)} {HO}", f"pq{kl}")
                if kl % 4 == 3: k.i("s_add_u32 s22, s22, 4096")
    XQ.go(99)
    NW1 = O("w1_w", 16); N1 = (96 - 3*NW1) // 4
    assert 3*NW1 + 4*N1 == 96
    k.i(f"s_mul_i32 s24, s20, {N1*1024}\ns_add_u32 s24, s24, {3*NW1*1024}\ns_add_u32 s25, s25, s24")
    B1 = BG()
    for i in range(N1):
        B1.add(f"buffer_load_dwordx4 v3, s[16:19], s25 offen offset:{1024*(i%4)} {HO} lds", "w1",
               pre=(f"s_add_u32 m0, s24, {1024*i}" if i % 4 == 0 else ""), post=("s_add_u32 s25, s25, 4096" if i % 4 == 3 else ""))
    W2B = BG()
    for i in range(60):
        W2B.add(f"buffer_load_dwordx4 a[{W2R[i]}:{W2R[i]+3}], v3, s[16:19], s35 offen offset:{1024*(i%4)} {HO}", "w2", post=("s_add_u32 s35, s35, 4096" if i % 4 == 3 else ""))
    AF = 20; TT = 84; DT = 180; OG = 84; ACC = [20, 36, 124, 140, 156]
    for j in range(1, 8): k.i(f"v_add_f32 v{TBV}, v{TBV}, v{TBV+j}")
    k.i(f"v_lshlrev_b32 v{TBV+1}, 16, v{TBV+8}")
    jobs = {}
    n = 0
    for hl in range(8):
        jobs[hl] = []
        for u in range(2):
            for h2 in range(2):
                dg0 = -(hl % 4) + 4*u + 2*h2
                v0_ = 0 <= dg0 <= 4; v1_ = 0 <= dg0+1 <= 4
                d = AF + (2*hl+u)*4 + 2*h2
                if v0_ or v1_:
                    jobs[hl].append((d, n, v0_, v1_, hl*1680 + 16*(dg0+1))); n += 1
                else:
                    jobs[hl].append((d, None, 0, 0, 0))
                    k.i(f"v_mov_b32 v{d}, 0\nv_mov_b32 v{d+1}, 0")
    def kvreads(lo, hi):
        for hl in range(lo, hi):
            for d, n, _, _, o in jobs[hl]:
                if n is not None: k.lg(f"ds_read_b128 v[{TT+4*n}:{TT+4*n+3}], v{10 + (hl & 1)} offset:{o}", f"a{n}")
    def build(hl):
        for d, n, v0_, v1_, _ in jobs[hl]:
            if n is None: continue
            k.wait(lg=f"a{n}")
            t = TT + 4*n
            k.i(f"v_cvt_pk_bf16_f32 v{d}, v{t}, v{t+1}\nv_cvt_pk_bf16_f32 v{d+1}, v{t+2}, v{t+3}")
            if not v1_: k.i(f"v_cndmask_b32 v{d}, v{d}, 0, s[36:37]\nv_cndmask_b32 v{d+1}, v{d+1}, 0, s[36:37]")
            if not v0_: k.i(f"v_cndmask_b32 v{d}, 0, v{d}, s[36:37]\nv_cndmask_b32 v{d+1}, 0, v{d+1}, s[36:37]")
    def omm(hl):
        t0 = hl + hl//4
        d = vr(DT + 16*(hl % 4), 16)
        def f(u):
            def g():
                k.wait(vm=f"pq{t0+u}")
                k.i(f"v_mfma_f32_32x32x16_bf16 {d}, {vr(AF+(2*hl+u)*4, 4)}, {ar(PQA+4*(t0+u), 4)}, {'0' if u == 0 else d}")
            return g
        return [f(0), f(1)]
    def opost(hl):
        p = hl // 2; odd = hl & 1
        D = DT + 16*(hl % 4); rc = 16 + 2*odd
        a, b = (D+8, D+12) if odd else (D+12, D+8)
        with capture() as c:
            k.i(f"v_cndmask_b32 v{rc}, v{a}, v{b}, s[36:37]\nv_add_f32 v{rc}, s38, v{rc}\nv_rcp_f32 v{rc}, v{rc}\ns_nop 0")
            for h in range(6):
                k.i(f"v_pk_mul_f32 v[{D+2*h}:{D+2*h+1}], v[{D+2*h}:{D+2*h+1}], v[{rc}:{rc+1}] op_sel_hi:[1,0]")
            for j in range(2):
                g = OG + 2*(5*p + 2*odd + j)
                k.i(f"v_cvt_pk_bf16_f32 v{g}, v{D+4*j}, v{D+4*j+1}\nv_cvt_pk_bf16_f32 v{g+1}, v{D+4*j+2}, v{D+4*j+3}")
            g = OG + 2*(5*p + 4)
            if not odd:
                k.i(f"v_cvt_pk_bf16_f32 v{g}, v{D+8}, v{D+9}\nv_cvt_pk_bf16_f32 v{g+1}, v{D+10}, v{D+11}")
            else:
                k.i(f"v_cvt_pk_bf16_f32 v{D}, v{D+8}, v{D+9}\nv_cvt_pk_bf16_f32 v{D+1}, v{D+10}, v{D+11}")
                k.i(f"v_cndmask_b32 v{g}, v{g}, v{D}, s[36:37]\nv_cndmask_b32 v{g+1}, v{g+1}, v{D+1}, s[36:37]")
        return c.lines
    def wo(u, c, bg=True):
        def f():
            d = vr(ACC[c], 16)
            while f"wo{5*u+c}" not in k.vm_tags or (WOB.left() and 50 - WOB.left() <= 5*u+c): WOB.go()
            k.wait(vm=f"wo{5*u+c}")
            k.i(f"v_mfma_f32_32x32x16_bf16 {d}, {ar(WOR[5*u+c], 4)}, {vr(OG+4*u, 4)}, {'0' if u == 0 else d}")
            w2lim[0] = min(5*u, 35)
        return f
    w2lim = [0]
    def au2():
        if WOB.left(): WOB.go()
        elif B1.left(): B1.go()
        elif 60 - W2B.left() < w2lim[0]: W2B.go()
    k.auto = au2; k.th = O("th2", 90)
    k.wait(vm="kv6")
    stamp(13, "p2")
    kvreads(0, 4)
    for hl in range(4):
        build(hl)
        for f in omm(hl): f()
        if hl == 1:
            k.wait(vm="kv13"); kvreads(4, 8)
    for hl in range(4, 8):
        build(hl)
    stamp(9)
    for l in opost(0): k.i(l)
    for l in merge(omm(4), opost(1), 9): k.i(l)
    stamp(10)
    for l in merge(omm(5) + [wo(u, c) for u in (0, 1) for c in range(5)], opost(2) + opost(3), 4): k.i(l)
    for l in merge(omm(6) + omm(7) + [wo(u, c) for u in (2, 3, 4) for c in range(5)], opost(4) + opost(5), 3): k.i(l)
    with capture() as c:
        k.i(f"s_sub_u32 s33, s23, 64\nv_add_u32 v13, s33, v3")
        for j in range(1, 4):
            k.i(f"s_sub_u32 s33, s20, {j}\ns_and_b32 s33, s33, 3\ns_mul_i32 s33, s33, 15360\ns_add_u32 s33, s33, {P2L + (j-1)*5120}\nv_add_u32 v{13+j}, s33, v3")
    for l in merge([wo(u, c) for u in (5, 6) for c in range(5)], opost(6) + opost(7), 4): k.i(l)
    XF = 180
    with capture() as c2:
        k.i("s_mov_b32 s33, 0xffff0000")
        for j in range(10):
            k.i(f"v_accvgpr_read_b32 v{XF+2*j+1}, a{XA+j}")
        for j in range(10):
            k.i(f"v_lshlrev_b32 v{XF+2*j}, 16, v{XF+2*j+1}\nv_and_b32 v{XF+2*j+1}, s33, v{XF+2*j+1}")
    fill = c.lines + c2.lines
    if "xres" in k.vm_tags: k.wait(vm="xres")
    def red_w(c):
        for j in range(1, 4):
            r = ACC[c] + 4*j
            k.lg(f"ds_write_b128 v13, v[{r}:{r+3}] offset:{(j-1)*5120 + 1024*c}")
    for c in range(5):
        fill = merge([wo(u, c) for u in (7, 8, 9)], fill, 4)
        if c >= 2: red_w(c - 2)
    for l in fill: k.i(l)
    w2lim[0] = 60
    stamp(11)
    red_w(3); red_w(4)
    for c in range(5):
        for h in range(2):
            d = XF + 4*c + 2*h; a = ACC[c] + 2*h
            k.i(f"v_pk_add_f32 v[{d}:{d+1}], v[{d}:{d+1}], v[{a}:{a+1}]")
    k.wait(lg="all"); k.i("s_barrier")
    stamp(14, "p2")
    RR = 84
    for j in range(1, 4):
        for c in range(5):
            r = RR + 20*(j-1) + 4*c
            k.lg(f"ds_read_b128 v[{r}:{r+3}], v{13+j} offset:{1024*c}", f"r{j}_{c}")
    k.i(f"""s_mul_i32 s34, s29, 40
    s_mul_i32 s21, s30, 10
    s_add_u32 s34, s34, s21
    s_lshr_b32 s21, s20, 1
    s_add_u32 s34, s34, s21
    s_lshl_b32 s34, s34, 10
    s_and_b32 s21, s20, 1
    s_lshl_b32 s21, s21, 9
    s_add_u32 s34, s34, s21
    s_add_u32 s34, s34, {HH}
    v_and_b32 v8, 31, v1
    v_lshrrev_b32 v9, 5, v1
    v_lshlrev_b32 v12, 3, v8
    v_lshlrev_b32 v8, 4, v8
    v_lshl_add_u32 v8, v9, 3, v8""")
    HP = 24
    for j in range(1, 4):
        for c in range(5):
            k.wait(lg=f"r{j}_{c}")
            for h in range(2):
                d = XF + 4*c + 2*h; a = RR + 20*(j-1) + 4*c + 2*h
                k.i(f"v_pk_add_f32 v[{d}:{d+1}], v[{d}:{d+1}], v[{a}:{a+1}]")
            if j == 3:
                k.i(f"v_cvt_pk_bf16_f32 v{HP+2*c}, v{XF+4*c}, v{XF+4*c+1}\nv_cvt_pk_bf16_f32 v{HP+2*c+1}, v{XF+4*c+2}, v{XF+4*c+3}")
                k.vm(f"buffer_store_dwordx2 v[{HP+2*c}:{HP+2*c+1}], v8, s[16:19], s34 offen offset:{2048*(c%2)} {HO}")
                if c % 2 == 1: k.i("s_add_u32 s34, s34, 4096")
    for j in range(10):
        k.i(f"v_lshlrev_b32 v{XF+2*j}, 16, v{HP+j}\nv_and_b32 v{XF+2*j+1}, s33, v{HP+j}")
    k.i(f"v_pk_add_f32 v[16:17], v[{XF}:{XF+1}], v[{XF+2}:{XF+3}]")
    k.i(f"v_pk_mul_f32 v[18:19], v[{XF}:{XF+1}], v[{XF}:{XF+1}]")
    k.i(f"v_pk_fma_f32 v[18:19], v[{XF+2}:{XF+3}], v[{XF+2}:{XF+3}], v[18:19]")
    for j in range(2, 10):
        k.i(f"v_pk_add_f32 v[16:17], v[16:17], v[{XF+2*j}:{XF+2*j+1}]")
        k.i(f"v_pk_fma_f32 v[18:19], v[{XF+2*j}:{XF+2*j+1}], v[{XF+2*j}:{XF+2*j+1}], v[18:19]")
    k.i(f"""v_add_f32 v16, v16, v17
    v_add_f32 v17, v18, v19
    v_mov_b32 v18, v16
    v_mov_b32 v19, v17
    s_lshl_b32 s34, s29, 4
    s_lshl_b32 s21, s30, 2
    s_add_u32 s34, s34, s21
    s_add_u32 s34, s34, s20
    v_permlane32_swap_b32 v16, v18
    v_permlane32_swap_b32 v17, v19
    s_lshl_b32 s34, s34, 8
    s_add_u32 s34, s34, {ST}
    v_pk_add_f32 v[16:17], v[16:17], v[18:19]
    s_mov_b64 exec, 0xffffffff""")
    k.vm(f"buffer_store_dwordx2 v[16:17], v12, s[16:19], s34 offen {HO}", "out2")
    k.i("s_mov_b64 exec, -1")
    stamp(15, "p2")
    k.auto = None
    print("P2 end: W1 left", B1.left(), "W2 left", W2B.left(), file=sys.stderr)
    B1.go(99)
    if not OPT.get("nodrain"):
        W2B.go(O("w2_d2", 12))
        k.wait(vm="out2")
    stamp(12)
    k.i("s_barrier")
    sig_row(F2, 6, "s_and_b32 s42, s29, 3", "s_mov_b32 s43, s30")
    k.i(f"s_mul_i32 s23, s20, 6144\ns_mul_i32 s25, s27, 122880\ns_add_u32 s25, s25, s23\ns_add_u32 s25, s25, {W1 + 98304}")
    for i in range(6):
        if i % 4 == 0: k.i(f"s_add_u32 m0, s23, {98304 + 1024*i}")
        k.vm(f"buffer_load_dwordx4 v3, s[16:19], s25 offen offset:{1024*(i%4)} {HO} lds", "w1t")
        if i % 4 == 3: k.i("s_add_u32 s25, s25, 4096")
    k.i(f"v_lshlrev_b32 v6, 2, v0\nv_add_u32 v6, 122880, v6")
    k.lg(f"ds_write_b32 v6, v{TBV}")
    k.lg(f"ds_write_b32 v6, v{TBV+1} offset:1024")

def phase3():
    TB = 122880
    k.i(f"""s_mul_i32 s21, s28, 40960
    s_add_u32 s21, s21, {HH}
    v_and_b32 v8, 31, v1
    v_lshrrev_b32 v7, 5, v1
    v_lshlrev_b32 v8, 3, v8
    v_lshl_add_u32 v8, v7, 8, v8
    s_lshl_b32 s33, s28, 12
    s_add_u32 s33, s33, {ST}
    v_lshlrev_b32 v14, 4, v7
    v_add_u32 v14, {TB}, v14
    v_bfe_u32 v15, v1, 4, 1
    v_mul_u32_u24 v15, 49152, v15
    v_and_b32 v16, 15, v1
    v_lshl_add_u32 v15, v16, 4, v15
    v_lshl_add_u32 v15, v7, 9, v15
    s_mul_i32 s34, s28, 98304
    s_mul_i32 s25, s27, 3072
    s_add_u32 s34, s34, s25
    s_add_u32 s34, s34, {H1}""")
    W2B.go(O("w2_w2", 4))
    k.wait(vm="w1t", lg="all")
    k.i("s_barrier")
    poll_row(F2, 10, O('slp2', 0))
    stamp(13)
    ACC = 40; WB = 88; NS = 9; AH = 6; HR = 124; NR = O("pre3", 12); SR = 20; CT = 172; PK = 232
    H = BG()
    for i in range(40):
        r = HR + 4*(i % NR)
        H.add(f"buffer_load_dwordx4 v[{r}:{r+3}], v3, s[16:19], s21 offen offset:{1024*(i%4)} {HO}", f"h{i}", post=("s_add_u32 s21, s21, 4096" if i % 4 == 3 else ""))
    H.go(4)
    for j in range(8):
        k.vm(f"buffer_load_dwordx2 v[{SR+2*j}:{SR+2*j+1}], v8, s[16:19], s33 offen offset:{512*j} {HO}", "stats")
    H.go(NR - 5)
    TL = O("tl3", 4)
    items = [(ks, j) for ks in range(40-TL) for j in range(3)] + [(ks, j) for j in range(3) for ks in range(40-TL, 40)]
    def rd(n):
        ks, j = items[n]
        o = (ks*3 + j) * 1024
        r = WB + 4*(n % NS)
        k.lg(f"ds_read_b128 v[{r}:{r+3}], v{3 + o//65536} offset:{o % 65536}", f"w{n}")
    with capture() as c:
        for j in range(1, 8): k.i(f"v_pk_add_f32 v[{SR}:{SR+1}], v[{SR}:{SR+1}], v[{SR+2*j}:{SR+2*j+1}]")
        k.i(f"""v_mov_b32 v10, v{SR}
        v_mov_b32 v11, v{SR+1}
        v_permlane32_swap_b32 v{SR}, v10
        v_permlane32_swap_b32 v{SR+1}, v11
        v_pk_add_f32 v[8:9], v[{SR}:{SR+1}], v[10:11]
        v_mul_f32 v8, 0x3acccccd, v8
        v_mul_f32 v9, 0x3acccccd, v9
        v_fma_f32 v9, -v8, v8, v9
        v_max_f32 v9, 0, v9""")
        bf16r(8, 8); bf16r(9, 9)
        k.i("v_add_f32 v9, 0x3727c5ac, v9")
        bf16r(9, 9)
        k.i("v_sqrt_f32 v9, v9")
        bf16r(9, 9)
        k.i("v_rcp_f32 v10, v9\nv_mul_f32 v12, v8, v10\nv_sub_f32 v12, 0, v12")
    statl = c.lines
    def tab_reads(nt):
        for j in range(4):
            n = 4*nt + j
            k.lg(f"ds_read_b128 v[{CT+4*n}:{CT+4*n+3}], v14 offset:{1024+128*nt+32*j}")
            k.lg(f"ds_read_b128 v[{SR+4*j}:{SR+4*j+3}], v14 offset:{128*nt+32*j}", f"t{nt}")
    def tab_lines(nt):
        with capture() as c:
            for j in range(4):
                b = CT + 4*(4*nt + j)
                for h in range(2):
                    k.i(f"v_pk_fma_f32 v[{b+2*h}:{b+2*h+1}], v[{SR+4*j+2*h}:{SR+4*j+2*h+1}], v[12:13], v[{b+2*h}:{b+2*h+1}] op_sel_hi:[1,0,1]")
        return c.lines
    def epi_lines(nt, j):
        n = 4*nt + j
        a = ACC + 4*n; b = CT + 4*n
        with capture() as c:
            for h in range(2):
                k.i(f"v_pk_fma_f32 v[{a+2*h}:{a+2*h+1}], v[{a+2*h}:{a+2*h+1}], v[10:11], v[{b+2*h}:{b+2*h+1}] op_sel_hi:[1,0,1]")
            for h in range(4): k.i(f"v_max_f32 v{a+h}, 0, v{a+h}")
            for h in range(2):
                k.i(f"v_pk_mul_f32 v[{a+2*h}:{a+2*h+1}], v[{a+2*h}:{a+2*h+1}], v[{a+2*h}:{a+2*h+1}]")
            for h in range(2):
                k.i(f"v_cvt_pk_bf16_f32 v{PK+2*n+h}, v{a+2*h}, v{a+2*h+1}")
        return c.lines
    def st_h1(nt, e):
        k.vm(f"buffer_store_dwordx4 v[{PK+8*nt+4*e}:{PK+8*nt+4*e+3}], v15, s[16:19], s34 offen offset:{1024*nt+256*e} {HO}", "out3")
    for n in range(AH): rd(n)
    fill = []
    k.auto = lambda: W2B.go(); k.th = O("th3", 100)
    for n, (ks, j) in enumerate(items):
        k.wait(vm=f"h{ks}", lg=f"w{n}")
        if n == 12: cst(7)
        if n == 108: cst(9)
        d = vr(ACC + 16*j, 16)
        k.i(f"v_mfma_f32_32x32x16_bf16 {d}, {vr(WB + 4*(n % NS), 4)}, {vr(HR + 4*(ks % NR), 4)}, {'0' if ks == 0 else d}")
        if n % 3 == 0: H.go()
        if O('w2_p3', 0) and n % O('w2_p3', 0) == 4: W2B.go()
        if n + AH < 120: rd(n + AH)
        if n == 18: fill += statl
        for nt in range(3):
            if n == 40 + 12*nt: tab_reads(nt)
            if n == 46 + 12*nt:
                k.wait(lg=f"t{nt}"); fill += tab_lines(nt)
        if n == 121 - 2*TL: fill += epi_lines(0, 0) + epi_lines(0, 1) + epi_lines(0, 2) + epi_lines(0, 3)
        if n == 121 - TL: fill += epi_lines(1, 0) + epi_lines(1, 1)
        for _ in range(3 if n < 120 - 2*TL else 6):
            if fill: k.i(fill.pop(0))
    stamp(14)
    for l in fill: k.i(l)
    st_h1(0, 0); st_h1(0, 1); st_h1(1, 0)
    for nt, j in ((1, 2), (1, 3), (2, 0), (2, 1), (2, 2), (2, 3)):
        for l in epi_lines(nt, j): k.i(l)
        if j % 2 == 1: st_h1(nt, j // 2)
    k.auto = None
    print("P3 end: W2 left", W2B.left(), file=sys.stderr)
    if not OPT.get("nodrain"):
        W2B.go(O("w2_d3", 12))
        k.wait(vm="out3")
    stamp(15)
    k.i("s_barrier")
    sig_row(F3, 6, "s_lshr_b32 s42, s27, 2", "s_and_b32 s43, s27, 3")

def phase4():
    HR = 20; BR = 30; ACC = 40; RING = 120; NB = O("nb4", 6)
    srd(8, PB2, 1280)
    k.i(f"""v_and_b32 v4, 15, v1
    v_lshrrev_b32 v5, 4, v1
    s_lshl_b32 s33, s12, 1
    s_lshr_b32 s25, s20, 1
    s_add_u32 s33, s33, s25
    s_mul_i32 s33, s33, 40
    s_mul_i32 s25, s13, 5
    s_add_u32 s33, s33, s25
    s_lshl_b32 s33, s33, 10
    s_add_u32 s33, s33, {HH}
    s_and_b32 s25, s20, 1
    s_lshl_b32 s25, s25, 8
    s_add_u32 s33, s33, s25
    v_lshrrev_b32 v8, 1, v5
    v_lshlrev_b32 v8, 9, v8
    v_lshl_add_u32 v8, v4, 4, v8
    v_and_b32 v9, 1, v5
    v_lshl_add_u32 v8, v9, 3, v8
    v_add_u32 v9, 4096, v8
    v_lshlrev_b32 v17, 3, v5
    s_mul_i32 s34, s13, 160""")
    for c in range(5):
        k.vm(f"buffer_load_dwordx2 v[{HR+2*c}:{HR+2*c+1}], v{8 if c < 4 else 9}, s[16:19], s33 offen offset:{1024*(c%4)} {HO}")
    for c in range(5):
        k.vm(f"buffer_load_dwordx2 v[{BR+2*c}:{BR+2*c+1}], v17, s[8:11], s34 offen offset:{32*c}", "res")
    W2B.go(99)
    k.i(f"""s_mul_i32 s21, s12, 196608
    s_mul_i32 s22, s20, 12288
    s_add_u32 s21, s21, s22
    s_add_u32 s21, s21, {H1}
    s_lshl_b32 s25, s12, 6
    s_lshl_b32 s33, s20, 4
    s_add_u32 s25, s25, s33
    v_add_u32 v6, s25, v4
    v_mul_u32_u24 v7, 1280, v6
    v_lshl_add_u32 v7, v5, 3, v7
    s_mul_i32 s33, s20, 15360
    v_add_u32 v13, s33, v3""")
    for j in range(4):
        k.i(f"s_add_u32 s33, s20, {j}\ns_and_b32 s33, s33, 3\ns_mul_i32 s33, s33, 49152\nv_add_u32 v{8+j}, s33, v3")
    for j in range(1, 4):
        k.i(f"s_sub_u32 s33, s20, {j}\ns_and_b32 s33, s33, 3\ns_mul_i32 s33, s33, 15360\ns_add_u32 s33, s33, {(j-1)*5120}\nv_add_u32 v{13+j}, s33, v3")
    srd(8, POUT, 2621440)
    poll_row(F3, 18, O('slp3', 0))
    stamp(16)
    Q = BG()
    for i in range(48):
        t, j = divmod(i, 4)
        r = RING + 16*(t % NB) + 4*j
        Q.add(f"buffer_load_dwordx4 v[{r}:{r+3}], v{8+j}, s[16:19], s21 offen offset:{1024*(t%4)} {HO}", f"s{t}_{j}", post=("s_add_u32 s21, s21, 4096" if i % 16 == 15 else ""))
    Q.go(4*(NB-1))
    XF = 216
    k.wait(vm="res")
    k.i("s_mov_b32 s33, 0xffff0000")
    for j in range(10):
        k.i(f"v_lshlrev_b32 v{XF+2*j}, 16, v{HR+j}\nv_and_b32 v{XF+2*j+1}, s33, v{HR+j}")
        k.i(f"v_lshlrev_b32 v{XF+20}, 16, v{BR+j}\nv_and_b32 v{XF+21}, s33, v{BR+j}")
        k.i(f"v_pk_add_f32 v[{XF+2*j}:{XF+2*j+1}], v[{XF+2*j}:{XF+2*j+1}], v[{XF+20}:{XF+21}]")
    def red_w(j):
        for c in range(5):
            r = ACC + 20*j + 4*c
            k.lg(f"ds_write_b128 v13, v[{r}:{r+3}] offset:{(j-1)*5120 + 1024*c}")
    order = [(t, j) for t in range(10) for j in range(4)] + [(t, j) for j in (1, 2, 3, 0) for t in (10, 11)]
    for n, (t, j) in enumerate(order):
        k.wait(vm=f"s{t}_{j}")
        if n == 4: cst(11)
        if n == 40: cst(13)
        for c in range(5):
            d = vr(ACC + (5*j+c)*4, 4)
            k.i(f"v_mfma_f32_16x16x32_bf16 {d}, {ar(W2R[5*t+c], 4)}, {vr(RING+16*(t%NB)+4*j, 4)}, {'0' if t == 0 else d}")
            if c == 1: Q.go()
        if n in (42, 44, 46): red_w((n - 40)//2)
    stamp(17)
    k.wait(lg="all"); k.i("s_barrier")
    RR = 120
    for j in range(1, 4):
        for c in range(5):
            r = RR + 20*(j-1) + 4*c
            k.lg(f"ds_read_b128 v[{r}:{r+3}], v{13+j} offset:{1024*c}", f"r{j}_{c}")
    for c in range(5):
        for h in range(2):
            d = XF + 4*c + 2*h; a = ACC + 4*c + 2*h
            k.i(f"v_pk_add_f32 v[{d}:{d+1}], v[{d}:{d+1}], v[{a}:{a+1}]")
    for j in range(1, 4):
        for c in range(5):
            k.wait(lg=f"r{j}_{c}")
            for h in range(2):
                d = XF + 4*c + 2*h; a = RR + 20*(j-1) + 4*c + 2*h
                k.i(f"v_pk_add_f32 v[{d}:{d+1}], v[{d}:{d+1}], v[{a}:{a+1}]")
            if j == 3:
                k.i(f"v_cvt_pk_bf16_f32 v{HR+2*c}, v{XF+4*c}, v{XF+4*c+1}\nv_cvt_pk_bf16_f32 v{HR+2*c+1}, v{XF+4*c+2}, v{XF+4*c+3}")
                k.vm(f"buffer_store_dwordx2 v[{HR+2*c}:{HR+2*c+1}], v7, s[8:11], s34 offen offset:{32*c} {OPT.get('opol', '')}")
    k.i(f"""s_or_b32 s33, s45, s20
    s_cmp_lg_u32 s33, 0
    s_cbranch_scc1 p4_noep
    v_mov_b32 v4, s44
    v_mov_b32 v5, {CB}
    s_mov_b64 exec, 1
    buffer_store_dword v4, v5, s[16:19], 0 offen sc1
    s_mov_b64 exec, -1""")
    k.label("p4_noep")

def stamp_out():
    if not OPT["stamps"]: return
    if OPT.get("enc") is not None:
        e = O("enc", 0)
        k.i(f"""s_waitcnt vmcnt(0) lgkmcnt(0)
        s_memrealtime s[100:101]
        s_waitcnt lgkmcnt(0)
        s_sub_u32 s4, s{64+2*e}, s64
        s_lshl_b32 s4, s4, 2
        s_add_u32 s4, s4, 4000
        encl:
        s_memrealtime s[6:7]
        s_waitcnt lgkmcnt(0)
        s_sub_u32 s6, s6, s64
        s_cmp_lt_u32 s6, s4
        s_cbranch_scc1 encl""")
        return
    n = NSTAMP
    k.i("s_waitcnt vmcnt(0) lgkmcnt(0)")
    k.i(f"s_memrealtime s[{64+2*n}:{65+2*n}]")
    k.i("s_waitcnt lgkmcnt(0)")
    k.i(f"s_lshl_b32 s3, s45, 2\ns_add_u32 s3, s3, s20\ns_lshl_b32 s3, s3, 7\ns_add_u32 s3, s3, 0x2000000\nv_mov_b32 v1, s3")
    for j in range(n+1): k.i(f"v_mov_b32 v{2+j}, s{64+2*j}")
    k.i("s_mov_b64 exec, 1")
    for j in range(n+1): k.i(f"global_store_dword v1, v{2+j}, s[14:15] offset:{4*j}")

def emit(path):
    global k
    k = Kern(KN)
    phase0(); phase1(); phase2(); phase3(); phase4(); stamp_out()
    k.label("kend"); k.i("s_endpgm")
    body, added = hazard_pass(k.L, verbose=bool(OPT.get("vnop")))
    print("instrs", len(body), "nop states added", added, file=sys.stderr)
    out = ["; pre-LN linear-attention block + squared-ReLU MLP, one persistent launch (256 workgroups, flag hand-offs in d_ws)",
           "; @launch grid=(256,1,1) block=(256,1,1) lds=163840",
           '.amdgcn_target "amdgcn-amd-amdhsa--gfx950"', ".text", f".globl {KN}", ".p2align 8", f".type {KN},@function", f"{KN}:"]
    out += [("" if (l.endswith(":") or l.startswith(";")) else "    ") + l for l in body]
    out += ['.section .rodata,"a"', ".p2align 6", f".amdhsa_kernel {KN}", "  .amdhsa_next_free_vgpr 512", "  .amdhsa_next_free_sgpr 102",
            "  .amdhsa_accum_offset 256", "  .amdhsa_group_segment_fixed_size 0", "  .amdhsa_kernarg_size 88",
            "  .amdhsa_user_sgpr_count 2", "  .amdhsa_user_sgpr_kernarg_segment_ptr 1",
            "  .amdhsa_system_sgpr_workgroup_id_x 1", ".end_amdhsa_kernel"]
    open(path, "w").write("\n".join(out) + "\n")

if __name__ == "__main__":
    for a in sys.argv[2:]:
        kk, v = a.split("=")
        OPT[kk] = {"True": True, "False": False, "none": ""}.get(v, v.replace("_", " "))
    emit(sys.argv[1])
```

```python
import sys
from asmlib import *

NAME = "sequential_preLN__linear_attn_block__dense_activation_squared_relu__prompt"
KN = NAME + "_kernel"
CB = 0x0
F0B = CB + 0x1000; F2 = 0xC0000; F3 = 0xD0000; F0 = 0x90000; F1 = 0x98000
CS = 0x10000; KVA = 0x20000; ST = 0x40000
XN = 0x100000; WQ = 0x380000; WO = 0x600000; W1 = 0x700000; W2 = 0x900000
PQ = 0xB00000; HH = 0xE00000; H1 = 0x1200000; XC = 0x1800000
WSZ = 0x1B00000
LOG2E = 0x3fb8aa3b
OPT = dict(tl1=6, tl3=6, pqe=0, stamps=False, cold="nt", pre1=2, wo_pre=40, wo_w=0, w1_w=12, sleep=8, slp0=20, lnexact=True)
HO = "sc1"
UL = 131072
def O(n, d): return int(OPT.get(n, d))

def magic(C, maxq):
    for sh in range(4, 24):
        m = -(-(1 << sh) // C)
        if m * maxq < (1 << 32) and m < (1 << 24) and all((q * m) >> sh == q // C for q in range(maxq)): return m, sh
    raise ValueError

k = None
def srd(d, base, size):
    k.i(f"s_mov_b32 s{d}, s{base}\ns_mov_b32 s{d+1}, s{base+1}\ns_mov_b32 s{d+2}, {size}\ns_mov_b32 s{d+3}, 0x20000")
def bf16r(d, s):
    k.i(f"v_cvt_pk_bf16_f32 v{d}, v{s}, v{s}\nv_lshlrev_b32 v{d}, 16, v{d}")
NSTAMP = 18
def stamp(idx, grp=None):
    if not OPT["stamps"]: return
    f = OPT.get("focus")
    lo = {"p0": (5, 18), "p1": (8, 18), "p1e": (8, 18), "p2": (13, 18), "clk": (1, 18)}.get(f)
    if grp is None and lo and lo[0] <= idx < lo[1]: return
    if grp is not None and grp != f: return
    k.i(f"s_memrealtime s[{64+2*idx}:{65+2*idx}]")
def cst(slot):
    if OPT["stamps"] and OPT.get("focus") == "clk":
        k.i(f"s_memrealtime s[{64+2*slot}:{65+2*slot}]\ns_memtime s[{66+2*slot}:{67+2*slot}]")
def snap(): return (k.vm_n, dict(k.vm_tags), k.vm_done, k.lg_n, dict(k.lg_tags), k.lg_done)
def rest(s): k.vm_n, k.vm_tags, k.vm_done, k.lg_n, k.lg_tags, k.lg_done = s[0], dict(s[1]), s[2], s[3], dict(s[4]), s[5]

class capture:
    def __enter__(self):
        self.save = (k.L, k.auto, k._iss, k._mf); k.L = []; k.auto = None; return self
    def __exit__(self, *a):
        self.lines = k.L; k.L, k.auto, k._iss, k._mf = self.save
def merge(main, fill, per):
    fill = list(fill)
    for m in main:
        m()
        for _ in range(per):
            if fill: k.i(fill.pop(0))
    return fill

PX, PWQ, PWO, PW1, PB1, PW2, PB2, POUT = 48, 50, 52, 56, 58, 60, 62, 46

npoll = 0
def check4(vt):
    k.i(f"v_xor_b32 v{vt}, s44, v{vt}\nv_xor_b32 v{vt+1}, s44, v{vt+1}\nv_xor_b32 v{vt+2}, s44, v{vt+2}\nv_xor_b32 v{vt+3}, s44, v{vt+3}")
    k.i(f"v_or3_b32 v{vt}, v{vt}, v{vt+1}, v{vt+2}\nv_or_b32 v{vt}, v{vt}, v{vt+3}\nv_cmp_ne_u32 vcc, 0, v{vt}")
def poll(vaddr, soff, vt, wide=False, w0=True, slp=0):
    global npoll
    npoll += 1
    L = f"poll{npoll}"
    au = k.auto; k.auto = None
    if w0: k.i(f"s_cmp_lg_u32 s20, 0\ns_cbranch_scc1 {L}d")
    if slp: k.i(f"s_sleep {slp}")
    k.i("s_mov_b32 s43, 0x20000")
    k.label(L)
    if OPT.get("apoll"):
        if wide:
            k.i(f"v_mov_b32 v{vt}, 0\nv_mov_b32 v{vt+1}, 0\nv_mov_b32 v{vt+2}, 0\nv_mov_b32 v{vt+3}, 0")
            k.i(f"buffer_atomic_or_x2 v[{vt}:{vt+1}], v{vaddr}, s[16:19], s{soff} offen sc0\nbuffer_atomic_or_x2 v[{vt+2}:{vt+3}], v{vaddr}, s[16:19], s{soff} offen offset:8 sc0\ns_waitcnt vmcnt(0)")
            check4(vt)
        else:
            k.i(f"v_mov_b32 v{vt}, 0\nbuffer_atomic_or v{vt}, v{vaddr}, s[16:19], s{soff} offen sc0\ns_waitcnt vmcnt(0)\nv_cmp_ne_u32 vcc, s44, v{vt}")
    else:
        if wide:
            k.i(f"buffer_load_dwordx4 v[{vt}:{vt+3}], v{vaddr}, s[16:19], s{soff} offen {OPT.get('ppol', 'sc1')}\ns_waitcnt vmcnt(0)")
            check4(vt)
        else:
            k.i(f"buffer_load_dword v{vt}, v{vaddr}, s[16:19], s{soff} offen {OPT.get('ppol', 'sc1')}\ns_waitcnt vmcnt(0)\nv_cmp_ne_u32 vcc, s44, v{vt}")
    k.i(f"s_cbranch_vccz {L}d")
    if O("sleep", 4): k.i(f"s_sleep {O('sleep', 4)}")
    k.i(f"s_sub_u32 s43, s43, 1\ns_cbranch_scc0 {L}")
    k.label(L + "d")
    k.auto = au
nsig = 0
def signal(mask, code, vt, dual=False):
    global nsig
    nsig += 1
    L = f"sig{nsig}"
    au = k.auto; k.auto = None
    k.i(f"s_cmp_lg_u32 s20, 1\ns_cbranch_scc1 {L}")
    k.i(code)
    if dual: k.i(f"v_mov_b32 v{vt}, s44\ns_mov_b64 exec, {mask}\nbuffer_store_dword v{vt}, v{vt+1}, s[16:19], s42 offen offset:2048")
    k.i(f"v_mov_b32 v{vt}, s44\ns_mov_b64 exec, {mask}\nbuffer_store_dword v{vt}, v{vt+1}, s[16:19], s42 offen {OPT.get('spol', 'sc1')}\ns_mov_b64 exec, -1")
    k.label(L)
    k.auto = au
def sig_all(base, vt):
    signal(0xff, f"v_lshlrev_b32 v{vt+1}, 12, v1\ns_lshr_b32 s42, s45, 3\ns_lshl_b32 s42, s42, 7\ns_and_b32 s43, s45, 7\ns_lshl_b32 s43, s43, 2\ns_add_u32 s42, s42, s43\ns_add_u32 s42, s42, {base}", vt)
def sig_row(base, vt, line, pos):
    signal(1, f"v_mov_b32 v{vt+1}, 0\n{line}\n{pos}\ns_lshl_b32 s42, s42, 7\ns_lshl_b32 s43, s43, 2\ns_add_u32 s42, s42, s43\ns_lshl_b32 s43, s26, 12\ns_add_u32 s42, s42, s43\ns_add_u32 s42, s42, {base}", vt, dual=bool(OPT.get("dual")))
ntree = 0
def poll_all(base, vt, slp):
    global ntree
    k.i(f"s_and_b32 s42, s2, 7\ns_lshl_b32 s42, s42, 12\ns_add_u32 s42, s42, {base}")
    k.i(f"v_lshrrev_b32 v{vt+4}, 1, v1\nv_lshlrev_b32 v{vt+4}, 7, v{vt+4}\nv_and_b32 v{vt}, 1, v1\nv_lshl_add_u32 v{vt+4}, v{vt}, 4, v{vt+4}")
    if not (OPT.get("tree") and (base == F0 or OPT.get("tree1"))):
        poll(vt+4, 42, vt, wide=True, slp=slp); return
    ntree += 1; L = f"tree{ntree}"
    NL = O("tree", 1)
    k.i(f"s_cmp_lg_u32 s20, 0\ns_cbranch_scc1 {L}d\ns_and_b32 s41, s2, {8*NL-1}\ns_lshl_b32 s41, s41, 7\ns_add_u32 s41, s41, {base + 0x10000}\ns_cmp_ge_u32 s2, {8*NL}\ns_cbranch_scc1 {L}m")
    poll(vt+4, 42, vt, wide=True, w0=False, slp=slp)
    k.i(f"v_mov_b32 v{vt}, s44\nv_mov_b32 v{vt+1}, 0\ns_mov_b64 exec, 1\nbuffer_store_dword v{vt}, v{vt+1}, s[16:19], s41 offen sc1\ns_mov_b64 exec, -1\ns_branch {L}d")
    k.label(L + "m")
    k.i(f"v_mov_b32 v{vt+1}, 0")
    sl = OPT.get("sleep"); OPT["sleep"] = 1
    poll(vt+1, 41, vt, w0=False)
    if sl is None: del OPT["sleep"]
    else: OPT["sleep"] = sl
    k.label(L + "d")
    k.i(f"s_mov_b32 s41, {LOG2E:#x}")
def poll_row(base, vt, slp):
    global npoll
    k.i(f"v_and_b32 v{vt+1}, 3, v1\nv_lshlrev_b32 v{vt+1}, 2, v{vt+1}\ns_lshl_b32 s42, s26, 5\ns_add_u32 s42, s42, s20\ns_lshl_b32 s42, s42, 7\ns_add_u32 s42, s42, {base}")
    if not OPT.get("dual"):
        poll(vt+1, 42, vt, w0=False, slp=slp)
    else:
        npoll += 1; L = f"poll{npoll}"
        au = k.auto; k.auto = None
        if slp: k.i(f"s_sleep {slp}")
        k.i(f"v_bfe_u32 v{vt}, v1, 2, 1\nv_lshl_add_u32 v{vt+1}, v{vt}, 11, v{vt+1}\ns_mov_b32 s43, 0x20000")
        k.label(L)
        k.i(f"""buffer_load_dword v{vt}, v{vt+1}, s[16:19], s42 offen sc1
        s_waitcnt vmcnt(0)
        v_cmp_eq_u32 vcc, s44, v{vt}
        s_lshr_b32 s41, vcc_lo, 4
        s_or_b32 s41, s41, vcc_lo
        s_and_b32 s41, s41, 15
        s_cmp_eq_u32 s41, 15
        s_cbranch_scc1 {L}d
        s_sleep {O('sleepd', 2)}
        s_sub_u32 s43, s43, 1
        s_cbranch_scc0 {L}""")
        k.label(L + "d")
        k.auto = au
    k.vm_done = k.vm_n

class BG:
    def __init__(self): self.q = []
    def add(self, ins, tag=None, pre="", post=""): self.q.append((pre, ins, post, tag))
    def go(self, n=1):
        for _ in range(n):
            if self.q:
                pre, ins, post, tag = self.q.pop(0)
                if OPT.get("nobg") and tag is not None and tag[:2] in ("wo", "w1", "w2"):
                    k.vm_tags[tag] = -1; continue
                k.i(pre); k.vm(ins, tag); k.i(post)
    def left(self): return len(self.q)

def phi4(a, dst, T):
    k.i(f"v_pk_mul_f32 v[{T}:{T+1}], v[{a}:{a+1}], s[40:41]")
    k.i(f"v_pk_mul_f32 v[{T+2}:{T+3}], v[{a+2}:{a+3}], s[40:41]")
    for j in range(4): k.i(f"v_exp_f32_e64 v{T+j}, v{T+j} clamp")
    for j in range(4): k.i(f"v_max_f32 v{T+4+j}, 0, v{a+j}")
    k.i(f"v_pk_add_f32 v[{T}:{T+1}], v[{T}:{T+1}], s[38:39]")
    k.i(f"v_pk_add_f32 v[{T+2}:{T+3}], v[{T+2}:{T+3}], s[38:39]")
    k.i(f"v_pk_add_f32 v[{T}:{T+1}], v[{T}:{T+1}], v[{T+4}:{T+5}]")
    k.i(f"v_pk_add_f32 v[{T+2}:{T+3}], v[{T+2}:{T+3}], v[{T+6}:{T+7}]")
    k.i(f"v_cvt_pk_bf16_f32 v{dst}, v{T}, v{T+1}")
    k.i(f"v_cvt_pk_bf16_f32 v{dst+1}, v{T+2}, v{T+3}")

ROWOFF = [[0, 4, 20, 24, 8], [12, 16, 28, 32, 36]]

def phase0():
    cold = OPT["cold"]
    stamp(0)
    k.i(f"""s_load_dwordx16 s[48:63], s[0:1], 0
    s_load_dwordx2 s[14:15], s[0:1], 80
    s_load_dwordx2 s[46:47], s[0:1], 64
    s_getpc_b64 s[4:5]
    pcl:
    s_cmp_ge_u32 s2, 256
    s_cbranch_scc1 kend
    s_lshr_b32 s25, s2, 3
    s_and_b32 s6, s25, 7
    s_lshl_b32 s6, s6, 13
    v_lshl_add_u32 v30, v0, 7, s6
    v_min_u32 v30, kend-pcl, v30
    v_cmp_gt_u32 vcc, 64, v0
    v_and_b32 v1, 63, v0
    v_lshrrev_b32 v2, 6, v0
    s_and_saveexec_b64 s[6:7], vcc
    s_cbranch_execz p0_nopf
    {'s_nop 0' if OPT.get('nopf') else 'global_load_dword v31, v30, s[4:5]'}
    p0_nopf:
    s_mov_b64 exec, s[6:7]
    v_lshlrev_b32 v3, 4, v1
    v_readfirstlane_b32 s20, v2
    s_and_b32 s24, s2, 7
    s_lshr_b32 s26, s24, 1
    s_lshl_b32 s26, s26, 2
    s_lshr_b32 s27, s25, 3
    s_add_u32 s26, s26, s27
    s_and_b32 s27, s24, 1
    s_lshl_b32 s27, s27, 3
    s_and_b32 s25, s25, 7
    s_add_u32 s27, s27, s25
    s_lshl_b32 s45, s26, 4
    s_add_u32 s45, s45, s27
    v_bfe_u32 v28, v1, 2, 2
    v_and_b32 v29, 3, v1
    s_cmp_ge_u32 s45, 128
    s_cbranch_scc1 p0_w""")
    X = 8; F = 32
    k.i(f"""v_lshrrev_b32 v4, 4, v0
    v_and_b32 v5, 15, v0
    s_lshl_b32 s21, s45, 4
    v_add_u32 v6, s21, v4
    v_mul_u32_u24 v6, 1280, v6
    v_lshl_add_u32 v6, v5, 4, v6
    s_mov_b32 s10, 2621440
    s_mov_b32 s11, 0x20000
    s_waitcnt lgkmcnt(0)
    s_mov_b32 s8, s{PX}
    s_mov_b32 s9, s{PX+1}""")
    stamp(9, "p0")
    for i in range(5):
        k.i(f"buffer_load_dwordx4 v[{X+4*i}:{X+4*i+3}], v6, s[8:11], 0 offen offset:{256*i} {OPT.get('coldx', cold)}")
    stamp(5, "p0")
    k.i(f"s_load_dword s44, s[14:15], {CB}")
    srd(16, 14, WSZ)
    k.i(f"""s_lshr_b32 s21, s45, 1
    s_mul_i32 s21, s21, 40960
    s_and_b32 s22, s45, 1
    s_lshl_b32 s22, s22, 8
    s_add_u32 s21, s21, s22
    s_add_u32 s21, s21, {XN}
    v_lshrrev_b32 v7, 1, v5
    v_lshlrev_b32 v7, 10, v7
    v_and_b32 v6, 1, v5
    v_lshlrev_b32 v6, 9, v6
    v_lshl_add_u32 v7, v4, 4, v7
    v_add_u32 v7, v7, v6
    s_mov_b32 s23, 0xffff0000
    s_mov_b32 s22, 0x3f803f80
    v_mov_b32 v112, 0
    v_mov_b32 v113, 0
    v_mov_b32 v114, 0
    v_mov_b32 v115, 0
    v_lshrrev_b32 v30, 4, v1""")
    for i in range(5):
        k.i(f"s_waitcnt vmcnt({4-i})")
        if i == 0: stamp(7, "p0")
        for j in range(4*i, 4*i+4):
            k.i(f"v_dot2_f32_bf16 v{112+2*(j&1)}, v{X+j}, s22, v{112+2*(j&1)}")
            k.i(f"v_dot2_f32_bf16 v{113+2*(j&1)}, v{X+j}, v{X+j}, v{113+2*(j&1)}")
    unp = []
    for j in range(20): unp += [f"v_lshlrev_b32 v{F+2*j}, 16, v{X+j}", f"v_and_b32 v{F+2*j+1}, s23, v{X+j}"]
    def U(n):
        for _ in range(n):
            if unp: k.i(unp.pop(0))
    U(3)
    k.i("v_pk_add_f32 v[112:113], v[112:113], v[114:115]")
    for s in (8, 4, 2, 1):
        U(2)
        k.i(f"v_add_f32_dpp v112, v112, v112 row_ror:{s} row_mask:0xf bank_mask:0xf")
        k.i(f"v_add_f32_dpp v113, v113, v113 row_ror:{s} row_mask:0xf bank_mask:0xf")
    k.i("v_mul_f32 v112, 0x3acccccd, v112\nv_mul_f32 v113, 0x3acccccd, v113\nv_fma_f32 v113, -v112, v112, v113\nv_max_f32 v113, 0, v113")
    bf16r(112, 112); bf16r(113, 113)
    k.i("v_add_f32 v113, 0x3727c5ac, v113")
    bf16r(113, 113)
    k.i("v_sqrt_f32 v113, v113"); U(1)
    bf16r(113, 113)
    k.i("v_rcp_f32 v114, v113")
    U(99)
    Y = 72
    for j in range(20): k.i(f"v_pk_add_f32 v[{F+2*j}:{F+2*j+1}], v[{F+2*j}:{F+2*j+1}], v[112:113] op_sel_hi:[1,0] neg_lo:[0,1] neg_hi:[0,1]")
    for j in range(20): k.i(f"v_cvt_pk_bf16_f32 v{Y+j}, v{F+2*j}, v{F+2*j+1}")
    for j in range(20): k.i(f"v_lshlrev_b32 v{F+2*j}, 16, v{Y+j}\nv_and_b32 v{F+2*j+1}, s23, v{Y+j}")
    for i in range(5):
        for j in range(4*i, 4*i+4):
            k.i(f"v_pk_mul_f32 v[{F+2*j}:{F+2*j+1}], v[{F+2*j}:{F+2*j+1}], v[114:115] op_sel_hi:[1,0]")
        for j in range(4*i, 4*i+4):
            k.i(f"v_cvt_pk_bf16_f32 v{Y+j}, v{F+2*j}, v{F+2*j+1}")
        k.i(f"buffer_store_dwordx4 v[{Y+4*i}:{Y+4*i+3}], v7, s[16:19], s21 offen {HO}")
        if i < 4: k.i("s_add_u32 s21, s21, 8192")
    k.i("s_branch p0_drain")
    k.label("p0_w")
    m, sh = magic(80, 320)
    k.i(f"""s_cmp_ge_u32 s45, 248
    s_cbranch_scc1 p0_zero
    s_sub_u32 s21, s45, 128
    s_mul_i32 s30, s21, 171
    s_lshr_b32 s30, s30, 9
    s_mul_i32 s31, s30, 3
    s_sub_u32 s31, s21, s31
    s_mul_i32 s21, s30, 61440
    s_mul_i32 s22, s31, 1280
    s_add_u32 s21, s21, s22
    s_lshl_b32 s22, s20, 2
    s_mul_i32 s23, s20, 5120
    s_mov_b32 s10, 2457600
    s_mov_b32 s11, 0x20000""")
    for i in range(5):
        k.i(f"""v_add_u32 v4, {64*i}, v1
        v_mul_u32_u24 v5, {m}, v4
        v_lshrrev_b32 v5, {sh}, v5
        v_mul_u32_u24 v6, 80, v5
        v_sub_u32 v6, v4, v6
        v_lshlrev_b32 v6, 4, v6
        v_lshlrev_b32 v7, 6, v5
        v_add_u32 v5, s22, v5
        v_mul_u32_u24 v5, 3840, v5
        v_xad_u32 v{12+i}, v6, v7, v5""")
    k.i(f"s_waitcnt lgkmcnt(0)\ns_mov_b32 s8, s{PWQ}\ns_mov_b32 s9, s{PWQ+1}")
    stamp(9, "p0")
    for i in range(5):
        k.i(f"s_add_u32 m0, s23, {1024*i}\nbuffer_load_dwordx4 v{12+i}, s[8:11], s21 offen {cold} lds")
    stamp(5, "p0")
    k.i(f"s_load_dword s44, s[14:15], {CB}")
    srd(16, 14, WSZ)
    k.i(f"""v_lshrrev_b32 v30, 4, v1
    v_lshrrev_b32 v4, 1, v30
    v_lshl_add_u32 v4, v4, 3, v28
    v_mul_u32_u24 v4, 1280, v4
    v_and_b32 v5, 1, v30
    v_lshlrev_b32 v5, 5, v5
    v_lshl_add_u32 v5, v29, 3, v5
    v_lshlrev_b32 v6, 6, v28
    s_lshl_b32 s21, s30, 12
    s_add_u32 s21, s21, {WQ}
    s_cmp_lg_u32 s31, 0
    s_cbranch_scc1 p0_wkv
    s_lshl_b32 s22, s20, 6
    v_add_u32 v5, s22, v5
    v_xad_u32 v7, v5, v6, v4
    s_lshl_b32 s22, s20, 10
    s_add_u32 s21, s21, s22
    s_add_u32 s21, s21, {11*163840}
    s_waitcnt vmcnt(0)""")
    stamp(7, "p0")
    k.i("s_barrier")
    for m_ in range(5):
        r = 32 + 4*m_
        k.lg(f"ds_read_b64_tr_b16 v[{r}:{r+1}], v7 offset:{256*m_}")
        k.lg(f"ds_read_b64_tr_b16 v[{r+2}:{r+3}], v7 offset:{256*m_+4*1280}", f"q{m_}")
    for m_ in range(5):
        r = 32 + 4*m_
        k.wait(lg=f"q{m_}")
        k.i(f"buffer_store_dwordx4 v[{r}:{r+3}], v3, s[16:19], s21 offen {HO}\ns_add_u32 s21, s21, 163840")
    k.i("s_branch p0_drain")
    k.label("p0_wkv")
    k.i("""s_and_b32 s22, s20, 1
    s_lshr_b32 s23, s20, 1
    s_lshl_b32 s24, s22, 6
    s_mul_i32 s25, s23, 120
    s_add_u32 s24, s24, s25
    v_add_u32 v5, s24, v5
    s_lshl_b32 s24, s31, 1
    s_add_u32 s24, s24, s22
    s_sub_u32 s24, s24, 2
    s_lshl_b32 s24, s24, 10
    s_add_u32 s21, s21, s24
    s_mul_i32 s24, s23, 163840
    s_add_u32 s21, s21, s24""")
    for i in range(6):
        k.i(f"v_add_u32 v{12+i}, {240*i}, v5\nv_min_u32 v{12+i}, 1272, v{12+i}\nv_xad_u32 v{12+i}, v{12+i}, v6, v4")
    k.i("s_waitcnt vmcnt(0)")
    stamp(7, "p0")
    k.i("s_barrier")
    for i in range(6):
        r = 32 + 4*i
        k.lg(f"ds_read_b64_tr_b16 v[{r}:{r+1}], v{12+i}")
        k.lg(f"ds_read_b64_tr_b16 v[{r+2}:{r+3}], v{12+i} offset:{4*1280}", f"kv{i}")
    for i in range(6):
        r = 32 + 4*i
        if i == 5: k.i("s_cmp_lg_u32 s23, 0\ns_cbranch_scc1 p0_drain")
        k.wait(lg=f"kv{i}")
        k.i(f"buffer_store_dwordx4 v[{r}:{r+3}], v3, s[16:19], s21 offen {HO}\ns_add_u32 s21, s21, 327680")
    k.i("s_branch p0_drain")
    k.label("p0_zero")
    k.i(f"""s_sub_u32 s21, s45, 248
    s_mul_i32 s21, s21, 6720
    s_add_u32 s21, s21, {KVA}
    v_lshlrev_b32 v4, 4, v0
    v_mov_b32 v8, 0
    v_mov_b32 v9, 0
    v_mov_b32 v10, 0
    v_mov_b32 v11, 0
    v_lshrrev_b32 v30, 4, v1
    s_mov_b32 s10, 6720
    s_mov_b32 s11, 0x20000
    s_waitcnt lgkmcnt(0)
    s_add_u32 s8, s14, s21
    s_addc_u32 s9, s15, 0
    buffer_store_dwordx4 v[8:11], v4, s[8:11], 0 offen {HO}
    v_add_u32 v4, 4096, v4
    buffer_store_dwordx4 v[8:11], v4, s[8:11], 0 offen {HO}
    s_load_dword s44, s[14:15], {CB}""")
    stamp(9, "p0"); stamp(5, "p0"); stamp(7, "p0")
    srd(16, 14, WSZ)
    k.label("p0_drain")
    stamp(1)
    k.i("s_waitcnt vmcnt(0) lgkmcnt(0)\ns_add_u32 s44, s44, 1\ns_barrier")
    k.reset_counts()
    stamp(2)
    sig_all(F0, 4)
    if OPT.get("xc"): k.i(f"""s_cmp_ge_u32 s45, 128
    s_cbranch_scc1 p0_noxc
    s_add_u32 s21, s21, {XC - XN - 4*8192}""")
    for i in range(5 if OPT.get("xc") else 0):
        k.i(f"buffer_store_dwordx4 v[{X+4*i}:{X+4*i+3}], v7, s[16:19], s21 offen {HO}\ns_add_u32 s21, s21, 8192")
    k.label("p0_noxc")
    k.i(f"""s_cmp_lg_u32 s20, 2
    s_cbranch_scc1 p0_nob
    v_lshlrev_b32 v4, 7, v1
    v_min_u32 v5, 3068, v4
    v_min_u32 v4, 1276, v4
    global_load_dword v31, v5, s[{PB1}:{PB1+1}]
    global_load_dword v31, v4, s[{PB2}:{PB2+1}]""")
    k.label("p0_nob")
    UN = 0 if OPT.get("nounit") else 232
    k.i(f"""s_cmp_ge_u32 s45, {UN}
    s_cbranch_scc1 p0_uid
    s_sub_u32 s23, s20, 1
    s_mul_i32 s22, s23, 7168
    s_cmp_ge_u32 s45, 136
    s_cbranch_scc1 p0_ui_w2
    s_cmp_ge_u32 s45, 40
    s_cbranch_scc1 p0_ui_w1""")
    srd(8, PWO, 819200)
    k.i("""s_mul_i32 s35, s45, 26
    s_lshr_b32 s35, s35, 8
    s_mul_i32 s36, s35, 10
    s_sub_u32 s36, s45, s36
    s_mul_i32 s21, s35, 204800
    s_movk_i32 s29, 1280
    s_branch p0_ui_128""")
    k.label("p0_ui_w1")
    srd(8, PW1, 1966080)
    k.i("""s_sub_u32 s34, s45, 40
    s_mul_i32 s35, s34, 43
    s_lshr_b32 s35, s35, 10
    s_mul_i32 s36, s35, 24
    s_sub_u32 s36, s34, s36
    s_mul_i32 s21, s35, 491520
    s_movk_i32 s29, 3072""")
    k.label("p0_ui_128")
    k.i(f"""s_cmp_eq_u32 s20, 0
    s_cbranch_scc1 p0_uid
    s_lshl_b32 s24, s36, 7
    s_add_u32 s21, s21, s24
    v_lshrrev_b32 v4, 3, v1
    s_mul_i32 s24, s23, 56
    v_add_u32 v4, s24, v4
    v_and_b32 v5, 7, v1
    v_lshlrev_b32 v5, 4, v5
    v_and_b32 v6, 2, v4
    v_lshlrev_b32 v6, 5, v6
    v_mul_lo_u32 v4, v4, s29
    v_xad_u32 v4, v5, v6, v4
    s_lshl_b32 s29, s29, 3""")
    for i in range(7):
        k.i(f"s_add_u32 m0, s22, {UL+1024*i}\nbuffer_load_dwordx4 v4, s[8:11], s21 offen {cold} lds\ns_add_u32 s21, s21, s29")
    k.i("s_branch p0_uid")
    k.label("p0_ui_w2")
    srd(8, PW2, 1966080)
    m, sh = magic(40, 1344)
    k.i("""s_sub_u32 s34, s45, 136
    s_lshr_b32 s35, s34, 1
    s_and_b32 s36, s34, 1
    s_cmp_eq_u32 s20, 0
    s_cbranch_scc1 p0_uid
    s_mul_i32 s21, s35, 40960
    s_mul_i32 s24, s36, 640
    s_add_u32 s21, s21, s24
    s_mul_i32 s24, s23, 448
    v_add_u32 v8, s24, v1""")
    for i in range(7):
        k.i(f"""v_add_u32 v4, {64*i}, v8
        v_mul_u32_u24 v5, {m}, v4
        v_lshrrev_b32 v5, {sh}, v5
        v_mul_u32_u24 v6, 40, v5
        v_sub_u32 v6, v4, v6
        v_lshlrev_b32 v6, 4, v6
        v_and_b32 v7, 2, v5
        v_lshlrev_b32 v7, 4, v7
        v_and_b32 v9, 16, v5
        v_lshl_or_b32 v7, v9, 2, v7
        v_mul_u32_u24 v5, 1280, v5
        v_xad_u32 v4, v6, v7, v5
        s_add_u32 m0, s22, {UL+1024*i}
        buffer_load_dwordx4 v4, s[8:11], s21 offen {cold} lds""")
    k.label("p0_uid")

def unit_proc(sfx):
    UN = 0 if OPT.get("nounit") else 232
    D0 = 32
    k.i(f"""s_cmp_ge_u32 s45, {UN}
    s_cbranch_scc1 up_end{sfx}
    s_cmp_ge_u32 s45, 136
    s_cbranch_scc1 up_w2{sfx}
    s_and_b32 s6, s20, 1
    s_lshr_b32 s7, s20, 1
    s_lshl_b32 s37, s36, 1
    s_add_u32 s37, s37, s6
    s_cmp_ge_u32 s45, 40
    s_cbranch_scc1 up_w1{sfx}""")
    k.i(f"""v_and_b32 v52, 1, v30
    v_lshrrev_b32 v53, 1, v29
    v_lshl_add_u32 v52, v52, 1, v53
    v_add_u32 v52, s35, v52
    v_and_b32 v52, 3, v52
    v_lshlrev_b32 v52, 4, v52
    v_and_b32 v53, 1, v29
    v_lshl_add_u32 v52, v53, 3, v52
    s_lshl_b32 s24, s6, 6
    v_add_u32 v52, s24, v52
    v_and_b32 v53, 2, v28
    v_lshlrev_b32 v53, 5, v53
    v_xor_b32 v52, v52, v53
    v_lshl_add_u32 v52, v28, 7, v52
    s_mul_i32 s24, s7, 10240
    s_add_u32 s24, s24, {UL}
    v_add_u32 v52, s24, v52
    v_lshrrev_b32 v54, 5, v1
    v_lshlrev_b32 v54, 4, v54
    s_mul_i32 s24, s37, 205
    s_lshr_b32 s24, s24, 10
    s_mul_i32 s25, s24, 5
    s_sub_u32 s25, s37, s25
    s_lshl_b32 s24, s24, 2
    s_add_u32 s24, s24, s35
    s_mul_i32 s24, s24, 10
    s_mul_i32 s4, s7, 5
    s_add_u32 s24, s24, s4
    s_mul_i32 s24, s24, 5
    s_add_u32 s24, s24, s25
    s_lshl_b32 s24, s24, 10
    s_add_u32 s24, s24, {WO}""")
    for uu in range(5):
        for h2 in range(2):
            m_ = 2*uu + h2
            K = 0
            for hi in range(2): K |= ((40*(m_//5) + ROWOFF[hi][m_ % 5]) * 128) << (16*hi)
            r = D0 + 4*uu + 2*h2
            k.i(f"s_mov_b32 s25, {K:#x}\nv_bfe_u32 v55, s25, v54, 16\nv_add_u32 v55, v55, v52")
            k.lg(f"ds_read_b64_tr_b16 v[{r}:{r+1}], v55", f"uo{uu}")
    for uu in range(5):
        r = D0 + 4*uu
        k.wait(lg=f"uo{uu}")
        k.i(f"buffer_store_dwordx4 v[{r}:{r+3}], v3, s[16:19], s24 offen {HO}\ns_add_u32 s24, s24, 5120")
    k.i(f"s_branch up_end{sfx}")
    k.label(f"up_w1{sfx}")
    k.i(f"""v_lshrrev_b32 v52, 1, v30
    v_lshl_add_u32 v52, v52, 3, v28
    v_and_b32 v53, 1, v30
    v_lshlrev_b32 v53, 5, v53
    v_lshl_add_u32 v53, v29, 3, v53
    s_lshl_b32 s24, s6, 6
    v_add_u32 v53, s24, v53
    v_and_b32 v54, 2, v28
    v_lshlrev_b32 v54, 5, v54
    v_lshlrev_b32 v52, 7, v52
    v_xad_u32 v52, v53, v54, v52
    s_mul_i32 s24, s7, 10240
    s_add_u32 s24, s24, {UL}
    v_add_u32 v52, s24, v52
    v_mov_b32 v56, 0
    s_mov_b32 s4, 0x3f803f80
    s_mul_i32 s24, s37, 171
    s_lshr_b32 s24, s24, 9
    s_mul_i32 s25, s24, 3
    s_sub_u32 s25, s37, s25
    s_mul_i32 s24, s24, 40
    s_mul_i32 s5, s35, 10
    s_add_u32 s24, s24, s5
    s_mul_i32 s5, s7, 5
    s_add_u32 s24, s24, s5
    s_mul_i32 s24, s24, 3
    s_add_u32 s24, s24, s25
    s_lshl_b32 s24, s24, 10
    s_add_u32 s24, s24, {W1}""")
    for ks in range(5):
        r = D0 + 4*ks
        k.lg(f"ds_read_b64_tr_b16 v[{r}:{r+1}], v52 offset:{ks*2048}")
        k.lg(f"ds_read_b64_tr_b16 v[{r+2}:{r+3}], v52 offset:{ks*2048+512}", f"u1{ks}")
    for ks in range(5):
        r = D0 + 4*ks
        k.wait(lg=f"u1{ks}")
        k.i(f"buffer_store_dwordx4 v[{r}:{r+3}], v3, s[16:19], s24 offen {HO}\ns_add_u32 s24, s24, 3072")
        for j in range(4): k.i(f"v_dot2_f32_bf16 v56, v{r+j}, s4, v56")
    k.i(f"""s_nop 2
    v_mov_b32 v57, v56
    s_lshl_b32 s24, s35, 1
    s_add_u32 s24, s24, s7
    v_permlane32_swap_b32 v56, v57
    s_mul_i32 s24, s24, 6144
    s_lshl_b32 s25, s37, 7
    s_add_u32 s24, s24, s25
    s_add_u32 s24, s24, {CS}
    v_add_f32 v56, v56, v57
    v_lshlrev_b32 v57, 2, v1
    s_mov_b64 exec, 0xffffffff
    buffer_store_dword v56, v57, s[16:19], s24 offen {HO}
    s_mov_b64 exec, -1
    s_branch up_end{sfx}""")
    k.label(f"up_w2{sfx}")
    k.i(f"""v_and_b32 v52, 1, v30
    v_lshlrev_b32 v52, 4, v52
    v_lshrrev_b32 v53, 1, v30
    v_lshl_add_u32 v52, v53, 2, v52
    v_add_u32 v52, v52, v28
    v_and_b32 v54, 2, v52
    v_lshlrev_b32 v54, 4, v54
    v_and_b32 v55, 16, v52
    v_lshl_or_b32 v54, v55, 2, v54
    v_mul_u32_u24 v52, 640, v52
    v_add_u32 v52, {UL}, v52
    s_mul_i32 s24, s20, 160
    v_lshl_add_u32 v53, v29, 3, s24
    s_lshl_b32 s24, s36, 2
    s_add_u32 s24, s24, s20
    s_mul_i32 s24, s24, 48
    s_add_u32 s24, s24, s35
    s_mul_i32 s24, s24, 5120
    s_add_u32 s24, s24, {W2}""")
    for m_ in range(5):
        r = D0 + 4*m_
        k.i(f"v_add_u32 v55, {32*m_}, v53\nv_xad_u32 v55, v55, v54, v52")
        k.lg(f"ds_read_b64_tr_b16 v[{r}:{r+1}], v55")
        k.lg(f"ds_read_b64_tr_b16 v[{r+2}:{r+3}], v55 offset:{8*640}", f"u2{m_}")
    for m_ in range(5):
        r = D0 + 4*m_
        k.wait(lg=f"u2{m_}")
        k.i(f"buffer_store_dwordx4 v[{r}:{r+3}], v3, s[16:19], s24 offen {HO}\ns_add_u32 s24, s24, 1024")
    k.label(f"up_end{sfx}")

WOR = [160 + 4*f for f in range(21)] + [44 + 4*f for f in range(29)]
PQA = 0; XA = 244
W2R = WOR + list(range(0, 40, 4))
TBV = 244
WOB = None; XQ = None
def phase1():
    global WOB
    k.i(f"""v_add_u32 v4, 0x10000, v3
    v_add_u32 v5, 0x20000, v3
    s_lshl_b32 s28, s26, 2
    s_add_u32 s28, s28, s20
    s_mul_i32 s21, s28, 40960
    s_add_u32 s21, s21, {XN}
    s_lshl_b32 s23, s20, 12
    s_mul_i32 s22, s27, 163840
    s_add_u32 s22, s22, s23
    s_add_u32 s22, s22, {WQ}
    s_mov_b32 s40, {LOG2E:#x}
    s_mov_b32 s41, {LOG2E:#x}
    s_mov_b32 s38, 0x358637bd
    s_mov_b32 s39, 0x358637bd""")
    if OPT.get("mapb"):
        k.i(f"""s_and_b32 s{PWQ}, s2, 7
        s_lshl_b32 s{PWQ}, s{PWQ}, 1
        s_lshr_b32 s33, s2, 7
        s_add_u32 s{PWQ}, s{PWQ}, s33
        s_bfe_u32 s{PWQ+1}, s2, 0x40003
        s_and_b32 s13, s{PWQ+1}, 7
        s_lshr_b32 s12, s{PWQ+1}, 3
        s_lshl_b32 s31, s{PWQ}, 1
        s_add_u32 s12, s12, s31
        s_lshl_b32 s31, s{PWQ}, 2
        s_lshr_b32 s29, s{PWQ+1}, 2
        s_add_u32 s29, s29, s31
        s_and_b32 s30, s{PWQ+1}, 3""")
    else:
        k.i(f"""s_mov_b32 s{PWQ}, s26
        s_mov_b32 s{PWQ+1}, s27
    s_lshr_b32 s33, s27, 3
        s_lshl_b32 s13, s33, 2
        s_and_b32 s12, s27, 3
        s_add_u32 s13, s13, s12
        s_bfe_u32 s12, s27, 0x10002
        s_lshl_b32 s31, s26, 1
        s_add_u32 s12, s12, s31
        s_lshl_b32 s31, s26, 2
        s_bfe_u32 s29, s27, 0x20001
        s_add_u32 s29, s29, s31
        s_lshl_b32 s30, s33, 1
        s_and_b32 s33, s27, 1
        s_add_u32 s30, s30, s33""")
    k.i(f"""    s_lshl_b32 s31, s30, 2
    s_add_u32 s31, s31, s20
    s_mul_i32 s31, s31, 51200
    s_add_u32 s31, s31, {WO}
""")
    k.i(f"""v_and_b32 v24, 31, v1
    v_lshlrev_b32 v24, 4, v24
    v_lshrrev_b32 v25, 5, v1
    v_lshl_add_u32 v24, v25, 3, v24
    s_mul_i32 s3, s29, 40
    s_mul_i32 s33, s30, 10
    s_add_u32 s3, s3, s33
    s_lshr_b32 s33, s20, 1
    s_add_u32 s3, s3, s33
    s_lshl_b32 s3, s3, 10
    s_and_b32 s33, s20, 1
    s_lshl_b32 s33, s33, 9
    s_add_u32 s3, s3, s33
    s_add_u32 s3, s3, {XC}
""" if OPT.get("xc") else """v_and_b32 v24, 31, v1
    s_lshl_b32 s33, s29, 5
    v_add_u32 v24, s33, v24
    v_mul_u32_u24 v24, 1280, v24
    v_lshrrev_b32 v25, 5, v1
    v_lshl_add_u32 v24, v25, 3, v24
    s_mul_i32 s3, s30, 320
    s_lshl_b32 s34, s20, 4
    s_add_u32 s3, s3, s34
""")
    k.i(f"""v_lshlrev_b32 v26, 2, v0
    v_lshlrev_b32 v27, 1, v0
    s_mul_i32 s33, s{PWQ+1}, 192
    s_add_u32 s{PB1}, s{PB1}, s33
    s_addc_u32 s{PB1+1}, s{PB1+1}, 0
    s_mul_i32 s{PW1}, s{PWQ+1}, 384
    s_add_u32 s{PW1}, s{PW1}, {CS}""")
    XM = OPT.get("xm", "win")
    def xloads(pol):
        for c in range(5):
            k.i(f"global_load_dwordx2 a[{XA+2*c}:{XA+2*c+1}], v24, s[{PX}:{PX+1}] offset:{64*c} {pol}")
    k.i("v_add_u32 v24, s3, v24")
    if XM == "early": xloads(OPT.get('xpol', 'nt'))
    elif XM == "mix":
        k.i("s_cmp_eq_u32 s20, 0\ns_cbranch_scc1 p1_nox")
        xloads(OPT.get('xpol', ''))
        k.label("p1_nox")
    k.i(f"v_min_u32 v27, 190, v27")
    poll_all(F0, 8, O("slp0", 16))
    k.i("s_barrier")
    stamp(4)
    ACC = 64; WB = 128; T = 8; PK = 176; FB0 = 20; NS = 12; AH = 8
    PRE = O("pre1", 3)
    Q = BG()
    for s in range(10):
        for j in range(4):
            Q.add(f"buffer_load_dwordx4 v3, s[16:19], s22 offen offset:{1024*j} {HO} lds", f"W{s}",
                  pre=(f"s_add_u32 m0, s23, {s*16384}" if j == 0 else ""), post=("s_add_u32 s22, s22, 16384" if j == 3 else ""))
        for j in range(4):
            Q.add(f"buffer_load_dwordx4 a[{16*s+4*j}:{16*s+4*j+3}], v3, s[16:19], s21 offen offset:{1024*j} {HO}", f"X{4*s+j}",
                  post=("s_add_u32 s21, s21, 4096" if j == 3 else ""))
    Q.go(8*PRE)
    k.wait(vm="W0"); k.i("s_barrier")
    sv0 = snap(); unit_proc(""); rest(sv0)
    stamp(3)
    k.i("s_cmp_ge_u32 s27, 11\ns_cbranch_scc1 p1_q")
    sv = snap(); Qs = list(Q.q)
    def mkbg():
        B = BG()
        for i in range(50):
            B.add(f"buffer_load_dwordx4 a[{WOR[i]}:{WOR[i]+3}], v3, s[16:19], s31 offen offset:{1024*(i%4)} {HO}", f"wo{i}", post=("s_add_u32 s31, s31, 4096" if i % 4 == 3 else ""))
        return B
    def small():
        S = BG()
        global XQ
        X_ = XQ = BG()
        for j in range(8):
            S.add(f"buffer_load_dword v{TBV+j}, v26, s[16:19], s{PW1} offen {HO}", post=f"s_add_u32 s{PW1}, s{PW1}, 6144")
        for c in range(5):
            if OPT.get("xc"): S.add(f"buffer_load_dwordx2 a[{XA+2*c}:{XA+2*c+1}], v24, s[16:19], s3 offen offset:{2048*(c%2)} {HO}", post=("s_add_u32 s3, s3, 4096" if c % 2 else ""))
        return S
    NPRE = O("wo_pre", 20)
    def loop(act_first, order_tail, fill_after, B, sfx):
        items = [(ks, j) for ks in range(40 - len(order_tail)//4) for j in range(4)] + order_tail
        first = {}
        for n_, (ks_, j_) in enumerate(items): first.setdefault(ks_//4, n_)
        NCHK = 2*(80 - 8*PRE) + O("chk", 0)
        def rd(n):
            ks, j = items[n]
            if ks >= 4 and first[ks//4] == n:
                k.wait(vm=f"W{ks//4}"); k.i("s_barrier")
                if ks//4 == PRE + 1:
                    signal(1, f"v_mov_b32 v7, 0\ns_lshl_b32 s42, s45, 2\ns_add_u32 s42, s42, {F0B}", 6)
            o = (ks*4 + j) * 1024
            r = WB + 4*(n % NS)
            k.lg(f"ds_read_b128 v[{r}:{r+3}], v{3 + o//65536} offset:{o % 65536}", f"w{n}")
        for n in range(AH): rd(n)
        fill = []
        for n, (ks, j) in enumerate(items):
            if n % 2 == 0:
                k.wait(vm=f"X{max(items[n][0], items[n+1][0])}", lg=f"w{n+1}")
                if n % 16 == 0: stamp(8 + n//16, "p1")
            w = vr(WB + 4*(n % NS), 4); x = ar(4*ks, 4); d = vr(ACC + 16*j, 16)
            c = "0" if ks == 0 else d
            k.i(f"v_mfma_f32_32x32x16_bf16 {d}, {x}, {w}, {c}" if act_first else f"v_mfma_f32_32x32x16_bf16 {d}, {w}, {x}, {c}")
            if n % 2 == 0:
                if Q.left(): Q.go()

            else:
                for m_ in (n - 1 + AH, n + AH):
                    if m_ < 160: rd(m_)
            if n == NCHK - 16:
                k.i(f"s_mov_b32 s42, {F0B}")
                k.vm(f"buffer_load_dwordx4 v[{FB0}:{FB0+3}], v3, s[16:19], s42 offen sc1", "f0b")
            if n == NCHK:
                k.wait(vm="f0b")
                check4(FB0)
                k.i(f"s_cbranch_vccz p1_ok{sfx}\ns_mov_b32 s42, {F0B}")
                poll(3, 42, FB0, wide=True, w0=False)
                k.label(f"p1_ok{sfx}")
                SQ[0] = small()
                lim[0] = min(21, NPRE); k.th = O("th1", 96)
                k.auto = lambda: B.go() if 50 - B.left() < lim[0] else None
            if n in fill_after: fill += fill_after[n]
            for _ in range(6):
                if fill: k.i(fill.pop(0))
        lim[0] = NPRE; k.th = O("th1e", 90)
        for l in fill: k.i(l)
    lim = [0]; SQ = [None]
    def phi_lines(t):
        with capture() as c:
            for b in range(0, 16, 4): phi4(ACC + 16*t + b, PK + 8*t + b//2, T)
        return c.lines
    TL = O("tl1", 4)
    tail = [(ks, j) for ks in range(40-TL, 40) for j in (0, 1)] + [(ks, j) for ks in range(40-TL, 40) for j in (2, 3)]
    B = mkbg()
    loop(True, tail, {161 - 2*TL: phi_lines(0) + phi_lines(1)}, B, "kv")
    stamp(5)
    k.i("s_lshl_b32 s33, s20, 13\nv_add_u32 v6, s33, v3")
    for t in (0, 1):
        for f in range(2):
            k.lg(f"ds_write_b128 v6, v[{PK+8*t+4*f}:{PK+8*t+4*f+3}] offset:{2048*t+1024*f}")
    for t in (2, 3):
        for p in range(8):
            k.i(f"v_cvt_pk_bf16_f32 v{PK+8*t+p}, v{ACC+16*t+2*p}, v{ACC+16*t+2*p+1}")
        if t == 3:
            k.i("s_mov_b32 s34, 0xf0000000\ns_mov_b32 s35, 0xf0000000\nv_mov_b32 v7, 0x3f803f80")
            for p in range(8): k.i(f"v_cndmask_b32 v{PK+24+p}, v{PK+24+p}, v7, s[34:35]")
        for f in range(2):
            k.lg(f"ds_write_b128 v6, v[{PK+8*t+4*f}:{PK+8*t+4*f+3}] offset:{2048*t+1024*f}")
    k.i("""s_lshr_b32 s33, s20, 1
    s_and_b32 s34, s20, 1
    s_lshl_b32 s35, s33, 11
    v_add_u32 v8, s35, v3
    s_lshl_b32 s35, s34, 11
    s_add_u32 s35, s35, 4096
    v_add_u32 v9, s35, v3""")
    k.wait(lg="all"); k.i("s_barrier")
    stamp(8, "p1e")
    FA = 64; FB = 96; DD = 128
    for w in range(4):
        for f in range(2):
            n = 2*w + f
            k.lg(f"ds_read_b128 v[{FA+4*n}:{FA+4*n+3}], v8 offset:{8192*w+1024*f}")
            k.lg(f"ds_read_b128 v[{FB+4*n}:{FB+4*n+3}], v9 offset:{8192*w+1024*f}", f"f{n}")
    with capture() as c:
        k.i("""v_and_b32 v10, 31, v1
        s_lshl_b32 s35, s34, 5
        v_add_u32 v10, s35, v10
        v_mul_u32_u24 v11, 205, v10
        v_lshrrev_b32 v11, 12, v11
        v_mul_u32_u24 v12, 20, v11
        v_sub_u32 v12, v10, v12
        v_cmp_eq_u32 s[36:37], 60, v10
        v_mov_b32 v13, 20
        v_lshrrev_b32 v14, 5, v1
        v_cndmask_b32 v12, v12, v13, s[36:37]
        v_mul_u32_u24 v12, 80, v12
        v_lshlrev_b32 v14, 2, v14
        s_lshl_b32 s35, s33, 5
        v_add_u32 v14, s35, v14
        v_lshlrev_b32 v22, 2, v0""")
        MS = [4, 6, 24, 34]
        for j in range(4):
            ms = MS[j]
            k.i(f"""v_add_u32 v15, {8*j}, v14
            v_mul_u32_u24 v20, 205, v15
            v_lshrrev_b32 v20, 12, v20
            v_mul_u32_u24 v21, 20, v20
            v_sub_u32 v21, v15, v21
            v_cmp_eq_u32 s[{ms}:{ms+1}], v20, v11
            v_cmp_gt_u32 vcc, 3, v20
            v_mul_u32_u24 v20, 1680, v20
            v_lshl_add_u32 v21, v21, 2, v12
            v_add_u32 v{16+j}, v20, v21
            s_or_b64 s[{ms}:{ms+1}], s[{ms}:{ms+1}], s[36:37]
            s_and_b64 s[{ms}:{ms+1}], s[{ms}:{ms+1}], vcc""")
    fill = c.lines
    for _ in range(16): k.i(fill.pop(0))
    def kvm(n):
        def f():
            k.wait(lg=f"f{n}")
            k.i(f"v_mfma_f32_32x32x16_bf16 v[{DD}:{DD+15}], v[{FA+4*n}:{FA+4*n+3}], v[{FB+4*n}:{FB+4*n+3}], {'0' if n == 0 else vr(DD,16)}")
        return f
    for l in merge([kvm(n) for n in range(8)], fill, 6): k.i(l)
    for j in range(4):
        k.i(f"s_mov_b64 exec, s[{MS[j]}:{MS[j]+1}]")
        k.lg(f"ds_write_b128 v{16+j}, v[{DD+4*j}:{DD+4*j+3}] offset:32768")
    k.i(f"""s_mov_b64 exec, -1
    s_mul_i32 s33, s27, 5040
    s_add_u32 s33, s33, {KVA}
    s_add_u32 s4, s14, s33
    s_addc_u32 s5, s15, 0
    s_cmp_eq_u32 s27, 10
    s_movk_i32 s6, 5040
    s_cselect_b32 s6, 3360, s6
    s_mov_b32 s7, 0x20000""")
    k.wait(lg="all"); k.i("s_barrier")
    stamp(9, "p1e")
    for i in range(5):
        k.lg(f"ds_read_b32 v{32+i}, v22 offset:{32768+1024*i}", f"d{i}")
    for i in range(5):
        k.wait(lg=f"d{i}")
        if i == 4: k.i("v_add_u32 v22, 4096, v22")
        k.vm(f"buffer_atomic_add_f32 v{32+i}, v22, s[4:7], 0 offen offset:{1024*(i%4)}", "out1")
    stamp(10, "p1e")
    def bg_finish(B):
        k.auto = None
        print("WO left for the drain:", NPRE - (50 - B.left()), file=sys.stderr)
        if O("pqe", 1):
            k.i(f"v_min_u32 v{FB0+1}, 4, v1\nv_lshlrev_b32 v{FB0+1}, 2, v{FB0+1}\ns_and_b32 s24, s2, 7\ns_lshl_b32 s24, s24, 12\ns_lshl_b32 s25, s26, 8\ns_add_u32 s24, s24, s25\ns_add_u32 s24, s24, {F1 + 128 + 12}")
            k.vm(f"buffer_load_dword v{FB0}, v{FB0+1}, s[16:19], s24 offen sc1", "out1")
        B.go(NPRE - (50 - B.left()))
    bg_finish(B)
    k.wait(vm="out1")
    k.i("s_branch p1_fin")
    k.label("p1_q")
    rest(sv); Q.q = list(Qs)
    k.i(f"""s_mul_i32 s33, s28, 40960
    s_sub_u32 s34, s27, 11
    s_lshl_b32 s34, s34, 13
    s_add_u32 s33, s33, s34
    s_add_u32 s33, s33, {PQ}""")
    tail = [(ks, j) for j in range(4) for ks in range(36, 40)]
    B = mkbg()
    loop(False, tail, {149: phi_lines(0), 153: phi_lines(1)}, B, "q")
    stamp(5)
    for t in range(4):
        if t >= 2:
            for b in range(0, 16, 4):
                phi4(ACC + 16*t + b, PK + 8*t + b//2, T)
        for f in range(2):
            k.vm(f"buffer_store_dwordx4 v[{PK+8*t+4*f}:{PK+8*t+4*f+3}], v3, s[16:19], s33 offen offset:{(2048*t+1024*f) % 4096} {HO}", "out1")
        if t == 1: k.i("s_add_u32 s33, s33, 4096")
    stamp(8, "p1e"); stamp(9, "p1e"); stamp(10, "p1e")
    bg_finish(B)
    k.wait(vm="out1")
    k.label("p1_fin")
    stamp(6)
    k.i("s_barrier")
    sig_all(F1, 6)
    WOB = B
    k.i(f"s_mov_b32 s26, s{PWQ}\ns_mov_b32 s27, s{PWQ+1}")
    if O("pqe", 1):
        k.i(f"v_cmp_ne_u32 vcc, s44, v{FB0}\ns_cbranch_vccz p1_qok")
        poll(FB0+1, 24, FB0, w0=False)
        k.label("p1_qok")
        k.i(f"""s_mul_i32 s22, s29, 40960
        s_mul_i32 s33, s20, 10240
        s_add_u32 s22, s22, s33
        s_add_u32 s22, s22, {PQ}""")
        for kl in range(10):
            k.vm(f"buffer_load_dwordx4 a[{PQA+4*kl}:{PQA+4*kl+3}], v3, s[16:19], s22 offen offset:{1024*(kl%4)} {HO}", f"pq{kl}")
            if kl % 4 == 3: k.i("s_add_u32 s22, s22, 4096")
    k.vm(f"global_load_ushort v{TBV+8}, v27, s[{PB1}:{PB1+1}]")
    SQ[0].go(99)
    if XM == "win": xloads("")
    if XM == "mix":
        k.i("s_cmp_lg_u32 s20, 0\ns_cbranch_scc1 p1_nox2")
        xloads("")
        k.label("p1_nox2")
    WOB.go(O("wo_w", 5))
    NW1 = O("w1_w", 16)
    k.i(f"""s_mul_i32 s25, s27, 122880
    s_add_u32 s25, s25, {W1}
    s_cmp_eq_u32 s20, 0
    s_cbranch_scc1 p1_now1
    s_sub_u32 s23, s20, 1
    s_mul_i32 s23, s23, {NW1*1024}
    s_add_u32 s24, s25, s23""")
    for i in range(NW1):
        if i % 4 == 0: k.i(f"s_add_u32 m0, s23, {1024*i}")
        if not OPT.get("nobg"): k.i(f"buffer_load_dwordx4 v3, s[16:19], s24 offen offset:{1024*(i%4)} {HO} lds")
        if i % 4 == 3: k.i("s_add_u32 s24, s24, 4096")
    k.i("s_waitcnt vmcnt(0)" if OPT.get("nobg") else f"s_waitcnt vmcnt({NW1})")
    k.label("p1_now1")
    stamp(7)

W2B = None
def phase2():
    global W2B
    P2L = 102400
    k.i(f"""s_mul_i32 s21, s20, 13440
    s_add_u32 s21, s21, {KVA}
    s_mul_i32 s23, s20, 15360
    s_add_u32 s23, s23, {P2L+64}
    s_mul_i32 s22, s29, 40960
    s_mul_i32 s33, s20, 10240
    s_add_u32 s22, s22, s33
    s_add_u32 s22, s22, {PQ}
    v_bfe_u32 v8, v1, 2, 3
    v_lshlrev_b32 v8, 2, v8
    v_and_b32 v9, 3, v1
    s_mov_b32 s33, 0x55524130
    s_mov_b32 s34, 0x55453120
    v_bfe_u32 v10, s33, v8, 4
    v_bfe_u32 v11, s34, v8, 4
    v_lshl_add_u32 v10, v10, 2, v9
    v_lshl_add_u32 v11, v11, 2, v9
    v_min_u32 v10, 20, v10
    v_min_u32 v11, 20, v11
    v_lshrrev_b32 v12, 5, v1
    v_lshlrev_b32 v12, 4, v12
    s_sub_u32 s33, s23, 16
    v_add_u32 v12, s33, v12
    v_mul_u32_u24 v10, 80, v10
    v_mul_u32_u24 v11, 80, v11
    v_add_u32 v10, v10, v12
    v_add_u32 v11, v11, v12
    s_lshl_b32 s28, s26, 2
    s_add_u32 s28, s28, s20
    s_mov_b32 s36, 0
    s_mov_b32 s37, -1
    s_lshl_b32 s35, s13, 2
    s_add_u32 s35, s35, s20
    s_mul_i32 s35, s35, 61440
    s_add_u32 s35, s35, {W2}""")
    poll_all(F1, 14, O('slp1', 0))
    k.i("s_barrier")
    k.vm_done = k.vm_n
    stamp(8)
    for i in range(14):
        if i % 4 == 0: k.i(f"s_add_u32 m0, s23, {1024*i}")
        k.vm(f"buffer_load_dwordx4 v3, s[16:19], s21 offen offset:{1024*(i%4)} {HO} lds", f"kv{i}")
        if i % 4 == 3: k.i("s_add_u32 s21, s21, 4096")
        if i in (6, 13) and not O("pqe", 1):
            for kl in (range(0, 5) if i == 6 else range(5, 10)):
                k.vm(f"buffer_load_dwordx4 a[{PQA+4*kl}:{PQA+4*kl+3}], v3, s[16:19], s22 offen offset:{1024*(kl%4)} {HO}", f"pq{kl}")
                if kl % 4 == 3: k.i("s_add_u32 s22, s22, 4096")
    XQ.go(99)
    NW1 = O("w1_w", 16); N1 = (96 - 3*NW1) // 4
    assert 3*NW1 + 4*N1 == 96
    k.i(f"s_mul_i32 s24, s20, {N1*1024}\ns_add_u32 s24, s24, {3*NW1*1024}\ns_add_u32 s25, s25, s24")
    B1 = BG()
    for i in range(N1):
        B1.add(f"buffer_load_dwordx4 v3, s[16:19], s25 offen offset:{1024*(i%4)} {HO} lds", "w1",
               pre=(f"s_add_u32 m0, s24, {1024*i}" if i % 4 == 0 else ""), post=("s_add_u32 s25, s25, 4096" if i % 4 == 3 else ""))
    W2B = BG()
    for i in range(60):
        W2B.add(f"buffer_load_dwordx4 a[{W2R[i]}:{W2R[i]+3}], v3, s[16:19], s35 offen offset:{1024*(i%4)} {HO}", "w2", post=("s_add_u32 s35, s35, 4096" if i % 4 == 3 else ""))
    AF = 20; TT = 84; DT = 180; OG = 84; ACC = [20, 36, 124, 140, 156]
    for j in range(1, 8): k.i(f"v_add_f32 v{TBV}, v{TBV}, v{TBV+j}")
    k.i(f"v_lshlrev_b32 v{TBV+1}, 16, v{TBV+8}")
    jobs = {}
    n = 0
    for hl in range(8):
        jobs[hl] = []
        for u in range(2):
            for h2 in range(2):
                dg0 = -(hl % 4) + 4*u + 2*h2
                v0_ = 0 <= dg0 <= 4; v1_ = 0 <= dg0+1 <= 4
                d = AF + (2*hl+u)*4 + 2*h2
                if v0_ or v1_:
                    jobs[hl].append((d, n, v0_, v1_, hl*1680 + 16*(dg0+1))); n += 1
                else:
                    jobs[hl].append((d, None, 0, 0, 0))
                    k.i(f"v_mov_b32 v{d}, 0\nv_mov_b32 v{d+1}, 0")
    def kvreads(lo, hi):
        for hl in range(lo, hi):
            for d, n, _, _, o in jobs[hl]:
                if n is not None: k.lg(f"ds_read_b128 v[{TT+4*n}:{TT+4*n+3}], v{10 + (hl & 1)} offset:{o}", f"a{n}")
    def build(hl):
        for d, n, v0_, v1_, _ in jobs[hl]:
            if n is None: continue
            k.wait(lg=f"a{n}")
            t = TT + 4*n
            k.i(f"v_cvt_pk_bf16_f32 v{d}, v{t}, v{t+1}\nv_cvt_pk_bf16_f32 v{d+1}, v{t+2}, v{t+3}")
            if not v1_: k.i(f"v_cndmask_b32 v{d}, v{d}, 0, s[36:37]\nv_cndmask_b32 v{d+1}, v{d+1}, 0, s[36:37]")
            if not v0_: k.i(f"v_cndmask_b32 v{d}, 0, v{d}, s[36:37]\nv_cndmask_b32 v{d+1}, 0, v{d+1}, s[36:37]")
    def omm(hl):
        t0 = hl + hl//4
        d = vr(DT + 16*(hl % 4), 16)
        def f(u):
            def g():
                k.wait(vm=f"pq{t0+u}")
                k.i(f"v_mfma_f32_32x32x16_bf16 {d}, {vr(AF+(2*hl+u)*4, 4)}, {ar(PQA+4*(t0+u), 4)}, {'0' if u == 0 else d}")
            return g
        return [f(0), f(1)]
    def opost(hl):
        p = hl // 2; odd = hl & 1
        D = DT + 16*(hl % 4); rc = 16 + 2*odd
        a, b = (D+8, D+12) if odd else (D+12, D+8)
        with capture() as c:
            k.i(f"v_cndmask_b32 v{rc}, v{a}, v{b}, s[36:37]\nv_add_f32 v{rc}, s38, v{rc}\nv_rcp_f32 v{rc}, v{rc}\ns_nop 0")
            for h in range(6):
                k.i(f"v_pk_mul_f32 v[{D+2*h}:{D+2*h+1}], v[{D+2*h}:{D+2*h+1}], v[{rc}:{rc+1}] op_sel_hi:[1,0]")
            for j in range(2):
                g = OG + 2*(5*p + 2*odd + j)
                k.i(f"v_cvt_pk_bf16_f32 v{g}, v{D+4*j}, v{D+4*j+1}\nv_cvt_pk_bf16_f32 v{g+1}, v{D+4*j+2}, v{D+4*j+3}")
            g = OG + 2*(5*p + 4)
            if not odd:
                k.i(f"v_cvt_pk_bf16_f32 v{g}, v{D+8}, v{D+9}\nv_cvt_pk_bf16_f32 v{g+1}, v{D+10}, v{D+11}")
            else:
                k.i(f"v_cvt_pk_bf16_f32 v{D}, v{D+8}, v{D+9}\nv_cvt_pk_bf16_f32 v{D+1}, v{D+10}, v{D+11}")
                k.i(f"v_cndmask_b32 v{g}, v{g}, v{D}, s[36:37]\nv_cndmask_b32 v{g+1}, v{g+1}, v{D+1}, s[36:37]")
        return c.lines
    def wo(u, c, bg=True):
        def f():
            d = vr(ACC[c], 16)
            while f"wo{5*u+c}" not in k.vm_tags or (WOB.left() and 50 - WOB.left() <= 5*u+c): WOB.go()
            k.wait(vm=f"wo{5*u+c}")
            k.i(f"v_mfma_f32_32x32x16_bf16 {d}, {ar(WOR[5*u+c], 4)}, {vr(OG+4*u, 4)}, {'0' if u == 0 else d}")
            w2lim[0] = min(5*u, 35)
        return f
    w2lim = [0]
    def au2():
        if WOB.left(): WOB.go()
        elif B1.left(): B1.go()
        elif 60 - W2B.left() < w2lim[0]: W2B.go()
    k.auto = au2; k.th = O("th2", 90)
    k.wait(vm="kv6")
    stamp(13, "p2")
    kvreads(0, 4)
    for hl in range(4):
        build(hl)
        for f in omm(hl): f()
        if hl == 1:
            k.wait(vm="kv13"); kvreads(4, 8)
    for hl in range(4, 8):
        build(hl)
    stamp(9)
    for l in opost(0): k.i(l)
    for l in merge(omm(4), opost(1), 9): k.i(l)
    stamp(10)
    for l in merge(omm(5) + [wo(u, c) for u in (0, 1) for c in range(5)], opost(2) + opost(3), 4): k.i(l)
    for l in merge(omm(6) + omm(7) + [wo(u, c) for u in (2, 3, 4) for c in range(5)], opost(4) + opost(5), 3): k.i(l)
    with capture() as c:
        k.i(f"s_sub_u32 s33, s23, 64\nv_add_u32 v13, s33, v3")
        for j in range(1, 4):
            k.i(f"s_sub_u32 s33, s20, {j}\ns_and_b32 s33, s33, 3\ns_mul_i32 s33, s33, 15360\ns_add_u32 s33, s33, {P2L + (j-1)*5120}\nv_add_u32 v{13+j}, s33, v3")
    for l in merge([wo(u, c) for u in (5, 6) for c in range(5)], opost(6) + opost(7), 4): k.i(l)
    XF = 180
    with capture() as c2:
        k.i("s_mov_b32 s33, 0xffff0000")
        for j in range(10):
            k.i(f"v_accvgpr_read_b32 v{XF+2*j+1}, a{XA+j}")
        for j in range(10):
            k.i(f"v_lshlrev_b32 v{XF+2*j}, 16, v{XF+2*j+1}\nv_and_b32 v{XF+2*j+1}, s33, v{XF+2*j+1}")
    fill = c.lines + c2.lines
    if "xres" in k.vm_tags: k.wait(vm="xres")
    def red_w(c):
        for j in range(1, 4):
            r = ACC[c] + 4*j
            k.lg(f"ds_write_b128 v13, v[{r}:{r+3}] offset:{(j-1)*5120 + 1024*c}")
    for c in range(5):
        fill = merge([wo(u, c) for u in (7, 8, 9)], fill, 4)
        if c >= 2: red_w(c - 2)
    for l in fill: k.i(l)
    w2lim[0] = 60
    stamp(11)
    red_w(3); red_w(4)
    for c in range(5):
        for h in range(2):
            d = XF + 4*c + 2*h; a = ACC[c] + 2*h
            k.i(f"v_pk_add_f32 v[{d}:{d+1}], v[{d}:{d+1}], v[{a}:{a+1}]")
    k.wait(lg="all"); k.i("s_barrier")
    stamp(14, "p2")
    RR = 84
    for j in range(1, 4):
        for c in range(5):
            r = RR + 20*(j-1) + 4*c
            k.lg(f"ds_read_b128 v[{r}:{r+3}], v{13+j} offset:{1024*c}", f"r{j}_{c}")
    k.i(f"""s_mul_i32 s34, s29, 40
    s_mul_i32 s21, s30, 10
    s_add_u32 s34, s34, s21
    s_lshr_b32 s21, s20, 1
    s_add_u32 s34, s34, s21
    s_lshl_b32 s34, s34, 10
    s_and_b32 s21, s20, 1
    s_lshl_b32 s21, s21, 9
    s_add_u32 s34, s34, s21
    s_add_u32 s34, s34, {HH}
    v_and_b32 v8, 31, v1
    v_lshrrev_b32 v9, 5, v1
    v_lshlrev_b32 v12, 3, v8
    v_lshlrev_b32 v8, 4, v8
    v_lshl_add_u32 v8, v9, 3, v8""")
    HP = 24
    for j in range(1, 4):
        for c in range(5):
            k.wait(lg=f"r{j}_{c}")
            for h in range(2):
                d = XF + 4*c + 2*h; a = RR + 20*(j-1) + 4*c + 2*h
                k.i(f"v_pk_add_f32 v[{d}:{d+1}], v[{d}:{d+1}], v[{a}:{a+1}]")
            if j == 3:
                k.i(f"v_cvt_pk_bf16_f32 v{HP+2*c}, v{XF+4*c}, v{XF+4*c+1}\nv_cvt_pk_bf16_f32 v{HP+2*c+1}, v{XF+4*c+2}, v{XF+4*c+3}")
                k.vm(f"buffer_store_dwordx2 v[{HP+2*c}:{HP+2*c+1}], v8, s[16:19], s34 offen offset:{2048*(c%2)} {HO}")
                if c % 2 == 1: k.i("s_add_u32 s34, s34, 4096")
    for j in range(10):
        k.i(f"v_lshlrev_b32 v{XF+2*j}, 16, v{HP+j}\nv_and_b32 v{XF+2*j+1}, s33, v{HP+j}")
    k.i(f"v_pk_add_f32 v[16:17], v[{XF}:{XF+1}], v[{XF+2}:{XF+3}]")
    k.i(f"v_pk_mul_f32 v[18:19], v[{XF}:{XF+1}], v[{XF}:{XF+1}]")
    k.i(f"v_pk_fma_f32 v[18:19], v[{XF+2}:{XF+3}], v[{XF+2}:{XF+3}], v[18:19]")
    for j in range(2, 10):
        k.i(f"v_pk_add_f32 v[16:17], v[16:17], v[{XF+2*j}:{XF+2*j+1}]")
        k.i(f"v_pk_fma_f32 v[18:19], v[{XF+2*j}:{XF+2*j+1}], v[{XF+2*j}:{XF+2*j+1}], v[18:19]")
    k.i(f"""v_add_f32 v16, v16, v17
    v_add_f32 v17, v18, v19
    v_mov_b32 v18, v16
    v_mov_b32 v19, v17
    s_lshl_b32 s34, s29, 4
    s_lshl_b32 s21, s30, 2
    s_add_u32 s34, s34, s21
    s_add_u32 s34, s34, s20
    v_permlane32_swap_b32 v16, v18
    v_permlane32_swap_b32 v17, v19
    s_lshl_b32 s34, s34, 8
    s_add_u32 s34, s34, {ST}
    v_pk_add_f32 v[16:17], v[16:17], v[18:19]
    s_mov_b64 exec, 0xffffffff""")
    k.vm(f"buffer_store_dwordx2 v[16:17], v12, s[16:19], s34 offen {HO}", "out2")
    k.i("s_mov_b64 exec, -1")
    stamp(15, "p2")
    k.auto = None
    print("P2 end: W1 left", B1.left(), "W2 left", W2B.left(), file=sys.stderr)
    B1.go(99)
    if not OPT.get("nodrain"):
        W2B.go(O("w2_d2", 12))
        k.wait(vm="out2")
    stamp(12)
    k.i("s_barrier")
    sig_row(F2, 6, "s_and_b32 s42, s29, 3", "s_mov_b32 s43, s30")
    k.i(f"s_mul_i32 s23, s20, 6144\ns_mul_i32 s25, s27, 122880\ns_add_u32 s25, s25, s23\ns_add_u32 s25, s25, {W1 + 98304}")
    for i in range(6):
        if i % 4 == 0: k.i(f"s_add_u32 m0, s23, {98304 + 1024*i}")
        k.vm(f"buffer_load_dwordx4 v3, s[16:19], s25 offen offset:{1024*(i%4)} {HO} lds", "w1t")
        if i % 4 == 3: k.i("s_add_u32 s25, s25, 4096")
    k.i(f"v_lshlrev_b32 v6, 2, v0\nv_add_u32 v6, 122880, v6")
    k.lg(f"ds_write_b32 v6, v{TBV}")
    k.lg(f"ds_write_b32 v6, v{TBV+1} offset:1024")

def phase3():
    TB = 122880
    k.i(f"""s_mul_i32 s21, s28, 40960
    s_add_u32 s21, s21, {HH}
    v_and_b32 v8, 31, v1
    v_lshrrev_b32 v7, 5, v1
    v_lshlrev_b32 v8, 3, v8
    v_lshl_add_u32 v8, v7, 8, v8
    s_lshl_b32 s33, s28, 12
    s_add_u32 s33, s33, {ST}
    v_lshlrev_b32 v14, 4, v7
    v_add_u32 v14, {TB}, v14
    v_bfe_u32 v15, v1, 4, 1
    v_mul_u32_u24 v15, 49152, v15
    v_and_b32 v16, 15, v1
    v_lshl_add_u32 v15, v16, 4, v15
    v_lshl_add_u32 v15, v7, 9, v15
    s_mul_i32 s34, s28, 98304
    s_mul_i32 s25, s27, 3072
    s_add_u32 s34, s34, s25
    s_add_u32 s34, s34, {H1}""")
    W2B.go(O("w2_w2", 4))
    k.wait(vm="w1t", lg="all")
    k.i("s_barrier")
    poll_row(F2, 10, O('slp2', 0))
    stamp(13)
    ACC = 40; WB = 88; NS = 9; AH = 6; HR = 124; NR = O("pre3", 12); SR = 20; CT = 172; PK = 232
    H = BG()
    for i in range(40):
        r = HR + 4*(i % NR)
        H.add(f"buffer_load_dwordx4 v[{r}:{r+3}], v3, s[16:19], s21 offen offset:{1024*(i%4)} {HO}", f"h{i}", post=("s_add_u32 s21, s21, 4096" if i % 4 == 3 else ""))
    H.go(4)
    for j in range(8):
        k.vm(f"buffer_load_dwordx2 v[{SR+2*j}:{SR+2*j+1}], v8, s[16:19], s33 offen offset:{512*j} {HO}", "stats")
    H.go(NR - 5)
    TL = O("tl3", 4)
    items = [(ks, j) for ks in range(40-TL) for j in range(3)] + [(ks, j) for j in range(3) for ks in range(40-TL, 40)]
    def rd(n):
        ks, j = items[n]
        o = (ks*3 + j) * 1024
        r = WB + 4*(n % NS)
        k.lg(f"ds_read_b128 v[{r}:{r+3}], v{3 + o//65536} offset:{o % 65536}", f"w{n}")
    with capture() as c:
        for j in range(1, 8): k.i(f"v_pk_add_f32 v[{SR}:{SR+1}], v[{SR}:{SR+1}], v[{SR+2*j}:{SR+2*j+1}]")
        k.i(f"""v_mov_b32 v10, v{SR}
        v_mov_b32 v11, v{SR+1}
        v_permlane32_swap_b32 v{SR}, v10
        v_permlane32_swap_b32 v{SR+1}, v11
        v_pk_add_f32 v[8:9], v[{SR}:{SR+1}], v[10:11]
        v_mul_f32 v8, 0x3acccccd, v8
        v_mul_f32 v9, 0x3acccccd, v9
        v_fma_f32 v9, -v8, v8, v9
        v_max_f32 v9, 0, v9""")
        bf16r(8, 8); bf16r(9, 9)
        k.i("v_add_f32 v9, 0x3727c5ac, v9")
        bf16r(9, 9)
        k.i("v_sqrt_f32 v9, v9")
        bf16r(9, 9)
        k.i("v_rcp_f32 v10, v9\nv_mul_f32 v12, v8, v10\nv_sub_f32 v12, 0, v12")
    statl = c.lines
    def tab_reads(nt):
        for j in range(4):
            n = 4*nt + j
            k.lg(f"ds_read_b128 v[{CT+4*n}:{CT+4*n+3}], v14 offset:{1024+128*nt+32*j}")
            k.lg(f"ds_read_b128 v[{SR+4*j}:{SR+4*j+3}], v14 offset:{128*nt+32*j}", f"t{nt}")
    def tab_lines(nt):
        with capture() as c:
            for j in range(4):
                b = CT + 4*(4*nt + j)
                for h in range(2):
                    k.i(f"v_pk_fma_f32 v[{b+2*h}:{b+2*h+1}], v[{SR+4*j+2*h}:{SR+4*j+2*h+1}], v[12:13], v[{b+2*h}:{b+2*h+1}] op_sel_hi:[1,0,1]")
        return c.lines
    def epi_lines(nt, j):
        n = 4*nt + j
        a = ACC + 4*n; b = CT + 4*n
        with capture() as c:
            for h in range(2):
                k.i(f"v_pk_fma_f32 v[{a+2*h}:{a+2*h+1}], v[{a+2*h}:{a+2*h+1}], v[10:11], v[{b+2*h}:{b+2*h+1}] op_sel_hi:[1,0,1]")
            for h in range(4): k.i(f"v_max_f32 v{a+h}, 0, v{a+h}")
            for h in range(2):
                k.i(f"v_pk_mul_f32 v[{a+2*h}:{a+2*h+1}], v[{a+2*h}:{a+2*h+1}], v[{a+2*h}:{a+2*h+1}]")
            for h in range(2):
                k.i(f"v_cvt_pk_bf16_f32 v{PK+2*n+h}, v{a+2*h}, v{a+2*h+1}")
        return c.lines
    def st_h1(nt, e):
        k.vm(f"buffer_store_dwordx4 v[{PK+8*nt+4*e}:{PK+8*nt+4*e+3}], v15, s[16:19], s34 offen offset:{1024*nt+256*e} {HO}", "out3")
    for n in range(AH): rd(n)
    fill = []
    k.auto = lambda: W2B.go(); k.th = O("th3", 100)
    for n, (ks, j) in enumerate(items):
        k.wait(vm=f"h{ks}", lg=f"w{n}")
        if n == 12: cst(7)
        if n == 108: cst(9)
        d = vr(ACC + 16*j, 16)
        k.i(f"v_mfma_f32_32x32x16_bf16 {d}, {vr(WB + 4*(n % NS), 4)}, {vr(HR + 4*(ks % NR), 4)}, {'0' if ks == 0 else d}")
        if n % 3 == 0: H.go()
        if O('w2_p3', 0) and n % O('w2_p3', 0) == 4: W2B.go()
        if n + AH < 120: rd(n + AH)
        if n == 18: fill += statl
        for nt in range(3):
            if n == 40 + 12*nt: tab_reads(nt)
            if n == 46 + 12*nt:
                k.wait(lg=f"t{nt}"); fill += tab_lines(nt)
        if n == 121 - 2*TL: fill += epi_lines(0, 0) + epi_lines(0, 1) + epi_lines(0, 2) + epi_lines(0, 3)
        if n == 121 - TL: fill += epi_lines(1, 0) + epi_lines(1, 1)
        for _ in range(3 if n < 120 - 2*TL else 6):
            if fill: k.i(fill.pop(0))
    stamp(14)
    for l in fill: k.i(l)
    st_h1(0, 0); st_h1(0, 1); st_h1(1, 0)
    for nt, j in ((1, 2), (1, 3), (2, 0), (2, 1), (2, 2), (2, 3)):
        for l in epi_lines(nt, j): k.i(l)
        if j % 2 == 1: st_h1(nt, j // 2)
    k.auto = None
    print("P3 end: W2 left", W2B.left(), file=sys.stderr)
    if not OPT.get("nodrain"):
        W2B.go(O("w2_d3", 12))
        k.wait(vm="out3")
    stamp(15)
    k.i("s_barrier")
    sig_row(F3, 6, "s_lshr_b32 s42, s27, 2", "s_and_b32 s43, s27, 3")

def phase4():
    HR = 20; BR = 30; ACC = 40; RING = 120; NB = O("nb4", 6)
    srd(8, PB2, 1280)
    k.i(f"""v_and_b32 v4, 15, v1
    v_lshrrev_b32 v5, 4, v1
    s_lshl_b32 s33, s12, 1
    s_lshr_b32 s25, s20, 1
    s_add_u32 s33, s33, s25
    s_mul_i32 s33, s33, 40
    s_mul_i32 s25, s13, 5
    s_add_u32 s33, s33, s25
    s_lshl_b32 s33, s33, 10
    s_add_u32 s33, s33, {HH}
    s_and_b32 s25, s20, 1
    s_lshl_b32 s25, s25, 8
    s_add_u32 s33, s33, s25
    v_lshrrev_b32 v8, 1, v5
    v_lshlrev_b32 v8, 9, v8
    v_lshl_add_u32 v8, v4, 4, v8
    v_and_b32 v9, 1, v5
    v_lshl_add_u32 v8, v9, 3, v8
    v_add_u32 v9, 4096, v8
    v_lshlrev_b32 v17, 3, v5
    s_mul_i32 s34, s13, 160""")
    for c in range(5):
        k.vm(f"buffer_load_dwordx2 v[{HR+2*c}:{HR+2*c+1}], v{8 if c < 4 else 9}, s[16:19], s33 offen offset:{1024*(c%4)} {HO}")
    for c in range(5):
        k.vm(f"buffer_load_dwordx2 v[{BR+2*c}:{BR+2*c+1}], v17, s[8:11], s34 offen offset:{32*c}", "res")
    W2B.go(99)
    k.i(f"""s_mul_i32 s21, s12, 196608
    s_mul_i32 s22, s20, 12288
    s_add_u32 s21, s21, s22
    s_add_u32 s21, s21, {H1}
    s_lshl_b32 s25, s12, 6
    s_lshl_b32 s33, s20, 4
    s_add_u32 s25, s25, s33
    v_add_u32 v6, s25, v4
    v_mul_u32_u24 v7, 1280, v6
    v_lshl_add_u32 v7, v5, 3, v7
    s_mul_i32 s33, s20, 15360
    v_add_u32 v13, s33, v3""")
    for j in range(4):
        k.i(f"s_add_u32 s33, s20, {j}\ns_and_b32 s33, s33, 3\ns_mul_i32 s33, s33, 49152\nv_add_u32 v{8+j}, s33, v3")
    for j in range(1, 4):
        k.i(f"s_sub_u32 s33, s20, {j}\ns_and_b32 s33, s33, 3\ns_mul_i32 s33, s33, 15360\ns_add_u32 s33, s33, {(j-1)*5120}\nv_add_u32 v{13+j}, s33, v3")
    srd(8, POUT, 2621440)
    poll_row(F3, 18, O('slp3', 0))
    stamp(16)
    Q = BG()
    for i in range(48):
        t, j = divmod(i, 4)
        r = RING + 16*(t % NB) + 4*j
        Q.add(f"buffer_load_dwordx4 v[{r}:{r+3}], v{8+j}, s[16:19], s21 offen offset:{1024*(t%4)} {HO}", f"s{t}_{j}", post=("s_add_u32 s21, s21, 4096" if i % 16 == 15 else ""))
    Q.go(4*(NB-1))
    XF = 216
    k.wait(vm="res")
    k.i("s_mov_b32 s33, 0xffff0000")
    for j in range(10):
        k.i(f"v_lshlrev_b32 v{XF+2*j}, 16, v{HR+j}\nv_and_b32 v{XF+2*j+1}, s33, v{HR+j}")
        k.i(f"v_lshlrev_b32 v{XF+20}, 16, v{BR+j}\nv_and_b32 v{XF+21}, s33, v{BR+j}")
        k.i(f"v_pk_add_f32 v[{XF+2*j}:{XF+2*j+1}], v[{XF+2*j}:{XF+2*j+1}], v[{XF+20}:{XF+21}]")
    def red_w(j):
        for c in range(5):
            r = ACC + 20*j + 4*c
            k.lg(f"ds_write_b128 v13, v[{r}:{r+3}] offset:{(j-1)*5120 + 1024*c}")
    order = [(t, j) for t in range(10) for j in range(4)] + [(t, j) for j in (1, 2, 3, 0) for t in (10, 11)]
    for n, (t, j) in enumerate(order):
        k.wait(vm=f"s{t}_{j}")
        if n == 4: cst(11)
        if n == 40: cst(13)
        for c in range(5):
            d = vr(ACC + (5*j+c)*4, 4)
            k.i(f"v_mfma_f32_16x16x32_bf16 {d}, {ar(W2R[5*t+c], 4)}, {vr(RING+16*(t%NB)+4*j, 4)}, {'0' if t == 0 else d}")
            if c == 1: Q.go()
        if n in (42, 44, 46): red_w((n - 40)//2)
    stamp(17)
    k.wait(lg="all"); k.i("s_barrier")
    RR = 120
    for j in range(1, 4):
        for c in range(5):
            r = RR + 20*(j-1) + 4*c
            k.lg(f"ds_read_b128 v[{r}:{r+3}], v{13+j} offset:{1024*c}", f"r{j}_{c}")
    for c in range(5):
        for h in range(2):
            d = XF + 4*c + 2*h; a = ACC + 4*c + 2*h
            k.i(f"v_pk_add_f32 v[{d}:{d+1}], v[{d}:{d+1}], v[{a}:{a+1}]")
    for j in range(1, 4):
        for c in range(5):
            k.wait(lg=f"r{j}_{c}")
            for h in range(2):
                d = XF + 4*c + 2*h; a = RR + 20*(j-1) + 4*c + 2*h
                k.i(f"v_pk_add_f32 v[{d}:{d+1}], v[{d}:{d+1}], v[{a}:{a+1}]")
            if j == 3:
                k.i(f"v_cvt_pk_bf16_f32 v{HR+2*c}, v{XF+4*c}, v{XF+4*c+1}\nv_cvt_pk_bf16_f32 v{HR+2*c+1}, v{XF+4*c+2}, v{XF+4*c+3}")
                k.vm(f"buffer_store_dwordx2 v[{HR+2*c}:{HR+2*c+1}], v7, s[8:11], s34 offen offset:{32*c} {OPT.get('opol', '')}")
    k.i(f"""s_or_b32 s33, s45, s20
    s_cmp_lg_u32 s33, 0
    s_cbranch_scc1 p4_noep
    v_mov_b32 v4, s44
    v_mov_b32 v5, {CB}
    s_mov_b64 exec, 1
    buffer_store_dword v4, v5, s[16:19], 0 offen sc1
    s_mov_b64 exec, -1""")
    k.label("p4_noep")

def stamp_out():
    if not OPT["stamps"]: return
    if OPT.get("enc") is not None:
        e = O("enc", 0)
        k.i(f"""s_waitcnt vmcnt(0) lgkmcnt(0)
        s_memrealtime s[100:101]
        s_waitcnt lgkmcnt(0)
        s_sub_u32 s4, s{64+2*e}, s64
        s_lshl_b32 s4, s4, 2
        s_add_u32 s4, s4, 4000
        encl:
        s_memrealtime s[6:7]
        s_waitcnt lgkmcnt(0)
        s_sub_u32 s6, s6, s64
        s_cmp_lt_u32 s6, s4
        s_cbranch_scc1 encl""")
        return
    n = NSTAMP
    k.i("s_waitcnt vmcnt(0) lgkmcnt(0)")
    k.i(f"s_memrealtime s[{64+2*n}:{65+2*n}]")
    k.i("s_waitcnt lgkmcnt(0)")
    k.i(f"s_lshl_b32 s3, s45, 2\ns_add_u32 s3, s3, s20\ns_lshl_b32 s3, s3, 7\ns_add_u32 s3, s3, 0x2000000\nv_mov_b32 v1, s3")
    for j in range(n+1): k.i(f"v_mov_b32 v{2+j}, s{64+2*j}")
    k.i("s_mov_b64 exec, 1")
    for j in range(n+1): k.i(f"global_store_dword v1, v{2+j}, s[14:15] offset:{4*j}")

def emit(path):
    global k
    k = Kern(KN)
    phase0(); phase1(); phase2(); phase3(); phase4(); stamp_out()
    k.label("kend"); k.i("s_endpgm")
    body, added = hazard_pass(k.L, verbose=bool(OPT.get("vnop")))
    print("instrs", len(body), "nop states added", added, file=sys.stderr)
    out = ["; pre-LN linear-attention block + squared-ReLU MLP, one persistent launch (256 workgroups, flag hand-offs in d_ws)",
           "; @launch grid=(256,1,1) block=(256,1,1) lds=163840",
           '.amdgcn_target "amdgcn-amd-amdhsa--gfx950"', ".text", f".globl {KN}", ".p2align 8", f".type {KN},@function", f"{KN}:"]
    out += [("" if (l.endswith(":") or l.startswith(";")) else "    ") + l for l in body]
    out += ['.section .rodata,"a"', ".p2align 6", f".amdhsa_kernel {KN}", "  .amdhsa_next_free_vgpr 512", "  .amdhsa_next_free_sgpr 102",
            "  .amdhsa_accum_offset 256", "  .amdhsa_group_segment_fixed_size 0", "  .amdhsa_kernarg_size 88",
            "  .amdhsa_user_sgpr_count 2", "  .amdhsa_user_sgpr_kernarg_segment_ptr 1",
            "  .amdhsa_system_sgpr_workgroup_id_x 1", ".end_amdhsa_kernel"]
    open(path, "w").write("\n".join(out) + "\n")

if __name__ == "__main__":
    for a in sys.argv[2:]:
        kk, v = a.split("=")
        OPT[kk] = {"True": True, "False": False, "none": ""}.get(v, v.replace("_", " "))
    emit(sys.argv[1])
```

```python
import sys
from asmlib import *

NAME = "sequential_preLN__linear_attn_block__dense_activation_squared_relu__prompt"
KN = NAME + "_kernel"
CB = 0x0
F0B = CB + 0x1000; F2 = 0xC0000; F3 = 0xD0000; F0 = 0x90000; F1 = 0x98000
CS = 0x10000; KVA = 0x20000; ST = 0x40000
XN = 0x100000; WQ = 0x380000; WO = 0x600000; W1 = 0x700000; W2 = 0x900000
PQ = 0xB00000; HH = 0xE00000; H1 = 0x1200000; XC = 0x1800000
WSZ = 0x1B00000
LOG2E = 0x3fb8aa3b
OPT = dict(tl1=6, tl3=6, pqe=0, stamps=False, cold="nt", pre1=2, wo_pre=40, wo_w=0, w1_w=12, sleep=8, slp0=20, lnexact=True)
HO = "sc1"
UL = 131072
def O(n, d): return int(OPT.get(n, d))

def magic(C, maxq):
    for sh in range(4, 24):
        m = -(-(1 << sh) // C)
        if m * maxq < (1 << 32) and m < (1 << 24) and all((q * m) >> sh == q // C for q in range(maxq)): return m, sh
    raise ValueError

k = None
def srd(d, base, size):
    k.i(f"s_mov_b32 s{d}, s{base}\ns_mov_b32 s{d+1}, s{base+1}\ns_mov_b32 s{d+2}, {size}\ns_mov_b32 s{d+3}, 0x20000")
def bf16r(d, s):
    k.i(f"v_cvt_pk_bf16_f32 v{d}, v{s}, v{s}\nv_lshlrev_b32 v{d}, 16, v{d}")
NSTAMP = 18
def stamp(idx, grp=None):
    if not OPT["stamps"]: return
    f = OPT.get("focus")
    lo = {"p0": (5, 18), "p1": (8, 18), "p1e": (8, 18), "p2": (13, 18), "clk": (1, 18)}.get(f)
    if grp is None and lo and lo[0] <= idx < lo[1]: return
    if grp is not None and grp != f: return
    k.i(f"s_memrealtime s[{64+2*idx}:{65+2*idx}]")
def cst(slot):
    if OPT["stamps"] and OPT.get("focus") == "clk":
        k.i(f"s_memrealtime s[{64+2*slot}:{65+2*slot}]\ns_memtime s[{66+2*slot}:{67+2*slot}]")
def snap(): return (k.vm_n, dict(k.vm_tags), k.vm_done, k.lg_n, dict(k.lg_tags), k.lg_done)
def rest(s): k.vm_n, k.vm_tags, k.vm_done, k.lg_n, k.lg_tags, k.lg_done = s[0], dict(s[1]), s[2], s[3], dict(s[4]), s[5]

class capture:
    def __enter__(self):
        self.save = (k.L, k.auto, k._iss, k._mf); k.L = []; k.auto = None; return self
    def __exit__(self, *a):
        self.lines = k.L; k.L, k.auto, k._iss, k._mf = self.save
def merge(main, fill, per):
    fill = list(fill)
    for m in main:
        m()
        for _ in range(per):
            if fill: k.i(fill.pop(0))
    return fill

PX, PWQ, PWO, PW1, PB1, PW2, PB2, POUT = 48, 50, 52, 56, 58, 60, 62, 46

npoll = 0
def check4(vt):
    k.i(f"v_xor_b32 v{vt}, s44, v{vt}\nv_xor_b32 v{vt+1}, s44, v{vt+1}\nv_xor_b32 v{vt+2}, s44, v{vt+2}\nv_xor_b32 v{vt+3}, s44, v{vt+3}")
    k.i(f"v_or3_b32 v{vt}, v{vt}, v{vt+1}, v{vt+2}\nv_or_b32 v{vt}, v{vt}, v{vt+3}\nv_cmp_ne_u32 vcc, 0, v{vt}")
def poll(vaddr, soff, vt, wide=False, w0=True, slp=0):
    global npoll
    npoll += 1
    L = f"poll{npoll}"
    au = k.auto; k.auto = None
    if w0: k.i(f"s_cmp_lg_u32 s20, 0\ns_cbranch_scc1 {L}d")
    if slp: k.i(f"s_sleep {slp}")
    k.i("s_mov_b32 s43, 0x20000")
    k.label(L)
    if OPT.get("apoll"):
        if wide:
            k.i(f"v_mov_b32 v{vt}, 0\nv_mov_b32 v{vt+1}, 0\nv_mov_b32 v{vt+2}, 0\nv_mov_b32 v{vt+3}, 0")
            k.i(f"buffer_atomic_or_x2 v[{vt}:{vt+1}], v{vaddr}, s[16:19], s{soff} offen sc0\nbuffer_atomic_or_x2 v[{vt+2}:{vt+3}], v{vaddr}, s[16:19], s{soff} offen offset:8 sc0\ns_waitcnt vmcnt(0)")
            check4(vt)
        else:
            k.i(f"v_mov_b32 v{vt}, 0\nbuffer_atomic_or v{vt}, v{vaddr}, s[16:19], s{soff} offen sc0\ns_waitcnt vmcnt(0)\nv_cmp_ne_u32 vcc, s44, v{vt}")
    else:
        if wide:
            k.i(f"buffer_load_dwordx4 v[{vt}:{vt+3}], v{vaddr}, s[16:19], s{soff} offen {OPT.get('ppol', 'sc1')}\ns_waitcnt vmcnt(0)")
            check4(vt)
        else:
            k.i(f"buffer_load_dword v{vt}, v{vaddr}, s[16:19], s{soff} offen {OPT.get('ppol', 'sc1')}\ns_waitcnt vmcnt(0)\nv_cmp_ne_u32 vcc, s44, v{vt}")
    k.i(f"s_cbranch_vccz {L}d")
    if O("sleep", 4): k.i(f"s_sleep {O('sleep', 4)}")
    k.i(f"s_sub_u32 s43, s43, 1\ns_cbranch_scc0 {L}")
    k.label(L + "d")
    k.auto = au
nsig = 0
def signal(mask, code, vt, dual=False):
    global nsig
    nsig += 1
    L = f"sig{nsig}"
    au = k.auto; k.auto = None
    k.i(f"s_cmp_lg_u32 s20, 1\ns_cbranch_scc1 {L}")
    k.i(code)
    if dual: k.i(f"v_mov_b32 v{vt}, s44\ns_mov_b64 exec, {mask}\nbuffer_store_dword v{vt}, v{vt+1}, s[16:19], s42 offen offset:2048")
    k.i(f"v_mov_b32 v{vt}, s44\ns_mov_b64 exec, {mask}\nbuffer_store_dword v{vt}, v{vt+1}, s[16:19], s42 offen {OPT.get('spol', 'sc1')}\ns_mov_b64 exec, -1")
    k.label(L)
    k.auto = au
def sig_all(base, vt):
    signal(0xff, f"v_lshlrev_b32 v{vt+1}, 12, v1\ns_lshr_b32 s42, s45, 3\ns_lshl_b32 s42, s42, 7\ns_and_b32 s43, s45, 7\ns_lshl_b32 s43, s43, 2\ns_add_u32 s42, s42, s43\ns_add_u32 s42, s42, {base}", vt)
def sig_row(base, vt, line, pos):
    signal(1, f"v_mov_b32 v{vt+1}, 0\n{line}\n{pos}\ns_lshl_b32 s42, s42, 7\ns_lshl_b32 s43, s43, 2\ns_add_u32 s42, s42, s43\ns_lshl_b32 s43, s26, 12\ns_add_u32 s42, s42, s43\ns_add_u32 s42, s42, {base}", vt, dual=bool(OPT.get("dual")))
ntree = 0
def poll_all(base, vt, slp):
    global ntree
    k.i(f"s_and_b32 s42, s2, 7\ns_lshl_b32 s42, s42, 12\ns_add_u32 s42, s42, {base}")
    k.i(f"v_lshrrev_b32 v{vt+4}, 1, v1\nv_lshlrev_b32 v{vt+4}, 7, v{vt+4}\nv_and_b32 v{vt}, 1, v1\nv_lshl_add_u32 v{vt+4}, v{vt}, 4, v{vt+4}")
    if not (OPT.get("tree") and (base == F0 or OPT.get("tree1"))):
        poll(vt+4, 42, vt, wide=True, slp=slp); return
    ntree += 1; L = f"tree{ntree}"
    NL = O("tree", 1)
    k.i(f"s_cmp_lg_u32 s20, 0\ns_cbranch_scc1 {L}d\ns_and_b32 s41, s2, {8*NL-1}\ns_lshl_b32 s41, s41, 7\ns_add_u32 s41, s41, {base + 0x10000}\ns_cmp_ge_u32 s2, {8*NL}\ns_cbranch_scc1 {L}m")
    poll(vt+4, 42, vt, wide=True, w0=False, slp=slp)
    k.i(f"v_mov_b32 v{vt}, s44\nv_mov_b32 v{vt+1}, 0\ns_mov_b64 exec, 1\nbuffer_store_dword v{vt}, v{vt+1}, s[16:19], s41 offen sc1\ns_mov_b64 exec, -1\ns_branch {L}d")
    k.label(L + "m")
    k.i(f"v_mov_b32 v{vt+1}, 0")
    sl = OPT.get("sleep"); OPT["sleep"] = 1
    poll(vt+1, 41, vt, w0=False)
    if sl is None: del OPT["sleep"]
    else: OPT["sleep"] = sl
    k.label(L + "d")
    k.i(f"s_mov_b32 s41, {LOG2E:#x}")
def poll_row(base, vt, slp):
    global npoll
    k.i(f"v_and_b32 v{vt+1}, 3, v1\nv_lshlrev_b32 v{vt+1}, 2, v{vt+1}\ns_lshl_b32 s42, s26, 5\ns_add_u32 s42, s42, s20\ns_lshl_b32 s42, s42, 7\ns_add_u32 s42, s42, {base}")
    if not OPT.get("dual"):
        poll(vt+1, 42, vt, w0=False, slp=slp)
    else:
        npoll += 1; L = f"poll{npoll}"
        au = k.auto; k.auto = None
        if slp: k.i(f"s_sleep {slp}")
        k.i(f"v_bfe_u32 v{vt}, v1, 2, 1\nv_lshl_add_u32 v{vt+1}, v{vt}, 11, v{vt+1}\ns_mov_b32 s43, 0x20000")
        k.label(L)
        k.i(f"""buffer_load_dword v{vt}, v{vt+1}, s[16:19], s42 offen sc1
        s_waitcnt vmcnt(0)
        v_cmp_eq_u32 vcc, s44, v{vt}
        s_lshr_b32 s41, vcc_lo, 4
        s_or_b32 s41, s41, vcc_lo
        s_and_b32 s41, s41, 15
        s_cmp_eq_u32 s41, 15
        s_cbranch_scc1 {L}d
        s_sleep {O('sleepd', 2)}
        s_sub_u32 s43, s43, 1
        s_cbranch_scc0 {L}""")
        k.label(L + "d")
        k.auto = au
    k.vm_done = k.vm_n

class BG:
    def __init__(self): self.q = []
    def add(self, ins, tag=None, pre="", post=""): self.q.append((pre, ins, post, tag))
    def go(self, n=1):
        for _ in range(n):
            if self.q:
                pre, ins, post, tag = self.q.pop(0)
                if OPT.get("nobg") and tag is not None and tag[:2] in ("wo", "w1", "w2"):
                    k.vm_tags[tag] = -1; continue
                k.i(pre); k.vm(ins, tag); k.i(post)
    def left(self): return len(self.q)

def phi4(a, dst, T):
    k.i(f"v_pk_mul_f32 v[{T}:{T+1}], v[{a}:{a+1}], s[40:41]")
    k.i(f"v_pk_mul_f32 v[{T+2}:{T+3}], v[{a+2}:{a+3}], s[40:41]")
    for j in range(4): k.i(f"v_exp_f32_e64 v{T+j}, v{T+j} clamp")
    for j in range(4): k.i(f"v_max_f32 v{T+4+j}, 0, v{a+j}")
    k.i(f"v_pk_add_f32 v[{T}:{T+1}], v[{T}:{T+1}], s[38:39]")
    k.i(f"v_pk_add_f32 v[{T+2}:{T+3}], v[{T+2}:{T+3}], s[38:39]")
    k.i(f"v_pk_add_f32 v[{T}:{T+1}], v[{T}:{T+1}], v[{T+4}:{T+5}]")
    k.i(f"v_pk_add_f32 v[{T+2}:{T+3}], v[{T+2}:{T+3}], v[{T+6}:{T+7}]")
    k.i(f"v_cvt_pk_bf16_f32 v{dst}, v{T}, v{T+1}")
    k.i(f"v_cvt_pk_bf16_f32 v{dst+1}, v{T+2}, v{T+3}")

ROWOFF = [[0, 4, 20, 24, 8], [12, 16, 28, 32, 36]]

def phase0():
    cold = OPT["cold"]
    stamp(0)
    k.i(f"""s_load_dwordx16 s[48:63], s[0:1], 0
    s_load_dwordx2 s[14:15], s[0:1], 80
    s_load_dwordx2 s[46:47], s[0:1], 64
    s_getpc_b64 s[4:5]
    pcl:
    s_cmp_ge_u32 s2, 256
    s_cbranch_scc1 kend
    s_lshr_b32 s25, s2, 3
    s_and_b32 s6, s25, 7
    s_lshl_b32 s6, s6, 13
    v_lshl_add_u32 v30, v0, 7, s6
    v_min_u32 v30, kend-pcl, v30
    v_cmp_gt_u32 vcc, 64, v0
    v_and_b32 v1, 63, v0
    v_lshrrev_b32 v2, 6, v0
    s_and_saveexec_b64 s[6:7], vcc
    s_cbranch_execz p0_nopf
    {'s_nop 0' if OPT.get('nopf') else 'global_load_dword v31, v30, s[4:5]'}
    p0_nopf:
    s_mov_b64 exec, s[6:7]
    v_lshlrev_b32 v3, 4, v1
    v_readfirstlane_b32 s20, v2
    s_and_b32 s24, s2, 7
    s_lshr_b32 s26, s24, 1
    s_lshl_b32 s26, s26, 2
    s_lshr_b32 s27, s25, 3
    s_add_u32 s26, s26, s27
    s_and_b32 s27, s24, 1
    s_lshl_b32 s27, s27, 3
    s_and_b32 s25, s25, 7
    s_add_u32 s27, s27, s25
    s_lshl_b32 s45, s26, 4
    s_add_u32 s45, s45, s27
    v_bfe_u32 v28, v1, 2, 2
    v_and_b32 v29, 3, v1
    v_mov_b32 v228, 0
    s_cmp_ge_u32 s45, 128
    s_cbranch_scc1 p0_w""")
    X = 208; F = 32
    k.i(f"""v_lshrrev_b32 v4, 4, v0
    v_and_b32 v5, 15, v0
    s_lshl_b32 s21, s45, 4
    v_add_u32 v6, s21, v4
    v_mul_u32_u24 v6, 1280, v6
    v_lshl_add_u32 v6, v5, 4, v6
    s_mov_b32 s10, 2621440
    s_mov_b32 s11, 0x20000
    s_waitcnt lgkmcnt(0)
    s_mov_b32 s8, s{PX}
    s_mov_b32 s9, s{PX+1}""")
    stamp(9, "p0")
    for i in range(5):
        k.i(f"buffer_load_dwordx4 v[{X+4*i}:{X+4*i+3}], v6, s[8:11], 0 offen offset:{256*i} {OPT.get('coldx', cold)}")
    stamp(5, "p0")
    k.i(f"s_load_dword s44, s[14:15], {CB}")
    srd(16, 14, WSZ)
    k.i(f"""s_lshr_b32 s21, s45, 1
    s_mul_i32 s21, s21, 40960
    s_and_b32 s22, s45, 1
    s_lshl_b32 s22, s22, 8
    s_add_u32 s21, s21, s22
    s_add_u32 s21, s21, {XN}
    v_lshrrev_b32 v7, 1, v5
    v_lshlrev_b32 v7, 10, v7
    v_and_b32 v6, 1, v5
    v_lshlrev_b32 v6, 9, v6
    v_lshl_add_u32 v7, v4, 4, v7
    v_add_u32 v7, v7, v6
    s_mov_b32 s23, 0xffff0000
    s_mov_b32 s22, 0x3f803f80
    v_mov_b32 v112, 0
    v_mov_b32 v113, 0
    v_mov_b32 v114, 0
    v_mov_b32 v115, 0
    v_lshrrev_b32 v30, 4, v1""")
    for i in range(5):
        k.i(f"s_waitcnt vmcnt({4-i})")
        if i == 0: stamp(7, "p0")
        for j in range(4*i, 4*i+4):
            k.i(f"v_dot2_f32_bf16 v{112+2*(j&1)}, v{X+j}, s22, v{112+2*(j&1)}")
            k.i(f"v_dot2_f32_bf16 v{113+2*(j&1)}, v{X+j}, v{X+j}, v{113+2*(j&1)}")
    unp = []
    for j in range(20): unp += [f"v_lshlrev_b32 v{F+2*j}, 16, v{X+j}", f"v_and_b32 v{F+2*j+1}, s23, v{X+j}"]
    def U(n):
        for _ in range(n):
            if unp: k.i(unp.pop(0))
    U(3)
    k.i("v_pk_add_f32 v[112:113], v[112:113], v[114:115]")
    for s in (8, 4, 2, 1):
        U(2)
        k.i(f"v_add_f32_dpp v112, v112, v112 row_ror:{s} row_mask:0xf bank_mask:0xf")
        k.i(f"v_add_f32_dpp v113, v113, v113 row_ror:{s} row_mask:0xf bank_mask:0xf")
    k.i("v_mul_f32 v112, 0x3acccccd, v112\nv_mul_f32 v113, 0x3acccccd, v113\nv_fma_f32 v113, -v112, v112, v113\nv_max_f32 v113, 0, v113")
    bf16r(112, 112); bf16r(113, 113)
    k.i("v_add_f32 v113, 0x3727c5ac, v113")
    bf16r(113, 113)
    k.i("v_sqrt_f32 v113, v113"); U(1)
    bf16r(113, 113)
    k.i("v_rcp_f32 v114, v113")
    U(99)
    Y = 72
    for j in range(20): k.i(f"v_pk_add_f32 v[{F+2*j}:{F+2*j+1}], v[{F+2*j}:{F+2*j+1}], v[112:113] op_sel_hi:[1,0] neg_lo:[0,1] neg_hi:[0,1]")
    for j in range(20): k.i(f"v_cvt_pk_bf16_f32 v{Y+j}, v{F+2*j}, v{F+2*j+1}")
    for j in range(20): k.i(f"v_lshlrev_b32 v{F+2*j}, 16, v{Y+j}\nv_and_b32 v{F+2*j+1}, s23, v{Y+j}")
    for i in range(5):
        for j in range(4*i, 4*i+4):
            k.i(f"v_pk_mul_f32 v[{F+2*j}:{F+2*j+1}], v[{F+2*j}:{F+2*j+1}], v[114:115] op_sel_hi:[1,0]")
        for j in range(4*i, 4*i+4):
            k.i(f"v_cvt_pk_bf16_f32 v{Y+j}, v{F+2*j}, v{F+2*j+1}")
        k.i(f"buffer_store_dwordx4 v[{Y+4*i}:{Y+4*i+3}], v7, s[16:19], s21 offen {HO}")
        if i < 4: k.i("s_add_u32 s21, s21, 8192")
    k.i(f"v_mov_b32 v228, v7\ns_add_u32 s55, s21, {XC - XN - 4*8192}")
    k.i("s_branch p0_drain")
    k.label("p0_w")
    m, sh = magic(80, 320)
    k.i(f"""s_cmp_ge_u32 s45, 248
    s_cbranch_scc1 p0_zero
    s_sub_u32 s21, s45, 128
    s_mul_i32 s30, s21, 171
    s_lshr_b32 s30, s30, 9
    s_mul_i32 s31, s30, 3
    s_sub_u32 s31, s21, s31
    s_mul_i32 s21, s30, 61440
    s_mul_i32 s22, s31, 1280
    s_add_u32 s21, s21, s22
    s_lshl_b32 s22, s20, 2
    s_mul_i32 s23, s20, 5120
    s_mov_b32 s10, 2457600
    s_mov_b32 s11, 0x20000""")
    for i in range(5):
        k.i(f"""v_add_u32 v4, {64*i}, v1
        v_mul_u32_u24 v5, {m}, v4
        v_lshrrev_b32 v5, {sh}, v5
        v_mul_u32_u24 v6, 80, v5
        v_sub_u32 v6, v4, v6
        v_lshlrev_b32 v6, 4, v6
        v_lshlrev_b32 v7, 6, v5
        v_add_u32 v5, s22, v5
        v_mul_u32_u24 v5, 3840, v5
        v_xad_u32 v{12+i}, v6, v7, v5""")
    k.i(f"s_waitcnt lgkmcnt(0)\ns_mov_b32 s8, s{PWQ}\ns_mov_b32 s9, s{PWQ+1}")
    stamp(9, "p0")
    for i in range(5):
        k.i(f"s_add_u32 m0, s23, {1024*i}\nbuffer_load_dwordx4 v{12+i}, s[8:11], s21 offen {cold} lds")
    stamp(5, "p0")
    k.i(f"s_load_dword s44, s[14:15], {CB}")
    srd(16, 14, WSZ)
    k.i(f"""v_lshrrev_b32 v30, 4, v1
    v_lshrrev_b32 v4, 1, v30
    v_lshl_add_u32 v4, v4, 3, v28
    v_mul_u32_u24 v4, 1280, v4
    v_and_b32 v5, 1, v30
    v_lshlrev_b32 v5, 5, v5
    v_lshl_add_u32 v5, v29, 3, v5
    v_lshlrev_b32 v6, 6, v28
    s_lshl_b32 s21, s30, 12
    s_add_u32 s21, s21, {WQ}
    s_cmp_lg_u32 s31, 0
    s_cbranch_scc1 p0_wkv
    s_lshl_b32 s22, s20, 6
    v_add_u32 v5, s22, v5
    v_xad_u32 v7, v5, v6, v4
    s_lshl_b32 s22, s20, 10
    s_add_u32 s21, s21, s22
    s_add_u32 s21, s21, {11*163840}
    s_waitcnt vmcnt(0)""")
    stamp(7, "p0")
    k.i("s_barrier")
    for m_ in range(5):
        r = 32 + 4*m_
        k.lg(f"ds_read_b64_tr_b16 v[{r}:{r+1}], v7 offset:{256*m_}")
        k.lg(f"ds_read_b64_tr_b16 v[{r+2}:{r+3}], v7 offset:{256*m_+4*1280}", f"q{m_}")
    for m_ in range(5):
        r = 32 + 4*m_
        k.wait(lg=f"q{m_}")
        k.i(f"buffer_store_dwordx4 v[{r}:{r+3}], v3, s[16:19], s21 offen {HO}\ns_add_u32 s21, s21, 163840")
    k.i("s_branch p0_drain")
    k.label("p0_wkv")
    k.i("""s_and_b32 s22, s20, 1
    s_lshr_b32 s23, s20, 1
    s_lshl_b32 s24, s22, 6
    s_mul_i32 s25, s23, 120
    s_add_u32 s24, s24, s25
    v_add_u32 v5, s24, v5
    s_lshl_b32 s24, s31, 1
    s_add_u32 s24, s24, s22
    s_sub_u32 s24, s24, 2
    s_lshl_b32 s24, s24, 10
    s_add_u32 s21, s21, s24
    s_mul_i32 s24, s23, 163840
    s_add_u32 s21, s21, s24""")
    for i in range(6):
        k.i(f"v_add_u32 v{12+i}, {240*i}, v5\nv_min_u32 v{12+i}, 1272, v{12+i}\nv_xad_u32 v{12+i}, v{12+i}, v6, v4")
    k.i("s_waitcnt vmcnt(0)")
    stamp(7, "p0")
    k.i("s_barrier")
    for i in range(6):
        r = 32 + 4*i
        k.lg(f"ds_read_b64_tr_b16 v[{r}:{r+1}], v{12+i}")
        k.lg(f"ds_read_b64_tr_b16 v[{r+2}:{r+3}], v{12+i} offset:{4*1280}", f"kv{i}")
    for i in range(6):
        r = 32 + 4*i
        if i == 5: k.i("s_cmp_lg_u32 s23, 0\ns_cbranch_scc1 p0_drain")
        k.wait(lg=f"kv{i}")
        k.i(f"buffer_store_dwordx4 v[{r}:{r+3}], v3, s[16:19], s21 offen {HO}\ns_add_u32 s21, s21, 327680")
    k.i("s_branch p0_drain")
    k.label("p0_zero")
    k.i(f"""s_sub_u32 s21, s45, 248
    s_mul_i32 s21, s21, 6720
    s_add_u32 s21, s21, {KVA}
    v_lshlrev_b32 v4, 4, v0
    v_mov_b32 v8, 0
    v_mov_b32 v9, 0
    v_mov_b32 v10, 0
    v_mov_b32 v11, 0
    v_lshrrev_b32 v30, 4, v1
    s_mov_b32 s10, 6720
    s_mov_b32 s11, 0x20000
    s_waitcnt lgkmcnt(0)
    s_add_u32 s8, s14, s21
    s_addc_u32 s9, s15, 0
    buffer_store_dwordx4 v[8:11], v4, s[8:11], 0 offen {HO}
    v_add_u32 v4, 4096, v4
    buffer_store_dwordx4 v[8:11], v4, s[8:11], 0 offen {HO}
    s_load_dword s44, s[14:15], {CB}""")
    stamp(9, "p0"); stamp(5, "p0"); stamp(7, "p0")
    srd(16, 14, WSZ)
    k.label("p0_drain")
    stamp(1)
    k.i("s_waitcnt vmcnt(0) lgkmcnt(0)\ns_add_u32 s44, s44, 1\ns_barrier")
    k.reset_counts()
    stamp(2)
    sig_all(F0, 4)
    k.i(f"""s_cmp_lg_u32 s20, 2
    s_cbranch_scc1 p0_nob
    v_lshlrev_b32 v4, 7, v1
    v_min_u32 v5, 3068, v4
    v_min_u32 v4, 1276, v4
    global_load_dword v31, v5, s[{PB1}:{PB1+1}]
    global_load_dword v31, v4, s[{PB2}:{PB2+1}]""")
    k.label("p0_nob")
    if not OPT.get("ulate"): unit_issue("")

def unit_issue(sfx):
    cold = OPT["cold"]
    UN = 0 if OPT.get("nounit") else 232
    k.i(f"""s_cmp_ge_u32 s45, {UN}
    s_cbranch_scc1 p0_ui{sfx}d
    s_sub_u32 s6, s20, 1
    s_mul_i32 s5, s6, 7168
    s_cmp_ge_u32 s45, 136
    s_cbranch_scc1 p0_ui{sfx}_w2
    s_cmp_ge_u32 s45, 40
    s_cbranch_scc1 p0_ui{sfx}_w1""")
    srd(8, PWO, 819200)
    k.i(f"""s_mul_i32 s35, s45, 26
    s_lshr_b32 s35, s35, 8
    s_mul_i32 s36, s35, 10
    s_sub_u32 s36, s45, s36
    s_mul_i32 s4, s35, 204800
    s_movk_i32 s25, 1280
    s_branch p0_ui{sfx}_128""")
    k.label(f"p0_ui{sfx}_w1")
    srd(8, PW1, 1966080)
    k.i(f"""s_sub_u32 s34, s45, 40
    s_mul_i32 s35, s34, 43
    s_lshr_b32 s35, s35, 10
    s_mul_i32 s36, s35, 24
    s_sub_u32 s36, s34, s36
    s_mul_i32 s4, s35, 491520
    s_movk_i32 s25, 3072""")
    k.label(f"p0_ui{sfx}_128")
    k.i(f"""s_cmp_eq_u32 s20, 0
    s_cbranch_scc1 p0_ui{sfx}d
    s_lshl_b32 s7, s36, 7
    s_add_u32 s4, s4, s7
    v_lshrrev_b32 v52, 3, v1
    s_mul_i32 s7, s6, 56
    v_add_u32 v52, s7, v52
    v_and_b32 v53, 7, v1
    v_lshlrev_b32 v53, 4, v53
    v_and_b32 v54, 2, v52
    v_lshlrev_b32 v54, 5, v54
    v_mul_lo_u32 v52, v52, s25
    v_xad_u32 v52, v53, v54, v52
    s_lshl_b32 s25, s25, 3""")
    for i in range(7):
        k.i(f"s_add_u32 m0, s5, {UL+1024*i}\nbuffer_load_dwordx4 v52, s[8:11], s4 offen {cold} lds\ns_add_u32 s4, s4, s25")
    k.i(f"s_branch p0_ui{sfx}d")
    k.label(f"p0_ui{sfx}_w2")
    srd(8, PW2, 1966080)
    m, sh = magic(40, 1344)
    k.i(f"""s_sub_u32 s34, s45, 136
    s_lshr_b32 s35, s34, 1
    s_and_b32 s36, s34, 1
    s_cmp_eq_u32 s20, 0
    s_cbranch_scc1 p0_ui{sfx}d
    s_mul_i32 s4, s35, 40960
    s_mul_i32 s7, s36, 640
    s_add_u32 s4, s4, s7
    s_mul_i32 s7, s6, 448
    v_add_u32 v56, s7, v1""")
    for i in range(7):
        k.i(f"""v_add_u32 v52, {64*i}, v56
        v_mul_u32_u24 v53, {m}, v52
        v_lshrrev_b32 v53, {sh}, v53
        v_mul_u32_u24 v54, 40, v53
        v_sub_u32 v54, v52, v54
        v_lshlrev_b32 v54, 4, v54
        v_and_b32 v55, 2, v53
        v_lshlrev_b32 v55, 4, v55
        v_and_b32 v57, 16, v53
        v_lshl_or_b32 v55, v57, 2, v55
        v_mul_u32_u24 v53, 1280, v53
        v_xad_u32 v52, v54, v55, v53
        s_add_u32 m0, s5, {UL+1024*i}
        buffer_load_dwordx4 v52, s[8:11], s4 offen {cold} lds""")
    k.label(f"p0_ui{sfx}d")

def unit_proc(sfx):
    UN = 0 if OPT.get("nounit") else 232
    D0 = 32
    k.i(f"""s_cmp_ge_u32 s45, {UN}
    s_cbranch_scc1 up_end{sfx}
    s_cmp_ge_u32 s45, 136
    s_cbranch_scc1 up_w2{sfx}
    s_and_b32 s6, s20, 1
    s_lshr_b32 s7, s20, 1
    s_lshl_b32 s37, s36, 1
    s_add_u32 s37, s37, s6
    s_cmp_ge_u32 s45, 40
    s_cbranch_scc1 up_w1{sfx}""")
    k.i(f"""v_and_b32 v52, 1, v30
    v_lshrrev_b32 v53, 1, v29
    v_lshl_add_u32 v52, v52, 1, v53
    v_add_u32 v52, s35, v52
    v_and_b32 v52, 3, v52
    v_lshlrev_b32 v52, 4, v52
    v_and_b32 v53, 1, v29
    v_lshl_add_u32 v52, v53, 3, v52
    s_lshl_b32 s24, s6, 6
    v_add_u32 v52, s24, v52
    v_and_b32 v53, 2, v28
    v_lshlrev_b32 v53, 5, v53
    v_xor_b32 v52, v52, v53
    v_lshl_add_u32 v52, v28, 7, v52
    s_mul_i32 s24, s7, 10240
    s_add_u32 s24, s24, {UL}
    v_add_u32 v52, s24, v52
    v_lshrrev_b32 v54, 5, v1
    v_lshlrev_b32 v54, 4, v54
    s_mul_i32 s24, s37, 205
    s_lshr_b32 s24, s24, 10
    s_mul_i32 s25, s24, 5
    s_sub_u32 s25, s37, s25
    s_lshl_b32 s24, s24, 2
    s_add_u32 s24, s24, s35
    s_mul_i32 s24, s24, 10
    s_mul_i32 s4, s7, 5
    s_add_u32 s24, s24, s4
    s_mul_i32 s24, s24, 5
    s_add_u32 s24, s24, s25
    s_lshl_b32 s24, s24, 10
    s_add_u32 s24, s24, {WO}""")
    for uu in range(5):
        for h2 in range(2):
            m_ = 2*uu + h2
            K = 0
            for hi in range(2): K |= ((40*(m_//5) + ROWOFF[hi][m_ % 5]) * 128) << (16*hi)
            r = D0 + 4*uu + 2*h2
            k.i(f"s_mov_b32 s25, {K:#x}\nv_bfe_u32 v55, s25, v54, 16\nv_add_u32 v55, v55, v52")
            k.lg(f"ds_read_b64_tr_b16 v[{r}:{r+1}], v55", f"uo{uu}")
    for uu in range(5):
        r = D0 + 4*uu
        k.wait(lg=f"uo{uu}")
        k.i(f"buffer_store_dwordx4 v[{r}:{r+3}], v3, s[16:19], s24 offen {HO}\ns_add_u32 s24, s24, 5120")
    k.i(f"s_branch up_end{sfx}")
    k.label(f"up_w1{sfx}")
    k.i(f"""v_lshrrev_b32 v52, 1, v30
    v_lshl_add_u32 v52, v52, 3, v28
    v_and_b32 v53, 1, v30
    v_lshlrev_b32 v53, 5, v53
    v_lshl_add_u32 v53, v29, 3, v53
    s_lshl_b32 s24, s6, 6
    v_add_u32 v53, s24, v53
    v_and_b32 v54, 2, v28
    v_lshlrev_b32 v54, 5, v54
    v_lshlrev_b32 v52, 7, v52
    v_xad_u32 v52, v53, v54, v52
    s_mul_i32 s24, s7, 10240
    s_add_u32 s24, s24, {UL}
    v_add_u32 v52, s24, v52
    v_mov_b32 v56, 0
    s_mov_b32 s4, 0x3f803f80
    s_mul_i32 s24, s37, 171
    s_lshr_b32 s24, s24, 9
    s_mul_i32 s25, s24, 3
    s_sub_u32 s25, s37, s25
    s_mul_i32 s24, s24, 40
    s_mul_i32 s5, s35, 10
    s_add_u32 s24, s24, s5
    s_mul_i32 s5, s7, 5
    s_add_u32 s24, s24, s5
    s_mul_i32 s24, s24, 3
    s_add_u32 s24, s24, s25
    s_lshl_b32 s24, s24, 10
    s_add_u32 s24, s24, {W1}""")
    for ks in range(5):
        r = D0 + 4*ks
        k.lg(f"ds_read_b64_tr_b16 v[{r}:{r+1}], v52 offset:{ks*2048}")
        k.lg(f"ds_read_b64_tr_b16 v[{r+2}:{r+3}], v52 offset:{ks*2048+512}", f"u1{ks}")
    for ks in range(5):
        r = D0 + 4*ks
        k.wait(lg=f"u1{ks}")
        k.i(f"buffer_store_dwordx4 v[{r}:{r+3}], v3, s[16:19], s24 offen {HO}\ns_add_u32 s24, s24, 3072")
        for j in range(4): k.i(f"v_dot2_f32_bf16 v56, v{r+j}, s4, v56")
    k.i(f"""s_nop 2
    v_mov_b32 v57, v56
    s_lshl_b32 s24, s35, 1
    s_add_u32 s24, s24, s7
    v_permlane32_swap_b32 v56, v57
    s_mul_i32 s24, s24, 6144
    s_lshl_b32 s25, s37, 7
    s_add_u32 s24, s24, s25
    s_add_u32 s24, s24, {CS}
    v_add_f32 v56, v56, v57
    v_lshlrev_b32 v57, 2, v1
    s_mov_b64 exec, 0xffffffff
    buffer_store_dword v56, v57, s[16:19], s24 offen {HO}
    s_mov_b64 exec, -1
    s_branch up_end{sfx}""")
    k.label(f"up_w2{sfx}")
    k.i(f"""v_and_b32 v52, 1, v30
    v_lshlrev_b32 v52, 4, v52
    v_lshrrev_b32 v53, 1, v30
    v_lshl_add_u32 v52, v53, 2, v52
    v_add_u32 v52, v52, v28
    v_and_b32 v54, 2, v52
    v_lshlrev_b32 v54, 4, v54
    v_and_b32 v55, 16, v52
    v_lshl_or_b32 v54, v55, 2, v54
    v_mul_u32_u24 v52, 640, v52
    v_add_u32 v52, {UL}, v52
    s_mul_i32 s24, s20, 160
    v_lshl_add_u32 v53, v29, 3, s24
    s_lshl_b32 s24, s36, 2
    s_add_u32 s24, s24, s20
    s_mul_i32 s24, s24, 48
    s_add_u32 s24, s24, s35
    s_mul_i32 s24, s24, 5120
    s_add_u32 s24, s24, {W2}""")
    for m_ in range(5):
        r = D0 + 4*m_
        k.i(f"v_add_u32 v55, {32*m_}, v53\nv_xad_u32 v55, v55, v54, v52")
        k.lg(f"ds_read_b64_tr_b16 v[{r}:{r+1}], v55")
        k.lg(f"ds_read_b64_tr_b16 v[{r+2}:{r+3}], v55 offset:{8*640}", f"u2{m_}")
    for m_ in range(5):
        r = D0 + 4*m_
        k.wait(lg=f"u2{m_}")
        k.i(f"buffer_store_dwordx4 v[{r}:{r+3}], v3, s[16:19], s24 offen {HO}\ns_add_u32 s24, s24, 1024")
    k.label(f"up_end{sfx}")

WOR = [160 + 4*f for f in range(21)] + [44 + 4*f for f in range(29)]
PQA = 0; XA = 244
W2R = WOR + list(range(0, 40, 4))
TBV = 244
WOB = None; XQ = None
def phase1():
    global WOB
    k.i(f"""v_add_u32 v4, 0x10000, v3
    v_add_u32 v5, 0x20000, v3
    s_lshl_b32 s28, s26, 2
    s_add_u32 s28, s28, s20
    s_mul_i32 s21, s28, 40960
    s_add_u32 s21, s21, {XN}
    s_lshl_b32 s23, s20, 12
    s_mul_i32 s22, s27, 163840
    s_add_u32 s22, s22, s23
    s_add_u32 s22, s22, {WQ}
    s_mov_b32 s40, {LOG2E:#x}
    s_mov_b32 s41, {LOG2E:#x}
    s_mov_b32 s38, 0x358637bd
    s_mov_b32 s39, 0x358637bd""")
    if OPT.get("mapb"):
        k.i(f"""s_and_b32 s{PWQ}, s2, 7
        s_lshl_b32 s{PWQ}, s{PWQ}, 1
        s_lshr_b32 s33, s2, 7
        s_add_u32 s{PWQ}, s{PWQ}, s33
        s_bfe_u32 s{PWQ+1}, s2, 0x40003
        s_and_b32 s13, s{PWQ+1}, 7
        s_lshr_b32 s12, s{PWQ+1}, 3
        s_lshl_b32 s31, s{PWQ}, 1
        s_add_u32 s12, s12, s31
        s_lshl_b32 s31, s{PWQ}, 2
        s_lshr_b32 s29, s{PWQ+1}, 2
        s_add_u32 s29, s29, s31
        s_and_b32 s30, s{PWQ+1}, 3""")
    else:
        k.i(f"""s_mov_b32 s{PWQ}, s26
        s_mov_b32 s{PWQ+1}, s27
    s_lshr_b32 s33, s27, 3
        s_lshl_b32 s13, s33, 2
        s_and_b32 s12, s27, 3
        s_add_u32 s13, s13, s12
        s_bfe_u32 s12, s27, 0x10002
        s_lshl_b32 s31, s26, 1
        s_add_u32 s12, s12, s31
        s_lshl_b32 s31, s26, 2
        s_bfe_u32 s29, s27, 0x20001
        s_add_u32 s29, s29, s31
        s_lshl_b32 s30, s33, 1
        s_and_b32 s33, s27, 1
        s_add_u32 s30, s30, s33""")
    k.i(f"""    s_lshl_b32 s31, s30, 2
    s_add_u32 s31, s31, s20
    s_mul_i32 s31, s31, 51200
    s_add_u32 s31, s31, {WO}
""")
    k.i(f"""v_and_b32 v24, 31, v1
    v_lshlrev_b32 v24, 4, v24
    v_lshrrev_b32 v25, 5, v1
    v_lshl_add_u32 v24, v25, 3, v24
    s_mul_i32 s3, s29, 40
    s_mul_i32 s33, s30, 10
    s_add_u32 s3, s3, s33
    s_lshr_b32 s33, s20, 1
    s_add_u32 s3, s3, s33
    s_lshl_b32 s3, s3, 10
    s_and_b32 s33, s20, 1
    s_lshl_b32 s33, s33, 9
    s_add_u32 s3, s3, s33
    s_add_u32 s3, s3, {XC}
""" if OPT.get("xc") else """v_and_b32 v24, 31, v1
    s_lshl_b32 s33, s29, 5
    v_add_u32 v24, s33, v24
    v_mul_u32_u24 v24, 1280, v24
    v_lshrrev_b32 v25, 5, v1
    v_lshl_add_u32 v24, v25, 3, v24
    s_mul_i32 s3, s30, 320
    s_lshl_b32 s34, s20, 4
    s_add_u32 s3, s3, s34
""")
    k.i(f"""v_lshlrev_b32 v26, 2, v0
    v_lshlrev_b32 v27, 1, v0
    s_mul_i32 s33, s{PWQ+1}, 192
    s_add_u32 s{PB1}, s{PB1}, s33
    s_addc_u32 s{PB1+1}, s{PB1+1}, 0
    s_mul_i32 s54, s{PWQ+1}, 384
    s_add_u32 s54, s54, {CS}""")
    XM = OPT.get("xm", "win")
    def xloads(pol):
        for c in range(5):
            k.i(f"global_load_dwordx2 a[{XA+2*c}:{XA+2*c+1}], v24, s[{PX}:{PX+1}] offset:{64*c} {pol}")
    if OPT.get("xc"): XM = "none"
    else: k.i("v_add_u32 v24, s3, v24")
    if XM == "early": xloads(OPT.get('xpol', 'nt'))
    elif XM == "mix":
        k.i("s_cmp_eq_u32 s20, 0\ns_cbranch_scc1 p1_nox")
        xloads(OPT.get('xpol', ''))
        k.label("p1_nox")
    k.i(f"v_min_u32 v27, 190, v27")
    poll_all(F0, 8, O("slp0", 16))
    k.i("s_barrier")
    stamp(4)
    ACC = 64; WB = 128; T = 8; PK = 176; FB0 = 20; NS = 12; AH = 8
    PRE = O("pre1", 3)
    Q = BG()
    for s in range(10):
        for j in range(4):
            Q.add(f"buffer_load_dwordx4 v3, s[16:19], s22 offen offset:{1024*j} {HO} lds", f"W{s}",
                  pre=(f"s_add_u32 m0, s23, {(s % 8)*16384}" if (j == 0 or OPT.get("ulate")) else ""), post=("s_add_u32 s22, s22, 16384" if j == 3 else ""))
        for j in range(4):
            Q.add(f"buffer_load_dwordx4 a[{16*s+4*j}:{16*s+4*j+3}], v3, s[16:19], s21 offen offset:{1024*j} {HO}", f"X{4*s+j}",
                  post=("s_add_u32 s21, s21, 4096" if j == 3 else ""))
    Q.go(8*PRE)
    k.wait(vm="W0"); k.i("s_barrier")
    if not OPT.get("ulate"):
        sv0 = snap(); unit_proc(""); rest(sv0)
    if OPT.get("xc"):
        k.i("s_cmp_ge_u32 s45, 128\ns_cbranch_scc1 p1_noxc")
        for i in range(5):
            k.i(f"buffer_store_dwordx4 v[{208+4*i}:{211+4*i}], v228, s[16:19], s55 offen {HO}\ns_add_u32 s55, s55, 8192")
        k.label("p1_noxc")
    stamp(3)
    k.i("s_cmp_ge_u32 s27, 11\ns_cbranch_scc1 p1_q")
    sv = snap(); Qs = list(Q.q)
    def mkbg():
        B = BG()
        for i in range(50):
            B.add(f"buffer_load_dwordx4 a[{WOR[i]}:{WOR[i]+3}], v3, s[16:19], s31 offen offset:{1024*(i%4)} {HO}", f"wo{i}", post=("s_add_u32 s31, s31, 4096" if i % 4 == 3 else ""))
        return B
    def small():
        S = BG()
        global XQ
        X_ = XQ = BG()
        for j in range(8):
            S.add(f"buffer_load_dword v{TBV+j}, v26, s[16:19], s54 offen {HO}", post=f"s_add_u32 s54, s54, 6144")
        for c in range(5):
            if OPT.get("xc"): S.add(f"buffer_load_dwordx2 a[{XA+2*c}:{XA+2*c+1}], v24, s[16:19], s3 offen offset:{2048*(c%2)} {HO}", post=("s_add_u32 s3, s3, 4096" if c % 2 else ""))
        return S
    NPRE = O("wo_pre", 20)
    def loop(act_first, order_tail, fill_after, B, sfx):
        items = [(ks, j) for ks in range(40 - len(order_tail)//4) for j in range(4)] + order_tail
        first = {}
        for n_, (ks_, j_) in enumerate(items): first.setdefault(ks_//4, n_)
        NCHK = 2*(80 - 8*PRE) + O("chk", 0)
        if OPT.get("ulate"): assert O("un_sig", 6) >= O("un_proc", 4) + PRE and 16*(O("un_proc", 4) - PRE) >= O("un_iss", 0)
        def rd(n):
            ks, j = items[n]
            if ks >= 4 and first[ks//4] == n:
                k.wait(vm=f"W{ks//4}"); k.i("s_barrier")
                if OPT.get("ulate") and ks//4 == O("un_proc", 4):
                    sv1 = snap(); unit_proc(sfx); rest(sv1)
                if ks//4 == (O("un_sig", 6) if OPT.get("ulate") else PRE + 1):
                    signal(1, f"v_mov_b32 v7, 0\ns_lshl_b32 s42, s45, 2\ns_add_u32 s42, s42, {F0B}", 6)
            o = ((ks % 32)*4 + j) * 1024
            r = WB + 4*(n % NS)
            k.lg(f"ds_read_b128 v[{r}:{r+3}], v{3 + o//65536} offset:{o % 65536}", f"w{n}")
        for n in range(AH): rd(n)
        fill = []
        for n, (ks, j) in enumerate(items):
            if OPT.get('ulate') and n == O('un_iss', 0): unit_issue(sfx)
            if n % 2 == 0:
                k.wait(vm=f"X{max(items[n][0], items[n+1][0])}", lg=f"w{n+1}")
                if n % 16 == 0: stamp(8 + n//16, "p1")
            w = vr(WB + 4*(n % NS), 4); x = ar(4*ks, 4); d = vr(ACC + 16*j, 16)
            c = "0" if ks == 0 else d
            k.i(f"v_mfma_f32_32x32x16_bf16 {d}, {x}, {w}, {c}" if act_first else f"v_mfma_f32_32x32x16_bf16 {d}, {w}, {x}, {c}")
            if n % 2 == 0:
                if Q.left(): Q.go()

            else:
                for m_ in (n - 1 + AH, n + AH):
                    if m_ < 160: rd(m_)
            if n == NCHK - 16:
                k.i(f"s_mov_b32 s42, {F0B}")
                k.vm(f"buffer_load_dwordx4 v[{FB0}:{FB0+3}], v3, s[16:19], s42 offen sc1", "f0b")
            if n == NCHK:
                k.wait(vm="f0b")
                check4(FB0)
                k.i(f"s_cbranch_vccz p1_ok{sfx}\ns_mov_b32 s42, {F0B}")
                poll(3, 42, FB0, wide=True, w0=False)
                k.label(f"p1_ok{sfx}")
                SQ[0] = small()
                lim[0] = min(21, NPRE); k.th = O("th1", 96)
                k.auto = lambda: B.go() if 50 - B.left() < lim[0] else None
            if n in fill_after: fill += fill_after[n]
            for _ in range(6):
                if fill: k.i(fill.pop(0))
        lim[0] = NPRE; k.th = O("th1e", 90)
        for l in fill: k.i(l)
    lim = [0]; SQ = [None]
    def phi_lines(t):
        with capture() as c:
            for b in range(0, 16, 4): phi4(ACC + 16*t + b, PK + 8*t + b//2, T)
        return c.lines
    TL = O("tl1", 4)
    tail = [(ks, j) for ks in range(40-TL, 40) for j in (0, 1)] + [(ks, j) for ks in range(40-TL, 40) for j in (2, 3)]
    B = mkbg()
    loop(True, tail, {161 - 2*TL: phi_lines(0) + phi_lines(1)}, B, "kv")
    stamp(5)
    k.i("s_lshl_b32 s33, s20, 13\ns_add_u32 s33, s33, 32768\nv_add_u32 v6, s33, v3")
    for t in (0, 1):
        for f in range(2):
            k.lg(f"ds_write_b128 v6, v[{PK+8*t+4*f}:{PK+8*t+4*f+3}] offset:{2048*t+1024*f}")
    for t in (2, 3):
        for p in range(8):
            k.i(f"v_cvt_pk_bf16_f32 v{PK+8*t+p}, v{ACC+16*t+2*p}, v{ACC+16*t+2*p+1}")
        if t == 3:
            k.i("s_mov_b32 s34, 0xf0000000\ns_mov_b32 s35, 0xf0000000\nv_mov_b32 v7, 0x3f803f80")
            for p in range(8): k.i(f"v_cndmask_b32 v{PK+24+p}, v{PK+24+p}, v7, s[34:35]")
        for f in range(2):
            k.lg(f"ds_write_b128 v6, v[{PK+8*t+4*f}:{PK+8*t+4*f+3}] offset:{2048*t+1024*f}")
    k.i("""s_lshr_b32 s33, s20, 1
    s_and_b32 s34, s20, 1
    s_lshl_b32 s35, s33, 11
    s_add_u32 s35, s35, 32768
    v_add_u32 v8, s35, v3
    s_lshl_b32 s35, s34, 11
    s_add_u32 s35, s35, 36864
    v_add_u32 v9, s35, v3""")
    k.wait(lg="all"); k.i("s_barrier")
    stamp(8, "p1e")
    FA = 64; FB = 96; DD = 128
    for w in range(4):
        for f in range(2):
            n = 2*w + f
            k.lg(f"ds_read_b128 v[{FA+4*n}:{FA+4*n+3}], v8 offset:{8192*w+1024*f}")
            k.lg(f"ds_read_b128 v[{FB+4*n}:{FB+4*n+3}], v9 offset:{8192*w+1024*f}", f"f{n}")
    with capture() as c:
        k.i("""v_and_b32 v10, 31, v1
        s_lshl_b32 s35, s34, 5
        v_add_u32 v10, s35, v10
        v_mul_u32_u24 v11, 205, v10
        v_lshrrev_b32 v11, 12, v11
        v_mul_u32_u24 v12, 20, v11
        v_sub_u32 v12, v10, v12
        v_cmp_eq_u32 s[36:37], 60, v10
        v_mov_b32 v13, 20
        v_lshrrev_b32 v14, 5, v1
        v_cndmask_b32 v12, v12, v13, s[36:37]
        v_mul_u32_u24 v12, 80, v12
        v_lshlrev_b32 v14, 2, v14
        s_lshl_b32 s35, s33, 5
        v_add_u32 v14, s35, v14
        v_lshlrev_b32 v22, 2, v0
        v_add_u32 v23, 65536, v22
        v_add_u32 v12, 65536, v12""")
        MS = [4, 6, 24, 34]
        for j in range(4):
            ms = MS[j]
            k.i(f"""v_add_u32 v15, {8*j}, v14
            v_mul_u32_u24 v20, 205, v15
            v_lshrrev_b32 v20, 12, v20
            v_mul_u32_u24 v21, 20, v20
            v_sub_u32 v21, v15, v21
            v_cmp_eq_u32 s[{ms}:{ms+1}], v20, v11
            v_cmp_gt_u32 vcc, 3, v20
            v_mul_u32_u24 v20, 1680, v20
            v_lshl_add_u32 v21, v21, 2, v12
            v_add_u32 v{16+j}, v20, v21
            s_or_b64 s[{ms}:{ms+1}], s[{ms}:{ms+1}], s[36:37]
            s_and_b64 s[{ms}:{ms+1}], s[{ms}:{ms+1}], vcc""")
    fill = c.lines
    for _ in range(16): k.i(fill.pop(0))
    def kvm(n):
        def f():
            k.wait(lg=f"f{n}")
            k.i(f"v_mfma_f32_32x32x16_bf16 v[{DD}:{DD+15}], v[{FA+4*n}:{FA+4*n+3}], v[{FB+4*n}:{FB+4*n+3}], {'0' if n == 0 else vr(DD,16)}")
        return f
    for l in merge([kvm(n) for n in range(8)], fill, 6): k.i(l)
    for j in range(4):
        k.i(f"s_mov_b64 exec, s[{MS[j]}:{MS[j]+1}]")
        k.lg(f"ds_write_b128 v{16+j}, v[{DD+4*j}:{DD+4*j+3}]")
    k.i(f"""s_mov_b64 exec, -1
    s_mul_i32 s33, s27, 5040
    s_add_u32 s33, s33, {KVA}
    s_add_u32 s4, s14, s33
    s_addc_u32 s5, s15, 0
    s_cmp_eq_u32 s27, 10
    s_movk_i32 s6, 5040
    s_cselect_b32 s6, 3360, s6
    s_mov_b32 s7, 0x20000""")
    k.wait(lg="all"); k.i("s_barrier")
    stamp(9, "p1e")
    for i in range(5):
        k.lg(f"ds_read_b32 v{32+i}, v23 offset:{1024*i}", f"d{i}")
    for i in range(5):
        k.wait(lg=f"d{i}")
        if i == 4: k.i("v_add_u32 v22, 4096, v22")
        k.vm(f"buffer_atomic_add_f32 v{32+i}, v22, s[4:7], 0 offen offset:{1024*(i%4)}", "out1")
    stamp(10, "p1e")
    def bg_finish(B):
        k.auto = None
        print("WO left for the drain:", NPRE - (50 - B.left()), file=sys.stderr)
        if O("pqe", 1):
            k.i(f"v_min_u32 v{FB0+1}, 4, v1\nv_lshlrev_b32 v{FB0+1}, 2, v{FB0+1}\ns_and_b32 s24, s2, 7\ns_lshl_b32 s24, s24, 12\ns_lshl_b32 s25, s26, 8\ns_add_u32 s24, s24, s25\ns_add_u32 s24, s24, {F1 + 128 + 12}")
            k.vm(f"buffer_load_dword v{FB0}, v{FB0+1}, s[16:19], s24 offen sc1", "out1")
        B.go(NPRE - (50 - B.left()))
    bg_finish(B)
    k.wait(vm="out1")
    k.i("s_branch p1_fin")
    k.label("p1_q")
    rest(sv); Q.q = list(Qs)
    k.i(f"""s_mul_i32 s33, s28, 40960
    s_sub_u32 s34, s27, 11
    s_lshl_b32 s34, s34, 13
    s_add_u32 s33, s33, s34
    s_add_u32 s33, s33, {PQ}""")
    tail = [(ks, j) for j in range(4) for ks in range(36, 40)]
    B = mkbg()
    loop(False, tail, {149: phi_lines(0), 153: phi_lines(1)}, B, "q")
    stamp(5)
    for t in range(4):
        if t >= 2:
            for b in range(0, 16, 4):
                phi4(ACC + 16*t + b, PK + 8*t + b//2, T)
        for f in range(2):
            k.vm(f"buffer_store_dwordx4 v[{PK+8*t+4*f}:{PK+8*t+4*f+3}], v3, s[16:19], s33 offen offset:{(2048*t+1024*f) % 4096} {HO}", "out1")
        if t == 1: k.i("s_add_u32 s33, s33, 4096")
    stamp(8, "p1e"); stamp(9, "p1e"); stamp(10, "p1e")
    bg_finish(B)
    k.wait(vm="out1")
    k.label("p1_fin")
    stamp(6)
    k.i("s_barrier")
    sig_all(F1, 6)
    WOB = B
    k.i(f"s_mov_b32 s26, s{PWQ}\ns_mov_b32 s27, s{PWQ+1}")
    if O("pqe", 1):
        k.i(f"v_cmp_ne_u32 vcc, s44, v{FB0}\ns_cbranch_vccz p1_qok")
        poll(FB0+1, 24, FB0, w0=False)
        k.label("p1_qok")
        k.i(f"""s_mul_i32 s22, s29, 40960
        s_mul_i32 s33, s20, 10240
        s_add_u32 s22, s22, s33
        s_add_u32 s22, s22, {PQ}""")
        for kl in range(10):
            k.vm(f"buffer_load_dwordx4 a[{PQA+4*kl}:{PQA+4*kl+3}], v3, s[16:19], s22 offen offset:{1024*(kl%4)} {HO}", f"pq{kl}")
            if kl % 4 == 3: k.i("s_add_u32 s22, s22, 4096")
    k.vm(f"global_load_ushort v{TBV+8}, v27, s[{PB1}:{PB1+1}]")
    SQ[0].go(99)
    if XM == "win": xloads("")
    if XM == "mix":
        k.i("s_cmp_lg_u32 s20, 0\ns_cbranch_scc1 p1_nox2")
        xloads("")
        k.label("p1_nox2")
    WOB.go(O("wo_w", 5))
    NW1 = O("w1_w", 16)
    k.i(f"""s_mul_i32 s25, s27, 122880
    s_add_u32 s25, s25, {W1}
    s_cmp_eq_u32 s20, 0
    s_cbranch_scc1 p1_now1
    s_sub_u32 s23, s20, 1
    s_mul_i32 s23, s23, {NW1*1024}
    s_add_u32 s24, s25, s23""")
    for i in range(NW1):
        if i % 4 == 0: k.i(f"s_add_u32 m0, s23, {1024*i}")
        if not OPT.get("nobg"): k.i(f"buffer_load_dwordx4 v3, s[16:19], s24 offen offset:{1024*(i%4)} {HO} lds")
        if i % 4 == 3: k.i("s_add_u32 s24, s24, 4096")
    k.i("s_waitcnt vmcnt(0)" if OPT.get("nobg") else f"s_waitcnt vmcnt({NW1})")
    k.label("p1_now1")
    stamp(7)

W2B = None
def phase2():
    global W2B
    P2L = 102400
    k.i(f"""s_mul_i32 s21, s20, 13440
    s_add_u32 s21, s21, {KVA}
    s_mul_i32 s23, s20, 15360
    s_add_u32 s23, s23, {P2L+64}
    s_mul_i32 s22, s29, 40960
    s_mul_i32 s33, s20, 10240
    s_add_u32 s22, s22, s33
    s_add_u32 s22, s22, {PQ}
    v_bfe_u32 v8, v1, 2, 3
    v_lshlrev_b32 v8, 2, v8
    v_and_b32 v9, 3, v1
    s_mov_b32 s33, 0x55524130
    s_mov_b32 s34, 0x55453120
    v_bfe_u32 v10, s33, v8, 4
    v_bfe_u32 v11, s34, v8, 4
    v_lshl_add_u32 v10, v10, 2, v9
    v_lshl_add_u32 v11, v11, 2, v9
    v_min_u32 v10, 20, v10
    v_min_u32 v11, 20, v11
    v_lshrrev_b32 v12, 5, v1
    v_lshlrev_b32 v12, 4, v12
    s_sub_u32 s33, s23, 16
    v_add_u32 v12, s33, v12
    v_mul_u32_u24 v10, 80, v10
    v_mul_u32_u24 v11, 80, v11
    v_add_u32 v10, v10, v12
    v_add_u32 v11, v11, v12
    s_lshl_b32 s28, s26, 2
    s_add_u32 s28, s28, s20
    s_mov_b32 s36, 0
    s_mov_b32 s37, -1
    s_lshl_b32 s35, s13, 2
    s_add_u32 s35, s35, s20
    s_mul_i32 s35, s35, 61440
    s_add_u32 s35, s35, {W2}""")
    poll_all(F1, 14, O('slp1', 0))
    k.i("s_barrier")
    k.vm_done = k.vm_n
    stamp(8)
    for i in range(14):
        if i % 4 == 0: k.i(f"s_add_u32 m0, s23, {1024*i}")
        k.vm(f"buffer_load_dwordx4 v3, s[16:19], s21 offen offset:{1024*(i%4)} {HO} lds", f"kv{i}")
        if i % 4 == 3: k.i("s_add_u32 s21, s21, 4096")
        if i in (6, 13) and not O("pqe", 1):
            for kl in (range(0, 5) if i == 6 else range(5, 10)):
                k.vm(f"buffer_load_dwordx4 a[{PQA+4*kl}:{PQA+4*kl+3}], v3, s[16:19], s22 offen offset:{1024*(kl%4)} {HO}", f"pq{kl}")
                if kl % 4 == 3: k.i("s_add_u32 s22, s22, 4096")
    XQ.go(99)
    NW1 = O("w1_w", 16); N1 = (96 - 3*NW1) // 4
    assert 3*NW1 + 4*N1 == 96
    k.i(f"s_mul_i32 s24, s20, {N1*1024}\ns_add_u32 s24, s24, {3*NW1*1024}\ns_add_u32 s25, s25, s24")
    B1 = BG()
    for i in range(N1):
        B1.add(f"buffer_load_dwordx4 v3, s[16:19], s25 offen offset:{1024*(i%4)} {HO} lds", "w1",
               pre=(f"s_add_u32 m0, s24, {1024*i}" if i % 4 == 0 else ""), post=("s_add_u32 s25, s25, 4096" if i % 4 == 3 else ""))
    W2B = BG()
    for i in range(60):
        W2B.add(f"buffer_load_dwordx4 a[{W2R[i]}:{W2R[i]+3}], v3, s[16:19], s35 offen offset:{1024*(i%4)} {HO}", "w2", post=("s_add_u32 s35, s35, 4096" if i % 4 == 3 else ""))
    AF = 20; TT = 84; DT = 180; OG = 84; ACC = [20, 36, 124, 140, 156]
    for j in range(1, 8): k.i(f"v_add_f32 v{TBV}, v{TBV}, v{TBV+j}")
    k.i(f"v_lshlrev_b32 v{TBV+1}, 16, v{TBV+8}")
    jobs = {}
    n = 0
    for hl in range(8):
        jobs[hl] = []
        for u in range(2):
            for h2 in range(2):
                dg0 = -(hl % 4) + 4*u + 2*h2
                v0_ = 0 <= dg0 <= 4; v1_ = 0 <= dg0+1 <= 4
                d = AF + (2*hl+u)*4 + 2*h2
                if v0_ or v1_:
                    jobs[hl].append((d, n, v0_, v1_, hl*1680 + 16*(dg0+1))); n += 1
                else:
                    jobs[hl].append((d, None, 0, 0, 0))
                    k.i(f"v_mov_b32 v{d}, 0\nv_mov_b32 v{d+1}, 0")
    def kvreads(lo, hi):
        for hl in range(lo, hi):
            for d, n, _, _, o in jobs[hl]:
                if n is not None: k.lg(f"ds_read_b128 v[{TT+4*n}:{TT+4*n+3}], v{10 + (hl & 1)} offset:{o}", f"a{n}")
    def build(hl):
        for d, n, v0_, v1_, _ in jobs[hl]:
            if n is None: continue
            k.wait(lg=f"a{n}")
            t = TT + 4*n
            k.i(f"v_cvt_pk_bf16_f32 v{d}, v{t}, v{t+1}\nv_cvt_pk_bf16_f32 v{d+1}, v{t+2}, v{t+3}")
            if not v1_: k.i(f"v_cndmask_b32 v{d}, v{d}, 0, s[36:37]\nv_cndmask_b32 v{d+1}, v{d+1}, 0, s[36:37]")
            if not v0_: k.i(f"v_cndmask_b32 v{d}, 0, v{d}, s[36:37]\nv_cndmask_b32 v{d+1}, 0, v{d+1}, s[36:37]")
    def omm(hl):
        t0 = hl + hl//4
        d = vr(DT + 16*(hl % 4), 16)
        def f(u):
            def g():
                k.wait(vm=f"pq{t0+u}")
                k.i(f"v_mfma_f32_32x32x16_bf16 {d}, {vr(AF+(2*hl+u)*4, 4)}, {ar(PQA+4*(t0+u), 4)}, {'0' if u == 0 else d}")
            return g
        return [f(0), f(1)]
    def opost(hl):
        p = hl // 2; odd = hl & 1
        D = DT + 16*(hl % 4); rc = 16 + 2*odd
        a, b = (D+8, D+12) if odd else (D+12, D+8)
        with capture() as c:
            k.i(f"v_cndmask_b32 v{rc}, v{a}, v{b}, s[36:37]\nv_add_f32 v{rc}, s38, v{rc}\nv_rcp_f32 v{rc}, v{rc}\ns_nop 0")
            for h in range(6):
                k.i(f"v_pk_mul_f32 v[{D+2*h}:{D+2*h+1}], v[{D+2*h}:{D+2*h+1}], v[{rc}:{rc+1}] op_sel_hi:[1,0]")
            for j in range(2):
                g = OG + 2*(5*p + 2*odd + j)
                k.i(f"v_cvt_pk_bf16_f32 v{g}, v{D+4*j}, v{D+4*j+1}\nv_cvt_pk_bf16_f32 v{g+1}, v{D+4*j+2}, v{D+4*j+3}")
            g = OG + 2*(5*p + 4)
            if not odd:
                k.i(f"v_cvt_pk_bf16_f32 v{g}, v{D+8}, v{D+9}\nv_cvt_pk_bf16_f32 v{g+1}, v{D+10}, v{D+11}")
            else:
                k.i(f"v_cvt_pk_bf16_f32 v{D}, v{D+8}, v{D+9}\nv_cvt_pk_bf16_f32 v{D+1}, v{D+10}, v{D+11}")
                k.i(f"v_cndmask_b32 v{g}, v{g}, v{D}, s[36:37]\nv_cndmask_b32 v{g+1}, v{g+1}, v{D+1}, s[36:37]")
        return c.lines
    def wo(u, c, bg=True):
        def f():
            d = vr(ACC[c], 16)
            while f"wo{5*u+c}" not in k.vm_tags or (WOB.left() and 50 - WOB.left() <= 5*u+c): WOB.go()
            k.wait(vm=f"wo{5*u+c}")
            k.i(f"v_mfma_f32_32x32x16_bf16 {d}, {ar(WOR[5*u+c], 4)}, {vr(OG+4*u, 4)}, {'0' if u == 0 else d}")
            w2lim[0] = min(5*u, 35)
        return f
    w2lim = [0]
    def au2():
        if WOB.left(): WOB.go()
        elif B1.left(): B1.go()
        elif 60 - W2B.left() < w2lim[0]: W2B.go()
    k.auto = au2; k.th = O("th2", 90)
    k.wait(vm="kv6")
    stamp(13, "p2")
    kvreads(0, 4)
    for hl in range(4):
        build(hl)
        for f in omm(hl): f()
        if hl == 1:
            k.wait(vm="kv13"); kvreads(4, 8)
    for hl in range(4, 8):
        build(hl)
    stamp(9)
    for l in opost(0): k.i(l)
    for l in merge(omm(4), opost(1), 9): k.i(l)
    stamp(10)
    for l in merge(omm(5) + [wo(u, c) for u in (0, 1) for c in range(5)], opost(2) + opost(3), 4): k.i(l)
    for l in merge(omm(6) + omm(7) + [wo(u, c) for u in (2, 3, 4) for c in range(5)], opost(4) + opost(5), 3): k.i(l)
    with capture() as c:
        k.i(f"s_sub_u32 s33, s23, 64\nv_add_u32 v13, s33, v3")
        for j in range(1, 4):
            k.i(f"s_sub_u32 s33, s20, {j}\ns_and_b32 s33, s33, 3\ns_mul_i32 s33, s33, 15360\ns_add_u32 s33, s33, {P2L + (j-1)*5120}\nv_add_u32 v{13+j}, s33, v3")
    for l in merge([wo(u, c) for u in (5, 6) for c in range(5)], opost(6) + opost(7), 4): k.i(l)
    XF = 180
    with capture() as c2:
        k.i("s_mov_b32 s33, 0xffff0000")
        for j in range(10):
            k.i(f"v_accvgpr_read_b32 v{XF+2*j+1}, a{XA+j}")
        for j in range(10):
            k.i(f"v_lshlrev_b32 v{XF+2*j}, 16, v{XF+2*j+1}\nv_and_b32 v{XF+2*j+1}, s33, v{XF+2*j+1}")
    fill = c.lines + c2.lines
    if "xres" in k.vm_tags: k.wait(vm="xres")
    def red_w(c):
        for j in range(1, 4):
            r = ACC[c] + 4*j
            k.lg(f"ds_write_b128 v13, v[{r}:{r+3}] offset:{(j-1)*5120 + 1024*c}")
    for c in range(5):
        fill = merge([wo(u, c) for u in (7, 8, 9)], fill, 4)
        if c >= 2: red_w(c - 2)
    for l in fill: k.i(l)
    w2lim[0] = 60
    stamp(11)
    red_w(3); red_w(4)
    for c in range(5):
        for h in range(2):
            d = XF + 4*c + 2*h; a = ACC[c] + 2*h
            k.i(f"v_pk_add_f32 v[{d}:{d+1}], v[{d}:{d+1}], v[{a}:{a+1}]")
    k.wait(lg="all"); k.i("s_barrier")
    stamp(14, "p2")
    RR = 84
    for j in range(1, 4):
        for c in range(5):
            r = RR + 20*(j-1) + 4*c
            k.lg(f"ds_read_b128 v[{r}:{r+3}], v{13+j} offset:{1024*c}", f"r{j}_{c}")
    k.i(f"""s_mul_i32 s34, s29, 40
    s_mul_i32 s21, s30, 10
    s_add_u32 s34, s34, s21
    s_lshr_b32 s21, s20, 1
    s_add_u32 s34, s34, s21
    s_lshl_b32 s34, s34, 10
    s_and_b32 s21, s20, 1
    s_lshl_b32 s21, s21, 9
    s_add_u32 s34, s34, s21
    s_add_u32 s34, s34, {HH}
    v_and_b32 v8, 31, v1
    v_lshrrev_b32 v9, 5, v1
    v_lshlrev_b32 v12, 3, v8
    v_lshlrev_b32 v8, 4, v8
    v_lshl_add_u32 v8, v9, 3, v8""")
    HP = 24
    for j in range(1, 4):
        for c in range(5):
            k.wait(lg=f"r{j}_{c}")
            for h in range(2):
                d = XF + 4*c + 2*h; a = RR + 20*(j-1) + 4*c + 2*h
                k.i(f"v_pk_add_f32 v[{d}:{d+1}], v[{d}:{d+1}], v[{a}:{a+1}]")
            if j == 3:
                k.i(f"v_cvt_pk_bf16_f32 v{HP+2*c}, v{XF+4*c}, v{XF+4*c+1}\nv_cvt_pk_bf16_f32 v{HP+2*c+1}, v{XF+4*c+2}, v{XF+4*c+3}")
                k.vm(f"buffer_store_dwordx2 v[{HP+2*c}:{HP+2*c+1}], v8, s[16:19], s34 offen offset:{2048*(c%2)} {HO}")
                if c % 2 == 1: k.i("s_add_u32 s34, s34, 4096")
    for j in range(10):
        k.i(f"v_lshlrev_b32 v{XF+2*j}, 16, v{HP+j}\nv_and_b32 v{XF+2*j+1}, s33, v{HP+j}")
    k.i(f"v_pk_add_f32 v[16:17], v[{XF}:{XF+1}], v[{XF+2}:{XF+3}]")
    k.i(f"v_pk_mul_f32 v[18:19], v[{XF}:{XF+1}], v[{XF}:{XF+1}]")
    k.i(f"v_pk_fma_f32 v[18:19], v[{XF+2}:{XF+3}], v[{XF+2}:{XF+3}], v[18:19]")
    for j in range(2, 10):
        k.i(f"v_pk_add_f32 v[16:17], v[16:17], v[{XF+2*j}:{XF+2*j+1}]")
        k.i(f"v_pk_fma_f32 v[18:19], v[{XF+2*j}:{XF+2*j+1}], v[{XF+2*j}:{XF+2*j+1}], v[18:19]")
    k.i(f"""v_add_f32 v16, v16, v17
    v_add_f32 v17, v18, v19
    v_mov_b32 v18, v16
    v_mov_b32 v19, v17
    s_lshl_b32 s34, s29, 4
    s_lshl_b32 s21, s30, 2
    s_add_u32 s34, s34, s21
    s_add_u32 s34, s34, s20
    v_permlane32_swap_b32 v16, v18
    v_permlane32_swap_b32 v17, v19
    s_lshl_b32 s34, s34, 8
    s_add_u32 s34, s34, {ST}
    v_pk_add_f32 v[16:17], v[16:17], v[18:19]
    s_mov_b64 exec, 0xffffffff""")
    k.vm(f"buffer_store_dwordx2 v[16:17], v12, s[16:19], s34 offen {HO}", "out2")
    k.i("s_mov_b64 exec, -1")
    stamp(15, "p2")
    k.auto = None
    print("P2 end: W1 left", B1.left(), "W2 left", W2B.left(), file=sys.stderr)
    B1.go(99)
    if not OPT.get("nodrain"):
        W2B.go(O("w2_d2", 12))
        k.wait(vm="out2")
    stamp(12)
    k.i("s_barrier")
    sig_row(F2, 6, "s_and_b32 s42, s29, 3", "s_mov_b32 s43, s30")
    k.i(f"s_mul_i32 s23, s20, 6144\ns_mul_i32 s25, s27, 122880\ns_add_u32 s25, s25, s23\ns_add_u32 s25, s25, {W1 + 98304}")
    for i in range(6):
        if i % 4 == 0: k.i(f"s_add_u32 m0, s23, {98304 + 1024*i}")
        k.vm(f"buffer_load_dwordx4 v3, s[16:19], s25 offen offset:{1024*(i%4)} {HO} lds", "w1t")
        if i % 4 == 3: k.i("s_add_u32 s25, s25, 4096")
    k.i(f"v_lshlrev_b32 v6, 2, v0\nv_add_u32 v6, 122880, v6")
    k.lg(f"ds_write_b32 v6, v{TBV}")
    k.lg(f"ds_write_b32 v6, v{TBV+1} offset:1024")

def phase3():
    TB = 122880
    k.i(f"""s_mul_i32 s21, s28, 40960
    s_add_u32 s21, s21, {HH}
    v_and_b32 v8, 31, v1
    v_lshrrev_b32 v7, 5, v1
    v_lshlrev_b32 v8, 3, v8
    v_lshl_add_u32 v8, v7, 8, v8
    s_lshl_b32 s33, s28, 12
    s_add_u32 s33, s33, {ST}
    v_lshlrev_b32 v14, 4, v7
    v_add_u32 v14, {TB}, v14
    v_bfe_u32 v15, v1, 4, 1
    v_mul_u32_u24 v15, 49152, v15
    v_and_b32 v16, 15, v1
    v_lshl_add_u32 v15, v16, 4, v15
    v_lshl_add_u32 v15, v7, 9, v15
    s_mul_i32 s34, s28, 98304
    s_mul_i32 s25, s27, 3072
    s_add_u32 s34, s34, s25
    s_add_u32 s34, s34, {H1}""")
    W2B.go(O("w2_w2", 4))
    k.wait(vm="w1t", lg="all")
    k.i("s_barrier")
    poll_row(F2, 10, O('slp2', 0))
    stamp(13)
    ACC = 40; WB = 88; NS = 9; AH = 6; HR = 124; NR = O("pre3", 12); SR = 20; CT = 172; PK = 232
    H = BG()
    for i in range(40):
        r = HR + 4*(i % NR)
        H.add(f"buffer_load_dwordx4 v[{r}:{r+3}], v3, s[16:19], s21 offen offset:{1024*(i%4)} {HO}", f"h{i}", post=("s_add_u32 s21, s21, 4096" if i % 4 == 3 else ""))
    H.go(4)
    for j in range(8):
        k.vm(f"buffer_load_dwordx2 v[{SR+2*j}:{SR+2*j+1}], v8, s[16:19], s33 offen offset:{512*j} {HO}", "stats")
    H.go(NR - 5)
    TL = O("tl3", 4)
    items = [(ks, j) for ks in range(40-TL) for j in range(3)] + [(ks, j) for j in range(3) for ks in range(40-TL, 40)]
    def rd(n):
        ks, j = items[n]
        o = (ks*3 + j) * 1024
        r = WB + 4*(n % NS)
        k.lg(f"ds_read_b128 v[{r}:{r+3}], v{3 + o//65536} offset:{o % 65536}", f"w{n}")
    with capture() as c:
        for j in range(1, 8): k.i(f"v_pk_add_f32 v[{SR}:{SR+1}], v[{SR}:{SR+1}], v[{SR+2*j}:{SR+2*j+1}]")
        k.i(f"""v_mov_b32 v10, v{SR}
        v_mov_b32 v11, v{SR+1}
        v_permlane32_swap_b32 v{SR}, v10
        v_permlane32_swap_b32 v{SR+1}, v11
        v_pk_add_f32 v[8:9], v[{SR}:{SR+1}], v[10:11]
        v_mul_f32 v8, 0x3acccccd, v8
        v_mul_f32 v9, 0x3acccccd, v9
        v_fma_f32 v9, -v8, v8, v9
        v_max_f32 v9, 0, v9""")
        bf16r(8, 8); bf16r(9, 9)
        k.i("v_add_f32 v9, 0x3727c5ac, v9")
        bf16r(9, 9)
        k.i("v_sqrt_f32 v9, v9")
        bf16r(9, 9)
        k.i("v_rcp_f32 v10, v9\nv_mul_f32 v12, v8, v10\nv_sub_f32 v12, 0, v12")
    statl = c.lines
    def tab_reads(nt):
        for j in range(4):
            n = 4*nt + j
            k.lg(f"ds_read_b128 v[{CT+4*n}:{CT+4*n+3}], v14 offset:{1024+128*nt+32*j}")
            k.lg(f"ds_read_b128 v[{SR+4*j}:{SR+4*j+3}], v14 offset:{128*nt+32*j}", f"t{nt}")
    def tab_lines(nt):
        with capture() as c:
            for j in range(4):
                b = CT + 4*(4*nt + j)
                for h in range(2):
                    k.i(f"v_pk_fma_f32 v[{b+2*h}:{b+2*h+1}], v[{SR+4*j+2*h}:{SR+4*j+2*h+1}], v[12:13], v[{b+2*h}:{b+2*h+1}] op_sel_hi:[1,0,1]")
        return c.lines
    def epi_lines(nt, j):
        n = 4*nt + j
        a = ACC + 4*n; b = CT + 4*n
        with capture() as c:
            for h in range(2):
                k.i(f"v_pk_fma_f32 v[{a+2*h}:{a+2*h+1}], v[{a+2*h}:{a+2*h+1}], v[10:11], v[{b+2*h}:{b+2*h+1}] op_sel_hi:[1,0,1]")
            for h in range(4): k.i(f"v_max_f32 v{a+h}, 0, v{a+h}")
            for h in range(2):
                k.i(f"v_pk_mul_f32 v[{a+2*h}:{a+2*h+1}], v[{a+2*h}:{a+2*h+1}], v[{a+2*h}:{a+2*h+1}]")
            for h in range(2):
                k.i(f"v_cvt_pk_bf16_f32 v{PK+2*n+h}, v{a+2*h}, v{a+2*h+1}")
        return c.lines
    def st_h1(nt, e):
        k.vm(f"buffer_store_dwordx4 v[{PK+8*nt+4*e}:{PK+8*nt+4*e+3}], v15, s[16:19], s34 offen offset:{1024*nt+256*e} {HO}", "out3")
    for n in range(AH): rd(n)
    fill = []
    k.auto = lambda: W2B.go(); k.th = O("th3", 100)
    for n, (ks, j) in enumerate(items):
        k.wait(vm=f"h{ks}", lg=f"w{n}")
        if n == 12: cst(7)
        if n == 108: cst(9)
        d = vr(ACC + 16*j, 16)
        k.i(f"v_mfma_f32_32x32x16_bf16 {d}, {vr(WB + 4*(n % NS), 4)}, {vr(HR + 4*(ks % NR), 4)}, {'0' if ks == 0 else d}")
        if n % 3 == 0: H.go()
        if O('w2_p3', 0) and n % O('w2_p3', 0) == 4: W2B.go()
        if n + AH < 120: rd(n + AH)
        if n == 18: fill += statl
        for nt in range(3):
            if n == 40 + 12*nt: tab_reads(nt)
            if n == 46 + 12*nt:
                k.wait(lg=f"t{nt}"); fill += tab_lines(nt)
        if n == 121 - 2*TL: fill += epi_lines(0, 0) + epi_lines(0, 1) + epi_lines(0, 2) + epi_lines(0, 3)
        if n == 121 - TL: fill += epi_lines(1, 0) + epi_lines(1, 1)
        for _ in range(3 if n < 120 - 2*TL else 6):
            if fill: k.i(fill.pop(0))
    stamp(14)
    for l in fill: k.i(l)
    st_h1(0, 0); st_h1(0, 1); st_h1(1, 0)
    for nt, j in ((1, 2), (1, 3), (2, 0), (2, 1), (2, 2), (2, 3)):
        for l in epi_lines(nt, j): k.i(l)
        if j % 2 == 1: st_h1(nt, j // 2)
    k.auto = None
    print("P3 end: W2 left", W2B.left(), file=sys.stderr)
    if not OPT.get("nodrain"):
        W2B.go(O("w2_d3", 12))
        k.wait(vm="out3")
    stamp(15)
    k.i("s_barrier")
    sig_row(F3, 6, "s_lshr_b32 s42, s27, 2", "s_and_b32 s43, s27, 3")

def phase4():
    HR = 20; BR = 30; ACC = 40; RING = 120; NB = O("nb4", 6)
    srd(8, PB2, 1280)
    k.i(f"""v_and_b32 v4, 15, v1
    v_lshrrev_b32 v5, 4, v1
    s_lshl_b32 s33, s12, 1
    s_lshr_b32 s25, s20, 1
    s_add_u32 s33, s33, s25
    s_mul_i32 s33, s33, 40
    s_mul_i32 s25, s13, 5
    s_add_u32 s33, s33, s25
    s_lshl_b32 s33, s33, 10
    s_add_u32 s33, s33, {HH}
    s_and_b32 s25, s20, 1
    s_lshl_b32 s25, s25, 8
    s_add_u32 s33, s33, s25
    v_lshrrev_b32 v8, 1, v5
    v_lshlrev_b32 v8, 9, v8
    v_lshl_add_u32 v8, v4, 4, v8
    v_and_b32 v9, 1, v5
    v_lshl_add_u32 v8, v9, 3, v8
    v_add_u32 v9, 4096, v8
    v_lshlrev_b32 v17, 3, v5
    s_mul_i32 s34, s13, 160""")
    for c in range(5):
        k.vm(f"buffer_load_dwordx2 v[{HR+2*c}:{HR+2*c+1}], v{8 if c < 4 else 9}, s[16:19], s33 offen offset:{1024*(c%4)} {HO}")
    for c in range(5):
        k.vm(f"buffer_load_dwordx2 v[{BR+2*c}:{BR+2*c+1}], v17, s[8:11], s34 offen offset:{32*c}", "res")
    W2B.go(99)
    k.i(f"""s_mul_i32 s21, s12, 196608
    s_mul_i32 s22, s20, 12288
    s_add_u32 s21, s21, s22
    s_add_u32 s21, s21, {H1}
    s_lshl_b32 s25, s12, 6
    s_lshl_b32 s33, s20, 4
    s_add_u32 s25, s25, s33
    v_add_u32 v6, s25, v4
    v_mul_u32_u24 v7, 1280, v6
    v_lshl_add_u32 v7, v5, 3, v7
    s_mul_i32 s33, s20, 15360
    v_add_u32 v13, s33, v3""")
    for j in range(4):
        k.i(f"s_add_u32 s33, s20, {j}\ns_and_b32 s33, s33, 3\ns_mul_i32 s33, s33, 49152\nv_add_u32 v{8+j}, s33, v3")
    for j in range(1, 4):
        k.i(f"s_sub_u32 s33, s20, {j}\ns_and_b32 s33, s33, 3\ns_mul_i32 s33, s33, 15360\ns_add_u32 s33, s33, {(j-1)*5120}\nv_add_u32 v{13+j}, s33, v3")
    srd(8, POUT, 2621440)
    poll_row(F3, 18, O('slp3', 0))
    stamp(16)
    Q = BG()
    for i in range(48):
        t, j = divmod(i, 4)
        r = RING + 16*(t % NB) + 4*j
        Q.add(f"buffer_load_dwordx4 v[{r}:{r+3}], v{8+j}, s[16:19], s21 offen offset:{1024*(t%4)} {HO}", f"s{t}_{j}", post=("s_add_u32 s21, s21, 4096" if i % 16 == 15 else ""))
    Q.go(4*(NB-1))
    XF = 216
    k.wait(vm="res")
    k.i("s_mov_b32 s33, 0xffff0000")
    for j in range(10):
        k.i(f"v_lshlrev_b32 v{XF+2*j}, 16, v{HR+j}\nv_and_b32 v{XF+2*j+1}, s33, v{HR+j}")
        k.i(f"v_lshlrev_b32 v{XF+20}, 16, v{BR+j}\nv_and_b32 v{XF+21}, s33, v{BR+j}")
        k.i(f"v_pk_add_f32 v[{XF+2*j}:{XF+2*j+1}], v[{XF+2*j}:{XF+2*j+1}], v[{XF+20}:{XF+21}]")
    def red_w(j):
        for c in range(5):
            r = ACC + 20*j + 4*c
            k.lg(f"ds_write_b128 v13, v[{r}:{r+3}] offset:{(j-1)*5120 + 1024*c}")
    order = [(t, j) for t in range(10) for j in range(4)] + [(t, j) for j in (1, 2, 3, 0) for t in (10, 11)]
    for n, (t, j) in enumerate(order):
        k.wait(vm=f"s{t}_{j}")
        if n == 4: cst(11)
        if n == 40: cst(13)
        for c in range(5):
            d = vr(ACC + (5*j+c)*4, 4)
            k.i(f"v_mfma_f32_16x16x32_bf16 {d}, {ar(W2R[5*t+c], 4)}, {vr(RING+16*(t%NB)+4*j, 4)}, {'0' if t == 0 else d}")
            if c == 1: Q.go()
        if n in (42, 44, 46): red_w((n - 40)//2)
    stamp(17)
    k.wait(lg="all"); k.i("s_barrier")
    RR = 120
    for j in range(1, 4):
        for c in range(5):
            r = RR + 20*(j-1) + 4*c
            k.lg(f"ds_read_b128 v[{r}:{r+3}], v{13+j} offset:{1024*c}", f"r{j}_{c}")
    for c in range(5):
        for h in range(2):
            d = XF + 4*c + 2*h; a = ACC + 4*c + 2*h
            k.i(f"v_pk_add_f32 v[{d}:{d+1}], v[{d}:{d+1}], v[{a}:{a+1}]")
    for j in range(1, 4):
        for c in range(5):
            k.wait(lg=f"r{j}_{c}")
            for h in range(2):
                d = XF + 4*c + 2*h; a = RR + 20*(j-1) + 4*c + 2*h
                k.i(f"v_pk_add_f32 v[{d}:{d+1}], v[{d}:{d+1}], v[{a}:{a+1}]")
            if j == 3:
                k.i(f"v_cvt_pk_bf16_f32 v{HR+2*c}, v{XF+4*c}, v{XF+4*c+1}\nv_cvt_pk_bf16_f32 v{HR+2*c+1}, v{XF+4*c+2}, v{XF+4*c+3}")
                k.vm(f"buffer_store_dwordx2 v[{HR+2*c}:{HR+2*c+1}], v7, s[8:11], s34 offen offset:{32*c} {OPT.get('opol', '')}")
    k.i(f"""s_or_b32 s33, s45, s20
    s_cmp_lg_u32 s33, 0
    s_cbranch_scc1 p4_noep
    v_mov_b32 v4, s44
    v_mov_b32 v5, {CB}
    s_mov_b64 exec, 1
    buffer_store_dword v4, v5, s[16:19], 0 offen sc1
    s_mov_b64 exec, -1""")
    k.label("p4_noep")

def stamp_out():
    if not OPT["stamps"]: return
    if OPT.get("enc") is not None:
        e = O("enc", 0)
        k.i(f"""s_waitcnt vmcnt(0) lgkmcnt(0)
        s_memrealtime s[100:101]
        s_waitcnt lgkmcnt(0)
        s_sub_u32 s4, s{64+2*e}, s64
        s_lshl_b32 s4, s4, 2
        s_add_u32 s4, s4, 4000
        encl:
        s_memrealtime s[6:7]
        s_waitcnt lgkmcnt(0)
        s_sub_u32 s6, s6, s64
        s_cmp_lt_u32 s6, s4
        s_cbranch_scc1 encl""")
        return
    n = NSTAMP
    k.i("s_waitcnt vmcnt(0) lgkmcnt(0)")
    k.i(f"s_memrealtime s[{64+2*n}:{65+2*n}]")
    k.i("s_waitcnt lgkmcnt(0)")
    k.i(f"s_lshl_b32 s3, s45, 2\ns_add_u32 s3, s3, s20\ns_lshl_b32 s3, s3, 7\ns_add_u32 s3, s3, 0x2000000\nv_mov_b32 v1, s3")
    for j in range(n+1): k.i(f"v_mov_b32 v{2+j}, s{64+2*j}")
    k.i("s_mov_b64 exec, 1")
    for j in range(n+1): k.i(f"global_store_dword v1, v{2+j}, s[14:15] offset:{4*j}")

def emit(path):
    global k
    k = Kern(KN)
    phase0(); phase1(); phase2(); phase3(); phase4(); stamp_out()
    k.label("kend"); k.i("s_endpgm")
    body, added = hazard_pass(k.L, verbose=bool(OPT.get("vnop")))
    print("instrs", len(body), "nop states added", added, file=sys.stderr)
    out = ["; pre-LN linear-attention block + squared-ReLU MLP, one persistent launch (256 workgroups, flag hand-offs in d_ws)",
           "; @launch grid=(256,1,1) block=(256,1,1) lds=163840",
           '.amdgcn_target "amdgcn-amd-amdhsa--gfx950"', ".text", f".globl {KN}", ".p2align 8", f".type {KN},@function", f"{KN}:"]
    out += [("" if (l.endswith(":") or l.startswith(";")) else "    ") + l for l in body]
    out += ['.section .rodata,"a"', ".p2align 6", f".amdhsa_kernel {KN}", "  .amdhsa_next_free_vgpr 512", "  .amdhsa_next_free_sgpr 102",
            "  .amdhsa_accum_offset 256", "  .amdhsa_group_segment_fixed_size 0", "  .amdhsa_kernarg_size 88",
            "  .amdhsa_user_sgpr_count 2", "  .amdhsa_user_sgpr_kernarg_segment_ptr 1",
            "  .amdhsa_system_sgpr_workgroup_id_x 1", ".end_amdhsa_kernel"]
    open(path, "w").write("\n".join(out) + "\n")

if __name__ == "__main__":
    for a in sys.argv[2:]:
        kk, v = a.split("=")
        OPT[kk] = {"True": True, "False": False, "none": ""}.get(v, v.replace("_", " "))
    emit(sys.argv[1])
```

```python
import sys
from asmlib import *

NAME = "sequential_preLN__linear_attn_block__dense_activation_squared_relu__prompt"
KN = NAME + "_kernel"
CB = 0x0
F0B = CB + 0x1000; F2 = 0xC0000; F3 = 0xD0000; F0 = 0x90000; F1 = 0x98000
CS = 0x10000; KVA = 0x20000; ST = 0x40000
XN = 0x100000; WQ = 0x380000; WO = 0x600000; W1 = 0x700000; W2 = 0x900000
PQ = 0xB00000; HH = 0xE00000; H1 = 0x1200000; XC = 0x1800000
WSZ = 0x1B00000
LOG2E = 0x3fb8aa3b
OPT = dict(tl1=6, tl3=6, pqe=0, stamps=False, cold="nt", pre1=2, wo_pre=40, wo_w=0, w1_w=12, sleep=8, slp0=20, lnexact=True)
HO = "sc1"
UL = 131072
def O(n, d): return int(OPT.get(n, d))

def magic(C, maxq):
    for sh in range(4, 24):
        m = -(-(1 << sh) // C)
        if m * maxq < (1 << 32) and m < (1 << 24) and all((q * m) >> sh == q // C for q in range(maxq)): return m, sh
    raise ValueError

k = None
def srd(d, base, size):
    k.i(f"s_mov_b32 s{d}, s{base}\ns_mov_b32 s{d+1}, s{base+1}\ns_mov_b32 s{d+2}, {size}\ns_mov_b32 s{d+3}, 0x20000")
def bf16r(d, s):
    k.i(f"v_cvt_pk_bf16_f32 v{d}, v{s}, v{s}\nv_lshlrev_b32 v{d}, 16, v{d}")
NSTAMP = 18
def stamp(idx, grp=None):
    if not OPT["stamps"]: return
    f = OPT.get("focus")
    lo = {"p0": (5, 18), "p1": (8, 18), "p1e": (8, 18), "p2": (13, 18), "clk": (1, 18)}.get(f)
    if grp is None and lo and lo[0] <= idx < lo[1]: return
    if grp is not None and grp != f: return
    k.i(f"s_memrealtime s[{64+2*idx}:{65+2*idx}]")
def cst(slot):
    if OPT["stamps"] and OPT.get("focus") == "clk":
        k.i(f"s_memrealtime s[{64+2*slot}:{65+2*slot}]\ns_memtime s[{66+2*slot}:{67+2*slot}]")
def snap(): return (k.vm_n, dict(k.vm_tags), k.vm_done, k.lg_n, dict(k.lg_tags), k.lg_done)
def rest(s): k.vm_n, k.vm_tags, k.vm_done, k.lg_n, k.lg_tags, k.lg_done = s[0], dict(s[1]), s[2], s[3], dict(s[4]), s[5]

class capture:
    def __enter__(self):
        self.save = (k.L, k.auto, k._iss, k._mf); k.L = []; k.auto = None; return self
    def __exit__(self, *a):
        self.lines = k.L; k.L, k.auto, k._iss, k._mf = self.save
def merge(main, fill, per):
    fill = list(fill)
    for m in main:
        m()
        for _ in range(per):
            if fill: k.i(fill.pop(0))
    return fill

PX, PWQ, PWO, PW1, PB1, PW2, PB2, POUT = 48, 50, 52, 56, 58, 60, 62, 46

npoll = 0
def check4(vt):
    k.i(f"v_xor_b32 v{vt}, s44, v{vt}\nv_xor_b32 v{vt+1}, s44, v{vt+1}\nv_xor_b32 v{vt+2}, s44, v{vt+2}\nv_xor_b32 v{vt+3}, s44, v{vt+3}")
    k.i(f"v_or3_b32 v{vt}, v{vt}, v{vt+1}, v{vt+2}\nv_or_b32 v{vt}, v{vt}, v{vt+3}\nv_cmp_ne_u32 vcc, 0, v{vt}")
def poll(vaddr, soff, vt, wide=False, w0=True, slp=0):
    global npoll
    npoll += 1
    L = f"poll{npoll}"
    au = k.auto; k.auto = None
    if w0: k.i(f"s_cmp_lg_u32 s20, 0\ns_cbranch_scc1 {L}d")
    if slp: k.i(f"s_sleep {slp}")
    k.i("s_mov_b32 s43, 0x20000")
    k.label(L)
    if OPT.get("apoll"):
        if wide:
            k.i(f"v_mov_b32 v{vt}, 0\nv_mov_b32 v{vt+1}, 0\nv_mov_b32 v{vt+2}, 0\nv_mov_b32 v{vt+3}, 0")
            k.i(f"buffer_atomic_or_x2 v[{vt}:{vt+1}], v{vaddr}, s[16:19], s{soff} offen sc0\nbuffer_atomic_or_x2 v[{vt+2}:{vt+3}], v{vaddr}, s[16:19], s{soff} offen offset:8 sc0\ns_waitcnt vmcnt(0)")
            check4(vt)
        else:
            k.i(f"v_mov_b32 v{vt}, 0\nbuffer_atomic_or v{vt}, v{vaddr}, s[16:19], s{soff} offen sc0\ns_waitcnt vmcnt(0)\nv_cmp_ne_u32 vcc, s44, v{vt}")
    else:
        if wide:
            k.i(f"buffer_load_dwordx4 v[{vt}:{vt+3}], v{vaddr}, s[16:19], s{soff} offen {OPT.get('ppol', 'sc1')}\ns_waitcnt vmcnt(0)")
            check4(vt)
        else:
            k.i(f"buffer_load_dword v{vt}, v{vaddr}, s[16:19], s{soff} offen {OPT.get('ppol', 'sc1')}\ns_waitcnt vmcnt(0)\nv_cmp_ne_u32 vcc, s44, v{vt}")
    k.i(f"s_cbranch_vccz {L}d")
    if O("sleep", 4): k.i(f"s_sleep {O('sleep', 4)}")
    k.i(f"s_sub_u32 s43, s43, 1\ns_cbranch_scc0 {L}")
    k.label(L + "d")
    k.auto = au
nsig = 0
def signal(mask, code, vt, dual=False):
    global nsig
    nsig += 1
    L = f"sig{nsig}"
    au = k.auto; k.auto = None
    k.i(f"s_cmp_lg_u32 s20, 1\ns_cbranch_scc1 {L}")
    k.i(code)
    if dual: k.i(f"v_mov_b32 v{vt}, s44\ns_mov_b64 exec, {mask}\nbuffer_store_dword v{vt}, v{vt+1}, s[16:19], s42 offen offset:2048")
    k.i(f"v_mov_b32 v{vt}, s44\ns_mov_b64 exec, {mask}\nbuffer_store_dword v{vt}, v{vt+1}, s[16:19], s42 offen {OPT.get('spol', 'sc1')}\ns_mov_b64 exec, -1")
    k.label(L)
    k.auto = au
def sig_all(base, vt):
    signal(0xff, f"v_lshlrev_b32 v{vt+1}, 12, v1\ns_lshr_b32 s42, s45, 3\ns_lshl_b32 s42, s42, 7\ns_and_b32 s43, s45, 7\ns_lshl_b32 s43, s43, 2\ns_add_u32 s42, s42, s43\ns_add_u32 s42, s42, {base}", vt)
def sig_row(base, vt, line, pos):
    signal(1, f"v_mov_b32 v{vt+1}, 0\n{line}\n{pos}\ns_lshl_b32 s42, s42, 7\ns_lshl_b32 s43, s43, 2\ns_add_u32 s42, s42, s43\ns_lshl_b32 s43, s26, 12\ns_add_u32 s42, s42, s43\ns_add_u32 s42, s42, {base}", vt, dual=bool(OPT.get("dual")))
ntree = 0
def poll_all(base, vt, slp):
    global ntree
    k.i(f"s_and_b32 s42, s2, 7\ns_lshl_b32 s42, s42, 12\ns_add_u32 s42, s42, {base}")
    k.i(f"v_lshrrev_b32 v{vt+4}, 1, v1\nv_lshlrev_b32 v{vt+4}, 7, v{vt+4}\nv_and_b32 v{vt}, 1, v1\nv_lshl_add_u32 v{vt+4}, v{vt}, 4, v{vt+4}")
    if not (OPT.get("tree") and (base == F0 or OPT.get("tree1"))):
        poll(vt+4, 42, vt, wide=True, slp=slp); return
    ntree += 1; L = f"tree{ntree}"
    NL = O("tree", 1)
    k.i(f"s_cmp_lg_u32 s20, 0\ns_cbranch_scc1 {L}d\ns_and_b32 s41, s2, {8*NL-1}\ns_lshl_b32 s41, s41, 7\ns_add_u32 s41, s41, {base + 0x10000}\ns_cmp_ge_u32 s2, {8*NL}\ns_cbranch_scc1 {L}m")
    poll(vt+4, 42, vt, wide=True, w0=False, slp=slp)
    k.i(f"v_mov_b32 v{vt}, s44\nv_mov_b32 v{vt+1}, 0\ns_mov_b64 exec, 1\nbuffer_store_dword v{vt}, v{vt+1}, s[16:19], s41 offen sc1\ns_mov_b64 exec, -1\ns_branch {L}d")
    k.label(L + "m")
    k.i(f"v_mov_b32 v{vt+1}, 0")
    sl = OPT.get("sleep"); OPT["sleep"] = 1
    poll(vt+1, 41, vt, w0=False)
    if sl is None: del OPT["sleep"]
    else: OPT["sleep"] = sl
    k.label(L + "d")
    k.i(f"s_mov_b32 s41, {LOG2E:#x}")
def poll_row(base, vt, slp):
    global npoll
    k.i(f"v_and_b32 v{vt+1}, 3, v1\nv_lshlrev_b32 v{vt+1}, 2, v{vt+1}\ns_lshl_b32 s42, s26, 5\ns_add_u32 s42, s42, s20\ns_lshl_b32 s42, s42, 7\ns_add_u32 s42, s42, {base}")
    if not OPT.get("dual"):
        poll(vt+1, 42, vt, w0=False, slp=slp)
    else:
        npoll += 1; L = f"poll{npoll}"
        au = k.auto; k.auto = None
        if slp: k.i(f"s_sleep {slp}")
        k.i(f"v_bfe_u32 v{vt}, v1, 2, 1\nv_lshl_add_u32 v{vt+1}, v{vt}, 11, v{vt+1}\ns_mov_b32 s43, 0x20000")
        k.label(L)
        k.i(f"""buffer_load_dword v{vt}, v{vt+1}, s[16:19], s42 offen sc1
        s_waitcnt vmcnt(0)
        v_cmp_eq_u32 vcc, s44, v{vt}
        s_lshr_b32 s41, vcc_lo, 4
        s_or_b32 s41, s41, vcc_lo
        s_and_b32 s41, s41, 15
        s_cmp_eq_u32 s41, 15
        s_cbranch_scc1 {L}d
        s_sleep {O('sleepd', 2)}
        s_sub_u32 s43, s43, 1
        s_cbranch_scc0 {L}""")
        k.label(L + "d")
        k.auto = au
    k.vm_done = k.vm_n

class BG:
    def __init__(self): self.q = []
    def add(self, ins, tag=None, pre="", post=""): self.q.append((pre, ins, post, tag))
    def go(self, n=1):
        for _ in range(n):
            if self.q:
                pre, ins, post, tag = self.q.pop(0)
                if OPT.get("nobg") and tag is not None and tag[:2] in ("wo", "w1", "w2"):
                    k.vm_tags[tag] = -1; continue
                k.i(pre); k.vm(ins, tag); k.i(post)
    def left(self): return len(self.q)

def phi4(a, dst, T):
    k.i(f"v_pk_mul_f32 v[{T}:{T+1}], v[{a}:{a+1}], s[40:41]")
    k.i(f"v_pk_mul_f32 v[{T+2}:{T+3}], v[{a+2}:{a+3}], s[40:41]")
    for j in range(4): k.i(f"v_exp_f32_e64 v{T+j}, v{T+j} clamp")
    for j in range(4): k.i(f"v_max_f32 v{T+4+j}, 0, v{a+j}")
    k.i(f"v_pk_add_f32 v[{T}:{T+1}], v[{T}:{T+1}], s[38:39]")
    k.i(f"v_pk_add_f32 v[{T+2}:{T+3}], v[{T+2}:{T+3}], s[38:39]")
    k.i(f"v_pk_add_f32 v[{T}:{T+1}], v[{T}:{T+1}], v[{T+4}:{T+5}]")
    k.i(f"v_pk_add_f32 v[{T+2}:{T+3}], v[{T+2}:{T+3}], v[{T+6}:{T+7}]")
    k.i(f"v_cvt_pk_bf16_f32 v{dst}, v{T}, v{T+1}")
    k.i(f"v_cvt_pk_bf16_f32 v{dst+1}, v{T+2}, v{T+3}")

ROWOFF = [[0, 4, 20, 24, 8], [12, 16, 28, 32, 36]]

def phase0():
    cold = OPT["cold"]
    stamp(0)
    k.i(f"""s_load_dwordx16 s[48:63], s[0:1], 0
    s_load_dwordx2 s[14:15], s[0:1], 80
    s_load_dwordx2 s[46:47], s[0:1], 64
    s_getpc_b64 s[4:5]
    pcl:
    s_cmp_ge_u32 s2, 256
    s_cbranch_scc1 kend
    s_lshr_b32 s25, s2, 3
    s_and_b32 s6, s25, 7
    s_lshl_b32 s6, s6, 13
    v_lshl_add_u32 v30, v0, 7, s6
    v_min_u32 v30, kend-pcl, v30
    v_cmp_gt_u32 vcc, 64, v0
    v_and_b32 v1, 63, v0
    v_lshrrev_b32 v2, 6, v0
    s_and_saveexec_b64 s[6:7], vcc
    s_cbranch_execz p0_nopf
    {'s_nop 0' if OPT.get('nopf') else 'global_load_dword v31, v30, s[4:5]'}
    p0_nopf:
    s_mov_b64 exec, s[6:7]
    v_lshlrev_b32 v3, 4, v1
    v_readfirstlane_b32 s20, v2
    s_and_b32 s24, s2, 7
    s_lshr_b32 s26, s24, 1
    s_lshl_b32 s26, s26, 2
    s_lshr_b32 s27, s25, 3
    s_add_u32 s26, s26, s27
    s_and_b32 s27, s24, 1
    s_lshl_b32 s27, s27, 3
    s_and_b32 s25, s25, 7
    s_add_u32 s27, s27, s25
    s_lshl_b32 s45, s26, 4
    s_add_u32 s45, s45, s27
    v_bfe_u32 v28, v1, 2, 2
    v_and_b32 v29, 3, v1
    v_mov_b32 v228, 0
    s_cmp_ge_u32 s45, 128
    s_cbranch_scc1 p0_w""")
    X = 208; F = 32
    k.i(f"""v_lshrrev_b32 v4, 4, v0
    v_and_b32 v5, 15, v0
    s_lshl_b32 s21, s45, 4
    v_add_u32 v6, s21, v4
    v_mul_u32_u24 v6, 1280, v6
    v_lshl_add_u32 v6, v5, 4, v6
    s_mov_b32 s10, 2621440
    s_mov_b32 s11, 0x20000
    s_waitcnt lgkmcnt(0)
    s_mov_b32 s8, s{PX}
    s_mov_b32 s9, s{PX+1}""")
    stamp(9, "p0")
    for i in range(5):
        k.i(f"buffer_load_dwordx4 v[{X+4*i}:{X+4*i+3}], v6, s[8:11], 0 offen offset:{256*i} {OPT.get('coldx', cold)}")
    stamp(5, "p0")
    k.i(f"s_load_dword s44, s[14:15], {CB}")
    srd(16, 14, WSZ)
    k.i(f"""s_lshr_b32 s21, s45, 1
    s_mul_i32 s21, s21, 40960
    s_and_b32 s22, s45, 1
    s_lshl_b32 s22, s22, 8
    s_add_u32 s21, s21, s22
    s_add_u32 s21, s21, {XN}
    v_lshrrev_b32 v7, 1, v5
    v_lshlrev_b32 v7, 10, v7
    v_and_b32 v6, 1, v5
    v_lshlrev_b32 v6, 9, v6
    v_lshl_add_u32 v7, v4, 4, v7
    v_add_u32 v7, v7, v6
    s_mov_b32 s23, 0xffff0000
    s_mov_b32 s22, 0x3f803f80
    v_mov_b32 v112, 0
    v_mov_b32 v113, 0
    v_mov_b32 v114, 0
    v_mov_b32 v115, 0
    v_lshrrev_b32 v30, 4, v1""")
    for i in range(5):
        k.i(f"s_waitcnt vmcnt({4-i})")
        if i == 0: stamp(7, "p0")
        for j in range(4*i, 4*i+4):
            k.i(f"v_dot2_f32_bf16 v{112+2*(j&1)}, v{X+j}, s22, v{112+2*(j&1)}")
            k.i(f"v_dot2_f32_bf16 v{113+2*(j&1)}, v{X+j}, v{X+j}, v{113+2*(j&1)}")
    unp = []
    for j in range(20): unp += [f"v_lshlrev_b32 v{F+2*j}, 16, v{X+j}", f"v_and_b32 v{F+2*j+1}, s23, v{X+j}"]
    def U(n):
        for _ in range(n):
            if unp: k.i(unp.pop(0))
    U(3)
    k.i("v_pk_add_f32 v[112:113], v[112:113], v[114:115]")
    for s in (8, 4, 2, 1):
        U(2)
        k.i(f"v_add_f32_dpp v112, v112, v112 row_ror:{s} row_mask:0xf bank_mask:0xf")
        k.i(f"v_add_f32_dpp v113, v113, v113 row_ror:{s} row_mask:0xf bank_mask:0xf")
    k.i("v_mul_f32 v112, 0x3acccccd, v112\nv_mul_f32 v113, 0x3acccccd, v113\nv_fma_f32 v113, -v112, v112, v113\nv_max_f32 v113, 0, v113")
    bf16r(112, 112); bf16r(113, 113)
    k.i("v_add_f32 v113, 0x3727c5ac, v113")
    bf16r(113, 113)
    k.i("v_sqrt_f32 v113, v113"); U(1)
    bf16r(113, 113)
    k.i("v_rcp_f32 v114, v113")
    U(99)
    Y = 72
    for j in range(20): k.i(f"v_pk_add_f32 v[{F+2*j}:{F+2*j+1}], v[{F+2*j}:{F+2*j+1}], v[112:113] op_sel_hi:[1,0] neg_lo:[0,1] neg_hi:[0,1]")
    for j in range(20): k.i(f"v_cvt_pk_bf16_f32 v{Y+j}, v{F+2*j}, v{F+2*j+1}")
    for j in range(20): k.i(f"v_lshlrev_b32 v{F+2*j}, 16, v{Y+j}\nv_and_b32 v{F+2*j+1}, s23, v{Y+j}")
    for i in range(5):
        for j in range(4*i, 4*i+4):
            k.i(f"v_pk_mul_f32 v[{F+2*j}:{F+2*j+1}], v[{F+2*j}:{F+2*j+1}], v[114:115] op_sel_hi:[1,0]")
        for j in range(4*i, 4*i+4):
            k.i(f"v_cvt_pk_bf16_f32 v{Y+j}, v{F+2*j}, v{F+2*j+1}")
        k.i(f"buffer_store_dwordx4 v[{Y+4*i}:{Y+4*i+3}], v7, s[16:19], s21 offen {HO}")
        if i < 4: k.i("s_add_u32 s21, s21, 8192")
    k.i(f"v_mov_b32 v228, v7\ns_add_u32 s55, s21, {XC - XN - 4*8192}")
    k.i("s_branch p0_drain")
    k.label("p0_w")
    m, sh = magic(80, 320)
    k.i(f"""s_cmp_ge_u32 s45, 248
    s_cbranch_scc1 p0_zero
    s_sub_u32 s21, s45, 128
    s_mul_i32 s30, s21, 171
    s_lshr_b32 s30, s30, 9
    s_mul_i32 s31, s30, 3
    s_sub_u32 s31, s21, s31
    s_mul_i32 s21, s30, 61440
    s_mul_i32 s22, s31, 1280
    s_add_u32 s21, s21, s22
    s_lshl_b32 s22, s20, 2
    s_mul_i32 s23, s20, 5120
    s_mov_b32 s10, 2457600
    s_mov_b32 s11, 0x20000""")
    for i in range(5):
        k.i(f"""v_add_u32 v4, {64*i}, v1
        v_mul_u32_u24 v5, {m}, v4
        v_lshrrev_b32 v5, {sh}, v5
        v_mul_u32_u24 v6, 80, v5
        v_sub_u32 v6, v4, v6
        v_lshlrev_b32 v6, 4, v6
        v_lshlrev_b32 v7, 6, v5
        v_add_u32 v5, s22, v5
        v_mul_u32_u24 v5, 3840, v5
        v_xad_u32 v{12+i}, v6, v7, v5""")
    k.i(f"s_waitcnt lgkmcnt(0)\ns_mov_b32 s8, s{PWQ}\ns_mov_b32 s9, s{PWQ+1}")
    stamp(9, "p0")
    for i in range(5):
        k.i(f"s_add_u32 m0, s23, {1024*i}\nbuffer_load_dwordx4 v{12+i}, s[8:11], s21 offen {cold} lds")
    stamp(5, "p0")
    k.i(f"s_load_dword s44, s[14:15], {CB}")
    srd(16, 14, WSZ)
    k.i(f"""v_lshrrev_b32 v30, 4, v1
    v_lshrrev_b32 v4, 1, v30
    v_lshl_add_u32 v4, v4, 3, v28
    v_mul_u32_u24 v4, 1280, v4
    v_and_b32 v5, 1, v30
    v_lshlrev_b32 v5, 5, v5
    v_lshl_add_u32 v5, v29, 3, v5
    v_lshlrev_b32 v6, 6, v28
    s_lshl_b32 s21, s30, 12
    s_add_u32 s21, s21, {WQ}
    s_cmp_lg_u32 s31, 0
    s_cbranch_scc1 p0_wkv
    s_lshl_b32 s22, s20, 6
    v_add_u32 v5, s22, v5
    v_xad_u32 v7, v5, v6, v4
    s_lshl_b32 s22, s20, 10
    s_add_u32 s21, s21, s22
    s_add_u32 s21, s21, {11*163840}
    s_waitcnt vmcnt(0)""")
    stamp(7, "p0")
    k.i("s_barrier")
    for m_ in range(5):
        r = 32 + 4*m_
        k.lg(f"ds_read_b64_tr_b16 v[{r}:{r+1}], v7 offset:{256*m_}")
        k.lg(f"ds_read_b64_tr_b16 v[{r+2}:{r+3}], v7 offset:{256*m_+4*1280}", f"q{m_}")
    for m_ in range(5):
        r = 32 + 4*m_
        k.wait(lg=f"q{m_}")
        k.i(f"buffer_store_dwordx4 v[{r}:{r+3}], v3, s[16:19], s21 offen {HO}\ns_add_u32 s21, s21, 163840")
    k.i("s_branch p0_drain")
    k.label("p0_wkv")
    k.i("""s_and_b32 s22, s20, 1
    s_lshr_b32 s23, s20, 1
    s_lshl_b32 s24, s22, 6
    s_mul_i32 s25, s23, 120
    s_add_u32 s24, s24, s25
    v_add_u32 v5, s24, v5
    s_lshl_b32 s24, s31, 1
    s_add_u32 s24, s24, s22
    s_sub_u32 s24, s24, 2
    s_lshl_b32 s24, s24, 10
    s_add_u32 s21, s21, s24
    s_mul_i32 s24, s23, 163840
    s_add_u32 s21, s21, s24""")
    for i in range(6):
        k.i(f"v_add_u32 v{12+i}, {240*i}, v5\nv_min_u32 v{12+i}, 1272, v{12+i}\nv_xad_u32 v{12+i}, v{12+i}, v6, v4")
    k.i("s_waitcnt vmcnt(0)")
    stamp(7, "p0")
    k.i("s_barrier")
    for i in range(6):
        r = 32 + 4*i
        k.lg(f"ds_read_b64_tr_b16 v[{r}:{r+1}], v{12+i}")
        k.lg(f"ds_read_b64_tr_b16 v[{r+2}:{r+3}], v{12+i} offset:{4*1280}", f"kv{i}")
    for i in range(6):
        r = 32 + 4*i
        if i == 5: k.i("s_cmp_lg_u32 s23, 0\ns_cbranch_scc1 p0_drain")
        k.wait(lg=f"kv{i}")
        k.i(f"buffer_store_dwordx4 v[{r}:{r+3}], v3, s[16:19], s21 offen {HO}\ns_add_u32 s21, s21, 327680")
    k.i("s_branch p0_drain")
    k.label("p0_zero")
    k.i(f"""s_sub_u32 s21, s45, 248
    s_mul_i32 s21, s21, 6720
    s_add_u32 s21, s21, {KVA}
    v_lshlrev_b32 v4, 4, v0
    v_mov_b32 v8, 0
    v_mov_b32 v9, 0
    v_mov_b32 v10, 0
    v_mov_b32 v11, 0
    v_lshrrev_b32 v30, 4, v1
    s_mov_b32 s10, 6720
    s_mov_b32 s11, 0x20000
    s_waitcnt lgkmcnt(0)
    s_add_u32 s8, s14, s21
    s_addc_u32 s9, s15, 0
    buffer_store_dwordx4 v[8:11], v4, s[8:11], 0 offen {HO}
    v_add_u32 v4, 4096, v4
    buffer_store_dwordx4 v[8:11], v4, s[8:11], 0 offen {HO}
    s_load_dword s44, s[14:15], {CB}""")
    stamp(9, "p0"); stamp(5, "p0"); stamp(7, "p0")
    srd(16, 14, WSZ)
    k.label("p0_drain")
    stamp(1)
    k.i("s_waitcnt vmcnt(0) lgkmcnt(0)\ns_add_u32 s44, s44, 1\ns_barrier")
    k.reset_counts()
    stamp(2)
    sig_all(F0, 4)
    k.i(f"""s_cmp_lg_u32 s20, 2
    s_cbranch_scc1 p0_nob
    v_lshlrev_b32 v4, 7, v1
    v_min_u32 v5, 3068, v4
    v_min_u32 v4, 1276, v4
    global_load_dword v31, v5, s[{PB1}:{PB1+1}]
    global_load_dword v31, v4, s[{PB2}:{PB2+1}]""")
    k.label("p0_nob")
    if not OPT.get("ulate"): unit_issue("")

def unit_issue(sfx):
    cold = OPT["cold"]
    UN = 0 if OPT.get("nounit") else 232
    k.i(f"""s_cmp_ge_u32 s45, {UN}
    s_cbranch_scc1 p0_ui{sfx}d
    s_sub_u32 s6, s20, 1
    s_mul_i32 s5, s6, 7168
    s_cmp_ge_u32 s45, 136
    s_cbranch_scc1 p0_ui{sfx}_w2
    s_cmp_ge_u32 s45, 40
    s_cbranch_scc1 p0_ui{sfx}_w1""")
    srd(8, PWO, 819200)
    k.i(f"""s_mul_i32 s35, s45, 26
    s_lshr_b32 s35, s35, 8
    s_mul_i32 s36, s35, 10
    s_sub_u32 s36, s45, s36
    s_mul_i32 s4, s35, 204800
    s_movk_i32 s25, 1280
    s_branch p0_ui{sfx}_128""")
    k.label(f"p0_ui{sfx}_w1")
    srd(8, PW1, 1966080)
    k.i(f"""s_sub_u32 s34, s45, 40
    s_mul_i32 s35, s34, 43
    s_lshr_b32 s35, s35, 10
    s_mul_i32 s36, s35, 24
    s_sub_u32 s36, s34, s36
    s_mul_i32 s4, s35, 491520
    s_movk_i32 s25, 3072""")
    k.label(f"p0_ui{sfx}_128")
    k.i(f"""s_cmp_eq_u32 s20, 0
    s_cbranch_scc1 p0_ui{sfx}d
    s_lshl_b32 s7, s36, 7
    s_add_u32 s4, s4, s7
    v_lshrrev_b32 v52, 3, v1
    s_mul_i32 s7, s6, 56
    v_add_u32 v52, s7, v52
    v_and_b32 v53, 7, v1
    v_lshlrev_b32 v53, 4, v53
    v_and_b32 v54, 2, v52
    v_lshlrev_b32 v54, 5, v54
    v_mul_lo_u32 v52, v52, s25
    v_xad_u32 v52, v53, v54, v52
    s_lshl_b32 s25, s25, 3""")
    for i in range(7):
        k.i(f"s_add_u32 m0, s5, {UL+1024*i}\nbuffer_load_dwordx4 v52, s[8:11], s4 offen {cold} lds\ns_add_u32 s4, s4, s25")
    k.i(f"s_branch p0_ui{sfx}d")
    k.label(f"p0_ui{sfx}_w2")
    srd(8, PW2, 1966080)
    m, sh = magic(40, 1344)
    k.i(f"""s_sub_u32 s34, s45, 136
    s_lshr_b32 s35, s34, 1
    s_and_b32 s36, s34, 1
    s_cmp_eq_u32 s20, 0
    s_cbranch_scc1 p0_ui{sfx}d
    s_mul_i32 s4, s35, 40960
    s_mul_i32 s7, s36, 640
    s_add_u32 s4, s4, s7
    s_mul_i32 s7, s6, 448
    v_add_u32 v56, s7, v1""")
    for i in range(7):
        k.i(f"""v_add_u32 v52, {64*i}, v56
        v_mul_u32_u24 v53, {m}, v52
        v_lshrrev_b32 v53, {sh}, v53
        v_mul_u32_u24 v54, 40, v53
        v_sub_u32 v54, v52, v54
        v_lshlrev_b32 v54, 4, v54
        v_and_b32 v55, 2, v53
        v_lshlrev_b32 v55, 4, v55
        v_and_b32 v57, 16, v53
        v_lshl_or_b32 v55, v57, 2, v55
        v_mul_u32_u24 v53, 1280, v53
        v_xad_u32 v52, v54, v55, v53
        s_add_u32 m0, s5, {UL+1024*i}
        buffer_load_dwordx4 v52, s[8:11], s4 offen {cold} lds""")
    k.label(f"p0_ui{sfx}d")

def unit_proc(sfx):
    UN = 0 if OPT.get("nounit") else 232
    D0 = 32
    k.i(f"""s_cmp_ge_u32 s45, {UN}
    s_cbranch_scc1 up_end{sfx}
    s_cmp_ge_u32 s45, 136
    s_cbranch_scc1 up_w2{sfx}
    s_and_b32 s6, s20, 1
    s_lshr_b32 s7, s20, 1
    s_lshl_b32 s37, s36, 1
    s_add_u32 s37, s37, s6
    s_cmp_ge_u32 s45, 40
    s_cbranch_scc1 up_w1{sfx}""")
    k.i(f"""v_and_b32 v52, 1, v30
    v_lshrrev_b32 v53, 1, v29
    v_lshl_add_u32 v52, v52, 1, v53
    v_add_u32 v52, s35, v52
    v_and_b32 v52, 3, v52
    v_lshlrev_b32 v52, 4, v52
    v_and_b32 v53, 1, v29
    v_lshl_add_u32 v52, v53, 3, v52
    s_lshl_b32 s24, s6, 6
    v_add_u32 v52, s24, v52
    v_and_b32 v53, 2, v28
    v_lshlrev_b32 v53, 5, v53
    v_xor_b32 v52, v52, v53
    v_lshl_add_u32 v52, v28, 7, v52
    s_mul_i32 s24, s7, 10240
    s_add_u32 s24, s24, {UL}
    v_add_u32 v52, s24, v52
    v_lshrrev_b32 v54, 5, v1
    v_lshlrev_b32 v54, 4, v54
    s_mul_i32 s24, s37, 205
    s_lshr_b32 s24, s24, 10
    s_mul_i32 s25, s24, 5
    s_sub_u32 s25, s37, s25
    s_lshl_b32 s24, s24, 2
    s_add_u32 s24, s24, s35
    s_mul_i32 s24, s24, 10
    s_mul_i32 s4, s7, 5
    s_add_u32 s24, s24, s4
    s_mul_i32 s24, s24, 5
    s_add_u32 s24, s24, s25
    s_lshl_b32 s24, s24, 10
    s_add_u32 s24, s24, {WO}""")
    for uu in range(5):
        for h2 in range(2):
            m_ = 2*uu + h2
            K = 0
            for hi in range(2): K |= ((40*(m_//5) + ROWOFF[hi][m_ % 5]) * 128) << (16*hi)
            r = D0 + 4*uu + 2*h2
            k.i(f"s_mov_b32 s25, {K:#x}\nv_bfe_u32 v55, s25, v54, 16\nv_add_u32 v55, v55, v52")
            k.lg(f"ds_read_b64_tr_b16 v[{r}:{r+1}], v55", f"uo{uu}")
    for uu in range(5):
        r = D0 + 4*uu
        k.wait(lg=f"uo{uu}")
        k.i(f"buffer_store_dwordx4 v[{r}:{r+3}], v3, s[16:19], s24 offen {HO}\ns_add_u32 s24, s24, 5120")
    k.i(f"s_branch up_end{sfx}")
    k.label(f"up_w1{sfx}")
    k.i(f"""v_lshrrev_b32 v52, 1, v30
    v_lshl_add_u32 v52, v52, 3, v28
    v_and_b32 v53, 1, v30
    v_lshlrev_b32 v53, 5, v53
    v_lshl_add_u32 v53, v29, 3, v53
    s_lshl_b32 s24, s6, 6
    v_add_u32 v53, s24, v53
    v_and_b32 v54, 2, v28
    v_lshlrev_b32 v54, 5, v54
    v_lshlrev_b32 v52, 7, v52
    v_xad_u32 v52, v53, v54, v52
    s_mul_i32 s24, s7, 10240
    s_add_u32 s24, s24, {UL}
    v_add_u32 v52, s24, v52
    v_mov_b32 v56, 0
    s_mov_b32 s4, 0x3f803f80
    s_mul_i32 s24, s37, 171
    s_lshr_b32 s24, s24, 9
    s_mul_i32 s25, s24, 3
    s_sub_u32 s25, s37, s25
    s_mul_i32 s24, s24, 40
    s_mul_i32 s5, s35, 10
    s_add_u32 s24, s24, s5
    s_mul_i32 s5, s7, 5
    s_add_u32 s24, s24, s5
    s_mul_i32 s24, s24, 3
    s_add_u32 s24, s24, s25
    s_lshl_b32 s24, s24, 10
    s_add_u32 s24, s24, {W1}""")
    for ks in range(5):
        r = D0 + 4*ks
        k.lg(f"ds_read_b64_tr_b16 v[{r}:{r+1}], v52 offset:{ks*2048}")
        k.lg(f"ds_read_b64_tr_b16 v[{r+2}:{r+3}], v52 offset:{ks*2048+512}", f"u1{ks}")
    for ks in range(5):
        r = D0 + 4*ks
        k.wait(lg=f"u1{ks}")
        k.i(f"buffer_store_dwordx4 v[{r}:{r+3}], v3, s[16:19], s24 offen {HO}\ns_add_u32 s24, s24, 3072")
        for j in range(4): k.i(f"v_dot2_f32_bf16 v56, v{r+j}, s4, v56")
    k.i(f"""s_nop 2
    v_mov_b32 v57, v56
    s_lshl_b32 s24, s35, 1
    s_add_u32 s24, s24, s7
    v_permlane32_swap_b32 v56, v57
    s_mul_i32 s24, s24, 6144
    s_lshl_b32 s25, s37, 7
    s_add_u32 s24, s24, s25
    s_add_u32 s24, s24, {CS}
    v_add_f32 v56, v56, v57
    v_lshlrev_b32 v57, 2, v1
    s_mov_b64 exec, 0xffffffff
    buffer_store_dword v56, v57, s[16:19], s24 offen {HO}
    s_mov_b64 exec, -1
    s_branch up_end{sfx}""")
    k.label(f"up_w2{sfx}")
    k.i(f"""v_and_b32 v52, 1, v30
    v_lshlrev_b32 v52, 4, v52
    v_lshrrev_b32 v53, 1, v30
    v_lshl_add_u32 v52, v53, 2, v52
    v_add_u32 v52, v52, v28
    v_and_b32 v54, 2, v52
    v_lshlrev_b32 v54, 4, v54
    v_and_b32 v55, 16, v52
    v_lshl_or_b32 v54, v55, 2, v54
    v_mul_u32_u24 v52, 640, v52
    v_add_u32 v52, {UL}, v52
    s_mul_i32 s24, s20, 160
    v_lshl_add_u32 v53, v29, 3, s24
    s_lshl_b32 s24, s36, 2
    s_add_u32 s24, s24, s20
    s_mul_i32 s24, s24, 48
    s_add_u32 s24, s24, s35
    s_mul_i32 s24, s24, 5120
    s_add_u32 s24, s24, {W2}""")
    for m_ in range(5):
        r = D0 + 4*m_
        k.i(f"v_add_u32 v55, {32*m_}, v53\nv_xad_u32 v55, v55, v54, v52")
        k.lg(f"ds_read_b64_tr_b16 v[{r}:{r+1}], v55")
        k.lg(f"ds_read_b64_tr_b16 v[{r+2}:{r+3}], v55 offset:{8*640}", f"u2{m_}")
    for m_ in range(5):
        r = D0 + 4*m_
        k.wait(lg=f"u2{m_}")
        k.i(f"buffer_store_dwordx4 v[{r}:{r+3}], v3, s[16:19], s24 offen {HO}\ns_add_u32 s24, s24, 1024")
    k.label(f"up_end{sfx}")

WOR = [160 + 4*f for f in range(21)] + [44 + 4*f for f in range(29)]
PQA = 0; XA = 244
W2R = WOR + list(range(0, 40, 4))
TBV = 244
WOB = None; XQ = None
def phase1():
    global WOB
    k.i(f"""v_add_u32 v4, 0x10000, v3
    v_add_u32 v5, 0x20000, v3
    s_lshl_b32 s28, s26, 2
    s_add_u32 s28, s28, s20
    s_mul_i32 s21, s28, 40960
    s_add_u32 s21, s21, {XN}
    s_lshl_b32 s23, s20, 12
    s_mul_i32 s22, s27, 163840
    s_add_u32 s22, s22, s23
    s_add_u32 s22, s22, {WQ}
    s_mov_b32 s40, {LOG2E:#x}
    s_mov_b32 s41, {LOG2E:#x}
    s_mov_b32 s38, 0x358637bd
    s_mov_b32 s39, 0x358637bd""")
    if OPT.get("mapb"):
        k.i(f"""s_and_b32 s{PWQ}, s2, 7
        s_lshl_b32 s{PWQ}, s{PWQ}, 1
        s_lshr_b32 s33, s2, 7
        s_add_u32 s{PWQ}, s{PWQ}, s33
        s_bfe_u32 s{PWQ+1}, s2, 0x40003
        s_and_b32 s13, s{PWQ+1}, 7
        s_lshr_b32 s12, s{PWQ+1}, 3
        s_lshl_b32 s31, s{PWQ}, 1
        s_add_u32 s12, s12, s31
        s_lshl_b32 s31, s{PWQ}, 2
        s_lshr_b32 s29, s{PWQ+1}, 2
        s_add_u32 s29, s29, s31
        s_and_b32 s30, s{PWQ+1}, 3""")
    else:
        k.i(f"""s_mov_b32 s{PWQ}, s26
        s_mov_b32 s{PWQ+1}, s27
    s_lshr_b32 s33, s27, 3
        s_lshl_b32 s13, s33, 2
        s_and_b32 s12, s27, 3
        s_add_u32 s13, s13, s12
        s_bfe_u32 s12, s27, 0x10002
        s_lshl_b32 s31, s26, 1
        s_add_u32 s12, s12, s31
        s_lshl_b32 s31, s26, 2
        s_bfe_u32 s29, s27, 0x20001
        s_add_u32 s29, s29, s31
        s_lshl_b32 s30, s33, 1
        s_and_b32 s33, s27, 1
        s_add_u32 s30, s30, s33""")
    k.i(f"""    s_lshl_b32 s31, s30, 2
    s_add_u32 s31, s31, s20
    s_mul_i32 s31, s31, 51200
    s_add_u32 s31, s31, {WO}
""")
    k.i(f"""v_and_b32 v24, 31, v1
    v_lshlrev_b32 v24, 4, v24
    v_lshrrev_b32 v25, 5, v1
    v_lshl_add_u32 v24, v25, 3, v24
    s_mul_i32 s3, s29, 40
    s_mul_i32 s33, s30, 10
    s_add_u32 s3, s3, s33
    s_lshr_b32 s33, s20, 1
    s_add_u32 s3, s3, s33
    s_lshl_b32 s3, s3, 10
    s_and_b32 s33, s20, 1
    s_lshl_b32 s33, s33, 9
    s_add_u32 s3, s3, s33
    s_add_u32 s3, s3, {XC}
""" if OPT.get("xc") else """v_and_b32 v24, 31, v1
    s_lshl_b32 s33, s29, 5
    v_add_u32 v24, s33, v24
    v_mul_u32_u24 v24, 1280, v24
    v_lshrrev_b32 v25, 5, v1
    v_lshl_add_u32 v24, v25, 3, v24
    s_mul_i32 s3, s30, 320
    s_lshl_b32 s34, s20, 4
    s_add_u32 s3, s3, s34
""")
    k.i(f"""v_lshlrev_b32 v26, 2, v0
    v_lshlrev_b32 v27, 1, v0
    s_mul_i32 s33, s{PWQ+1}, 192
    s_add_u32 s{PB1}, s{PB1}, s33
    s_addc_u32 s{PB1+1}, s{PB1+1}, 0
    s_mul_i32 s54, s{PWQ+1}, 384
    s_add_u32 s54, s54, {CS}""")
    XM = OPT.get("xm", "win")
    def xloads(pol):
        for c in range(5):
            k.i(f"global_load_dwordx2 a[{XA+2*c}:{XA+2*c+1}], v24, s[{PX}:{PX+1}] offset:{64*c} {pol}")
    if OPT.get("xc"): XM = "none"
    else: k.i("v_add_u32 v24, s3, v24")
    if XM == "early": xloads(OPT.get('xpol', 'nt'))
    elif XM == "mix":
        k.i("s_cmp_eq_u32 s20, 0\ns_cbranch_scc1 p1_nox")
        xloads(OPT.get('xpol', ''))
        k.label("p1_nox")
    k.i(f"v_min_u32 v27, 190, v27")
    poll_all(F0, 8, O("slp0", 16))
    if OPT.get("upre"): k.i("s_waitcnt vmcnt(0)")
    k.i("s_barrier")
    stamp(4)
    if OPT.get("upre") == "1":
        sv0 = snap(); unit_proc(""); rest(sv0)
    ACC = 64; WB = 128; T = 8; PK = 176; FB0 = 20; NS = 12; AH = 8
    PRE = O("pre1", 3)
    Q = BG()
    for s in range(10):
        for j in range(4):
            Q.add(f"buffer_load_dwordx4 v3, s[16:19], s22 offen offset:{1024*j} {HO} lds", f"W{s}",
                  pre=(f"s_add_u32 m0, s23, {(s % 8)*16384}" if (j == 0 or OPT.get("ulate")) else ""), post=("s_add_u32 s22, s22, 16384" if j == 3 else ""))
        for j in range(4):
            Q.add(f"buffer_load_dwordx4 a[{16*s+4*j}:{16*s+4*j+3}], v3, s[16:19], s21 offen offset:{1024*j} {HO}", f"X{4*s+j}",
                  post=("s_add_u32 s21, s21, 4096" if j == 3 else ""))
    if OPT.get("upre") == "2":
        Q.go(8)
        sv0 = snap(); unit_proc(""); rest(sv0)
        Q.go(8*PRE - 8)
    else: Q.go(8*PRE)
    k.wait(vm="W0"); k.i("s_barrier")
    if not OPT.get("ulate") and not OPT.get("upre"):
        sv0 = snap(); unit_proc(""); rest(sv0)
    if OPT.get("xc"):
        k.i("s_cmp_ge_u32 s45, 128\ns_cbranch_scc1 p1_noxc")
        for i in range(5):
            k.i(f"buffer_store_dwordx4 v[{208+4*i}:{211+4*i}], v228, s[16:19], s55 offen {HO}\ns_add_u32 s55, s55, 8192")
        k.label("p1_noxc")
    stamp(3)
    k.i("s_cmp_ge_u32 s27, 11\ns_cbranch_scc1 p1_q")
    sv = snap(); Qs = list(Q.q)
    def mkbg():
        B = BG()
        for i in range(50):
            B.add(f"buffer_load_dwordx4 a[{WOR[i]}:{WOR[i]+3}], v3, s[16:19], s31 offen offset:{1024*(i%4)} {HO}", f"wo{i}", post=("s_add_u32 s31, s31, 4096" if i % 4 == 3 else ""))
        return B
    def small():
        S = BG()
        global XQ
        X_ = XQ = BG()
        for j in range(8):
            S.add(f"buffer_load_dword v{TBV+j}, v26, s[16:19], s54 offen {HO}", post=f"s_add_u32 s54, s54, 6144")
        for c in range(5):
            if OPT.get("xc"): S.add(f"buffer_load_dwordx2 a[{XA+2*c}:{XA+2*c+1}], v24, s[16:19], s3 offen offset:{2048*(c%2)} {HO}", post=("s_add_u32 s3, s3, 4096" if c % 2 else ""))
        return S
    NPRE = O("wo_pre", 20)
    def loop(act_first, order_tail, fill_after, B, sfx):
        items = [(ks, j) for ks in range(40 - len(order_tail)//4) for j in range(4)] + order_tail
        first = {}
        for n_, (ks_, j_) in enumerate(items): first.setdefault(ks_//4, n_)
        NCHK = 2*(80 - 8*PRE) + O("chk", 0)
        if OPT.get("ulate"): assert O("un_sig", 6) >= O("un_proc", 4) + PRE and 16*(O("un_proc", 4) - PRE) >= O("un_iss", 0)
        def rd(n):
            ks, j = items[n]
            if ks >= 4 and first[ks//4] == n:
                k.wait(vm=f"W{ks//4}"); k.i("s_barrier")
                if OPT.get("ulate") and ks//4 == O("un_proc", 4):
                    sv1 = snap(); unit_proc(sfx); rest(sv1)
                if ks//4 == (O("un_sig", 6) if OPT.get("ulate") else PRE + 1):
                    signal(1, f"v_mov_b32 v7, 0\ns_lshl_b32 s42, s45, 2\ns_add_u32 s42, s42, {F0B}", 6)
            o = ((ks % 32)*4 + j) * 1024
            r = WB + 4*(n % NS)
            k.lg(f"ds_read_b128 v[{r}:{r+3}], v{3 + o//65536} offset:{o % 65536}", f"w{n}")
        for n in range(AH): rd(n)
        fill = []
        for n, (ks, j) in enumerate(items):
            if OPT.get('ulate') and n == O('un_iss', 0): unit_issue(sfx)
            if n % 2 == 0:
                k.wait(vm=f"X{max(items[n][0], items[n+1][0])}", lg=f"w{n+1}")
                if n % 16 == 0: stamp(8 + n//16, "p1")
            w = vr(WB + 4*(n % NS), 4); x = ar(4*ks, 4); d = vr(ACC + 16*j, 16)
            c = "0" if ks == 0 else d
            k.i(f"v_mfma_f32_32x32x16_bf16 {d}, {x}, {w}, {c}" if act_first else f"v_mfma_f32_32x32x16_bf16 {d}, {w}, {x}, {c}")
            if n % 2 == 0:
                if Q.left(): Q.go()

            else:
                for m_ in (n - 1 + AH, n + AH):
                    if m_ < 160: rd(m_)
            if n == NCHK - 16:
                k.i(f"s_mov_b32 s42, {F0B}")
                k.vm(f"buffer_load_dwordx4 v[{FB0}:{FB0+3}], v3, s[16:19], s42 offen sc1", "f0b")
            if n == NCHK:
                k.wait(vm="f0b")
                check4(FB0)
                k.i(f"s_cbranch_vccz p1_ok{sfx}\ns_mov_b32 s42, {F0B}")
                poll(3, 42, FB0, wide=True, w0=False)
                k.label(f"p1_ok{sfx}")
                SQ[0] = small()
                lim[0] = min(21, NPRE); k.th = O("th1", 96)
                k.auto = lambda: B.go() if 50 - B.left() < lim[0] else None
            if n in fill_after: fill += fill_after[n]
            for _ in range(6):
                if fill: k.i(fill.pop(0))
        lim[0] = NPRE; k.th = O("th1e", 90)
        for l in fill: k.i(l)
    lim = [0]; SQ = [None]
    def phi_lines(t):
        with capture() as c:
            for b in range(0, 16, 4): phi4(ACC + 16*t + b, PK + 8*t + b//2, T)
        return c.lines
    TL = O("tl1", 4)
    tail = [(ks, j) for ks in range(40-TL, 40) for j in (0, 1)] + [(ks, j) for ks in range(40-TL, 40) for j in (2, 3)]
    B = mkbg()
    loop(True, tail, {161 - 2*TL: phi_lines(0) + phi_lines(1)}, B, "kv")
    stamp(5)
    k.i("s_lshl_b32 s33, s20, 13\ns_add_u32 s33, s33, 32768\nv_add_u32 v6, s33, v3")
    for t in (0, 1):
        for f in range(2):
            k.lg(f"ds_write_b128 v6, v[{PK+8*t+4*f}:{PK+8*t+4*f+3}] offset:{2048*t+1024*f}")
    for t in (2, 3):
        for p in range(8):
            k.i(f"v_cvt_pk_bf16_f32 v{PK+8*t+p}, v{ACC+16*t+2*p}, v{ACC+16*t+2*p+1}")
        if t == 3:
            k.i("s_mov_b32 s34, 0xf0000000\ns_mov_b32 s35, 0xf0000000\nv_mov_b32 v7, 0x3f803f80")
            for p in range(8): k.i(f"v_cndmask_b32 v{PK+24+p}, v{PK+24+p}, v7, s[34:35]")
        for f in range(2):
            k.lg(f"ds_write_b128 v6, v[{PK+8*t+4*f}:{PK+8*t+4*f+3}] offset:{2048*t+1024*f}")
    k.i("""s_lshr_b32 s33, s20, 1
    s_and_b32 s34, s20, 1
    s_lshl_b32 s35, s33, 11
    s_add_u32 s35, s35, 32768
    v_add_u32 v8, s35, v3
    s_lshl_b32 s35, s34, 11
    s_add_u32 s35, s35, 36864
    v_add_u32 v9, s35, v3""")
    k.wait(lg="all"); k.i("s_barrier")
    stamp(8, "p1e")
    FA = 64; FB = 96; DD = 128
    for w in range(4):
        for f in range(2):
            n = 2*w + f
            k.lg(f"ds_read_b128 v[{FA+4*n}:{FA+4*n+3}], v8 offset:{8192*w+1024*f}")
            k.lg(f"ds_read_b128 v[{FB+4*n}:{FB+4*n+3}], v9 offset:{8192*w+1024*f}", f"f{n}")
    with capture() as c:
        k.i("""v_and_b32 v10, 31, v1
        s_lshl_b32 s35, s34, 5
        v_add_u32 v10, s35, v10
        v_mul_u32_u24 v11, 205, v10
        v_lshrrev_b32 v11, 12, v11
        v_mul_u32_u24 v12, 20, v11
        v_sub_u32 v12, v10, v12
        v_cmp_eq_u32 s[36:37], 60, v10
        v_mov_b32 v13, 20
        v_lshrrev_b32 v14, 5, v1
        v_cndmask_b32 v12, v12, v13, s[36:37]
        v_mul_u32_u24 v12, 80, v12
        v_lshlrev_b32 v14, 2, v14
        s_lshl_b32 s35, s33, 5
        v_add_u32 v14, s35, v14
        v_lshlrev_b32 v22, 2, v0
        v_add_u32 v23, 65536, v22
        v_add_u32 v12, 65536, v12""")
        MS = [4, 6, 24, 34]
        for j in range(4):
            ms = MS[j]
            k.i(f"""v_add_u32 v15, {8*j}, v14
            v_mul_u32_u24 v20, 205, v15
            v_lshrrev_b32 v20, 12, v20
            v_mul_u32_u24 v21, 20, v20
            v_sub_u32 v21, v15, v21
            v_cmp_eq_u32 s[{ms}:{ms+1}], v20, v11
            v_cmp_gt_u32 vcc, 3, v20
            v_mul_u32_u24 v20, 1680, v20
            v_lshl_add_u32 v21, v21, 2, v12
            v_add_u32 v{16+j}, v20, v21
            s_or_b64 s[{ms}:{ms+1}], s[{ms}:{ms+1}], s[36:37]
            s_and_b64 s[{ms}:{ms+1}], s[{ms}:{ms+1}], vcc""")
    fill = c.lines
    for _ in range(16): k.i(fill.pop(0))
    def kvm(n):
        def f():
            k.wait(lg=f"f{n}")
            k.i(f"v_mfma_f32_32x32x16_bf16 v[{DD}:{DD+15}], v[{FA+4*n}:{FA+4*n+3}], v[{FB+4*n}:{FB+4*n+3}], {'0' if n == 0 else vr(DD,16)}")
        return f
    for l in merge([kvm(n) for n in range(8)], fill, 6): k.i(l)
    for j in range(4):
        k.i(f"s_mov_b64 exec, s[{MS[j]}:{MS[j]+1}]")
        k.lg(f"ds_write_b128 v{16+j}, v[{DD+4*j}:{DD+4*j+3}]")
    k.i(f"""s_mov_b64 exec, -1
    s_mul_i32 s33, s27, 5040
    s_add_u32 s33, s33, {KVA}
    s_add_u32 s4, s14, s33
    s_addc_u32 s5, s15, 0
    s_cmp_eq_u32 s27, 10
    s_movk_i32 s6, 5040
    s_cselect_b32 s6, 3360, s6
    s_mov_b32 s7, 0x20000""")
    k.wait(lg="all"); k.i("s_barrier")
    stamp(9, "p1e")
    for i in range(5):
        k.lg(f"ds_read_b32 v{32+i}, v23 offset:{1024*i}", f"d{i}")
    for i in range(5):
        k.wait(lg=f"d{i}")
        if i == 4: k.i("v_add_u32 v22, 4096, v22")
        k.vm(f"buffer_atomic_add_f32 v{32+i}, v22, s[4:7], 0 offen offset:{1024*(i%4)}", "out1")
    stamp(10, "p1e")
    def bg_finish(B):
        k.auto = None
        print("WO left for the drain:", NPRE - (50 - B.left()), file=sys.stderr)
        if O("pqe", 1):
            k.i(f"v_min_u32 v{FB0+1}, 4, v1\nv_lshlrev_b32 v{FB0+1}, 2, v{FB0+1}\ns_and_b32 s24, s2, 7\ns_lshl_b32 s24, s24, 12\ns_lshl_b32 s25, s26, 8\ns_add_u32 s24, s24, s25\ns_add_u32 s24, s24, {F1 + 128 + 12}")
            k.vm(f"buffer_load_dword v{FB0}, v{FB0+1}, s[16:19], s24 offen sc1", "out1")
        B.go(NPRE - (50 - B.left()))
    bg_finish(B)
    k.wait(vm="out1")
    k.i("s_branch p1_fin")
    k.label("p1_q")
    rest(sv); Q.q = list(Qs)
    k.i(f"""s_mul_i32 s33, s28, 40960
    s_sub_u32 s34, s27, 11
    s_lshl_b32 s34, s34, 13
    s_add_u32 s33, s33, s34
    s_add_u32 s33, s33, {PQ}""")
    tail = [(ks, j) for j in range(4) for ks in range(36, 40)]
    B = mkbg()
    loop(False, tail, {149: phi_lines(0), 153: phi_lines(1)}, B, "q")
    stamp(5)
    for t in range(4):
        if t >= 2:
            for b in range(0, 16, 4):
                phi4(ACC + 16*t + b, PK + 8*t + b//2, T)
        for f in range(2):
            k.vm(f"buffer_store_dwordx4 v[{PK+8*t+4*f}:{PK+8*t+4*f+3}], v3, s[16:19], s33 offen offset:{(2048*t+1024*f) % 4096} {HO}", "out1")
        if t == 1: k.i("s_add_u32 s33, s33, 4096")
    stamp(8, "p1e"); stamp(9, "p1e"); stamp(10, "p1e")
    bg_finish(B)
    k.wait(vm="out1")
    k.label("p1_fin")
    stamp(6)
    k.i("s_barrier")
    sig_all(F1, 6)
    WOB = B
    k.i(f"s_mov_b32 s26, s{PWQ}\ns_mov_b32 s27, s{PWQ+1}")
    if O("pqe", 1):
        k.i(f"v_cmp_ne_u32 vcc, s44, v{FB0}\ns_cbranch_vccz p1_qok")
        poll(FB0+1, 24, FB0, w0=False)
        k.label("p1_qok")
        k.i(f"""s_mul_i32 s22, s29, 40960
        s_mul_i32 s33, s20, 10240
        s_add_u32 s22, s22, s33
        s_add_u32 s22, s22, {PQ}""")
        for kl in range(10):
            k.vm(f"buffer_load_dwordx4 a[{PQA+4*kl}:{PQA+4*kl+3}], v3, s[16:19], s22 offen offset:{1024*(kl%4)} {HO}", f"pq{kl}")
            if kl % 4 == 3: k.i("s_add_u32 s22, s22, 4096")
    k.vm(f"global_load_ushort v{TBV+8}, v27, s[{PB1}:{PB1+1}]")
    SQ[0].go(99)
    if XM == "win": xloads("")
    if XM == "mix":
        k.i("s_cmp_lg_u32 s20, 0\ns_cbranch_scc1 p1_nox2")
        xloads("")
        k.label("p1_nox2")
    WOB.go(O("wo_w", 5))
    NW1 = O("w1_w", 16)
    k.i(f"""s_mul_i32 s25, s27, 122880
    s_add_u32 s25, s25, {W1}
    s_cmp_eq_u32 s20, 0
    s_cbranch_scc1 p1_now1
    s_sub_u32 s23, s20, 1
    s_mul_i32 s23, s23, {NW1*1024}
    s_add_u32 s24, s25, s23""")
    for i in range(NW1):
        if i % 4 == 0: k.i(f"s_add_u32 m0, s23, {1024*i}")
        if not OPT.get("nobg"): k.i(f"buffer_load_dwordx4 v3, s[16:19], s24 offen offset:{1024*(i%4)} {HO} lds")
        if i % 4 == 3: k.i("s_add_u32 s24, s24, 4096")
    k.i("s_waitcnt vmcnt(0)" if OPT.get("nobg") else f"s_waitcnt vmcnt({NW1})")
    k.label("p1_now1")
    stamp(7)

W2B = None
def phase2():
    global W2B
    P2L = 102400
    k.i(f"""s_mul_i32 s21, s20, 13440
    s_add_u32 s21, s21, {KVA}
    s_mul_i32 s23, s20, 15360
    s_add_u32 s23, s23, {P2L+64}
    s_mul_i32 s22, s29, 40960
    s_mul_i32 s33, s20, 10240
    s_add_u32 s22, s22, s33
    s_add_u32 s22, s22, {PQ}
    v_bfe_u32 v8, v1, 2, 3
    v_lshlrev_b32 v8, 2, v8
    v_and_b32 v9, 3, v1
    s_mov_b32 s33, 0x55524130
    s_mov_b32 s34, 0x55453120
    v_bfe_u32 v10, s33, v8, 4
    v_bfe_u32 v11, s34, v8, 4
    v_lshl_add_u32 v10, v10, 2, v9
    v_lshl_add_u32 v11, v11, 2, v9
    v_min_u32 v10, 20, v10
    v_min_u32 v11, 20, v11
    v_lshrrev_b32 v12, 5, v1
    v_lshlrev_b32 v12, 4, v12
    s_sub_u32 s33, s23, 16
    v_add_u32 v12, s33, v12
    v_mul_u32_u24 v10, 80, v10
    v_mul_u32_u24 v11, 80, v11
    v_add_u32 v10, v10, v12
    v_add_u32 v11, v11, v12
    s_lshl_b32 s28, s26, 2
    s_add_u32 s28, s28, s20
    s_mov_b32 s36, 0
    s_mov_b32 s37, -1
    s_lshl_b32 s35, s13, 2
    s_add_u32 s35, s35, s20
    s_mul_i32 s35, s35, 61440
    s_add_u32 s35, s35, {W2}""")
    poll_all(F1, 14, O('slp1', 0))
    k.i("s_barrier")
    k.vm_done = k.vm_n
    stamp(8)
    for i in range(14):
        if i % 4 == 0: k.i(f"s_add_u32 m0, s23, {1024*i}")
        k.vm(f"buffer_load_dwordx4 v3, s[16:19], s21 offen offset:{1024*(i%4)} {HO} lds", f"kv{i}")
        if i % 4 == 3: k.i("s_add_u32 s21, s21, 4096")
        if i in (6, 13) and not O("pqe", 1):
            for kl in (range(0, 5) if i == 6 else range(5, 10)):
                k.vm(f"buffer_load_dwordx4 a[{PQA+4*kl}:{PQA+4*kl+3}], v3, s[16:19], s22 offen offset:{1024*(kl%4)} {HO}", f"pq{kl}")
                if kl % 4 == 3: k.i("s_add_u32 s22, s22, 4096")
    XQ.go(99)
    NW1 = O("w1_w", 16); N1 = (96 - 3*NW1) // 4
    assert 3*NW1 + 4*N1 == 96
    k.i(f"s_mul_i32 s24, s20, {N1*1024}\ns_add_u32 s24, s24, {3*NW1*1024}\ns_add_u32 s25, s25, s24")
    B1 = BG()
    for i in range(N1):
        B1.add(f"buffer_load_dwordx4 v3, s[16:19], s25 offen offset:{1024*(i%4)} {HO} lds", "w1",
               pre=(f"s_add_u32 m0, s24, {1024*i}" if i % 4 == 0 else ""), post=("s_add_u32 s25, s25, 4096" if i % 4 == 3 else ""))
    W2B = BG()
    for i in range(60):
        W2B.add(f"buffer_load_dwordx4 a[{W2R[i]}:{W2R[i]+3}], v3, s[16:19], s35 offen offset:{1024*(i%4)} {HO}", "w2", post=("s_add_u32 s35, s35, 4096" if i % 4 == 3 else ""))
    AF = 20; TT = 84; DT = 180; OG = 84; ACC = [20, 36, 124, 140, 156]
    for j in range(1, 8): k.i(f"v_add_f32 v{TBV}, v{TBV}, v{TBV+j}")
    k.i(f"v_lshlrev_b32 v{TBV+1}, 16, v{TBV+8}")
    jobs = {}
    n = 0
    for hl in range(8):
        jobs[hl] = []
        for u in range(2):
            for h2 in range(2):
                dg0 = -(hl % 4) + 4*u + 2*h2
                v0_ = 0 <= dg0 <= 4; v1_ = 0 <= dg0+1 <= 4
                d = AF + (2*hl+u)*4 + 2*h2
                if v0_ or v1_:
                    jobs[hl].append((d, n, v0_, v1_, hl*1680 + 16*(dg0+1))); n += 1
                else:
                    jobs[hl].append((d, None, 0, 0, 0))
                    k.i(f"v_mov_b32 v{d}, 0\nv_mov_b32 v{d+1}, 0")
    def kvreads(lo, hi):
        for hl in range(lo, hi):
            for d, n, _, _, o in jobs[hl]:
                if n is not None: k.lg(f"ds_read_b128 v[{TT+4*n}:{TT+4*n+3}], v{10 + (hl & 1)} offset:{o}", f"a{n}")
    def build(hl):
        for d, n, v0_, v1_, _ in jobs[hl]:
            if n is None: continue
            k.wait(lg=f"a{n}")
            t = TT + 4*n
            k.i(f"v_cvt_pk_bf16_f32 v{d}, v{t}, v{t+1}\nv_cvt_pk_bf16_f32 v{d+1}, v{t+2}, v{t+3}")
            if not v1_: k.i(f"v_cndmask_b32 v{d}, v{d}, 0, s[36:37]\nv_cndmask_b32 v{d+1}, v{d+1}, 0, s[36:37]")
            if not v0_: k.i(f"v_cndmask_b32 v{d}, 0, v{d}, s[36:37]\nv_cndmask_b32 v{d+1}, 0, v{d+1}, s[36:37]")
    def omm(hl):
        t0 = hl + hl//4
        d = vr(DT + 16*(hl % 4), 16)
        def f(u):
            def g():
                k.wait(vm=f"pq{t0+u}")
                k.i(f"v_mfma_f32_32x32x16_bf16 {d}, {vr(AF+(2*hl+u)*4, 4)}, {ar(PQA+4*(t0+u), 4)}, {'0' if u == 0 else d}")
            return g
        return [f(0), f(1)]
    def opost(hl):
        p = hl // 2; odd = hl & 1
        D = DT + 16*(hl % 4); rc = 16 + 2*odd
        a, b = (D+8, D+12) if odd else (D+12, D+8)
        with capture() as c:
            k.i(f"v_cndmask_b32 v{rc}, v{a}, v{b}, s[36:37]\nv_add_f32 v{rc}, s38, v{rc}\nv_rcp_f32 v{rc}, v{rc}\ns_nop 0")
            for h in range(6):
                k.i(f"v_pk_mul_f32 v[{D+2*h}:{D+2*h+1}], v[{D+2*h}:{D+2*h+1}], v[{rc}:{rc+1}] op_sel_hi:[1,0]")
            for j in range(2):
                g = OG + 2*(5*p + 2*odd + j)
                k.i(f"v_cvt_pk_bf16_f32 v{g}, v{D+4*j}, v{D+4*j+1}\nv_cvt_pk_bf16_f32 v{g+1}, v{D+4*j+2}, v{D+4*j+3}")
            g = OG + 2*(5*p + 4)
            if not odd:
                k.i(f"v_cvt_pk_bf16_f32 v{g}, v{D+8}, v{D+9}\nv_cvt_pk_bf16_f32 v{g+1}, v{D+10}, v{D+11}")
            else:
                k.i(f"v_cvt_pk_bf16_f32 v{D}, v{D+8}, v{D+9}\nv_cvt_pk_bf16_f32 v{D+1}, v{D+10}, v{D+11}")
                k.i(f"v_cndmask_b32 v{g}, v{g}, v{D}, s[36:37]\nv_cndmask_b32 v{g+1}, v{g+1}, v{D+1}, s[36:37]")
        return c.lines
    def wo(u, c, bg=True):
        def f():
            d = vr(ACC[c], 16)
            while f"wo{5*u+c}" not in k.vm_tags or (WOB.left() and 50 - WOB.left() <= 5*u+c): WOB.go()
            k.wait(vm=f"wo{5*u+c}")
            k.i(f"v_mfma_f32_32x32x16_bf16 {d}, {ar(WOR[5*u+c], 4)}, {vr(OG+4*u, 4)}, {'0' if u == 0 else d}")
            w2lim[0] = min(5*u, 35)
        return f
    w2lim = [0]
    def au2():
        if WOB.left(): WOB.go()
        elif B1.left(): B1.go()
        elif 60 - W2B.left() < w2lim[0]: W2B.go()
    k.auto = au2; k.th = O("th2", 90)
    k.wait(vm="kv6")
    stamp(13, "p2")
    kvreads(0, 4)
    for hl in range(4):
        build(hl)
        for f in omm(hl): f()
        if hl == 1:
            k.wait(vm="kv13"); kvreads(4, 8)
    for hl in range(4, 8):
        build(hl)
    stamp(9)
    for l in opost(0): k.i(l)
    for l in merge(omm(4), opost(1), 9): k.i(l)
    stamp(10)
    for l in merge(omm(5) + [wo(u, c) for u in (0, 1) for c in range(5)], opost(2) + opost(3), 4): k.i(l)
    for l in merge(omm(6) + omm(7) + [wo(u, c) for u in (2, 3, 4) for c in range(5)], opost(4) + opost(5), 3): k.i(l)
    with capture() as c:
        k.i(f"s_sub_u32 s33, s23, 64\nv_add_u32 v13, s33, v3")
        for j in range(1, 4):
            k.i(f"s_sub_u32 s33, s20, {j}\ns_and_b32 s33, s33, 3\ns_mul_i32 s33, s33, 15360\ns_add_u32 s33, s33, {P2L + (j-1)*5120}\nv_add_u32 v{13+j}, s33, v3")
    for l in merge([wo(u, c) for u in (5, 6) for c in range(5)], opost(6) + opost(7), 4): k.i(l)
    XF = 180
    with capture() as c2:
        k.i("s_mov_b32 s33, 0xffff0000")
        for j in range(10):
            k.i(f"v_accvgpr_read_b32 v{XF+2*j+1}, a{XA+j}")
        for j in range(10):
            k.i(f"v_lshlrev_b32 v{XF+2*j}, 16, v{XF+2*j+1}\nv_and_b32 v{XF+2*j+1}, s33, v{XF+2*j+1}")
    fill = c.lines + c2.lines
    if "xres" in k.vm_tags: k.wait(vm="xres")
    def red_w(c):
        for j in range(1, 4):
            r = ACC[c] + 4*j
            k.lg(f"ds_write_b128 v13, v[{r}:{r+3}] offset:{(j-1)*5120 + 1024*c}")
    for c in range(5):
        fill = merge([wo(u, c) for u in (7, 8, 9)], fill, 4)
        if c >= 2: red_w(c - 2)
    for l in fill: k.i(l)
    w2lim[0] = 60
    stamp(11)
    red_w(3); red_w(4)
    for c in range(5):
        for h in range(2):
            d = XF + 4*c + 2*h; a = ACC[c] + 2*h
            k.i(f"v_pk_add_f32 v[{d}:{d+1}], v[{d}:{d+1}], v[{a}:{a+1}]")
    k.wait(lg="all"); k.i("s_barrier")
    stamp(14, "p2")
    RR = 84
    for j in range(1, 4):
        for c in range(5):
            r = RR + 20*(j-1) + 4*c
            k.lg(f"ds_read_b128 v[{r}:{r+3}], v{13+j} offset:{1024*c}", f"r{j}_{c}")
    k.i(f"""s_mul_i32 s34, s29, 40
    s_mul_i32 s21, s30, 10
    s_add_u32 s34, s34, s21
    s_lshr_b32 s21, s20, 1
    s_add_u32 s34, s34, s21
    s_lshl_b32 s34, s34, 10
    s_and_b32 s21, s20, 1
    s_lshl_b32 s21, s21, 9
    s_add_u32 s34, s34, s21
    s_add_u32 s34, s34, {HH}
    v_and_b32 v8, 31, v1
    v_lshrrev_b32 v9, 5, v1
    v_lshlrev_b32 v12, 3, v8
    v_lshlrev_b32 v8, 4, v8
    v_lshl_add_u32 v8, v9, 3, v8""")
    HP = 24
    for j in range(1, 4):
        for c in range(5):
            k.wait(lg=f"r{j}_{c}")
            for h in range(2):
                d = XF + 4*c + 2*h; a = RR + 20*(j-1) + 4*c + 2*h
                k.i(f"v_pk_add_f32 v[{d}:{d+1}], v[{d}:{d+1}], v[{a}:{a+1}]")
            if j == 3:
                k.i(f"v_cvt_pk_bf16_f32 v{HP+2*c}, v{XF+4*c}, v{XF+4*c+1}\nv_cvt_pk_bf16_f32 v{HP+2*c+1}, v{XF+4*c+2}, v{XF+4*c+3}")
                k.vm(f"buffer_store_dwordx2 v[{HP+2*c}:{HP+2*c+1}], v8, s[16:19], s34 offen offset:{2048*(c%2)} {HO}")
                if c % 2 == 1: k.i("s_add_u32 s34, s34, 4096")
    for j in range(10):
        k.i(f"v_lshlrev_b32 v{XF+2*j}, 16, v{HP+j}\nv_and_b32 v{XF+2*j+1}, s33, v{HP+j}")
    k.i(f"v_pk_add_f32 v[16:17], v[{XF}:{XF+1}], v[{XF+2}:{XF+3}]")
    k.i(f"v_pk_mul_f32 v[18:19], v[{XF}:{XF+1}], v[{XF}:{XF+1}]")
    k.i(f"v_pk_fma_f32 v[18:19], v[{XF+2}:{XF+3}], v[{XF+2}:{XF+3}], v[18:19]")
    for j in range(2, 10):
        k.i(f"v_pk_add_f32 v[16:17], v[16:17], v[{XF+2*j}:{XF+2*j+1}]")
        k.i(f"v_pk_fma_f32 v[18:19], v[{XF+2*j}:{XF+2*j+1}], v[{XF+2*j}:{XF+2*j+1}], v[18:19]")
    k.i(f"""v_add_f32 v16, v16, v17
    v_add_f32 v17, v18, v19
    v_mov_b32 v18, v16
    v_mov_b32 v19, v17
    s_lshl_b32 s34, s29, 4
    s_lshl_b32 s21, s30, 2
    s_add_u32 s34, s34, s21
    s_add_u32 s34, s34, s20
    v_permlane32_swap_b32 v16, v18
    v_permlane32_swap_b32 v17, v19
    s_lshl_b32 s34, s34, 8
    s_add_u32 s34, s34, {ST}
    v_pk_add_f32 v[16:17], v[16:17], v[18:19]
    s_mov_b64 exec, 0xffffffff""")
    k.vm(f"buffer_store_dwordx2 v[16:17], v12, s[16:19], s34 offen {HO}", "out2")
    k.i("s_mov_b64 exec, -1")
    stamp(15, "p2")
    k.auto = None
    print("P2 end: W1 left", B1.left(), "W2 left", W2B.left(), file=sys.stderr)
    B1.go(99)
    if not OPT.get("nodrain"):
        W2B.go(O("w2_d2", 12))
        k.wait(vm="out2")
    stamp(12)
    k.i("s_barrier")
    sig_row(F2, 6, "s_and_b32 s42, s29, 3", "s_mov_b32 s43, s30")
    k.i(f"s_mul_i32 s23, s20, 6144\ns_mul_i32 s25, s27, 122880\ns_add_u32 s25, s25, s23\ns_add_u32 s25, s25, {W1 + 98304}")
    for i in range(6):
        if i % 4 == 0: k.i(f"s_add_u32 m0, s23, {98304 + 1024*i}")
        k.vm(f"buffer_load_dwordx4 v3, s[16:19], s25 offen offset:{1024*(i%4)} {HO} lds", "w1t")
        if i % 4 == 3: k.i("s_add_u32 s25, s25, 4096")
    k.i(f"v_lshlrev_b32 v6, 2, v0\nv_add_u32 v6, 122880, v6")
    k.lg(f"ds_write_b32 v6, v{TBV}")
    k.lg(f"ds_write_b32 v6, v{TBV+1} offset:1024")

def phase3():
    TB = 122880
    k.i(f"""s_mul_i32 s21, s28, 40960
    s_add_u32 s21, s21, {HH}
    v_and_b32 v8, 31, v1
    v_lshrrev_b32 v7, 5, v1
    v_lshlrev_b32 v8, 3, v8
    v_lshl_add_u32 v8, v7, 8, v8
    s_lshl_b32 s33, s28, 12
    s_add_u32 s33, s33, {ST}
    v_lshlrev_b32 v14, 4, v7
    v_add_u32 v14, {TB}, v14
    v_bfe_u32 v15, v1, 4, 1
    v_mul_u32_u24 v15, 49152, v15
    v_and_b32 v16, 15, v1
    v_lshl_add_u32 v15, v16, 4, v15
    v_lshl_add_u32 v15, v7, 9, v15
    s_mul_i32 s34, s28, 98304
    s_mul_i32 s25, s27, 3072
    s_add_u32 s34, s34, s25
    s_add_u32 s34, s34, {H1}""")
    W2B.go(O("w2_w2", 4))
    k.wait(vm="w1t", lg="all")
    k.i("s_barrier")
    poll_row(F2, 10, O('slp2', 0))
    stamp(13)
    ACC = 40; WB = 88; NS = 9; AH = 6; HR = 124; NR = O("pre3", 12); SR = 20; CT = 172; PK = 232
    H = BG()
    for i in range(40):
        r = HR + 4*(i % NR)
        H.add(f"buffer_load_dwordx4 v[{r}:{r+3}], v3, s[16:19], s21 offen offset:{1024*(i%4)} {HO}", f"h{i}", post=("s_add_u32 s21, s21, 4096" if i % 4 == 3 else ""))
    H.go(4)
    for j in range(8):
        k.vm(f"buffer_load_dwordx2 v[{SR+2*j}:{SR+2*j+1}], v8, s[16:19], s33 offen offset:{512*j} {HO}", "stats")
    H.go(NR - 5)
    TL = O("tl3", 4)
    items = [(ks, j) for ks in range(40-TL) for j in range(3)] + [(ks, j) for j in range(3) for ks in range(40-TL, 40)]
    def rd(n):
        ks, j = items[n]
        o = (ks*3 + j) * 1024
        r = WB + 4*(n % NS)
        k.lg(f"ds_read_b128 v[{r}:{r+3}], v{3 + o//65536} offset:{o % 65536}", f"w{n}")
    with capture() as c:
        for j in range(1, 8): k.i(f"v_pk_add_f32 v[{SR}:{SR+1}], v[{SR}:{SR+1}], v[{SR+2*j}:{SR+2*j+1}]")
        k.i(f"""v_mov_b32 v10, v{SR}
        v_mov_b32 v11, v{SR+1}
        v_permlane32_swap_b32 v{SR}, v10
        v_permlane32_swap_b32 v{SR+1}, v11
        v_pk_add_f32 v[8:9], v[{SR}:{SR+1}], v[10:11]
        v_mul_f32 v8, 0x3acccccd, v8
        v_mul_f32 v9, 0x3acccccd, v9
        v_fma_f32 v9, -v8, v8, v9
        v_max_f32 v9, 0, v9""")
        bf16r(8, 8); bf16r(9, 9)
        k.i("v_add_f32 v9, 0x3727c5ac, v9")
        bf16r(9, 9)
        k.i("v_sqrt_f32 v9, v9")
        bf16r(9, 9)
        k.i("v_rcp_f32 v10, v9\nv_mul_f32 v12, v8, v10\nv_sub_f32 v12, 0, v12")
    statl = c.lines
    def tab_reads(nt):
        for j in range(4):
            n = 4*nt + j
            k.lg(f"ds_read_b128 v[{CT+4*n}:{CT+4*n+3}], v14 offset:{1024+128*nt+32*j}")
            k.lg(f"ds_read_b128 v[{SR+4*j}:{SR+4*j+3}], v14 offset:{128*nt+32*j}", f"t{nt}")
    def tab_lines(nt):
        with capture() as c:
            for j in range(4):
                b = CT + 4*(4*nt + j)
                for h in range(2):
                    k.i(f"v_pk_fma_f32 v[{b+2*h}:{b+2*h+1}], v[{SR+4*j+2*h}:{SR+4*j+2*h+1}], v[12:13], v[{b+2*h}:{b+2*h+1}] op_sel_hi:[1,0,1]")
        return c.lines
    def epi_lines(nt, j):
        n = 4*nt + j
        a = ACC + 4*n; b = CT + 4*n
        with capture() as c:
            for h in range(2):
                k.i(f"v_pk_fma_f32 v[{a+2*h}:{a+2*h+1}], v[{a+2*h}:{a+2*h+1}], v[10:11], v[{b+2*h}:{b+2*h+1}] op_sel_hi:[1,0,1]")
            for h in range(4): k.i(f"v_max_f32 v{a+h}, 0, v{a+h}")
            for h in range(2):
                k.i(f"v_pk_mul_f32 v[{a+2*h}:{a+2*h+1}], v[{a+2*h}:{a+2*h+1}], v[{a+2*h}:{a+2*h+1}]")
            for h in range(2):
                k.i(f"v_cvt_pk_bf16_f32 v{PK+2*n+h}, v{a+2*h}, v{a+2*h+1}")
        return c.lines
    def st_h1(nt, e):
        k.vm(f"buffer_store_dwordx4 v[{PK+8*nt+4*e}:{PK+8*nt+4*e+3}], v15, s[16:19], s34 offen offset:{1024*nt+256*e} {HO}", "out3")
    for n in range(AH): rd(n)
    fill = []
    k.auto = lambda: W2B.go(); k.th = O("th3", 100)
    for n, (ks, j) in enumerate(items):
        k.wait(vm=f"h{ks}", lg=f"w{n}")
        if n == 12: cst(7)
        if n == 108: cst(9)
        d = vr(ACC + 16*j, 16)
        k.i(f"v_mfma_f32_32x32x16_bf16 {d}, {vr(WB + 4*(n % NS), 4)}, {vr(HR + 4*(ks % NR), 4)}, {'0' if ks == 0 else d}")
        if n % 3 == 0: H.go()
        if O('w2_p3', 0) and n % O('w2_p3', 0) == 4: W2B.go()
        if n + AH < 120: rd(n + AH)
        if n == 18: fill += statl
        for nt in range(3):
            if n == 40 + 12*nt: tab_reads(nt)
            if n == 46 + 12*nt:
                k.wait(lg=f"t{nt}"); fill += tab_lines(nt)
        if n == 121 - 2*TL: fill += epi_lines(0, 0) + epi_lines(0, 1) + epi_lines(0, 2) + epi_lines(0, 3)
        if n == 121 - TL: fill += epi_lines(1, 0) + epi_lines(1, 1)
        for _ in range(3 if n < 120 - 2*TL else 6):
            if fill: k.i(fill.pop(0))
    stamp(14)
    for l in fill: k.i(l)
    st_h1(0, 0); st_h1(0, 1); st_h1(1, 0)
    for nt, j in ((1, 2), (1, 3), (2, 0), (2, 1), (2, 2), (2, 3)):
        for l in epi_lines(nt, j): k.i(l)
        if j % 2 == 1: st_h1(nt, j // 2)
    k.auto = None
    print("P3 end: W2 left", W2B.left(), file=sys.stderr)
    if not OPT.get("nodrain"):
        W2B.go(O("w2_d3", 12))
        k.wait(vm="out3")
    stamp(15)
    k.i("s_barrier")
    sig_row(F3, 6, "s_lshr_b32 s42, s27, 2", "s_and_b32 s43, s27, 3")

def phase4():
    HR = 20; BR = 30; ACC = 40; RING = 120; NB = O("nb4", 6)
    srd(8, PB2, 1280)
    k.i(f"""v_and_b32 v4, 15, v1
    v_lshrrev_b32 v5, 4, v1
    s_lshl_b32 s33, s12, 1
    s_lshr_b32 s25, s20, 1
    s_add_u32 s33, s33, s25
    s_mul_i32 s33, s33, 40
    s_mul_i32 s25, s13, 5
    s_add_u32 s33, s33, s25
    s_lshl_b32 s33, s33, 10
    s_add_u32 s33, s33, {HH}
    s_and_b32 s25, s20, 1
    s_lshl_b32 s25, s25, 8
    s_add_u32 s33, s33, s25
    v_lshrrev_b32 v8, 1, v5
    v_lshlrev_b32 v8, 9, v8
    v_lshl_add_u32 v8, v4, 4, v8
    v_and_b32 v9, 1, v5
    v_lshl_add_u32 v8, v9, 3, v8
    v_add_u32 v9, 4096, v8
    v_lshlrev_b32 v17, 3, v5
    s_mul_i32 s34, s13, 160""")
    for c in range(5):
        k.vm(f"buffer_load_dwordx2 v[{HR+2*c}:{HR+2*c+1}], v{8 if c < 4 else 9}, s[16:19], s33 offen offset:{1024*(c%4)} {HO}")
    for c in range(5):
        k.vm(f"buffer_load_dwordx2 v[{BR+2*c}:{BR+2*c+1}], v17, s[8:11], s34 offen offset:{32*c}", "res")
    W2B.go(99)
    k.i(f"""s_mul_i32 s21, s12, 196608
    s_mul_i32 s22, s20, 12288
    s_add_u32 s21, s21, s22
    s_add_u32 s21, s21, {H1}
    s_lshl_b32 s25, s12, 6
    s_lshl_b32 s33, s20, 4
    s_add_u32 s25, s25, s33
    v_add_u32 v6, s25, v4
    v_mul_u32_u24 v7, 1280, v6
    v_lshl_add_u32 v7, v5, 3, v7
    s_mul_i32 s33, s20, 15360
    v_add_u32 v13, s33, v3""")
    for j in range(4):
        k.i(f"s_add_u32 s33, s20, {j}\ns_and_b32 s33, s33, 3\ns_mul_i32 s33, s33, 49152\nv_add_u32 v{8+j}, s33, v3")
    for j in range(1, 4):
        k.i(f"s_sub_u32 s33, s20, {j}\ns_and_b32 s33, s33, 3\ns_mul_i32 s33, s33, 15360\ns_add_u32 s33, s33, {(j-1)*5120}\nv_add_u32 v{13+j}, s33, v3")
    srd(8, POUT, 2621440)
    poll_row(F3, 18, O('slp3', 0))
    stamp(16)
    Q = BG()
    for i in range(48):
        t, j = divmod(i, 4)
        r = RING + 16*(t % NB) + 4*j
        Q.add(f"buffer_load_dwordx4 v[{r}:{r+3}], v{8+j}, s[16:19], s21 offen offset:{1024*(t%4)} {HO}", f"s{t}_{j}", post=("s_add_u32 s21, s21, 4096" if i % 16 == 15 else ""))
    Q.go(4*(NB-1))
    XF = 216
    k.wait(vm="res")
    k.i("s_mov_b32 s33, 0xffff0000")
    for j in range(10):
        k.i(f"v_lshlrev_b32 v{XF+2*j}, 16, v{HR+j}\nv_and_b32 v{XF+2*j+1}, s33, v{HR+j}")
        k.i(f"v_lshlrev_b32 v{XF+20}, 16, v{BR+j}\nv_and_b32 v{XF+21}, s33, v{BR+j}")
        k.i(f"v_pk_add_f32 v[{XF+2*j}:{XF+2*j+1}], v[{XF+2*j}:{XF+2*j+1}], v[{XF+20}:{XF+21}]")
    def red_w(j):
        for c in range(5):
            r = ACC + 20*j + 4*c
            k.lg(f"ds_write_b128 v13, v[{r}:{r+3}] offset:{(j-1)*5120 + 1024*c}")
    order = [(t, j) for t in range(10) for j in range(4)] + [(t, j) for j in (1, 2, 3, 0) for t in (10, 11)]
    for n, (t, j) in enumerate(order):
        k.wait(vm=f"s{t}_{j}")
        if n == 4: cst(11)
        if n == 40: cst(13)
        for c in range(5):
            d = vr(ACC + (5*j+c)*4, 4)
            k.i(f"v_mfma_f32_16x16x32_bf16 {d}, {ar(W2R[5*t+c], 4)}, {vr(RING+16*(t%NB)+4*j, 4)}, {'0' if t == 0 else d}")
            if c == 1: Q.go()
        if n in (42, 44, 46): red_w((n - 40)//2)
    stamp(17)
    k.wait(lg="all"); k.i("s_barrier")
    RR = 120
    for j in range(1, 4):
        for c in range(5):
            r = RR + 20*(j-1) + 4*c
            k.lg(f"ds_read_b128 v[{r}:{r+3}], v{13+j} offset:{1024*c}", f"r{j}_{c}")
    for c in range(5):
        for h in range(2):
            d = XF + 4*c + 2*h; a = ACC + 4*c + 2*h
            k.i(f"v_pk_add_f32 v[{d}:{d+1}], v[{d}:{d+1}], v[{a}:{a+1}]")
    for j in range(1, 4):
        for c in range(5):
            k.wait(lg=f"r{j}_{c}")
            for h in range(2):
                d = XF + 4*c + 2*h; a = RR + 20*(j-1) + 4*c + 2*h
                k.i(f"v_pk_add_f32 v[{d}:{d+1}], v[{d}:{d+1}], v[{a}:{a+1}]")
            if j == 3:
                k.i(f"v_cvt_pk_bf16_f32 v{HR+2*c}, v{XF+4*c}, v{XF+4*c+1}\nv_cvt_pk_bf16_f32 v{HR+2*c+1}, v{XF+4*c+2}, v{XF+4*c+3}")
                k.vm(f"buffer_store_dwordx2 v[{HR+2*c}:{HR+2*c+1}], v7, s[8:11], s34 offen offset:{32*c} {OPT.get('opol', '')}")
    k.i(f"""s_or_b32 s33, s45, s20
    s_cmp_lg_u32 s33, 0
    s_cbranch_scc1 p4_noep
    v_mov_b32 v4, s44
    v_mov_b32 v5, {CB}
    s_mov_b64 exec, 1
    buffer_store_dword v4, v5, s[16:19], 0 offen sc1
    s_mov_b64 exec, -1""")
    k.label("p4_noep")

def stamp_out():
    if not OPT["stamps"]: return
    if OPT.get("enc") is not None:
        e = O("enc", 0)
        k.i(f"""s_waitcnt vmcnt(0) lgkmcnt(0)
        s_memrealtime s[100:101]
        s_waitcnt lgkmcnt(0)
        s_sub_u32 s4, s{64+2*e}, s64
        s_lshl_b32 s4, s4, 2
        s_add_u32 s4, s4, 4000
        encl:
        s_memrealtime s[6:7]
        s_waitcnt lgkmcnt(0)
        s_sub_u32 s6, s6, s64
        s_cmp_lt_u32 s6, s4
        s_cbranch_scc1 encl""")
        return
    n = NSTAMP
    k.i("s_waitcnt vmcnt(0) lgkmcnt(0)")
    k.i(f"s_memrealtime s[{64+2*n}:{65+2*n}]")
    k.i("s_waitcnt lgkmcnt(0)")
    k.i(f"s_lshl_b32 s3, s45, 2\ns_add_u32 s3, s3, s20\ns_lshl_b32 s3, s3, 7\ns_add_u32 s3, s3, 0x2000000\nv_mov_b32 v1, s3")
    for j in range(n+1): k.i(f"v_mov_b32 v{2+j}, s{64+2*j}")
    k.i("s_mov_b64 exec, 1")
    for j in range(n+1): k.i(f"global_store_dword v1, v{2+j}, s[14:15] offset:{4*j}")

def emit(path):
    global k
    k = Kern(KN)
    phase0(); phase1(); phase2(); phase3(); phase4(); stamp_out()
    k.label("kend"); k.i("s_endpgm")
    body, added = hazard_pass(k.L, verbose=bool(OPT.get("vnop")))
    print("instrs", len(body), "nop states added", added, file=sys.stderr)
    out = ["; pre-LN linear-attention block + squared-ReLU MLP, one persistent launch (256 workgroups, flag hand-offs in d_ws)",
           "; @launch grid=(256,1,1) block=(256,1,1) lds=163840",
           '.amdgcn_target "amdgcn-amd-amdhsa--gfx950"', ".text", f".globl {KN}", ".p2align 8", f".type {KN},@function", f"{KN}:"]
    out += [("" if (l.endswith(":") or l.startswith(";")) else "    ") + l for l in body]
    out += ['.section .rodata,"a"', ".p2align 6", f".amdhsa_kernel {KN}", "  .amdhsa_next_free_vgpr 512", "  .amdhsa_next_free_sgpr 102",
            "  .amdhsa_accum_offset 256", "  .amdhsa_group_segment_fixed_size 0", "  .amdhsa_kernarg_size 88",
            "  .amdhsa_user_sgpr_count 2", "  .amdhsa_user_sgpr_kernarg_segment_ptr 1",
            "  .amdhsa_system_sgpr_workgroup_id_x 1", ".end_amdhsa_kernel"]
    open(path, "w").write("\n".join(out) + "\n")

if __name__ == "__main__":
    for a in sys.argv[2:]:
        kk, v = a.split("=")
        OPT[kk] = {"True": True, "False": False, "none": ""}.get(v, v.replace("_", " "))
    emit(sys.argv[1])
```

```python
import sys
from asmlib import *

NAME = "sequential_preLN__linear_attn_block__dense_activation_squared_relu__prompt"
KN = NAME + "_kernel"
CB = 0x0
F0B = CB + 0x1000; F2 = 0xC0000; F3 = 0xD0000; F0 = 0x90000; F1 = 0x98000
CS = 0x10000; KVA = 0x20000; ST = 0x40000
XN = 0x100000; WQ = 0x380000; WO = 0x600000; W1 = 0x700000; W2 = 0x900000
PQ = 0xB00000; HH = 0xE00000; H1 = 0x1200000; XC = 0x1800000
WSZ = 0x1B00000
LOG2E = 0x3fb8aa3b
OPT = dict(tl1=6, tl3=6, pqe=0, stamps=False, cold="nt", pre1=2, wo_pre=40, wo_w=0, w1_w=12, sleep=8, slp0=20, lnexact=True)
HO = "sc1"
UL = 131072
def O(n, d): return int(OPT.get(n, d))

def magic(C, maxq):
    for sh in range(4, 24):
        m = -(-(1 << sh) // C)
        if m * maxq < (1 << 32) and m < (1 << 24) and all((q * m) >> sh == q // C for q in range(maxq)): return m, sh
    raise ValueError

k = None
def srd(d, base, size):
    k.i(f"s_mov_b32 s{d}, s{base}\ns_mov_b32 s{d+1}, s{base+1}\ns_mov_b32 s{d+2}, {size}\ns_mov_b32 s{d+3}, 0x20000")
def bf16r(d, s):
    k.i(f"v_cvt_pk_bf16_f32 v{d}, v{s}, v{s}\nv_lshlrev_b32 v{d}, 16, v{d}")
NSTAMP = 18
def stamp(idx, grp=None):
    if not OPT["stamps"]: return
    f = OPT.get("focus")
    lo = {"p0": (5, 18), "p1": (8, 18), "p1e": (8, 18), "p2": (13, 18), "clk": (1, 18)}.get(f)
    if grp is None and lo and lo[0] <= idx < lo[1]: return
    if grp is not None and grp != f: return
    k.i(f"s_memrealtime s[{64+2*idx}:{65+2*idx}]")
def cst(slot):
    if OPT["stamps"] and OPT.get("focus") == "clk":
        k.i(f"s_memrealtime s[{64+2*slot}:{65+2*slot}]\ns_memtime s[{66+2*slot}:{67+2*slot}]")
def snap(): return (k.vm_n, dict(k.vm_tags), k.vm_done, k.lg_n, dict(k.lg_tags), k.lg_done)
def rest(s): k.vm_n, k.vm_tags, k.vm_done, k.lg_n, k.lg_tags, k.lg_done = s[0], dict(s[1]), s[2], s[3], dict(s[4]), s[5]

class capture:
    def __enter__(self):
        self.save = (k.L, k.auto, k._iss, k._mf); k.L = []; k.auto = None; return self
    def __exit__(self, *a):
        self.lines = k.L; k.L, k.auto, k._iss, k._mf = self.save
def merge(main, fill, per):
    fill = list(fill)
    for m in main:
        m()
        for _ in range(per):
            if fill: k.i(fill.pop(0))
    return fill

PX, PWQ, PWO, PW1, PB1, PW2, PB2, POUT = 48, 50, 52, 56, 58, 60, 62, 46

npoll = 0
def check4(vt):
    k.i(f"v_xor_b32 v{vt}, s44, v{vt}\nv_xor_b32 v{vt+1}, s44, v{vt+1}\nv_xor_b32 v{vt+2}, s44, v{vt+2}\nv_xor_b32 v{vt+3}, s44, v{vt+3}")
    k.i(f"v_or3_b32 v{vt}, v{vt}, v{vt+1}, v{vt+2}\nv_or_b32 v{vt}, v{vt}, v{vt+3}\nv_cmp_ne_u32 vcc, 0, v{vt}")
def poll(vaddr, soff, vt, wide=False, w0=True, slp=0):
    global npoll
    npoll += 1
    L = f"poll{npoll}"
    au = k.auto; k.auto = None
    if w0: k.i(f"s_cmp_lg_u32 s20, 0\ns_cbranch_scc1 {L}d")
    if slp: k.i(f"s_sleep {slp}")
    k.i("s_mov_b32 s43, 0x20000")
    k.label(L)
    if OPT.get("apoll"):
        if wide:
            k.i(f"v_mov_b32 v{vt}, 0\nv_mov_b32 v{vt+1}, 0\nv_mov_b32 v{vt+2}, 0\nv_mov_b32 v{vt+3}, 0")
            k.i(f"buffer_atomic_or_x2 v[{vt}:{vt+1}], v{vaddr}, s[16:19], s{soff} offen sc0\nbuffer_atomic_or_x2 v[{vt+2}:{vt+3}], v{vaddr}, s[16:19], s{soff} offen offset:8 sc0\ns_waitcnt vmcnt(0)")
            check4(vt)
        else:
            k.i(f"v_mov_b32 v{vt}, 0\nbuffer_atomic_or v{vt}, v{vaddr}, s[16:19], s{soff} offen sc0\ns_waitcnt vmcnt(0)\nv_cmp_ne_u32 vcc, s44, v{vt}")
    else:
        if wide:
            k.i(f"buffer_load_dwordx4 v[{vt}:{vt+3}], v{vaddr}, s[16:19], s{soff} offen {OPT.get('ppol', 'sc1')}\ns_waitcnt vmcnt(0)")
            check4(vt)
        else:
            k.i(f"buffer_load_dword v{vt}, v{vaddr}, s[16:19], s{soff} offen {OPT.get('ppol', 'sc1')}\ns_waitcnt vmcnt(0)\nv_cmp_ne_u32 vcc, s44, v{vt}")
    k.i(f"s_cbranch_vccz {L}d")
    if O("sleep", 4): k.i(f"s_sleep {O('sleep', 4)}")
    k.i(f"s_sub_u32 s43, s43, 1\ns_cbranch_scc0 {L}")
    k.label(L + "d")
    k.auto = au
nsig = 0
def signal(mask, code, vt, dual=False):
    global nsig
    nsig += 1
    L = f"sig{nsig}"
    au = k.auto; k.auto = None
    k.i(f"s_cmp_lg_u32 s20, 1\ns_cbranch_scc1 {L}")
    k.i(code)
    if dual: k.i(f"v_mov_b32 v{vt}, s44\ns_mov_b64 exec, {mask}\nbuffer_store_dword v{vt}, v{vt+1}, s[16:19], s42 offen offset:2048")
    k.i(f"v_mov_b32 v{vt}, s44\ns_mov_b64 exec, {mask}\nbuffer_store_dword v{vt}, v{vt+1}, s[16:19], s42 offen {OPT.get('spol', 'sc1')}\ns_mov_b64 exec, -1")
    k.label(L)
    k.auto = au
def sig_all(base, vt):
    signal(0xff, f"v_lshlrev_b32 v{vt+1}, 12, v1\ns_lshr_b32 s42, s45, 3\ns_lshl_b32 s42, s42, 7\ns_and_b32 s43, s45, 7\ns_lshl_b32 s43, s43, 2\ns_add_u32 s42, s42, s43\ns_add_u32 s42, s42, {base}", vt)
def sig_row(base, vt, line, pos):
    signal(1, f"v_mov_b32 v{vt+1}, 0\n{line}\n{pos}\ns_lshl_b32 s42, s42, 7\ns_lshl_b32 s43, s43, 2\ns_add_u32 s42, s42, s43\ns_lshl_b32 s43, s26, 12\ns_add_u32 s42, s42, s43\ns_add_u32 s42, s42, {base}", vt, dual=bool(OPT.get("dual")))
ntree = 0
def poll_all(base, vt, slp):
    global ntree
    k.i(f"s_and_b32 s42, s2, 7\ns_lshl_b32 s42, s42, 12\ns_add_u32 s42, s42, {base}")
    k.i(f"v_lshrrev_b32 v{vt+4}, 1, v1\nv_lshlrev_b32 v{vt+4}, 7, v{vt+4}\nv_and_b32 v{vt}, 1, v1\nv_lshl_add_u32 v{vt+4}, v{vt}, 4, v{vt+4}")
    if not (OPT.get("tree") and (base == F0 or OPT.get("tree1"))):
        poll(vt+4, 42, vt, wide=True, slp=slp); return
    ntree += 1; L = f"tree{ntree}"
    NL = O("tree", 1)
    k.i(f"s_cmp_lg_u32 s20, 0\ns_cbranch_scc1 {L}d\ns_and_b32 s41, s2, {8*NL-1}\ns_lshl_b32 s41, s41, 7\ns_add_u32 s41, s41, {base + 0x10000}\ns_cmp_ge_u32 s2, {8*NL}\ns_cbranch_scc1 {L}m")
    poll(vt+4, 42, vt, wide=True, w0=False, slp=slp)
    k.i(f"v_mov_b32 v{vt}, s44\nv_mov_b32 v{vt+1}, 0\ns_mov_b64 exec, 1\nbuffer_store_dword v{vt}, v{vt+1}, s[16:19], s41 offen sc1\ns_mov_b64 exec, -1\ns_branch {L}d")
    k.label(L + "m")
    k.i(f"v_mov_b32 v{vt+1}, 0")
    sl = OPT.get("sleep"); OPT["sleep"] = 1
    poll(vt+1, 41, vt, w0=False)
    if sl is None: del OPT["sleep"]
    else: OPT["sleep"] = sl
    k.label(L + "d")
    k.i(f"s_mov_b32 s41, {LOG2E:#x}")
def poll_row(base, vt, slp):
    global npoll
    k.i(f"v_and_b32 v{vt+1}, 3, v1\nv_lshlrev_b32 v{vt+1}, 2, v{vt+1}\ns_lshl_b32 s42, s26, 5\ns_add_u32 s42, s42, s20\ns_lshl_b32 s42, s42, 7\ns_add_u32 s42, s42, {base}")
    if not OPT.get("dual"):
        poll(vt+1, 42, vt, w0=False, slp=slp)
    else:
        npoll += 1; L = f"poll{npoll}"
        au = k.auto; k.auto = None
        if slp: k.i(f"s_sleep {slp}")
        k.i(f"v_bfe_u32 v{vt}, v1, 2, 1\nv_lshl_add_u32 v{vt+1}, v{vt}, 11, v{vt+1}\ns_mov_b32 s43, 0x20000")
        k.label(L)
        k.i(f"""buffer_load_dword v{vt}, v{vt+1}, s[16:19], s42 offen sc1
        s_waitcnt vmcnt(0)
        v_cmp_eq_u32 vcc, s44, v{vt}
        s_lshr_b32 s41, vcc_lo, 4
        s_or_b32 s41, s41, vcc_lo
        s_and_b32 s41, s41, 15
        s_cmp_eq_u32 s41, 15
        s_cbranch_scc1 {L}d
        s_sleep {O('sleepd', 2)}
        s_sub_u32 s43, s43, 1
        s_cbranch_scc0 {L}""")
        k.label(L + "d")
        k.auto = au
    k.vm_done = k.vm_n

class BG:
    def __init__(self): self.q = []
    def add(self, ins, tag=None, pre="", post=""): self.q.append((pre, ins, post, tag))
    def go(self, n=1):
        for _ in range(n):
            if self.q:
                pre, ins, post, tag = self.q.pop(0)
                if OPT.get("nobg") and tag is not None and tag[:2] in ("wo", "w1", "w2"):
                    k.vm_tags[tag] = -1; continue
                k.i(pre); k.vm(ins, tag); k.i(post)
    def left(self): return len(self.q)

def phi4(a, dst, T):
    k.i(f"v_pk_mul_f32 v[{T}:{T+1}], v[{a}:{a+1}], s[40:41]")
    k.i(f"v_pk_mul_f32 v[{T+2}:{T+3}], v[{a+2}:{a+3}], s[40:41]")
    for j in range(4): k.i(f"v_exp_f32_e64 v{T+j}, v{T+j} clamp")
    for j in range(4): k.i(f"v_max_f32 v{T+4+j}, 0, v{a+j}")
    k.i(f"v_pk_add_f32 v[{T}:{T+1}], v[{T}:{T+1}], s[38:39]")
    k.i(f"v_pk_add_f32 v[{T+2}:{T+3}], v[{T+2}:{T+3}], s[38:39]")
    k.i(f"v_pk_add_f32 v[{T}:{T+1}], v[{T}:{T+1}], v[{T+4}:{T+5}]")
    k.i(f"v_pk_add_f32 v[{T+2}:{T+3}], v[{T+2}:{T+3}], v[{T+6}:{T+7}]")
    k.i(f"v_cvt_pk_bf16_f32 v{dst}, v{T}, v{T+1}")
    k.i(f"v_cvt_pk_bf16_f32 v{dst+1}, v{T+2}, v{T+3}")

ROWOFF = [[0, 4, 20, 24, 8], [12, 16, 28, 32, 36]]

def phase0():
    cold = OPT["cold"]
    stamp(0)
    k.i(f"""s_load_dwordx16 s[48:63], s[0:1], 0
    s_load_dwordx2 s[14:15], s[0:1], 80
    s_load_dwordx2 s[46:47], s[0:1], 64
    s_getpc_b64 s[4:5]
    pcl:
    s_cmp_ge_u32 s2, 256
    s_cbranch_scc1 kend
    s_lshr_b32 s25, s2, 3
    s_and_b32 s6, s25, 7
    s_lshl_b32 s6, s6, 13
    v_lshl_add_u32 v30, v0, 7, s6
    v_min_u32 v30, kend-pcl, v30
    v_cmp_gt_u32 vcc, 64, v0
    v_and_b32 v1, 63, v0
    v_lshrrev_b32 v2, 6, v0
    s_and_saveexec_b64 s[6:7], vcc
    s_cbranch_execz p0_nopf
    {'s_nop 0' if OPT.get('nopf') else 'global_load_dword v31, v30, s[4:5]'}
    p0_nopf:
    s_mov_b64 exec, s[6:7]
    v_lshlrev_b32 v3, 4, v1
    v_readfirstlane_b32 s20, v2
    s_and_b32 s24, s2, 7
    s_lshr_b32 s26, s24, 1
    s_lshl_b32 s26, s26, 2
    s_lshr_b32 s27, s25, 3
    s_add_u32 s26, s26, s27
    s_and_b32 s27, s24, 1
    s_lshl_b32 s27, s27, 3
    s_and_b32 s25, s25, 7
    s_add_u32 s27, s27, s25
    s_lshl_b32 s45, s26, 4
    s_add_u32 s45, s45, s27
    v_bfe_u32 v28, v1, 2, 2
    v_and_b32 v29, 3, v1
    v_mov_b32 v228, 0
    s_cmp_ge_u32 s45, 128
    s_cbranch_scc1 p0_w""")
    X = 208; F = 32
    k.i(f"""v_lshrrev_b32 v4, 4, v0
    v_and_b32 v5, 15, v0
    s_lshl_b32 s21, s45, 4
    v_add_u32 v6, s21, v4
    v_mul_u32_u24 v6, 1280, v6
    v_lshl_add_u32 v6, v5, 4, v6
    s_mov_b32 s10, 2621440
    s_mov_b32 s11, 0x20000
    s_waitcnt lgkmcnt(0)
    s_mov_b32 s8, s{PX}
    s_mov_b32 s9, s{PX+1}""")
    stamp(9, "p0")
    for i in range(5):
        k.i(f"buffer_load_dwordx4 v[{X+4*i}:{X+4*i+3}], v6, s[8:11], 0 offen offset:{256*i} {OPT.get('coldx', cold)}")
    stamp(5, "p0")
    k.i(f"s_load_dword s44, s[14:15], {CB}")
    srd(16, 14, WSZ)
    k.i(f"""s_lshr_b32 s21, s45, 1
    s_mul_i32 s21, s21, 40960
    s_and_b32 s22, s45, 1
    s_lshl_b32 s22, s22, 8
    s_add_u32 s21, s21, s22
    s_add_u32 s21, s21, {XN}
    v_lshrrev_b32 v7, 1, v5
    v_lshlrev_b32 v7, 10, v7
    v_and_b32 v6, 1, v5
    v_lshlrev_b32 v6, 9, v6
    v_lshl_add_u32 v7, v4, 4, v7
    v_add_u32 v7, v7, v6
    s_mov_b32 s23, 0xffff0000
    s_mov_b32 s22, 0x3f803f80
    v_mov_b32 v112, 0
    v_mov_b32 v113, 0
    v_mov_b32 v114, 0
    v_mov_b32 v115, 0
    v_lshrrev_b32 v30, 4, v1""")
    for i in range(5):
        k.i(f"s_waitcnt vmcnt({4-i})")
        if i == 0: stamp(7, "p0")
        for j in range(4*i, 4*i+4):
            k.i(f"v_dot2_f32_bf16 v{112+2*(j&1)}, v{X+j}, s22, v{112+2*(j&1)}")
            k.i(f"v_dot2_f32_bf16 v{113+2*(j&1)}, v{X+j}, v{X+j}, v{113+2*(j&1)}")
    unp = []
    for j in range(20): unp += [f"v_lshlrev_b32 v{F+2*j}, 16, v{X+j}", f"v_and_b32 v{F+2*j+1}, s23, v{X+j}"]
    def U(n):
        for _ in range(n):
            if unp: k.i(unp.pop(0))
    U(3)
    k.i("v_pk_add_f32 v[112:113], v[112:113], v[114:115]")
    for s in (8, 4, 2, 1):
        U(2)
        k.i(f"v_add_f32_dpp v112, v112, v112 row_ror:{s} row_mask:0xf bank_mask:0xf")
        k.i(f"v_add_f32_dpp v113, v113, v113 row_ror:{s} row_mask:0xf bank_mask:0xf")
    k.i("v_mul_f32 v112, 0x3acccccd, v112\nv_mul_f32 v113, 0x3acccccd, v113\nv_fma_f32 v113, -v112, v112, v113\nv_max_f32 v113, 0, v113")
    bf16r(112, 112); bf16r(113, 113)
    k.i("v_add_f32 v113, 0x3727c5ac, v113")
    bf16r(113, 113)
    k.i("v_sqrt_f32 v113, v113"); U(1)
    bf16r(113, 113)
    k.i("v_rcp_f32 v114, v113")
    U(99)
    Y = 72
    for j in range(20): k.i(f"v_pk_add_f32 v[{F+2*j}:{F+2*j+1}], v[{F+2*j}:{F+2*j+1}], v[112:113] op_sel_hi:[1,0] neg_lo:[0,1] neg_hi:[0,1]")
    for j in range(20): k.i(f"v_cvt_pk_bf16_f32 v{Y+j}, v{F+2*j}, v{F+2*j+1}")
    for j in range(20): k.i(f"v_lshlrev_b32 v{F+2*j}, 16, v{Y+j}\nv_and_b32 v{F+2*j+1}, s23, v{Y+j}")
    for i in range(5):
        for j in range(4*i, 4*i+4):
            k.i(f"v_pk_mul_f32 v[{F+2*j}:{F+2*j+1}], v[{F+2*j}:{F+2*j+1}], v[114:115] op_sel_hi:[1,0]")
        for j in range(4*i, 4*i+4):
            k.i(f"v_cvt_pk_bf16_f32 v{Y+j}, v{F+2*j}, v{F+2*j+1}")
        k.i(f"buffer_store_dwordx4 v[{Y+4*i}:{Y+4*i+3}], v7, s[16:19], s21 offen {HO}")
        if i < 4: k.i("s_add_u32 s21, s21, 8192")
    k.i(f"v_mov_b32 v228, v7\ns_add_u32 s55, s21, {XC - XN - 4*8192}")
    k.i("s_branch p0_drain")
    k.label("p0_w")
    m, sh = magic(80, 320)
    k.i(f"""s_cmp_ge_u32 s45, 248
    s_cbranch_scc1 p0_zero
    s_sub_u32 s21, s45, 128
    s_mul_i32 s30, s21, 171
    s_lshr_b32 s30, s30, 9
    s_mul_i32 s31, s30, 3
    s_sub_u32 s31, s21, s31
    s_mul_i32 s21, s30, 61440
    s_mul_i32 s22, s31, 1280
    s_add_u32 s21, s21, s22
    s_lshl_b32 s22, s20, 2
    s_mul_i32 s23, s20, 5120
    s_mov_b32 s10, 2457600
    s_mov_b32 s11, 0x20000""")
    for i in range(5):
        k.i(f"""v_add_u32 v4, {64*i}, v1
        v_mul_u32_u24 v5, {m}, v4
        v_lshrrev_b32 v5, {sh}, v5
        v_mul_u32_u24 v6, 80, v5
        v_sub_u32 v6, v4, v6
        v_lshlrev_b32 v6, 4, v6
        v_lshlrev_b32 v7, 6, v5
        v_add_u32 v5, s22, v5
        v_mul_u32_u24 v5, 3840, v5
        v_xad_u32 v{12+i}, v6, v7, v5""")
    k.i(f"s_waitcnt lgkmcnt(0)\ns_mov_b32 s8, s{PWQ}\ns_mov_b32 s9, s{PWQ+1}")
    stamp(9, "p0")
    for i in range(5):
        k.i(f"s_add_u32 m0, s23, {1024*i}\nbuffer_load_dwordx4 v{12+i}, s[8:11], s21 offen {cold} lds")
    stamp(5, "p0")
    k.i(f"s_load_dword s44, s[14:15], {CB}")
    srd(16, 14, WSZ)
    k.i(f"""v_lshrrev_b32 v30, 4, v1
    v_lshrrev_b32 v4, 1, v30
    v_lshl_add_u32 v4, v4, 3, v28
    v_mul_u32_u24 v4, 1280, v4
    v_and_b32 v5, 1, v30
    v_lshlrev_b32 v5, 5, v5
    v_lshl_add_u32 v5, v29, 3, v5
    v_lshlrev_b32 v6, 6, v28
    s_lshl_b32 s21, s30, 12
    s_add_u32 s21, s21, {WQ}
    s_cmp_lg_u32 s31, 0
    s_cbranch_scc1 p0_wkv
    s_lshl_b32 s22, s20, 6
    v_add_u32 v5, s22, v5
    v_xad_u32 v7, v5, v6, v4
    s_lshl_b32 s22, s20, 10
    s_add_u32 s21, s21, s22
    s_add_u32 s21, s21, {11*163840}
    s_waitcnt vmcnt(0)""")
    stamp(7, "p0")
    k.i("s_barrier")
    for m_ in range(5):
        r = 32 + 4*m_
        k.lg(f"ds_read_b64_tr_b16 v[{r}:{r+1}], v7 offset:{256*m_}")
        k.lg(f"ds_read_b64_tr_b16 v[{r+2}:{r+3}], v7 offset:{256*m_+4*1280}", f"q{m_}")
    for m_ in range(5):
        r = 32 + 4*m_
        k.wait(lg=f"q{m_}")
        k.i(f"buffer_store_dwordx4 v[{r}:{r+3}], v3, s[16:19], s21 offen {HO}\ns_add_u32 s21, s21, 163840")
    k.i("s_branch p0_drain")
    k.label("p0_wkv")
    k.i("""s_and_b32 s22, s20, 1
    s_lshr_b32 s23, s20, 1
    s_lshl_b32 s24, s22, 6
    s_mul_i32 s25, s23, 120
    s_add_u32 s24, s24, s25
    v_add_u32 v5, s24, v5
    s_lshl_b32 s24, s31, 1
    s_add_u32 s24, s24, s22
    s_sub_u32 s24, s24, 2
    s_lshl_b32 s24, s24, 10
    s_add_u32 s21, s21, s24
    s_mul_i32 s24, s23, 163840
    s_add_u32 s21, s21, s24""")
    for i in range(6):
        k.i(f"v_add_u32 v{12+i}, {240*i}, v5\nv_min_u32 v{12+i}, 1272, v{12+i}\nv_xad_u32 v{12+i}, v{12+i}, v6, v4")
    k.i("s_waitcnt vmcnt(0)")
    stamp(7, "p0")
    k.i("s_barrier")
    for i in range(6):
        r = 32 + 4*i
        k.lg(f"ds_read_b64_tr_b16 v[{r}:{r+1}], v{12+i}")
        k.lg(f"ds_read_b64_tr_b16 v[{r+2}:{r+3}], v{12+i} offset:{4*1280}", f"kv{i}")
    for i in range(6):
        r = 32 + 4*i
        if i == 5: k.i("s_cmp_lg_u32 s23, 0\ns_cbranch_scc1 p0_drain")
        k.wait(lg=f"kv{i}")
        k.i(f"buffer_store_dwordx4 v[{r}:{r+3}], v3, s[16:19], s21 offen {HO}\ns_add_u32 s21, s21, 327680")
    k.i("s_branch p0_drain")
    k.label("p0_zero")
    k.i(f"""s_sub_u32 s21, s45, 248
    s_mul_i32 s21, s21, 6720
    s_add_u32 s21, s21, {KVA}
    v_lshlrev_b32 v4, 4, v0
    v_mov_b32 v8, 0
    v_mov_b32 v9, 0
    v_mov_b32 v10, 0
    v_mov_b32 v11, 0
    v_lshrrev_b32 v30, 4, v1
    s_mov_b32 s10, 6720
    s_mov_b32 s11, 0x20000
    s_waitcnt lgkmcnt(0)
    s_add_u32 s8, s14, s21
    s_addc_u32 s9, s15, 0
    buffer_store_dwordx4 v[8:11], v4, s[8:11], 0 offen {HO}
    v_add_u32 v4, 4096, v4
    buffer_store_dwordx4 v[8:11], v4, s[8:11], 0 offen {HO}
    s_load_dword s44, s[14:15], {CB}""")
    stamp(9, "p0"); stamp(5, "p0"); stamp(7, "p0")
    srd(16, 14, WSZ)
    k.label("p0_drain")
    stamp(1)
    k.i("s_waitcnt vmcnt(0) lgkmcnt(0)\ns_add_u32 s44, s44, 1\ns_barrier")
    k.reset_counts()
    stamp(2)
    sig_all(F0, 4)
    k.i(f"""s_cmp_lg_u32 s20, 2
    s_cbranch_scc1 p0_nob
    v_lshlrev_b32 v4, 7, v1
    v_min_u32 v5, 3068, v4
    v_min_u32 v4, 1276, v4
    global_load_dword v31, v5, s[{PB1}:{PB1+1}]
    global_load_dword v31, v4, s[{PB2}:{PB2+1}]""")
    k.label("p0_nob")
    if not OPT.get("ulate"): unit_issue("")

def unit_issue(sfx):
    cold = OPT["cold"]
    UN = 0 if OPT.get("nounit") else 232
    k.i(f"""s_cmp_ge_u32 s45, {UN}
    s_cbranch_scc1 p0_ui{sfx}d
    s_sub_u32 s6, s20, 1
    s_mul_i32 s5, s6, 7168
    s_cmp_ge_u32 s45, 136
    s_cbranch_scc1 p0_ui{sfx}_w2
    s_cmp_ge_u32 s45, 40
    s_cbranch_scc1 p0_ui{sfx}_w1""")
    srd(8, PWO, 819200)
    k.i(f"""s_mul_i32 s35, s45, 26
    s_lshr_b32 s35, s35, 8
    s_mul_i32 s36, s35, 10
    s_sub_u32 s36, s45, s36
    s_mul_i32 s4, s35, 204800
    s_movk_i32 s25, 1280
    s_branch p0_ui{sfx}_128""")
    k.label(f"p0_ui{sfx}_w1")
    srd(8, PW1, 1966080)
    k.i(f"""s_sub_u32 s34, s45, 40
    s_mul_i32 s35, s34, 43
    s_lshr_b32 s35, s35, 10
    s_mul_i32 s36, s35, 24
    s_sub_u32 s36, s34, s36
    s_mul_i32 s4, s35, 491520
    s_movk_i32 s25, 3072""")
    k.label(f"p0_ui{sfx}_128")
    k.i(f"""s_cmp_eq_u32 s20, 0
    s_cbranch_scc1 p0_ui{sfx}d
    s_lshl_b32 s7, s36, 7
    s_add_u32 s4, s4, s7
    v_lshrrev_b32 v52, 3, v1
    s_mul_i32 s7, s6, 56
    v_add_u32 v52, s7, v52
    v_and_b32 v53, 7, v1
    v_lshlrev_b32 v53, 4, v53
    v_and_b32 v54, 2, v52
    v_lshlrev_b32 v54, 5, v54
    v_mul_lo_u32 v52, v52, s25
    v_xad_u32 v52, v53, v54, v52
    s_lshl_b32 s25, s25, 3""")
    for i in range(7):
        k.i(f"s_add_u32 m0, s5, {UL+1024*i}\nbuffer_load_dwordx4 v52, s[8:11], s4 offen {cold} lds\ns_add_u32 s4, s4, s25")
    k.i(f"s_branch p0_ui{sfx}d")
    k.label(f"p0_ui{sfx}_w2")
    srd(8, PW2, 1966080)
    m, sh = magic(40, 1344)
    k.i(f"""s_sub_u32 s34, s45, 136
    s_lshr_b32 s35, s34, 1
    s_and_b32 s36, s34, 1
    s_cmp_eq_u32 s20, 0
    s_cbranch_scc1 p0_ui{sfx}d
    s_mul_i32 s4, s35, 40960
    s_mul_i32 s7, s36, 640
    s_add_u32 s4, s4, s7
    s_mul_i32 s7, s6, 448
    v_add_u32 v56, s7, v1""")
    for i in range(7):
        k.i(f"""v_add_u32 v52, {64*i}, v56
        v_mul_u32_u24 v53, {m}, v52
        v_lshrrev_b32 v53, {sh}, v53
        v_mul_u32_u24 v54, 40, v53
        v_sub_u32 v54, v52, v54
        v_lshlrev_b32 v54, 4, v54
        v_and_b32 v55, 2, v53
        v_lshlrev_b32 v55, 4, v55
        v_and_b32 v57, 16, v53
        v_lshl_or_b32 v55, v57, 2, v55
        v_mul_u32_u24 v53, 1280, v53
        v_xad_u32 v52, v54, v55, v53
        s_add_u32 m0, s5, {UL+1024*i}
        buffer_load_dwordx4 v52, s[8:11], s4 offen {cold} lds""")
    k.label(f"p0_ui{sfx}d")

def unit_proc(sfx):
    UN = 0 if OPT.get("nounit") else 232
    D0 = 32
    k.i(f"""s_cmp_ge_u32 s45, {UN}
    s_cbranch_scc1 up_end{sfx}
    s_cmp_ge_u32 s45, 136
    s_cbranch_scc1 up_w2{sfx}
    s_and_b32 s6, s20, 1
    s_lshr_b32 s7, s20, 1
    s_lshl_b32 s37, s36, 1
    s_add_u32 s37, s37, s6
    s_cmp_ge_u32 s45, 40
    s_cbranch_scc1 up_w1{sfx}""")
    k.i(f"""v_and_b32 v52, 1, v30
    v_lshrrev_b32 v53, 1, v29
    v_lshl_add_u32 v52, v52, 1, v53
    v_add_u32 v52, s35, v52
    v_and_b32 v52, 3, v52
    v_lshlrev_b32 v52, 4, v52
    v_and_b32 v53, 1, v29
    v_lshl_add_u32 v52, v53, 3, v52
    s_lshl_b32 s24, s6, 6
    v_add_u32 v52, s24, v52
    v_and_b32 v53, 2, v28
    v_lshlrev_b32 v53, 5, v53
    v_xor_b32 v52, v52, v53
    v_lshl_add_u32 v52, v28, 7, v52
    s_mul_i32 s24, s7, 10240
    s_add_u32 s24, s24, {UL}
    v_add_u32 v52, s24, v52
    v_lshrrev_b32 v54, 5, v1
    v_lshlrev_b32 v54, 4, v54
    s_mul_i32 s24, s37, 205
    s_lshr_b32 s24, s24, 10
    s_mul_i32 s25, s24, 5
    s_sub_u32 s25, s37, s25
    s_lshl_b32 s24, s24, 2
    s_add_u32 s24, s24, s35
    s_mul_i32 s24, s24, 10
    s_mul_i32 s4, s7, 5
    s_add_u32 s24, s24, s4
    s_mul_i32 s24, s24, 5
    s_add_u32 s24, s24, s25
    s_lshl_b32 s24, s24, 10
    s_add_u32 s24, s24, {WO}""")
    for uu in range(5):
        for h2 in range(2):
            m_ = 2*uu + h2
            K = 0
            for hi in range(2): K |= ((40*(m_//5) + ROWOFF[hi][m_ % 5]) * 128) << (16*hi)
            r = D0 + 4*uu + 2*h2
            k.i(f"s_mov_b32 s25, {K:#x}\nv_bfe_u32 v55, s25, v54, 16\nv_add_u32 v55, v55, v52")
            k.lg(f"ds_read_b64_tr_b16 v[{r}:{r+1}], v55", f"uo{uu}")
    for uu in range(5):
        r = D0 + 4*uu
        k.wait(lg=f"uo{uu}")
        k.i(f"buffer_store_dwordx4 v[{r}:{r+3}], v3, s[16:19], s24 offen {HO}\ns_add_u32 s24, s24, 5120")
    k.i(f"s_branch up_end{sfx}")
    k.label(f"up_w1{sfx}")
    k.i(f"""v_lshrrev_b32 v52, 1, v30
    v_lshl_add_u32 v52, v52, 3, v28
    v_and_b32 v53, 1, v30
    v_lshlrev_b32 v53, 5, v53
    v_lshl_add_u32 v53, v29, 3, v53
    s_lshl_b32 s24, s6, 6
    v_add_u32 v53, s24, v53
    v_and_b32 v54, 2, v28
    v_lshlrev_b32 v54, 5, v54
    v_lshlrev_b32 v52, 7, v52
    v_xad_u32 v52, v53, v54, v52
    s_mul_i32 s24, s7, 10240
    s_add_u32 s24, s24, {UL}
    v_add_u32 v52, s24, v52
    v_mov_b32 v56, 0
    s_mov_b32 s4, 0x3f803f80
    s_mul_i32 s24, s37, 171
    s_lshr_b32 s24, s24, 9
    s_mul_i32 s25, s24, 3
    s_sub_u32 s25, s37, s25
    s_mul_i32 s24, s24, 40
    s_mul_i32 s5, s35, 10
    s_add_u32 s24, s24, s5
    s_mul_i32 s5, s7, 5
    s_add_u32 s24, s24, s5
    s_mul_i32 s24, s24, 3
    s_add_u32 s24, s24, s25
    s_lshl_b32 s24, s24, 10
    s_add_u32 s24, s24, {W1}""")
    for ks in range(5):
        r = D0 + 4*ks
        k.lg(f"ds_read_b64_tr_b16 v[{r}:{r+1}], v52 offset:{ks*2048}")
        k.lg(f"ds_read_b64_tr_b16 v[{r+2}:{r+3}], v52 offset:{ks*2048+512}", f"u1{ks}")
    for ks in range(5):
        r = D0 + 4*ks
        k.wait(lg=f"u1{ks}")
        k.i(f"buffer_store_dwordx4 v[{r}:{r+3}], v3, s[16:19], s24 offen {HO}\ns_add_u32 s24, s24, 3072")
        for j in range(4): k.i(f"v_dot2_f32_bf16 v56, v{r+j}, s4, v56")
    k.i(f"""s_nop 2
    v_mov_b32 v57, v56
    s_lshl_b32 s24, s35, 1
    s_add_u32 s24, s24, s7
    v_permlane32_swap_b32 v56, v57
    s_mul_i32 s24, s24, 6144
    s_lshl_b32 s25, s37, 7
    s_add_u32 s24, s24, s25
    s_add_u32 s24, s24, {CS}
    v_add_f32 v56, v56, v57
    v_lshlrev_b32 v57, 2, v1
    s_mov_b64 exec, 0xffffffff
    buffer_store_dword v56, v57, s[16:19], s24 offen {HO}
    s_mov_b64 exec, -1
    s_branch up_end{sfx}""")
    k.label(f"up_w2{sfx}")
    k.i(f"""v_and_b32 v52, 1, v30
    v_lshlrev_b32 v52, 4, v52
    v_lshrrev_b32 v53, 1, v30
    v_lshl_add_u32 v52, v53, 2, v52
    v_add_u32 v52, v52, v28
    v_and_b32 v54, 2, v52
    v_lshlrev_b32 v54, 4, v54
    v_and_b32 v55, 16, v52
    v_lshl_or_b32 v54, v55, 2, v54
    v_mul_u32_u24 v52, 640, v52
    v_add_u32 v52, {UL}, v52
    s_mul_i32 s24, s20, 160
    v_lshl_add_u32 v53, v29, 3, s24
    s_lshl_b32 s24, s36, 2
    s_add_u32 s24, s24, s20
    s_mul_i32 s24, s24, 48
    s_add_u32 s24, s24, s35
    s_mul_i32 s24, s24, 5120
    s_add_u32 s24, s24, {W2}""")
    for m_ in range(5):
        r = D0 + 4*m_
        k.i(f"v_add_u32 v55, {32*m_}, v53\nv_xad_u32 v55, v55, v54, v52")
        k.lg(f"ds_read_b64_tr_b16 v[{r}:{r+1}], v55")
        k.lg(f"ds_read_b64_tr_b16 v[{r+2}:{r+3}], v55 offset:{8*640}", f"u2{m_}")
    for m_ in range(5):
        r = D0 + 4*m_
        k.wait(lg=f"u2{m_}")
        k.i(f"buffer_store_dwordx4 v[{r}:{r+3}], v3, s[16:19], s24 offen {HO}\ns_add_u32 s24, s24, 1024")
    k.label(f"up_end{sfx}")

WOR = [160 + 4*f for f in range(21)] + [44 + 4*f for f in range(29)]
PQA = 0; XA = 244
W2R = WOR + list(range(0, 40, 4))
TBV = 244
WOB = None; XQ = None
def phase1():
    global WOB
    k.i(f"""v_add_u32 v4, 0x10000, v3
    v_add_u32 v5, 0x20000, v3
    s_lshl_b32 s28, s26, 2
    s_add_u32 s28, s28, s20
    s_mul_i32 s21, s28, 40960
    s_add_u32 s21, s21, {XN}
    s_lshl_b32 s23, s20, 12
    s_mul_i32 s22, s27, 163840
    s_add_u32 s22, s22, s23
    s_add_u32 s22, s22, {WQ}
    s_mov_b32 s40, {LOG2E:#x}
    s_mov_b32 s41, {LOG2E:#x}
    s_mov_b32 s38, 0x358637bd
    s_mov_b32 s39, 0x358637bd""")
    if OPT.get("mapb"):
        k.i(f"""s_and_b32 s{PWQ}, s2, 7
        s_lshl_b32 s{PWQ}, s{PWQ}, 1
        s_lshr_b32 s33, s2, 7
        s_add_u32 s{PWQ}, s{PWQ}, s33
        s_bfe_u32 s{PWQ+1}, s2, 0x40003
        s_and_b32 s13, s{PWQ+1}, 7
        s_lshr_b32 s12, s{PWQ+1}, 3
        s_lshl_b32 s31, s{PWQ}, 1
        s_add_u32 s12, s12, s31
        s_lshl_b32 s31, s{PWQ}, 2
        s_lshr_b32 s29, s{PWQ+1}, 2
        s_add_u32 s29, s29, s31
        s_and_b32 s30, s{PWQ+1}, 3""")
    else:
        k.i(f"""s_mov_b32 s{PWQ}, s26
        s_mov_b32 s{PWQ+1}, s27
    s_lshr_b32 s33, s27, 3
        s_lshl_b32 s13, s33, 2
        s_and_b32 s12, s27, 3
        s_add_u32 s13, s13, s12
        s_bfe_u32 s12, s27, 0x10002
        s_lshl_b32 s31, s26, 1
        s_add_u32 s12, s12, s31
        s_lshl_b32 s31, s26, 2
        s_bfe_u32 s29, s27, 0x20001
        s_add_u32 s29, s29, s31
        s_lshl_b32 s30, s33, 1
        s_and_b32 s33, s27, 1
        s_add_u32 s30, s30, s33""")
    k.i(f"""    s_lshl_b32 s31, s30, 2
    s_add_u32 s31, s31, s20
    s_mul_i32 s31, s31, 51200
    s_add_u32 s31, s31, {WO}
""")
    k.i(f"""v_and_b32 v24, 31, v1
    v_lshlrev_b32 v24, 4, v24
    v_lshrrev_b32 v25, 5, v1
    v_lshl_add_u32 v24, v25, 3, v24
    s_mul_i32 s3, s29, 40
    s_mul_i32 s33, s30, 10
    s_add_u32 s3, s3, s33
    s_lshr_b32 s33, s20, 1
    s_add_u32 s3, s3, s33
    s_lshl_b32 s3, s3, 10
    s_and_b32 s33, s20, 1
    s_lshl_b32 s33, s33, 9
    s_add_u32 s3, s3, s33
    s_add_u32 s3, s3, {XC}
""" if OPT.get("xc") else """v_and_b32 v24, 31, v1
    s_lshl_b32 s33, s29, 5
    v_add_u32 v24, s33, v24
    v_mul_u32_u24 v24, 1280, v24
    v_lshrrev_b32 v25, 5, v1
    v_lshl_add_u32 v24, v25, 3, v24
    s_mul_i32 s3, s30, 320
    s_lshl_b32 s34, s20, 4
    s_add_u32 s3, s3, s34
""")
    k.i(f"""v_lshlrev_b32 v26, 2, v0
    v_lshlrev_b32 v27, 1, v0
    s_mul_i32 s33, s{PWQ+1}, 192
    s_add_u32 s{PB1}, s{PB1}, s33
    s_addc_u32 s{PB1+1}, s{PB1+1}, 0
    s_mul_i32 s54, s{PWQ+1}, 384
    s_add_u32 s54, s54, {CS}""")
    XM = OPT.get("xm", "win")
    def xloads(pol):
        for c in range(5):
            k.i(f"global_load_dwordx2 a[{XA+2*c}:{XA+2*c+1}], v24, s[{PX}:{PX+1}] offset:{64*c} {pol}")
    if OPT.get("xc"): XM = "none"
    else: k.i("v_add_u32 v24, s3, v24")
    if XM == "early": xloads(OPT.get('xpol', 'nt'))
    elif XM == "mix":
        k.i("s_cmp_eq_u32 s20, 0\ns_cbranch_scc1 p1_nox")
        xloads(OPT.get('xpol', ''))
        k.label("p1_nox")
    k.i(f"v_min_u32 v27, 190, v27")
    poll_all(F0, 8, O("slp0", 16))
    if OPT.get("upre"): k.i("s_waitcnt vmcnt(0)")
    k.i("s_barrier")
    stamp(4)
    if OPT.get("upre") == "1":
        sv0 = snap(); unit_proc(""); rest(sv0)
    ACC = 64; WB = 128; T = 8; PK = 176; FB0 = 20; NS = 12; AH = 8
    PRE = O("pre1", 3)
    Q = BG()
    for s in range(10):
        for j in range(4):
            Q.add(f"buffer_load_dwordx4 v3, s[16:19], s22 offen offset:{1024*j} {HO} lds", f"W{s}",
                  pre=(f"s_add_u32 m0, s23, {(s % 8)*16384}" if (j == 0 or OPT.get("ulate")) else ""), post=("s_add_u32 s22, s22, 16384" if j == 3 else ""))
        for j in range(4):
            Q.add(f"buffer_load_dwordx4 a[{16*s+4*j}:{16*s+4*j+3}], v3, s[16:19], s21 offen offset:{1024*j} {HO}", f"X{4*s+j}",
                  post=("s_add_u32 s21, s21, 4096" if j == 3 else ""))
    if OPT.get("upre") == "2":
        Q.go(8)
        sv0 = snap(); unit_proc(""); rest(sv0)
        Q.go(8*PRE - 8)
    else: Q.go(8*PRE)
    k.wait(vm="W0"); k.i("s_barrier")
    if not OPT.get("ulate") and not OPT.get("upre"):
        sv0 = snap(); unit_proc(""); rest(sv0)
    if OPT.get("xc"):
        k.i("s_cmp_ge_u32 s45, 128\ns_cbranch_scc1 p1_noxc")
        for i in range(5):
            k.i(f"buffer_store_dwordx4 v[{208+4*i}:{211+4*i}], v228, s[16:19], s55 offen {HO}\ns_add_u32 s55, s55, 8192")
        k.label("p1_noxc")
    stamp(3)
    k.i("s_cmp_ge_u32 s27, 11\ns_cbranch_scc1 p1_q")
    sv = snap(); Qs = list(Q.q)
    def mkbg():
        B = BG()
        for i in range(50):
            B.add(f"buffer_load_dwordx4 a[{WOR[i]}:{WOR[i]+3}], v3, s[16:19], s31 offen offset:{1024*(i%4)} {HO}", f"wo{i}", post=("s_add_u32 s31, s31, 4096" if i % 4 == 3 else ""))
        return B
    def small():
        S = BG()
        global XQ
        X_ = XQ = BG()
        for j in range(8):
            S.add(f"buffer_load_dword v{TBV+j}, v26, s[16:19], s54 offen {HO}", post=f"s_add_u32 s54, s54, 6144")
        for c in range(5):
            if OPT.get("xc"): S.add(f"buffer_load_dwordx2 a[{XA+2*c}:{XA+2*c+1}], v24, s[16:19], s3 offen offset:{2048*(c%2)} {HO}", post=("s_add_u32 s3, s3, 4096" if c % 2 else ""))
        return S
    NPRE = O("wo_pre", 20)
    def loop(act_first, order_tail, fill_after, B, sfx):
        items = [(ks, j) for ks in range(40 - len(order_tail)//4) for j in range(4)] + order_tail
        first = {}
        for n_, (ks_, j_) in enumerate(items): first.setdefault(ks_//4, n_)
        NCHK = 2*(80 - 8*PRE) + O("chk", 0)
        if OPT.get("ulate"): assert O("un_sig", 6) >= O("un_proc", 4) + PRE and 16*(O("un_proc", 4) - PRE) >= O("un_iss", 0)
        def rd(n):
            ks, j = items[n]
            if ks >= 4 and first[ks//4] == n:
                k.wait(vm=f"W{ks//4}"); k.i("s_barrier")
                if OPT.get("ulate") and ks//4 == O("un_proc", 4):
                    sv1 = snap(); unit_proc(sfx); rest(sv1)
                if ks//4 == (O("un_sig", 6) if OPT.get("ulate") else PRE + 1):
                    signal(1, f"v_mov_b32 v7, 0\ns_lshl_b32 s42, s45, 2\ns_add_u32 s42, s42, {F0B}", 6)
            o = ((ks % 32)*4 + j) * 1024
            r = WB + 4*(n % NS)
            k.lg(f"ds_read_b128 v[{r}:{r+3}], v{3 + o//65536} offset:{o % 65536}", f"w{n}")
        for n in range(AH): rd(n)
        fill = []
        for n, (ks, j) in enumerate(items):
            if OPT.get('ulate') and n == O('un_iss', 0): unit_issue(sfx)
            if n % 2 == 0:
                k.wait(vm=f"X{max(items[n][0], items[n+1][0])}", lg=f"w{n+1}")
                if n % 16 == 0: stamp(8 + n//16, "p1")
            w = vr(WB + 4*(n % NS), 4); x = ar(4*ks, 4); d = vr(ACC + 16*j, 16)
            c = "0" if ks == 0 else d
            k.i(f"v_mfma_f32_32x32x16_bf16 {d}, {x}, {w}, {c}" if act_first else f"v_mfma_f32_32x32x16_bf16 {d}, {w}, {x}, {c}")
            if n % 2 == 0:
                if Q.left(): Q.go()

            else:
                for m_ in (n - 1 + AH, n + AH):
                    if m_ < 160: rd(m_)
            if n == NCHK - 16:
                k.i(f"s_mov_b32 s42, {F0B}")
                k.vm(f"buffer_load_dwordx4 v[{FB0}:{FB0+3}], v3, s[16:19], s42 offen sc1", "f0b")
            if n == NCHK:
                k.wait(vm="f0b")
                check4(FB0)
                k.i(f"s_cbranch_vccz p1_ok{sfx}\ns_mov_b32 s42, {F0B}")
                poll(3, 42, FB0, wide=True, w0=False)
                k.label(f"p1_ok{sfx}")
                SQ[0] = small()
                lim[0] = min(21, NPRE); k.th = O("th1", 96)
                k.auto = lambda: B.go() if 50 - B.left() < lim[0] else None
            if n in fill_after: fill += fill_after[n]
            for _ in range(6):
                if fill: k.i(fill.pop(0))
        lim[0] = NPRE; k.th = O("th1e", 90)
        for l in fill: k.i(l)
    lim = [0]; SQ = [None]
    def phi_lines(t):
        with capture() as c:
            for b in range(0, 16, 4): phi4(ACC + 16*t + b, PK + 8*t + b//2, T)
        return c.lines
    TL = O("tl1", 4)
    tail = [(ks, j) for ks in range(40-TL, 40) for j in (0, 1)] + [(ks, j) for ks in range(40-TL, 40) for j in (2, 3)]
    B = mkbg()
    loop(True, tail, {161 - 2*TL: phi_lines(0) + phi_lines(1)}, B, "kv")
    stamp(5)
    k.i("s_lshl_b32 s33, s20, 13\ns_add_u32 s33, s33, 32768\nv_add_u32 v6, s33, v3")
    for t in (0, 1):
        for f in range(2):
            k.lg(f"ds_write_b128 v6, v[{PK+8*t+4*f}:{PK+8*t+4*f+3}] offset:{2048*t+1024*f}")
    for t in (2, 3):
        for p in range(8):
            k.i(f"v_cvt_pk_bf16_f32 v{PK+8*t+p}, v{ACC+16*t+2*p}, v{ACC+16*t+2*p+1}")
        if t == 3:
            k.i("s_mov_b32 s34, 0xf0000000\ns_mov_b32 s35, 0xf0000000\nv_mov_b32 v7, 0x3f803f80")
            for p in range(8): k.i(f"v_cndmask_b32 v{PK+24+p}, v{PK+24+p}, v7, s[34:35]")
        for f in range(2):
            k.lg(f"ds_write_b128 v6, v[{PK+8*t+4*f}:{PK+8*t+4*f+3}] offset:{2048*t+1024*f}")
    k.i("""s_lshr_b32 s33, s20, 1
    s_and_b32 s34, s20, 1
    s_lshl_b32 s35, s33, 11
    s_add_u32 s35, s35, 32768
    v_add_u32 v8, s35, v3
    s_lshl_b32 s35, s34, 11
    s_add_u32 s35, s35, 36864
    v_add_u32 v9, s35, v3""")
    k.wait(lg="all"); k.i("s_barrier")
    stamp(8, "p1e")
    FA = 64; FB = 96; DD = 128
    for w in range(4):
        for f in range(2):
            n = 2*w + f
            k.lg(f"ds_read_b128 v[{FA+4*n}:{FA+4*n+3}], v8 offset:{8192*w+1024*f}")
            k.lg(f"ds_read_b128 v[{FB+4*n}:{FB+4*n+3}], v9 offset:{8192*w+1024*f}", f"f{n}")
    with capture() as c:
        k.i("""v_and_b32 v10, 31, v1
        s_lshl_b32 s35, s34, 5
        v_add_u32 v10, s35, v10
        v_mul_u32_u24 v11, 205, v10
        v_lshrrev_b32 v11, 12, v11
        v_mul_u32_u24 v12, 20, v11
        v_sub_u32 v12, v10, v12
        v_cmp_eq_u32 s[36:37], 60, v10
        v_mov_b32 v13, 20
        v_lshrrev_b32 v14, 5, v1
        v_cndmask_b32 v12, v12, v13, s[36:37]
        v_mul_u32_u24 v12, 80, v12
        v_lshlrev_b32 v14, 2, v14
        s_lshl_b32 s35, s33, 5
        v_add_u32 v14, s35, v14
        v_lshlrev_b32 v22, 2, v0
        v_add_u32 v23, 65536, v22
        v_add_u32 v12, 65536, v12""")
        MS = [4, 6, 24, 34]
        for j in range(4):
            ms = MS[j]
            k.i(f"""v_add_u32 v15, {8*j}, v14
            v_mul_u32_u24 v20, 205, v15
            v_lshrrev_b32 v20, 12, v20
            v_mul_u32_u24 v21, 20, v20
            v_sub_u32 v21, v15, v21
            v_cmp_eq_u32 s[{ms}:{ms+1}], v20, v11
            v_cmp_gt_u32 vcc, 3, v20
            v_mul_u32_u24 v20, 1680, v20
            v_lshl_add_u32 v21, v21, 2, v12
            v_add_u32 v{16+j}, v20, v21
            s_or_b64 s[{ms}:{ms+1}], s[{ms}:{ms+1}], s[36:37]
            s_and_b64 s[{ms}:{ms+1}], s[{ms}:{ms+1}], vcc""")
    fill = c.lines
    for _ in range(16): k.i(fill.pop(0))
    def kvm(n):
        def f():
            k.wait(lg=f"f{n}")
            k.i(f"v_mfma_f32_32x32x16_bf16 v[{DD}:{DD+15}], v[{FA+4*n}:{FA+4*n+3}], v[{FB+4*n}:{FB+4*n+3}], {'0' if n == 0 else vr(DD,16)}")
        return f
    for l in merge([kvm(n) for n in range(8)], fill, 6): k.i(l)
    for j in range(4):
        k.i(f"s_mov_b64 exec, s[{MS[j]}:{MS[j]+1}]")
        k.lg(f"ds_write_b128 v{16+j}, v[{DD+4*j}:{DD+4*j+3}]")
    k.i(f"""s_mov_b64 exec, -1
    s_mul_i32 s33, s27, 5040
    s_add_u32 s33, s33, {KVA}
    s_add_u32 s4, s14, s33
    s_addc_u32 s5, s15, 0
    s_cmp_eq_u32 s27, 10
    s_movk_i32 s6, 5040
    s_cselect_b32 s6, 3360, s6
    s_mov_b32 s7, 0x20000""")
    k.wait(lg="all"); k.i("s_barrier")
    stamp(9, "p1e")
    for i in range(5):
        k.lg(f"ds_read_b32 v{32+i}, v23 offset:{1024*i}", f"d{i}")
    for i in range(5):
        k.wait(lg=f"d{i}")
        if i == 4: k.i("v_add_u32 v22, 4096, v22")
        k.vm(f"buffer_atomic_add_f32 v{32+i}, v22, s[4:7], 0 offen offset:{1024*(i%4)}", "out1")
    stamp(10, "p1e")
    def bg_finish(B):
        k.auto = None
        print("WO left for the drain:", NPRE - (50 - B.left()), file=sys.stderr)
        if O("pqe", 1):
            k.i(f"v_min_u32 v{FB0+1}, 4, v1\nv_lshlrev_b32 v{FB0+1}, 2, v{FB0+1}\ns_and_b32 s24, s2, 7\ns_lshl_b32 s24, s24, 12\ns_lshl_b32 s25, s26, 8\ns_add_u32 s24, s24, s25\ns_add_u32 s24, s24, {F1 + 128 + 12}")
            k.vm(f"buffer_load_dword v{FB0}, v{FB0+1}, s[16:19], s24 offen sc1", "out1")
        B.go(NPRE - (50 - B.left()))
    bg_finish(B)
    k.wait(vm="out1")
    k.i("s_branch p1_fin")
    k.label("p1_q")
    rest(sv); Q.q = list(Qs)
    k.i(f"""s_mul_i32 s33, s28, 40960
    s_sub_u32 s34, s27, 11
    s_lshl_b32 s34, s34, 13
    s_add_u32 s33, s33, s34
    s_add_u32 s33, s33, {PQ}""")
    tail = [(ks, j) for j in range(4) for ks in range(36, 40)]
    B = mkbg()
    loop(False, tail, {149: phi_lines(0), 153: phi_lines(1)}, B, "q")
    stamp(5)
    for t in range(4):
        if t >= 2:
            for b in range(0, 16, 4):
                phi4(ACC + 16*t + b, PK + 8*t + b//2, T)
        for f in range(2):
            k.vm(f"buffer_store_dwordx4 v[{PK+8*t+4*f}:{PK+8*t+4*f+3}], v3, s[16:19], s33 offen offset:{(2048*t+1024*f) % 4096} {HO}", "out1")
        if t == 1: k.i("s_add_u32 s33, s33, 4096")
    stamp(8, "p1e"); stamp(9, "p1e"); stamp(10, "p1e")
    bg_finish(B)
    k.wait(vm="out1")
    k.label("p1_fin")
    stamp(6)
    k.i("s_barrier")
    sig_all(F1, 6)
    WOB = B
    k.i("v_mov_b32 v5, v24")
    k.i(f"s_mov_b32 s26, s{PWQ}\ns_mov_b32 s27, s{PWQ+1}")
    if O("pqe", 1):
        k.i(f"v_cmp_ne_u32 vcc, s44, v{FB0}\ns_cbranch_vccz p1_qok")
        poll(FB0+1, 24, FB0, w0=False)
        k.label("p1_qok")
        k.i(f"""s_mul_i32 s22, s29, 40960
        s_mul_i32 s33, s20, 10240
        s_add_u32 s22, s22, s33
        s_add_u32 s22, s22, {PQ}""")
        for kl in range(10):
            k.vm(f"buffer_load_dwordx4 a[{PQA+4*kl}:{PQA+4*kl+3}], v3, s[16:19], s22 offen offset:{1024*(kl%4)} {HO}", f"pq{kl}")
            if kl % 4 == 3: k.i("s_add_u32 s22, s22, 4096")
    k.vm(f"global_load_ushort v{TBV+8}, v27, s[{PB1}:{PB1+1}]")
    SQ[0].go(99)
    if XM == "win": xloads("")
    if XM == "mix":
        k.i("s_cmp_lg_u32 s20, 0\ns_cbranch_scc1 p1_nox2")
        xloads("")
        k.label("p1_nox2")
    WOB.go(O("wo_w", 5))
    NW1 = O("w1_w", 16)
    k.i(f"""s_mul_i32 s25, s27, 122880
    s_add_u32 s25, s25, {W1}
    s_cmp_eq_u32 s20, 0
    s_cbranch_scc1 p1_now1
    s_sub_u32 s23, s20, 1
    s_mul_i32 s23, s23, {NW1*1024}
    s_add_u32 s24, s25, s23""")
    for i in range(NW1):
        if i % 4 == 0: k.i(f"s_add_u32 m0, s23, {1024*i}")
        if not OPT.get("nobg"): k.i(f"buffer_load_dwordx4 v3, s[16:19], s24 offen offset:{1024*(i%4)} {HO} lds")
        if i % 4 == 3: k.i("s_add_u32 s24, s24, 4096")
    k.i("s_waitcnt vmcnt(0)" if OPT.get("nobg") else f"s_waitcnt vmcnt({NW1})")
    k.label("p1_now1")
    stamp(7)

W2B = None
def phase2():
    global W2B
    P2L = 102400
    k.i(f"""s_mul_i32 s21, s20, 13440
    s_add_u32 s21, s21, {KVA}
    s_mul_i32 s23, s20, 15360
    s_add_u32 s23, s23, {P2L+64}
    s_mul_i32 s22, s29, 40960
    s_mul_i32 s33, s20, 10240
    s_add_u32 s22, s22, s33
    s_add_u32 s22, s22, {PQ}
    v_bfe_u32 v8, v1, 2, 3
    v_lshlrev_b32 v8, 2, v8
    v_and_b32 v9, 3, v1
    s_mov_b32 s33, 0x55524130
    s_mov_b32 s34, 0x55453120
    v_bfe_u32 v10, s33, v8, 4
    v_bfe_u32 v11, s34, v8, 4
    v_lshl_add_u32 v10, v10, 2, v9
    v_lshl_add_u32 v11, v11, 2, v9
    v_min_u32 v10, 20, v10
    v_min_u32 v11, 20, v11
    v_lshrrev_b32 v12, 5, v1
    v_lshlrev_b32 v12, 4, v12
    s_sub_u32 s33, s23, 16
    v_add_u32 v12, s33, v12
    v_mul_u32_u24 v10, 80, v10
    v_mul_u32_u24 v11, 80, v11
    v_add_u32 v10, v10, v12
    v_add_u32 v11, v11, v12
    s_lshl_b32 s28, s26, 2
    s_add_u32 s28, s28, s20
    s_mov_b32 s36, 0
    s_mov_b32 s37, -1
    s_lshl_b32 s35, s13, 2
    s_add_u32 s35, s35, s20
    s_mul_i32 s35, s35, 61440
    s_add_u32 s35, s35, {W2}""")
    poll_all(F1, 14, O('slp1', 0))
    k.i("s_barrier")
    k.vm_done = k.vm_n
    stamp(8)
    for i in range(14):
        if i % 4 == 0: k.i(f"s_add_u32 m0, s23, {1024*i}")
        k.vm(f"buffer_load_dwordx4 v3, s[16:19], s21 offen offset:{1024*(i%4)} {HO} lds", f"kv{i}")
        if i % 4 == 3: k.i("s_add_u32 s21, s21, 4096")
        if i in (6, 13) and not O("pqe", 1):
            for kl in (range(0, 5) if i == 6 else range(5, 10)):
                k.vm(f"buffer_load_dwordx4 a[{PQA+4*kl}:{PQA+4*kl+3}], v3, s[16:19], s22 offen offset:{1024*(kl%4)} {HO}", f"pq{kl}")
                if kl % 4 == 3: k.i("s_add_u32 s22, s22, 4096")
    if OPT.get("xm") == "late":
        for c in range(5):
            XQ.add(f"global_load_dwordx2 a[{XA+2*c}:{XA+2*c+1}], v5, s[{PX}:{PX+1}] offset:{64*c} {OPT.get('xpol', '')}", "xres")
    NW1 = O("w1_w", 16); N1 = (96 - 3*NW1) // 4
    assert 3*NW1 + 4*N1 == 96
    k.i(f"s_mul_i32 s24, s20, {N1*1024}\ns_add_u32 s24, s24, {3*NW1*1024}\ns_add_u32 s25, s25, s24")
    B1 = BG()
    for i in range(N1):
        B1.add(f"buffer_load_dwordx4 v3, s[16:19], s25 offen offset:{1024*(i%4)} {HO} lds", "w1",
               pre=(f"s_add_u32 m0, s24, {1024*i}" if i % 4 == 0 else ""), post=("s_add_u32 s25, s25, 4096" if i % 4 == 3 else ""))
    W2B = BG()
    for i in range(60):
        W2B.add(f"buffer_load_dwordx4 a[{W2R[i]}:{W2R[i]+3}], v3, s[16:19], s35 offen offset:{1024*(i%4)} {HO}", "w2", post=("s_add_u32 s35, s35, 4096" if i % 4 == 3 else ""))
    AF = 20; TT = 84; DT = 180; OG = 84; ACC = [20, 36, 124, 140, 156]
    for j in range(1, 8): k.i(f"v_add_f32 v{TBV}, v{TBV}, v{TBV+j}")
    k.i(f"v_lshlrev_b32 v{TBV+1}, 16, v{TBV+8}")
    jobs = {}
    n = 0
    for hl in range(8):
        jobs[hl] = []
        for u in range(2):
            for h2 in range(2):
                dg0 = -(hl % 4) + 4*u + 2*h2
                v0_ = 0 <= dg0 <= 4; v1_ = 0 <= dg0+1 <= 4
                d = AF + (2*hl+u)*4 + 2*h2
                if v0_ or v1_:
                    jobs[hl].append((d, n, v0_, v1_, hl*1680 + 16*(dg0+1))); n += 1
                else:
                    jobs[hl].append((d, None, 0, 0, 0))
                    k.i(f"v_mov_b32 v{d}, 0\nv_mov_b32 v{d+1}, 0")
    def kvreads(lo, hi):
        for hl in range(lo, hi):
            for d, n, _, _, o in jobs[hl]:
                if n is not None: k.lg(f"ds_read_b128 v[{TT+4*n}:{TT+4*n+3}], v{10 + (hl & 1)} offset:{o}", f"a{n}")
    def build(hl):
        for d, n, v0_, v1_, _ in jobs[hl]:
            if n is None: continue
            k.wait(lg=f"a{n}")
            t = TT + 4*n
            k.i(f"v_cvt_pk_bf16_f32 v{d}, v{t}, v{t+1}\nv_cvt_pk_bf16_f32 v{d+1}, v{t+2}, v{t+3}")
            if not v1_: k.i(f"v_cndmask_b32 v{d}, v{d}, 0, s[36:37]\nv_cndmask_b32 v{d+1}, v{d+1}, 0, s[36:37]")
            if not v0_: k.i(f"v_cndmask_b32 v{d}, 0, v{d}, s[36:37]\nv_cndmask_b32 v{d+1}, 0, v{d+1}, s[36:37]")
    def omm(hl):
        t0 = hl + hl//4
        d = vr(DT + 16*(hl % 4), 16)
        def f(u):
            def g():
                k.wait(vm=f"pq{t0+u}")
                k.i(f"v_mfma_f32_32x32x16_bf16 {d}, {vr(AF+(2*hl+u)*4, 4)}, {ar(PQA+4*(t0+u), 4)}, {'0' if u == 0 else d}")
            return g
        return [f(0), f(1)]
    def opost(hl):
        p = hl // 2; odd = hl & 1
        D = DT + 16*(hl % 4); rc = 16 + 2*odd
        a, b = (D+8, D+12) if odd else (D+12, D+8)
        with capture() as c:
            k.i(f"v_cndmask_b32 v{rc}, v{a}, v{b}, s[36:37]\nv_add_f32 v{rc}, s38, v{rc}\nv_rcp_f32 v{rc}, v{rc}\ns_nop 0")
            for h in range(6):
                k.i(f"v_pk_mul_f32 v[{D+2*h}:{D+2*h+1}], v[{D+2*h}:{D+2*h+1}], v[{rc}:{rc+1}] op_sel_hi:[1,0]")
            for j in range(2):
                g = OG + 2*(5*p + 2*odd + j)
                k.i(f"v_cvt_pk_bf16_f32 v{g}, v{D+4*j}, v{D+4*j+1}\nv_cvt_pk_bf16_f32 v{g+1}, v{D+4*j+2}, v{D+4*j+3}")
            g = OG + 2*(5*p + 4)
            if not odd:
                k.i(f"v_cvt_pk_bf16_f32 v{g}, v{D+8}, v{D+9}\nv_cvt_pk_bf16_f32 v{g+1}, v{D+10}, v{D+11}")
            else:
                k.i(f"v_cvt_pk_bf16_f32 v{D}, v{D+8}, v{D+9}\nv_cvt_pk_bf16_f32 v{D+1}, v{D+10}, v{D+11}")
                k.i(f"v_cndmask_b32 v{g}, v{g}, v{D}, s[36:37]\nv_cndmask_b32 v{g+1}, v{g+1}, v{D+1}, s[36:37]")
        return c.lines
    def wo(u, c, bg=True):
        def f():
            d = vr(ACC[c], 16)
            while f"wo{5*u+c}" not in k.vm_tags or (WOB.left() and 50 - WOB.left() <= 5*u+c): WOB.go()
            k.wait(vm=f"wo{5*u+c}")
            k.i(f"v_mfma_f32_32x32x16_bf16 {d}, {ar(WOR[5*u+c], 4)}, {vr(OG+4*u, 4)}, {'0' if u == 0 else d}")
            w2lim[0] = min(5*u, 35)
        return f
    w2lim = [0]
    def au2():
        if WOB.left(): WOB.go()
        elif XQ.left(): XQ.go(5)
        elif B1.left(): B1.go()
        elif 60 - W2B.left() < w2lim[0]: W2B.go()
    k.auto = au2; k.th = O("th2", 90)
    k.wait(vm="kv6")
    stamp(13, "p2")
    kvreads(0, 4)
    for hl in range(4):
        build(hl)
        for f in omm(hl): f()
        if hl == 1:
            k.wait(vm="kv13"); kvreads(4, 8)
    for hl in range(4, 8):
        build(hl)
    stamp(9)
    for l in opost(0): k.i(l)
    for l in merge(omm(4), opost(1), 9): k.i(l)
    stamp(10)
    for l in merge(omm(5) + [wo(u, c) for u in (0, 1) for c in range(5)], opost(2) + opost(3), 4): k.i(l)
    for l in merge(omm(6) + omm(7) + [wo(u, c) for u in (2, 3, 4) for c in range(5)], opost(4) + opost(5), 3): k.i(l)
    with capture() as c:
        k.i(f"s_sub_u32 s33, s23, 64\nv_add_u32 v13, s33, v3")
        for j in range(1, 4):
            k.i(f"s_sub_u32 s33, s20, {j}\ns_and_b32 s33, s33, 3\ns_mul_i32 s33, s33, 15360\ns_add_u32 s33, s33, {P2L + (j-1)*5120}\nv_add_u32 v{13+j}, s33, v3")
    for l in merge([wo(u, c) for u in (5, 6) for c in range(5)], opost(6) + opost(7), 4): k.i(l)
    XF = 180
    with capture() as c2:
        k.i("s_mov_b32 s33, 0xffff0000")
        for j in range(10):
            k.i(f"v_accvgpr_read_b32 v{XF+2*j+1}, a{XA+j}")
        for j in range(10):
            k.i(f"v_lshlrev_b32 v{XF+2*j}, 16, v{XF+2*j+1}\nv_and_b32 v{XF+2*j+1}, s33, v{XF+2*j+1}")
    fill = c.lines + c2.lines
    XQ.go(99)
    if "xres" in k.vm_tags: k.wait(vm="xres")
    def red_w(c):
        for j in range(1, 4):
            r = ACC[c] + 4*j
            k.lg(f"ds_write_b128 v13, v[{r}:{r+3}] offset:{(j-1)*5120 + 1024*c}")
    for c in range(5):
        fill = merge([wo(u, c) for u in (7, 8, 9)], fill, 4)
        if c >= 2: red_w(c - 2)
    for l in fill: k.i(l)
    w2lim[0] = 60
    stamp(11)
    red_w(3); red_w(4)
    for c in range(5):
        for h in range(2):
            d = XF + 4*c + 2*h; a = ACC[c] + 2*h
            k.i(f"v_pk_add_f32 v[{d}:{d+1}], v[{d}:{d+1}], v[{a}:{a+1}]")
    k.wait(lg="all"); k.i("s_barrier")
    stamp(14, "p2")
    RR = 84
    for j in range(1, 4):
        for c in range(5):
            r = RR + 20*(j-1) + 4*c
            k.lg(f"ds_read_b128 v[{r}:{r+3}], v{13+j} offset:{1024*c}", f"r{j}_{c}")
    k.i(f"""s_mul_i32 s34, s29, 40
    s_mul_i32 s21, s30, 10
    s_add_u32 s34, s34, s21
    s_lshr_b32 s21, s20, 1
    s_add_u32 s34, s34, s21
    s_lshl_b32 s34, s34, 10
    s_and_b32 s21, s20, 1
    s_lshl_b32 s21, s21, 9
    s_add_u32 s34, s34, s21
    s_add_u32 s34, s34, {HH}
    v_and_b32 v8, 31, v1
    v_lshrrev_b32 v9, 5, v1
    v_lshlrev_b32 v12, 3, v8
    v_lshlrev_b32 v8, 4, v8
    v_lshl_add_u32 v8, v9, 3, v8""")
    HP = 24
    for j in range(1, 4):
        for c in range(5):
            k.wait(lg=f"r{j}_{c}")
            for h in range(2):
                d = XF + 4*c + 2*h; a = RR + 20*(j-1) + 4*c + 2*h
                k.i(f"v_pk_add_f32 v[{d}:{d+1}], v[{d}:{d+1}], v[{a}:{a+1}]")
            if j == 3:
                k.i(f"v_cvt_pk_bf16_f32 v{HP+2*c}, v{XF+4*c}, v{XF+4*c+1}\nv_cvt_pk_bf16_f32 v{HP+2*c+1}, v{XF+4*c+2}, v{XF+4*c+3}")
                k.vm(f"buffer_store_dwordx2 v[{HP+2*c}:{HP+2*c+1}], v8, s[16:19], s34 offen offset:{2048*(c%2)} {HO}")
                if c % 2 == 1: k.i("s_add_u32 s34, s34, 4096")
    for j in range(10):
        k.i(f"v_lshlrev_b32 v{XF+2*j}, 16, v{HP+j}\nv_and_b32 v{XF+2*j+1}, s33, v{HP+j}")
    k.i(f"v_pk_add_f32 v[16:17], v[{XF}:{XF+1}], v[{XF+2}:{XF+3}]")
    k.i(f"v_pk_mul_f32 v[18:19], v[{XF}:{XF+1}], v[{XF}:{XF+1}]")
    k.i(f"v_pk_fma_f32 v[18:19], v[{XF+2}:{XF+3}], v[{XF+2}:{XF+3}], v[18:19]")
    for j in range(2, 10):
        k.i(f"v_pk_add_f32 v[16:17], v[16:17], v[{XF+2*j}:{XF+2*j+1}]")
        k.i(f"v_pk_fma_f32 v[18:19], v[{XF+2*j}:{XF+2*j+1}], v[{XF+2*j}:{XF+2*j+1}], v[18:19]")
    k.i(f"""v_add_f32 v16, v16, v17
    v_add_f32 v17, v18, v19
    v_mov_b32 v18, v16
    v_mov_b32 v19, v17
    s_lshl_b32 s34, s29, 4
    s_lshl_b32 s21, s30, 2
    s_add_u32 s34, s34, s21
    s_add_u32 s34, s34, s20
    v_permlane32_swap_b32 v16, v18
    v_permlane32_swap_b32 v17, v19
    s_lshl_b32 s34, s34, 8
    s_add_u32 s34, s34, {ST}
    v_pk_add_f32 v[16:17], v[16:17], v[18:19]
    s_mov_b64 exec, 0xffffffff""")
    k.vm(f"buffer_store_dwordx2 v[16:17], v12, s[16:19], s34 offen {HO}", "out2")
    k.i("s_mov_b64 exec, -1")
    stamp(15, "p2")
    k.auto = None
    print("P2 end: W1 left", B1.left(), "W2 left", W2B.left(), file=sys.stderr)
    B1.go(99)
    if not OPT.get("nodrain"):
        W2B.go(O("w2_d2", 12))
        k.wait(vm="out2")
    stamp(12)
    k.i("s_barrier")
    sig_row(F2, 6, "s_and_b32 s42, s29, 3", "s_mov_b32 s43, s30")
    k.i(f"s_mul_i32 s23, s20, 6144\ns_mul_i32 s25, s27, 122880\ns_add_u32 s25, s25, s23\ns_add_u32 s25, s25, {W1 + 98304}")
    for i in range(6):
        if i % 4 == 0: k.i(f"s_add_u32 m0, s23, {98304 + 1024*i}")
        k.vm(f"buffer_load_dwordx4 v3, s[16:19], s25 offen offset:{1024*(i%4)} {HO} lds", "w1t")
        if i % 4 == 3: k.i("s_add_u32 s25, s25, 4096")
    k.i(f"v_lshlrev_b32 v6, 2, v0\nv_add_u32 v6, 122880, v6")
    k.lg(f"ds_write_b32 v6, v{TBV}")
    k.lg(f"ds_write_b32 v6, v{TBV+1} offset:1024")

def phase3():
    TB = 122880
    k.i(f"""s_mul_i32 s21, s28, 40960
    s_add_u32 s21, s21, {HH}
    v_and_b32 v8, 31, v1
    v_lshrrev_b32 v7, 5, v1
    v_lshlrev_b32 v8, 3, v8
    v_lshl_add_u32 v8, v7, 8, v8
    s_lshl_b32 s33, s28, 12
    s_add_u32 s33, s33, {ST}
    v_lshlrev_b32 v14, 4, v7
    v_add_u32 v14, {TB}, v14
    v_bfe_u32 v15, v1, 4, 1
    v_mul_u32_u24 v15, 49152, v15
    v_and_b32 v16, 15, v1
    v_lshl_add_u32 v15, v16, 4, v15
    v_lshl_add_u32 v15, v7, 9, v15
    s_mul_i32 s34, s28, 98304
    s_mul_i32 s25, s27, 3072
    s_add_u32 s34, s34, s25
    s_add_u32 s34, s34, {H1}""")
    W2B.go(O("w2_w2", 4))
    k.wait(vm="w1t", lg="all")
    k.i("s_barrier")
    poll_row(F2, 10, O('slp2', 0))
    stamp(13)
    ACC = 40; WB = 88; NS = 9; AH = 6; HR = 124; NR = O("pre3", 12); SR = 20; CT = 172; PK = 232
    H = BG()
    for i in range(40):
        r = HR + 4*(i % NR)
        H.add(f"buffer_load_dwordx4 v[{r}:{r+3}], v3, s[16:19], s21 offen offset:{1024*(i%4)} {HO}", f"h{i}", post=("s_add_u32 s21, s21, 4096" if i % 4 == 3 else ""))
    H.go(4)
    for j in range(8):
        k.vm(f"buffer_load_dwordx2 v[{SR+2*j}:{SR+2*j+1}], v8, s[16:19], s33 offen offset:{512*j} {HO}", "stats")
    H.go(NR - 5)
    TL = O("tl3", 4)
    items = [(ks, j) for ks in range(40-TL) for j in range(3)] + [(ks, j) for j in range(3) for ks in range(40-TL, 40)]
    def rd(n):
        ks, j = items[n]
        o = (ks*3 + j) * 1024
        r = WB + 4*(n % NS)
        k.lg(f"ds_read_b128 v[{r}:{r+3}], v{3 + o//65536} offset:{o % 65536}", f"w{n}")
    with capture() as c:
        for j in range(1, 8): k.i(f"v_pk_add_f32 v[{SR}:{SR+1}], v[{SR}:{SR+1}], v[{SR+2*j}:{SR+2*j+1}]")
        k.i(f"""v_mov_b32 v10, v{SR}
        v_mov_b32 v11, v{SR+1}
        v_permlane32_swap_b32 v{SR}, v10
        v_permlane32_swap_b32 v{SR+1}, v11
        v_pk_add_f32 v[8:9], v[{SR}:{SR+1}], v[10:11]
        v_mul_f32 v8, 0x3acccccd, v8
        v_mul_f32 v9, 0x3acccccd, v9
        v_fma_f32 v9, -v8, v8, v9
        v_max_f32 v9, 0, v9""")
        bf16r(8, 8); bf16r(9, 9)
        k.i("v_add_f32 v9, 0x3727c5ac, v9")
        bf16r(9, 9)
        k.i("v_sqrt_f32 v9, v9")
        bf16r(9, 9)
        k.i("v_rcp_f32 v10, v9\nv_mul_f32 v12, v8, v10\nv_sub_f32 v12, 0, v12")
    statl = c.lines
    def tab_reads(nt):
        for j in range(4):
            n = 4*nt + j
            k.lg(f"ds_read_b128 v[{CT+4*n}:{CT+4*n+3}], v14 offset:{1024+128*nt+32*j}")
            k.lg(f"ds_read_b128 v[{SR+4*j}:{SR+4*j+3}], v14 offset:{128*nt+32*j}", f"t{nt}")
    def tab_lines(nt):
        with capture() as c:
            for j in range(4):
                b = CT + 4*(4*nt + j)
                for h in range(2):
                    k.i(f"v_pk_fma_f32 v[{b+2*h}:{b+2*h+1}], v[{SR+4*j+2*h}:{SR+4*j+2*h+1}], v[12:13], v[{b+2*h}:{b+2*h+1}] op_sel_hi:[1,0,1]")
        return c.lines
    def epi_lines(nt, j):
        n = 4*nt + j
        a = ACC + 4*n; b = CT + 4*n
        with capture() as c:
            for h in range(2):
                k.i(f"v_pk_fma_f32 v[{a+2*h}:{a+2*h+1}], v[{a+2*h}:{a+2*h+1}], v[10:11], v[{b+2*h}:{b+2*h+1}] op_sel_hi:[1,0,1]")
            for h in range(4): k.i(f"v_max_f32 v{a+h}, 0, v{a+h}")
            for h in range(2):
                k.i(f"v_pk_mul_f32 v[{a+2*h}:{a+2*h+1}], v[{a+2*h}:{a+2*h+1}], v[{a+2*h}:{a+2*h+1}]")
            for h in range(2):
                k.i(f"v_cvt_pk_bf16_f32 v{PK+2*n+h}, v{a+2*h}, v{a+2*h+1}")
        return c.lines
    def st_h1(nt, e):
        k.vm(f"buffer_store_dwordx4 v[{PK+8*nt+4*e}:{PK+8*nt+4*e+3}], v15, s[16:19], s34 offen offset:{1024*nt+256*e} {HO}", "out3")
    for n in range(AH): rd(n)
    fill = []
    k.auto = lambda: W2B.go(); k.th = O("th3", 100)
    for n, (ks, j) in enumerate(items):
        k.wait(vm=f"h{ks}", lg=f"w{n}")
        if n == 12: cst(7)
        if n == 108: cst(9)
        d = vr(ACC + 16*j, 16)
        k.i(f"v_mfma_f32_32x32x16_bf16 {d}, {vr(WB + 4*(n % NS), 4)}, {vr(HR + 4*(ks % NR), 4)}, {'0' if ks == 0 else d}")
        if n % 3 == 0: H.go()
        if O('w2_p3', 0) and n % O('w2_p3', 0) == 4: W2B.go()
        if n + AH < 120: rd(n + AH)
        if n == 18: fill += statl
        for nt in range(3):
            if n == 40 + 12*nt: tab_reads(nt)
            if n == 46 + 12*nt:
                k.wait(lg=f"t{nt}"); fill += tab_lines(nt)
        if n == 121 - 2*TL: fill += epi_lines(0, 0) + epi_lines(0, 1) + epi_lines(0, 2) + epi_lines(0, 3)
        if n == 121 - TL: fill += epi_lines(1, 0) + epi_lines(1, 1)
        for _ in range(3 if n < 120 - 2*TL else 6):
            if fill: k.i(fill.pop(0))
    stamp(14)
    for l in fill: k.i(l)
    st_h1(0, 0); st_h1(0, 1); st_h1(1, 0)
    for nt, j in ((1, 2), (1, 3), (2, 0), (2, 1), (2, 2), (2, 3)):
        for l in epi_lines(nt, j): k.i(l)
        if j % 2 == 1: st_h1(nt, j // 2)
    k.auto = None
    print("P3 end: W2 left", W2B.left(), file=sys.stderr)
    if not OPT.get("nodrain"):
        W2B.go(O("w2_d3", 12))
        k.wait(vm="out3")
    stamp(15)
    k.i("s_barrier")
    sig_row(F3, 6, "s_lshr_b32 s42, s27, 2", "s_and_b32 s43, s27, 3")

def phase4():
    HR = 20; BR = 30; ACC = 40; RING = 120; NB = O("nb4", 6)
    srd(8, PB2, 1280)
    k.i(f"""v_and_b32 v4, 15, v1
    v_lshrrev_b32 v5, 4, v1
    s_lshl_b32 s33, s12, 1
    s_lshr_b32 s25, s20, 1
    s_add_u32 s33, s33, s25
    s_mul_i32 s33, s33, 40
    s_mul_i32 s25, s13, 5
    s_add_u32 s33, s33, s25
    s_lshl_b32 s33, s33, 10
    s_add_u32 s33, s33, {HH}
    s_and_b32 s25, s20, 1
    s_lshl_b32 s25, s25, 8
    s_add_u32 s33, s33, s25
    v_lshrrev_b32 v8, 1, v5
    v_lshlrev_b32 v8, 9, v8
    v_lshl_add_u32 v8, v4, 4, v8
    v_and_b32 v9, 1, v5
    v_lshl_add_u32 v8, v9, 3, v8
    v_add_u32 v9, 4096, v8
    v_lshlrev_b32 v17, 3, v5
    s_mul_i32 s34, s13, 160""")
    for c in range(5):
        k.vm(f"buffer_load_dwordx2 v[{HR+2*c}:{HR+2*c+1}], v{8 if c < 4 else 9}, s[16:19], s33 offen offset:{1024*(c%4)} {HO}")
    for c in range(5):
        k.vm(f"buffer_load_dwordx2 v[{BR+2*c}:{BR+2*c+1}], v17, s[8:11], s34 offen offset:{32*c}", "res")
    W2B.go(99)
    k.i(f"""s_mul_i32 s21, s12, 196608
    s_mul_i32 s22, s20, 12288
    s_add_u32 s21, s21, s22
    s_add_u32 s21, s21, {H1}
    s_lshl_b32 s25, s12, 6
    s_lshl_b32 s33, s20, 4
    s_add_u32 s25, s25, s33
    v_add_u32 v6, s25, v4
    v_mul_u32_u24 v7, 1280, v6
    v_lshl_add_u32 v7, v5, 3, v7
    s_mul_i32 s33, s20, 15360
    v_add_u32 v13, s33, v3""")
    for j in range(4):
        k.i(f"s_add_u32 s33, s20, {j}\ns_and_b32 s33, s33, 3\ns_mul_i32 s33, s33, 49152\nv_add_u32 v{8+j}, s33, v3")
    for j in range(1, 4):
        k.i(f"s_sub_u32 s33, s20, {j}\ns_and_b32 s33, s33, 3\ns_mul_i32 s33, s33, 15360\ns_add_u32 s33, s33, {(j-1)*5120}\nv_add_u32 v{13+j}, s33, v3")
    srd(8, POUT, 2621440)
    poll_row(F3, 18, O('slp3', 0))
    stamp(16)
    Q = BG()
    for i in range(48):
        t, j = divmod(i, 4)
        r = RING + 16*(t % NB) + 4*j
        Q.add(f"buffer_load_dwordx4 v[{r}:{r+3}], v{8+j}, s[16:19], s21 offen offset:{1024*(t%4)} {HO}", f"s{t}_{j}", post=("s_add_u32 s21, s21, 4096" if i % 16 == 15 else ""))
    Q.go(4*(NB-1))
    XF = 216
    k.wait(vm="res")
    k.i("s_mov_b32 s33, 0xffff0000")
    for j in range(10):
        k.i(f"v_lshlrev_b32 v{XF+2*j}, 16, v{HR+j}\nv_and_b32 v{XF+2*j+1}, s33, v{HR+j}")
        k.i(f"v_lshlrev_b32 v{XF+20}, 16, v{BR+j}\nv_and_b32 v{XF+21}, s33, v{BR+j}")
        k.i(f"v_pk_add_f32 v[{XF+2*j}:{XF+2*j+1}], v[{XF+2*j}:{XF+2*j+1}], v[{XF+20}:{XF+21}]")
    def red_w(j):
        for c in range(5):
            r = ACC + 20*j + 4*c
            k.lg(f"ds_write_b128 v13, v[{r}:{r+3}] offset:{(j-1)*5120 + 1024*c}")
    order = [(t, j) for t in range(10) for j in range(4)] + [(t, j) for j in (1, 2, 3, 0) for t in (10, 11)]
    for n, (t, j) in enumerate(order):
        k.wait(vm=f"s{t}_{j}")
        if n == 4: cst(11)
        if n == 40: cst(13)
        for c in range(5):
            d = vr(ACC + (5*j+c)*4, 4)
            k.i(f"v_mfma_f32_16x16x32_bf16 {d}, {ar(W2R[5*t+c], 4)}, {vr(RING+16*(t%NB)+4*j, 4)}, {'0' if t == 0 else d}")
            if c == 1: Q.go()
        if n in (42, 44, 46): red_w((n - 40)//2)
    stamp(17)
    k.wait(lg="all"); k.i("s_barrier")
    RR = 120
    for j in range(1, 4):
        for c in range(5):
            r = RR + 20*(j-1) + 4*c
            k.lg(f"ds_read_b128 v[{r}:{r+3}], v{13+j} offset:{1024*c}", f"r{j}_{c}")
    for c in range(5):
        for h in range(2):
            d = XF + 4*c + 2*h; a = ACC + 4*c + 2*h
            k.i(f"v_pk_add_f32 v[{d}:{d+1}], v[{d}:{d+1}], v[{a}:{a+1}]")
    for j in range(1, 4):
        for c in range(5):
            k.wait(lg=f"r{j}_{c}")
            for h in range(2):
                d = XF + 4*c + 2*h; a = RR + 20*(j-1) + 4*c + 2*h
                k.i(f"v_pk_add_f32 v[{d}:{d+1}], v[{d}:{d+1}], v[{a}:{a+1}]")
            if j == 3:
                k.i(f"v_cvt_pk_bf16_f32 v{HR+2*c}, v{XF+4*c}, v{XF+4*c+1}\nv_cvt_pk_bf16_f32 v{HR+2*c+1}, v{XF+4*c+2}, v{XF+4*c+3}")
                k.vm(f"buffer_store_dwordx2 v[{HR+2*c}:{HR+2*c+1}], v7, s[8:11], s34 offen offset:{32*c} {OPT.get('opol', '')}")
    k.i(f"""s_or_b32 s33, s45, s20
    s_cmp_lg_u32 s33, 0
    s_cbranch_scc1 p4_noep
    v_mov_b32 v4, s44
    v_mov_b32 v5, {CB}
    s_mov_b64 exec, 1
    buffer_store_dword v4, v5, s[16:19], 0 offen sc1
    s_mov_b64 exec, -1""")
    k.label("p4_noep")

def stamp_out():
    if not OPT["stamps"]: return
    if OPT.get("enc") is not None:
        e = O("enc", 0)
        k.i(f"""s_waitcnt vmcnt(0) lgkmcnt(0)
        s_memrealtime s[100:101]
        s_waitcnt lgkmcnt(0)
        s_sub_u32 s4, s{64+2*e}, s64
        s_lshl_b32 s4, s4, 2
        s_add_u32 s4, s4, 4000
        encl:
        s_memrealtime s[6:7]
        s_waitcnt lgkmcnt(0)
        s_sub_u32 s6, s6, s64
        s_cmp_lt_u32 s6, s4
        s_cbranch_scc1 encl""")
        return
    n = NSTAMP
    k.i("s_waitcnt vmcnt(0) lgkmcnt(0)")
    k.i(f"s_memrealtime s[{64+2*n}:{65+2*n}]")
    k.i("s_waitcnt lgkmcnt(0)")
    k.i(f"s_lshl_b32 s3, s45, 2\ns_add_u32 s3, s3, s20\ns_lshl_b32 s3, s3, 7\ns_add_u32 s3, s3, 0x2000000\nv_mov_b32 v1, s3")
    for j in range(n+1): k.i(f"v_mov_b32 v{2+j}, s{64+2*j}")
    k.i("s_mov_b64 exec, 1")
    for j in range(n+1): k.i(f"global_store_dword v1, v{2+j}, s[14:15] offset:{4*j}")

def emit(path):
    global k
    k = Kern(KN)
    phase0(); phase1(); phase2(); phase3(); phase4(); stamp_out()
    k.label("kend"); k.i("s_endpgm")
    body, added = hazard_pass(k.L, verbose=bool(OPT.get("vnop")))
    print("instrs", len(body), "nop states added", added, file=sys.stderr)
    out = ["; pre-LN linear-attention block + squared-ReLU MLP, one persistent launch (256 workgroups, flag hand-offs in d_ws)",
           "; @launch grid=(256,1,1) block=(256,1,1) lds=163840",
           '.amdgcn_target "amdgcn-amd-amdhsa--gfx950"', ".text", f".globl {KN}", ".p2align 8", f".type {KN},@function", f"{KN}:"]
    out += [("" if (l.endswith(":") or l.startswith(";")) else "    ") + l for l in body]
    out += ['.section .rodata,"a"', ".p2align 6", f".amdhsa_kernel {KN}", "  .amdhsa_next_free_vgpr 512", "  .amdhsa_next_free_sgpr 102",
            "  .amdhsa_accum_offset 256", "  .amdhsa_group_segment_fixed_size 0", "  .amdhsa_kernarg_size 88",
            "  .amdhsa_user_sgpr_count 2", "  .amdhsa_user_sgpr_kernarg_segment_ptr 1",
            "  .amdhsa_system_sgpr_workgroup_id_x 1", ".end_amdhsa_kernel"]
    open(path, "w").write("\n".join(out) + "\n")

if __name__ == "__main__":
    for a in sys.argv[2:]:
        kk, v = a.split("=")
        OPT[kk] = {"True": True, "False": False, "none": ""}.get(v, v.replace("_", " "))
    emit(sys.argv[1])
```

```python
import sys
from asmlib import *

NAME = "sequential_preLN__linear_attn_block__dense_activation_squared_relu__prompt"
KN = NAME + "_kernel"
CB = 0x0
F0B = CB + 0x1000; F2 = 0xC0000; F3 = 0xD0000; F0 = 0x90000; F1 = 0x98000
CS = 0x10000; KVA = 0x20000; ST = 0x40000
XN = 0x100000; WQ = 0x380000; WO = 0x600000; W1 = 0x700000; W2 = 0x900000
PQ = 0xB00000; HH = 0xE00000; H1 = 0x1200000; XC = 0x1800000
WSZ = 0x1B00000
LOG2E = 0x3fb8aa3b
OPT = dict(wo_w=6, w1_w=8, tl1=6, tl3=6, pqe=0, stamps=False, cold="nt", pre1=2, wo_pre=40, sleep=8, slp0=20, lnexact=True)
HO = "sc1"
UL = 131072
def O(n, d): return int(OPT.get(n, d))

def magic(C, maxq):
    for sh in range(4, 24):
        m = -(-(1 << sh) // C)
        if m * maxq < (1 << 32) and m < (1 << 24) and all((q * m) >> sh == q // C for q in range(maxq)): return m, sh
    raise ValueError

k = None
def srd(d, base, size):
    k.i(f"s_mov_b32 s{d}, s{base}\ns_mov_b32 s{d+1}, s{base+1}\ns_mov_b32 s{d+2}, {size}\ns_mov_b32 s{d+3}, 0x20000")
def bf16r(d, s):
    k.i(f"v_cvt_pk_bf16_f32 v{d}, v{s}, v{s}\nv_lshlrev_b32 v{d}, 16, v{d}")
NSTAMP = 18
def stamp(idx, grp=None):
    if not OPT["stamps"]: return
    f = OPT.get("focus")
    lo = {"p0": (5, 18), "p1": (8, 18), "p1e": (8, 18), "p2": (13, 18), "clk": (1, 18)}.get(f)
    if grp is None and lo and lo[0] <= idx < lo[1]: return
    if grp is not None and grp != f: return
    k.i(f"s_memrealtime s[{64+2*idx}:{65+2*idx}]")
def cst(slot):
    if OPT["stamps"] and OPT.get("focus") == "clk":
        k.i(f"s_memrealtime s[{64+2*slot}:{65+2*slot}]\ns_memtime s[{66+2*slot}:{67+2*slot}]")
def snap(): return (k.vm_n, dict(k.vm_tags), k.vm_done, k.lg_n, dict(k.lg_tags), k.lg_done)
def rest(s): k.vm_n, k.vm_tags, k.vm_done, k.lg_n, k.lg_tags, k.lg_done = s[0], dict(s[1]), s[2], s[3], dict(s[4]), s[5]

class capture:
    def __enter__(self):
        self.save = (k.L, k.auto, k._iss, k._mf); k.L = []; k.auto = None; return self
    def __exit__(self, *a):
        self.lines = k.L; k.L, k.auto, k._iss, k._mf = self.save
def merge(main, fill, per):
    fill = list(fill)
    for m in main:
        m()
        for _ in range(per):
            if fill: k.i(fill.pop(0))
    return fill

PX, PWQ, PWO, PW1, PB1, PW2, PB2, POUT = 48, 50, 52, 56, 58, 60, 62, 46

npoll = 0
def check4(vt):
    k.i(f"v_xor_b32 v{vt}, s44, v{vt}\nv_xor_b32 v{vt+1}, s44, v{vt+1}\nv_xor_b32 v{vt+2}, s44, v{vt+2}\nv_xor_b32 v{vt+3}, s44, v{vt+3}")
    k.i(f"v_or3_b32 v{vt}, v{vt}, v{vt+1}, v{vt+2}\nv_or_b32 v{vt}, v{vt}, v{vt+3}\nv_cmp_ne_u32 vcc, 0, v{vt}")
def poll(vaddr, soff, vt, wide=False, w0=True, slp=0):
    global npoll
    npoll += 1
    L = f"poll{npoll}"
    au = k.auto; k.auto = None
    if w0: k.i(f"s_cmp_lg_u32 s20, 0\ns_cbranch_scc1 {L}d")
    if slp: k.i(f"s_sleep {slp}")
    k.i("s_mov_b32 s43, 0x20000")
    k.label(L)
    if OPT.get("apoll"):
        if wide:
            k.i(f"v_mov_b32 v{vt}, 0\nv_mov_b32 v{vt+1}, 0\nv_mov_b32 v{vt+2}, 0\nv_mov_b32 v{vt+3}, 0")
            k.i(f"buffer_atomic_or_x2 v[{vt}:{vt+1}], v{vaddr}, s[16:19], s{soff} offen sc0\nbuffer_atomic_or_x2 v[{vt+2}:{vt+3}], v{vaddr}, s[16:19], s{soff} offen offset:8 sc0\ns_waitcnt vmcnt(0)")
            check4(vt)
        else:
            k.i(f"v_mov_b32 v{vt}, 0\nbuffer_atomic_or v{vt}, v{vaddr}, s[16:19], s{soff} offen sc0\ns_waitcnt vmcnt(0)\nv_cmp_ne_u32 vcc, s44, v{vt}")
    else:
        if wide:
            k.i(f"buffer_load_dwordx4 v[{vt}:{vt+3}], v{vaddr}, s[16:19], s{soff} offen {OPT.get('ppol', 'sc1')}\ns_waitcnt vmcnt(0)")
            check4(vt)
        else:
            k.i(f"buffer_load_dword v{vt}, v{vaddr}, s[16:19], s{soff} offen {OPT.get('ppol', 'sc1')}\ns_waitcnt vmcnt(0)\nv_cmp_ne_u32 vcc, s44, v{vt}")
    k.i(f"s_cbranch_vccz {L}d")
    if O("sleep", 4): k.i(f"s_sleep {O('sleep', 4)}")
    k.i(f"s_sub_u32 s43, s43, 1\ns_cbranch_scc0 {L}")
    k.label(L + "d")
    k.auto = au
nsig = 0
def signal(mask, code, vt, dual=False, val='s44'):
    global nsig
    nsig += 1
    L = f"sig{nsig}"
    au = k.auto; k.auto = None
    k.i(f"s_cmp_lg_u32 s20, 1\ns_cbranch_scc1 {L}")
    k.i(code)
    if dual: k.i(f"v_mov_b32 v{vt}, s44\ns_mov_b64 exec, {mask}\nbuffer_store_dword v{vt}, v{vt+1}, s[16:19], s42 offen offset:2048")
    k.i(f"v_mov_b32 v{vt}, {val}\ns_mov_b64 exec, {mask}\nbuffer_store_dword v{vt}, v{vt+1}, s[16:19], s42 offen {OPT.get('spol', 'sc1')}\ns_mov_b64 exec, -1")
    k.label(L)
    k.auto = au
def sig_all(base, vt, val='s44'):
    signal(0xff, f"v_lshlrev_b32 v{vt+1}, 12, v1\ns_lshr_b32 s42, s45, 3\ns_lshl_b32 s42, s42, 7\ns_and_b32 s43, s45, 7\ns_lshl_b32 s43, s43, 2\ns_add_u32 s42, s42, s43\ns_add_u32 s42, s42, {base}", vt, val=val)
def sig_row(base, vt, line, pos, val='s44'):
    signal(1, f"v_mov_b32 v{vt+1}, 0\n{line}\n{pos}\ns_lshl_b32 s42, s42, 7\ns_lshl_b32 s43, s43, 2\ns_add_u32 s42, s42, s43\ns_lshl_b32 s43, s26, 12\ns_add_u32 s42, s42, s43\ns_add_u32 s42, s42, {base}", vt, dual=bool(OPT.get("dual")), val=val)
ntree = 0
def poll_all(base, vt, slp):
    global ntree
    k.i(f"s_and_b32 s42, s2, 7\ns_lshl_b32 s42, s42, 12\ns_add_u32 s42, s42, {base}")
    k.i(f"v_lshrrev_b32 v{vt+4}, 1, v1\nv_lshlrev_b32 v{vt+4}, 7, v{vt+4}\nv_and_b32 v{vt}, 1, v1\nv_lshl_add_u32 v{vt+4}, v{vt}, 4, v{vt+4}")
    if not (OPT.get("tree") and (base == F0 or OPT.get("tree1"))):
        poll(vt+4, 42, vt, wide=True, slp=slp); return
    ntree += 1; L = f"tree{ntree}"
    NL = O("tree", 1)
    k.i(f"s_cmp_lg_u32 s20, 0\ns_cbranch_scc1 {L}d\ns_and_b32 s41, s2, {8*NL-1}\ns_lshl_b32 s41, s41, 7\ns_add_u32 s41, s41, {base + 0x10000}\ns_cmp_ge_u32 s2, {8*NL}\ns_cbranch_scc1 {L}m")
    poll(vt+4, 42, vt, wide=True, w0=False, slp=slp)
    k.i(f"v_mov_b32 v{vt}, s44\nv_mov_b32 v{vt+1}, 0\ns_mov_b64 exec, 1\nbuffer_store_dword v{vt}, v{vt+1}, s[16:19], s41 offen sc1\ns_mov_b64 exec, -1\ns_branch {L}d")
    k.label(L + "m")
    k.i(f"v_mov_b32 v{vt+1}, 0")
    sl = OPT.get("sleep"); OPT["sleep"] = 1
    poll(vt+1, 41, vt, w0=False)
    if sl is None: del OPT["sleep"]
    else: OPT["sleep"] = sl
    k.label(L + "d")
    k.i(f"s_mov_b32 s41, {LOG2E:#x}")
def poll_row(base, vt, slp):
    global npoll
    k.i(f"v_and_b32 v{vt+1}, 3, v1\nv_lshlrev_b32 v{vt+1}, 2, v{vt+1}\ns_lshl_b32 s42, s26, 5\ns_add_u32 s42, s42, s20\ns_lshl_b32 s42, s42, 7\ns_add_u32 s42, s42, {base}")
    if not OPT.get("dual"):
        poll(vt+1, 42, vt, w0=False, slp=slp)
    else:
        npoll += 1; L = f"poll{npoll}"
        au = k.auto; k.auto = None
        if slp: k.i(f"s_sleep {slp}")
        k.i(f"v_bfe_u32 v{vt}, v1, 2, 1\nv_lshl_add_u32 v{vt+1}, v{vt}, 11, v{vt+1}\ns_mov_b32 s43, 0x20000")
        k.label(L)
        k.i(f"""buffer_load_dword v{vt}, v{vt+1}, s[16:19], s42 offen sc1
        s_waitcnt vmcnt(0)
        v_cmp_eq_u32 vcc, s44, v{vt}
        s_lshr_b32 s41, vcc_lo, 4
        s_or_b32 s41, s41, vcc_lo
        s_and_b32 s41, s41, 15
        s_cmp_eq_u32 s41, 15
        s_cbranch_scc1 {L}d
        s_sleep {O('sleepd', 2)}
        s_sub_u32 s43, s43, 1
        s_cbranch_scc0 {L}""")
        k.label(L + "d")
        k.auto = au
    k.vm_done = k.vm_n

class BG:
    def __init__(self): self.q = []
    def add(self, ins, tag=None, pre="", post=""): self.q.append((pre, ins, post, tag))
    def go(self, n=1):
        for _ in range(n):
            if self.q:
                pre, ins, post, tag = self.q.pop(0)
                if OPT.get("nobg") and tag is not None and tag[:2] in ("wo", "w1", "w2"):
                    k.vm_tags[tag] = -1; continue
                k.i(pre); k.vm(ins, tag); k.i(post)
    def left(self): return len(self.q)

def phi4(a, dst, T):
    k.i(f"v_pk_mul_f32 v[{T}:{T+1}], v[{a}:{a+1}], s[40:41]")
    k.i(f"v_pk_mul_f32 v[{T+2}:{T+3}], v[{a+2}:{a+3}], s[40:41]")
    for j in range(4): k.i(f"v_exp_f32_e64 v{T+j}, v{T+j} clamp")
    for j in range(4): k.i(f"v_max_f32 v{T+4+j}, 0, v{a+j}")
    k.i(f"v_pk_add_f32 v[{T}:{T+1}], v[{T}:{T+1}], s[38:39]")
    k.i(f"v_pk_add_f32 v[{T+2}:{T+3}], v[{T+2}:{T+3}], s[38:39]")
    k.i(f"v_pk_add_f32 v[{T}:{T+1}], v[{T}:{T+1}], v[{T+4}:{T+5}]")
    k.i(f"v_pk_add_f32 v[{T+2}:{T+3}], v[{T+2}:{T+3}], v[{T+6}:{T+7}]")
    k.i(f"v_cvt_pk_bf16_f32 v{dst}, v{T}, v{T+1}")
    k.i(f"v_cvt_pk_bf16_f32 v{dst+1}, v{T+2}, v{T+3}")

ROWOFF = [[0, 4, 20, 24, 8], [12, 16, 28, 32, 36]]

def phase0():
    cold = OPT["cold"]
    stamp(0)
    k.i(f"""s_load_dwordx16 s[48:63], s[0:1], 0
    s_load_dwordx2 s[14:15], s[0:1], 80
    s_load_dwordx2 s[46:47], s[0:1], 64
    s_getpc_b64 s[4:5]
    pcl:
    s_cmp_ge_u32 s2, 256
    s_cbranch_scc1 kend
    s_lshr_b32 s25, s2, 3
    s_and_b32 s6, s25, 7
    s_lshl_b32 s6, s6, 13
    v_lshl_add_u32 v30, v0, 7, s6
    v_min_u32 v30, kend-pcl, v30
    v_cmp_gt_u32 vcc, 64, v0
    v_and_b32 v1, 63, v0
    v_lshrrev_b32 v2, 6, v0
    s_and_saveexec_b64 s[6:7], vcc
    s_cbranch_execz p0_nopf
    {'s_nop 0' if OPT.get('nopf') else 'global_load_dword v31, v30, s[4:5]'}
    p0_nopf:
    s_mov_b64 exec, s[6:7]
    v_lshlrev_b32 v3, 4, v1
    v_readfirstlane_b32 s20, v2
    s_and_b32 s24, s2, 7
    s_lshr_b32 s26, s24, 1
    s_lshl_b32 s26, s26, 2
    s_lshr_b32 s27, s25, 3
    s_add_u32 s26, s26, s27
    s_and_b32 s27, s24, 1
    s_lshl_b32 s27, s27, 3
    s_and_b32 s25, s25, 7
    s_add_u32 s27, s27, s25
    s_lshl_b32 s45, s26, 4
    s_add_u32 s45, s45, s27
    v_bfe_u32 v28, v1, 2, 2
    v_and_b32 v29, 3, v1
    v_mov_b32 v228, 0
    s_cmp_ge_u32 s45, 128
    s_cbranch_scc1 p0_w""")
    X = 208; F = 32
    k.i(f"""v_lshrrev_b32 v4, 4, v0
    v_and_b32 v5, 15, v0
    s_lshl_b32 s21, s45, 4
    v_add_u32 v6, s21, v4
    v_mul_u32_u24 v6, 1280, v6
    v_lshl_add_u32 v6, v5, 4, v6
    s_mov_b32 s10, 2621440
    s_mov_b32 s11, 0x20000
    s_waitcnt lgkmcnt(0)
    s_mov_b32 s8, s{PX}
    s_mov_b32 s9, s{PX+1}""")
    stamp(9, "p0")
    for i in range(5):
        k.i(f"buffer_load_dwordx4 v[{X+4*i}:{X+4*i+3}], v6, s[8:11], 0 offen offset:{256*i} {OPT.get('coldx', cold)}")
    stamp(5, "p0")
    k.i(f"s_load_dword s44, s[14:15], {CB}")
    srd(16, 14, WSZ)
    if O("pw0", 0): sig_all(F0, 120, val='0')
    k.i(f"""s_lshr_b32 s21, s45, 1
    s_mul_i32 s21, s21, 40960
    s_and_b32 s22, s45, 1
    s_lshl_b32 s22, s22, 8
    s_add_u32 s21, s21, s22
    s_add_u32 s21, s21, {XN}
    v_lshrrev_b32 v7, 1, v5
    v_lshlrev_b32 v7, 10, v7
    v_and_b32 v6, 1, v5
    v_lshlrev_b32 v6, 9, v6
    v_lshl_add_u32 v7, v4, 4, v7
    v_add_u32 v7, v7, v6
    s_mov_b32 s23, 0xffff0000
    s_mov_b32 s22, 0x3f803f80
    v_mov_b32 v112, 0
    v_mov_b32 v113, 0
    v_mov_b32 v114, 0
    v_mov_b32 v115, 0
    v_lshrrev_b32 v30, 4, v1""")
    for i in range(5):
        k.i(f"s_waitcnt vmcnt({4-i})")
        if i == 0: stamp(7, "p0")
        for j in range(4*i, 4*i+4):
            k.i(f"v_dot2_f32_bf16 v{112+2*(j&1)}, v{X+j}, s22, v{112+2*(j&1)}")
            k.i(f"v_dot2_f32_bf16 v{113+2*(j&1)}, v{X+j}, v{X+j}, v{113+2*(j&1)}")
    unp = []
    for j in range(20): unp += [f"v_lshlrev_b32 v{F+2*j}, 16, v{X+j}", f"v_and_b32 v{F+2*j+1}, s23, v{X+j}"]
    def U(n):
        for _ in range(n):
            if unp: k.i(unp.pop(0))
    U(3)
    k.i("v_pk_add_f32 v[112:113], v[112:113], v[114:115]")
    for s in (8, 4, 2, 1):
        U(2)
        k.i(f"v_add_f32_dpp v112, v112, v112 row_ror:{s} row_mask:0xf bank_mask:0xf")
        k.i(f"v_add_f32_dpp v113, v113, v113 row_ror:{s} row_mask:0xf bank_mask:0xf")
    k.i("v_mul_f32 v112, 0x3acccccd, v112\nv_mul_f32 v113, 0x3acccccd, v113\nv_fma_f32 v113, -v112, v112, v113\nv_max_f32 v113, 0, v113")
    bf16r(112, 112); bf16r(113, 113)
    k.i("v_add_f32 v113, 0x3727c5ac, v113")
    bf16r(113, 113)
    k.i("v_sqrt_f32 v113, v113"); U(1)
    bf16r(113, 113)
    k.i("v_rcp_f32 v114, v113")
    U(99)
    Y = 72
    for j in range(20): k.i(f"v_pk_add_f32 v[{F+2*j}:{F+2*j+1}], v[{F+2*j}:{F+2*j+1}], v[112:113] op_sel_hi:[1,0] neg_lo:[0,1] neg_hi:[0,1]")
    for j in range(20): k.i(f"v_cvt_pk_bf16_f32 v{Y+j}, v{F+2*j}, v{F+2*j+1}")
    for j in range(20): k.i(f"v_lshlrev_b32 v{F+2*j}, 16, v{Y+j}\nv_and_b32 v{F+2*j+1}, s23, v{Y+j}")
    for i in range(5):
        for j in range(4*i, 4*i+4):
            k.i(f"v_pk_mul_f32 v[{F+2*j}:{F+2*j+1}], v[{F+2*j}:{F+2*j+1}], v[114:115] op_sel_hi:[1,0]")
        for j in range(4*i, 4*i+4):
            k.i(f"v_cvt_pk_bf16_f32 v{Y+j}, v{F+2*j}, v{F+2*j+1}")
        k.i(f"buffer_store_dwordx4 v[{Y+4*i}:{Y+4*i+3}], v7, s[16:19], s21 offen {HO}")
        if i < 4: k.i("s_add_u32 s21, s21, 8192")
    k.i(f"v_mov_b32 v228, v7\ns_add_u32 s55, s21, {XC - XN - 4*8192}")
    k.i("s_branch p0_drain")
    k.label("p0_w")
    m, sh = magic(80, 320)
    k.i(f"""s_cmp_ge_u32 s45, 248
    s_cbranch_scc1 p0_zero
    s_sub_u32 s21, s45, 128
    s_mul_i32 s30, s21, 171
    s_lshr_b32 s30, s30, 9
    s_mul_i32 s31, s30, 3
    s_sub_u32 s31, s21, s31
    s_mul_i32 s21, s30, 61440
    s_mul_i32 s22, s31, 1280
    s_add_u32 s21, s21, s22
    s_lshl_b32 s22, s20, 2
    s_mul_i32 s23, s20, 5120
    s_mov_b32 s10, 2457600
    s_mov_b32 s11, 0x20000""")
    for i in range(5):
        k.i(f"""v_add_u32 v4, {64*i}, v1
        v_mul_u32_u24 v5, {m}, v4
        v_lshrrev_b32 v5, {sh}, v5
        v_mul_u32_u24 v6, 80, v5
        v_sub_u32 v6, v4, v6
        v_lshlrev_b32 v6, 4, v6
        v_lshlrev_b32 v7, 6, v5
        v_add_u32 v5, s22, v5
        v_mul_u32_u24 v5, 3840, v5
        v_xad_u32 v{12+i}, v6, v7, v5""")
    k.i(f"s_waitcnt lgkmcnt(0)\ns_mov_b32 s8, s{PWQ}\ns_mov_b32 s9, s{PWQ+1}")
    stamp(9, "p0")
    for i in range(5):
        k.i(f"s_add_u32 m0, s23, {1024*i}\nbuffer_load_dwordx4 v{12+i}, s[8:11], s21 offen {cold} lds")
    stamp(5, "p0")
    k.i(f"s_load_dword s44, s[14:15], {CB}")
    srd(16, 14, WSZ)
    if O("pw0", 0): sig_all(F0, 120, val='0')
    k.i(f"""v_lshrrev_b32 v30, 4, v1
    v_lshrrev_b32 v4, 1, v30
    v_lshl_add_u32 v4, v4, 3, v28
    v_mul_u32_u24 v4, 1280, v4
    v_and_b32 v5, 1, v30
    v_lshlrev_b32 v5, 5, v5
    v_lshl_add_u32 v5, v29, 3, v5
    v_lshlrev_b32 v6, 6, v28
    s_lshl_b32 s21, s30, 12
    s_add_u32 s21, s21, {WQ}
    s_cmp_lg_u32 s31, 0
    s_cbranch_scc1 p0_wkv
    s_lshl_b32 s22, s20, 6
    v_add_u32 v5, s22, v5
    v_xad_u32 v7, v5, v6, v4
    s_lshl_b32 s22, s20, 10
    s_add_u32 s21, s21, s22
    s_add_u32 s21, s21, {11*163840}
    s_waitcnt vmcnt(0)""")
    stamp(7, "p0")
    k.i("s_barrier")
    for m_ in range(5):
        r = 32 + 4*m_
        k.lg(f"ds_read_b64_tr_b16 v[{r}:{r+1}], v7 offset:{256*m_}")
        k.lg(f"ds_read_b64_tr_b16 v[{r+2}:{r+3}], v7 offset:{256*m_+4*1280}", f"q{m_}")
    for m_ in range(5):
        r = 32 + 4*m_
        k.wait(lg=f"q{m_}")
        k.i(f"buffer_store_dwordx4 v[{r}:{r+3}], v3, s[16:19], s21 offen {HO}\ns_add_u32 s21, s21, 163840")
    k.i("s_branch p0_drain")
    k.label("p0_wkv")
    k.i("""s_and_b32 s22, s20, 1
    s_lshr_b32 s23, s20, 1
    s_lshl_b32 s24, s22, 6
    s_mul_i32 s25, s23, 120
    s_add_u32 s24, s24, s25
    v_add_u32 v5, s24, v5
    s_lshl_b32 s24, s31, 1
    s_add_u32 s24, s24, s22
    s_sub_u32 s24, s24, 2
    s_lshl_b32 s24, s24, 10
    s_add_u32 s21, s21, s24
    s_mul_i32 s24, s23, 163840
    s_add_u32 s21, s21, s24""")
    for i in range(6):
        k.i(f"v_add_u32 v{12+i}, {240*i}, v5\nv_min_u32 v{12+i}, 1272, v{12+i}\nv_xad_u32 v{12+i}, v{12+i}, v6, v4")
    k.i("s_waitcnt vmcnt(0)")
    stamp(7, "p0")
    k.i("s_barrier")
    for i in range(6):
        r = 32 + 4*i
        k.lg(f"ds_read_b64_tr_b16 v[{r}:{r+1}], v{12+i}")
        k.lg(f"ds_read_b64_tr_b16 v[{r+2}:{r+3}], v{12+i} offset:{4*1280}", f"kv{i}")
    for i in range(6):
        r = 32 + 4*i
        if i == 5: k.i("s_cmp_lg_u32 s23, 0\ns_cbranch_scc1 p0_drain")
        k.wait(lg=f"kv{i}")
        k.i(f"buffer_store_dwordx4 v[{r}:{r+3}], v3, s[16:19], s21 offen {HO}\ns_add_u32 s21, s21, 327680")
    k.i("s_branch p0_drain")
    k.label("p0_zero")
    k.i(f"""s_sub_u32 s21, s45, 248
    s_mul_i32 s21, s21, 6720
    s_add_u32 s21, s21, {KVA}
    v_lshlrev_b32 v4, 4, v0
    v_mov_b32 v8, 0
    v_mov_b32 v9, 0
    v_mov_b32 v10, 0
    v_mov_b32 v11, 0
    v_lshrrev_b32 v30, 4, v1
    s_mov_b32 s10, 6720
    s_mov_b32 s11, 0x20000
    s_waitcnt lgkmcnt(0)
    s_add_u32 s8, s14, s21
    s_addc_u32 s9, s15, 0
    buffer_store_dwordx4 v[8:11], v4, s[8:11], 0 offen {HO}
    v_add_u32 v4, 4096, v4
    buffer_store_dwordx4 v[8:11], v4, s[8:11], 0 offen {HO}
    s_load_dword s44, s[14:15], {CB}""")
    stamp(9, "p0"); stamp(5, "p0"); stamp(7, "p0")
    srd(16, 14, WSZ)
    k.label("p0_drain")
    stamp(1)
    k.i("s_waitcnt vmcnt(0) lgkmcnt(0)\ns_add_u32 s44, s44, 1\ns_or_b32 s44, s44, 0x80000000\ns_barrier")
    k.reset_counts()
    stamp(2)
    sig_all(F0, 4)
    k.i(f"""s_cmp_lg_u32 s20, 2
    s_cbranch_scc1 p0_nob
    v_lshlrev_b32 v4, 7, v1
    v_min_u32 v5, 3068, v4
    v_min_u32 v4, 1276, v4
    global_load_dword v31, v5, s[{PB1}:{PB1+1}]
    global_load_dword v31, v4, s[{PB2}:{PB2+1}]""")
    k.label("p0_nob")
    if not OPT.get("ulate"): unit_issue("")

def unit_issue(sfx):
    cold = OPT["cold"]
    UN = 0 if OPT.get("nounit") else 232
    k.i(f"""s_cmp_ge_u32 s45, {UN}
    s_cbranch_scc1 p0_ui{sfx}d
    s_sub_u32 s6, s20, 1
    s_mul_i32 s5, s6, 7168
    s_cmp_ge_u32 s45, 136
    s_cbranch_scc1 p0_ui{sfx}_w2
    s_cmp_ge_u32 s45, 40
    s_cbranch_scc1 p0_ui{sfx}_w1""")
    srd(8, PWO, 819200)
    k.i(f"""s_mul_i32 s35, s45, 26
    s_lshr_b32 s35, s35, 8
    s_mul_i32 s36, s35, 10
    s_sub_u32 s36, s45, s36
    s_mul_i32 s4, s35, 204800
    s_movk_i32 s25, 1280
    s_branch p0_ui{sfx}_128""")
    k.label(f"p0_ui{sfx}_w1")
    srd(8, PW1, 1966080)
    k.i(f"""s_sub_u32 s34, s45, 40
    s_mul_i32 s35, s34, 43
    s_lshr_b32 s35, s35, 10
    s_mul_i32 s36, s35, 24
    s_sub_u32 s36, s34, s36
    s_mul_i32 s4, s35, 491520
    s_movk_i32 s25, 3072""")
    k.label(f"p0_ui{sfx}_128")
    k.i(f"""s_cmp_eq_u32 s20, 0
    s_cbranch_scc1 p0_ui{sfx}d
    s_lshl_b32 s7, s36, 7
    s_add_u32 s4, s4, s7
    v_lshrrev_b32 v52, 3, v1
    s_mul_i32 s7, s6, 56
    v_add_u32 v52, s7, v52
    v_and_b32 v53, 7, v1
    v_lshlrev_b32 v53, 4, v53
    v_and_b32 v54, 2, v52
    v_lshlrev_b32 v54, 5, v54
    v_mul_lo_u32 v52, v52, s25
    v_xad_u32 v52, v53, v54, v52
    s_lshl_b32 s25, s25, 3""")
    for i in range(7):
        k.i(f"s_add_u32 m0, s5, {UL+1024*i}\nbuffer_load_dwordx4 v52, s[8:11], s4 offen {cold} lds\ns_add_u32 s4, s4, s25")
    k.i(f"s_branch p0_ui{sfx}d")
    k.label(f"p0_ui{sfx}_w2")
    srd(8, PW2, 1966080)
    m, sh = magic(40, 1344)
    k.i(f"""s_sub_u32 s34, s45, 136
    s_lshr_b32 s35, s34, 1
    s_and_b32 s36, s34, 1
    s_cmp_eq_u32 s20, 0
    s_cbranch_scc1 p0_ui{sfx}d
    s_mul_i32 s4, s35, 40960
    s_mul_i32 s7, s36, 640
    s_add_u32 s4, s4, s7
    s_mul_i32 s7, s6, 448
    v_add_u32 v56, s7, v1""")
    for i in range(7):
        k.i(f"""v_add_u32 v52, {64*i}, v56
        v_mul_u32_u24 v53, {m}, v52
        v_lshrrev_b32 v53, {sh}, v53
        v_mul_u32_u24 v54, 40, v53
        v_sub_u32 v54, v52, v54
        v_lshlrev_b32 v54, 4, v54
        v_and_b32 v55, 2, v53
        v_lshlrev_b32 v55, 4, v55
        v_and_b32 v57, 16, v53
        v_lshl_or_b32 v55, v57, 2, v55
        v_mul_u32_u24 v53, 1280, v53
        v_xad_u32 v52, v54, v55, v53
        s_add_u32 m0, s5, {UL+1024*i}
        buffer_load_dwordx4 v52, s[8:11], s4 offen {cold} lds""")
    k.label(f"p0_ui{sfx}d")

def unit_proc(sfx):
    UN = 0 if OPT.get("nounit") else 232
    D0 = 32
    k.i(f"""s_cmp_ge_u32 s45, {UN}
    s_cbranch_scc1 up_end{sfx}
    s_cmp_ge_u32 s45, 136
    s_cbranch_scc1 up_w2{sfx}
    s_and_b32 s6, s20, 1
    s_lshr_b32 s7, s20, 1
    s_lshl_b32 s37, s36, 1
    s_add_u32 s37, s37, s6
    s_cmp_ge_u32 s45, 40
    s_cbranch_scc1 up_w1{sfx}""")
    k.i(f"""v_and_b32 v52, 1, v30
    v_lshrrev_b32 v53, 1, v29
    v_lshl_add_u32 v52, v52, 1, v53
    v_add_u32 v52, s35, v52
    v_and_b32 v52, 3, v52
    v_lshlrev_b32 v52, 4, v52
    v_and_b32 v53, 1, v29
    v_lshl_add_u32 v52, v53, 3, v52
    s_lshl_b32 s24, s6, 6
    v_add_u32 v52, s24, v52
    v_and_b32 v53, 2, v28
    v_lshlrev_b32 v53, 5, v53
    v_xor_b32 v52, v52, v53
    v_lshl_add_u32 v52, v28, 7, v52
    s_mul_i32 s24, s7, 10240
    s_add_u32 s24, s24, {UL}
    v_add_u32 v52, s24, v52
    v_lshrrev_b32 v54, 5, v1
    v_lshlrev_b32 v54, 4, v54
    s_mul_i32 s24, s37, 205
    s_lshr_b32 s24, s24, 10
    s_mul_i32 s25, s24, 5
    s_sub_u32 s25, s37, s25
    s_lshl_b32 s24, s24, 2
    s_add_u32 s24, s24, s35
    s_mul_i32 s24, s24, 10
    s_mul_i32 s4, s7, 5
    s_add_u32 s24, s24, s4
    s_mul_i32 s24, s24, 5
    s_add_u32 s24, s24, s25
    s_lshl_b32 s24, s24, 10
    s_add_u32 s24, s24, {WO}""")
    for uu in range(5):
        for h2 in range(2):
            m_ = 2*uu + h2
            K = 0
            for hi in range(2): K |= ((40*(m_//5) + ROWOFF[hi][m_ % 5]) * 128) << (16*hi)
            r = D0 + 4*uu + 2*h2
            k.i(f"s_mov_b32 s25, {K:#x}\nv_bfe_u32 v55, s25, v54, 16\nv_add_u32 v55, v55, v52")
            k.lg(f"ds_read_b64_tr_b16 v[{r}:{r+1}], v55", f"uo{uu}")
    for uu in range(5):
        r = D0 + 4*uu
        k.wait(lg=f"uo{uu}")
        k.i(f"buffer_store_dwordx4 v[{r}:{r+3}], v3, s[16:19], s24 offen {HO}\ns_add_u32 s24, s24, 5120")
    k.i(f"s_branch up_end{sfx}")
    k.label(f"up_w1{sfx}")
    k.i(f"""v_lshrrev_b32 v52, 1, v30
    v_lshl_add_u32 v52, v52, 3, v28
    v_and_b32 v53, 1, v30
    v_lshlrev_b32 v53, 5, v53
    v_lshl_add_u32 v53, v29, 3, v53
    s_lshl_b32 s24, s6, 6
    v_add_u32 v53, s24, v53
    v_and_b32 v54, 2, v28
    v_lshlrev_b32 v54, 5, v54
    v_lshlrev_b32 v52, 7, v52
    v_xad_u32 v52, v53, v54, v52
    s_mul_i32 s24, s7, 10240
    s_add_u32 s24, s24, {UL}
    v_add_u32 v52, s24, v52
    v_mov_b32 v56, 0
    s_mov_b32 s4, 0x3f803f80
    s_mul_i32 s24, s37, 171
    s_lshr_b32 s24, s24, 9
    s_mul_i32 s25, s24, 3
    s_sub_u32 s25, s37, s25
    s_mul_i32 s24, s24, 40
    s_mul_i32 s5, s35, 10
    s_add_u32 s24, s24, s5
    s_mul_i32 s5, s7, 5
    s_add_u32 s24, s24, s5
    s_mul_i32 s24, s24, 3
    s_add_u32 s24, s24, s25
    s_lshl_b32 s24, s24, 10
    s_add_u32 s24, s24, {W1}""")
    for ks in range(5):
        r = D0 + 4*ks
        k.lg(f"ds_read_b64_tr_b16 v[{r}:{r+1}], v52 offset:{ks*2048}")
        k.lg(f"ds_read_b64_tr_b16 v[{r+2}:{r+3}], v52 offset:{ks*2048+512}", f"u1{ks}")
    for ks in range(5):
        r = D0 + 4*ks
        k.wait(lg=f"u1{ks}")
        k.i(f"buffer_store_dwordx4 v[{r}:{r+3}], v3, s[16:19], s24 offen {HO}\ns_add_u32 s24, s24, 3072")
        for j in range(4): k.i(f"v_dot2_f32_bf16 v56, v{r+j}, s4, v56")
    k.i(f"""s_nop 2
    v_mov_b32 v57, v56
    s_lshl_b32 s24, s35, 1
    s_add_u32 s24, s24, s7
    v_permlane32_swap_b32 v56, v57
    s_mul_i32 s24, s24, 6144
    s_lshl_b32 s25, s37, 7
    s_add_u32 s24, s24, s25
    s_add_u32 s24, s24, {CS}
    v_add_f32 v56, v56, v57
    v_lshlrev_b32 v57, 2, v1
    s_mov_b64 exec, 0xffffffff
    buffer_store_dword v56, v57, s[16:19], s24 offen {HO}
    s_mov_b64 exec, -1
    s_branch up_end{sfx}""")
    k.label(f"up_w2{sfx}")
    k.i(f"""v_and_b32 v52, 1, v30
    v_lshlrev_b32 v52, 4, v52
    v_lshrrev_b32 v53, 1, v30
    v_lshl_add_u32 v52, v53, 2, v52
    v_add_u32 v52, v52, v28
    v_and_b32 v54, 2, v52
    v_lshlrev_b32 v54, 4, v54
    v_and_b32 v55, 16, v52
    v_lshl_or_b32 v54, v55, 2, v54
    v_mul_u32_u24 v52, 640, v52
    v_add_u32 v52, {UL}, v52
    s_mul_i32 s24, s20, 160
    v_lshl_add_u32 v53, v29, 3, s24
    s_lshl_b32 s24, s36, 2
    s_add_u32 s24, s24, s20
    s_mul_i32 s24, s24, 48
    s_add_u32 s24, s24, s35
    s_mul_i32 s24, s24, 5120
    s_add_u32 s24, s24, {W2}""")
    for m_ in range(5):
        r = D0 + 4*m_
        k.i(f"v_add_u32 v55, {32*m_}, v53\nv_xad_u32 v55, v55, v54, v52")
        k.lg(f"ds_read_b64_tr_b16 v[{r}:{r+1}], v55")
        k.lg(f"ds_read_b64_tr_b16 v[{r+2}:{r+3}], v55 offset:{8*640}", f"u2{m_}")
    for m_ in range(5):
        r = D0 + 4*m_
        k.wait(lg=f"u2{m_}")
        k.i(f"buffer_store_dwordx4 v[{r}:{r+3}], v3, s[16:19], s24 offen {HO}\ns_add_u32 s24, s24, 1024")
    k.label(f"up_end{sfx}")

WOR = [160 + 4*f for f in range(21)] + [44 + 4*f for f in range(29)]
PQA = 0; XA = 244
W2R = WOR + list(range(0, 40, 4))
TBV = 244
WOB = None; XQ = None
def phase1():
    global WOB
    k.i(f"""v_add_u32 v4, 0x10000, v3
    v_add_u32 v5, 0x20000, v3
    s_lshl_b32 s28, s26, 2
    s_add_u32 s28, s28, s20
    s_mul_i32 s21, s28, 40960
    s_add_u32 s21, s21, {XN}
    s_lshl_b32 s23, s20, 12
    s_mul_i32 s22, s27, 163840
    s_add_u32 s22, s22, s23
    s_add_u32 s22, s22, {WQ}
    s_mov_b32 s40, {LOG2E:#x}
    s_mov_b32 s41, {LOG2E:#x}
    s_mov_b32 s38, 0x358637bd
    s_mov_b32 s39, 0x358637bd""")
    if OPT.get("mapb"):
        k.i(f"""s_and_b32 s{PWQ}, s2, 7
        s_lshl_b32 s{PWQ}, s{PWQ}, 1
        s_lshr_b32 s33, s2, 7
        s_add_u32 s{PWQ}, s{PWQ}, s33
        s_bfe_u32 s{PWQ+1}, s2, 0x40003
        s_and_b32 s13, s{PWQ+1}, 7
        s_lshr_b32 s12, s{PWQ+1}, 3
        s_lshl_b32 s31, s{PWQ}, 1
        s_add_u32 s12, s12, s31
        s_lshl_b32 s31, s{PWQ}, 2
        s_lshr_b32 s29, s{PWQ+1}, 2
        s_add_u32 s29, s29, s31
        s_and_b32 s30, s{PWQ+1}, 3""")
    else:
        k.i(f"""s_mov_b32 s{PWQ}, s26
        s_mov_b32 s{PWQ+1}, s27
    s_lshr_b32 s33, s27, 3
        s_lshl_b32 s13, s33, 2
        s_and_b32 s12, s27, 3
        s_add_u32 s13, s13, s12
        s_bfe_u32 s12, s27, 0x10002
        s_lshl_b32 s31, s26, 1
        s_add_u32 s12, s12, s31
        s_lshl_b32 s31, s26, 2
        s_bfe_u32 s29, s27, 0x20001
        s_add_u32 s29, s29, s31
        s_lshl_b32 s30, s33, 1
        s_and_b32 s33, s27, 1
        s_add_u32 s30, s30, s33""")
    k.i(f"""    s_lshl_b32 s31, s30, 2
    s_add_u32 s31, s31, s20
    s_mul_i32 s31, s31, 51200
    s_add_u32 s31, s31, {WO}
""")
    k.i(f"""v_and_b32 v24, 31, v1
    v_lshlrev_b32 v24, 4, v24
    v_lshrrev_b32 v25, 5, v1
    v_lshl_add_u32 v24, v25, 3, v24
    s_mul_i32 s3, s29, 40
    s_mul_i32 s33, s30, 10
    s_add_u32 s3, s3, s33
    s_lshr_b32 s33, s20, 1
    s_add_u32 s3, s3, s33
    s_lshl_b32 s3, s3, 10
    s_and_b32 s33, s20, 1
    s_lshl_b32 s33, s33, 9
    s_add_u32 s3, s3, s33
    s_add_u32 s3, s3, {XC}
""" if OPT.get("xc") else """v_and_b32 v24, 31, v1
    s_lshl_b32 s33, s29, 5
    v_add_u32 v24, s33, v24
    v_mul_u32_u24 v24, 1280, v24
    v_lshrrev_b32 v25, 5, v1
    v_lshl_add_u32 v24, v25, 3, v24
    s_mul_i32 s3, s30, 320
    s_lshl_b32 s34, s20, 4
    s_add_u32 s3, s3, s34
""")
    k.i(f"""v_lshlrev_b32 v26, 2, v0
    v_lshlrev_b32 v27, 1, v0
    s_mul_i32 s33, s{PWQ+1}, 192
    s_add_u32 s{PB1}, s{PB1}, s33
    s_addc_u32 s{PB1+1}, s{PB1+1}, 0
    s_mul_i32 s54, s{PWQ+1}, 384
    s_add_u32 s54, s54, {CS}""")
    if O("pw1", 0):
        sig_all(F1, 120, val='0')
        k.i(f"s_mov_b32 s6, s26\ns_mov_b32 s26, s{PWQ}")
        sig_row(F2, 120, "s_and_b32 s42, s29, 3", "s_mov_b32 s43, s30", val='0')
        sig_row(F3, 120, f"s_lshr_b32 s42, s{PWQ+1}, 2", f"s_and_b32 s43, s{PWQ+1}, 3", val='0')
        k.i("s_mov_b32 s26, s6")
    XM = OPT.get("xm", "win")
    def xloads(pol):
        for c in range(5):
            k.i(f"global_load_dwordx2 a[{XA+2*c}:{XA+2*c+1}], v24, s[{PX}:{PX+1}] offset:{64*c} {pol}")
    if OPT.get("xc"): XM = "none"
    else: k.i("v_add_u32 v24, s3, v24")
    if XM == "early": xloads(OPT.get('xpol', 'nt'))
    elif XM == "mix":
        k.i("s_cmp_eq_u32 s20, 0\ns_cbranch_scc1 p1_nox")
        xloads(OPT.get('xpol', ''))
        k.label("p1_nox")
    k.i(f"v_min_u32 v27, 190, v27")
    if OPT.get("rot"):
        k.i(f"""s_and_b32 s33, s27, 7
        s_and_b32 s34, s26, 3
        s_mul_i32 s34, s34, 3
        s_add_u32 s33, s33, s34
        s_mul_i32 s33, s33, {O('rot', 1)}
        s_mul_i32 s34, s33, 205
        s_lshr_b32 s34, s34, 11
        s_mul_i32 s34, s34, 10
        s_sub_u32 s33, s33, s34
        s_add_u32 s52, s21, 40960
        s_add_u32 s53, s22, 163840
        s_lshl_b32 s34, s33, 12
        s_add_u32 s21, s21, s34
        s_lshl_b32 s34, s33, 14
        s_add_u32 s22, s22, s34""")
    poll_all(F0, 8, O("slp0", 16))
    if OPT.get("upre"): k.i("s_waitcnt vmcnt(0)")
    k.i("s_barrier")
    stamp(4)
    if OPT.get("upre") == "1":
        sv0 = snap(); unit_proc(""); rest(sv0)
    ACC = 64; WB = 128; T = 8; PK = 176; FB0 = 20; NS = 12; AH = 8
    PRE = O("pre1", 3)
    Q = BG()
    for s in range(10):
        for j in range(4):
            Q.add(f"buffer_load_dwordx4 v3, s[16:19], s22 offen offset:{1024*j} {HO} lds", f"W{s}",
                  pre=(f"s_add_u32 m0, s23, {(s % 8)*16384}" if (j == 0 or OPT.get("ulate")) else ""), post=(("s_add_u32 s22, s22, 16384" + ("\ns_cmp_ge_u32 s22, s53\ns_cselect_b32 s34, 163840, 0\ns_sub_u32 s22, s22, s34" if OPT.get("rot") else "")) if j == 3 else ""))
        for j in range(4):
            Q.add(f"buffer_load_dwordx4 a[{16*s+4*j}:{16*s+4*j+3}], v3, s[16:19], s21 offen offset:{1024*j} {HO}", f"X{4*s+j}",
                  post=(("s_add_u32 s21, s21, 4096" + ("\ns_cmp_ge_u32 s21, s52\ns_cselect_b32 s34, 40960, 0\ns_sub_u32 s21, s21, s34" if OPT.get("rot") else "")) if j == 3 else ""))
    if OPT.get("upre") == "2":
        Q.go(8)
        sv0 = snap(); unit_proc(""); rest(sv0)
        Q.go(8*PRE - 8)
    else: Q.go(8*PRE)
    k.wait(vm="W0"); k.i("s_barrier")
    if not OPT.get("ulate") and not OPT.get("upre"):
        sv0 = snap(); unit_proc(""); rest(sv0)
    if OPT.get("xc"):
        k.i("s_cmp_ge_u32 s45, 128\ns_cbranch_scc1 p1_noxc")
        for i in range(5):
            k.i(f"buffer_store_dwordx4 v[{208+4*i}:{211+4*i}], v228, s[16:19], s55 offen {HO}\ns_add_u32 s55, s55, 8192")
        k.label("p1_noxc")
    stamp(3)
    k.i("s_cmp_ge_u32 s27, 11\ns_cbranch_scc1 p1_q")
    sv = snap(); Qs = list(Q.q)
    def mkbg():
        B = BG()
        for i in range(50):
            B.add(f"buffer_load_dwordx4 a[{WOR[i]}:{WOR[i]+3}], v3, s[16:19], s31 offen offset:{1024*(i%4)} {HO}", f"wo{i}", post=("s_add_u32 s31, s31, 4096" if i % 4 == 3 else ""))
        return B
    def small():
        S = BG()
        global XQ
        X_ = XQ = BG()
        for j in range(8):
            S.add(f"buffer_load_dword v{TBV+j}, v26, s[16:19], s54 offen {HO}", post=f"s_add_u32 s54, s54, 6144")
        for c in range(5):
            if OPT.get("xc"): S.add(f"buffer_load_dwordx2 a[{XA+2*c}:{XA+2*c+1}], v24, s[16:19], s3 offen offset:{2048*(c%2)} {HO}", post=("s_add_u32 s3, s3, 4096" if c % 2 else ""))
        return S
    NPRE = O("wo_pre", 20)
    def loop(act_first, order_tail, fill_after, B, sfx):
        items = [(ks, j) for ks in range(40 - len(order_tail)//4) for j in range(4)] + order_tail
        first = {}
        for n_, (ks_, j_) in enumerate(items): first.setdefault(ks_//4, n_)
        NCHK = 2*(80 - 8*PRE - O("ramp1", 0)) + O("chk", 0)
        if OPT.get("ulate"): assert O("un_sig", 6) >= O("un_proc", 4) + PRE and 16*(O("un_proc", 4) - PRE) >= O("un_iss", 0)
        def rd(n):
            ks, j = items[n]
            if ks >= 4 and first[ks//4] == n:
                k.wait(vm=f"W{ks//4}"); k.i("s_barrier")
                if OPT.get("ulate") and ks//4 == O("un_proc", 4):
                    sv1 = snap(); unit_proc(sfx); rest(sv1)
                if ks//4 == (O("un_sig", 6) if OPT.get("ulate") else PRE + 1):
                    signal(1, f"v_mov_b32 v7, 0\ns_lshl_b32 s42, s45, 2\ns_add_u32 s42, s42, {F0B}", 6)
            o = ((ks % 32)*4 + j) * 1024
            r = WB + 4*(n % NS)
            k.lg(f"ds_read_b128 v[{r}:{r+3}], v{3 + o//65536} offset:{o % 65536}", f"w{n}")
        for n in range(AH): rd(n)
        fill = []
        for n, (ks, j) in enumerate(items):
            if OPT.get('ulate') and n == O('un_iss', 0): unit_issue(sfx)
            if n % 2 == 0:
                k.wait(vm=f"X{max(items[n][0], items[n+1][0])}", lg=f"w{n+1}")
                if n % 16 == 0: stamp(8 + n//16, "p1")
            w = vr(WB + 4*(n % NS), 4); x = ar(4*ks, 4); d = vr(ACC + 16*j, 16)
            c = "0" if ks == 0 else d
            k.i(f"v_mfma_f32_32x32x16_bf16 {d}, {x}, {w}, {c}" if act_first else f"v_mfma_f32_32x32x16_bf16 {d}, {w}, {x}, {c}")
            if n % 2 == 0:
                if Q.left(): Q.go()
                if n % 4 == 0 and n < 4*O("ramp1", 0): Q.go()

            else:
                for m_ in (n - 1 + AH, n + AH):
                    if m_ < 160: rd(m_)
            if n == NCHK - 16:
                k.i(f"s_mov_b32 s42, {F0B}")
                k.vm(f"buffer_load_dwordx4 v[{FB0}:{FB0+3}], v3, s[16:19], s42 offen sc1", "f0b")
            if n == NCHK:
                k.wait(vm="f0b")
                check4(FB0)
                k.i(f"s_cbranch_vccz p1_ok{sfx}\ns_mov_b32 s42, {F0B}")
                poll(3, 42, FB0, wide=True, w0=False)
                k.label(f"p1_ok{sfx}")
                SQ[0] = small()
                lim[0] = min(21, NPRE); k.th = O("th1", 96)
                k.auto = lambda: B.go() if 50 - B.left() < lim[0] else None
            if n in fill_after: fill += fill_after[n]
            for _ in range(6):
                if fill: k.i(fill.pop(0))
        lim[0] = NPRE; k.th = O("th1e", 90)
        for l in fill: k.i(l)
    lim = [0]; SQ = [None]
    def phi_lines(t):
        with capture() as c:
            for b in range(0, 16, 4): phi4(ACC + 16*t + b, PK + 8*t + b//2, T)
        return c.lines
    TL = O("tl1", 4)
    tail = [(ks, j) for ks in range(40-TL, 40) for j in (0, 1)] + [(ks, j) for ks in range(40-TL, 40) for j in (2, 3)]
    B = mkbg()
    loop(True, tail, {161 - 2*TL: phi_lines(0) + phi_lines(1)}, B, "kv")
    stamp(5)
    k.i("s_lshl_b32 s33, s20, 13\ns_add_u32 s33, s33, 32768\nv_add_u32 v6, s33, v3")
    for t in (0, 1):
        for f in range(2):
            k.lg(f"ds_write_b128 v6, v[{PK+8*t+4*f}:{PK+8*t+4*f+3}] offset:{2048*t+1024*f}")
    for t in (2, 3):
        for p in range(8):
            k.i(f"v_cvt_pk_bf16_f32 v{PK+8*t+p}, v{ACC+16*t+2*p}, v{ACC+16*t+2*p+1}")
        if t == 3:
            k.i("s_mov_b32 s34, 0xf0000000\ns_mov_b32 s35, 0xf0000000\nv_mov_b32 v7, 0x3f803f80")
            for p in range(8): k.i(f"v_cndmask_b32 v{PK+24+p}, v{PK+24+p}, v7, s[34:35]")
        for f in range(2):
            k.lg(f"ds_write_b128 v6, v[{PK+8*t+4*f}:{PK+8*t+4*f+3}] offset:{2048*t+1024*f}")
    k.i("""s_lshr_b32 s33, s20, 1
    s_and_b32 s34, s20, 1
    s_lshl_b32 s35, s33, 11
    s_add_u32 s35, s35, 32768
    v_add_u32 v8, s35, v3
    s_lshl_b32 s35, s34, 11
    s_add_u32 s35, s35, 36864
    v_add_u32 v9, s35, v3""")
    k.wait(lg="all"); k.i("s_barrier")
    stamp(8, "p1e")
    FA = 64; FB = 96; DD = 128
    for w in range(4):
        for f in range(2):
            n = 2*w + f
            k.lg(f"ds_read_b128 v[{FA+4*n}:{FA+4*n+3}], v8 offset:{8192*w+1024*f}")
            k.lg(f"ds_read_b128 v[{FB+4*n}:{FB+4*n+3}], v9 offset:{8192*w+1024*f}", f"f{n}")
    with capture() as c:
        k.i("""v_and_b32 v10, 31, v1
        s_lshl_b32 s35, s34, 5
        v_add_u32 v10, s35, v10
        v_mul_u32_u24 v11, 205, v10
        v_lshrrev_b32 v11, 12, v11
        v_mul_u32_u24 v12, 20, v11
        v_sub_u32 v12, v10, v12
        v_cmp_eq_u32 s[36:37], 60, v10
        v_mov_b32 v13, 20
        v_lshrrev_b32 v14, 5, v1
        v_cndmask_b32 v12, v12, v13, s[36:37]
        v_mul_u32_u24 v12, 80, v12
        v_lshlrev_b32 v14, 2, v14
        s_lshl_b32 s35, s33, 5
        v_add_u32 v14, s35, v14
        v_lshlrev_b32 v22, 2, v0
        v_add_u32 v23, 65536, v22
        v_add_u32 v12, 65536, v12""")
        MS = [4, 6, 24, 34]
        for j in range(4):
            ms = MS[j]
            k.i(f"""v_add_u32 v15, {8*j}, v14
            v_mul_u32_u24 v20, 205, v15
            v_lshrrev_b32 v20, 12, v20
            v_mul_u32_u24 v21, 20, v20
            v_sub_u32 v21, v15, v21
            v_cmp_eq_u32 s[{ms}:{ms+1}], v20, v11
            v_cmp_gt_u32 vcc, 3, v20
            v_mul_u32_u24 v20, 1680, v20
            v_lshl_add_u32 v21, v21, 2, v12
            v_add_u32 v{16+j}, v20, v21
            s_or_b64 s[{ms}:{ms+1}], s[{ms}:{ms+1}], s[36:37]
            s_and_b64 s[{ms}:{ms+1}], s[{ms}:{ms+1}], vcc""")
    fill = c.lines
    for _ in range(16): k.i(fill.pop(0))
    def kvm(n):
        def f():
            k.wait(lg=f"f{n}")
            k.i(f"v_mfma_f32_32x32x16_bf16 v[{DD}:{DD+15}], v[{FA+4*n}:{FA+4*n+3}], v[{FB+4*n}:{FB+4*n+3}], {'0' if n == 0 else vr(DD,16)}")
        return f
    for l in merge([kvm(n) for n in range(8)], fill, 6): k.i(l)
    for j in range(4):
        k.i(f"s_mov_b64 exec, s[{MS[j]}:{MS[j]+1}]")
        k.lg(f"ds_write_b128 v{16+j}, v[{DD+4*j}:{DD+4*j+3}]")
    k.i(f"""s_mov_b64 exec, -1
    s_mul_i32 s33, s27, 5040
    s_add_u32 s33, s33, {KVA}
    s_add_u32 s4, s14, s33
    s_addc_u32 s5, s15, 0
    s_cmp_eq_u32 s27, 10
    s_movk_i32 s6, 5040
    s_cselect_b32 s6, 3360, s6
    s_mov_b32 s7, 0x20000""")
    k.wait(lg="all"); k.i("s_barrier")
    stamp(9, "p1e")
    for i in range(5):
        k.lg(f"ds_read_b32 v{32+i}, v23 offset:{1024*i}", f"d{i}")
    for i in range(5):
        k.wait(lg=f"d{i}")
        if i == 4: k.i("v_add_u32 v22, 4096, v22")
        k.vm(f"buffer_atomic_add_f32 v{32+i}, v22, s[4:7], 0 offen offset:{1024*(i%4)}", "out1")
    stamp(10, "p1e")
    def bg_finish(B):
        k.auto = None
        print("WO left for the drain:", NPRE - (50 - B.left()), file=sys.stderr)
        if O("pqe", 1):
            k.i(f"v_min_u32 v{FB0+1}, 4, v1\nv_lshlrev_b32 v{FB0+1}, 2, v{FB0+1}\ns_and_b32 s24, s2, 7\ns_lshl_b32 s24, s24, 12\ns_lshl_b32 s25, s26, 8\ns_add_u32 s24, s24, s25\ns_add_u32 s24, s24, {F1 + 128 + 12}")
            k.vm(f"buffer_load_dword v{FB0}, v{FB0+1}, s[16:19], s24 offen sc1", "out1")
        B.go(NPRE - (50 - B.left()))
    bg_finish(B)
    k.wait(vm="out1")
    k.i("s_branch p1_fin")
    k.label("p1_q")
    rest(sv); Q.q = list(Qs)
    k.i(f"""s_mul_i32 s33, s28, 40960
    s_sub_u32 s34, s27, 11
    s_lshl_b32 s34, s34, 13
    s_add_u32 s33, s33, s34
    s_add_u32 s33, s33, {PQ}""")
    tail = [(ks, j) for j in range(4) for ks in range(36, 40)]
    B = mkbg()
    loop(False, tail, {149: phi_lines(0), 153: phi_lines(1)}, B, "q")
    stamp(5)
    for t in range(4):
        if t >= 2:
            for b in range(0, 16, 4):
                phi4(ACC + 16*t + b, PK + 8*t + b//2, T)
        for f in range(2):
            k.vm(f"buffer_store_dwordx4 v[{PK+8*t+4*f}:{PK+8*t+4*f+3}], v3, s[16:19], s33 offen offset:{(2048*t+1024*f) % 4096} {HO}", "out1")
        if t == 1: k.i("s_add_u32 s33, s33, 4096")
    stamp(8, "p1e"); stamp(9, "p1e"); stamp(10, "p1e")
    bg_finish(B)
    k.wait(vm="out1")
    k.label("p1_fin")
    stamp(6)
    k.i("s_barrier")
    sig_all(F1, 6)
    k.i(f"""s_cmp_lg_u32 s45, 0
    s_cbranch_scc1 p1_noep""")
    signal(1, f"v_mov_b32 v7, 0\ns_mov_b32 s42, {CB}", 6)
    k.label("p1_noep")
    WOB = B
    k.i("v_mov_b32 v5, v24")
    k.i(f"s_mov_b32 s26, s{PWQ}\ns_mov_b32 s27, s{PWQ+1}")
    if O("pqe", 1):
        k.i(f"v_cmp_ne_u32 vcc, s44, v{FB0}\ns_cbranch_vccz p1_qok")
        poll(FB0+1, 24, FB0, w0=False)
        k.label("p1_qok")
        k.i(f"""s_mul_i32 s22, s29, 40960
        s_mul_i32 s33, s20, 10240
        s_add_u32 s22, s22, s33
        s_add_u32 s22, s22, {PQ}""")
        for kl in range(10):
            k.vm(f"buffer_load_dwordx4 a[{PQA+4*kl}:{PQA+4*kl+3}], v3, s[16:19], s22 offen offset:{1024*(kl%4)} {HO}", f"pq{kl}")
            if kl % 4 == 3: k.i("s_add_u32 s22, s22, 4096")
    k.vm(f"global_load_ushort v{TBV+8}, v27, s[{PB1}:{PB1+1}]")
    SQ[0].go(99)
    if XM == "win": xloads("")
    if XM == "mix":
        k.i("s_cmp_lg_u32 s20, 0\ns_cbranch_scc1 p1_nox2")
        xloads("")
        k.label("p1_nox2")
    WOB.go(O("wo_w", 5))
    NW1 = O("w1_w", 16)
    k.i(f"""s_mul_i32 s25, s27, 122880
    s_add_u32 s25, s25, {W1}
    s_cmp_eq_u32 s20, 0
    s_cbranch_scc1 p1_now1
    s_sub_u32 s23, s20, 1
    s_mul_i32 s23, s23, {NW1*1024}
    s_add_u32 s24, s25, s23""")
    for i in range(NW1):
        if i % 4 == 0: k.i(f"s_add_u32 m0, s23, {1024*i}")
        if not OPT.get("nobg"): k.i(f"buffer_load_dwordx4 v3, s[16:19], s24 offen offset:{1024*(i%4)} {HO} lds")
        if i % 4 == 3: k.i("s_add_u32 s24, s24, 4096")
    k.i("s_waitcnt vmcnt(0)" if OPT.get("nobg") else f"s_waitcnt vmcnt({NW1})")
    k.label("p1_now1")
    stamp(7)

W2B = None
def phase2():
    global W2B
    P2L = 102400
    k.i(f"""s_mul_i32 s21, s20, 13440
    s_add_u32 s21, s21, {KVA}
    s_mul_i32 s23, s20, 15360
    s_add_u32 s23, s23, {P2L+64}
    s_mul_i32 s22, s29, 40960
    s_mul_i32 s33, s20, 10240
    s_add_u32 s22, s22, s33
    s_add_u32 s22, s22, {PQ}
    v_bfe_u32 v8, v1, 2, 3
    v_lshlrev_b32 v8, 2, v8
    v_and_b32 v9, 3, v1
    s_mov_b32 s33, 0x55524130
    s_mov_b32 s34, 0x55453120
    v_bfe_u32 v10, s33, v8, 4
    v_bfe_u32 v11, s34, v8, 4
    v_lshl_add_u32 v10, v10, 2, v9
    v_lshl_add_u32 v11, v11, 2, v9
    v_min_u32 v10, 20, v10
    v_min_u32 v11, 20, v11
    v_lshrrev_b32 v12, 5, v1
    v_lshlrev_b32 v12, 4, v12
    s_sub_u32 s33, s23, 16
    v_add_u32 v12, s33, v12
    v_mul_u32_u24 v10, 80, v10
    v_mul_u32_u24 v11, 80, v11
    v_add_u32 v10, v10, v12
    v_add_u32 v11, v11, v12
    s_lshl_b32 s28, s26, 2
    s_add_u32 s28, s28, s20
    s_mov_b32 s36, 0
    s_mov_b32 s37, -1
    s_lshl_b32 s35, s13, 2
    s_add_u32 s35, s35, s20
    s_mul_i32 s35, s35, 61440
    s_add_u32 s35, s35, {W2}""")
    poll_all(F1, 14, O('slp1', 0))
    k.i("s_barrier")
    k.vm_done = k.vm_n
    stamp(8)
    for i in range(14):
        if i % 4 == 0: k.i(f"s_add_u32 m0, s23, {1024*i}")
        k.vm(f"buffer_load_dwordx4 v3, s[16:19], s21 offen offset:{1024*(i%4)} {HO} lds", f"kv{i}")
        if i % 4 == 3: k.i("s_add_u32 s21, s21, 4096")
        if i in (6, 13) and not O("pqe", 1):
            for kl in (range(0, 5) if i == 6 else range(5, 10)):
                k.vm(f"buffer_load_dwordx4 a[{PQA+4*kl}:{PQA+4*kl+3}], v3, s[16:19], s22 offen offset:{1024*(kl%4)} {HO}", f"pq{kl}")
                if kl % 4 == 3: k.i("s_add_u32 s22, s22, 4096")
    if OPT.get("xm") == "late":
        for c in range(5):
            XQ.add(f"global_load_dwordx2 a[{XA+2*c}:{XA+2*c+1}], v5, s[{PX}:{PX+1}] offset:{64*c} {OPT.get('xpol', '')}", "xres")
    NW1 = O("w1_w", 16); N1 = (96 - 3*NW1) // 4
    assert 3*NW1 + 4*N1 == 96
    k.i(f"s_mul_i32 s24, s20, {N1*1024}\ns_add_u32 s24, s24, {3*NW1*1024}\ns_add_u32 s25, s25, s24")
    B1 = BG()
    for i in range(N1):
        B1.add(f"buffer_load_dwordx4 v3, s[16:19], s25 offen offset:{1024*(i%4)} {HO} lds", "w1",
               pre=(f"s_add_u32 m0, s24, {1024*i}" if i % 4 == 0 else ""), post=("s_add_u32 s25, s25, 4096" if i % 4 == 3 else ""))
    W2B = BG()
    for i in range(60):
        W2B.add(f"buffer_load_dwordx4 a[{W2R[i]}:{W2R[i]+3}], v3, s[16:19], s35 offen offset:{1024*(i%4)} {HO}", "w2", post=("s_add_u32 s35, s35, 4096" if i % 4 == 3 else ""))
    AF = 20; TT = 84; DT = 180; OG = 84; ACC = [20, 36, 124, 140, 156]
    for j in range(1, 8): k.i(f"v_add_f32 v{TBV}, v{TBV}, v{TBV+j}")
    k.i(f"v_lshlrev_b32 v{TBV+1}, 16, v{TBV+8}")
    jobs = {}
    n = 0
    for hl in range(8):
        jobs[hl] = []
        for u in range(2):
            for h2 in range(2):
                dg0 = -(hl % 4) + 4*u + 2*h2
                v0_ = 0 <= dg0 <= 4; v1_ = 0 <= dg0+1 <= 4
                d = AF + (2*hl+u)*4 + 2*h2
                if v0_ or v1_:
                    jobs[hl].append((d, n, v0_, v1_, hl*1680 + 16*(dg0+1))); n += 1
                else:
                    jobs[hl].append((d, None, 0, 0, 0))
                    k.i(f"v_mov_b32 v{d}, 0\nv_mov_b32 v{d+1}, 0")
    def kvreads(lo, hi):
        for hl in range(lo, hi):
            for d, n, _, _, o in jobs[hl]:
                if n is not None: k.lg(f"ds_read_b128 v[{TT+4*n}:{TT+4*n+3}], v{10 + (hl & 1)} offset:{o}", f"a{n}")
    def build(hl):
        for d, n, v0_, v1_, _ in jobs[hl]:
            if n is None: continue
            k.wait(lg=f"a{n}")
            t = TT + 4*n
            k.i(f"v_cvt_pk_bf16_f32 v{d}, v{t}, v{t+1}\nv_cvt_pk_bf16_f32 v{d+1}, v{t+2}, v{t+3}")
            if not v1_: k.i(f"v_cndmask_b32 v{d}, v{d}, 0, s[36:37]\nv_cndmask_b32 v{d+1}, v{d+1}, 0, s[36:37]")
            if not v0_: k.i(f"v_cndmask_b32 v{d}, 0, v{d}, s[36:37]\nv_cndmask_b32 v{d+1}, 0, v{d+1}, s[36:37]")
    def omm(hl):
        t0 = hl + hl//4
        d = vr(DT + 16*(hl % 4), 16)
        def f(u):
            def g():
                k.wait(vm=f"pq{t0+u}")
                k.i(f"v_mfma_f32_32x32x16_bf16 {d}, {vr(AF+(2*hl+u)*4, 4)}, {ar(PQA+4*(t0+u), 4)}, {'0' if u == 0 else d}")
            return g
        return [f(0), f(1)]
    def opost(hl):
        p = hl // 2; odd = hl & 1
        D = DT + 16*(hl % 4); rc = 16 + 2*odd
        a, b = (D+8, D+12) if odd else (D+12, D+8)
        with capture() as c:
            k.i(f"v_cndmask_b32 v{rc}, v{a}, v{b}, s[36:37]\nv_add_f32 v{rc}, s38, v{rc}\nv_rcp_f32 v{rc}, v{rc}\ns_nop 0")
            for h in range(6):
                k.i(f"v_pk_mul_f32 v[{D+2*h}:{D+2*h+1}], v[{D+2*h}:{D+2*h+1}], v[{rc}:{rc+1}] op_sel_hi:[1,0]")
            for j in range(2):
                g = OG + 2*(5*p + 2*odd + j)
                k.i(f"v_cvt_pk_bf16_f32 v{g}, v{D+4*j}, v{D+4*j+1}\nv_cvt_pk_bf16_f32 v{g+1}, v{D+4*j+2}, v{D+4*j+3}")
            g = OG + 2*(5*p + 4)
            if not odd:
                k.i(f"v_cvt_pk_bf16_f32 v{g}, v{D+8}, v{D+9}\nv_cvt_pk_bf16_f32 v{g+1}, v{D+10}, v{D+11}")
            else:
                k.i(f"v_cvt_pk_bf16_f32 v{D}, v{D+8}, v{D+9}\nv_cvt_pk_bf16_f32 v{D+1}, v{D+10}, v{D+11}")
                k.i(f"v_cndmask_b32 v{g}, v{g}, v{D}, s[36:37]\nv_cndmask_b32 v{g+1}, v{g+1}, v{D+1}, s[36:37]")
        return c.lines
    def wo(u, c, bg=True):
        def f():
            d = vr(ACC[c], 16)
            while f"wo{5*u+c}" not in k.vm_tags or (WOB.left() and 50 - WOB.left() <= 5*u+c): WOB.go()
            k.wait(vm=f"wo{5*u+c}")
            k.i(f"v_mfma_f32_32x32x16_bf16 {d}, {ar(WOR[5*u+c], 4)}, {vr(OG+4*u, 4)}, {'0' if u == 0 else d}")
            w2lim[0] = min(5*u, 35)
        return f
    w2lim = [0]
    def au2():
        if WOB.left(): WOB.go()
        elif XQ.left(): XQ.go(5)
        elif B1.left(): B1.go()
        elif 60 - W2B.left() < w2lim[0]: W2B.go()
    k.auto = au2; k.th = O("th2", 90)
    k.wait(vm="kv6")
    stamp(13, "p2")
    kvreads(0, 4)
    for hl in range(4):
        build(hl)
        for f in omm(hl): f()
        if hl == 1:
            k.wait(vm="kv13"); kvreads(4, 8)
    for hl in range(4, 8):
        build(hl)
    stamp(9)
    for l in opost(0): k.i(l)
    for l in merge(omm(4), opost(1), 9): k.i(l)
    stamp(10)
    for l in merge(omm(5) + [wo(u, c) for u in (0, 1) for c in range(5)], opost(2) + opost(3), 4): k.i(l)
    for l in merge(omm(6) + omm(7) + [wo(u, c) for u in (2, 3, 4) for c in range(5)], opost(4) + opost(5), 3): k.i(l)
    with capture() as c:
        k.i(f"s_sub_u32 s33, s23, 64\nv_add_u32 v13, s33, v3")
        for j in range(1, 4):
            k.i(f"s_sub_u32 s33, s20, {j}\ns_and_b32 s33, s33, 3\ns_mul_i32 s33, s33, 15360\ns_add_u32 s33, s33, {P2L + (j-1)*5120}\nv_add_u32 v{13+j}, s33, v3")
    for l in merge([wo(u, c) for u in (5, 6) for c in range(5)], opost(6) + opost(7), 4): k.i(l)
    XF = 180
    with capture() as c2:
        k.i("s_mov_b32 s33, 0xffff0000")
        for j in range(10):
            k.i(f"v_accvgpr_read_b32 v{XF+2*j+1}, a{XA+j}")
        for j in range(10):
            k.i(f"v_lshlrev_b32 v{XF+2*j}, 16, v{XF+2*j+1}\nv_and_b32 v{XF+2*j+1}, s33, v{XF+2*j+1}")
    XL = OPT.get("xm") == "late"
    fill = c.lines + ([] if XL else c2.lines)
    XQ.go(99)
    def red_w(c):
        for j in range(1, 4):
            r = ACC[c] + 4*j
            k.lg(f"ds_write_b128 v13, v[{r}:{r+3}] offset:{(j-1)*5120 + 1024*c}")
    for c in range(5):
        fill = merge([wo(u, c) for u in (7, 8, 9)], fill, 4)
        if c >= 2: red_w(c - 2)
    for l in fill: k.i(l)
    w2lim[0] = 60
    stamp(11)
    red_w(3); red_w(4)
    def own():
        for c in range(5):
            for h in range(2):
                d = XF + 4*c + 2*h; a = ACC[c] + 2*h
                k.i(f"v_pk_add_f32 v[{d}:{d+1}], v[{d}:{d+1}], v[{a}:{a+1}]")
    if not XL: own()
    k.wait(lg="all"); k.i("s_barrier")
    stamp(14, "p2")
    RR = 52 if XL else 84
    for j in range(1, 4):
        for c in range(5):
            r = RR + 20*(j-1) + 4*c
            k.lg(f"ds_read_b128 v[{r}:{r+3}], v{13+j} offset:{1024*c}", f"r{j}_{c}")
    k.i(f"""s_mul_i32 s34, s29, 40
    s_mul_i32 s21, s30, 10
    s_add_u32 s34, s34, s21
    s_lshr_b32 s21, s20, 1
    s_add_u32 s34, s34, s21
    s_lshl_b32 s34, s34, 10
    s_and_b32 s21, s20, 1
    s_lshl_b32 s21, s21, 9
    s_add_u32 s34, s34, s21
    s_add_u32 s34, s34, {HH}
    v_and_b32 v8, 31, v1
    v_lshrrev_b32 v9, 5, v1
    v_lshlrev_b32 v12, 3, v8
    v_lshlrev_b32 v8, 4, v8
    v_lshl_add_u32 v8, v9, 3, v8""")
    HP = 24
    if XL:
        k.wait(vm="xres")
        for l in c2.lines: k.i(l)
        own()
    for j in range(1, 4):
        for c in range(5):
            k.wait(lg=f"r{j}_{c}")
            for h in range(2):
                d = XF + 4*c + 2*h; a = RR + 20*(j-1) + 4*c + 2*h
                k.i(f"v_pk_add_f32 v[{d}:{d+1}], v[{d}:{d+1}], v[{a}:{a+1}]")
            if j == 3:
                k.i(f"v_cvt_pk_bf16_f32 v{HP+2*c}, v{XF+4*c}, v{XF+4*c+1}\nv_cvt_pk_bf16_f32 v{HP+2*c+1}, v{XF+4*c+2}, v{XF+4*c+3}")
                k.vm(f"buffer_store_dwordx2 v[{HP+2*c}:{HP+2*c+1}], v8, s[16:19], s34 offen offset:{2048*(c%2)} {HO}")
                if c % 2 == 1: k.i("s_add_u32 s34, s34, 4096")
    for j in range(10):
        k.i(f"v_lshlrev_b32 v{XF+2*j}, 16, v{HP+j}\nv_and_b32 v{XF+2*j+1}, s33, v{HP+j}")
    k.i(f"v_pk_add_f32 v[16:17], v[{XF}:{XF+1}], v[{XF+2}:{XF+3}]")
    k.i(f"v_pk_mul_f32 v[18:19], v[{XF}:{XF+1}], v[{XF}:{XF+1}]")
    k.i(f"v_pk_fma_f32 v[18:19], v[{XF+2}:{XF+3}], v[{XF+2}:{XF+3}], v[18:19]")
    for j in range(2, 10):
        k.i(f"v_pk_add_f32 v[16:17], v[16:17], v[{XF+2*j}:{XF+2*j+1}]")
        k.i(f"v_pk_fma_f32 v[18:19], v[{XF+2*j}:{XF+2*j+1}], v[{XF+2*j}:{XF+2*j+1}], v[18:19]")
    k.i(f"""v_add_f32 v16, v16, v17
    v_add_f32 v17, v18, v19
    v_mov_b32 v18, v16
    v_mov_b32 v19, v17
    s_lshl_b32 s34, s29, 4
    s_lshl_b32 s21, s30, 2
    s_add_u32 s34, s34, s21
    s_add_u32 s34, s34, s20
    v_permlane32_swap_b32 v16, v18
    v_permlane32_swap_b32 v17, v19
    s_lshl_b32 s34, s34, 8
    s_add_u32 s34, s34, {ST}
    v_pk_add_f32 v[16:17], v[16:17], v[18:19]
    s_mov_b64 exec, 0xffffffff""")
    k.vm(f"buffer_store_dwordx2 v[16:17], v12, s[16:19], s34 offen {HO}", "out2")
    k.i("s_mov_b64 exec, -1")
    stamp(15, "p2")
    k.auto = None
    print("P2 end: W1 left", B1.left(), "W2 left", W2B.left(), file=sys.stderr)
    B1.go(99)
    if not OPT.get("nodrain"):
        W2B.go(O("w2_d2", 12))
        k.wait(vm="out2")
    stamp(12)
    k.i("s_barrier")
    sig_row(F2, 6, "s_and_b32 s42, s29, 3", "s_mov_b32 s43, s30")
    k.i(f"s_mul_i32 s23, s20, 6144\ns_mul_i32 s25, s27, 122880\ns_add_u32 s25, s25, s23\ns_add_u32 s25, s25, {W1 + 98304}")
    for i in range(6):
        if i % 4 == 0: k.i(f"s_add_u32 m0, s23, {98304 + 1024*i}")
        k.vm(f"buffer_load_dwordx4 v3, s[16:19], s25 offen offset:{1024*(i%4)} {HO} lds", "w1t")
        if i % 4 == 3: k.i("s_add_u32 s25, s25, 4096")
    k.i(f"v_lshlrev_b32 v6, 2, v0\nv_add_u32 v6, 122880, v6")
    k.lg(f"ds_write_b32 v6, v{TBV}")
    k.lg(f"ds_write_b32 v6, v{TBV+1} offset:1024")

def phase3():
    TB = 122880
    k.i(f"""s_mul_i32 s21, s28, 40960
    s_add_u32 s21, s21, {HH}
    v_and_b32 v8, 31, v1
    v_lshrrev_b32 v7, 5, v1
    v_lshlrev_b32 v8, 3, v8
    v_lshl_add_u32 v8, v7, 8, v8
    s_lshl_b32 s33, s28, 12
    s_add_u32 s33, s33, {ST}
    v_lshlrev_b32 v14, 4, v7
    v_add_u32 v14, {TB}, v14
    v_bfe_u32 v15, v1, 4, 1
    v_mul_u32_u24 v15, 49152, v15
    v_and_b32 v16, 15, v1
    v_lshl_add_u32 v15, v16, 4, v15
    v_lshl_add_u32 v15, v7, 9, v15
    s_mul_i32 s34, s28, 98304
    s_mul_i32 s25, s27, 3072
    s_add_u32 s34, s34, s25
    s_add_u32 s34, s34, {H1}""")
    W2B.go(O("w2_w2", 4))
    k.wait(vm="w1t", lg="all")
    k.i("s_barrier")
    poll_row(F2, 10, O('slp2', 0))
    stamp(13)
    ACC = 40; WB = 88; NS = 9; AH = 6; NR = O("pre3", 12); SR = 20; CT = 172
    HRL = list(range(124, 172, 4)) + list(range(220, 256, 4))
    H = BG()
    for i in range(40):
        r = HRL[i % NR]
        H.add(f"buffer_load_dwordx4 v[{r}:{r+3}], v3, s[16:19], s21 offen offset:{1024*(i%4)} {HO}", f"h{i}", post=("s_add_u32 s21, s21, 4096" if i % 4 == 3 else ""))
    R3 = O("r3", NR - 1)
    def stats_ld():
        for j in range(8):
            k.vm(f"buffer_load_dwordx2 v[{SR+2*j}:{SR+2*j+1}], v8, s[16:19], s33 offen offset:{512*j} {HO}", "stats")
    if R3 == NR - 1:
        H.go(4); stats_ld(); H.go(NR - 5)
    else: H.go(R3)
    TL = O("tl3", 4)
    items = [(ks, j) for ks in range(40-TL) for j in range(3)] + [(ks, j) for j in range(3) for ks in range(40-TL, 40)]
    def rd(n):
        ks, j = items[n]
        o = (ks*3 + j) * 1024
        r = WB + 4*(n % NS)
        k.lg(f"ds_read_b128 v[{r}:{r+3}], v{3 + o//65536} offset:{o % 65536}", f"w{n}")
    with capture() as c:
        for j in range(1, 8): k.i(f"v_pk_add_f32 v[{SR}:{SR+1}], v[{SR}:{SR+1}], v[{SR+2*j}:{SR+2*j+1}]")
        k.i(f"""v_mov_b32 v10, v{SR}
        v_mov_b32 v11, v{SR+1}
        v_permlane32_swap_b32 v{SR}, v10
        v_permlane32_swap_b32 v{SR+1}, v11
        v_pk_add_f32 v[8:9], v[{SR}:{SR+1}], v[10:11]
        v_mul_f32 v8, 0x3acccccd, v8
        v_mul_f32 v9, 0x3acccccd, v9
        v_fma_f32 v9, -v8, v8, v9
        v_max_f32 v9, 0, v9""")
        bf16r(8, 8); bf16r(9, 9)
        k.i("v_add_f32 v9, 0x3727c5ac, v9")
        bf16r(9, 9)
        k.i("v_sqrt_f32 v9, v9")
        bf16r(9, 9)
        k.i("v_rcp_f32 v10, v9\nv_mul_f32 v12, v8, v10\nv_sub_f32 v12, 0, v12")
    statl = c.lines
    def tab_reads(nt):
        for j in range(4):
            n = 4*nt + j
            k.lg(f"ds_read_b128 v[{CT+4*n}:{CT+4*n+3}], v14 offset:{1024+128*nt+32*j}")
            k.lg(f"ds_read_b128 v[{SR+4*j}:{SR+4*j+3}], v14 offset:{128*nt+32*j}", f"t{nt}")
    def tab_lines(nt):
        with capture() as c:
            for j in range(4):
                b = CT + 4*(4*nt + j)
                for h in range(2):
                    k.i(f"v_pk_fma_f32 v[{b+2*h}:{b+2*h+1}], v[{SR+4*j+2*h}:{SR+4*j+2*h+1}], v[12:13], v[{b+2*h}:{b+2*h+1}] op_sel_hi:[1,0,1]")
        return c.lines
    def epi_lines(nt, j):
        n = 4*nt + j
        a = ACC + 4*n; b = CT + 4*n
        with capture() as c:
            for h in range(2):
                k.i(f"v_pk_fma_f32 v[{a+2*h}:{a+2*h+1}], v[{a+2*h}:{a+2*h+1}], v[10:11], v[{b+2*h}:{b+2*h+1}] op_sel_hi:[1,0,1]")
            for h in range(4): k.i(f"v_max_f32 v{a+h}, 0, v{a+h}")
            for h in range(2):
                k.i(f"v_pk_mul_f32 v[{a+2*h}:{a+2*h+1}], v[{a+2*h}:{a+2*h+1}], v[{a+2*h}:{a+2*h+1}]")
            for h in range(2):
                k.i(f"v_cvt_pk_bf16_f32 v{CT+8*(n//2)+2*(n%2)+h}, v{a+2*h}, v{a+2*h+1}")
        return c.lines
    def st_h1(nt, e):
        k.vm(f"buffer_store_dwordx4 v[{CT+16*nt+8*e}:{CT+16*nt+8*e+3}], v15, s[16:19], s34 offen offset:{1024*nt+256*e} {HO}", "out3")
    for n in range(AH): rd(n)
    fill = []
    k.auto = lambda: W2B.go(); k.th = O("th3", 100)
    for n, (ks, j) in enumerate(items):
        k.wait(vm=f"h{ks}", lg=f"w{n}")
        if n == 12: cst(7)
        if n == 108: cst(9)
        d = vr(ACC + 16*j, 16)
        k.i(f"v_mfma_f32_32x32x16_bf16 {d}, {vr(WB + 4*(n % NS), 4)}, {vr(HRL[ks % NR], 4)}, {'0' if ks == 0 else d}")
        if n % 3 == 0: H.go()
        elif n % 3 == 1 and 40 - H.left() < n//3 + NR - 1 and n < 3*(40 - TL): H.go()
        if R3 != NR - 1 and n == O("st3", 26): stats_ld()
        if O('w2_p3', 0) and n % O('w2_p3', 0) == 4: W2B.go()
        if n + AH < 120: rd(n + AH)
        if n == (18 if R3 == NR - 1 else O('st3', 26) + 9):
            k.wait(vm='stats'); fill += statl
        for nt in range(3):
            if n == 52 + 12*nt: tab_reads(nt)
            if n == 58 + 12*nt:
                k.wait(lg=f"t{nt}"); fill += tab_lines(nt)
        if n == 121 - 2*TL: fill += epi_lines(0, 0) + epi_lines(0, 1) + epi_lines(0, 2) + epi_lines(0, 3)
        if n == 121 - TL: fill += epi_lines(1, 0) + epi_lines(1, 1)
        for _ in range(3 if n < 120 - 2*TL else 6):
            if fill: k.i(fill.pop(0))
    stamp(14)
    for l in fill: k.i(l)
    st_h1(0, 0); st_h1(0, 1); st_h1(1, 0)
    for nt, j in ((1, 2), (1, 3), (2, 0), (2, 1), (2, 2), (2, 3)):
        for l in epi_lines(nt, j): k.i(l)
        if j % 2 == 1: st_h1(nt, j // 2)
    k.auto = None
    print("P3 end: W2 left", W2B.left(), file=sys.stderr)
    if not OPT.get("nodrain"):
        W2B.go(O("w2_d3", 12))
        k.wait(vm="out3")
    stamp(15)
    k.i("s_barrier")
    sig_row(F3, 6, "s_lshr_b32 s42, s27, 2", "s_and_b32 s43, s27, 3")

def phase4():
    HR = 20; BR = 30; ACC = 40; RING = 120; NB = O("nb4", 6)
    srd(8, PB2, 1280)
    k.i(f"""v_and_b32 v4, 15, v1
    v_lshrrev_b32 v5, 4, v1
    s_lshl_b32 s33, s12, 1
    s_lshr_b32 s25, s20, 1
    s_add_u32 s33, s33, s25
    s_mul_i32 s33, s33, 40
    s_mul_i32 s25, s13, 5
    s_add_u32 s33, s33, s25
    s_lshl_b32 s33, s33, 10
    s_add_u32 s33, s33, {HH}
    s_and_b32 s25, s20, 1
    s_lshl_b32 s25, s25, 8
    s_add_u32 s33, s33, s25
    v_lshrrev_b32 v8, 1, v5
    v_lshlrev_b32 v8, 9, v8
    v_lshl_add_u32 v8, v4, 4, v8
    v_and_b32 v9, 1, v5
    v_lshl_add_u32 v8, v9, 3, v8
    v_add_u32 v9, 4096, v8
    v_lshlrev_b32 v17, 3, v5
    s_mul_i32 s34, s13, 160""")
    for c in range(5):
        k.vm(f"buffer_load_dwordx2 v[{HR+2*c}:{HR+2*c+1}], v{8 if c < 4 else 9}, s[16:19], s33 offen offset:{1024*(c%4)} {HO}")
    for c in range(5):
        k.vm(f"buffer_load_dwordx2 v[{BR+2*c}:{BR+2*c+1}], v17, s[8:11], s34 offen offset:{32*c}", "res")
    W2B.go(99)
    k.i(f"""s_mul_i32 s21, s12, 196608
    s_mul_i32 s22, s20, 12288
    s_add_u32 s21, s21, s22
    s_add_u32 s21, s21, {H1}
    s_lshl_b32 s25, s12, 6
    s_lshl_b32 s33, s20, 4
    s_add_u32 s25, s25, s33
    v_add_u32 v6, s25, v4
    v_mul_u32_u24 v7, 1280, v6
    v_lshl_add_u32 v7, v5, 3, v7
    s_mul_i32 s33, s20, 15360
    v_add_u32 v13, s33, v3""")
    for j in range(4):
        k.i(f"s_add_u32 s33, s20, {j}\ns_and_b32 s33, s33, 3\ns_mul_i32 s33, s33, 49152\nv_add_u32 v{8+j}, s33, v3")
    for j in range(1, 4):
        k.i(f"s_sub_u32 s33, s20, {j}\ns_and_b32 s33, s33, 3\ns_mul_i32 s33, s33, 15360\ns_add_u32 s33, s33, {(j-1)*5120}\nv_add_u32 v{13+j}, s33, v3")
    srd(8, POUT, 2621440)
    poll_row(F3, 18, O('slp3', 0))
    stamp(16)
    Q = BG()
    for i in range(48):
        t, j = divmod(i, 4)
        r = RING + 16*(t % NB) + 4*j
        Q.add(f"buffer_load_dwordx4 v[{r}:{r+3}], v{8+j}, s[16:19], s21 offen offset:{1024*(t%4)} {HO}", f"s{t}_{j}", post=("s_add_u32 s21, s21, 4096" if i % 16 == 15 else ""))
    Q.go(O('r4', 4*(NB-1)))
    XF = 232
    with capture() as c4:
        k.i("s_mov_b32 s33, 0xffff0000")
        for j in range(10):
            k.i(f"v_lshlrev_b32 v{XF+2*j}, 16, v{HR+j}\nv_and_b32 v{XF+2*j+1}, s33, v{HR+j}")
            k.i(f"v_lshlrev_b32 v{XF+20}, 16, v{BR+j}\nv_and_b32 v{XF+21}, s33, v{BR+j}")
            k.i(f"v_pk_add_f32 v[{XF+2*j}:{XF+2*j+1}], v[{XF+2*j}:{XF+2*j+1}], v[{XF+20}:{XF+21}]")
    fill4 = c4.lines
    def red_w(j):
        for c in range(5):
            r = ACC + 20*j + 4*c
            k.lg(f"ds_write_b128 v13, v[{r}:{r+3}] offset:{(j-1)*5120 + 1024*c}")
    order = [(t, j) for t in range(10) for j in range(4)] + [(t, j) for j in (1, 2, 3, 0) for t in (10, 11)]
    for n, (t, j) in enumerate(order):
        k.wait(vm=f"s{t}_{j}")
        if n == 4: cst(11)
        if n == 40: cst(13)
        for c in range(5):
            d = vr(ACC + (5*j+c)*4, 4)
            k.i(f"v_mfma_f32_16x16x32_bf16 {d}, {ar(W2R[5*t+c], 4)}, {vr(RING+16*(t%NB)+4*j, 4)}, {'0' if t == 0 else d}")
            if c == 1: Q.go()
            if c == 3 and 48 - Q.left() < n + 4*(NB-1): Q.go()
            for _ in range(2):
                if fill4: k.i(fill4.pop(0))
        if n in (42, 44, 46): red_w((n - 40)//2)
    stamp(17)
    k.wait(lg="all"); k.i("s_barrier")
    RR = 120
    for j in range(1, 4):
        for c in range(5):
            r = RR + 20*(j-1) + 4*c
            k.lg(f"ds_read_b128 v[{r}:{r+3}], v{13+j} offset:{1024*c}", f"r{j}_{c}")
    for c in range(5):
        for h in range(2):
            d = XF + 4*c + 2*h; a = ACC + 4*c + 2*h
            k.i(f"v_pk_add_f32 v[{d}:{d+1}], v[{d}:{d+1}], v[{a}:{a+1}]")
    for j in range(1, 4):
        for c in range(5):
            k.wait(lg=f"r{j}_{c}")
            for h in range(2):
                d = XF + 4*c + 2*h; a = RR + 20*(j-1) + 4*c + 2*h
                k.i(f"v_pk_add_f32 v[{d}:{d+1}], v[{d}:{d+1}], v[{a}:{a+1}]")
            if j == 3:
                k.i(f"v_cvt_pk_bf16_f32 v{HR+2*c}, v{XF+4*c}, v{XF+4*c+1}\nv_cvt_pk_bf16_f32 v{HR+2*c+1}, v{XF+4*c+2}, v{XF+4*c+3}")
                k.vm(f"buffer_store_dwordx2 v[{HR+2*c}:{HR+2*c+1}], v7, s[8:11], s34 offen offset:{32*c} {OPT.get('opol', '')}")

def stamp_out():
    if not OPT["stamps"]: return
    if OPT.get("enc") is not None:
        e = O("enc", 0)
        k.i(f"""s_waitcnt vmcnt(0) lgkmcnt(0)
        s_memrealtime s[100:101]
        s_waitcnt lgkmcnt(0)
        s_sub_u32 s4, s{64+2*e}, s64
        s_lshl_b32 s4, s4, 2
        s_add_u32 s4, s4, 4000
        encl:
        s_memrealtime s[6:7]
        s_waitcnt lgkmcnt(0)
        s_sub_u32 s6, s6, s64
        s_cmp_lt_u32 s6, s4
        s_cbranch_scc1 encl""")
        return
    n = NSTAMP
    k.i("s_waitcnt vmcnt(0) lgkmcnt(0)")
    k.i(f"s_memrealtime s[{64+2*n}:{65+2*n}]")
    k.i("s_waitcnt lgkmcnt(0)")
    k.i(f"s_lshl_b32 s3, s45, 2\ns_add_u32 s3, s3, s20\ns_lshl_b32 s3, s3, 7\ns_add_u32 s3, s3, 0x2000000\nv_mov_b32 v1, s3")
    for j in range(n+1): k.i(f"v_mov_b32 v{2+j}, s{64+2*j}")
    k.i("s_mov_b64 exec, 1")
    for j in range(n+1): k.i(f"global_store_dword v1, v{2+j}, s[14:15] offset:{4*j}")

def emit(path):
    global k
    k = Kern(KN)
    phase0(); phase1(); phase2(); phase3(); phase4(); stamp_out()
    k.label("kend"); k.i("s_endpgm")
    body, added = hazard_pass(k.L, verbose=bool(OPT.get("vnop")))
    print("instrs", len(body), "nop states added", added, file=sys.stderr)
    out = ["; pre-LN linear-attention block + squared-ReLU MLP in one persistent launch (256 workgroups, one per CU).",
           "; kernarg: x, wqkv, wo, (unused), w1, b1, w2, b2, out, debug, ws",
           "; phase 0: LN1 and re-layout of the weights into MFMA fragment order (d_ws)   -> flags F0 / F0B",
           "; phase 1: qkv GEMM, phi, per-tile k^T v partial sums added into d_ws          -> flags F1",
           "; phase 2: o = (pq kv) / den, h = x + o wo, row sums for LN2                    -> flags F2",
           "; phase 3: relu(LN2(h) w1 + b1)^2 (LN folded into the epilogue)                 -> flags F3",
           "; phase 4: out = h + h1 w2 + b2",
           "; hand-offs: sc1 stores, vmcnt drain, barrier, sc1 flag word = (epoch word of d_ws + 1) | 2^31, sc1 polls and loads",
           "; @launch grid=(256,1,1) block=(256,1,1) lds=163840",
           '.amdgcn_target "amdgcn-amd-amdhsa--gfx950"', ".text", f".globl {KN}", ".p2align 8", f".type {KN},@function", f"{KN}:"]
    out += [("" if (l.endswith(":") or l.startswith(";")) else "    ") + l for l in body]
    out += ['.section .rodata,"a"', ".p2align 6", f".amdhsa_kernel {KN}", "  .amdhsa_next_free_vgpr 512", "  .amdhsa_next_free_sgpr 102",
            "  .amdhsa_accum_offset 256", "  .amdhsa_group_segment_fixed_size 0", "  .amdhsa_kernarg_size 88",
            "  .amdhsa_user_sgpr_count 2", "  .amdhsa_user_sgpr_kernarg_segment_ptr 1",
            "  .amdhsa_system_sgpr_workgroup_id_x 1", ".end_amdhsa_kernel"]
    open(path, "w").write("\n".join(out) + "\n")

if __name__ == "__main__":
    for a in sys.argv[2:]:
        kk, v = a.split("=")
        OPT[kk] = {"True": True, "False": False, "none": ""}.get(v, v.replace("_", " "))
    emit(sys.argv[1])
```

```python
import sys
from asmlib import *

NAME = "sequential_preLN__linear_attn_block__dense_activation_squared_relu__prompt"
KN = NAME + "_kernel"
CB = 0x0
F0B = CB + 0x1000; F2 = 0xC0000; F3 = 0xD0000; F0 = 0x90000; F1 = 0x98000
CS = 0x10000; KVA = 0x20000; ST = 0x40000
XN = 0x100000; WQ = 0x380000; WO = 0x600000; W1 = 0x700000; W2 = 0x900000
PQ = 0xB00000; HH = 0xE00000; H1 = 0x1200000; XC = 0x1800000
WSZ = 0x1B00000
LOG2E = 0x3fb8aa3b
OPT = dict(usplit=140, th2=80, g3=3, g1=4, wo_w=10, w1_w=0, tl1=6, tl3=6, pqe=0, stamps=False, cold="nt", pre1=2, wo_pre=40, sleep=8, slp0=20, lnexact=True)
HO = "sc1"
UL = 131072
def O(n, d): return int(OPT.get(n, d))

def magic(C, maxq):
    for sh in range(4, 24):
        m = -(-(1 << sh) // C)
        if m * maxq < (1 << 32) and m < (1 << 24) and all((q * m) >> sh == q // C for q in range(maxq)): return m, sh
    raise ValueError

k = None
def srd(d, base, size):
    k.i(f"s_mov_b32 s{d}, s{base}\ns_mov_b32 s{d+1}, s{base+1}\ns_mov_b32 s{d+2}, {size}\ns_mov_b32 s{d+3}, 0x20000")
def bf16r(d, s):
    k.i(f"v_cvt_pk_bf16_f32 v{d}, v{s}, v{s}\nv_lshlrev_b32 v{d}, 16, v{d}")
NSTAMP = 18
def stamp(idx, grp=None):
    if not OPT["stamps"]: return
    f = OPT.get("focus")
    lo = {"p0": (5, 18), "p1": (8, 18), "p1e": (8, 18), "p2": (13, 18), "clk": (1, 18)}.get(f)
    if grp is None and lo and lo[0] <= idx < lo[1]: return
    if grp is not None and grp != f: return
    k.i(f"s_memrealtime s[{64+2*idx}:{65+2*idx}]")
def cst(slot):
    if OPT["stamps"] and OPT.get("focus") == "clk":
        k.i(f"s_memrealtime s[{64+2*slot}:{65+2*slot}]\ns_memtime s[{66+2*slot}:{67+2*slot}]")
def snap(): return (k.vm_n, dict(k.vm_tags), k.vm_done, k.lg_n, dict(k.lg_tags), k.lg_done)
def rest(s): k.vm_n, k.vm_tags, k.vm_done, k.lg_n, k.lg_tags, k.lg_done = s[0], dict(s[1]), s[2], s[3], dict(s[4]), s[5]

class capture:
    def __enter__(self):
        self.save = (k.L, k.auto, k._iss, k._mf); k.L = []; k.auto = None; return self
    def __exit__(self, *a):
        self.lines = k.L; k.L, k.auto, k._iss, k._mf = self.save
def merge(main, fill, per):
    fill = list(fill)
    for m in main:
        m()
        for _ in range(per):
            if fill: k.i(fill.pop(0))
    return fill

PX, PWQ, PWO, PW1, PB1, PW2, PB2, POUT = 48, 50, 52, 56, 58, 60, 62, 46

npoll = 0
def check4(vt):
    k.i(f"v_xor_b32 v{vt}, s44, v{vt}\nv_xor_b32 v{vt+1}, s44, v{vt+1}\nv_xor_b32 v{vt+2}, s44, v{vt+2}\nv_xor_b32 v{vt+3}, s44, v{vt+3}")
    k.i(f"v_or3_b32 v{vt}, v{vt}, v{vt+1}, v{vt+2}\nv_or_b32 v{vt}, v{vt}, v{vt+3}\nv_cmp_ne_u32 vcc, 0, v{vt}")
def poll(vaddr, soff, vt, wide=False, w0=True, slp=0):
    global npoll
    npoll += 1
    L = f"poll{npoll}"
    au = k.auto; k.auto = None
    if w0: k.i(f"s_cmp_lg_u32 s20, 0\ns_cbranch_scc1 {L}d")
    if slp: k.i(f"s_sleep {slp}")
    k.i("s_mov_b32 s43, 0x20000")
    k.label(L)
    if OPT.get("apoll"):
        if wide:
            k.i(f"v_mov_b32 v{vt}, 0\nv_mov_b32 v{vt+1}, 0\nv_mov_b32 v{vt+2}, 0\nv_mov_b32 v{vt+3}, 0")
            k.i(f"buffer_atomic_or_x2 v[{vt}:{vt+1}], v{vaddr}, s[16:19], s{soff} offen sc0\nbuffer_atomic_or_x2 v[{vt+2}:{vt+3}], v{vaddr}, s[16:19], s{soff} offen offset:8 sc0\ns_waitcnt vmcnt(0)")
            check4(vt)
        else:
            k.i(f"v_mov_b32 v{vt}, 0\nbuffer_atomic_or v{vt}, v{vaddr}, s[16:19], s{soff} offen sc0\ns_waitcnt vmcnt(0)\nv_cmp_ne_u32 vcc, s44, v{vt}")
    else:
        if wide:
            k.i(f"buffer_load_dwordx4 v[{vt}:{vt+3}], v{vaddr}, s[16:19], s{soff} offen {OPT.get('ppol', 'sc1')}\ns_waitcnt vmcnt(0)")
            check4(vt)
        else:
            k.i(f"buffer_load_dword v{vt}, v{vaddr}, s[16:19], s{soff} offen {OPT.get('ppol', 'sc1')}\ns_waitcnt vmcnt(0)\nv_cmp_ne_u32 vcc, s44, v{vt}")
    k.i(f"s_cbranch_vccz {L}d")
    if O("sleep", 4): k.i(f"s_sleep {O('sleep', 4)}")
    k.i(f"s_sub_u32 s43, s43, 1\ns_cbranch_scc0 {L}")
    k.label(L + "d")
    k.auto = au
nsig = 0
def signal(mask, code, vt, dual=False, val='s44'):
    global nsig
    nsig += 1
    L = f"sig{nsig}"
    au = k.auto; k.auto = None
    k.i(f"s_cmp_lg_u32 s20, 1\ns_cbranch_scc1 {L}")
    k.i(code)
    if dual: k.i(f"v_mov_b32 v{vt}, s44\ns_mov_b64 exec, {mask}\nbuffer_store_dword v{vt}, v{vt+1}, s[16:19], s42 offen offset:2048")
    k.i(f"v_mov_b32 v{vt}, {val}\ns_mov_b64 exec, {mask}\nbuffer_store_dword v{vt}, v{vt+1}, s[16:19], s42 offen {OPT.get('spol', 'sc1')}\ns_mov_b64 exec, -1")
    k.label(L)
    k.auto = au
def sig_all(base, vt, val='s44'):
    signal(0xff, f"v_lshlrev_b32 v{vt+1}, 12, v1\ns_lshr_b32 s42, s45, 3\ns_lshl_b32 s42, s42, 7\ns_and_b32 s43, s45, 7\ns_lshl_b32 s43, s43, 2\ns_add_u32 s42, s42, s43\ns_add_u32 s42, s42, {base}", vt, val=val)
def sig_row(base, vt, line, pos, val='s44'):
    signal(1, f"v_mov_b32 v{vt+1}, 0\n{line}\n{pos}\ns_lshl_b32 s42, s42, 7\ns_lshl_b32 s43, s43, 2\ns_add_u32 s42, s42, s43\ns_lshl_b32 s43, s26, 12\ns_add_u32 s42, s42, s43\ns_add_u32 s42, s42, {base}", vt, dual=bool(OPT.get("dual")), val=val)
ntree = 0
def poll_all(base, vt, slp):
    global ntree
    k.i(f"s_and_b32 s42, s2, 7\ns_lshl_b32 s42, s42, 12\ns_add_u32 s42, s42, {base}")
    k.i(f"v_lshrrev_b32 v{vt+4}, 1, v1\nv_lshlrev_b32 v{vt+4}, 7, v{vt+4}\nv_and_b32 v{vt}, 1, v1\nv_lshl_add_u32 v{vt+4}, v{vt}, 4, v{vt+4}")
    if not (OPT.get("tree") and (base == F0 or OPT.get("tree1"))):
        poll(vt+4, 42, vt, wide=True, slp=slp); return
    ntree += 1; L = f"tree{ntree}"
    NL = O("tree", 1)
    k.i(f"s_cmp_lg_u32 s20, 0\ns_cbranch_scc1 {L}d\ns_and_b32 s41, s2, {8*NL-1}\ns_lshl_b32 s41, s41, 7\ns_add_u32 s41, s41, {base + 0x10000}\ns_cmp_ge_u32 s2, {8*NL}\ns_cbranch_scc1 {L}m")
    poll(vt+4, 42, vt, wide=True, w0=False, slp=slp)
    k.i(f"v_mov_b32 v{vt}, s44\nv_mov_b32 v{vt+1}, 0\ns_mov_b64 exec, 1\nbuffer_store_dword v{vt}, v{vt+1}, s[16:19], s41 offen sc1\ns_mov_b64 exec, -1\ns_branch {L}d")
    k.label(L + "m")
    k.i(f"v_mov_b32 v{vt+1}, 0")
    sl = OPT.get("sleep"); OPT["sleep"] = 1
    poll(vt+1, 41, vt, w0=False)
    if sl is None: del OPT["sleep"]
    else: OPT["sleep"] = sl
    k.label(L + "d")
    k.i(f"s_mov_b32 s41, {LOG2E:#x}")
def poll_row(base, vt, slp):
    global npoll
    k.i(f"v_and_b32 v{vt+1}, 3, v1\nv_lshlrev_b32 v{vt+1}, 2, v{vt+1}\ns_lshl_b32 s42, s26, 5\ns_add_u32 s42, s42, s20\ns_lshl_b32 s42, s42, 7\ns_add_u32 s42, s42, {base}")
    if not OPT.get("dual"):
        poll(vt+1, 42, vt, w0=False, slp=slp)
    else:
        npoll += 1; L = f"poll{npoll}"
        au = k.auto; k.auto = None
        if slp: k.i(f"s_sleep {slp}")
        k.i(f"v_bfe_u32 v{vt}, v1, 2, 1\nv_lshl_add_u32 v{vt+1}, v{vt}, 11, v{vt+1}\ns_mov_b32 s43, 0x20000")
        k.label(L)
        k.i(f"""buffer_load_dword v{vt}, v{vt+1}, s[16:19], s42 offen sc1
        s_waitcnt vmcnt(0)
        v_cmp_eq_u32 vcc, s44, v{vt}
        s_lshr_b32 s41, vcc_lo, 4
        s_or_b32 s41, s41, vcc_lo
        s_and_b32 s41, s41, 15
        s_cmp_eq_u32 s41, 15
        s_cbranch_scc1 {L}d
        s_sleep {O('sleepd', 2)}
        s_sub_u32 s43, s43, 1
        s_cbranch_scc0 {L}""")
        k.label(L + "d")
        k.auto = au
    k.vm_done = k.vm_n

class BG:
    def __init__(self): self.q = []
    def add(self, ins, tag=None, pre="", post=""): self.q.append((pre, ins, post, tag))
    def go(self, n=1):
        for _ in range(n):
            if self.q:
                pre, ins, post, tag = self.q.pop(0)
                if OPT.get("noxn") and tag is not None and tag[0] == "X" and int(tag[1:]) >= 4:
                    k.vm_tags[tag] = -1; continue
                if OPT.get("nobg") and tag is not None and tag[:2] in ("wo", "w1", "w2"):
                    k.vm_tags[tag] = -1; continue
                k.i(pre); k.vm(ins, tag); k.i(post)
    def left(self): return len(self.q)

def phi4(a, dst, T):
    k.i(f"v_pk_mul_f32 v[{T}:{T+1}], v[{a}:{a+1}], s[40:41]")
    k.i(f"v_pk_mul_f32 v[{T+2}:{T+3}], v[{a+2}:{a+3}], s[40:41]")
    for j in range(4): k.i(f"v_exp_f32_e64 v{T+j}, v{T+j} clamp")
    for j in range(4): k.i(f"v_max_f32 v{T+4+j}, 0, v{a+j}")
    k.i(f"v_pk_add_f32 v[{T}:{T+1}], v[{T}:{T+1}], s[38:39]")
    k.i(f"v_pk_add_f32 v[{T+2}:{T+3}], v[{T+2}:{T+3}], s[38:39]")
    k.i(f"v_pk_add_f32 v[{T}:{T+1}], v[{T}:{T+1}], v[{T+4}:{T+5}]")
    k.i(f"v_pk_add_f32 v[{T+2}:{T+3}], v[{T+2}:{T+3}], v[{T+6}:{T+7}]")
    k.i(f"v_cvt_pk_bf16_f32 v{dst}, v{T}, v{T+1}")
    k.i(f"v_cvt_pk_bf16_f32 v{dst+1}, v{T+2}, v{T+3}")

ROWOFF = [[0, 4, 20, 24, 8], [12, 16, 28, 32, 36]]

def phase0():
    cold = OPT["cold"]
    stamp(0)
    k.i(f"""s_load_dwordx16 s[48:63], s[0:1], 0
    s_load_dwordx2 s[14:15], s[0:1], 80
    s_load_dwordx2 s[46:47], s[0:1], 64
    s_getpc_b64 s[4:5]
    pcl:
    s_cmp_ge_u32 s2, 256
    s_cbranch_scc1 kend
    s_lshr_b32 s25, s2, 3
    s_and_b32 s6, s25, 7
    s_lshl_b32 s6, s6, 13
    v_lshl_add_u32 v30, v0, 7, s6
    v_min_u32 v30, kend-pcl, v30
    v_cmp_gt_u32 vcc, 64, v0
    v_and_b32 v1, 63, v0
    v_lshrrev_b32 v2, 6, v0
    s_and_saveexec_b64 s[6:7], vcc
    s_cbranch_execz p0_nopf
    {'s_nop 0' if OPT.get('nopf') else 'global_load_dword v31, v30, s[4:5]'}
    p0_nopf:
    s_mov_b64 exec, s[6:7]
    v_lshlrev_b32 v3, 4, v1
    v_readfirstlane_b32 s20, v2
    s_and_b32 s24, s2, 7
    s_lshr_b32 s26, s24, 1
    s_lshl_b32 s26, s26, 2
    s_lshr_b32 s27, s25, 3
    s_add_u32 s26, s26, s27
    s_and_b32 s27, s24, 1
    s_lshl_b32 s27, s27, 3
    s_and_b32 s25, s25, 7
    s_add_u32 s27, s27, s25
    s_lshl_b32 s45, s26, 4
    s_add_u32 s45, s45, s27
    v_bfe_u32 v28, v1, 2, 2
    v_and_b32 v29, 3, v1
    v_mov_b32 v228, 0
    s_cmp_ge_u32 s45, 128
    s_cbranch_scc1 p0_w""")
    X = 208; F = 32
    k.i(f"""v_lshrrev_b32 v4, 4, v0
    v_and_b32 v5, 15, v0
    s_lshl_b32 s21, s45, 4
    v_add_u32 v6, s21, v4
    v_mul_u32_u24 v6, 1280, v6
    v_lshl_add_u32 v6, v5, 4, v6
    s_mov_b32 s10, 2621440
    s_mov_b32 s11, 0x20000
    s_waitcnt lgkmcnt(0)
    s_mov_b32 s8, s{PX}
    s_mov_b32 s9, s{PX+1}""")
    stamp(9, "p0")
    for i in range(5):
        k.i(f"buffer_load_dwordx4 v[{X+4*i}:{X+4*i+3}], v6, s[8:11], 0 offen offset:{256*i} {OPT.get('coldx', cold)}")
    stamp(5, "p0")
    k.i(f"s_load_dword s44, s[14:15], {CB}")
    srd(16, 14, WSZ)
    if O("pw0", 0): sig_all(F0, 120, val='0')
    k.i(f"""s_lshr_b32 s21, s45, 1
    s_mul_i32 s21, s21, 40960
    s_and_b32 s22, s45, 1
    s_lshl_b32 s22, s22, 8
    s_add_u32 s21, s21, s22
    s_add_u32 s21, s21, {XN}
    v_lshrrev_b32 v7, 1, v5
    v_lshlrev_b32 v7, 10, v7
    v_and_b32 v6, 1, v5
    v_lshlrev_b32 v6, 9, v6
    v_lshl_add_u32 v7, v4, 4, v7
    v_add_u32 v7, v7, v6
    s_mov_b32 s23, 0xffff0000
    s_mov_b32 s22, 0x3f803f80
    v_mov_b32 v112, 0
    v_mov_b32 v113, 0
    v_mov_b32 v114, 0
    v_mov_b32 v115, 0
    v_lshrrev_b32 v30, 4, v1""")
    for i in range(5):
        k.i(f"s_waitcnt vmcnt({4-i})")
        if i == 0: stamp(7, "p0")
        for j in range(4*i, 4*i+4):
            k.i(f"v_dot2_f32_bf16 v{112+2*(j&1)}, v{X+j}, s22, v{112+2*(j&1)}")
            k.i(f"v_dot2_f32_bf16 v{113+2*(j&1)}, v{X+j}, v{X+j}, v{113+2*(j&1)}")
    unp = []
    for j in range(20): unp += [f"v_lshlrev_b32 v{F+2*j}, 16, v{X+j}", f"v_and_b32 v{F+2*j+1}, s23, v{X+j}"]
    def U(n):
        for _ in range(n):
            if unp: k.i(unp.pop(0))
    U(3)
    k.i("v_pk_add_f32 v[112:113], v[112:113], v[114:115]")
    for s in (8, 4, 2, 1):
        U(2)
        k.i(f"v_add_f32_dpp v112, v112, v112 row_ror:{s} row_mask:0xf bank_mask:0xf")
        k.i(f"v_add_f32_dpp v113, v113, v113 row_ror:{s} row_mask:0xf bank_mask:0xf")
    k.i("v_mul_f32 v112, 0x3acccccd, v112\nv_mul_f32 v113, 0x3acccccd, v113\nv_fma_f32 v113, -v112, v112, v113\nv_max_f32 v113, 0, v113")
    bf16r(112, 112); bf16r(113, 113)
    k.i("v_add_f32 v113, 0x3727c5ac, v113")
    bf16r(113, 113)
    k.i("v_sqrt_f32 v113, v113"); U(1)
    bf16r(113, 113)
    k.i("v_rcp_f32 v114, v113")
    U(99)
    Y = 72
    for j in range(20): k.i(f"v_pk_add_f32 v[{F+2*j}:{F+2*j+1}], v[{F+2*j}:{F+2*j+1}], v[112:113] op_sel_hi:[1,0] neg_lo:[0,1] neg_hi:[0,1]")
    for j in range(20): k.i(f"v_cvt_pk_bf16_f32 v{Y+j}, v{F+2*j}, v{F+2*j+1}")
    for j in range(20): k.i(f"v_lshlrev_b32 v{F+2*j}, 16, v{Y+j}\nv_and_b32 v{F+2*j+1}, s23, v{Y+j}")
    for i in range(5):
        for j in range(4*i, 4*i+4):
            k.i(f"v_pk_mul_f32 v[{F+2*j}:{F+2*j+1}], v[{F+2*j}:{F+2*j+1}], v[114:115] op_sel_hi:[1,0]")
        for j in range(4*i, 4*i+4):
            k.i(f"v_cvt_pk_bf16_f32 v{Y+j}, v{F+2*j}, v{F+2*j+1}")
        k.i(f"buffer_store_dwordx4 v[{Y+4*i}:{Y+4*i+3}], v7, s[16:19], s21 offen {HO}")
        if i < 4: k.i("s_add_u32 s21, s21, 8192")
    k.i(f"v_mov_b32 v228, v7\ns_add_u32 s55, s21, {XC - XN - 4*8192}")
    k.i("s_branch p0_drain")
    k.label("p0_w")
    m, sh = magic(80, 320)
    k.i(f"""s_cmp_ge_u32 s45, 248
    s_cbranch_scc1 p0_zero
    s_sub_u32 s21, s45, 128
    s_mul_i32 s30, s21, 171
    s_lshr_b32 s30, s30, 9
    s_mul_i32 s31, s30, 3
    s_sub_u32 s31, s21, s31
    s_mul_i32 s21, s30, 61440
    s_mul_i32 s22, s31, 1280
    s_add_u32 s21, s21, s22
    s_lshl_b32 s22, s20, 2
    s_mul_i32 s23, s20, 5120
    s_mov_b32 s10, 2457600
    s_mov_b32 s11, 0x20000""")
    for i in range(5):
        k.i(f"""v_add_u32 v4, {64*i}, v1
        v_mul_u32_u24 v5, {m}, v4
        v_lshrrev_b32 v5, {sh}, v5
        v_mul_u32_u24 v6, 80, v5
        v_sub_u32 v6, v4, v6
        v_lshlrev_b32 v6, 4, v6
        v_lshlrev_b32 v7, 6, v5
        v_add_u32 v5, s22, v5
        v_mul_u32_u24 v5, 3840, v5
        v_xad_u32 v{12+i}, v6, v7, v5""")
    k.i(f"s_waitcnt lgkmcnt(0)\ns_mov_b32 s8, s{PWQ}\ns_mov_b32 s9, s{PWQ+1}")
    stamp(9, "p0")
    for i in range(5):
        k.i(f"s_add_u32 m0, s23, {1024*i}\nbuffer_load_dwordx4 v{12+i}, s[8:11], s21 offen {cold} lds")
    stamp(5, "p0")
    k.i(f"s_load_dword s44, s[14:15], {CB}")
    srd(16, 14, WSZ)
    if O("pw0", 0): sig_all(F0, 120, val='0')
    k.i(f"""v_lshrrev_b32 v30, 4, v1
    v_lshrrev_b32 v4, 1, v30
    v_lshl_add_u32 v4, v4, 3, v28
    v_mul_u32_u24 v4, 1280, v4
    v_and_b32 v5, 1, v30
    v_lshlrev_b32 v5, 5, v5
    v_lshl_add_u32 v5, v29, 3, v5
    v_lshlrev_b32 v6, 6, v28
    s_lshl_b32 s21, s30, 12
    s_add_u32 s21, s21, {WQ}
    s_cmp_lg_u32 s31, 0
    s_cbranch_scc1 p0_wkv
    s_lshl_b32 s22, s20, 6
    v_add_u32 v5, s22, v5
    v_xad_u32 v7, v5, v6, v4
    s_lshl_b32 s22, s20, 10
    s_add_u32 s21, s21, s22
    s_add_u32 s21, s21, {11*163840}
    s_waitcnt vmcnt(0)""")
    stamp(7, "p0")
    k.i("s_barrier")
    for m_ in range(5):
        r = 32 + 4*m_
        k.lg(f"ds_read_b64_tr_b16 v[{r}:{r+1}], v7 offset:{256*m_}")
        k.lg(f"ds_read_b64_tr_b16 v[{r+2}:{r+3}], v7 offset:{256*m_+4*1280}", f"q{m_}")
    for m_ in range(5):
        r = 32 + 4*m_
        k.wait(lg=f"q{m_}")
        k.i(f"buffer_store_dwordx4 v[{r}:{r+3}], v3, s[16:19], s21 offen {HO}\ns_add_u32 s21, s21, 163840")
    k.i("s_branch p0_drain")
    k.label("p0_wkv")
    k.i("""s_and_b32 s22, s20, 1
    s_lshr_b32 s23, s20, 1
    s_lshl_b32 s24, s22, 6
    s_mul_i32 s25, s23, 120
    s_add_u32 s24, s24, s25
    v_add_u32 v5, s24, v5
    s_lshl_b32 s24, s31, 1
    s_add_u32 s24, s24, s22
    s_sub_u32 s24, s24, 2
    s_lshl_b32 s24, s24, 10
    s_add_u32 s21, s21, s24
    s_mul_i32 s24, s23, 163840
    s_add_u32 s21, s21, s24""")
    for i in range(6):
        k.i(f"v_add_u32 v{12+i}, {240*i}, v5\nv_min_u32 v{12+i}, 1272, v{12+i}\nv_xad_u32 v{12+i}, v{12+i}, v6, v4")
    k.i("s_waitcnt vmcnt(0)")
    stamp(7, "p0")
    k.i("s_barrier")
    for i in range(6):
        r = 32 + 4*i
        k.lg(f"ds_read_b64_tr_b16 v[{r}:{r+1}], v{12+i}")
        k.lg(f"ds_read_b64_tr_b16 v[{r+2}:{r+3}], v{12+i} offset:{4*1280}", f"kv{i}")
    for i in range(6):
        r = 32 + 4*i
        if i == 5: k.i("s_cmp_lg_u32 s23, 0\ns_cbranch_scc1 p0_drain")
        k.wait(lg=f"kv{i}")
        k.i(f"buffer_store_dwordx4 v[{r}:{r+3}], v3, s[16:19], s21 offen {HO}\ns_add_u32 s21, s21, 327680")
    k.i("s_branch p0_drain")
    k.label("p0_zero")
    k.i(f"""s_sub_u32 s21, s45, 248
    s_mul_i32 s21, s21, 6720
    s_add_u32 s21, s21, {KVA}
    v_lshlrev_b32 v4, 4, v0
    v_mov_b32 v8, 0
    v_mov_b32 v9, 0
    v_mov_b32 v10, 0
    v_mov_b32 v11, 0
    v_lshrrev_b32 v30, 4, v1
    s_mov_b32 s10, 6720
    s_mov_b32 s11, 0x20000
    s_waitcnt lgkmcnt(0)
    s_add_u32 s8, s14, s21
    s_addc_u32 s9, s15, 0
    buffer_store_dwordx4 v[8:11], v4, s[8:11], 0 offen {HO}
    v_add_u32 v4, 4096, v4
    buffer_store_dwordx4 v[8:11], v4, s[8:11], 0 offen {HO}
    s_load_dword s44, s[14:15], {CB}""")
    stamp(9, "p0"); stamp(5, "p0"); stamp(7, "p0")
    srd(16, 14, WSZ)
    k.label("p0_drain")
    stamp(1)
    k.i("s_waitcnt vmcnt(0) lgkmcnt(0)\ns_add_u32 s44, s44, 1\ns_or_b32 s44, s44, 0x80000000\ns_barrier")
    k.reset_counts()
    stamp(2)
    sig_all(F0, 4)
    k.i(f"""s_cmp_lg_u32 s20, 2
    s_cbranch_scc1 p0_nob
    v_lshlrev_b32 v4, 7, v1
    v_min_u32 v5, 3068, v4
    v_min_u32 v4, 1276, v4
    global_load_dword v31, v5, s[{PB1}:{PB1+1}]
    global_load_dword v31, v4, s[{PB2}:{PB2+1}]""")
    k.label("p0_nob")
    if not OPT.get("ulate"): unit_issue("")

def unit_issue(sfx):
    cold = OPT["cold"]
    UN = 0 if OPT.get("nounit") else 232
    k.i(f"""s_cmp_ge_u32 s45, {UN}
    s_cbranch_scc1 p0_ui{sfx}d
    s_sub_u32 s6, s20, 1
    s_mul_i32 s5, s6, 7168
    s_cmp_ge_u32 s45, 136
    s_cbranch_scc1 p0_ui{sfx}_w2
    s_cmp_ge_u32 s45, 40
    s_cbranch_scc1 p0_ui{sfx}_w1""")
    srd(8, PWO, 819200)
    k.i(f"""s_mul_i32 s35, s45, 26
    s_lshr_b32 s35, s35, 8
    s_mul_i32 s36, s35, 10
    s_sub_u32 s36, s45, s36
    s_mul_i32 s4, s35, 204800
    s_movk_i32 s25, 1280
    s_branch p0_ui{sfx}_128""")
    k.label(f"p0_ui{sfx}_w1")
    srd(8, PW1, 1966080)
    k.i(f"""s_sub_u32 s34, s45, 40
    s_mul_i32 s35, s34, 43
    s_lshr_b32 s35, s35, 10
    s_mul_i32 s36, s35, 24
    s_sub_u32 s36, s34, s36
    s_mul_i32 s4, s35, 491520
    s_movk_i32 s25, 3072""")
    k.label(f"p0_ui{sfx}_128")
    k.i(f"""s_cmp_eq_u32 s20, 0
    s_cbranch_scc1 p0_ui{sfx}d
    s_lshl_b32 s7, s36, 7
    s_add_u32 s4, s4, s7
    v_lshrrev_b32 v52, 3, v1
    s_mul_i32 s7, s6, 56
    v_add_u32 v52, s7, v52
    v_and_b32 v53, 7, v1
    v_lshlrev_b32 v53, 4, v53
    v_and_b32 v54, 2, v52
    v_lshlrev_b32 v54, 5, v54
    v_mul_lo_u32 v52, v52, s25
    v_xad_u32 v52, v53, v54, v52
    s_lshl_b32 s25, s25, 3""")
    for i in range(7):
        k.i(f"s_add_u32 m0, s5, {UL+1024*i}\nbuffer_load_dwordx4 v52, s[8:11], s4 offen {cold} lds\ns_add_u32 s4, s4, s25")
    k.i(f"s_branch p0_ui{sfx}d")
    k.label(f"p0_ui{sfx}_w2")
    srd(8, PW2, 1966080)
    m, sh = magic(40, 1344)
    k.i(f"""s_sub_u32 s34, s45, 136
    s_lshr_b32 s35, s34, 1
    s_and_b32 s36, s34, 1
    s_cmp_eq_u32 s20, 0
    s_cbranch_scc1 p0_ui{sfx}d
    s_mul_i32 s4, s35, 40960
    s_mul_i32 s7, s36, 640
    s_add_u32 s4, s4, s7
    s_mul_i32 s7, s6, 448
    v_add_u32 v56, s7, v1""")
    for i in range(7):
        k.i(f"""v_add_u32 v52, {64*i}, v56
        v_mul_u32_u24 v53, {m}, v52
        v_lshrrev_b32 v53, {sh}, v53
        v_mul_u32_u24 v54, 40, v53
        v_sub_u32 v54, v52, v54
        v_lshlrev_b32 v54, 4, v54
        v_and_b32 v55, 2, v53
        v_lshlrev_b32 v55, 4, v55
        v_and_b32 v57, 16, v53
        v_lshl_or_b32 v55, v57, 2, v55
        v_mul_u32_u24 v53, 1280, v53
        v_xad_u32 v52, v54, v55, v53
        s_add_u32 m0, s5, {UL+1024*i}
        buffer_load_dwordx4 v52, s[8:11], s4 offen {cold} lds""")
    k.label(f"p0_ui{sfx}d")

def unit_proc(sfx, which="a"):
    UN = 0 if OPT.get("nounit") else 232
    D0 = 32
    if which == "o": UN = 40
    if which == "r": k.i(f"s_cmp_lt_u32 s45, 40\ns_cbranch_scc1 up_end{sfx}")
    k.i(f"""s_cmp_ge_u32 s45, {UN}
    s_cbranch_scc1 up_end{sfx}
    s_cmp_ge_u32 s45, 136
    s_cbranch_scc1 up_w2{sfx}
    s_and_b32 s6, s20, 1
    s_lshr_b32 s7, s20, 1
    s_lshl_b32 s37, s36, 1
    s_add_u32 s37, s37, s6
    s_cmp_ge_u32 s45, 40
    s_cbranch_scc1 up_w1{sfx}""")
    k.i(f"""v_and_b32 v52, 1, v30
    v_lshrrev_b32 v53, 1, v29
    v_lshl_add_u32 v52, v52, 1, v53
    v_add_u32 v52, s35, v52
    v_and_b32 v52, 3, v52
    v_lshlrev_b32 v52, 4, v52
    v_and_b32 v53, 1, v29
    v_lshl_add_u32 v52, v53, 3, v52
    s_lshl_b32 s24, s6, 6
    v_add_u32 v52, s24, v52
    v_and_b32 v53, 2, v28
    v_lshlrev_b32 v53, 5, v53
    v_xor_b32 v52, v52, v53
    v_lshl_add_u32 v52, v28, 7, v52
    s_mul_i32 s24, s7, 10240
    s_add_u32 s24, s24, {UL}
    v_add_u32 v52, s24, v52
    v_lshrrev_b32 v54, 5, v1
    v_lshlrev_b32 v54, 4, v54
    s_mul_i32 s24, s37, 205
    s_lshr_b32 s24, s24, 10
    s_mul_i32 s25, s24, 5
    s_sub_u32 s25, s37, s25
    s_lshl_b32 s24, s24, 2
    s_add_u32 s24, s24, s35
    s_mul_i32 s24, s24, 10
    s_mul_i32 s4, s7, 5
    s_add_u32 s24, s24, s4
    s_mul_i32 s24, s24, 5
    s_add_u32 s24, s24, s25
    s_lshl_b32 s24, s24, 10
    s_add_u32 s24, s24, {WO}""")
    for uu in range(5):
        for h2 in range(2):
            m_ = 2*uu + h2
            K = 0
            for hi in range(2): K |= ((40*(m_//5) + ROWOFF[hi][m_ % 5]) * 128) << (16*hi)
            r = D0 + 4*uu + 2*h2
            k.i(f"s_mov_b32 s25, {K:#x}\nv_bfe_u32 v55, s25, v54, 16\nv_add_u32 v55, v55, v52")
            k.lg(f"ds_read_b64_tr_b16 v[{r}:{r+1}], v55", f"uo{uu}")
    for uu in range(5):
        r = D0 + 4*uu
        k.wait(lg=f"uo{uu}")
        k.i(f"buffer_store_dwordx4 v[{r}:{r+3}], v3, s[16:19], s24 offen {HO}\ns_add_u32 s24, s24, 5120")
    k.i(f"s_branch up_end{sfx}")
    k.label(f"up_w1{sfx}")
    k.i(f"""v_lshrrev_b32 v52, 1, v30
    v_lshl_add_u32 v52, v52, 3, v28
    v_and_b32 v53, 1, v30
    v_lshlrev_b32 v53, 5, v53
    v_lshl_add_u32 v53, v29, 3, v53
    s_lshl_b32 s24, s6, 6
    v_add_u32 v53, s24, v53
    v_and_b32 v54, 2, v28
    v_lshlrev_b32 v54, 5, v54
    v_lshlrev_b32 v52, 7, v52
    v_xad_u32 v52, v53, v54, v52
    s_mul_i32 s24, s7, 10240
    s_add_u32 s24, s24, {UL}
    v_add_u32 v52, s24, v52
    v_mov_b32 v56, 0
    s_mov_b32 s4, 0x3f803f80
    s_mul_i32 s24, s37, 171
    s_lshr_b32 s24, s24, 9
    s_mul_i32 s25, s24, 3
    s_sub_u32 s25, s37, s25
    s_mul_i32 s24, s24, 40
    s_mul_i32 s5, s35, 10
    s_add_u32 s24, s24, s5
    s_mul_i32 s5, s7, 5
    s_add_u32 s24, s24, s5
    s_mul_i32 s24, s24, 3
    s_add_u32 s24, s24, s25
    s_lshl_b32 s24, s24, 10
    s_add_u32 s24, s24, {W1}""")
    for ks in range(5):
        r = D0 + 4*ks
        k.lg(f"ds_read_b64_tr_b16 v[{r}:{r+1}], v52 offset:{ks*2048}")
        k.lg(f"ds_read_b64_tr_b16 v[{r+2}:{r+3}], v52 offset:{ks*2048+512}", f"u1{ks}")
    for ks in range(5):
        r = D0 + 4*ks
        k.wait(lg=f"u1{ks}")
        k.i(f"buffer_store_dwordx4 v[{r}:{r+3}], v3, s[16:19], s24 offen {HO}\ns_add_u32 s24, s24, 3072")
        for j in range(4): k.i(f"v_dot2_f32_bf16 v56, v{r+j}, s4, v56")
    k.i(f"""s_nop 2
    v_mov_b32 v57, v56
    s_lshl_b32 s24, s35, 1
    s_add_u32 s24, s24, s7
    v_permlane32_swap_b32 v56, v57
    s_mul_i32 s24, s24, 6144
    s_lshl_b32 s25, s37, 7
    s_add_u32 s24, s24, s25
    s_add_u32 s24, s24, {CS}
    v_add_f32 v56, v56, v57
    v_lshlrev_b32 v57, 2, v1
    s_mov_b64 exec, 0xffffffff
    buffer_store_dword v56, v57, s[16:19], s24 offen {HO}
    s_mov_b64 exec, -1
    s_branch up_end{sfx}""")
    k.label(f"up_w2{sfx}")
    k.i(f"""v_and_b32 v52, 1, v30
    v_lshlrev_b32 v52, 4, v52
    v_lshrrev_b32 v53, 1, v30
    v_lshl_add_u32 v52, v53, 2, v52
    v_add_u32 v52, v52, v28
    v_and_b32 v54, 2, v52
    v_lshlrev_b32 v54, 4, v54
    v_and_b32 v55, 16, v52
    v_lshl_or_b32 v54, v55, 2, v54
    v_mul_u32_u24 v52, 640, v52
    v_add_u32 v52, {UL}, v52
    s_mul_i32 s24, s20, 160
    v_lshl_add_u32 v53, v29, 3, s24
    s_lshl_b32 s24, s36, 2
    s_add_u32 s24, s24, s20
    s_mul_i32 s24, s24, 48
    s_add_u32 s24, s24, s35
    s_mul_i32 s24, s24, 5120
    s_add_u32 s24, s24, {W2}""")
    for m_ in range(5):
        r = D0 + 4*m_
        k.i(f"v_add_u32 v55, {32*m_}, v53\nv_xad_u32 v55, v55, v54, v52")
        k.lg(f"ds_read_b64_tr_b16 v[{r}:{r+1}], v55")
        k.lg(f"ds_read_b64_tr_b16 v[{r+2}:{r+3}], v55 offset:{8*640}", f"u2{m_}")
    for m_ in range(5):
        r = D0 + 4*m_
        k.wait(lg=f"u2{m_}")
        k.i(f"buffer_store_dwordx4 v[{r}:{r+3}], v3, s[16:19], s24 offen {HO}\ns_add_u32 s24, s24, 1024")
    k.label(f"up_end{sfx}")

WOR = [160 + 4*f for f in range(21)] + [44 + 4*f for f in range(29)]
PQA = 0; XA = 244
W2R = WOR + list(range(0, 40, 4))
TBV = 244
WOB = None; XQ = None; SQL = None
def phase1():
    global WOB
    k.i(f"""v_add_u32 v4, 0x10000, v3
    v_add_u32 v5, 0x20000, v3
    s_lshl_b32 s28, s26, 2
    s_add_u32 s28, s28, s20
    s_mul_i32 s21, s28, 40960
    s_add_u32 s21, s21, {XN}
    s_lshl_b32 s23, s20, 12
    s_mul_i32 s22, s27, 163840
    s_add_u32 s22, s22, s23
    s_add_u32 s22, s22, {WQ}
    s_mov_b32 s40, {LOG2E:#x}
    s_mov_b32 s41, {LOG2E:#x}
    s_mov_b32 s38, 0x358637bd
    s_mov_b32 s39, 0x358637bd""")
    if OPT.get("mapb"):
        k.i(f"""s_and_b32 s{PWQ}, s2, 7
        s_lshl_b32 s{PWQ}, s{PWQ}, 1
        s_lshr_b32 s33, s2, 7
        s_add_u32 s{PWQ}, s{PWQ}, s33
        s_bfe_u32 s{PWQ+1}, s2, 0x40003
        s_and_b32 s13, s{PWQ+1}, 7
        s_lshr_b32 s12, s{PWQ+1}, 3
        s_lshl_b32 s31, s{PWQ}, 1
        s_add_u32 s12, s12, s31
        s_lshl_b32 s31, s{PWQ}, 2
        s_lshr_b32 s29, s{PWQ+1}, 2
        s_add_u32 s29, s29, s31
        s_and_b32 s30, s{PWQ+1}, 3""")
    else:
        k.i(f"""s_mov_b32 s{PWQ}, s26
        s_mov_b32 s{PWQ+1}, s27
    s_lshr_b32 s33, s27, 3
        s_lshl_b32 s13, s33, 2
        s_and_b32 s12, s27, 3
        s_add_u32 s13, s13, s12
        s_bfe_u32 s12, s27, 0x10002
        s_lshl_b32 s31, s26, 1
        s_add_u32 s12, s12, s31
        s_lshl_b32 s31, s26, 2
        s_bfe_u32 s29, s27, 0x20001
        s_add_u32 s29, s29, s31
        s_lshl_b32 s30, s33, 1
        s_and_b32 s33, s27, 1
        s_add_u32 s30, s30, s33""")
    k.i(f"""    s_lshl_b32 s31, s30, 2
    s_add_u32 s31, s31, s20
    s_mul_i32 s31, s31, 51200
    s_add_u32 s31, s31, {WO}
""")
    k.i(f"""v_and_b32 v24, 31, v1
    v_lshlrev_b32 v24, 4, v24
    v_lshrrev_b32 v25, 5, v1
    v_lshl_add_u32 v24, v25, 3, v24
    s_mul_i32 s3, s29, 40
    s_mul_i32 s33, s30, 10
    s_add_u32 s3, s3, s33
    s_lshr_b32 s33, s20, 1
    s_add_u32 s3, s3, s33
    s_lshl_b32 s3, s3, 10
    s_and_b32 s33, s20, 1
    s_lshl_b32 s33, s33, 9
    s_add_u32 s3, s3, s33
    s_add_u32 s3, s3, {XC}
""" if OPT.get("xc") else """v_and_b32 v24, 31, v1
    s_lshl_b32 s33, s29, 5
    v_add_u32 v24, s33, v24
    v_mul_u32_u24 v24, 1280, v24
    v_lshrrev_b32 v25, 5, v1
    v_lshl_add_u32 v24, v25, 3, v24
    s_mul_i32 s3, s30, 320
    s_lshl_b32 s34, s20, 4
    s_add_u32 s3, s3, s34
""")
    k.i(f"""v_lshlrev_b32 v26, 2, v0
    v_lshlrev_b32 v27, 1, v0
    s_mul_i32 s33, s{PWQ+1}, 192
    s_add_u32 s{PB1}, s{PB1}, s33
    s_addc_u32 s{PB1+1}, s{PB1+1}, 0
    s_mul_i32 s54, s{PWQ+1}, 384
    s_add_u32 s54, s54, {CS}""")
    if O("pw1", 0):
        sig_all(F1, 120, val='0')
        k.i(f"s_mov_b32 s6, s26\ns_mov_b32 s26, s{PWQ}")
        sig_row(F2, 120, "s_and_b32 s42, s29, 3", "s_mov_b32 s43, s30", val='0')
        sig_row(F3, 120, f"s_lshr_b32 s42, s{PWQ+1}, 2", f"s_and_b32 s43, s{PWQ+1}, 3", val='0')
        k.i("s_mov_b32 s26, s6")
    XM = OPT.get("xm", "win")
    def xloads(pol):
        for c in range(5):
            k.i(f"global_load_dwordx2 a[{XA+2*c}:{XA+2*c+1}], v24, s[{PX}:{PX+1}] offset:{64*c} {pol}")
    if OPT.get("xc"): XM = "none"
    else: k.i("v_add_u32 v24, s3, v24")
    if XM == "early": xloads(OPT.get('xpol', 'nt'))
    elif XM == "mix":
        k.i("s_cmp_eq_u32 s20, 0\ns_cbranch_scc1 p1_nox")
        xloads(OPT.get('xpol', ''))
        k.label("p1_nox")
    k.i(f"v_min_u32 v27, 190, v27")
    if OPT.get("rot"):
        k.i(f"""s_and_b32 s33, s27, 7
        s_and_b32 s34, s26, 3
        s_mul_i32 s34, s34, 3
        s_add_u32 s33, s33, s34
        s_mul_i32 s33, s33, {O('rot', 1)}
        s_mul_i32 s34, s33, 205
        s_lshr_b32 s34, s34, 11
        s_mul_i32 s34, s34, 10
        s_sub_u32 s33, s33, s34
        s_add_u32 s52, s21, 40960
        s_add_u32 s53, s22, 163840
        s_lshl_b32 s34, s33, 12
        s_add_u32 s21, s21, s34
        s_lshl_b32 s34, s33, 14
        s_add_u32 s22, s22, s34""")
    poll_all(F0, 8, O("slp0", 16))
    if OPT.get("upre"): k.i("s_waitcnt vmcnt(0)")
    k.i("s_barrier")
    stamp(4)
    if OPT.get("upre") == "1":
        sv0 = snap(); unit_proc(""); rest(sv0)
    ACC = 64; WB = 128; T = 8; PK = 176; FB0 = 20; NS = 12; AH = 8
    PRE = O("pre1", 3)
    Q = BG()
    for s in range(10):
        for j in range(4):
            Q.add(f"buffer_load_dwordx4 v3, s[16:19], s22 offen offset:{1024*j} {HO} lds", f"W{s}",
                  pre=(f"s_add_u32 m0, s23, {(s % 8)*16384}" if (j == 0 or OPT.get("ulate")) else ""), post=(("s_add_u32 s22, s22, 16384" + ("\ns_cmp_ge_u32 s22, s53\ns_cselect_b32 s34, 163840, 0\ns_sub_u32 s22, s22, s34" if OPT.get("rot") else "")) if j == 3 else ""))
        for j in range(4):
            Q.add(f"buffer_load_dwordx4 a[{16*s+4*j}:{16*s+4*j+3}], v3, s[16:19], s21 offen offset:{1024*j} {HO}", f"X{4*s+j}",
                  post=(("s_add_u32 s21, s21, 4096" + ("\ns_cmp_ge_u32 s21, s52\ns_cselect_b32 s34, 40960, 0\ns_sub_u32 s21, s21, s34" if OPT.get("rot") else "")) if j == 3 else ""))
    if O("wlead", 0):
        Wq = [Q.q[8*s:8*s+4] for s in range(10)]; Xq = [Q.q[8*s+4:8*s+8] for s in range(10)]
        L_ = O("wlead", 0)
        Q.q = []
        for s in range(10 + L_):
            if s == 0:
                Q.q += Wq[0] + Xq[0]; continue
            if s < 10: Q.q += Wq[s]
            if s - L_ >= 1: Q.q += Xq[s - L_]
    if OPT.get("upre") == "2":
        Q.go(8)
        sv0 = snap(); unit_proc(""); rest(sv0)
        Q.go(8*PRE - 8)
    else: Q.go(8*PRE)
    k.wait(vm="W0"); k.i("s_barrier")
    if not OPT.get("ulate") and not OPT.get("upre"):
        sv0 = snap(); unit_proc("", "o" if OPT.get("usplit") else "a"); rest(sv0)
    if OPT.get("xc"):
        k.i("s_cmp_ge_u32 s45, 128\ns_cbranch_scc1 p1_noxc")
        for i in range(5):
            k.i(f"buffer_store_dwordx4 v[{208+4*i}:{211+4*i}], v228, s[16:19], s55 offen {HO}\ns_add_u32 s55, s55, 8192")
        k.label("p1_noxc")
    stamp(3)
    k.i("s_cmp_ge_u32 s27, 11\ns_cbranch_scc1 p1_q")
    sv = snap(); Qs = list(Q.q)
    def mkbg():
        B = BG()
        for i in range(50):
            B.add(f"buffer_load_dwordx4 a[{WOR[i]}:{WOR[i]+3}], v3, s[16:19], s31 offen offset:{1024*(i%4)} {HO}", f"wo{i}", post=("s_add_u32 s31, s31, 4096" if i % 4 == 3 else ""))
        return B
    def small():
        S = BG()
        global XQ
        X_ = XQ = BG()
        for j in range(8):
            S.add(f"buffer_load_dword v{TBV+j}, v{2 if OPT.get('usplit') else 26}, s[16:19], s54 offen {HO}", post=f"s_add_u32 s54, s54, 6144")
        for c in range(5):
            if OPT.get("xc"): S.add(f"buffer_load_dwordx2 a[{XA+2*c}:{XA+2*c+1}], v24, s[16:19], s3 offen offset:{2048*(c%2)} {HO}", post=("s_add_u32 s3, s3, 4096" if c % 2 else ""))
        return S
    NPRE = O("wo_pre", 20)
    def loop(act_first, order_tail, fill_after, B, sfx):
        items = [(ks, j) for ks in range(40 - len(order_tail)//4) for j in range(4)] + order_tail
        first = {}
        for n_, (ks_, j_) in enumerate(items): first.setdefault(ks_//4, n_)
        NCHK = 2*(80 - 8*PRE - O("ramp1", 0)) + O("chk", 0)
        if OPT.get("ulate"): assert O("un_sig", 6) >= O("un_proc", 4) + PRE and 16*(O("un_proc", 4) - PRE) >= O("un_iss", 0)
        def rd(n):
            ks, j = items[n]
            BS = [int(x) for x in str(OPT.get("bars", "123456789"))]
            if ks >= 4 and first[ks//4] == n and ks//4 in BS:
                nxt = min([b for b in BS if b > ks//4] + [10])
                while f"W{nxt-1}" not in k.vm_tags or any(t == f"W{nxt-1}" for _, _, _, t in Q.q): Q.go()
                k.wait(vm=f"W{nxt-1}"); k.i("s_barrier")
                if OPT.get("ulate") and ks//4 == O("un_proc", 4):
                    sv1 = snap(); unit_proc(sfx); rest(sv1)
                if ks//4 == (O("un_sig", 6) if OPT.get("ulate") else min(b for b in BS if b >= PRE + 1)):
                    signal(1, f"v_mov_b32 v7, 0\ns_lshl_b32 s42, s45, 2\ns_add_u32 s42, s42, {F0B}", 6)
            o = ((ks % 32)*4 + j) * 1024
            r = WB + 4*(n % NS)
            k.lg(f"ds_read_b128 v[{r}:{r+3}], v{3 + o//65536} offset:{o % 65536}", f"w{n}")
        for n in range(AH): rd(n)
        fill = []
        for n, (ks, j) in enumerate(items):
            if OPT.get('ulate') and n == O('un_iss', 0): unit_issue(sfx)
            G1 = O("g1", 2)
            if n % G1 == 0:
                k.wait(vm=f"X{max(items[m][0] for m in range(n, n + G1))}", lg=f"w{n+G1-1}")
            if n % 2 == 0:
                if n % 16 == 0: stamp(8 + n//16, "p1")
                if n == 16: cst(1)
                if n == 112: cst(3)
                if n == 144: cst(5)
            w = vr(WB + 4*(n % NS), 4); x = ar(4*ks, 4); d = vr(ACC + 16*j, 16)
            c = "0" if ks == 0 else d
            k.i(f"v_mfma_f32_32x32x16_bf16 {d}, {x}, {w}, {c}" if act_first else f"v_mfma_f32_32x32x16_bf16 {d}, {w}, {x}, {c}")
            if n % 2 == 0:
                if Q.left(): Q.go()
                if n % 4 == 0 and n < 4*O("ramp1", 0): Q.go()

            else:
                for m_ in (n - 1 + AH, n + AH):
                    if m_ < 160: rd(m_)
            if OPT.get("usplit") and n == O("usplit", 130):
                au = k.auto; k.auto = None
                sv1 = snap(); unit_proc(sfx + "r", "r"); rest(sv1); k.auto = au
            if n == NCHK - 16:
                k.i(f"s_mov_b32 s42, {F0B}")
                k.vm(f"buffer_load_dwordx4 v[{FB0}:{FB0+3}], v3, s[16:19], s42 offen sc1", "f0b")
            if n == NCHK:
                k.wait(vm="f0b")
                check4(FB0)
                k.i(f"s_cbranch_vccz p1_ok{sfx}\ns_mov_b32 s42, {F0B}")
                poll(3, 42, FB0, wide=True, w0=False)
                k.label(f"p1_ok{sfx}")
                SQ[0] = small()
                lim[0] = min(21, NPRE); k.th = O("th1", 96)
                k.auto = lambda: B.go() if 50 - B.left() < lim[0] else None
            if n in fill_after: fill += fill_after[n]
            for _ in range(6):
                if fill: k.i(fill.pop(0))
        lim[0] = NPRE; k.th = O("th1e", 90)
        for l in fill: k.i(l)
    lim = [0]; SQ = [None]
    def phi_lines(t):
        with capture() as c:
            for b in range(0, 16, 4): phi4(ACC + 16*t + b, PK + 8*t + b//2, T)
        return c.lines
    TL = O("tl1", 4)
    tail = [(ks, j) for ks in range(40-TL, 40) for j in (0, 1)] + [(ks, j) for ks in range(40-TL, 40) for j in (2, 3)]
    B = mkbg()
    loop(True, tail, {161 - 2*TL: phi_lines(0) + phi_lines(1)}, B, "kv")
    stamp(5)
    k.i("s_lshl_b32 s33, s20, 13\ns_add_u32 s33, s33, 32768\nv_add_u32 v6, s33, v3")
    for t in (0, 1):
        for f in range(2):
            k.lg(f"ds_write_b128 v6, v[{PK+8*t+4*f}:{PK+8*t+4*f+3}] offset:{2048*t+1024*f}")
    for t in (2, 3):
        for p in range(8):
            k.i(f"v_cvt_pk_bf16_f32 v{PK+8*t+p}, v{ACC+16*t+2*p}, v{ACC+16*t+2*p+1}")
        if t == 3:
            k.i("s_mov_b32 s34, 0xf0000000\ns_mov_b32 s35, 0xf0000000\nv_mov_b32 v7, 0x3f803f80")
            for p in range(8): k.i(f"v_cndmask_b32 v{PK+24+p}, v{PK+24+p}, v7, s[34:35]")
        for f in range(2):
            k.lg(f"ds_write_b128 v6, v[{PK+8*t+4*f}:{PK+8*t+4*f+3}] offset:{2048*t+1024*f}")
    k.i("""s_lshr_b32 s33, s20, 1
    s_and_b32 s34, s20, 1
    s_lshl_b32 s35, s33, 11
    s_add_u32 s35, s35, 32768
    v_add_u32 v8, s35, v3
    s_lshl_b32 s35, s34, 11
    s_add_u32 s35, s35, 36864
    v_add_u32 v9, s35, v3""")
    k.wait(lg="all"); k.i("s_barrier")
    stamp(8, "p1e")
    FA = 64; FB = 96; DD = 128
    for w in range(4):
        for f in range(2):
            n = 2*w + f
            k.lg(f"ds_read_b128 v[{FA+4*n}:{FA+4*n+3}], v8 offset:{8192*w+1024*f}")
            k.lg(f"ds_read_b128 v[{FB+4*n}:{FB+4*n+3}], v9 offset:{8192*w+1024*f}", f"f{n}")
    with capture() as c:
        k.i("""v_and_b32 v10, 31, v1
        s_lshl_b32 s35, s34, 5
        v_add_u32 v10, s35, v10
        v_mul_u32_u24 v11, 205, v10
        v_lshrrev_b32 v11, 12, v11
        v_mul_u32_u24 v12, 20, v11
        v_sub_u32 v12, v10, v12
        v_cmp_eq_u32 s[36:37], 60, v10
        v_mov_b32 v13, 20
        v_lshrrev_b32 v14, 5, v1
        v_cndmask_b32 v12, v12, v13, s[36:37]
        v_mul_u32_u24 v12, 80, v12
        v_lshlrev_b32 v14, 2, v14
        s_lshl_b32 s35, s33, 5
        v_add_u32 v14, s35, v14
        v_lshlrev_b32 v22, 2, v0
        v_add_u32 v23, 65536, v22
        v_add_u32 v12, 65536, v12""")
        MS = [4, 6, 24, 34]
        for j in range(4):
            ms = MS[j]
            k.i(f"""v_add_u32 v15, {8*j}, v14
            v_mul_u32_u24 v20, 205, v15
            v_lshrrev_b32 v20, 12, v20
            v_mul_u32_u24 v21, 20, v20
            v_sub_u32 v21, v15, v21
            v_cmp_eq_u32 s[{ms}:{ms+1}], v20, v11
            v_cmp_gt_u32 vcc, 3, v20
            v_mul_u32_u24 v20, 1680, v20
            v_lshl_add_u32 v21, v21, 2, v12
            v_add_u32 v{16+j}, v20, v21
            s_or_b64 s[{ms}:{ms+1}], s[{ms}:{ms+1}], s[36:37]
            s_and_b64 s[{ms}:{ms+1}], s[{ms}:{ms+1}], vcc""")
    fill = c.lines
    for _ in range(16): k.i(fill.pop(0))
    def kvm(n):
        def f():
            k.wait(lg=f"f{n}")
            k.i(f"v_mfma_f32_32x32x16_bf16 v[{DD}:{DD+15}], v[{FA+4*n}:{FA+4*n+3}], v[{FB+4*n}:{FB+4*n+3}], {'0' if n == 0 else vr(DD,16)}")
        return f
    for l in merge([kvm(n) for n in range(8)], fill, 6): k.i(l)
    for j in range(4):
        k.i(f"s_mov_b64 exec, s[{MS[j]}:{MS[j]+1}]")
        k.lg(f"ds_write_b128 v{16+j}, v[{DD+4*j}:{DD+4*j+3}]")
    k.i(f"""s_mov_b64 exec, -1
    s_mul_i32 s33, s27, 5040
    s_add_u32 s33, s33, {KVA}
    s_add_u32 s4, s14, s33
    s_addc_u32 s5, s15, 0
    s_cmp_eq_u32 s27, 10
    s_movk_i32 s6, 5040
    s_cselect_b32 s6, 3360, s6
    s_mov_b32 s7, 0x20000""")
    k.wait(lg="all"); k.i("s_barrier")
    stamp(9, "p1e")
    for i in range(5):
        k.lg(f"ds_read_b32 v{32+i}, v23 offset:{1024*i}", f"d{i}")
    for i in range(5):
        k.wait(lg=f"d{i}")
        if i == 4: k.i("v_add_u32 v22, 4096, v22")
        k.vm(f"buffer_atomic_add_f32 v{32+i}, v22, s[4:7], 0 offen offset:{1024*(i%4)}", "out1")
    stamp(10, "p1e")
    def bg_finish(B):
        k.auto = None
        print("WO left for the drain:", NPRE - (50 - B.left()), file=sys.stderr)
        if O("pqe", 1):
            k.i(f"v_min_u32 v{FB0+1}, 4, v1\nv_lshlrev_b32 v{FB0+1}, 2, v{FB0+1}\ns_and_b32 s24, s2, 7\ns_lshl_b32 s24, s24, 12\ns_lshl_b32 s25, s26, 8\ns_add_u32 s24, s24, s25\ns_add_u32 s24, s24, {F1 + 128 + 12}")
            k.vm(f"buffer_load_dword v{FB0}, v{FB0+1}, s[16:19], s24 offen sc1", "out1")
        B.go(NPRE - (50 - B.left()))
    bg_finish(B)
    k.wait(vm="out1")
    k.i("s_branch p1_fin")
    k.label("p1_q")
    rest(sv); Q.q = list(Qs)
    k.i(f"""s_mul_i32 s33, s28, 40960
    s_sub_u32 s34, s27, 11
    s_lshl_b32 s34, s34, 13
    s_add_u32 s33, s33, s34
    s_add_u32 s33, s33, {PQ}""")
    tail = [(ks, j) for j in range(4) for ks in range(36, 40)]
    B = mkbg()
    loop(False, tail, {149: phi_lines(0), 153: phi_lines(1)}, B, "q")
    stamp(5)
    for t in range(4):
        if t >= 2:
            for b in range(0, 16, 4):
                phi4(ACC + 16*t + b, PK + 8*t + b//2, T)
        for f in range(2):
            k.vm(f"buffer_store_dwordx4 v[{PK+8*t+4*f}:{PK+8*t+4*f+3}], v3, s[16:19], s33 offen offset:{(2048*t+1024*f) % 4096} {HO}", "out1")
        if t == 1: k.i("s_add_u32 s33, s33, 4096")
    stamp(8, "p1e"); stamp(9, "p1e"); stamp(10, "p1e")
    bg_finish(B)
    k.wait(vm="out1")
    k.label("p1_fin")
    stamp(6)
    k.i("s_barrier")
    sig_all(F1, 6)
    k.i(f"""s_cmp_lg_u32 s45, 0
    s_cbranch_scc1 p1_noep""")
    signal(1, f"v_mov_b32 v7, 0\ns_mov_b32 s42, {CB}", 6)
    k.label("p1_noep")
    WOB = B
    k.i("v_mov_b32 v5, v24\nv_mov_b32 v2, v26")
    k.i(f"s_mov_b32 s26, s{PWQ}\ns_mov_b32 s27, s{PWQ+1}")
    if O("pqe", 1):
        k.i(f"v_cmp_ne_u32 vcc, s44, v{FB0}\ns_cbranch_vccz p1_qok")
        poll(FB0+1, 24, FB0, w0=False)
        k.label("p1_qok")
        k.i(f"""s_mul_i32 s22, s29, 40960
        s_mul_i32 s33, s20, 10240
        s_add_u32 s22, s22, s33
        s_add_u32 s22, s22, {PQ}""")
        for kl in range(10):
            k.vm(f"buffer_load_dwordx4 a[{PQA+4*kl}:{PQA+4*kl+3}], v3, s[16:19], s22 offen offset:{1024*(kl%4)} {HO}", f"pq{kl}")
            if kl % 4 == 3: k.i("s_add_u32 s22, s22, 4096")
    k.vm(f"global_load_ushort v{TBV+8}, v27, s[{PB1}:{PB1+1}]")
    if not OPT.get("usplit"): SQ[0].go(99)
    global SQL
    SQL = SQ[0]
    if XM == "win": xloads("")
    if XM == "mix":
        k.i("s_cmp_lg_u32 s20, 0\ns_cbranch_scc1 p1_nox2")
        xloads("")
        k.label("p1_nox2")
    WOB.go(O("wo_w", 5))
    NW1 = O("w1_w", 16)
    assert not (OPT.get("usplit") and NW1)
    k.i(f"""s_mul_i32 s25, s27, 122880
    s_add_u32 s25, s25, {W1}
    s_cmp_eq_u32 s20, 0
    s_cbranch_scc1 p1_now1
    s_sub_u32 s23, s20, 1
    s_mul_i32 s23, s23, {NW1*1024}
    s_add_u32 s24, s25, s23""")
    for i in range(NW1):
        if i % 4 == 0: k.i(f"s_add_u32 m0, s23, {1024*i}")
        if not OPT.get("nobg"): k.i(f"buffer_load_dwordx4 v3, s[16:19], s24 offen offset:{1024*(i%4)} {HO} lds")
        if i % 4 == 3: k.i("s_add_u32 s24, s24, 4096")
    k.i("s_waitcnt vmcnt(0)" if OPT.get("nobg") else f"s_waitcnt vmcnt({NW1})")
    k.label("p1_now1")
    stamp(7)

W2B = None
def phase2():
    global W2B
    P2L = 102400
    k.i(f"""s_mul_i32 s21, s20, 13440
    s_add_u32 s21, s21, {KVA}
    s_mul_i32 s23, s20, 15360
    s_add_u32 s23, s23, {P2L+64}
    s_mul_i32 s22, s29, 40960
    s_mul_i32 s33, s20, 10240
    s_add_u32 s22, s22, s33
    s_add_u32 s22, s22, {PQ}
    v_bfe_u32 v8, v1, 2, 3
    v_lshlrev_b32 v8, 2, v8
    v_and_b32 v9, 3, v1
    s_mov_b32 s33, 0x55524130
    s_mov_b32 s34, 0x55453120
    v_bfe_u32 v10, s33, v8, 4
    v_bfe_u32 v11, s34, v8, 4
    v_lshl_add_u32 v10, v10, 2, v9
    v_lshl_add_u32 v11, v11, 2, v9
    v_min_u32 v10, 20, v10
    v_min_u32 v11, 20, v11
    v_lshrrev_b32 v12, 5, v1
    v_lshlrev_b32 v12, 4, v12
    s_sub_u32 s33, s23, 16
    v_add_u32 v12, s33, v12
    v_mul_u32_u24 v10, 80, v10
    v_mul_u32_u24 v11, 80, v11
    v_add_u32 v10, v10, v12
    v_add_u32 v11, v11, v12
    s_lshl_b32 s28, s26, 2
    s_add_u32 s28, s28, s20
    s_mov_b32 s36, 0
    s_mov_b32 s37, -1
    s_lshl_b32 s35, s13, 2
    s_add_u32 s35, s35, s20
    s_mul_i32 s35, s35, 61440
    s_add_u32 s35, s35, {W2}""")
    poll_all(F1, 14, O('slp1', 0))
    k.i("s_barrier")
    k.vm_done = k.vm_n
    stamp(8)
    for i in range(14):
        if i % 4 == 0: k.i(f"s_add_u32 m0, s23, {1024*i}")
        k.vm(f"buffer_load_dwordx4 v3, s[16:19], s21 offen offset:{1024*(i%4)} {HO} lds", f"kv{i}")
        if i % 4 == 3: k.i("s_add_u32 s21, s21, 4096")
        PQS = {0: {6: range(0, 5), 13: range(5, 10)}, 1: {6: range(0, 2), 13: range(2, 10)}, 2: {3: range(0, 2), 6: range(2, 4), 9: range(4, 6), 13: range(6, 10)}, 3: {3: range(0, 3), 13: range(3, 10)}}[O("pqo", 0)]
        if i in PQS and not O("pqe", 1):
            for kl in PQS[i]:
                k.vm(f"buffer_load_dwordx4 a[{PQA+4*kl}:{PQA+4*kl+3}], v3, s[16:19], s22 offen offset:{1024*(kl%4)} {HO}", f"pq{kl}")
                if kl % 4 == 3: k.i("s_add_u32 s22, s22, 4096")
    if OPT.get("xm") == "late":
        for c in range(5):
            XQ.add(f"global_load_dwordx2 a[{XA+2*c}:{XA+2*c+1}], v5, s[{PX}:{PX+1}] offset:{64*c} {OPT.get('xpol', '')}", "xres")
    NW1 = O("w1_w", 16); N1 = (96 - 3*NW1) // 4
    assert 3*NW1 + 4*N1 == 96
    k.i(f"s_mul_i32 s24, s20, {N1*1024}\ns_add_u32 s24, s24, {3*NW1*1024}\ns_add_u32 s25, s25, s24")
    B1 = BG()
    for i in range(N1):
        B1.add(f"buffer_load_dwordx4 v3, s[16:19], s25 offen offset:{1024*(i%4)} {HO} lds", "w1",
               pre=(f"s_add_u32 m0, s24, {1024*i}" if i % 4 == 0 else ""), post=("s_add_u32 s25, s25, 4096" if i % 4 == 3 else ""))
    W2B = BG()
    for i in range(60):
        W2B.add(f"buffer_load_dwordx4 a[{W2R[i]}:{W2R[i]+3}], v3, s[16:19], s35 offen offset:{1024*(i%4)} {HO}", "w2", post=("s_add_u32 s35, s35, 4096" if i % 4 == 3 else ""))
    AF = 20; TT = 84; DT = 180; OG = 84; ACC = [20, 36, 124, 140, 156]
    def tabsum():
        for j in range(1, 8): k.i(f"v_add_f32 v{TBV}, v{TBV}, v{TBV+j}")
        k.i(f"v_lshlrev_b32 v{TBV+1}, 16, v{TBV+8}")
    if not OPT.get("usplit"): tabsum()
    jobs = {}
    n = 0
    for hl in range(8):
        jobs[hl] = []
        for u in range(2):
            for h2 in range(2):
                dg0 = -(hl % 4) + 4*u + 2*h2
                v0_ = 0 <= dg0 <= 4; v1_ = 0 <= dg0+1 <= 4
                d = AF + (2*hl+u)*4 + 2*h2
                if v0_ or v1_:
                    jobs[hl].append((d, n, v0_, v1_, hl*1680 + 16*(dg0+1))); n += 1
                else:
                    jobs[hl].append((d, None, 0, 0, 0))
                    k.i(f"v_mov_b32 v{d}, 0\nv_mov_b32 v{d+1}, 0")
    def kvreads(lo, hi):
        for hl in range(lo, hi):
            for d, n, _, _, o in jobs[hl]:
                if n is not None: k.lg(f"ds_read_b128 v[{TT+4*n}:{TT+4*n+3}], v{10 + (hl & 1)} offset:{o}", f"a{n}")
    def build(hl):
        for d, n, v0_, v1_, _ in jobs[hl]:
            if n is None: continue
            k.wait(lg=f"a{n}")
            t = TT + 4*n
            k.i(f"v_cvt_pk_bf16_f32 v{d}, v{t}, v{t+1}\nv_cvt_pk_bf16_f32 v{d+1}, v{t+2}, v{t+3}")
            if not v1_: k.i(f"v_cndmask_b32 v{d}, v{d}, 0, s[36:37]\nv_cndmask_b32 v{d+1}, v{d+1}, 0, s[36:37]")
            if not v0_: k.i(f"v_cndmask_b32 v{d}, 0, v{d}, s[36:37]\nv_cndmask_b32 v{d+1}, 0, v{d+1}, s[36:37]")
    def omm(hl):
        t0 = hl + hl//4
        d = vr(DT + 16*(hl % 4), 16)
        def f(u):
            def g():
                k.wait(vm=f"pq{t0+u}")
                k.i(f"v_mfma_f32_32x32x16_bf16 {d}, {vr(AF+(2*hl+u)*4, 4)}, {ar(PQA+4*(t0+u), 4)}, {'0' if u == 0 else d}")
            return g
        return [f(0), f(1)]
    def opost(hl):
        p = hl // 2; odd = hl & 1
        D = DT + 16*(hl % 4); rc = 16 + 2*odd
        a, b = (D+8, D+12) if odd else (D+12, D+8)
        with capture() as c:
            k.i(f"v_cndmask_b32 v{rc}, v{a}, v{b}, s[36:37]\nv_add_f32 v{rc}, s38, v{rc}\nv_rcp_f32 v{rc}, v{rc}\ns_nop 0")
            for h in range(6):
                k.i(f"v_pk_mul_f32 v[{D+2*h}:{D+2*h+1}], v[{D+2*h}:{D+2*h+1}], v[{rc}:{rc+1}] op_sel_hi:[1,0]")
            for j in range(2):
                g = OG + 2*(5*p + 2*odd + j)
                k.i(f"v_cvt_pk_bf16_f32 v{g}, v{D+4*j}, v{D+4*j+1}\nv_cvt_pk_bf16_f32 v{g+1}, v{D+4*j+2}, v{D+4*j+3}")
            g = OG + 2*(5*p + 4)
            if not odd:
                k.i(f"v_cvt_pk_bf16_f32 v{g}, v{D+8}, v{D+9}\nv_cvt_pk_bf16_f32 v{g+1}, v{D+10}, v{D+11}")
            else:
                k.i(f"v_cvt_pk_bf16_f32 v{D}, v{D+8}, v{D+9}\nv_cvt_pk_bf16_f32 v{D+1}, v{D+10}, v{D+11}")
                k.i(f"v_cndmask_b32 v{g}, v{g}, v{D}, s[36:37]\nv_cndmask_b32 v{g+1}, v{g+1}, v{D+1}, s[36:37]")
        return c.lines
    def wo(u, c, bg=True):
        def f():
            d = vr(ACC[c], 16)
            while f"wo{5*u+c}" not in k.vm_tags or (WOB.left() and 50 - WOB.left() <= 5*u+c): WOB.go()
            k.wait(vm=f"wo{5*u+c}")
            k.i(f"v_mfma_f32_32x32x16_bf16 {d}, {ar(WOR[5*u+c], 4)}, {vr(OG+4*u, 4)}, {'0' if u == 0 else d}")
            w2lim[0] = min(5*u, 35)
        return f
    w2lim = [0]
    def au2():
        if WOB.left(): WOB.go()
        elif SQL.left(): SQL.go(4)
        elif XQ.left(): XQ.go(5)
        elif B1.left(): B1.go()
        elif 60 - W2B.left() < w2lim[0]: W2B.go()
    k.auto = au2; k.th = O("th2", 90)
    if O("kv4", 0):
        k.wait(vm="kv3"); stamp(13, "p2"); kvreads(0, 2)
        k.wait(vm="kv6"); kvreads(2, 4)
        for hl in range(4):
            build(hl)
            for f in omm(hl): f()
            if hl == 0: k.wait(vm="kv9"); kvreads(4, 6)
            if hl == 1: k.wait(vm="kv13"); kvreads(6, 8)
        for hl in range(4, 8): build(hl)
    else:
        k.wait(vm="kv6")
        stamp(13, "p2")
        kvreads(0, 4)
        for hl in range(4):
            build(hl)
            for f in omm(hl): f()
            if hl == 1:
                k.wait(vm="kv13"); kvreads(4, 8)
        for hl in range(4, 8):
            build(hl)
    stamp(9)
    for l in opost(0): k.i(l)
    for l in merge(omm(4), opost(1), 9): k.i(l)
    stamp(10)
    for l in merge(omm(5) + [wo(u, c) for u in (0, 1) for c in range(5)], opost(2) + opost(3), 4): k.i(l)
    for l in merge(omm(6) + omm(7) + [wo(u, c) for u in (2, 3, 4) for c in range(5)], opost(4) + opost(5), 3): k.i(l)
    with capture() as c:
        k.i(f"s_sub_u32 s33, s23, 64\nv_add_u32 v13, s33, v3")
        for j in range(1, 4):
            k.i(f"s_sub_u32 s33, s20, {j}\ns_and_b32 s33, s33, 3\ns_mul_i32 s33, s33, 15360\ns_add_u32 s33, s33, {P2L + (j-1)*5120}\nv_add_u32 v{13+j}, s33, v3")
    for l in merge([wo(u, c) for u in (5, 6) for c in range(5)], opost(6) + opost(7), 4): k.i(l)
    XF = 180
    with capture() as c2:
        k.i("s_mov_b32 s33, 0xffff0000")
        for j in range(10):
            k.i(f"v_accvgpr_read_b32 v{XF+2*j+1}, a{XA+j}")
        for j in range(10):
            k.i(f"v_lshlrev_b32 v{XF+2*j}, 16, v{XF+2*j+1}\nv_and_b32 v{XF+2*j+1}, s33, v{XF+2*j+1}")
    XL = OPT.get("xm") == "late"
    fill = c.lines + ([] if XL else c2.lines)
    XQ.go(99)
    def red_w(c):
        for j in range(1, 4):
            r = ACC[c] + 4*j
            k.lg(f"ds_write_b128 v13, v[{r}:{r+3}] offset:{(j-1)*5120 + 1024*c}")
    for c in range(5):
        fill = merge([wo(u, c) for u in (7, 8, 9)], fill, 4)
        if c >= 2: red_w(c - 2)
    for l in fill: k.i(l)
    w2lim[0] = 60
    stamp(11)
    red_w(3); red_w(4)
    def own():
        for c in range(5):
            for h in range(2):
                d = XF + 4*c + 2*h; a = ACC[c] + 2*h
                k.i(f"v_pk_add_f32 v[{d}:{d+1}], v[{d}:{d+1}], v[{a}:{a+1}]")
    if not XL: own()
    k.wait(lg="all"); k.i("s_barrier")
    stamp(14, "p2")
    RR = 52 if XL else 84
    for j in range(1, 4):
        for c in range(5):
            r = RR + 20*(j-1) + 4*c
            k.lg(f"ds_read_b128 v[{r}:{r+3}], v{13+j} offset:{1024*c}", f"r{j}_{c}")
    k.i(f"""s_mul_i32 s34, s29, 40
    s_mul_i32 s21, s30, 10
    s_add_u32 s34, s34, s21
    s_lshr_b32 s21, s20, 1
    s_add_u32 s34, s34, s21
    s_lshl_b32 s34, s34, 10
    s_and_b32 s21, s20, 1
    s_lshl_b32 s21, s21, 9
    s_add_u32 s34, s34, s21
    s_add_u32 s34, s34, {HH}
    v_and_b32 v8, 31, v1
    v_lshrrev_b32 v9, 5, v1
    v_lshlrev_b32 v12, 3, v8
    v_lshlrev_b32 v8, 4, v8
    v_lshl_add_u32 v8, v9, 3, v8""")
    HP = 24
    if XL:
        k.wait(vm="xres")
        for l in c2.lines: k.i(l)
        own()
    for j in range(1, 4):
        for c in range(5):
            k.wait(lg=f"r{j}_{c}")
            for h in range(2):
                d = XF + 4*c + 2*h; a = RR + 20*(j-1) + 4*c + 2*h
                k.i(f"v_pk_add_f32 v[{d}:{d+1}], v[{d}:{d+1}], v[{a}:{a+1}]")
            if j == 3:
                k.i(f"v_cvt_pk_bf16_f32 v{HP+2*c}, v{XF+4*c}, v{XF+4*c+1}\nv_cvt_pk_bf16_f32 v{HP+2*c+1}, v{XF+4*c+2}, v{XF+4*c+3}")
                k.vm(f"buffer_store_dwordx2 v[{HP+2*c}:{HP+2*c+1}], v8, s[16:19], s34 offen offset:{2048*(c%2)} {HO}")
                if c % 2 == 1: k.i("s_add_u32 s34, s34, 4096")
    for j in range(10):
        k.i(f"v_lshlrev_b32 v{XF+2*j}, 16, v{HP+j}\nv_and_b32 v{XF+2*j+1}, s33, v{HP+j}")
    k.i(f"v_pk_add_f32 v[16:17], v[{XF}:{XF+1}], v[{XF+2}:{XF+3}]")
    k.i(f"v_pk_mul_f32 v[18:19], v[{XF}:{XF+1}], v[{XF}:{XF+1}]")
    k.i(f"v_pk_fma_f32 v[18:19], v[{XF+2}:{XF+3}], v[{XF+2}:{XF+3}], v[18:19]")
    for j in range(2, 10):
        k.i(f"v_pk_add_f32 v[16:17], v[16:17], v[{XF+2*j}:{XF+2*j+1}]")
        k.i(f"v_pk_fma_f32 v[18:19], v[{XF+2*j}:{XF+2*j+1}], v[{XF+2*j}:{XF+2*j+1}], v[18:19]")
    k.i(f"""v_add_f32 v16, v16, v17
    v_add_f32 v17, v18, v19
    v_mov_b32 v18, v16
    v_mov_b32 v19, v17
    s_lshl_b32 s34, s29, 4
    s_lshl_b32 s21, s30, 2
    s_add_u32 s34, s34, s21
    s_add_u32 s34, s34, s20
    v_permlane32_swap_b32 v16, v18
    v_permlane32_swap_b32 v17, v19
    s_lshl_b32 s34, s34, 8
    s_add_u32 s34, s34, {ST}
    v_pk_add_f32 v[16:17], v[16:17], v[18:19]
    s_mov_b64 exec, 0xffffffff""")
    k.vm(f"buffer_store_dwordx2 v[16:17], v12, s[16:19], s34 offen {HO}", "out2")
    k.i("s_mov_b64 exec, -1")
    stamp(15, "p2")
    k.auto = None
    print("P2 end: W1 left", B1.left(), "W2 left", W2B.left(), file=sys.stderr)
    B1.go(99)
    if not OPT.get("nodrain"):
        W2B.go(O("w2_d2", 12))
        k.wait(vm="out2")
    stamp(12)
    k.i("s_barrier")
    sig_row(F2, 6, "s_and_b32 s42, s29, 3", "s_mov_b32 s43, s30")
    k.i(f"s_mul_i32 s23, s20, 6144\ns_mul_i32 s25, s27, 122880\ns_add_u32 s25, s25, s23\ns_add_u32 s25, s25, {W1 + 98304}")
    for i in range(6):
        if i % 4 == 0: k.i(f"s_add_u32 m0, s23, {98304 + 1024*i}")
        k.vm(f"buffer_load_dwordx4 v3, s[16:19], s25 offen offset:{1024*(i%4)} {HO} lds", "w1t")
        if i % 4 == 3: k.i("s_add_u32 s25, s25, 4096")
    if OPT.get("usplit"): tabsum()
    k.i(f"v_lshlrev_b32 v6, 2, v0\nv_add_u32 v6, 122880, v6")
    k.lg(f"ds_write_b32 v6, v{TBV}")
    k.lg(f"ds_write_b32 v6, v{TBV+1} offset:1024")

def phase3():
    TB = 122880
    k.i(f"""s_mul_i32 s21, s28, 40960
    s_add_u32 s21, s21, {HH}
    v_and_b32 v8, 31, v1
    v_lshrrev_b32 v7, 5, v1
    v_lshlrev_b32 v8, 3, v8
    v_lshl_add_u32 v8, v7, 8, v8
    s_lshl_b32 s33, s28, 12
    s_add_u32 s33, s33, {ST}
    v_lshlrev_b32 v14, 4, v7
    v_add_u32 v14, {TB}, v14
    v_bfe_u32 v15, v1, 4, 1
    v_mul_u32_u24 v15, 49152, v15
    v_and_b32 v16, 15, v1
    v_lshl_add_u32 v15, v16, 4, v15
    v_lshl_add_u32 v15, v7, 9, v15
    s_mul_i32 s34, s28, 98304
    s_mul_i32 s25, s27, 3072
    s_add_u32 s34, s34, s25
    s_add_u32 s34, s34, {H1}""")
    W2B.go(O("w2_w2", 4))
    k.wait(vm="w1t", lg="all")
    k.i("s_barrier")
    poll_row(F2, 10, O('slp2', 0))
    stamp(13)
    ACC = 40; WB = 88; NS = 9; AH = O('ah3', 6); NR = O("pre3", 12); SR = 20; CT = 172
    HRL = list(range(124, 172, 4)) + list(range(220, 256, 4))
    H = BG()
    for i in range(40):
        r = HRL[i % NR]
        H.add(f"buffer_load_dwordx4 v[{r}:{r+3}], v3, s[16:19], s21 offen offset:{1024*(i%4)} {HO}", f"h{i}", post=("s_add_u32 s21, s21, 4096" if i % 4 == 3 else ""))
    R3 = O("r3", NR - 1)
    def stats_ld():
        for j in range(8):
            k.vm(f"buffer_load_dwordx2 v[{SR+2*j}:{SR+2*j+1}], v8, s[16:19], s33 offen offset:{512*j} {HO}", "stats")
    if R3 == NR - 1:
        H.go(4); stats_ld(); H.go(NR - 5)
    else: H.go(R3)
    TL = O("tl3", 4)
    items = [(ks, j) for ks in range(40-TL) for j in range(3)] + [(ks, j) for j in range(3) for ks in range(40-TL, 40)]
    def rd(n):
        ks, j = items[n]
        o = (ks*3 + j) * 1024
        r = WB + 4*(n % NS)
        k.lg(f"ds_read_b128 v[{r}:{r+3}], v{3 + o//65536} offset:{o % 65536}", f"w{n}")
    with capture() as c:
        for j in range(1, 8): k.i(f"v_pk_add_f32 v[{SR}:{SR+1}], v[{SR}:{SR+1}], v[{SR+2*j}:{SR+2*j+1}]")
        k.i(f"""v_mov_b32 v10, v{SR}
        v_mov_b32 v11, v{SR+1}
        v_permlane32_swap_b32 v{SR}, v10
        v_permlane32_swap_b32 v{SR+1}, v11
        v_pk_add_f32 v[8:9], v[{SR}:{SR+1}], v[10:11]
        v_mul_f32 v8, 0x3acccccd, v8
        v_mul_f32 v9, 0x3acccccd, v9
        v_fma_f32 v9, -v8, v8, v9
        v_max_f32 v9, 0, v9""")
        bf16r(8, 8); bf16r(9, 9)
        k.i("v_add_f32 v9, 0x3727c5ac, v9")
        bf16r(9, 9)
        k.i("v_sqrt_f32 v9, v9")
        bf16r(9, 9)
        k.i("v_rcp_f32 v10, v9\nv_mul_f32 v12, v8, v10\nv_sub_f32 v12, 0, v12")
    statl = c.lines
    def tab_reads(nt):
        for j in range(4):
            n = 4*nt + j
            k.lg(f"ds_read_b128 v[{CT+4*n}:{CT+4*n+3}], v14 offset:{1024+128*nt+32*j}")
            k.lg(f"ds_read_b128 v[{SR+4*j}:{SR+4*j+3}], v14 offset:{128*nt+32*j}", f"t{nt}")
    def tab_lines(nt):
        with capture() as c:
            for j in range(4):
                b = CT + 4*(4*nt + j)
                for h in range(2):
                    k.i(f"v_pk_fma_f32 v[{b+2*h}:{b+2*h+1}], v[{SR+4*j+2*h}:{SR+4*j+2*h+1}], v[12:13], v[{b+2*h}:{b+2*h+1}] op_sel_hi:[1,0,1]")
        return c.lines
    def epi_lines(nt, j):
        n = 4*nt + j
        a = ACC + 4*n; b = CT + 4*n
        with capture() as c:
            for h in range(2):
                k.i(f"v_pk_fma_f32 v[{a+2*h}:{a+2*h+1}], v[{a+2*h}:{a+2*h+1}], v[10:11], v[{b+2*h}:{b+2*h+1}] op_sel_hi:[1,0,1]")
            for h in range(4): k.i(f"v_max_f32 v{a+h}, 0, v{a+h}")
            for h in range(2):
                k.i(f"v_pk_mul_f32 v[{a+2*h}:{a+2*h+1}], v[{a+2*h}:{a+2*h+1}], v[{a+2*h}:{a+2*h+1}]")
            for h in range(2):
                k.i(f"v_cvt_pk_bf16_f32 v{CT+8*(n//2)+2*(n%2)+h}, v{a+2*h}, v{a+2*h+1}")
        return c.lines
    def st_h1(nt, e):
        k.vm(f"buffer_store_dwordx4 v[{CT+16*nt+8*e}:{CT+16*nt+8*e+3}], v15, s[16:19], s34 offen offset:{1024*nt+256*e} {HO}", "out3")
    for n in range(AH): rd(n)
    fill = []
    k.auto = lambda: W2B.go(); k.th = O("th3", 100)
    for n, (ks, j) in enumerate(items):
        G3 = O("g3", 1)
        if n % G3 == 0:
            last = min(n + G3 - 1, 119)
            k.wait(vm=f"h{max(items[m][0] for m in range(n, last + 1))}", lg=f"w{last}")
        if n == 12: cst(7)
        if n == 108: cst(9)
        d = vr(ACC + 16*j, 16)
        k.i(f"v_mfma_f32_32x32x16_bf16 {d}, {vr(WB + 4*(n % NS), 4)}, {vr(HRL[ks % NR], 4)}, {'0' if ks == 0 else d}")
        if n % 3 == 0: H.go()
        elif n % 3 == 1 and 40 - H.left() < n//3 + NR - 1 and n < 3*(40 - TL): H.go()
        if R3 != NR - 1 and n == O("st3", 26): stats_ld()
        if O('w2_p3', 0) and n % O('w2_p3', 0) == 4: W2B.go()
        if n + AH < 120: rd(n + AH)
        if n == (18 if R3 == NR - 1 else O('st3', 26) + 9):
            k.wait(vm='stats'); fill += statl
        for nt in range(3):
            if n == 52 + 12*nt: tab_reads(nt)
            if n == 58 + 12*nt:
                k.wait(lg=f"t{nt}"); fill += tab_lines(nt)
        if n == 121 - 2*TL: fill += epi_lines(0, 0) + epi_lines(0, 1) + epi_lines(0, 2) + epi_lines(0, 3)
        if n == 121 - TL: fill += epi_lines(1, 0) + epi_lines(1, 1)
        for _ in range(3 if n < 120 - 2*TL else 6):
            if fill: k.i(fill.pop(0))
    stamp(14)
    for l in fill: k.i(l)
    st_h1(0, 0); st_h1(0, 1); st_h1(1, 0)
    for nt, j in ((1, 2), (1, 3), (2, 0), (2, 1), (2, 2), (2, 3)):
        for l in epi_lines(nt, j): k.i(l)
        if j % 2 == 1: st_h1(nt, j // 2)
    k.auto = None
    print("P3 end: W2 left", W2B.left(), file=sys.stderr)
    if not OPT.get("nodrain"):
        W2B.go(O("w2_d3", 12))
        k.wait(vm="out3")
    stamp(15)
    k.i("s_barrier")
    sig_row(F3, 6, "s_lshr_b32 s42, s27, 2", "s_and_b32 s43, s27, 3")

def phase4():
    HR = 20; BR = 30; ACC = 40; RING = 120; NB = O("nb4", 6)
    srd(8, PB2, 1280)
    k.i(f"""v_and_b32 v4, 15, v1
    v_lshrrev_b32 v5, 4, v1
    s_lshl_b32 s33, s12, 1
    s_lshr_b32 s25, s20, 1
    s_add_u32 s33, s33, s25
    s_mul_i32 s33, s33, 40
    s_mul_i32 s25, s13, 5
    s_add_u32 s33, s33, s25
    s_lshl_b32 s33, s33, 10
    s_add_u32 s33, s33, {HH}
    s_and_b32 s25, s20, 1
    s_lshl_b32 s25, s25, 8
    s_add_u32 s33, s33, s25
    v_lshrrev_b32 v8, 1, v5
    v_lshlrev_b32 v8, 9, v8
    v_lshl_add_u32 v8, v4, 4, v8
    v_and_b32 v9, 1, v5
    v_lshl_add_u32 v8, v9, 3, v8
    v_add_u32 v9, 4096, v8
    v_lshlrev_b32 v17, 3, v5
    s_mul_i32 s34, s13, 160""")
    for c in range(5):
        k.vm(f"buffer_load_dwordx2 v[{HR+2*c}:{HR+2*c+1}], v{8 if c < 4 else 9}, s[16:19], s33 offen offset:{1024*(c%4)} {HO}")
    for c in range(5):
        k.vm(f"buffer_load_dwordx2 v[{BR+2*c}:{BR+2*c+1}], v17, s[8:11], s34 offen offset:{32*c}", "res")
    W2B.go(99)
    k.i(f"""s_mul_i32 s21, s12, 196608
    s_mul_i32 s22, s20, 12288
    s_add_u32 s21, s21, s22
    s_add_u32 s21, s21, {H1}
    s_lshl_b32 s25, s12, 6
    s_lshl_b32 s33, s20, 4
    s_add_u32 s25, s25, s33
    v_add_u32 v6, s25, v4
    v_mul_u32_u24 v7, 1280, v6
    v_lshl_add_u32 v7, v5, 3, v7
    s_mul_i32 s33, s20, 15360
    v_add_u32 v13, s33, v3""")
    for j in range(4):
        k.i(f"s_add_u32 s33, s20, {j}\ns_and_b32 s33, s33, 3\ns_mul_i32 s33, s33, 49152\nv_add_u32 v{8+j}, s33, v3")
    for j in range(1, 4):
        k.i(f"s_sub_u32 s33, s20, {j}\ns_and_b32 s33, s33, 3\ns_mul_i32 s33, s33, 15360\ns_add_u32 s33, s33, {(j-1)*5120}\nv_add_u32 v{13+j}, s33, v3")
    srd(8, POUT, 2621440)
    poll_row(F3, 18, O('slp3', 0))
    stamp(16)
    Q = BG()
    for i in range(48):
        t, j = divmod(i, 4)
        r = RING + 16*(t % NB) + 4*j
        Q.add(f"buffer_load_dwordx4 v[{r}:{r+3}], v{8+j}, s[16:19], s21 offen offset:{1024*(t%4)} {HO}", f"s{t}_{j}", post=("s_add_u32 s21, s21, 4096" if i % 16 == 15 else ""))
    Q.go(O('r4', 4*(NB-1)))
    XF = 232
    with capture() as c4:
        k.i("s_mov_b32 s33, 0xffff0000")
        for j in range(10):
            k.i(f"v_lshlrev_b32 v{XF+2*j}, 16, v{HR+j}\nv_and_b32 v{XF+2*j+1}, s33, v{HR+j}")
            k.i(f"v_lshlrev_b32 v{XF+20}, 16, v{BR+j}\nv_and_b32 v{XF+21}, s33, v{BR+j}")
            k.i(f"v_pk_add_f32 v[{XF+2*j}:{XF+2*j+1}], v[{XF+2*j}:{XF+2*j+1}], v[{XF+20}:{XF+21}]")
    fill4 = c4.lines
    def red_w(j):
        for c in range(5):
            r = ACC + 20*j + 4*c
            k.lg(f"ds_write_b128 v13, v[{r}:{r+3}] offset:{(j-1)*5120 + 1024*c}")
    order = [(t, j) for t in range(10) for j in range(4)] + [(t, j) for j in (1, 2, 3, 0) for t in (10, 11)]
    for n, (t, j) in enumerate(order):
        k.wait(vm=f"s{t}_{j}")
        if n == 4: cst(11)
        if n == 40: cst(13)
        for c in range(5):
            d = vr(ACC + (5*j+c)*4, 4)
            k.i(f"v_mfma_f32_16x16x32_bf16 {d}, {ar(W2R[5*t+c], 4)}, {vr(RING+16*(t%NB)+4*j, 4)}, {'0' if t == 0 else d}")
            if c == 1: Q.go()
            if c == 3 and 48 - Q.left() < n + 4*(NB-1): Q.go()
            for _ in range(2):
                if fill4: k.i(fill4.pop(0))
        if n in (42, 44, 46): red_w((n - 40)//2)
    stamp(17)
    k.wait(lg="all"); k.i("s_barrier")
    RR = 120
    for j in range(1, 4):
        for c in range(5):
            r = RR + 20*(j-1) + 4*c
            k.lg(f"ds_read_b128 v[{r}:{r+3}], v{13+j} offset:{1024*c}", f"r{j}_{c}")
    for c in range(5):
        for h in range(2):
            d = XF + 4*c + 2*h; a = ACC + 4*c + 2*h
            k.i(f"v_pk_add_f32 v[{d}:{d+1}], v[{d}:{d+1}], v[{a}:{a+1}]")
    for j in range(1, 4):
        for c in range(5):
            k.wait(lg=f"r{j}_{c}")
            for h in range(2):
                d = XF + 4*c + 2*h; a = RR + 20*(j-1) + 4*c + 2*h
                k.i(f"v_pk_add_f32 v[{d}:{d+1}], v[{d}:{d+1}], v[{a}:{a+1}]")
            if j == 3:
                k.i(f"v_cvt_pk_bf16_f32 v{HR+2*c}, v{XF+4*c}, v{XF+4*c+1}\nv_cvt_pk_bf16_f32 v{HR+2*c+1}, v{XF+4*c+2}, v{XF+4*c+3}")
                k.vm(f"buffer_store_dwordx2 v[{HR+2*c}:{HR+2*c+1}], v7, s[8:11], s34 offen offset:{32*c} {OPT.get('opol', '')}")

def stamp_out():
    if not OPT["stamps"]: return
    if OPT.get("enc") is not None:
        e = O("enc", 0)
        k.i(f"""s_waitcnt vmcnt(0) lgkmcnt(0)
        s_memrealtime s[100:101]
        s_waitcnt lgkmcnt(0)
        s_sub_u32 s4, s{64+2*e}, s64
        s_lshl_b32 s4, s4, 2
        s_add_u32 s4, s4, 4000
        encl:
        s_memrealtime s[6:7]
        s_waitcnt lgkmcnt(0)
        s_sub_u32 s6, s6, s64
        s_cmp_lt_u32 s6, s4
        s_cbranch_scc1 encl""")
        return
    n = NSTAMP
    k.i("s_waitcnt vmcnt(0) lgkmcnt(0)")
    k.i(f"s_memrealtime s[{64+2*n}:{65+2*n}]")
    k.i("s_waitcnt lgkmcnt(0)")
    k.i(f"s_lshl_b32 s3, s45, 2\ns_add_u32 s3, s3, s20\ns_lshl_b32 s3, s3, 7\ns_add_u32 s3, s3, 0x2000000\nv_mov_b32 v1, s3")
    for j in range(n+1): k.i(f"v_mov_b32 v{2+j}, s{64+2*j}")
    k.i("s_mov_b64 exec, 1")
    for j in range(n+1): k.i(f"global_store_dword v1, v{2+j}, s[14:15] offset:{4*j}")

def emit(path):
    global k
    k = Kern(KN)
    phase0(); phase1(); phase2(); phase3(); phase4(); stamp_out()
    k.label("kend"); k.i("s_endpgm")
    body, added = hazard_pass(k.L, verbose=bool(OPT.get("vnop")))
    print("instrs", len(body), "nop states added", added, file=sys.stderr)
    out = ["; pre-LN linear-attention block + squared-ReLU MLP in one persistent launch (256 workgroups, one per CU).",
           "; kernarg: x, wqkv, wo, (unused), w1, b1, w2, b2, out, debug, ws",
           "; phase 0: LN1 and re-layout of the weights into MFMA fragment order (d_ws)   -> flags F0 / F0B",
           "; phase 1: qkv GEMM, phi, per-tile k^T v partial sums added into d_ws          -> flags F1",
           "; phase 2: o = (pq kv) / den, h = x + o wo, row sums for LN2                    -> flags F2",
           "; phase 3: relu(LN2(h) w1 + b1)^2 (LN folded into the epilogue)                 -> flags F3",
           "; phase 4: out = h + h1 w2 + b2",
           "; hand-offs: sc1 stores, vmcnt drain, barrier, sc1 flag word = (epoch word of d_ws + 1) | 2^31, sc1 polls and loads",
           "; @launch grid=(256,1,1) block=(256,1,1) lds=163840",
           '.amdgcn_target "amdgcn-amd-amdhsa--gfx950"', ".text", f".globl {KN}", ".p2align 8", f".type {KN},@function", f"{KN}:"]
    out += [("" if (l.endswith(":") or l.startswith(";")) else "    ") + l for l in body]
    out += ['.section .rodata,"a"', ".p2align 6", f".amdhsa_kernel {KN}", "  .amdhsa_next_free_vgpr 512", "  .amdhsa_next_free_sgpr 102",
            "  .amdhsa_accum_offset 256", "  .amdhsa_group_segment_fixed_size 0", "  .amdhsa_kernarg_size 88",
            "  .amdhsa_user_sgpr_count 2", "  .amdhsa_user_sgpr_kernarg_segment_ptr 1",
            "  .amdhsa_system_sgpr_workgroup_id_x 1", ".end_amdhsa_kernel"]
    open(path, "w").write("\n".join(out) + "\n")

if __name__ == "__main__":
    for a in sys.argv[2:]:
        kk, v = a.split("=")
        OPT[kk] = {"True": True, "False": False, "none": ""}.get(v, v.replace("_", " "))
    emit(sys.argv[1])
```

```python
import sys
from asmlib import *

NAME = "sequential_preLN__linear_attn_block__dense_activation_squared_relu__prompt"
KN = NAME + "_kernel"
CB = 0x0
F0B = CB + 0x1000; F2 = 0xC0000; F3 = 0xD0000; F0 = 0x90000; F1 = 0x98000
CS = 0x10000; KVA = 0x20000; ST = 0x40000
XN = 0x100000; WQ = 0x380000; WO = 0x600000; W1 = 0x700000; W2 = 0x900000
PQ = 0xB00000; HH = 0xE00000; H1 = 0x1200000; XC = 0x1800000
WSZ = 0x1B00000
LOG2E = 0x3fb8aa3b
OPT = dict(w2_d2=8, w2_w2=6, w2_d3=8, pq_n=2, pq_m=2, usplit=140, th2=40, g3=3, g1=4, wo_w=8, w1_w=0, tl1=6, tl3=6, pqe=0, stamps=False, cold="nt", pre1=2, wo_pre=36, sleep=8, slp0=20, lnexact=True)
HO = "sc1"
UL = 131072
def O(n, d): return int(OPT.get(n, d))

def magic(C, maxq):
    for sh in range(4, 24):
        m = -(-(1 << sh) // C)
        if m * maxq < (1 << 32) and m < (1 << 24) and all((q * m) >> sh == q // C for q in range(maxq)): return m, sh
    raise ValueError

k = None
def srd(d, base, size):
    k.i(f"s_mov_b32 s{d}, s{base}\ns_mov_b32 s{d+1}, s{base+1}\ns_mov_b32 s{d+2}, {size}\ns_mov_b32 s{d+3}, 0x20000")
def bf16r(d, s):
    k.i(f"v_cvt_pk_bf16_f32 v{d}, v{s}, v{s}\nv_lshlrev_b32 v{d}, 16, v{d}")
NSTAMP = 18
def stamp(idx, grp=None):
    if not OPT["stamps"]: return
    f = OPT.get("focus")
    lo = {"p0": (5, 18), "p1": (8, 18), "p1e": (8, 18), "p2": (13, 18), "clk": (1, 18)}.get(f)
    if grp is None and lo and lo[0] <= idx < lo[1]: return
    if grp is not None and grp != f: return
    k.i(f"s_memrealtime s[{64+2*idx}:{65+2*idx}]")
def cst(slot):
    if OPT["stamps"] and OPT.get("focus") == "clk":
        k.i(f"s_memrealtime s[{64+2*slot}:{65+2*slot}]\ns_memtime s[{66+2*slot}:{67+2*slot}]")
def snap(): return (k.vm_n, dict(k.vm_tags), k.vm_done, k.lg_n, dict(k.lg_tags), k.lg_done)
def rest(s): k.vm_n, k.vm_tags, k.vm_done, k.lg_n, k.lg_tags, k.lg_done = s[0], dict(s[1]), s[2], s[3], dict(s[4]), s[5]

class capture:
    def __enter__(self):
        self.save = (k.L, k.auto, k._iss, k._mf); k.L = []; k.auto = None; return self
    def __exit__(self, *a):
        self.lines = k.L; k.L, k.auto, k._iss, k._mf = self.save
def merge(main, fill, per):
    fill = list(fill)
    for m in main:
        m()
        for _ in range(per):
            if fill: k.i(fill.pop(0))
    return fill

PX, PWQ, PWO, PW1, PB1, PW2, PB2, POUT = 48, 50, 52, 56, 58, 60, 62, 46

npoll = 0
def check4(vt):
    k.i(f"v_xor_b32 v{vt}, s44, v{vt}\nv_xor_b32 v{vt+1}, s44, v{vt+1}\nv_xor_b32 v{vt+2}, s44, v{vt+2}\nv_xor_b32 v{vt+3}, s44, v{vt+3}")
    k.i(f"v_or3_b32 v{vt}, v{vt}, v{vt+1}, v{vt+2}\nv_or_b32 v{vt}, v{vt}, v{vt+3}\nv_cmp_ne_u32 vcc, 0, v{vt}")
def poll(vaddr, soff, vt, wide=False, w0=True, slp=0):
    global npoll
    npoll += 1
    L = f"poll{npoll}"
    au = k.auto; k.auto = None
    if w0: k.i(f"s_cmp_lg_u32 s20, 0\ns_cbranch_scc1 {L}d")
    if slp: k.i(f"s_sleep {slp}")
    k.i("s_mov_b32 s43, 0x20000")
    k.label(L)
    if OPT.get("apoll"):
        if wide:
            k.i(f"v_mov_b32 v{vt}, 0\nv_mov_b32 v{vt+1}, 0\nv_mov_b32 v{vt+2}, 0\nv_mov_b32 v{vt+3}, 0")
            k.i(f"buffer_atomic_or_x2 v[{vt}:{vt+1}], v{vaddr}, s[16:19], s{soff} offen sc0\nbuffer_atomic_or_x2 v[{vt+2}:{vt+3}], v{vaddr}, s[16:19], s{soff} offen offset:8 sc0\ns_waitcnt vmcnt(0)")
            check4(vt)
        else:
            k.i(f"v_mov_b32 v{vt}, 0\nbuffer_atomic_or v{vt}, v{vaddr}, s[16:19], s{soff} offen sc0\ns_waitcnt vmcnt(0)\nv_cmp_ne_u32 vcc, s44, v{vt}")
    else:
        if wide:
            k.i(f"buffer_load_dwordx4 v[{vt}:{vt+3}], v{vaddr}, s[16:19], s{soff} offen {OPT.get('ppol', 'sc1')}\ns_waitcnt vmcnt(0)")
            check4(vt)
        else:
            k.i(f"buffer_load_dword v{vt}, v{vaddr}, s[16:19], s{soff} offen {OPT.get('ppol', 'sc1')}\ns_waitcnt vmcnt(0)\nv_cmp_ne_u32 vcc, s44, v{vt}")
    k.i(f"s_cbranch_vccz {L}d")
    if O("sleep", 4): k.i(f"s_sleep {O('sleep', 4)}")
    k.i(f"s_sub_u32 s43, s43, 1\ns_cbranch_scc0 {L}")
    k.label(L + "d")
    k.auto = au
nsig = 0
def signal(mask, code, vt, dual=False, val='s44'):
    global nsig
    nsig += 1
    L = f"sig{nsig}"
    au = k.auto; k.auto = None
    k.i(f"s_cmp_lg_u32 s20, 1\ns_cbranch_scc1 {L}")
    k.i(code)
    if dual: k.i(f"v_mov_b32 v{vt}, s44\ns_mov_b64 exec, {mask}\nbuffer_store_dword v{vt}, v{vt+1}, s[16:19], s42 offen offset:2048")
    k.i(f"v_mov_b32 v{vt}, {val}\ns_mov_b64 exec, {mask}\nbuffer_store_dword v{vt}, v{vt+1}, s[16:19], s42 offen {OPT.get('spol', 'sc1')}\ns_mov_b64 exec, -1")
    k.label(L)
    k.auto = au
def sig_all(base, vt, val='s44'):
    signal(0xff, f"v_lshlrev_b32 v{vt+1}, 12, v1\ns_lshr_b32 s42, s45, 3\ns_lshl_b32 s42, s42, 7\ns_and_b32 s43, s45, 7\ns_lshl_b32 s43, s43, 2\ns_add_u32 s42, s42, s43\ns_add_u32 s42, s42, {base}", vt, val=val)
def sig_row(base, vt, line, pos, val='s44'):
    signal(1, f"v_mov_b32 v{vt+1}, 0\n{line}\n{pos}\ns_lshl_b32 s42, s42, 7\ns_lshl_b32 s43, s43, 2\ns_add_u32 s42, s42, s43\ns_lshl_b32 s43, s26, 12\ns_add_u32 s42, s42, s43\ns_add_u32 s42, s42, {base}", vt, dual=bool(OPT.get("dual")), val=val)
ntree = 0
def poll_all(base, vt, slp):
    global ntree
    k.i(f"s_and_b32 s42, s2, 7\ns_lshl_b32 s42, s42, 12\ns_add_u32 s42, s42, {base}")
    k.i(f"v_lshrrev_b32 v{vt+4}, 1, v1\nv_lshlrev_b32 v{vt+4}, 7, v{vt+4}\nv_and_b32 v{vt}, 1, v1\nv_lshl_add_u32 v{vt+4}, v{vt}, 4, v{vt+4}")
    if not (OPT.get("tree") and (base == F0 or OPT.get("tree1"))):
        poll(vt+4, 42, vt, wide=True, slp=slp); return
    ntree += 1; L = f"tree{ntree}"
    NL = O("tree", 1)
    k.i(f"s_cmp_lg_u32 s20, 0\ns_cbranch_scc1 {L}d\ns_and_b32 s41, s2, {8*NL-1}\ns_lshl_b32 s41, s41, 7\ns_add_u32 s41, s41, {base + 0x10000}\ns_cmp_ge_u32 s2, {8*NL}\ns_cbranch_scc1 {L}m")
    poll(vt+4, 42, vt, wide=True, w0=False, slp=slp)
    k.i(f"v_mov_b32 v{vt}, s44\nv_mov_b32 v{vt+1}, 0\ns_mov_b64 exec, 1\nbuffer_store_dword v{vt}, v{vt+1}, s[16:19], s41 offen sc1\ns_mov_b64 exec, -1\ns_branch {L}d")
    k.label(L + "m")
    k.i(f"v_mov_b32 v{vt+1}, 0")
    sl = OPT.get("sleep"); OPT["sleep"] = 1
    poll(vt+1, 41, vt, w0=False)
    if sl is None: del OPT["sleep"]
    else: OPT["sleep"] = sl
    k.label(L + "d")
    k.i(f"s_mov_b32 s41, {LOG2E:#x}")
def poll_row(base, vt, slp):
    global npoll
    k.i(f"v_and_b32 v{vt+1}, 3, v1\nv_lshlrev_b32 v{vt+1}, 2, v{vt+1}\ns_lshl_b32 s42, s26, 5\ns_add_u32 s42, s42, s20\ns_lshl_b32 s42, s42, 7\ns_add_u32 s42, s42, {base}")
    if not OPT.get("dual"):
        poll(vt+1, 42, vt, w0=False, slp=slp)
    else:
        npoll += 1; L = f"poll{npoll}"
        au = k.auto; k.auto = None
        if slp: k.i(f"s_sleep {slp}")
        k.i(f"v_bfe_u32 v{vt}, v1, 2, 1\nv_lshl_add_u32 v{vt+1}, v{vt}, 11, v{vt+1}\ns_mov_b32 s43, 0x20000")
        k.label(L)
        k.i(f"""buffer_load_dword v{vt}, v{vt+1}, s[16:19], s42 offen sc1
        s_waitcnt vmcnt(0)
        v_cmp_eq_u32 vcc, s44, v{vt}
        s_lshr_b32 s41, vcc_lo, 4
        s_or_b32 s41, s41, vcc_lo
        s_and_b32 s41, s41, 15
        s_cmp_eq_u32 s41, 15
        s_cbranch_scc1 {L}d
        s_sleep {O('sleepd', 2)}
        s_sub_u32 s43, s43, 1
        s_cbranch_scc0 {L}""")
        k.label(L + "d")
        k.auto = au
    k.vm_done = k.vm_n

class BG:
    def __init__(self): self.q = []
    def add(self, ins, tag=None, pre="", post=""): self.q.append((pre, ins, post, tag))
    def go(self, n=1):
        for _ in range(n):
            if self.q:
                pre, ins, post, tag = self.q.pop(0)
                if OPT.get("noxn") and tag is not None and tag[0] == "X" and int(tag[1:]) >= 4:
                    k.vm_tags[tag] = -1; continue
                if OPT.get("nobg") and tag is not None and tag[:2] in ("wo", "w1", "w2"):
                    k.vm_tags[tag] = -1; continue
                k.i(pre); k.vm(ins, tag); k.i(post)
    def left(self): return len(self.q)

def phi4(a, dst, T):
    k.i(f"v_pk_mul_f32 v[{T}:{T+1}], v[{a}:{a+1}], s[40:41]")
    k.i(f"v_pk_mul_f32 v[{T+2}:{T+3}], v[{a+2}:{a+3}], s[40:41]")
    for j in range(4): k.i(f"v_exp_f32_e64 v{T+j}, v{T+j} clamp")
    for j in range(4): k.i(f"v_max_f32 v{T+4+j}, 0, v{a+j}")
    k.i(f"v_pk_add_f32 v[{T}:{T+1}], v[{T}:{T+1}], s[38:39]")
    k.i(f"v_pk_add_f32 v[{T+2}:{T+3}], v[{T+2}:{T+3}], s[38:39]")
    k.i(f"v_pk_add_f32 v[{T}:{T+1}], v[{T}:{T+1}], v[{T+4}:{T+5}]")
    k.i(f"v_pk_add_f32 v[{T+2}:{T+3}], v[{T+2}:{T+3}], v[{T+6}:{T+7}]")
    k.i(f"v_cvt_pk_bf16_f32 v{dst}, v{T}, v{T+1}")
    k.i(f"v_cvt_pk_bf16_f32 v{dst+1}, v{T+2}, v{T+3}")

ROWOFF = [[0, 4, 20, 24, 8], [12, 16, 28, 32, 36]]

def phase0():
    cold = OPT["cold"]
    stamp(0)
    k.i(f"""s_load_dwordx16 s[48:63], s[0:1], 0
    s_load_dwordx2 s[14:15], s[0:1], 80
    s_load_dwordx2 s[46:47], s[0:1], 64
    s_getpc_b64 s[4:5]
    pcl:
    s_cmp_ge_u32 s2, 256
    s_cbranch_scc1 kend
    s_lshr_b32 s25, s2, 3
    s_and_b32 s6, s25, 7
    s_lshl_b32 s6, s6, 13
    v_lshl_add_u32 v30, v0, 7, s6
    v_min_u32 v30, kend-pcl, v30
    v_cmp_gt_u32 vcc, 64, v0
    v_and_b32 v1, 63, v0
    v_lshrrev_b32 v2, 6, v0
    s_and_saveexec_b64 s[6:7], vcc
    s_cbranch_execz p0_nopf
    {'s_nop 0' if OPT.get('nopf') else 'global_load_dword v31, v30, s[4:5]'}
    p0_nopf:
    s_mov_b64 exec, s[6:7]
    v_lshlrev_b32 v3, 4, v1
    v_readfirstlane_b32 s20, v2
    s_and_b32 s24, s2, 7
    s_lshr_b32 s26, s24, 1
    s_lshl_b32 s26, s26, 2
    s_lshr_b32 s27, s25, 3
    s_add_u32 s26, s26, s27
    s_and_b32 s27, s24, 1
    s_lshl_b32 s27, s27, 3
    s_and_b32 s25, s25, 7
    s_add_u32 s27, s27, s25
    s_lshl_b32 s45, s26, 4
    s_add_u32 s45, s45, s27
    v_bfe_u32 v28, v1, 2, 2
    v_and_b32 v29, 3, v1
    v_mov_b32 v228, 0
    s_cmp_ge_u32 s45, 128
    s_cbranch_scc1 p0_w""")
    X = 208; F = 32
    k.i(f"""v_lshrrev_b32 v4, 4, v0
    v_and_b32 v5, 15, v0
    s_lshl_b32 s21, s45, 4
    v_add_u32 v6, s21, v4
    v_mul_u32_u24 v6, 1280, v6
    v_lshl_add_u32 v6, v5, 4, v6
    s_mov_b32 s10, 2621440
    s_mov_b32 s11, 0x20000
    s_waitcnt lgkmcnt(0)
    s_mov_b32 s8, s{PX}
    s_mov_b32 s9, s{PX+1}""")
    stamp(9, "p0")
    for i in range(5):
        k.i(f"buffer_load_dwordx4 v[{X+4*i}:{X+4*i+3}], v6, s[8:11], 0 offen offset:{256*i} {OPT.get('coldx', cold)}")
    stamp(5, "p0")
    k.i(f"s_load_dword s44, s[14:15], {CB}")
    srd(16, 14, WSZ)
    if O("pw0", 0): sig_all(F0, 120, val='0')
    k.i(f"""s_lshr_b32 s21, s45, 1
    s_mul_i32 s21, s21, 40960
    s_and_b32 s22, s45, 1
    s_lshl_b32 s22, s22, 8
    s_add_u32 s21, s21, s22
    s_add_u32 s21, s21, {XN}
    v_lshrrev_b32 v7, 1, v5
    v_lshlrev_b32 v7, 10, v7
    v_and_b32 v6, 1, v5
    v_lshlrev_b32 v6, 9, v6
    v_lshl_add_u32 v7, v4, 4, v7
    v_add_u32 v7, v7, v6
    s_mov_b32 s23, 0xffff0000
    s_mov_b32 s22, 0x3f803f80
    v_mov_b32 v112, 0
    v_mov_b32 v113, 0
    v_mov_b32 v114, 0
    v_mov_b32 v115, 0
    v_lshrrev_b32 v30, 4, v1""")
    for i in range(5):
        k.i(f"s_waitcnt vmcnt({4-i})")
        if i == 0: stamp(7, "p0")
        for j in range(4*i, 4*i+4):
            k.i(f"v_dot2_f32_bf16 v{112+2*(j&1)}, v{X+j}, s22, v{112+2*(j&1)}")
            k.i(f"v_dot2_f32_bf16 v{113+2*(j&1)}, v{X+j}, v{X+j}, v{113+2*(j&1)}")
    unp = []
    for j in range(20): unp += [f"v_lshlrev_b32 v{F+2*j}, 16, v{X+j}", f"v_and_b32 v{F+2*j+1}, s23, v{X+j}"]
    def U(n):
        for _ in range(n):
            if unp: k.i(unp.pop(0))
    U(3)
    k.i("v_pk_add_f32 v[112:113], v[112:113], v[114:115]")
    for s in (8, 4, 2, 1):
        U(2)
        k.i(f"v_add_f32_dpp v112, v112, v112 row_ror:{s} row_mask:0xf bank_mask:0xf")
        k.i(f"v_add_f32_dpp v113, v113, v113 row_ror:{s} row_mask:0xf bank_mask:0xf")
    k.i("v_mul_f32 v112, 0x3acccccd, v112\nv_mul_f32 v113, 0x3acccccd, v113\nv_fma_f32 v113, -v112, v112, v113\nv_max_f32 v113, 0, v113")
    bf16r(112, 112); bf16r(113, 113)
    k.i("v_add_f32 v113, 0x3727c5ac, v113")
    bf16r(113, 113)
    k.i("v_sqrt_f32 v113, v113"); U(1)
    bf16r(113, 113)
    k.i("v_rcp_f32 v114, v113")
    U(99)
    Y = 72
    for j in range(20): k.i(f"v_pk_add_f32 v[{F+2*j}:{F+2*j+1}], v[{F+2*j}:{F+2*j+1}], v[112:113] op_sel_hi:[1,0] neg_lo:[0,1] neg_hi:[0,1]")
    for j in range(20): k.i(f"v_cvt_pk_bf16_f32 v{Y+j}, v{F+2*j}, v{F+2*j+1}")
    for j in range(20): k.i(f"v_lshlrev_b32 v{F+2*j}, 16, v{Y+j}\nv_and_b32 v{F+2*j+1}, s23, v{Y+j}")
    for i in range(5):
        for j in range(4*i, 4*i+4):
            k.i(f"v_pk_mul_f32 v[{F+2*j}:{F+2*j+1}], v[{F+2*j}:{F+2*j+1}], v[114:115] op_sel_hi:[1,0]")
        for j in range(4*i, 4*i+4):
            k.i(f"v_cvt_pk_bf16_f32 v{Y+j}, v{F+2*j}, v{F+2*j+1}")
        k.i(f"buffer_store_dwordx4 v[{Y+4*i}:{Y+4*i+3}], v7, s[16:19], s21 offen {HO}")
        if i < 4: k.i("s_add_u32 s21, s21, 8192")
    k.i(f"v_mov_b32 v228, v7\ns_add_u32 s55, s21, {XC - XN - 4*8192}")
    k.i("s_branch p0_drain")
    k.label("p0_w")
    m, sh = magic(80, 320)
    k.i(f"""s_cmp_ge_u32 s45, 248
    s_cbranch_scc1 p0_zero
    s_sub_u32 s21, s45, 128
    s_mul_i32 s30, s21, 171
    s_lshr_b32 s30, s30, 9
    s_mul_i32 s31, s30, 3
    s_sub_u32 s31, s21, s31
    s_mul_i32 s21, s30, 61440
    s_mul_i32 s22, s31, 1280
    s_add_u32 s21, s21, s22
    s_lshl_b32 s22, s20, 2
    s_mul_i32 s23, s20, 5120
    s_mov_b32 s10, 2457600
    s_mov_b32 s11, 0x20000""")
    for i in range(5):
        k.i(f"""v_add_u32 v4, {64*i}, v1
        v_mul_u32_u24 v5, {m}, v4
        v_lshrrev_b32 v5, {sh}, v5
        v_mul_u32_u24 v6, 80, v5
        v_sub_u32 v6, v4, v6
        v_lshlrev_b32 v6, 4, v6
        v_lshlrev_b32 v7, 6, v5
        v_add_u32 v5, s22, v5
        v_mul_u32_u24 v5, 3840, v5
        v_xad_u32 v{12+i}, v6, v7, v5""")
    k.i(f"s_waitcnt lgkmcnt(0)\ns_mov_b32 s8, s{PWQ}\ns_mov_b32 s9, s{PWQ+1}")
    stamp(9, "p0")
    for i in range(5):
        k.i(f"s_add_u32 m0, s23, {1024*i}\nbuffer_load_dwordx4 v{12+i}, s[8:11], s21 offen {cold} lds")
    stamp(5, "p0")
    k.i(f"s_load_dword s44, s[14:15], {CB}")
    srd(16, 14, WSZ)
    if O("pw0", 0): sig_all(F0, 120, val='0')
    k.i(f"""v_lshrrev_b32 v30, 4, v1
    v_lshrrev_b32 v4, 1, v30
    v_lshl_add_u32 v4, v4, 3, v28
    v_mul_u32_u24 v4, 1280, v4
    v_and_b32 v5, 1, v30
    v_lshlrev_b32 v5, 5, v5
    v_lshl_add_u32 v5, v29, 3, v5
    v_lshlrev_b32 v6, 6, v28
    s_lshl_b32 s21, s30, 12
    s_add_u32 s21, s21, {WQ}
    s_cmp_lg_u32 s31, 0
    s_cbranch_scc1 p0_wkv
    s_lshl_b32 s22, s20, 6
    v_add_u32 v5, s22, v5
    v_xad_u32 v7, v5, v6, v4
    s_lshl_b32 s22, s20, 10
    s_add_u32 s21, s21, s22
    s_add_u32 s21, s21, {11*163840}
    s_waitcnt vmcnt(0)""")
    stamp(7, "p0")
    k.i("s_barrier")
    for m_ in range(5):
        r = 32 + 4*m_
        k.lg(f"ds_read_b64_tr_b16 v[{r}:{r+1}], v7 offset:{256*m_}")
        k.lg(f"ds_read_b64_tr_b16 v[{r+2}:{r+3}], v7 offset:{256*m_+4*1280}", f"q{m_}")
    for m_ in range(5):
        r = 32 + 4*m_
        k.wait(lg=f"q{m_}")
        k.i(f"buffer_store_dwordx4 v[{r}:{r+3}], v3, s[16:19], s21 offen {HO}\ns_add_u32 s21, s21, 163840")
    k.i("s_branch p0_drain")
    k.label("p0_wkv")
    k.i("""s_and_b32 s22, s20, 1
    s_lshr_b32 s23, s20, 1
    s_lshl_b32 s24, s22, 6
    s_mul_i32 s25, s23, 120
    s_add_u32 s24, s24, s25
    v_add_u32 v5, s24, v5
    s_lshl_b32 s24, s31, 1
    s_add_u32 s24, s24, s22
    s_sub_u32 s24, s24, 2
    s_lshl_b32 s24, s24, 10
    s_add_u32 s21, s21, s24
    s_mul_i32 s24, s23, 163840
    s_add_u32 s21, s21, s24""")
    for i in range(6):
        k.i(f"v_add_u32 v{12+i}, {240*i}, v5\nv_min_u32 v{12+i}, 1272, v{12+i}\nv_xad_u32 v{12+i}, v{12+i}, v6, v4")
    k.i("s_waitcnt vmcnt(0)")
    stamp(7, "p0")
    k.i("s_barrier")
    for i in range(6):
        r = 32 + 4*i
        k.lg(f"ds_read_b64_tr_b16 v[{r}:{r+1}], v{12+i}")
        k.lg(f"ds_read_b64_tr_b16 v[{r+2}:{r+3}], v{12+i} offset:{4*1280}", f"kv{i}")
    for i in range(6):
        r = 32 + 4*i
        if i == 5: k.i("s_cmp_lg_u32 s23, 0\ns_cbranch_scc1 p0_drain")
        k.wait(lg=f"kv{i}")
        k.i(f"buffer_store_dwordx4 v[{r}:{r+3}], v3, s[16:19], s21 offen {HO}\ns_add_u32 s21, s21, 327680")
    k.i("s_branch p0_drain")
    k.label("p0_zero")
    k.i(f"""s_sub_u32 s21, s45, 248
    s_mul_i32 s21, s21, 6720
    s_add_u32 s21, s21, {KVA}
    v_lshlrev_b32 v4, 4, v0
    v_mov_b32 v8, 0
    v_mov_b32 v9, 0
    v_mov_b32 v10, 0
    v_mov_b32 v11, 0
    v_lshrrev_b32 v30, 4, v1
    s_mov_b32 s10, 6720
    s_mov_b32 s11, 0x20000
    s_waitcnt lgkmcnt(0)
    s_add_u32 s8, s14, s21
    s_addc_u32 s9, s15, 0
    buffer_store_dwordx4 v[8:11], v4, s[8:11], 0 offen {HO}
    v_add_u32 v4, 4096, v4
    buffer_store_dwordx4 v[8:11], v4, s[8:11], 0 offen {HO}
    s_load_dword s44, s[14:15], {CB}""")
    stamp(9, "p0"); stamp(5, "p0"); stamp(7, "p0")
    srd(16, 14, WSZ)
    k.label("p0_drain")
    stamp(1)
    k.i("s_waitcnt vmcnt(0) lgkmcnt(0)\ns_add_u32 s44, s44, 1\ns_or_b32 s44, s44, 0x80000000\ns_barrier")
    k.reset_counts()
    stamp(2)
    sig_all(F0, 4)
    k.i(f"""s_cmp_lg_u32 s20, 2
    s_cbranch_scc1 p0_nob
    v_lshlrev_b32 v4, 7, v1
    v_min_u32 v5, 3068, v4
    v_min_u32 v4, 1276, v4
    global_load_dword v31, v5, s[{PB1}:{PB1+1}]
    global_load_dword v31, v4, s[{PB2}:{PB2+1}]""")
    k.label("p0_nob")
    if not OPT.get("ulate"): unit_issue("")

def unit_issue(sfx):
    cold = OPT["cold"]
    UN = 0 if OPT.get("nounit") else 232
    k.i(f"""s_cmp_ge_u32 s45, {UN}
    s_cbranch_scc1 p0_ui{sfx}d
    s_sub_u32 s6, s20, 1
    s_mul_i32 s5, s6, 7168
    s_cmp_ge_u32 s45, 136
    s_cbranch_scc1 p0_ui{sfx}_w2
    s_cmp_ge_u32 s45, 40
    s_cbranch_scc1 p0_ui{sfx}_w1""")
    srd(8, PWO, 819200)
    k.i(f"""s_mul_i32 s35, s45, 26
    s_lshr_b32 s35, s35, 8
    s_mul_i32 s36, s35, 10
    s_sub_u32 s36, s45, s36
    s_mul_i32 s4, s35, 204800
    s_movk_i32 s25, 1280
    s_branch p0_ui{sfx}_128""")
    k.label(f"p0_ui{sfx}_w1")
    srd(8, PW1, 1966080)
    k.i(f"""s_sub_u32 s34, s45, 40
    s_mul_i32 s35, s34, 43
    s_lshr_b32 s35, s35, 10
    s_mul_i32 s36, s35, 24
    s_sub_u32 s36, s34, s36
    s_mul_i32 s4, s35, 491520
    s_movk_i32 s25, 3072""")
    k.label(f"p0_ui{sfx}_128")
    k.i(f"""s_cmp_eq_u32 s20, 0
    s_cbranch_scc1 p0_ui{sfx}d
    s_lshl_b32 s7, s36, 7
    s_add_u32 s4, s4, s7
    v_lshrrev_b32 v52, 3, v1
    s_mul_i32 s7, s6, 56
    v_add_u32 v52, s7, v52
    v_and_b32 v53, 7, v1
    v_lshlrev_b32 v53, 4, v53
    v_and_b32 v54, 2, v52
    v_lshlrev_b32 v54, 5, v54
    v_mul_lo_u32 v52, v52, s25
    v_xad_u32 v52, v53, v54, v52
    s_lshl_b32 s25, s25, 3""")
    for i in range(7):
        k.i(f"s_add_u32 m0, s5, {UL+1024*i}\nbuffer_load_dwordx4 v52, s[8:11], s4 offen {cold} lds\ns_add_u32 s4, s4, s25")
    k.i(f"s_branch p0_ui{sfx}d")
    k.label(f"p0_ui{sfx}_w2")
    srd(8, PW2, 1966080)
    m, sh = magic(40, 1344)
    k.i(f"""s_sub_u32 s34, s45, 136
    s_lshr_b32 s35, s34, 1
    s_and_b32 s36, s34, 1
    s_cmp_eq_u32 s20, 0
    s_cbranch_scc1 p0_ui{sfx}d
    s_mul_i32 s4, s35, 40960
    s_mul_i32 s7, s36, 640
    s_add_u32 s4, s4, s7
    s_mul_i32 s7, s6, 448
    v_add_u32 v56, s7, v1""")
    for i in range(7):
        k.i(f"""v_add_u32 v52, {64*i}, v56
        v_mul_u32_u24 v53, {m}, v52
        v_lshrrev_b32 v53, {sh}, v53
        v_mul_u32_u24 v54, 40, v53
        v_sub_u32 v54, v52, v54
        v_lshlrev_b32 v54, 4, v54
        v_and_b32 v55, 2, v53
        v_lshlrev_b32 v55, 4, v55
        v_and_b32 v57, 16, v53
        v_lshl_or_b32 v55, v57, 2, v55
        v_mul_u32_u24 v53, 1280, v53
        v_xad_u32 v52, v54, v55, v53
        s_add_u32 m0, s5, {UL+1024*i}
        buffer_load_dwordx4 v52, s[8:11], s4 offen {cold} lds""")
    k.label(f"p0_ui{sfx}d")

def unit_proc(sfx, which="a"):
    UN = 0 if OPT.get("nounit") else 232
    D0 = 32
    if which == "o": UN = 40
    if which == "r": k.i(f"s_cmp_lt_u32 s45, 40\ns_cbranch_scc1 up_end{sfx}")
    k.i(f"""s_cmp_ge_u32 s45, {UN}
    s_cbranch_scc1 up_end{sfx}
    s_cmp_ge_u32 s45, 136
    s_cbranch_scc1 up_w2{sfx}
    s_and_b32 s6, s20, 1
    s_lshr_b32 s7, s20, 1
    s_lshl_b32 s37, s36, 1
    s_add_u32 s37, s37, s6
    s_cmp_ge_u32 s45, 40
    s_cbranch_scc1 up_w1{sfx}""")
    k.i(f"""v_and_b32 v52, 1, v30
    v_lshrrev_b32 v53, 1, v29
    v_lshl_add_u32 v52, v52, 1, v53
    v_add_u32 v52, s35, v52
    v_and_b32 v52, 3, v52
    v_lshlrev_b32 v52, 4, v52
    v_and_b32 v53, 1, v29
    v_lshl_add_u32 v52, v53, 3, v52
    s_lshl_b32 s24, s6, 6
    v_add_u32 v52, s24, v52
    v_and_b32 v53, 2, v28
    v_lshlrev_b32 v53, 5, v53
    v_xor_b32 v52, v52, v53
    v_lshl_add_u32 v52, v28, 7, v52
    s_mul_i32 s24, s7, 10240
    s_add_u32 s24, s24, {UL}
    v_add_u32 v52, s24, v52
    v_lshrrev_b32 v54, 5, v1
    v_lshlrev_b32 v54, 4, v54
    s_mul_i32 s24, s37, 205
    s_lshr_b32 s24, s24, 10
    s_mul_i32 s25, s24, 5
    s_sub_u32 s25, s37, s25
    s_lshl_b32 s24, s24, 2
    s_add_u32 s24, s24, s35
    s_mul_i32 s24, s24, 10
    s_mul_i32 s4, s7, 5
    s_add_u32 s24, s24, s4
    s_mul_i32 s24, s24, 5
    s_add_u32 s24, s24, s25
    s_lshl_b32 s24, s24, 10
    s_add_u32 s24, s24, {WO}""")
    for uu in range(5):
        for h2 in range(2):
            m_ = 2*uu + h2
            K = 0
            for hi in range(2): K |= ((40*(m_//5) + ROWOFF[hi][m_ % 5]) * 128) << (16*hi)
            r = D0 + 4*uu + 2*h2
            k.i(f"s_mov_b32 s25, {K:#x}\nv_bfe_u32 v55, s25, v54, 16\nv_add_u32 v55, v55, v52")
            k.lg(f"ds_read_b64_tr_b16 v[{r}:{r+1}], v55", f"uo{uu}")
    for uu in range(5):
        r = D0 + 4*uu
        k.wait(lg=f"uo{uu}")
        k.i(f"buffer_store_dwordx4 v[{r}:{r+3}], v3, s[16:19], s24 offen {HO}\ns_add_u32 s24, s24, 5120")
    k.i(f"s_branch up_end{sfx}")
    k.label(f"up_w1{sfx}")
    k.i(f"""v_lshrrev_b32 v52, 1, v30
    v_lshl_add_u32 v52, v52, 3, v28
    v_and_b32 v53, 1, v30
    v_lshlrev_b32 v53, 5, v53
    v_lshl_add_u32 v53, v29, 3, v53
    s_lshl_b32 s24, s6, 6
    v_add_u32 v53, s24, v53
    v_and_b32 v54, 2, v28
    v_lshlrev_b32 v54, 5, v54
    v_lshlrev_b32 v52, 7, v52
    v_xad_u32 v52, v53, v54, v52
    s_mul_i32 s24, s7, 10240
    s_add_u32 s24, s24, {UL}
    v_add_u32 v52, s24, v52
    v_mov_b32 v56, 0
    s_mov_b32 s4, 0x3f803f80
    s_mul_i32 s24, s37, 171
    s_lshr_b32 s24, s24, 9
    s_mul_i32 s25, s24, 3
    s_sub_u32 s25, s37, s25
    s_mul_i32 s24, s24, 40
    s_mul_i32 s5, s35, 10
    s_add_u32 s24, s24, s5
    s_mul_i32 s5, s7, 5
    s_add_u32 s24, s24, s5
    s_mul_i32 s24, s24, 3
    s_add_u32 s24, s24, s25
    s_lshl_b32 s24, s24, 10
    s_add_u32 s24, s24, {W1}""")
    for ks in range(5):
        r = D0 + 4*ks
        k.lg(f"ds_read_b64_tr_b16 v[{r}:{r+1}], v52 offset:{ks*2048}")
        k.lg(f"ds_read_b64_tr_b16 v[{r+2}:{r+3}], v52 offset:{ks*2048+512}", f"u1{ks}")
    for ks in range(5):
        r = D0 + 4*ks
        k.wait(lg=f"u1{ks}")
        k.i(f"buffer_store_dwordx4 v[{r}:{r+3}], v3, s[16:19], s24 offen {HO}\ns_add_u32 s24, s24, 3072")
        for j in range(4): k.i(f"v_dot2_f32_bf16 v56, v{r+j}, s4, v56")
    k.i(f"""s_nop 2
    v_mov_b32 v57, v56
    s_lshl_b32 s24, s35, 1
    s_add_u32 s24, s24, s7
    v_permlane32_swap_b32 v56, v57
    s_mul_i32 s24, s24, 6144
    s_lshl_b32 s25, s37, 7
    s_add_u32 s24, s24, s25
    s_add_u32 s24, s24, {CS}
    v_add_f32 v56, v56, v57
    v_lshlrev_b32 v57, 2, v1
    s_mov_b64 exec, 0xffffffff
    buffer_store_dword v56, v57, s[16:19], s24 offen {HO}
    s_mov_b64 exec, -1
    s_branch up_end{sfx}""")
    k.label(f"up_w2{sfx}")
    k.i(f"""v_and_b32 v52, 1, v30
    v_lshlrev_b32 v52, 4, v52
    v_lshrrev_b32 v53, 1, v30
    v_lshl_add_u32 v52, v53, 2, v52
    v_add_u32 v52, v52, v28
    v_and_b32 v54, 2, v52
    v_lshlrev_b32 v54, 4, v54
    v_and_b32 v55, 16, v52
    v_lshl_or_b32 v54, v55, 2, v54
    v_mul_u32_u24 v52, 640, v52
    v_add_u32 v52, {UL}, v52
    s_mul_i32 s24, s20, 160
    v_lshl_add_u32 v53, v29, 3, s24
    s_lshl_b32 s24, s36, 2
    s_add_u32 s24, s24, s20
    s_mul_i32 s24, s24, 48
    s_add_u32 s24, s24, s35
    s_mul_i32 s24, s24, 5120
    s_add_u32 s24, s24, {W2}""")
    for m_ in range(5):
        r = D0 + 4*m_
        k.i(f"v_add_u32 v55, {32*m_}, v53\nv_xad_u32 v55, v55, v54, v52")
        k.lg(f"ds_read_b64_tr_b16 v[{r}:{r+1}], v55")
        k.lg(f"ds_read_b64_tr_b16 v[{r+2}:{r+3}], v55 offset:{8*640}", f"u2{m_}")
    for m_ in range(5):
        r = D0 + 4*m_
        k.wait(lg=f"u2{m_}")
        k.i(f"buffer_store_dwordx4 v[{r}:{r+3}], v3, s[16:19], s24 offen {HO}\ns_add_u32 s24, s24, 1024")
    k.label(f"up_end{sfx}")

WOR = [160 + 4*f for f in range(21)] + [44 + 4*f for f in range(29)]
PQA = 0; XA = 244
W2R = WOR + list(range(0, 40, 4))
TBV = 244
WOB = None; XQ = None; SQL = None
def phase1():
    global WOB
    k.i(f"""v_add_u32 v4, 0x10000, v3
    v_add_u32 v5, 0x20000, v3
    s_lshl_b32 s28, s26, 2
    s_add_u32 s28, s28, s20
    s_mul_i32 s21, s28, 40960
    s_add_u32 s21, s21, {XN}
    s_lshl_b32 s23, s20, 12
    s_mul_i32 s22, s27, 163840
    s_add_u32 s22, s22, s23
    s_add_u32 s22, s22, {WQ}
    s_mov_b32 s40, {LOG2E:#x}
    s_mov_b32 s41, {LOG2E:#x}
    s_mov_b32 s38, 0x358637bd
    s_mov_b32 s39, 0x358637bd""")
    if OPT.get("mapb"):
        k.i(f"""s_and_b32 s{PWQ}, s2, 7
        s_lshl_b32 s{PWQ}, s{PWQ}, 1
        s_lshr_b32 s33, s2, 7
        s_add_u32 s{PWQ}, s{PWQ}, s33
        s_bfe_u32 s{PWQ+1}, s2, 0x40003
        s_and_b32 s13, s{PWQ+1}, 7
        s_lshr_b32 s12, s{PWQ+1}, 3
        s_lshl_b32 s31, s{PWQ}, 1
        s_add_u32 s12, s12, s31
        s_lshl_b32 s31, s{PWQ}, 2
        s_lshr_b32 s29, s{PWQ+1}, 2
        s_add_u32 s29, s29, s31
        s_and_b32 s30, s{PWQ+1}, 3""")
    else:
        k.i(f"""s_mov_b32 s{PWQ}, s26
        s_mov_b32 s{PWQ+1}, s27
    s_lshr_b32 s33, s27, 3
        s_lshl_b32 s13, s33, 2
        s_and_b32 s12, s27, 3
        s_add_u32 s13, s13, s12
        s_bfe_u32 s12, s27, 0x10002
        s_lshl_b32 s31, s26, 1
        s_add_u32 s12, s12, s31
        s_lshl_b32 s31, s26, 2
        s_bfe_u32 s29, s27, 0x20001
        s_add_u32 s29, s29, s31
        s_lshl_b32 s30, s33, 1
        s_and_b32 s33, s27, 1
        s_add_u32 s30, s30, s33""")
    k.i(f"""    s_lshl_b32 s31, s30, 2
    s_add_u32 s31, s31, s20
    s_mul_i32 s31, s31, 51200
    s_add_u32 s31, s31, {WO}
""")
    k.i(f"""v_and_b32 v24, 31, v1
    v_lshlrev_b32 v24, 4, v24
    v_lshrrev_b32 v25, 5, v1
    v_lshl_add_u32 v24, v25, 3, v24
    s_mul_i32 s3, s29, 40
    s_mul_i32 s33, s30, 10
    s_add_u32 s3, s3, s33
    s_lshr_b32 s33, s20, 1
    s_add_u32 s3, s3, s33
    s_lshl_b32 s3, s3, 10
    s_and_b32 s33, s20, 1
    s_lshl_b32 s33, s33, 9
    s_add_u32 s3, s3, s33
    s_add_u32 s3, s3, {XC}
""" if OPT.get("xc") else """v_and_b32 v24, 31, v1
    s_lshl_b32 s33, s29, 5
    v_add_u32 v24, s33, v24
    v_mul_u32_u24 v24, 1280, v24
    v_lshrrev_b32 v25, 5, v1
    v_lshl_add_u32 v24, v25, 3, v24
    s_mul_i32 s3, s30, 320
    s_lshl_b32 s34, s20, 4
    s_add_u32 s3, s3, s34
""")
    k.i(f"""v_lshlrev_b32 v26, 2, v0
    v_lshlrev_b32 v27, 1, v0
    s_mul_i32 s33, s{PWQ+1}, 192
    s_add_u32 s{PB1}, s{PB1}, s33
    s_addc_u32 s{PB1+1}, s{PB1+1}, 0
    s_mul_i32 s54, s{PWQ+1}, 384
    s_add_u32 s54, s54, {CS}""")
    if O("pw1", 0):
        sig_all(F1, 120, val='0')
        k.i(f"s_mov_b32 s6, s26\ns_mov_b32 s26, s{PWQ}")
        sig_row(F2, 120, "s_and_b32 s42, s29, 3", "s_mov_b32 s43, s30", val='0')
        sig_row(F3, 120, f"s_lshr_b32 s42, s{PWQ+1}, 2", f"s_and_b32 s43, s{PWQ+1}, 3", val='0')
        k.i("s_mov_b32 s26, s6")
    XM = OPT.get("xm", "win")
    def xloads(pol):
        for c in range(5):
            k.i(f"global_load_dwordx2 a[{XA+2*c}:{XA+2*c+1}], v24, s[{PX}:{PX+1}] offset:{64*c} {pol}")
    if OPT.get("xc"): XM = "none"
    else: k.i("v_add_u32 v24, s3, v24")
    if XM == "early": xloads(OPT.get('xpol', 'nt'))
    elif XM == "mix":
        k.i("s_cmp_eq_u32 s20, 0\ns_cbranch_scc1 p1_nox")
        xloads(OPT.get('xpol', ''))
        k.label("p1_nox")
    k.i(f"v_min_u32 v27, 190, v27")
    if OPT.get("rot"):
        k.i(f"""s_and_b32 s33, s27, 7
        s_and_b32 s34, s26, 3
        s_mul_i32 s34, s34, 3
        s_add_u32 s33, s33, s34
        s_mul_i32 s33, s33, {O('rot', 1)}
        s_mul_i32 s34, s33, 205
        s_lshr_b32 s34, s34, 11
        s_mul_i32 s34, s34, 10
        s_sub_u32 s33, s33, s34
        s_add_u32 s52, s21, 40960
        s_add_u32 s53, s22, 163840
        s_lshl_b32 s34, s33, 12
        s_add_u32 s21, s21, s34
        s_lshl_b32 s34, s33, 14
        s_add_u32 s22, s22, s34""")
    poll_all(F0, 8, O("slp0", 16))
    if OPT.get("upre"): k.i("s_waitcnt vmcnt(0)")
    k.i("s_barrier")
    stamp(4)
    if OPT.get("upre") == "1":
        sv0 = snap(); unit_proc(""); rest(sv0)
    ACC = 64; WB = 128; T = 8; PK = 176; FB0 = 20; NS = 12; AH = 8
    PRE = O("pre1", 3)
    Q = BG()
    for s in range(10):
        for j in range(4):
            Q.add(f"buffer_load_dwordx4 v3, s[16:19], s22 offen offset:{1024*j} {HO} lds", f"W{s}",
                  pre=(f"s_add_u32 m0, s23, {(s % 8)*16384}" if (j == 0 or OPT.get("ulate")) else ""), post=(("s_add_u32 s22, s22, 16384" + ("\ns_cmp_ge_u32 s22, s53\ns_cselect_b32 s34, 163840, 0\ns_sub_u32 s22, s22, s34" if OPT.get("rot") else "")) if j == 3 else ""))
        for j in range(4):
            Q.add(f"buffer_load_dwordx4 a[{16*s+4*j}:{16*s+4*j+3}], v3, s[16:19], s21 offen offset:{1024*j} {HO}", f"X{4*s+j}",
                  post=(("s_add_u32 s21, s21, 4096" + ("\ns_cmp_ge_u32 s21, s52\ns_cselect_b32 s34, 40960, 0\ns_sub_u32 s21, s21, s34" if OPT.get("rot") else "")) if j == 3 else ""))
    if O("wlead", 0):
        Wq = [Q.q[8*s:8*s+4] for s in range(10)]; Xq = [Q.q[8*s+4:8*s+8] for s in range(10)]
        L_ = O("wlead", 0)
        Q.q = []
        for s in range(10 + L_):
            if s == 0:
                Q.q += Wq[0] + Xq[0]; continue
            if s < 10: Q.q += Wq[s]
            if s - L_ >= 1: Q.q += Xq[s - L_]
    if OPT.get("upre") == "2":
        Q.go(8)
        sv0 = snap(); unit_proc(""); rest(sv0)
        Q.go(8*PRE - 8)
    else: Q.go(8*PRE)
    k.wait(vm="W0"); k.i("s_barrier")
    if not OPT.get("ulate") and not OPT.get("upre"):
        sv0 = snap(); unit_proc("", "o" if OPT.get("usplit") else "a"); rest(sv0)
    if OPT.get("xc"):
        k.i("s_cmp_ge_u32 s45, 128\ns_cbranch_scc1 p1_noxc")
        for i in range(5):
            k.i(f"buffer_store_dwordx4 v[{208+4*i}:{211+4*i}], v228, s[16:19], s55 offen {HO}\ns_add_u32 s55, s55, 8192")
        k.label("p1_noxc")
    stamp(3)
    k.i("s_cmp_ge_u32 s27, 11\ns_cbranch_scc1 p1_q")
    sv = snap(); Qs = list(Q.q)
    def mkbg():
        B = BG()
        for i in range(50):
            B.add(f"buffer_load_dwordx4 a[{WOR[i]}:{WOR[i]+3}], v3, s[16:19], s31 offen offset:{1024*(i%4)} {HO}", f"wo{i}", post=("s_add_u32 s31, s31, 4096" if i % 4 == 3 else ""))
        return B
    def small():
        S = BG()
        global XQ
        X_ = XQ = BG()
        for j in range(8):
            S.add(f"buffer_load_dword v{TBV+j}, v{2 if OPT.get('usplit') else 26}, s[16:19], s54 offen {HO}", post=f"s_add_u32 s54, s54, 6144")
        for c in range(5):
            if OPT.get("xc"): S.add(f"buffer_load_dwordx2 a[{XA+2*c}:{XA+2*c+1}], v24, s[16:19], s3 offen offset:{2048*(c%2)} {HO}", post=("s_add_u32 s3, s3, 4096" if c % 2 else ""))
        return S
    NPRE = O("wo_pre", 20)
    def loop(act_first, order_tail, fill_after, B, sfx):
        items = [(ks, j) for ks in range(40 - len(order_tail)//4) for j in range(4)] + order_tail
        first = {}
        for n_, (ks_, j_) in enumerate(items): first.setdefault(ks_//4, n_)
        NCHK = 2*(80 - 8*PRE - O("ramp1", 0)) + O("chk", 0)
        if OPT.get("ulate"): assert O("un_sig", 6) >= O("un_proc", 4) + PRE and 16*(O("un_proc", 4) - PRE) >= O("un_iss", 0)
        def rd(n):
            ks, j = items[n]
            BS = [int(x) for x in str(OPT.get("bars", "123456789"))]
            if ks >= 4 and first[ks//4] == n and ks//4 in BS:
                nxt = min([b for b in BS if b > ks//4] + [10])
                while f"W{nxt-1}" not in k.vm_tags or any(t == f"W{nxt-1}" for _, _, _, t in Q.q): Q.go()
                k.wait(vm=f"W{nxt-1}"); k.i("s_barrier")
                if OPT.get("ulate") and ks//4 == O("un_proc", 4):
                    sv1 = snap(); unit_proc(sfx); rest(sv1)
                if ks//4 == (O("un_sig", 6) if OPT.get("ulate") else min(b for b in BS if b >= PRE + 1)):
                    signal(1, f"v_mov_b32 v7, 0\ns_lshl_b32 s42, s45, 2\ns_add_u32 s42, s42, {F0B}", 6)
            o = ((ks % 32)*4 + j) * 1024
            r = WB + 4*(n % NS)
            k.lg(f"ds_read_b128 v[{r}:{r+3}], v{3 + o//65536} offset:{o % 65536}", f"w{n}")
        for n in range(AH): rd(n)
        fill = []
        for n, (ks, j) in enumerate(items):
            if OPT.get('ulate') and n == O('un_iss', 0): unit_issue(sfx)
            G1 = O("g1", 2)
            if n % G1 == 0:
                k.wait(vm=f"X{max(items[m][0] for m in range(n, n + G1))}", lg=f"w{n+G1-1}")
            if n % 2 == 0:
                if n % 16 == 0: stamp(8 + n//16, "p1")
                if n == 16: cst(1)
                if n == 112: cst(3)
                if n == 144: cst(5)
            w = vr(WB + 4*(n % NS), 4); x = ar(4*ks, 4); d = vr(ACC + 16*j, 16)
            c = "0" if ks == 0 else d
            k.i(f"v_mfma_f32_32x32x16_bf16 {d}, {x}, {w}, {c}" if act_first else f"v_mfma_f32_32x32x16_bf16 {d}, {w}, {x}, {c}")
            if n % 2 == 0:
                if Q.left(): Q.go()
                if n % 4 == 0 and n < 4*O("ramp1", 0): Q.go()

            else:
                for m_ in (n - 1 + AH, n + AH):
                    if m_ < 160: rd(m_)
            if OPT.get("usplit") and n == O("usplit", 130):
                au = k.auto; k.auto = None
                sv1 = snap(); unit_proc(sfx + "r", "r"); rest(sv1); k.auto = au
            if n == NCHK - 16:
                k.i(f"s_mov_b32 s42, {F0B}")
                k.vm(f"buffer_load_dwordx4 v[{FB0}:{FB0+3}], v3, s[16:19], s42 offen sc1", "f0b")
            if n == NCHK:
                k.wait(vm="f0b")
                check4(FB0)
                k.i(f"s_cbranch_vccz p1_ok{sfx}\ns_mov_b32 s42, {F0B}")
                poll(3, 42, FB0, wide=True, w0=False)
                k.label(f"p1_ok{sfx}")
                SQ[0] = small()
                lim[0] = min(21, NPRE); k.th = O("th1", 96)
                k.auto = lambda: B.go() if 50 - B.left() < lim[0] else None
            if n in fill_after: fill += fill_after[n]
            for _ in range(6):
                if fill: k.i(fill.pop(0))
        lim[0] = NPRE; k.th = O("th1e", 90)
        for l in fill: k.i(l)
    lim = [0]; SQ = [None]
    def phi_lines(t):
        with capture() as c:
            for b in range(0, 16, 4): phi4(ACC + 16*t + b, PK + 8*t + b//2, T)
        return c.lines
    TL = O("tl1", 4)
    tail = [(ks, j) for ks in range(40-TL, 40) for j in (0, 1)] + [(ks, j) for ks in range(40-TL, 40) for j in (2, 3)]
    B = mkbg()
    loop(True, tail, {161 - 2*TL: phi_lines(0) + phi_lines(1)}, B, "kv")
    stamp(5)
    k.i("s_lshl_b32 s33, s20, 13\ns_add_u32 s33, s33, 32768\nv_add_u32 v6, s33, v3")
    for t in (0, 1):
        for f in range(2):
            k.lg(f"ds_write_b128 v6, v[{PK+8*t+4*f}:{PK+8*t+4*f+3}] offset:{2048*t+1024*f}")
    for t in (2, 3):
        for p in range(8):
            k.i(f"v_cvt_pk_bf16_f32 v{PK+8*t+p}, v{ACC+16*t+2*p}, v{ACC+16*t+2*p+1}")
        if t == 3:
            k.i("s_mov_b32 s34, 0xf0000000\ns_mov_b32 s35, 0xf0000000\nv_mov_b32 v7, 0x3f803f80")
            for p in range(8): k.i(f"v_cndmask_b32 v{PK+24+p}, v{PK+24+p}, v7, s[34:35]")
        for f in range(2):
            k.lg(f"ds_write_b128 v6, v[{PK+8*t+4*f}:{PK+8*t+4*f+3}] offset:{2048*t+1024*f}")
    k.i("""s_lshr_b32 s33, s20, 1
    s_and_b32 s34, s20, 1
    s_lshl_b32 s35, s33, 11
    s_add_u32 s35, s35, 32768
    v_add_u32 v8, s35, v3
    s_lshl_b32 s35, s34, 11
    s_add_u32 s35, s35, 36864
    v_add_u32 v9, s35, v3""")
    k.wait(lg="all"); k.i("s_barrier")
    stamp(8, "p1e")
    FA = 64; FB = 96; DD = 128
    for w in range(4):
        for f in range(2):
            n = 2*w + f
            k.lg(f"ds_read_b128 v[{FA+4*n}:{FA+4*n+3}], v8 offset:{8192*w+1024*f}")
            k.lg(f"ds_read_b128 v[{FB+4*n}:{FB+4*n+3}], v9 offset:{8192*w+1024*f}", f"f{n}")
    with capture() as c:
        k.i("""v_and_b32 v10, 31, v1
        s_lshl_b32 s35, s34, 5
        v_add_u32 v10, s35, v10
        v_mul_u32_u24 v11, 205, v10
        v_lshrrev_b32 v11, 12, v11
        v_mul_u32_u24 v12, 20, v11
        v_sub_u32 v12, v10, v12
        v_cmp_eq_u32 s[36:37], 60, v10
        v_mov_b32 v13, 20
        v_lshrrev_b32 v14, 5, v1
        v_cndmask_b32 v12, v12, v13, s[36:37]
        v_mul_u32_u24 v12, 80, v12
        v_lshlrev_b32 v14, 2, v14
        s_lshl_b32 s35, s33, 5
        v_add_u32 v14, s35, v14
        v_lshlrev_b32 v22, 2, v0
        v_add_u32 v23, 65536, v22
        v_add_u32 v12, 65536, v12""")
        MS = [4, 6, 24, 34]
        for j in range(4):
            ms = MS[j]
            k.i(f"""v_add_u32 v15, {8*j}, v14
            v_mul_u32_u24 v20, 205, v15
            v_lshrrev_b32 v20, 12, v20
            v_mul_u32_u24 v21, 20, v20
            v_sub_u32 v21, v15, v21
            v_cmp_eq_u32 s[{ms}:{ms+1}], v20, v11
            v_cmp_gt_u32 vcc, 3, v20
            v_mul_u32_u24 v20, 1680, v20
            v_lshl_add_u32 v21, v21, 2, v12
            v_add_u32 v{16+j}, v20, v21
            s_or_b64 s[{ms}:{ms+1}], s[{ms}:{ms+1}], s[36:37]
            s_and_b64 s[{ms}:{ms+1}], s[{ms}:{ms+1}], vcc""")
    fill = c.lines
    for _ in range(16): k.i(fill.pop(0))
    def kvm(n):
        def f():
            k.wait(lg=f"f{n}")
            k.i(f"v_mfma_f32_32x32x16_bf16 v[{DD}:{DD+15}], v[{FA+4*n}:{FA+4*n+3}], v[{FB+4*n}:{FB+4*n+3}], {'0' if n == 0 else vr(DD,16)}")
        return f
    for l in merge([kvm(n) for n in range(8)], fill, 6): k.i(l)
    for j in range(4):
        k.i(f"s_mov_b64 exec, s[{MS[j]}:{MS[j]+1}]")
        k.lg(f"ds_write_b128 v{16+j}, v[{DD+4*j}:{DD+4*j+3}]")
    k.i(f"""s_mov_b64 exec, -1
    s_mul_i32 s33, s27, 5040
    s_add_u32 s33, s33, {KVA}
    s_add_u32 s4, s14, s33
    s_addc_u32 s5, s15, 0
    s_cmp_eq_u32 s27, 10
    s_movk_i32 s6, 5040
    s_cselect_b32 s6, 3360, s6
    s_mov_b32 s7, 0x20000""")
    k.wait(lg="all"); k.i("s_barrier")
    stamp(9, "p1e")
    for i in range(5):
        k.lg(f"ds_read_b32 v{32+i}, v23 offset:{1024*i}", f"d{i}")
    for i in range(5):
        k.wait(lg=f"d{i}")
        if i == 4: k.i("v_add_u32 v22, 4096, v22")
        k.vm(f"buffer_atomic_add_f32 v{32+i}, v22, s[4:7], 0 offen offset:{1024*(i%4)}", "out1")
    stamp(10, "p1e")
    def bg_finish(B):
        k.auto = None
        print("WO left for the drain:", NPRE - (50 - B.left()), file=sys.stderr)
        if O("pqe", 1):
            k.i(f"v_min_u32 v{FB0+1}, 4, v1\nv_lshlrev_b32 v{FB0+1}, 2, v{FB0+1}\ns_and_b32 s24, s2, 7\ns_lshl_b32 s24, s24, 12\ns_lshl_b32 s25, s26, 8\ns_add_u32 s24, s24, s25\ns_add_u32 s24, s24, {F1 + 128 + 12}")
            k.vm(f"buffer_load_dword v{FB0}, v{FB0+1}, s[16:19], s24 offen sc1", "out1")
        B.go(NPRE - (50 - B.left()))
    bg_finish(B)
    k.wait(vm="out1")
    k.i("s_branch p1_fin")
    k.label("p1_q")
    rest(sv); Q.q = list(Qs)
    k.i(f"""s_mul_i32 s33, s28, 40960
    s_sub_u32 s34, s27, 11
    s_lshl_b32 s34, s34, 13
    s_add_u32 s33, s33, s34
    s_add_u32 s33, s33, {PQ}""")
    tail = [(ks, j) for j in range(4) for ks in range(36, 40)]
    B = mkbg()
    loop(False, tail, {149: phi_lines(0), 153: phi_lines(1)}, B, "q")
    stamp(5)
    for t in range(4):
        if t >= 2:
            for b in range(0, 16, 4):
                phi4(ACC + 16*t + b, PK + 8*t + b//2, T)
        for f in range(2):
            k.vm(f"buffer_store_dwordx4 v[{PK+8*t+4*f}:{PK+8*t+4*f+3}], v3, s[16:19], s33 offen offset:{(2048*t+1024*f) % 4096} {HO}", "out1")
        if t == 1: k.i("s_add_u32 s33, s33, 4096")
    stamp(8, "p1e"); stamp(9, "p1e"); stamp(10, "p1e")
    bg_finish(B)
    k.wait(vm="out1")
    k.label("p1_fin")
    stamp(6)
    k.i("s_barrier")
    sig_all(F1, 6)
    k.i(f"""s_cmp_lg_u32 s45, 0
    s_cbranch_scc1 p1_noep""")
    signal(1, f"v_mov_b32 v7, 0\ns_mov_b32 s42, {CB}", 6)
    k.label("p1_noep")
    WOB = B
    k.i("v_mov_b32 v5, v24\nv_mov_b32 v2, v26")
    k.i(f"s_mov_b32 s26, s{PWQ}\ns_mov_b32 s27, s{PWQ+1}")
    if O("pqe", 1):
        k.i(f"v_cmp_ne_u32 vcc, s44, v{FB0}\ns_cbranch_vccz p1_qok")
        poll(FB0+1, 24, FB0, w0=False)
        k.label("p1_qok")
        k.i(f"""s_mul_i32 s22, s29, 40960
        s_mul_i32 s33, s20, 10240
        s_add_u32 s22, s22, s33
        s_add_u32 s22, s22, {PQ}""")
        for kl in range(10):
            k.vm(f"buffer_load_dwordx4 a[{PQA+4*kl}:{PQA+4*kl+3}], v3, s[16:19], s22 offen offset:{1024*(kl%4)} {HO}", f"pq{kl}")
            if kl % 4 == 3: k.i("s_add_u32 s22, s22, 4096")
    k.vm(f"global_load_ushort v{TBV+8}, v27, s[{PB1}:{PB1+1}]")
    if not OPT.get("usplit"): SQ[0].go(99)
    global SQL
    SQL = SQ[0]
    if XM == "win": xloads("")
    if XM == "mix":
        k.i("s_cmp_lg_u32 s20, 0\ns_cbranch_scc1 p1_nox2")
        xloads("")
        k.label("p1_nox2")
    WOB.go(O("wo_w", 5))
    NW1 = O("w1_w", 16)
    assert not (OPT.get("usplit") and NW1)
    k.i(f"""s_mul_i32 s25, s27, 122880
    s_add_u32 s25, s25, {W1}
    s_cmp_eq_u32 s20, 0
    s_cbranch_scc1 p1_now1
    s_sub_u32 s23, s20, 1
    s_mul_i32 s23, s23, {NW1*1024}
    s_add_u32 s24, s25, s23""")
    for i in range(NW1):
        if i % 4 == 0: k.i(f"s_add_u32 m0, s23, {1024*i}")
        if not OPT.get("nobg"): k.i(f"buffer_load_dwordx4 v3, s[16:19], s24 offen offset:{1024*(i%4)} {HO} lds")
        if i % 4 == 3: k.i("s_add_u32 s24, s24, 4096")
    k.i("s_waitcnt vmcnt(0)" if OPT.get("nobg") else f"s_waitcnt vmcnt({NW1})")
    k.label("p1_now1")
    stamp(7)

W2B = None
def phase2():
    global W2B
    P2L = 102400
    k.i(f"""s_mul_i32 s21, s20, 13440
    s_add_u32 s21, s21, {KVA}
    s_mul_i32 s23, s20, 15360
    s_add_u32 s23, s23, {P2L+64}
    s_mul_i32 s22, s29, 40960
    s_mul_i32 s33, s20, 10240
    s_add_u32 s22, s22, s33
    s_add_u32 s22, s22, {PQ}
    v_bfe_u32 v8, v1, 2, 3
    v_lshlrev_b32 v8, 2, v8
    v_and_b32 v9, 3, v1
    s_mov_b32 s33, 0x55524130
    s_mov_b32 s34, 0x55453120
    v_bfe_u32 v10, s33, v8, 4
    v_bfe_u32 v11, s34, v8, 4
    v_lshl_add_u32 v10, v10, 2, v9
    v_lshl_add_u32 v11, v11, 2, v9
    v_min_u32 v10, 20, v10
    v_min_u32 v11, 20, v11
    v_lshrrev_b32 v12, 5, v1
    v_lshlrev_b32 v12, 4, v12
    s_sub_u32 s33, s23, 16
    v_add_u32 v12, s33, v12
    v_mul_u32_u24 v10, 80, v10
    v_mul_u32_u24 v11, 80, v11
    v_add_u32 v10, v10, v12
    v_add_u32 v11, v11, v12
    s_lshl_b32 s28, s26, 2
    s_add_u32 s28, s28, s20
    s_mov_b32 s36, 0
    s_mov_b32 s37, -1
    s_lshl_b32 s35, s13, 2
    s_add_u32 s35, s35, s20
    s_mul_i32 s35, s35, 61440
    s_add_u32 s35, s35, {W2}""")
    poll_all(F1, 14, O('slp1', 0))
    k.i("s_barrier")
    k.vm_done = k.vm_n
    stamp(8)
    PB = BG()
    for kl in range(10):
        PB.add(f"buffer_load_dwordx4 a[{PQA+4*kl}:{PQA+4*kl+3}], v3, s[16:19], s22 offen offset:{1024*(kl%4)} {HO}", f"pq{kl}", post=("s_add_u32 s22, s22, 4096" if kl % 4 == 3 else ""))
    for i in range(14):
        if i % 4 == 0: k.i(f"s_add_u32 m0, s23, {1024*i}")
        k.vm(f"buffer_load_dwordx4 v3, s[16:19], s21 offen offset:{1024*(i%4)} {HO} lds", f"kv{i}")
        if i % 4 == 3: k.i("s_add_u32 s21, s21, 4096")
        if i == O("pq_at", 6): PB.go(O("pq_n", 2))
    PB.go(O("pq_m", 0))
    if OPT.get("xm") == "late":
        for c in range(5):
            XQ.add(f"global_load_dwordx2 a[{XA+2*c}:{XA+2*c+1}], v5, s[{PX}:{PX+1}] offset:{64*c} {OPT.get('xpol', '')}", "xres")
    NW1 = O("w1_w", 16); N1 = (96 - 3*NW1) // 4
    assert 3*NW1 + 4*N1 == 96
    k.i(f"s_mul_i32 s24, s20, {N1*1024}\ns_add_u32 s24, s24, {3*NW1*1024}\ns_add_u32 s25, s25, s24")
    B1 = BG()
    for i in range(N1):
        B1.add(f"buffer_load_dwordx4 v3, s[16:19], s25 offen offset:{1024*(i%4)} {HO} lds", "w1",
               pre=(f"s_add_u32 m0, s24, {1024*i}" if i % 4 == 0 else ""), post=("s_add_u32 s25, s25, 4096" if i % 4 == 3 else ""))
    W2B = BG()
    for i in range(60):
        W2B.add(f"buffer_load_dwordx4 a[{W2R[i]}:{W2R[i]+3}], v3, s[16:19], s35 offen offset:{1024*(i%4)} {HO}", "w2", post=("s_add_u32 s35, s35, 4096" if i % 4 == 3 else ""))
    AF = 20; TT = 84; DT = 180; OG = 84; ACC = [20, 36, 124, 140, 156]
    def tabsum():
        for j in range(1, 8): k.i(f"v_add_f32 v{TBV}, v{TBV}, v{TBV+j}")
        k.i(f"v_lshlrev_b32 v{TBV+1}, 16, v{TBV+8}")
    if not OPT.get("usplit"): tabsum()
    jobs = {}
    n = 0
    for hl in range(8):
        jobs[hl] = []
        for u in range(2):
            for h2 in range(2):
                dg0 = -(hl % 4) + 4*u + 2*h2
                v0_ = 0 <= dg0 <= 4; v1_ = 0 <= dg0+1 <= 4
                d = AF + (2*hl+u)*4 + 2*h2
                if v0_ or v1_:
                    jobs[hl].append((d, n, v0_, v1_, hl*1680 + 16*(dg0+1))); n += 1
                else:
                    jobs[hl].append((d, None, 0, 0, 0))
                    k.i(f"v_mov_b32 v{d}, 0\nv_mov_b32 v{d+1}, 0")
    def kvreads(lo, hi):
        for hl in range(lo, hi):
            for d, n, _, _, o in jobs[hl]:
                if n is not None: k.lg(f"ds_read_b128 v[{TT+4*n}:{TT+4*n+3}], v{10 + (hl & 1)} offset:{o}", f"a{n}")
    def build(hl):
        for d, n, v0_, v1_, _ in jobs[hl]:
            if n is None: continue
            k.wait(lg=f"a{n}")
            t = TT + 4*n
            k.i(f"v_cvt_pk_bf16_f32 v{d}, v{t}, v{t+1}\nv_cvt_pk_bf16_f32 v{d+1}, v{t+2}, v{t+3}")
            if not v1_: k.i(f"v_cndmask_b32 v{d}, v{d}, 0, s[36:37]\nv_cndmask_b32 v{d+1}, v{d+1}, 0, s[36:37]")
            if not v0_: k.i(f"v_cndmask_b32 v{d}, 0, v{d}, s[36:37]\nv_cndmask_b32 v{d+1}, 0, v{d+1}, s[36:37]")
    def omm(hl):
        t0 = hl + hl//4
        d = vr(DT + 16*(hl % 4), 16)
        def f(u):
            def g():
                while 10 - PB.left() <= min(9, t0 + u + O("pq_lead", 2)): PB.go()
                k.wait(vm=f"pq{t0+u}")
                k.i(f"v_mfma_f32_32x32x16_bf16 {d}, {vr(AF+(2*hl+u)*4, 4)}, {ar(PQA+4*(t0+u), 4)}, {'0' if u == 0 else d}")
            return g
        return [f(0), f(1)]
    def opost(hl):
        p = hl // 2; odd = hl & 1
        D = DT + 16*(hl % 4); rc = 16 + 2*odd
        a, b = (D+8, D+12) if odd else (D+12, D+8)
        with capture() as c:
            k.i(f"v_cndmask_b32 v{rc}, v{a}, v{b}, s[36:37]\nv_add_f32 v{rc}, s38, v{rc}\nv_rcp_f32 v{rc}, v{rc}\ns_nop 0")
            for h in range(6):
                k.i(f"v_pk_mul_f32 v[{D+2*h}:{D+2*h+1}], v[{D+2*h}:{D+2*h+1}], v[{rc}:{rc+1}] op_sel_hi:[1,0]")
            for j in range(2):
                g = OG + 2*(5*p + 2*odd + j)
                k.i(f"v_cvt_pk_bf16_f32 v{g}, v{D+4*j}, v{D+4*j+1}\nv_cvt_pk_bf16_f32 v{g+1}, v{D+4*j+2}, v{D+4*j+3}")
            g = OG + 2*(5*p + 4)
            if not odd:
                k.i(f"v_cvt_pk_bf16_f32 v{g}, v{D+8}, v{D+9}\nv_cvt_pk_bf16_f32 v{g+1}, v{D+10}, v{D+11}")
            else:
                k.i(f"v_cvt_pk_bf16_f32 v{D}, v{D+8}, v{D+9}\nv_cvt_pk_bf16_f32 v{D+1}, v{D+10}, v{D+11}")
                k.i(f"v_cndmask_b32 v{g}, v{g}, v{D}, s[36:37]\nv_cndmask_b32 v{g+1}, v{g+1}, v{D+1}, s[36:37]")
        return c.lines
    def wo(u, c, bg=True):
        def f():
            d = vr(ACC[c], 16)
            while f"wo{5*u+c}" not in k.vm_tags or (WOB.left() and 50 - WOB.left() <= 5*u+c): WOB.go()
            k.wait(vm=f"wo{5*u+c}")
            k.i(f"v_mfma_f32_32x32x16_bf16 {d}, {ar(WOR[5*u+c], 4)}, {vr(OG+4*u, 4)}, {'0' if u == 0 else d}")
            w2lim[0] = min(5*u, 35)
        return f
    w2lim = [0]
    def au2():
        if PB.left(): PB.go()
        elif WOB.left(): WOB.go()
        elif SQL.left(): SQL.go(4)
        elif XQ.left(): XQ.go(5)
        elif B1.left(): B1.go()
        elif 60 - W2B.left() < w2lim[0]: W2B.go()
    k.auto = au2; k.th = O("th2", 90)
    if O("kv4", 0):
        k.wait(vm="kv3"); stamp(13, "p2"); kvreads(0, 2)
        k.wait(vm="kv6"); kvreads(2, 4)
        for hl in range(4):
            build(hl)
            for f in omm(hl): f()
            if hl == 0: k.wait(vm="kv9"); kvreads(4, 6)
            if hl == 1: k.wait(vm="kv13"); kvreads(6, 8)
        for hl in range(4, 8): build(hl)
    else:
        k.wait(vm="kv6")
        stamp(13, "p2")
        kvreads(0, 4)
        for hl in range(4):
            build(hl)
            for f in omm(hl): f()
            if hl == 1:
                k.wait(vm="kv13"); kvreads(4, 8)
        for hl in range(4, 8):
            build(hl)
    stamp(9)
    for l in opost(0): k.i(l)
    for l in merge(omm(4), opost(1), 9): k.i(l)
    stamp(10)
    for l in merge(omm(5) + [wo(u, c) for u in (0, 1) for c in range(5)], opost(2) + opost(3), 4): k.i(l)
    for l in merge(omm(6) + omm(7) + [wo(u, c) for u in (2, 3, 4) for c in range(5)], opost(4) + opost(5), 3): k.i(l)
    with capture() as c:
        k.i(f"s_sub_u32 s33, s23, 64\nv_add_u32 v13, s33, v3")
        for j in range(1, 4):
            k.i(f"s_sub_u32 s33, s20, {j}\ns_and_b32 s33, s33, 3\ns_mul_i32 s33, s33, 15360\ns_add_u32 s33, s33, {P2L + (j-1)*5120}\nv_add_u32 v{13+j}, s33, v3")
    for l in merge([wo(u, c) for u in (5, 6) for c in range(5)], opost(6) + opost(7), 4): k.i(l)
    XF = 180
    with capture() as c2:
        k.i("s_mov_b32 s33, 0xffff0000")
        for j in range(10):
            k.i(f"v_accvgpr_read_b32 v{XF+2*j+1}, a{XA+j}")
        for j in range(10):
            k.i(f"v_lshlrev_b32 v{XF+2*j}, 16, v{XF+2*j+1}\nv_and_b32 v{XF+2*j+1}, s33, v{XF+2*j+1}")
    XL = OPT.get("xm") == "late"
    fill = c.lines + ([] if XL else c2.lines)
    XQ.go(99)
    def red_w(c):
        for j in range(1, 4):
            r = ACC[c] + 4*j
            k.lg(f"ds_write_b128 v13, v[{r}:{r+3}] offset:{(j-1)*5120 + 1024*c}")
    for c in range(5):
        fill = merge([wo(u, c) for u in (7, 8, 9)], fill, 4)
        if c >= 2: red_w(c - 2)
    for l in fill: k.i(l)
    w2lim[0] = 60
    stamp(11)
    red_w(3); red_w(4)
    def own():
        for c in range(5):
            for h in range(2):
                d = XF + 4*c + 2*h; a = ACC[c] + 2*h
                k.i(f"v_pk_add_f32 v[{d}:{d+1}], v[{d}:{d+1}], v[{a}:{a+1}]")
    if not XL: own()
    k.wait(lg="all"); k.i("s_barrier")
    stamp(14, "p2")
    RR = 52 if XL else 84
    for j in range(1, 4):
        for c in range(5):
            r = RR + 20*(j-1) + 4*c
            k.lg(f"ds_read_b128 v[{r}:{r+3}], v{13+j} offset:{1024*c}", f"r{j}_{c}")
    k.i(f"""s_mul_i32 s34, s29, 40
    s_mul_i32 s21, s30, 10
    s_add_u32 s34, s34, s21
    s_lshr_b32 s21, s20, 1
    s_add_u32 s34, s34, s21
    s_lshl_b32 s34, s34, 10
    s_and_b32 s21, s20, 1
    s_lshl_b32 s21, s21, 9
    s_add_u32 s34, s34, s21
    s_add_u32 s34, s34, {HH}
    v_and_b32 v8, 31, v1
    v_lshrrev_b32 v9, 5, v1
    v_lshlrev_b32 v12, 3, v8
    v_lshlrev_b32 v8, 4, v8
    v_lshl_add_u32 v8, v9, 3, v8""")
    HP = 24
    if XL:
        k.wait(vm="xres")
        for l in c2.lines: k.i(l)
        own()
    for j in range(1, 4):
        for c in range(5):
            k.wait(lg=f"r{j}_{c}")
            for h in range(2):
                d = XF + 4*c + 2*h; a = RR + 20*(j-1) + 4*c + 2*h
                k.i(f"v_pk_add_f32 v[{d}:{d+1}], v[{d}:{d+1}], v[{a}:{a+1}]")
            if j == 3:
                k.i(f"v_cvt_pk_bf16_f32 v{HP+2*c}, v{XF+4*c}, v{XF+4*c+1}\nv_cvt_pk_bf16_f32 v{HP+2*c+1}, v{XF+4*c+2}, v{XF+4*c+3}")
                k.vm(f"buffer_store_dwordx2 v[{HP+2*c}:{HP+2*c+1}], v8, s[16:19], s34 offen offset:{2048*(c%2)} {HO}")
                if c % 2 == 1: k.i("s_add_u32 s34, s34, 4096")
    for j in range(10):
        k.i(f"v_lshlrev_b32 v{XF+2*j}, 16, v{HP+j}\nv_and_b32 v{XF+2*j+1}, s33, v{HP+j}")
    k.i(f"v_pk_add_f32 v[16:17], v[{XF}:{XF+1}], v[{XF+2}:{XF+3}]")
    k.i(f"v_pk_mul_f32 v[18:19], v[{XF}:{XF+1}], v[{XF}:{XF+1}]")
    k.i(f"v_pk_fma_f32 v[18:19], v[{XF+2}:{XF+3}], v[{XF+2}:{XF+3}], v[18:19]")
    for j in range(2, 10):
        k.i(f"v_pk_add_f32 v[16:17], v[16:17], v[{XF+2*j}:{XF+2*j+1}]")
        k.i(f"v_pk_fma_f32 v[18:19], v[{XF+2*j}:{XF+2*j+1}], v[{XF+2*j}:{XF+2*j+1}], v[18:19]")
    k.i(f"""v_add_f32 v16, v16, v17
    v_add_f32 v17, v18, v19
    v_mov_b32 v18, v16
    v_mov_b32 v19, v17
    s_lshl_b32 s34, s29, 4
    s_lshl_b32 s21, s30, 2
    s_add_u32 s34, s34, s21
    s_add_u32 s34, s34, s20
    v_permlane32_swap_b32 v16, v18
    v_permlane32_swap_b32 v17, v19
    s_lshl_b32 s34, s34, 8
    s_add_u32 s34, s34, {ST}
    v_pk_add_f32 v[16:17], v[16:17], v[18:19]
    s_mov_b64 exec, 0xffffffff""")
    k.vm(f"buffer_store_dwordx2 v[16:17], v12, s[16:19], s34 offen {HO}", "out2")
    k.i("s_mov_b64 exec, -1")
    stamp(15, "p2")
    k.auto = None
    print("P2 end: W1 left", B1.left(), "W2 left", W2B.left(), file=sys.stderr)
    B1.go(99)
    if not OPT.get("nodrain"):
        W2B.go(O("w2_d2", 12))
        k.wait(vm="out2")
    stamp(12)
    k.i("s_barrier")
    sig_row(F2, 6, "s_and_b32 s42, s29, 3", "s_mov_b32 s43, s30")
    k.i(f"s_mul_i32 s23, s20, 6144\ns_mul_i32 s25, s27, 122880\ns_add_u32 s25, s25, s23\ns_add_u32 s25, s25, {W1 + 98304}")
    for i in range(6):
        if i % 4 == 0: k.i(f"s_add_u32 m0, s23, {98304 + 1024*i}")
        k.vm(f"buffer_load_dwordx4 v3, s[16:19], s25 offen offset:{1024*(i%4)} {HO} lds", "w1t")
        if i % 4 == 3: k.i("s_add_u32 s25, s25, 4096")
    if OPT.get("usplit"): tabsum()
    k.i(f"v_lshlrev_b32 v6, 2, v0\nv_add_u32 v6, 122880, v6")
    k.lg(f"ds_write_b32 v6, v{TBV}")
    k.lg(f"ds_write_b32 v6, v{TBV+1} offset:1024")

def phase3():
    TB = 122880
    k.i(f"""s_mul_i32 s21, s28, 40960
    s_add_u32 s21, s21, {HH}
    v_and_b32 v8, 31, v1
    v_lshrrev_b32 v7, 5, v1
    v_lshlrev_b32 v8, 3, v8
    v_lshl_add_u32 v8, v7, 8, v8
    s_lshl_b32 s33, s28, 12
    s_add_u32 s33, s33, {ST}
    v_lshlrev_b32 v14, 4, v7
    v_add_u32 v14, {TB}, v14
    v_bfe_u32 v15, v1, 4, 1
    v_mul_u32_u24 v15, 49152, v15
    v_and_b32 v16, 15, v1
    v_lshl_add_u32 v15, v16, 4, v15
    v_lshl_add_u32 v15, v7, 9, v15
    s_mul_i32 s34, s28, 98304
    s_mul_i32 s25, s27, 3072
    s_add_u32 s34, s34, s25
    s_add_u32 s34, s34, {H1}""")
    W2B.go(O("w2_w2", 4))
    k.wait(vm="w1t", lg="all")
    k.i("s_barrier")
    poll_row(F2, 10, O('slp2', 0))
    stamp(13)
    ACC = 40; WB = 88; NS = 9; AH = O('ah3', 6); NR = O("pre3", 12); SR = 20; CT = 172
    HRL = list(range(124, 172, 4)) + list(range(220, 256, 4))
    H = BG()
    for i in range(40):
        r = HRL[i % NR]
        H.add(f"buffer_load_dwordx4 v[{r}:{r+3}], v3, s[16:19], s21 offen offset:{1024*(i%4)} {HO}", f"h{i}", post=("s_add_u32 s21, s21, 4096" if i % 4 == 3 else ""))
    R3 = O("r3", NR - 1)
    def stats_ld():
        for j in range(8):
            k.vm(f"buffer_load_dwordx2 v[{SR+2*j}:{SR+2*j+1}], v8, s[16:19], s33 offen offset:{512*j} {HO}", "stats")
    if R3 == NR - 1:
        H.go(4); stats_ld(); H.go(NR - 5)
    else: H.go(R3)
    TL = O("tl3", 4)
    items = [(ks, j) for ks in range(40-TL) for j in range(3)] + [(ks, j) for j in range(3) for ks in range(40-TL, 40)]
    def rd(n):
        ks, j = items[n]
        o = (ks*3 + j) * 1024
        r = WB + 4*(n % NS)
        k.lg(f"ds_read_b128 v[{r}:{r+3}], v{3 + o//65536} offset:{o % 65536}", f"w{n}")
    with capture() as c:
        for j in range(1, 8): k.i(f"v_pk_add_f32 v[{SR}:{SR+1}], v[{SR}:{SR+1}], v[{SR+2*j}:{SR+2*j+1}]")
        k.i(f"""v_mov_b32 v10, v{SR}
        v_mov_b32 v11, v{SR+1}
        v_permlane32_swap_b32 v{SR}, v10
        v_permlane32_swap_b32 v{SR+1}, v11
        v_pk_add_f32 v[8:9], v[{SR}:{SR+1}], v[10:11]
        v_mul_f32 v8, 0x3acccccd, v8
        v_mul_f32 v9, 0x3acccccd, v9
        v_fma_f32 v9, -v8, v8, v9
        v_max_f32 v9, 0, v9""")
        bf16r(8, 8); bf16r(9, 9)
        k.i("v_add_f32 v9, 0x3727c5ac, v9")
        bf16r(9, 9)
        k.i("v_sqrt_f32 v9, v9")
        bf16r(9, 9)
        k.i("v_rcp_f32 v10, v9\nv_mul_f32 v12, v8, v10\nv_sub_f32 v12, 0, v12")
    statl = c.lines
    def tab_reads(nt):
        for j in range(4):
            n = 4*nt + j
            k.lg(f"ds_read_b128 v[{CT+4*n}:{CT+4*n+3}], v14 offset:{1024+128*nt+32*j}")
            k.lg(f"ds_read_b128 v[{SR+4*j}:{SR+4*j+3}], v14 offset:{128*nt+32*j}", f"t{nt}")
    def tab_lines(nt):
        with capture() as c:
            for j in range(4):
                b = CT + 4*(4*nt + j)
                for h in range(2):
                    k.i(f"v_pk_fma_f32 v[{b+2*h}:{b+2*h+1}], v[{SR+4*j+2*h}:{SR+4*j+2*h+1}], v[12:13], v[{b+2*h}:{b+2*h+1}] op_sel_hi:[1,0,1]")
        return c.lines
    def epi_lines(nt, j):
        n = 4*nt + j
        a = ACC + 4*n; b = CT + 4*n
        with capture() as c:
            for h in range(2):
                k.i(f"v_pk_fma_f32 v[{a+2*h}:{a+2*h+1}], v[{a+2*h}:{a+2*h+1}], v[10:11], v[{b+2*h}:{b+2*h+1}] op_sel_hi:[1,0,1]")
            for h in range(4): k.i(f"v_max_f32 v{a+h}, 0, v{a+h}")
            for h in range(2):
                k.i(f"v_pk_mul_f32 v[{a+2*h}:{a+2*h+1}], v[{a+2*h}:{a+2*h+1}], v[{a+2*h}:{a+2*h+1}]")
            for h in range(2):
                k.i(f"v_cvt_pk_bf16_f32 v{CT+8*(n//2)+2*(n%2)+h}, v{a+2*h}, v{a+2*h+1}")
        return c.lines
    def st_h1(nt, e):
        k.vm(f"buffer_store_dwordx4 v[{CT+16*nt+8*e}:{CT+16*nt+8*e+3}], v15, s[16:19], s34 offen offset:{1024*nt+256*e} {HO}", "out3")
    for n in range(AH): rd(n)
    fill = []
    k.auto = lambda: W2B.go(); k.th = O("th3", 100)
    for n, (ks, j) in enumerate(items):
        G3 = O("g3", 1)
        if n % G3 == 0:
            last = min(n + G3 - 1, 119)
            k.wait(vm=f"h{max(items[m][0] for m in range(n, last + 1))}", lg=f"w{last}")
        if n == 12: cst(7)
        if n == 108: cst(9)
        d = vr(ACC + 16*j, 16)
        k.i(f"v_mfma_f32_32x32x16_bf16 {d}, {vr(WB + 4*(n % NS), 4)}, {vr(HRL[ks % NR], 4)}, {'0' if ks == 0 else d}")
        if n % 3 == 0: H.go()
        elif n % 3 == 1 and 40 - H.left() < n//3 + NR - 1 and n < 3*(40 - TL): H.go()
        if R3 != NR - 1 and n == O("st3", 26): stats_ld()
        if O('w2_p3', 0) and n % O('w2_p3', 0) == 4: W2B.go()
        if n + AH < 120: rd(n + AH)
        if n == (18 if R3 == NR - 1 else O('st3', 26) + 9):
            k.wait(vm='stats'); fill += statl
        for nt in range(3):
            if n == 52 + 12*nt: tab_reads(nt)
            if n == 58 + 12*nt:
                k.wait(lg=f"t{nt}"); fill += tab_lines(nt)
        if n == 121 - 2*TL: fill += epi_lines(0, 0) + epi_lines(0, 1) + epi_lines(0, 2) + epi_lines(0, 3)
        if n == 121 - TL: fill += epi_lines(1, 0) + epi_lines(1, 1)
        for _ in range(3 if n < 120 - 2*TL else 6):
            if fill: k.i(fill.pop(0))
    stamp(14)
    for l in fill: k.i(l)
    st_h1(0, 0); st_h1(0, 1); st_h1(1, 0)
    for nt, j in ((1, 2), (1, 3), (2, 0), (2, 1), (2, 2), (2, 3)):
        for l in epi_lines(nt, j): k.i(l)
        if j % 2 == 1: st_h1(nt, j // 2)
    k.auto = None
    print("P3 end: W2 left", W2B.left(), file=sys.stderr)
    if not OPT.get("nodrain"):
        W2B.go(O("w2_d3", 12))
        k.wait(vm="out3")
    stamp(15)
    k.i("s_barrier")
    sig_row(F3, 6, "s_lshr_b32 s42, s27, 2", "s_and_b32 s43, s27, 3")

def phase4():
    HR = 20; BR = 30; ACC = 40; RING = 120; NB = O("nb4", 6)
    srd(8, PB2, 1280)
    k.i(f"""v_and_b32 v4, 15, v1
    v_lshrrev_b32 v5, 4, v1
    s_lshl_b32 s33, s12, 1
    s_lshr_b32 s25, s20, 1
    s_add_u32 s33, s33, s25
    s_mul_i32 s33, s33, 40
    s_mul_i32 s25, s13, 5
    s_add_u32 s33, s33, s25
    s_lshl_b32 s33, s33, 10
    s_add_u32 s33, s33, {HH}
    s_and_b32 s25, s20, 1
    s_lshl_b32 s25, s25, 8
    s_add_u32 s33, s33, s25
    v_lshrrev_b32 v8, 1, v5
    v_lshlrev_b32 v8, 9, v8
    v_lshl_add_u32 v8, v4, 4, v8
    v_and_b32 v9, 1, v5
    v_lshl_add_u32 v8, v9, 3, v8
    v_add_u32 v9, 4096, v8
    v_lshlrev_b32 v17, 3, v5
    s_mul_i32 s34, s13, 160""")
    for c in range(5):
        k.vm(f"buffer_load_dwordx2 v[{HR+2*c}:{HR+2*c+1}], v{8 if c < 4 else 9}, s[16:19], s33 offen offset:{1024*(c%4)} {HO}")
    for c in range(5):
        k.vm(f"buffer_load_dwordx2 v[{BR+2*c}:{BR+2*c+1}], v17, s[8:11], s34 offen offset:{32*c}", "res")
    W2B.go(99)
    k.i(f"""s_mul_i32 s21, s12, 196608
    s_mul_i32 s22, s20, 12288
    s_add_u32 s21, s21, s22
    s_add_u32 s21, s21, {H1}
    s_lshl_b32 s25, s12, 6
    s_lshl_b32 s33, s20, 4
    s_add_u32 s25, s25, s33
    v_add_u32 v6, s25, v4
    v_mul_u32_u24 v7, 1280, v6
    v_lshl_add_u32 v7, v5, 3, v7
    s_mul_i32 s33, s20, 15360
    v_add_u32 v13, s33, v3""")
    for j in range(4):
        k.i(f"s_add_u32 s33, s20, {j}\ns_and_b32 s33, s33, 3\ns_mul_i32 s33, s33, 49152\nv_add_u32 v{8+j}, s33, v3")
    for j in range(1, 4):
        k.i(f"s_sub_u32 s33, s20, {j}\ns_and_b32 s33, s33, 3\ns_mul_i32 s33, s33, 15360\ns_add_u32 s33, s33, {(j-1)*5120}\nv_add_u32 v{13+j}, s33, v3")
    srd(8, POUT, 2621440)
    poll_row(F3, 18, O('slp3', 0))
    stamp(16)
    Q = BG()
    for i in range(48):
        t, j = divmod(i, 4)
        r = RING + 16*(t % NB) + 4*j
        Q.add(f"buffer_load_dwordx4 v[{r}:{r+3}], v{8+j}, s[16:19], s21 offen offset:{1024*(t%4)} {HO}", f"s{t}_{j}", post=("s_add_u32 s21, s21, 4096" if i % 16 == 15 else ""))
    Q.go(O('r4', 4*(NB-1)))
    XF = 232
    with capture() as c4:
        k.i("s_mov_b32 s33, 0xffff0000")
        for j in range(10):
            k.i(f"v_lshlrev_b32 v{XF+2*j}, 16, v{HR+j}\nv_and_b32 v{XF+2*j+1}, s33, v{HR+j}")
            k.i(f"v_lshlrev_b32 v{XF+20}, 16, v{BR+j}\nv_and_b32 v{XF+21}, s33, v{BR+j}")
            k.i(f"v_pk_add_f32 v[{XF+2*j}:{XF+2*j+1}], v[{XF+2*j}:{XF+2*j+1}], v[{XF+20}:{XF+21}]")
    fill4 = c4.lines
    def red_w(j):
        for c in range(5):
            r = ACC + 20*j + 4*c
            k.lg(f"ds_write_b128 v13, v[{r}:{r+3}] offset:{(j-1)*5120 + 1024*c}")
    order = [(t, j) for t in range(10) for j in range(4)] + [(t, j) for j in (1, 2, 3, 0) for t in (10, 11)]
    for n, (t, j) in enumerate(order):
        k.wait(vm=f"s{t}_{j}")
        if n == 4: cst(11)
        if n == 40: cst(13)
        for c in range(5):
            d = vr(ACC + (5*j+c)*4, 4)
            k.i(f"v_mfma_f32_16x16x32_bf16 {d}, {ar(W2R[5*t+c], 4)}, {vr(RING+16*(t%NB)+4*j, 4)}, {'0' if t == 0 else d}")
            if c == 1: Q.go()
            if c == 3 and 48 - Q.left() < n + 4*(NB-1): Q.go()
            for _ in range(2):
                if fill4: k.i(fill4.pop(0))
        if n in (42, 44, 46): red_w((n - 40)//2)
    stamp(17)
    k.wait(lg="all"); k.i("s_barrier")
    RR = 120
    for j in range(1, 4):
        for c in range(5):
            r = RR + 20*(j-1) + 4*c
            k.lg(f"ds_read_b128 v[{r}:{r+3}], v{13+j} offset:{1024*c}", f"r{j}_{c}")
    for c in range(5):
        for h in range(2):
            d = XF + 4*c + 2*h; a = ACC + 4*c + 2*h
            k.i(f"v_pk_add_f32 v[{d}:{d+1}], v[{d}:{d+1}], v[{a}:{a+1}]")
    for j in range(1, 4):
        for c in range(5):
            k.wait(lg=f"r{j}_{c}")
            for h in range(2):
                d = XF + 4*c + 2*h; a = RR + 20*(j-1) + 4*c + 2*h
                k.i(f"v_pk_add_f32 v[{d}:{d+1}], v[{d}:{d+1}], v[{a}:{a+1}]")
            if j == 3:
                k.i(f"v_cvt_pk_bf16_f32 v{HR+2*c}, v{XF+4*c}, v{XF+4*c+1}\nv_cvt_pk_bf16_f32 v{HR+2*c+1}, v{XF+4*c+2}, v{XF+4*c+3}")
                k.vm(f"buffer_store_dwordx2 v[{HR+2*c}:{HR+2*c+1}], v7, s[8:11], s34 offen offset:{32*c} {OPT.get('opol', '')}")

def stamp_out():
    if not OPT["stamps"]: return
    if OPT.get("enc") is not None:
        e = O("enc", 0)
        k.i(f"""s_waitcnt vmcnt(0) lgkmcnt(0)
        s_memrealtime s[100:101]
        s_waitcnt lgkmcnt(0)
        s_sub_u32 s4, s{64+2*e}, s64
        s_lshl_b32 s4, s4, 2
        s_add_u32 s4, s4, 4000
        encl:
        s_memrealtime s[6:7]
        s_waitcnt lgkmcnt(0)
        s_sub_u32 s6, s6, s64
        s_cmp_lt_u32 s6, s4
        s_cbranch_scc1 encl""")
        return
    n = NSTAMP
    k.i("s_waitcnt vmcnt(0) lgkmcnt(0)")
    k.i(f"s_memrealtime s[{64+2*n}:{65+2*n}]")
    k.i("s_waitcnt lgkmcnt(0)")
    k.i(f"s_lshl_b32 s3, s45, 2\ns_add_u32 s3, s3, s20\ns_lshl_b32 s3, s3, 7\ns_add_u32 s3, s3, 0x2000000\nv_mov_b32 v1, s3")
    for j in range(n+1): k.i(f"v_mov_b32 v{2+j}, s{64+2*j}")
    k.i("s_mov_b64 exec, 1")
    for j in range(n+1): k.i(f"global_store_dword v1, v{2+j}, s[14:15] offset:{4*j}")

def emit(path):
    global k
    k = Kern(KN)
    phase0(); phase1(); phase2(); phase3(); phase4(); stamp_out()
    k.label("kend"); k.i("s_endpgm")
    body, added = hazard_pass(k.L, verbose=bool(OPT.get("vnop")))
    print("instrs", len(body), "nop states added", added, file=sys.stderr)
    out = ["; pre-LN linear-attention block + squared-ReLU MLP in one persistent launch (256 workgroups, one per CU).",
           "; kernarg: x, wqkv, wo, (unused), w1, b1, w2, b2, out, debug, ws",
           "; phase 0: LN1 and re-layout of the weights into MFMA fragment order (d_ws)   -> flags F0 / F0B",
           "; phase 1: qkv GEMM, phi, per-tile k^T v partial sums added into d_ws          -> flags F1",
           "; phase 2: o = (pq kv) / den, h = x + o wo, row sums for LN2                    -> flags F2",
           "; phase 3: relu(LN2(h) w1 + b1)^2 (LN folded into the epilogue)                 -> flags F3",
           "; phase 4: out = h + h1 w2 + b2",
           "; hand-offs: sc1 stores, vmcnt drain, barrier, sc1 flag word = (epoch word of d_ws + 1) | 2^31, sc1 polls and loads",
           "; @launch grid=(256,1,1) block=(256,1,1) lds=163840",
           '.amdgcn_target "amdgcn-amd-amdhsa--gfx950"', ".text", f".globl {KN}", ".p2align 8", f".type {KN},@function", f"{KN}:"]
    out += [("" if (l.endswith(":") or l.startswith(";")) else "    ") + l for l in body]
    out += ['.section .rodata,"a"', ".p2align 6", f".amdhsa_kernel {KN}", "  .amdhsa_next_free_vgpr 512", "  .amdhsa_next_free_sgpr 102",
            "  .amdhsa_accum_offset 256", "  .amdhsa_group_segment_fixed_size 0", "  .amdhsa_kernarg_size 88",
            "  .amdhsa_user_sgpr_count 2", "  .amdhsa_user_sgpr_kernarg_segment_ptr 1",
            "  .amdhsa_system_sgpr_workgroup_id_x 1", ".end_amdhsa_kernel"]
    open(path, "w").write("\n".join(out) + "\n")

if __name__ == "__main__":
    for a in sys.argv[2:]:
        kk, v = a.split("=")
        OPT[kk] = {"True": True, "False": False, "none": ""}.get(v, v.replace("_", " "))
    emit(sys.argv[1])
```
